```python
import torch

def _softmax(x, axis=-1):
    return torch.softmax(x, dim=axis)
def _gelu(x):
    return torch.nn.functional.gelu(x, approximate="tanh")
def _silu(x):
    return torch.nn.functional.silu(x)
def _sigmoid(x):
    return torch.sigmoid(x)
def _layernorm(x, axis=-1, eps=1e-5):
    m = x.mean(dim=axis, keepdim=True)
    v = x.var(dim=axis, keepdim=True, unbiased=False)
    return (x - m) / torch.sqrt(v + eps)
def _scatter_add(tgt, idx, src, axis=0):
    return tgt.clone().index_add_(axis, idx, src)
def _segment_sum(src, seg, n):
    out = torch.zeros((n,) + src.shape[1:], dtype=src.dtype)
    return out.index_add_(0, seg, src)
def _pad(x, pw):
    flat = tuple(v for pair in reversed(pw) for v in pair)
    return torch.nn.functional.pad(x, flat)

kernel_name = 'parallel_sum__linear_kernel_hedgehog__dense_activation_mish__prompt'

def setup_inputs():

    _w = (lambda a: (lambda t: t.to(torch.bfloat16) if t.is_floating_point() else t)(torch.as_tensor(a)))
    def _A_setup():
        B, S, D, H = 1, 2048, 512, 32
        Dh = D // H
        return {
            "x": _w((lambda *s: torch.randn(*s, dtype=torch.bfloat16) * 0.05)(B, S, D)),
            "wqkv": _w((lambda *s: torch.randn(*s, dtype=torch.bfloat16) * 0.2)(D, 3 * D)),
            "w_phi": _w((lambda *s: torch.randn(*s, dtype=torch.bfloat16) * 0.2)(H, Dh, Dh) * (Dh ** -0.5)),
            "wo": _w((lambda *s: torch.randn(*s, dtype=torch.bfloat16) * 0.05)(D, D)),
        }
    _A_in = _A_setup()

    def _B_setup():
        B, S, D, F = 1, 2048, 512, 1376
        return {
            "x": _w((lambda *s: torch.randn(*s, dtype=torch.bfloat16) * 0.05)(B, S, D)),
            "w1": _w((lambda *s: torch.randn(*s, dtype=torch.bfloat16) * 0.8)(D, F) * (D ** -0.5)),
            "b1": _w((lambda *s: torch.randn(*s, dtype=torch.bfloat16) * 0.2)(F)),
            "w2": _w((lambda *s: torch.randn(*s, dtype=torch.bfloat16) * 0.1)(F, D) * (F ** -0.5)),
        }
    _B_in = _B_setup()

    return {
        "A_x": _A_in["x"],
        "A_wqkv": _A_in["wqkv"],
        "A_w_phi": _A_in["w_phi"],
        "A_wo": _A_in["wo"],
        "B_x": _B_in["x"],
        "B_w1": _B_in["w1"],
        "B_b1": _B_in["b1"],
        "B_w2": _B_in["w2"],
    }

def reference(A_x, A_wqkv, A_w_phi, A_wo, B_x, B_w1, B_b1, B_w2):
    def _A_ref(x, wqkv, w_phi, wo):
        B, S, D = x.shape
        H = 32; Dh = D // H
        qkv = (lambda x, *d: x.permute(*d))((x @ wqkv).reshape(B, S, 3, H, Dh), 2, 0, 3, 1, 4)
        q, k, v = qkv[0], qkv[1], qkv[2]
        pq = torch.einsum("bhsd,hdf->bhsf", q, w_phi)
        pk = torch.einsum("bhsd,hdf->bhsf", k, w_phi)
        phi_q = torch.concatenate([_softmax(pq, axis=-1), _softmax(-pq, axis=-1)], axis=-1)
        phi_k = torch.concatenate([_softmax(pk, axis=-1), _softmax(-pk, axis=-1)], axis=-1)
        kv = torch.einsum("bhsf,bhsd->bhfd", phi_k, v)
        z  = torch.einsum("bhsf->bhf", phi_k)
        num = torch.einsum("bhqf,bhfd->bhqd", phi_q, kv)
        den = torch.einsum("bhqf,bhf->bhq", phi_q, z)[..., None] + 1e-6
        o = num / den
        return (lambda x, *d: x.permute(*d))(o, 0, 2, 1, 3).reshape(B, S, D) @ wo

    def _B_ref(x, w1, b1, w2):
        h = torch.einsum("bsd,df->bsf", x, w1) + b1
        sp = torch.log1p(torch.exp(-torch.abs(h))) + torch.where(h > 0, h, torch.zeros_like(h))
        act = h * torch.tanh(sp)
        return torch.einsum("bsf,fd->bsd", act, w2)

    x = A_x
    xn = _layernorm(x, axis=-1)
    return x + _A_ref(xn, A_wqkv, A_w_phi, A_wo) + _B_ref(xn, B_w1, B_b1, B_w2)
```

```python
import re

REG_RE = re.compile(r'^(-|abs\()?([vas])(\d+|\[(\d+):(\d+)\])\)?$')

def regs_of(tok):
    tok = tok.strip()
    if tok in ('vcc', 'vcc_lo', 'vcc_hi'):
        return {('s', 'vcc')}
    if tok in ('exec',):
        return {('s', 'exec')}
    if tok == 'm0':
        return {('s', 'm0')}
    t = tok
    if t.startswith('-'):
        t = t[1:]
    if t.startswith('|') and t.endswith('|'):
        t = t[1:-1]
    if t.startswith('abs(') and t.endswith(')'):
        t = t[4:-1]
    m = re.match(r'^([vas])(\d+)$', t)
    if m:
        return {(m.group(1), int(m.group(2)))}
    m = re.match(r'^([vas])\[(\d+):(\d+)\]$', t)
    if m:
        return {(m.group(1), i) for i in range(int(m.group(2)), int(m.group(3)) + 1)}
    return set()

TRANS = ('v_exp_f32', 'v_log_f32', 'v_rcp_f32', 'v_rsq_f32', 'v_sqrt_f32', 'v_sin_f32', 'v_cos_f32')

class Ins:
    __slots__ = ('text', 'op', 'kind', 'defs', 'uses', 'srcc', 'srcab', 'passes', 'slots', 'store_data', 'dpp', 'lds_dma')

def parse(text):
    t = text.split(';')[0].strip()
    parts = t.split(None, 1)
    op = parts[0]
    rest = parts[1] if len(parts) > 1 else ''
    ops = []
    depth = 0
    cur = ''
    for ch in rest:
        if ch in '[(':
            depth += 1
        if ch in '])':
            depth -= 1
        if ch == ',' and depth == 0:
            ops.append(cur.strip()); cur = ''
        else:
            cur += ch
    if cur.strip():
        ops.append(cur.strip())
    mods = ''
    if ops:
        sp = ops[-1].split(None, 1)
        ops[-1] = sp[0]
        if len(sp) > 1:
            mods = sp[1]
    i = Ins()
    i.text = text; i.op = op; i.defs = set(); i.uses = set(); i.srcc = set(); i.srcab = set()
    i.passes = 0; i.slots = 1; i.store_data = set(); i.dpp = False; i.lds_dma = False
    R = [regs_of(o) for o in ops]
    allr = lambda lst: set().union(*lst) if lst else set()
    if op == 's_nop':
        i.kind = 'nop'; i.slots = int(ops[0], 0) + 1
    elif op.startswith('v_mfma'):
        i.kind = 'mfma'
        i.passes = 8 if '32x32x16' in op else 4
        i.defs = R[0]; i.srcab = R[1] | R[2]; i.srcc = R[3]; i.uses = i.srcab | i.srcc
    elif op.startswith('v_'):
        i.kind = 'valu'
        base = op.replace('_e32', '').replace('_e64', '').replace('_dpp', '').replace('_sdwa', '')
        if base in TRANS:
            i.kind = 'trans'
        if base.startswith('v_dot'):
            i.kind = 'dot'
        i.dpp = '_dpp' in op or 'quad_perm' in mods or 'row_' in mods
        if 'permlane' in op and 'swap' in op:
            i.defs = R[0] | R[1]; i.uses = R[0] | R[1]; i.kind = 'permlane'
        elif base in ('v_add_co_u32', 'v_sub_co_u32', 'v_addc_co_u32'):
            i.defs = R[0] | R[1]; i.uses = allr(R[2:])
        else:
            i.defs = R[0]; i.uses = allr(R[1:])
            if base.startswith('v_cmpx'):
                i.defs |= {('s', 'exec')}
            if base in ('v_fmac_f32', 'v_dot2c_f32_bf16', 'v_pk_fmac_f16') or i.dpp:
                i.uses |= R[0]
            if base == 'v_dot2c_f32_bf16':
                i.srcc = R[0]; i.srcab = allr(R[1:])
            if base == 'v_dot2_f32_bf16':
                i.srcc = R[3]; i.srcab = R[1] | R[2]
    elif op.startswith('buffer_') or op.startswith('global_'):
        i.kind = 'vmem'
        if op in ('buffer_wbl2', 'buffer_inv'):
            pass
        elif 'lds' in mods.split() or op.startswith('global_load_lds'):
            i.lds_dma = True
            i.uses = allr(R) | {('s', 'm0')}
        elif '_load' in op:
            i.defs = R[0]; i.uses = allr(R[1:])
        elif '_store' in op:
            i.uses = allr(R)
            data = R[0] if op.startswith('buffer_') else R[1]
            if 'x3' in op or 'x4' in op:
                i.store_data = data
        elif '_atomic' in op:
            i.uses = allr(R)
            if 'sc0' in mods.split():
                i.defs = R[0]
        else:
            raise ValueError(text)
    elif op.startswith('ds_'):
        i.kind = 'ds'
        if op.startswith('ds_read') or 'permute' in op or 'swizzle' in op:
            i.defs = R[0]; i.uses = allr(R[1:])
        else:
            i.uses = allr(R)
    elif op.startswith('s_'):
        i.kind = 'salu'
        if op.startswith('s_load') or op.startswith('s_mem'):
            i.kind = 'smem'; i.defs = R[0]; i.uses = allr(R[1:])
        elif op.startswith('s_cmp') or op.startswith('s_cbranch') or op in ('s_branch', 's_barrier', 's_waitcnt', 's_endpgm', 's_setprio', 's_sleep', 's_bitcmp1_b32', 's_bitcmp0_b32'):
            i.uses = allr(R)
        else:
            i.defs = R[0] if R else set(); i.uses = allr(R[1:])
            if 'saveexec' in op:
                i.defs |= {('s', 'exec')}
    else:
        raise ValueError('unknown op ' + text)
    return i

VALU_KINDS = ('valu', 'trans', 'dot', 'permlane')

def need(prod, cons):
    n = 0
    pv = {r for r in prod.defs if r[0] in 'va'}
    ps = {r for r in prod.defs if r[0] == 's'}
    if prod.kind in VALU_KINDS:
        if cons.kind == 'mfma' and (pv & cons.uses):
            n = max(n, 3 if prod.kind == 'dot' else 2)
        if cons.kind == 'mfma' and ('s', 'exec') in ps:
            n = max(n, 4)
        if prod.kind == 'trans' and cons.kind in ('valu', 'dot', 'permlane') and (pv & cons.uses):
            n = max(n, 1)
        if cons.kind == 'permlane' and (pv & cons.uses):
            n = max(n, 2)
        if cons.kind in VALU_KINDS and cons.dpp and (pv & cons.uses):
            n = max(n, 2)
        if cons.op.startswith('v_readfirstlane') or cons.op.startswith('v_readlane'):
            if pv & cons.uses:
                n = max(n, 1)
            if ('s', 'exec') in ps:
                n = max(n, 4)
            if ps & cons.uses:
                n = max(n, 4)
        if ps:
            if cons.kind == 'vmem' and (ps & cons.uses):
                n = max(n, 5)
            if cons.kind in VALU_KINDS and (ps & cons.uses):
                n = max(n, 2)
            if cons.kind in ('salu', 'smem') and (ps & cons.uses):
                n = max(n, 2)
            if ('s', 'exec') in ps and cons.kind in VALU_KINDS and cons.dpp:
                n = max(n, 5)
            if ('s', 'exec') in ps and cons.kind == 'permlane':
                n = max(n, 4)
        if prod.kind == 'dot':
            if cons.kind == 'dot' and cons.op == prod.op:
                if pv & cons.srcab:
                    n = max(n, 3)
            elif pv & (cons.uses | cons.defs):
                n = max(n, 3)
        if 'sdwa' in prod.op and cons.kind in VALU_KINDS and (pv & (cons.uses | cons.defs)):
            n = max(n, 1)
    if prod.kind == 'mfma':
        big = 12 if prod.passes == 8 else 8
        if cons.kind == 'mfma':
            if pv & cons.srcab:
                n = max(n, big)
            if pv & cons.srcc:
                if not (cons.srcc == pv and cons.passes == prod.passes):
                    n = max(n, big - 2)
            elif pv & cons.defs:
                n = max(n, big - 2)
        elif cons.kind in VALU_KINDS or cons.kind in ('vmem', 'ds'):
            if pv & (cons.uses | cons.defs):
                n = max(n, big)
        if cons.kind in VALU_KINDS and (prod.srcc & cons.defs):
            n = max(n, 7 if prod.passes == 8 else 3)
        if cons.kind in ('vmem', 'ds') and (prod.srcc & cons.defs):
            n = max(n, 7 if prod.passes == 8 else 3)
    if prod.kind == 'salu' and ('s', 'm0') in ps and cons.kind == 'vmem' and cons.lds_dma:
        n = max(n, 1)
    if prod.kind == 'vmem' and prod.store_data:
        if prod.store_data & cons.defs:
            n = max(n, 2)
    return n

class Asm:
    def __init__(self):
        self.out = []
        self.hist = []
        self.vm = []
        self.lg = []
        self.nins = 0
    def raw(self, s):
        self.out.append(s)
    def comment(self, s):
        self.out.append('    ; ' + s)
    def _push(self, ins):
        self.out.append('    ' + ins.text)
        self.hist.append(ins)
        if len(self.hist) > 40:
            self.hist.pop(0)
        self.nins += 1
    def nop(self, n):
        while n > 0:
            k = min(n, 16)
            self._push(parse('s_nop %d' % (k - 1)))
            n -= k
    def __call__(self, text, tag=None):
        ins = parse(text)
        dist = 0
        pad = 0
        for p in reversed(self.hist):
            r = need(p, ins)
            if r > dist:
                pad = max(pad, r - dist)
            dist += p.slots
            if dist >= 20:
                break
        if pad:
            self.nop(pad)
        self._push(ins)
        if ins.kind == 'vmem' and ins.op not in ('buffer_wbl2', 'buffer_inv'):
            self.vm.append(tag)
            assert len(self.vm) <= 63, 'too many vmem ops in flight'
        if ins.kind == 'ds':
            self.lg.append(tag)
        return ins
    def flush(self):
        dist = 0
        pad = 0
        for p in reversed(self.hist):
            w = 0
            if p.kind == 'mfma':
                w = 12 if p.passes == 8 else 8
            elif p.kind in VALU_KINDS:
                w = 5 if any(r[0] == 's' for r in p.defs) else 3
            elif p.kind == 'vmem' and p.store_data:
                w = 2
            elif p.kind == 'salu' and ('s', 'm0') in p.defs:
                w = 1
            if w > dist:
                pad = max(pad, w - dist)
            dist += p.slots
            if dist >= 20:
                break
        if pad:
            self.nop(pad)
    def label(self, name):
        self.flush()
        self.out.append(name + ':')
    def branch(self, text):
        self.flush()
        self(text)
    def wait_vm(self, tag=None):
        if tag is None:
            n = 0
        else:
            idx = [k for k, t in enumerate(self.vm) if t == tag]
            if not idx:
                return
            n = len(self.vm) - 1 - idx[-1]
        assert n <= 63, n
        self('s_waitcnt vmcnt(%d)' % n)
        self.vm = self.vm[len(self.vm) - n:] if n else []
    def wait_lg(self, tag=None):
        if tag is None:
            n = 0
        else:
            idx = [k for k, t in enumerate(self.lg) if t == tag]
            if not idx:
                return
            n = len(self.lg) - 1 - idx[-1]
        n = min(n, 14)
        self('s_waitcnt lgkmcnt(%d)' % n)
        self.lg = self.lg[len(self.lg) - n:] if n else []
    def text(self):
        return '\n'.join(self.out) + '\n'

def v(i, n=1):
    return 'v%d' % i if n == 1 else 'v[%d:%d]' % (i, i + n - 1)
def a(i, n=1):
    return 'a%d' % i if n == 1 else 'a[%d:%d]' % (i, i + n - 1)
def s(i, n=1):
    return 's%d' % i if n == 1 else 's[%d:%d]' % (i, i + n - 1)
```

```python
import sys
from asmlib import Asm, v, a, s

NAME = 'parallel_sum__linear_kernel_hedgehog__dense_activation_mish__prompt'
OPT = dict(stamps=0)
for arg in sys.argv[2:]:
    k, val = arg.split('=')
    OPT[k] = int(val, 0)

WS_ACT = 0x000000
WS_PHI = 0x600000
WS_W2F = 0xA00000
WS_KV = 0xC00000
WS_STAMP = 0xD00000
WS_SIZE = 0xE00000
KVH = 8 * 17 * 16

LOG2E = 0x3fb8aa3b

def srd(A, d, lo, size):
    A('s_mov_b32 %s, %s' % (s(d), s(lo)))
    A('s_mov_b32 %s, %s' % (s(d + 1), s(lo + 1)))
    A('s_mov_b32 %s, 0x%x' % (s(d + 2), size))
    A('s_mov_b32 %s, 0x20000' % s(d + 3))

def stamp(A, idx, sT, vT, swave, srdws, base, nw):
    if not OPT['stamps']:
        return
    A('s_memrealtime %s' % s(sT, 2))
    A('s_waitcnt lgkmcnt(0)')
    A.lg = []
    A('v_mov_b32 %s, %s' % (v(vT), s(sT)))
    A('s_mul_i32 %s, s2, %d' % (s(sT), nw))
    A('s_add_u32 %s, %s, %s' % (s(sT), s(sT), s(swave)))
    A('s_lshl_b32 %s, %s, 6' % (s(sT), s(sT)))
    A('s_add_u32 %s, %s, 0x%x' % (s(sT), s(sT), base + idx * 4))
    A('v_mov_b32 %s, 0' % v(vT + 1))
    A('buffer_store_dword %s, %s, %s, %s offen' % (v(vT), v(vT + 1), s(srdws, 4), s(sT)), tag='stamp')

def gen_k1():
    A = Asm()
    L_W = 0
    L_XB = 98304
    L_J = L_XB + 32768
    L_PH = L_J + 8192
    L_CS = L_PH + 4096
    L_KV = L_CS + 512
    L_END = L_KV + 6656
    SX, SW, SP, SJ, SWS, SB, SD = 40, 44, 48, 52, 56, 60, 64
    sWave, sRb, sCg, sType, sU0, sNval, sStride, sCol, sJump, sRt = 68, 69, 70, 71, 72, 73, 74, 75, 76, 77
    sWoff, sM0, sT0, sT1, sT2, sOnes, sStg = 78, 79, 80, 81, 82, 83, 84
    sXo = 85
    sOut = 88
    sTs = 90
    vX = 0
    vAcc = 128
    vWf = 176
    vCf = 200
    vLane, vL16 = 212, 213
    vWd = 214
    vWa = 217
    vCa = 220
    vXo = 223
    vXw = 224
    vXr = 226
    vS1, vS2 = 230, 231
    vCs = 232
    vB1 = 235
    vT = 238
    vFlag = 254
    A.raw('.p2align 8')
    A.raw('.type k1_kernel,@function')
    A.raw('k1_kernel:')
    A('s_cmp_ge_u32 s2, 256')
    A.branch('s_cbranch_scc1 K1_END')
    A('s_load_dwordx16 s[16:31], s[0:1], 0')
    A('s_load_dwordx4 s[32:35], s[0:1], 64')
    A('s_load_dwordx2 s[36:37], s[0:1], 80')
    A('v_and_b32 %s, 63, v0' % v(vLane))
    A('v_lshrrev_b32 %s, 6, v0' % v(vT))
    A('v_lshlrev_b32 %s, 4, %s' % (v(vL16), v(vLane)))
    A('v_readfirstlane_b32 %s, %s' % (s(sWave), v(vT)))
    A('s_and_b32 %s, s2, 7' % s(sT0))
    A('s_lshr_b32 %s, s2, 3' % s(sT1))
    A('s_and_b32 %s, %s, 1' % (s(sRb), s(sT0)))
    A('s_lshl_b32 %s, %s, 2' % (s(sRb), s(sRb)))
    A('s_and_b32 %s, %s, 3' % (s(sT2), s(sT1)))
    A('s_add_u32 %s, %s, %s' % (s(sRb), s(sRb), s(sT2)))
    A('s_lshr_b32 %s, %s, 1' % (s(sCg), s(sT0)))
    A('s_lshl_b32 %s, %s, 3' % (s(sCg), s(sCg)))
    A('s_lshr_b32 %s, %s, 2' % (s(sT2), s(sT1)))
    A('s_add_u32 %s, %s, %s' % (s(sCg), s(sCg), s(sT2)))
    A('s_lshl_b32 %s, %s, 3' % (s(sRt), s(sRb)))
    A('s_add_u32 %s, %s, %s' % (s(sRt), s(sRt), s(sWave)))
    A('s_cmp_ge_u32 %s, 6' % s(sCg))
    A('s_cselect_b32 %s, 1, 0' % s(sType))
    A('s_cselect_b32 %s, 6, 0' % s(sT0))
    A('s_cselect_b32 %s, 32, 16' % s(sT1))
    A('s_cmp_ge_u32 %s, 17' % s(sCg))
    A('s_cselect_b32 %s, 2, %s' % (s(sType), s(sType)))
    A('s_cselect_b32 %s, 17, %s' % (s(sT0), s(sT0)))
    A('s_cselect_b32 %s, 43, %s' % (s(sT1), s(sT1)))
    A('s_movk_i32 %s, 3072' % s(sStride))
    A('s_cselect_b32 %s, 2752, %s' % (s(sStride), s(sStride)))
    A('s_sub_u32 %s, %s, %s' % (s(sU0), s(sCg), s(sT0)))
    A('s_mul_i32 %s, %s, 3' % (s(sU0), s(sU0)))
    A('s_sub_u32 %s, %s, %s' % (s(sNval), s(sT1), s(sU0)))
    A('s_min_u32 %s, %s, 3' % (s(sNval), s(sNval)))
    A('s_lshl_b32 %s, %s, 6' % (s(sCol), s(sU0)))
    A('s_lshl_b32 %s, %s, 5' % (s(sT0), s(sU0)))
    A('s_add_u32 %s, %s, 1024' % (s(sT0), s(sT0)))
    A('s_cmp_eq_u32 %s, 1' % s(sType))
    A('s_cselect_b32 %s, %s, %s' % (s(sCol), s(sT0), s(sCol)))
    A('s_cselect_b32 %s, 928, 0' % s(sJump))
    sUs, sNb = 92, 93
    A('s_cselect_b32 %s, 32, 64' % s(sUs))
    A('s_cselect_b32 %s, 96, 32' % s(sNb))
    A('s_mov_b32 %s, 0x3f803f80' % s(sOnes))
    for i in range(1, 4):
        A('s_movk_i32 %s, %d' % (s(sXo + i - 1), 8192 * i))
    for m in range(3):
        c, row, t = vT, vT + 1, vT + 2
        A('v_add_u32 %s, %d, %s' % (v(c), 64 * m, v(vLane)))
        A('v_mul_u32_u24 %s, 171, %s' % (v(row), v(c)))
        A('v_lshrrev_b32 %s, 11, %s' % (v(row), v(row)))
        A('v_mul_u32_u24 %s, 12, %s' % (v(t), v(row)))
        A('v_sub_u32 %s, %s, %s' % (v(c), v(c), v(t)))
        A('v_mul_u32_u24 %s, %s, %s' % (v(row), s(sStride), v(row)))
        A('v_lshl_add_u32 %s, %s, 4, %s' % (v(row), v(c), v(row)))
        A('v_cmp_le_u32 vcc, 6, %s' % v(c))
        A('v_mov_b32 %s, %s' % (v(t), s(sJump)))
        A('v_cndmask_b32 %s, 0, %s, vcc' % (v(t), v(t)))
        A('v_add3_u32 %s, %s, %s, %s' % (v(vWd + m), v(row), v(t), s(sCol)))
    A('v_lshrrev_b32 %s, 3, %s' % (v(vT), v(vLane)))
    A('v_and_b32 %s, 7, %s' % (v(vT + 1), v(vLane)))
    A('s_lshl_b32 %s, %s, 15' % (s(sT0), s(sRt)))
    A('v_lshlrev_b32 %s, 10, %s' % (v(vXo), v(vT)))
    A('v_lshl_add_u32 %s, %s, 4, %s' % (v(vXo), v(vT + 1), v(vXo)))
    A('v_add_u32 %s, %s, %s' % (v(vXo), s(sT0), v(vXo)))
    A('s_mul_i32 %s, %s, %s' % (s(sWoff), s(sWave), s(sStride)))
    A('s_lshl_b32 %s, %s, 4' % (s(sWoff), s(sWoff)))
    A('s_lshl_b32 %s, %s, 7' % (s(sStg), s(sStride)))
    A('s_mul_i32 %s, %s, 3072' % (s(sM0), s(sWave)))
    A('s_waitcnt lgkmcnt(0)')
    srd(A, SX, 16, 2048 * 1024)
    A('s_cmp_eq_u32 %s, 2' % s(sType))
    A('s_cselect_b32 %s, s26, s18' % s(SW))
    A('s_cselect_b32 %s, s27, s19' % s(SW + 1))
    A('s_mov_b32 %s, %d' % (s(SW + 2), 512 * 3072))
    A('s_cselect_b32 %s, %d, %s' % (s(SW + 2), 512 * 2752, s(SW + 2)))
    A('s_mov_b32 %s, 0x20000' % s(SW + 3))
    srd(A, SWS, 36, WS_SIZE)
    srd(A, SD, 34, 256)
    stamp(A, 0, sTs, vT + 8, sWave, SWS, WS_STAMP, 8)
    A('s_cmp_eq_u32 %s, 1' % s(sType))
    A('s_cselect_b32 %s, %s, 1' % (s(sT0), s(sRb)))
    A('s_cmp_lg_u32 %s, 0' % s(sT0))
    A.branch('s_cbranch_scc1 K1_NOZERO')
    for i in range(4):
        A('v_mov_b32 %s, 0' % v(vT + 4 + i))
    A('s_mul_i32 %s, %s, %d' % (s(sT1), s(sNval), KVH))
    A('s_lshl_b32 %s, %s, 10' % (s(sT2), s(sWave)))
    A('v_add_u32 %s, %s, %s' % (v(vT), s(sT2), v(vL16)))
    A('v_mov_b32 %s, 0x7f000000' % v(vT + 1))
    A('v_cmp_gt_u32 vcc, %s, %s' % (s(sT1), v(vT)))
    A('v_cndmask_b32 %s, %s, %s, vcc' % (v(vT), v(vT + 1), v(vT)))
    A('s_mul_i32 %s, %s, %d' % (s(sT1), s(sU0), KVH))
    A('s_add_u32 %s, %s, 0x%x' % (s(sT1), s(sT1), WS_KV))
    A('buffer_store_dwordx4 %s, %s, %s, %s offen sc0 sc1' % (v(vT + 4, 4), v(vT), s(SWS, 4), s(sT1)))
    A.label('K1_NOZERO')
    A.vm = []
    for st in range(4):
        for m in range(3):
            A('s_add_u32 m0, %s, %d' % (s(sM0), st * 8 * 3072 + 1024 * m + L_W))
            A('buffer_load_dwordx4 %s, %s, %s offen lds' % (v(vWd + m), s(SW, 4), s(sWoff)), tag='w%d' % st)
        if st < 3:
            A('s_add_u32 %s, %s, %s' % (s(sWoff), s(sWoff), s(sStg)))
        for b in (2 * st, 2 * st + 1):
            for i in range(4):
                so = '0' if i == 0 else s(sXo + i - 1)
                A('buffer_load_dwordx4 %s, %s, %s, %s offen offset:%d' % (v(vX + 16 * b + 4 * i, 4), v(vXo), s(SX, 4), so, 128 * b), tag='x%d' % b)
    srd(A, SP, 20, 16384)
    A('s_and_b32 %s, %s, 3' % (s(sT0), s(sWave)))
    A('s_lshl_b32 %s, %s, 10' % (s(sT0), s(sT0)))
    A('s_add_u32 m0, %s, %d' % (s(sT0), L_PH))
    A('s_lshl_b32 %s, %s, 10' % (s(sT1), s(sU0)))
    A('s_lshl_b32 %s, %s, 9' % (s(sT2), s(sU0)))
    A('s_cmp_eq_u32 %s, 1' % s(sType))
    A('s_cselect_b32 %s, %s, %s' % (s(sT1), s(sT2), s(sT1)))
    A('s_add_u32 %s, %s, %s' % (s(sT1), s(sT1), s(sT0)))
    A('buffer_load_dwordx4 %s, %s, %s offen lds' % (v(vL16), s(SP, 4), s(sT1)), tag='ph')
    A('s_mov_b32 %s, s28' % s(SB))
    A('s_mov_b32 %s, s29' % s(SB + 1))
    A('s_cmp_eq_u32 %s, 2' % s(sType))
    A('s_cselect_b32 %s, 2752, 0' % s(SB + 2))
    A('s_mov_b32 %s, 0x20000' % s(SB + 3))
    A('v_and_b32 %s, 31, %s' % (v(vT), v(vLane)))
    A('v_lshlrev_b32 %s, 1, %s' % (v(vT), v(vT)))
    A('s_lshl_b32 %s, %s, 6' % (s(sT0), s(sU0)))
    for u in range(3):
        A('buffer_load_ushort %s, %s, %s, %s offen offset:%d' % (v(vB1 + u), v(vT), s(SB, 4), s(sT0), 64 * u), tag='b1')
    A('s_lshr_b32 %s, s2, 1' % s(sT0))
    A('s_cmp_ge_u32 %s, 86' % s(sT0))
    A('s_cselect_b32 %s, s22, s30' % s(SJ))
    A('s_cselect_b32 %s, s23, s31' % s(SJ + 1))
    A('s_mov_b32 %s, %d' % (s(SJ + 2), 1376 * 1024))
    A('s_cselect_b32 %s, %d, %s' % (s(SJ + 2), 512 * 1024, s(SJ + 2)))
    A('s_mov_b32 %s, 0x20000' % s(SJ + 3))
    A('s_cselect_b32 %s, 86, 0' % s(sT1))
    A('s_sub_u32 %s, %s, %s' % (s(sT1), s(sT0), s(sT1)))
    A('s_lshl_b32 %s, %s, 14' % (s(sT1), s(sT1)))
    A('s_and_b32 %s, s2, 1' % s(sT2))
    A('s_lshl_b32 %s, %s, 3' % (s(sT2), s(sT2)))
    A('s_add_u32 %s, %s, %s' % (s(sT2), s(sT2), s(sWave)))
    sNt = 94
    A('s_mov_b32 %s, %s' % (s(sNt), s(sT2)))
    A('s_lshl_b32 %s, %s, 6' % (s(sT2), s(sT2)))
    A('s_add_u32 %s, %s, %s' % (s(sT1), s(sT1), s(sT2)))
    A('v_lshrrev_b32 %s, 2, %s' % (v(vT), v(vLane)))
    A('v_and_b32 %s, 3, %s' % (v(vT + 1), v(vLane)))
    A('v_lshlrev_b32 %s, 10, %s' % (v(vT), v(vT)))
    A('v_lshl_add_u32 %s, %s, 4, %s' % (v(vT), v(vT + 1), v(vT)))
    A('s_lshl_b32 %s, %s, 10' % (s(sT2), s(sWave)))
    A('s_add_u32 m0, %s, %d' % (s(sT2), L_J))
    A('buffer_load_dwordx4 %s, %s, %s offen lds' % (v(vT), s(SJ, 4), s(sT1)), tag='job')
    sJo = 95
    A('s_lshr_b32 %s, %s, 1' % (s(sT1), s(sNt)))
    A('s_mul_i32 %s, %s, 118' % (s(sT1), s(sT1)))
    A('s_add_u32 %s, %s, %s' % (s(sT1), s(sT1), s(sT0)))
    A('s_lshl_b32 %s, %s, 1' % (s(sT1), s(sT1)))
    A('s_and_b32 %s, %s, 1' % (s(sT2), s(sNt)))
    A('s_add_u32 %s, %s, %s' % (s(sT1), s(sT1), s(sT2)))
    A('s_lshl_b32 %s, %s, 10' % (s(sT1), s(sT1)))
    A('s_add_u32 %s, %s, 0x%x' % (s(sJo), s(sT1), WS_W2F))
    A('s_cmp_ge_u32 %s, 118' % s(sT0))
    A('s_cselect_b32 %s, 0x7f000000, %s' % (s(sJo), s(sJo)))
    A('v_lshrrev_b32 %s, 5, %s' % (v(vT), v(vLane)))
    A('v_bfe_u32 %s, %s, 2, 2' % (v(vT + 1), v(vLane)))
    A('v_lshl_add_u32 %s, %s, 3, %s' % (v(vT + 1), v(vT), v(vT + 1)))
    A('v_mul_u32_u24 %s, 192, %s' % (v(vT + 1), v(vT + 1)))
    A('v_bfe_u32 %s, %s, 4, 1' % (v(vT + 2), v(vLane)))
    A('v_mul_u32_u24 %s, %s, %s' % (v(vT + 2), s(sNb), v(vT + 2)))
    A('v_and_b32 %s, 3, %s' % (v(vT + 3), v(vLane)))
    A('v_lshlrev_b32 %s, 3, %s' % (v(vT + 3), v(vT + 3)))
    A('v_add3_u32 %s, %s, %s, %s' % (v(vWa), v(vT + 1), v(vT + 2), v(vT + 3)))
    A('v_add_u32 %s, %s, %s' % (v(vWa + 1), s(sUs), v(vWa)))
    A('v_add_u32 %s, %s, %s' % (v(vWa + 2), s(sUs), v(vWa + 1)))
    for u in range(3):
        A('v_add_u32 %s, %s, %s' % (v(vCa + u), s(sM0), v(vWa + u)))
    A('s_lshl_b32 %s, %s, 12' % (s(sT0), s(sWave)))
    A('s_add_u32 %s, %s, %d' % (s(sT0), s(sT0), L_XB))
    A('v_lshrrev_b32 %s, 3, %s' % (v(vT + 1), v(vLane)))
    A('v_lshrrev_b32 %s, 4, %s' % (v(vT + 2), v(vLane)))
    A('v_and_b32 %s, 7, %s' % (v(vT + 3), v(vLane)))
    A('v_xor_b32 %s, %s, %s' % (v(vT + 3), v(vT + 3), v(vT + 2)))
    A('v_lshlrev_b32 %s, 4, %s' % (v(vT + 3), v(vT + 3)))
    A('v_lshl_add_u32 %s, %s, 7, %s' % (v(vT + 3), v(vT + 1), v(vT + 3)))
    A('v_add_u32 %s, %s, %s' % (v(vXw), s(sT0), v(vT + 3)))
    A('v_xor_b32 %s, 64, %s' % (v(vXw + 1), v(vXw)))
    A('v_and_b32 %s, 31, %s' % (v(vT + 1), v(vLane)))
    A('v_bfe_u32 %s, %s, 1, 3' % (v(vT + 2), v(vLane)))
    A('v_xor_b32 %s, %s, %s' % (v(vT + 2), v(vT + 2), v(vT)))
    A('v_lshlrev_b32 %s, 4, %s' % (v(vT + 2), v(vT + 2)))
    A('v_lshl_add_u32 %s, %s, 7, %s' % (v(vT + 2), v(vT + 1), v(vT + 2)))
    A('v_add_u32 %s, %s, %s' % (v(vXr), s(sT0), v(vT + 2)))
    for tt in range(1, 4):
        A('v_xor_b32 %s, %d, %s' % (v(vXr + tt), 32 * tt, v(vXr)))
    for i in range(4):
        A('v_mov_b32 %s, 0' % v(vT + 4 + i))
    A('s_lshl_b32 %s, %s, 10' % (s(sT0), s(sWave)))
    A('s_add_u32 %s, %s, %d' % (s(sT0), s(sT0), L_CS))
    A('v_add_u32 %s, %s, %s' % (v(vT), s(sT0), v(vL16)))
    A('s_cmp_ge_u32 %s, 7' % s(sWave))
    A.branch('s_cbranch_scc1 K1_NOLZ')
    A('ds_write_b128 %s, %s' % (v(vT), v(vT + 4, 4)))
    A.label('K1_NOLZ')
    A.lg = ['z']
    A('v_mov_b32 %s, 0' % v(vS1))
    A('v_mov_b32 %s, 0' % v(vS2))
    for u in range(3):
        A('v_mov_b32 %s, 0' % v(vCs + u))
    def wread(t, buf):
        tl = t % 16
        for u in range(3):
            for hh in range(2):
                A('ds_read_b64_tr_b16 %s, %s offset:%d' % (v(vWf + 12 * buf + 4 * u + 2 * hh, 2), v(vWa + u), tl * 3072 + 768 * hh), tag='wf%d' % t)
    for st in range(4):
        for b in (2 * st, 2 * st + 1):
            A.wait_vm('x%d' % b)
            for i in range(4):
                A('ds_write_b128 %s, %s offset:%d' % (v(vXw + (i & 1)), v(vX + 16 * b + 4 * i, 4), 1024 * i), tag='xw')
            for tt in range(4):
                A('ds_read_b128 %s, %s' % (v(vX + 16 * b + 4 * tt, 4), v(vXr + tt)), tag='xr%d' % (4 * b + tt))
        if st == 0:
            A.wait_lg('z')
        A('s_barrier')
        if st == 0:
            stamp(A, 1, sTs, vT + 8, sWave, SWS, WS_STAMP, 8)
            A('s_cmp_eq_u32 %s, 1' % s(sType))
            A('s_cselect_b32 %s, %s, 1' % (s(sT0), s(sRb)))
            A('s_or_b32 %s, %s, %s' % (s(sT0), s(sT0), s(sWave)))
            A('s_cmp_lg_u32 %s, 0' % s(sT0))
            A.branch('s_cbranch_scc1 K1_NOFLAG')
            A('v_mov_b32 %s, 1' % v(vT))
            A('v_mov_b32 %s, 0' % v(vT + 1))
            A('s_lshl_b32 %s, %s, 2' % (s(sT0), s(sCg)))
            sv = list(A.vm)
            A('buffer_store_dword %s, %s, %s, %s offen sc0 sc1' % (v(vT), v(vT + 1), s(SD, 4), s(sT0)))
            A.vm = sv
            A.label('K1_NOFLAG')
        if st == 2:
            for u in range(3):
                A('v_add_u32 %s, %d, %s' % (v(vWa + u), 16 * 3072, v(vWa + u)))
                A('v_add_u32 %s, %d, %s' % (v(vCa + u), 16 * 3072, v(vCa + u)))
        wread(8 * st, 0)
        for u in range(3):
            for hh in range(2):
                A('ds_read_b64_tr_b16 %s, %s offset:%d' % (v(vCf + 4 * u + 2 * hh, 2), v(vCa + u), (st & 1) * 8 * 3072 + 768 * hh), tag='cf')
        for k in range(8):
            t = 8 * st + k
            buf = k & 1
            if k < 7:
                wread(t + 1, buf ^ 1)
            A.wait_lg('wf%d' % t)
            xr = vX + 4 * t
            for u in range(3):
                c = '0' if t == 0 else v(vAcc + 16 * u, 16)
                A('v_mfma_f32_32x32x16_bf16 %s, %s, %s, %s' % (v(vAcc + 16 * u, 16), v(vWf + 12 * buf + 4 * u, 4), v(xr, 4), c))
                if u < 2:
                    for j in (2 * u, 2 * u + 1):
                        A('v_dot2c_f32_bf16 %s, %s, %s' % (v(vS1), s(sOnes), v(xr + j)))
                        A('v_dot2c_f32_bf16 %s, %s, %s' % (v(vS2), v(xr + j), v(xr + j)))
                elif 1 <= k <= 3:
                    uu = k - 1
                    for j in range(4):
                        A('v_dot2c_f32_bf16 %s, %s, %s' % (v(vCs + uu), s(sOnes), v(vCf + 4 * uu + j)))
                elif k == 4 and st == 3:
                    A('v_and_b32 %s, 31, %s' % (v(vT), v(vLane)))
                    A('v_lshlrev_b32 %s, 2, %s' % (v(vT), v(vT)))
                    A('v_add_u32 %s, %d, %s' % (v(vT), L_CS, v(vT)))
                    for uu in range(3):
                        A('ds_add_f32 %s, %s offset:%d' % (v(vT), v(vCs + uu), 128 * uu), tag='csadd')
    stamp(A, 2, sTs, vT + 8, sWave, SWS, WS_STAMP, 8)
    A('v_mov_b32 %s, %s' % (v(vT + 1), v(vS1)))
    A('v_mov_b32 %s, %s' % (v(vT + 2), v(vS2)))
    A('v_permlane32_swap_b32 %s, %s' % (v(vS1), v(vT + 1)))
    A('v_permlane32_swap_b32 %s, %s' % (v(vS2), v(vT + 2)))
    A('v_add_f32 %s, %s, %s' % (v(vS1), v(vS1), v(vT + 1)))
    A('v_add_f32 %s, %s, %s' % (v(vS2), v(vS2), v(vT + 2)))
    A('v_mul_f32 %s, 0x3b000000, %s' % (v(vS1), v(vS1)))
    A('v_mul_f32 %s, 0x3b000000, %s' % (v(vS2), v(vS2)))
    A('v_fma_f32 %s, -%s, %s, %s' % (v(vS2), v(vS1), v(vS1), v(vS2)))
    A('v_max_f32 %s, 0, %s' % (v(vS2), v(vS2)))
    A('v_cvt_pk_bf16_f32 %s, %s, %s' % (v(vS2), v(vS2), v(vS2)))
    A('v_lshlrev_b32 %s, 16, %s' % (v(vS2), v(vS2)))
    A('v_add_f32 %s, 0x3727c5ac, %s' % (v(vS2), v(vS2)))
    A('v_cvt_pk_bf16_f32 %s, %s, %s' % (v(vS2), v(vS2), v(vS2)))
    A('v_lshlrev_b32 %s, 16, %s' % (v(vS2), v(vS2)))
    A('v_sqrt_f32 %s, %s' % (v(vS2), v(vS2)))
    vBp = 0
    vAp = 4
    vR2 = 8
    vRL = 10
    vC2 = 12
    vCm2 = 14
    vC1 = 16
    vL2 = 18
    A('v_cvt_pk_bf16_f32 %s, -%s, -%s' % (v(vBp), v(vS1), v(vS1)))
    A('v_cvt_pk_bf16_f32 %s, %s, 0' % (v(vBp + 1), v(vS2)))
    A('v_lshlrev_b32 %s, 16, %s' % (v(vS2), v(vBp + 1)))
    A('v_rcp_f32 %s, %s' % (v(vR2), v(vS2)))
    A('v_cmp_gt_u32 vcc, 32, %s' % v(vLane))
    A('v_mov_b32 %s, 0' % v(vBp + 2))
    A('v_mov_b32 %s, 0' % v(vBp + 3))
    A('v_cndmask_b32 %s, 0, %s, vcc' % (v(vBp), v(vBp)))
    A('v_cndmask_b32 %s, 0, %s, vcc' % (v(vBp + 1), v(vBp + 1)))
    A('v_mov_b32 %s, %s' % (v(vR2 + 1), v(vR2)))
    A('v_mul_f32 %s, 0x%x, %s' % (v(vRL), LOG2E, v(vR2)))
    A('v_mul_f32 %s, 0x%x, %s' % (v(vRL + 1), LOG2E, v(vR2)))
    for r, c in ((vC2, '2.0'), (vCm2, '-2.0'), (vC1, '1.0'), (vL2, '0x%x' % LOG2E)):
        A('v_mov_b32 %s, %s' % (v(r), c))
        A('v_mov_b32 %s, %s' % (v(r + 1), c))
    A('v_mov_b32 %s, 0' % v(vAp + 2))
    A('v_mov_b32 %s, 0' % v(vAp + 3))
    A.wait_vm(None)
    A.wait_lg(None)
    A('s_barrier')
    vJ = 20
    A('v_lshrrev_b32 %s, 5, %s' % (v(vT + 1), v(vLane)))
    A('v_bfe_u32 %s, %s, 2, 2' % (v(vT + 2), v(vLane)))
    A('v_lshl_add_u32 %s, %s, 2, %s' % (v(vT + 2), v(vT + 1), v(vT + 2)))
    A('v_bfe_u32 %s, %s, 4, 1' % (v(vT + 3), v(vLane)))
    A('v_and_b32 %s, 3, %s' % (v(vT + 4), v(vLane)))
    A('v_lshl_add_u32 %s, %s, 2, %s' % (v(vT + 5), v(vT + 3), v(vT + 4)))
    A('v_lshlrev_b32 %s, 3, %s' % (v(vT + 5), v(vT + 5)))
    A('v_lshl_add_u32 %s, %s, 6, %s' % (v(vT + 5), v(vT + 2), v(vT + 5)))
    A('s_lshl_b32 %s, %s, 10' % (s(sT0), s(sWave)))
    A('v_add_u32 %s, %s, %s' % (v(vT + 5), s(sT0), v(vT + 5)))
    A('v_add_u32 %s, %d, %s' % (v(vT + 5), L_J, v(vT + 5)))
    A('ds_read_b64_tr_b16 %s, %s' % (v(vJ, 2), v(vT + 5)), tag='j')
    A('ds_read_b64_tr_b16 %s, %s offset:512' % (v(vJ + 2, 2), v(vT + 5)), tag='j')
    for u in range(3):
        A('ds_read_b32 %s, %s offset:%d' % (v(vCs + u), v(vT), 128 * u), tag='cs')
    vPa = 24
    vSg = 25
    A('v_lshrrev_b32 %s, 1, %s' % (v(vT + 4), v(vT + 4)))
    A('v_lshl_add_u32 %s, %s, 1, %s' % (v(vT + 4), v(vT + 3), v(vT + 4)))
    A('v_lshlrev_b32 %s, 3, %s' % (v(vT + 4), v(vT + 4)))
    A('v_lshl_add_u32 %s, %s, 5, %s' % (v(vPa), v(vT + 2), v(vT + 4)))
    A('v_add_u32 %s, %d, %s' % (v(vPa), L_PH, v(vPa)))
    A('v_bfe_u32 %s, %s, 2, 1' % (v(vSg), v(vLane)))
    A('v_mul_u32_u24 %s, 0x8000, %s' % (v(vSg), v(vSg)))
    A('v_lshl_or_b32 %s, %s, 16, %s' % (v(vSg), v(vSg), v(vSg)))
    A.wait_lg('j')
    A('buffer_store_dwordx4 %s, %s, %s, %s offen' % (v(vJ, 4), v(vL16), s(SWS, 4), s(sJo)))
    A.wait_lg('cs')
    for u in range(3):
        A('v_cvt_pk_bf16_f32 %s, %s, %s' % (v(vAp), v(vCs + u), v(vCs + u)))
        A('v_lshlrev_b32 %s, 16, %s' % (v(vAp), v(vAp)))
        A('v_sub_f32 %s, %s, %s' % (v(vAp), v(vCs + u), v(vAp)))
        A('v_cvt_pk_bf16_f32 %s, %s, %s' % (v(vAp), v(vCs + u), v(vAp)))
        A('v_mov_b32 %s, %s' % (v(vAp + 1), v(vB1 + u)))
        A('v_mfma_f32_32x32x16_bf16 %s, %s, %s, %s' % (v(vAcc + 16 * u, 16), v(vAp, 4), v(vBp, 4), v(vAcc + 16 * u, 16)))
    sRb2, sRt2 = 96, 97
    A('s_lshr_b32 %s, %s, 1' % (s(sRb2), s(sRt)))
    A('s_and_b32 %s, %s, 1' % (s(sRt2), s(sRt)))
    A('s_cmp_eq_u32 %s, 0' % s(sType))
    A.branch('s_cbranch_scc1 K1_Q')
    A('s_cmp_eq_u32 %s, 1' % s(sType))
    A.branch('s_cbranch_scc1 K1_KV')
    A('s_mul_i32 %s, %s, 86' % (s(sOut), s(sRb2)))
    A('s_lshl_b32 %s, %s, 1' % (s(sT0), s(sU0)))
    A('s_add_u32 %s, %s, %s' % (s(sOut), s(sOut), s(sT0)))
    A('s_lshl_b32 %s, %s, 1' % (s(sOut), s(sOut)))
    A('s_add_u32 %s, %s, %s' % (s(sOut), s(sOut), s(sRt2)))
    A('s_lshl_b32 %s, %s, 10' % (s(sOut), s(sOut)))
    for u in range(3):
        if u > 0:
            A('s_cmp_le_u32 %s, %d' % (s(sNval), u))
            A.branch('s_cbranch_scc1 K1_DONE')
        acc = vAcc + 16 * u
        H, T, U, P = 32, 48, 64, 80 + 8 * u
        for i in range(8):
            A('v_pk_mul_f32 %s, %s, %s' % (v(T + 2 * i, 2), v(acc + 2 * i, 2), v(vRL, 2)))
        for i in range(16):
            A('v_exp_f32 %s, %s' % (v(T + i), v(T + i)))
        for i in range(8):
            A('v_pk_mul_f32 %s, %s, %s' % (v(H + 2 * i, 2), v(acc + 2 * i, 2), v(vR2, 2)))
        for i in range(8):
            A('v_pk_add_f32 %s, %s, %s' % (v(U + 2 * i, 2), v(T + 2 * i, 2), v(vC2, 2)))
        for i in range(8):
            A('v_pk_fma_f32 %s, %s, %s, %s' % (v(U + 2 * i, 2), v(T + 2 * i, 2), v(U + 2 * i, 2), v(vC2, 2)))
        for i in range(16):
            A('v_rcp_f32 %s, %s' % (v(U + i), v(U + i)))
        for i in range(8):
            A('v_pk_fma_f32 %s, %s, %s, %s' % (v(U + 2 * i, 2), v(U + 2 * i, 2), v(vCm2, 2), v(vC1, 2)))
        for i in range(8):
            A('v_pk_mul_f32 %s, %s, %s' % (v(U + 2 * i, 2), v(U + 2 * i, 2), v(H + 2 * i, 2)))
        for i in range(8):
            A('v_cvt_pk_bf16_f32 %s, %s, %s' % (v(P + i), v(U + 2 * i), v(U + 2 * i + 1)))
        A('buffer_store_dwordx4 %s, %s, %s, %s offen' % (v(P, 4), v(vL16), s(SWS, 4), s(sOut)))
        A('buffer_store_dwordx4 %s, %s, %s, %s offen offset:2048' % (v(P + 4, 4), v(vL16), s(SWS, 4), s(sOut)))
        A('s_add_u32 %s, %s, 4096' % (s(sOut), s(sOut)))
    A.branch('s_branch K1_DONE')

    def softmax(D, P, M):
        A('v_max3_f32 %s, %s, %s, %s' % (v(M), v(D), v(D + 1), v(D + 2)))
        A('v_max3_f32 %s, %s, %s, %s' % (v(M + 1), v(D + 3), v(D + 4), v(D + 5)))
        A('v_max3_f32 %s, %s, %s, %s' % (v(M + 2), v(D + 6), v(D + 7), v(D + 8)))
        A('v_max3_f32 %s, %s, %s, %s' % (v(M + 3), v(D + 9), v(D + 10), v(D + 11)))
        A('v_max3_f32 %s, %s, %s, %s' % (v(M), v(M), v(D + 12), v(D + 13)))
        A('v_max3_f32 %s, %s, %s, %s' % (v(M + 1), v(M + 1), v(D + 14), v(D + 15)))
        A('v_max3_f32 %s, %s, %s, %s' % (v(M), v(M), v(M + 1), v(M + 2)))
        A('v_max_f32 %s, %s, %s' % (v(M), v(M), v(M + 3)))
        A('v_mul_f32 %s, 0x%x, %s' % (v(M), LOG2E | 0x80000000, v(M)))
        for i in range(8):
            A('v_pk_fma_f32 %s, %s, %s, %s op_sel_hi:[1,1,0]' % (v(D + 2 * i, 2), v(D + 2 * i, 2), v(vL2, 2), v(M, 2)))
        for i in range(16):
            A('v_exp_f32 %s, %s' % (v(D + i), v(D + i)))
        A('v_pk_add_f32 %s, %s, %s' % (v(M, 2), v(D, 2), v(D + 2, 2)))
        A('v_pk_add_f32 %s, %s, %s' % (v(M + 2, 2), v(D + 4, 2), v(D + 6, 2)))
        A('v_pk_add_f32 %s, %s, %s' % (v(M, 2), v(M, 2), v(D + 8, 2)))
        A('v_pk_add_f32 %s, %s, %s' % (v(M + 2, 2), v(M + 2, 2), v(D + 10, 2)))
        A('v_pk_add_f32 %s, %s, %s' % (v(M, 2), v(M, 2), v(D + 12, 2)))
        A('v_pk_add_f32 %s, %s, %s' % (v(M + 2, 2), v(M + 2, 2), v(D + 14, 2)))
        A('v_pk_add_f32 %s, %s, %s' % (v(M, 2), v(M, 2), v(M + 2, 2)))
        A('v_add_f32 %s, %s, %s' % (v(M), v(M), v(M + 1)))
        A('v_rcp_f32 %s, %s' % (v(M), v(M)))
        for i in range(8):
            A('v_pk_mul_f32 %s, %s, %s op_sel_hi:[1,0]' % (v(D + 2 * i, 2), v(D + 2 * i, 2), v(M, 2)))
        for i in range(8):
            A('v_cvt_pk_bf16_f32 %s, %s, %s' % (v(P + i), v(D + 2 * i), v(D + 2 * i + 1)))

    def scale_pack(acc, QP):
        for i in range(8):
            A('v_pk_mul_f32 %s, %s, %s' % (v(acc + 2 * i, 2), v(acc + 2 * i, 2), v(vR2, 2)))
        for i in range(8):
            A('v_cvt_pk_bf16_f32 %s, %s, %s' % (v(QP + i), v(acc + 2 * i), v(acc + 2 * i + 1)))

    def load_phi(dst, hl):
        A('ds_read_b64_tr_b16 %s, %s offset:%d' % (v(dst, 2), v(vPa), 512 * hl), tag='ph%d' % hl)
        A('ds_read_b64_tr_b16 %s, %s offset:%d' % (v(dst + 2, 2), v(vPa), 512 * hl + 256), tag='ph%d' % hl)

    A.label('K1_Q')
    A.lg = []; A.vm = []
    vPh = 176
    for hl in range(6):
        load_phi(vPh + 4 * hl, hl)
    A('s_lshl_b32 %s, %s, 5' % (s(sOut), s(sRb2)))
    A('s_lshl_b32 %s, %s, 1' % (s(sT0), s(sU0)))
    A('s_add_u32 %s, %s, %s' % (s(sOut), s(sOut), s(sT0)))
    A('s_lshl_b32 %s, %s, 1' % (s(sOut), s(sOut)))
    A('s_add_u32 %s, %s, %s' % (s(sOut), s(sOut), s(sRt2)))
    A('s_lshl_b32 %s, %s, 11' % (s(sOut), s(sOut)))
    A('s_add_u32 %s, %s, 0x%x' % (s(sOut), s(sOut), WS_PHI))
    A.wait_lg(None)
    for i in range(24):
        A('v_xor_b32 %s, %s, %s' % (v(vPh + i), v(vSg), v(vPh + i)))
    for u in range(3):
        if u > 0:
            A('s_cmp_le_u32 %s, %d' % (s(sNval), u))
            A.branch('s_cbranch_scc1 K1_DONE')
        acc = vAcc + 16 * u
        QP = 28
        scale_pack(acc, QP)
        D0, D1 = 48, 64
        A('v_mfma_f32_32x32x16_bf16 %s, %s, %s, 0' % (v(D0, 16), v(vPh + 8 * u, 4), v(QP, 4)))
        A('v_mfma_f32_32x32x16_bf16 %s, %s, %s, 0' % (v(D1, 16), v(vPh + 8 * u + 4, 4), v(QP + 4, 4)))
        for hh, D in enumerate((D0, D1)):
            P = 80 + 8 * hh
            softmax(D, P, 36)
            A('buffer_store_dwordx4 %s, %s, %s, %s offen' % (v(P, 4), v(vL16), s(SWS, 4), s(sOut)))
            A('buffer_store_dwordx4 %s, %s, %s, %s offen offset:1024' % (v(P + 4, 4), v(vL16), s(SWS, 4), s(sOut)))
            A('s_add_u32 %s, %s, 4096' % (s(sOut), s(sOut)))
    A.branch('s_branch K1_DONE')

    A.label('K1_KV')
    A.lg = []; A.vm = []
    for hl in range(3):
        load_phi(vPh + 4 * hl, hl)
    A('v_mov_b32 %s, 0' % v(vT + 6))
    A('s_lshl_b32 %s, %s, 2' % (s(sT2), s(sCg)))
    A('buffer_load_dword %s, %s, %s, %s offen sc0 sc1' % (v(vFlag), v(vT + 6), s(SD, 4), s(sT2)), tag='flag')
    vSel0, vSel1, vSelV, vOne = 188, 192, 196, 96
    A('v_and_b32 %s, 31, %s' % (v(vT), v(vLane)))
    A('v_lshrrev_b32 %s, 5, %s' % (v(vT + 1), v(vLane)))
    A('v_lshlrev_b32 %s, 4, %s' % (v(vT + 2), v(vT + 1)))
    A('v_sub_u32 %s, %s, %s' % (v(vT + 2), v(vT), v(vT + 2)))
    A('v_lshlrev_b32 %s, 2, %s' % (v(vT + 3), v(vT + 1)))
    A('v_sub_u32 %s, %s, %s' % (v(vT + 3), v(vT), v(vT + 3)))
    A('v_mov_b32 %s, 0x3f80' % v(vT + 4))
    A('v_mov_b32 %s, 0x3f800000' % v(vT + 5))
    def sel(dst, src, lo, hi):
        A('v_cmp_eq_u32 vcc, %d, %s' % (lo, v(src)))
        A('v_cndmask_b32 %s, 0, %s, vcc' % (v(dst), v(vT + 4)))
        A('v_cmp_eq_u32 vcc, %d, %s' % (hi, v(src)))
        A('v_cndmask_b32 %s, %s, %s, vcc' % (v(dst), v(dst), v(vT + 5)))
    for r in range(4):
        sel(vSel0 + r, vT + 2, 2 * r, 2 * r + 1)
        sel(vSel1 + r, vT + 2, 8 + 2 * r, 8 + 2 * r + 1)
        j0, j1 = 2 * r, 2 * r + 1
        sel(vSelV + r, vT + 3, (j0 & 3) + 8 * (j0 >> 2), (j1 & 3) + 8 * (j1 >> 2))
    A('v_cmp_eq_u32 vcc, 16, %s' % v(vT))
    A('v_cndmask_b32 %s, 0, %s, vcc' % (v(vOne), v(vT + 5)))
    for i in range(1, 16):
        A('v_mov_b32 %s, %s' % (v(vOne + i), v(vOne)))
    vKa, vKz = 200, 201
    A('v_bfe_u32 %s, %s, 2, 2' % (v(vT + 2), v(vLane)))
    A('v_bfe_u32 %s, %s, 4, 1' % (v(vT + 3), v(vLane)))
    A('v_lshl_add_u32 %s, %s, 1, %s' % (v(vT + 2), v(vT + 2), v(vT + 3)))
    A('v_mul_u32_u24 %s, 272, %s' % (v(vT + 2), v(vT + 2)))
    A('v_and_b32 %s, 3, %s' % (v(vT + 3), v(vLane)))
    A('v_lshl_add_u32 %s, %s, 2, %s' % (v(vKz), v(vT + 3), v(vT + 2)))
    A('v_add_u32 %s, %d, %s' % (v(vKz), L_KV, v(vKz)))
    A('v_lshl_add_u32 %s, %s, 6, %s' % (v(vKa), v(vT + 1), v(vKz)))
    A.wait_lg(None)
    for i in range(12):
        A('v_xor_b32 %s, %s, %s' % (v(vPh + i), v(vSg), v(vPh + i)))
    for u in range(3):
        if u > 0:
            A('s_cmp_le_u32 %s, %d' % (s(sNval), u))
            A.branch('s_cbranch_scc1 K1_KVRED')
        acc = vAcc + 16 * u
        QP = 28
        scale_pack(acc, QP)
        D0, D1 = 48, 64
        A('v_mfma_f32_32x32x16_bf16 %s, %s, %s, 0' % (v(D0, 16), v(vPh + 4 * u, 4), v(QP, 4)))
        A('v_mfma_f32_32x32x16_bf16 %s, %s, %s, %s' % (v(D1, 16), v(QP + 4, 4), v(vSelV, 4), v(vOne, 16)))
        P = 80
        softmax(D0, P, 36)
        A('v_mfma_f32_32x32x16_bf16 %s, %s, %s, 0' % (v(D0, 16), v(P, 4), v(vSel0, 4)))
        A('v_mfma_f32_32x32x16_bf16 %s, %s, %s, %s' % (v(D0, 16), v(P + 4, 4), v(vSel1, 4), v(D0, 16)))
        VT = 88
        for i in range(8):
            A('v_cvt_pk_bf16_f32 %s, %s, %s' % (v(VT + i), v(D1 + 2 * i), v(D1 + 2 * i + 1)))
        PT = 112
        for i in range(8):
            A('v_cvt_pk_bf16_f32 %s, %s, %s' % (v(PT + i), v(D0 + 2 * i), v(D0 + 2 * i + 1)))
        A('v_mfma_f32_32x32x16_bf16 %s, %s, %s, 0' % (v(acc, 16), v(VT, 4), v(PT, 4)))
        A('v_mfma_f32_32x32x16_bf16 %s, %s, %s, %s' % (v(acc, 16), v(VT + 4, 4), v(PT + 4, 4), v(acc, 16)))
        for r in range(8):
            A('ds_add_f32 %s, %s offset:%d' % (v(vKa), v(acc + r), KVH * u + ((r & 3) + 8 * (r >> 2)) * 16))
        A('ds_add_f32 %s, %s offset:%d' % (v(vKz), v(acc + 8), KVH * u + 256))
    A.label('K1_KVRED')
    A('s_waitcnt lgkmcnt(0)')
    A('s_barrier')
    A('s_mov_b32 %s, 0' % s(sT0))
    A.label('K1_POLL')
    A('s_waitcnt vmcnt(0)')
    A('v_readfirstlane_b32 %s, %s' % (s(sT1), v(vFlag)))
    A('s_cmp_lg_u32 %s, 0' % s(sT1))
    A.branch('s_cbranch_scc1 K1_GO')
    A('s_add_u32 %s, %s, 1' % (s(sT0), s(sT0)))
    A('s_cmp_gt_u32 %s, 0x40000' % s(sT0))
    A.branch('s_cbranch_scc1 K1_GO')
    A('s_sleep 8')
    A('buffer_load_dword %s, %s, %s, %s offen sc0 sc1' % (v(vFlag), v(vT + 6), s(SD, 4), s(sT2)))
    A.branch('s_branch K1_POLL')
    A.label('K1_GO')
    A('s_lshl_b32 %s, %s, 8' % (s(sT0), s(sWave)))
    A('v_lshl_add_u32 %s, %s, 2, %s' % (v(vT), v(vLane), s(sT0)))
    A('v_add_u32 %s, %d, %s' % (v(vT + 1), L_KV, v(vT)))
    for i in range(4):
        A('ds_read_b32 %s, %s offset:%d' % (v(vT + 8 + i), v(vT + 1), 2048 * i))
    A('s_mul_i32 %s, %s, %d' % (s(sT1), s(sNval), KVH))
    A('s_mul_i32 %s, %s, %d' % (s(sT2), s(sU0), KVH))
    A('s_add_u32 %s, %s, 0x%x' % (s(sT2), s(sT2), WS_KV))
    A('v_mov_b32 %s, 0x7f000000' % v(vT + 2))
    for i in range(4):
        A('v_add_u32 %s, %d, %s' % (v(vT + 4 + i), 2048 * i, v(vT)))
        A('v_cmp_gt_u32 vcc, %s, %s' % (s(sT1), v(vT + 4 + i)))
        A('v_cndmask_b32 %s, %s, %s, vcc' % (v(vT + 4 + i), v(vT + 2), v(vT + 4 + i)))
    A('s_waitcnt lgkmcnt(0)')
    for i in range(4):
        A('buffer_atomic_add_f32 %s, %s, %s, %s offen' % (v(vT + 8 + i), v(vT + 4 + i), s(SWS, 4), s(sT2)))
    A.label('K1_DONE')
    if OPT['stamps']:
        stamp(A, 3, sTs, vT + 8, sWave, SWS, WS_STAMP, 8)
        A('s_waitcnt vmcnt(0)')
        stamp(A, 4, sTs, vT + 8, sWave, SWS, WS_STAMP, 8)
    A.label('K1_END')
    A('s_endpgm')
    lds = L_END + 2048
    return A.text(), lds

def gen_k2():
    A = Asm()
    SWS, SX, SO = 40, 44, 48
    sWave, sRb2, sCb, sT0, sT1, sT2 = 52, 53, 54, 55, 56, 57
    sAct, sW, sPhi, sWo, sKv = 58, 59, 60, 61, 62
    sTs = 64
    PITCH = 272
    vAcc = 0
    vKv = 64
    vKb = 128
    vD = 144
    vO = 208
    vLane, vL16, vKo = 224, 225, 226
    vT = 228
    vXres = 244
    A.raw('.p2align 8')
    A.raw('.type k2_kernel,@function')
    A.raw('k2_kernel:')
    A('s_cmp_ge_u32 s2, 256')
    A.branch('s_cbranch_scc1 K2_END')
    A('s_load_dwordx2 s[16:17], s[0:1], 0')
    A('s_load_dwordx2 s[32:33], s[0:1], 64')
    A('s_load_dwordx2 s[36:37], s[0:1], 80')
    A('v_and_b32 %s, 63, v0' % v(vLane))
    A('v_lshrrev_b32 %s, 6, v0' % v(vT))
    A('v_lshlrev_b32 %s, 4, %s' % (v(vL16), v(vLane)))
    A('v_readfirstlane_b32 %s, %s' % (s(sWave), v(vT)))
    A('s_and_b32 %s, s2, 7' % s(sT0))
    A('s_lshr_b32 %s, s2, 3' % s(sT1))
    A('s_lshl_b32 %s, %s, 2' % (s(sRb2), s(sT0)))
    A('s_and_b32 %s, %s, 3' % (s(sT2), s(sT1)))
    A('s_add_u32 %s, %s, %s' % (s(sRb2), s(sRb2), s(sT2)))
    A('s_lshr_b32 %s, %s, 2' % (s(sCb), s(sT1)))
    A('s_mul_i32 %s, %s, 22' % (s(sT0), s(sWave)))
    A('s_mul_i32 %s, %s, 86' % (s(sAct), s(sRb2)))
    A('s_add_u32 %s, %s, %s' % (s(sAct), s(sAct), s(sT0)))
    A('s_lshl_b32 %s, %s, 11' % (s(sAct), s(sAct)))
    A('s_mul_i32 %s, %s, 118' % (s(sT1), s(sCb)))
    A('s_add_u32 %s, %s, %s' % (s(sW), s(sT1), s(sT0)))
    A('s_lshl_b32 %s, %s, 11' % (s(sW), s(sW)))
    A('s_add_u32 %s, %s, 0x%x' % (s(sW), s(sW), WS_W2F))
    A('s_lshl_b32 %s, %s, 3' % (s(sT0), s(sWave)))
    A('s_add_u32 %s, %s, %s' % (s(sWo), s(sT1), s(sT0)))
    A('s_add_u32 %s, %s, 86' % (s(sWo), s(sWo)))
    A('s_lshl_b32 %s, %s, 11' % (s(sWo), s(sWo)))
    A('s_add_u32 %s, %s, 0x%x' % (s(sWo), s(sWo), WS_W2F))
    A('s_lshl_b32 %s, %s, 5' % (s(sPhi), s(sRb2)))
    A('s_add_u32 %s, %s, %s' % (s(sPhi), s(sPhi), s(sT0)))
    A('s_lshl_b32 %s, %s, 12' % (s(sPhi), s(sPhi)))
    A('s_add_u32 %s, %s, 0x%x' % (s(sPhi), s(sPhi), WS_PHI))
    A('s_mul_i32 %s, %s, %d' % (s(sKv), s(sT0), KVH))
    A('s_add_u32 %s, %s, 0x%x' % (s(sKv), s(sKv), WS_KV))
    A('v_and_b32 %s, 31, %s' % (v(vT), v(vLane)))
    A('v_min_u32 %s, 16, %s' % (v(vT), v(vT)))
    A('v_lshrrev_b32 %s, 5, %s' % (v(vT + 1), v(vLane)))
    A('v_mul_u32_u24 %s, 17, %s' % (v(vT + 1), v(vT + 1)))
    A('v_add_lshl_u32 %s, %s, %s, 4' % (v(vKo), v(vT), v(vT + 1)))
    A('s_waitcnt lgkmcnt(0)')
    srd(A, SWS, 36, WS_SIZE)
    srd(A, SX, 16, 2048 * 1024)
    srd(A, SO, 32, 2048 * 1024)
    stamp(A, 0, sTs, vT + 8, sWave, SWS, WS_STAMP + 0x40000, 4)
    HS = 5
    def head_regs(h):
        return 24 * (h % HS)
    def issue_head(h):
        kvr = vKv + 16 * (h % 4)
        for q in range(4):
            A('buffer_load_dwordx4 %s, %s, %s, %s offen offset:%d' % (v(kvr + 4 * q, 4), v(vKo), s(SWS, 4), s(sKv), q * 544), tag='kv%d' % h)
        A('s_add_u32 %s, %s, %d' % (s(sKv), s(sKv), KVH))
    def issue_head2(h):
        b = head_regs(h)
        for i in range(4):
            A('buffer_load_dwordx4 %s, %s, %s, %s offen offset:%d' % (a(b + 4 * i, 4), v(vL16), s(SWS, 4), s(sPhi), 1024 * i), tag='phi%d' % h)
        A('s_add_u32 %s, %s, 4096' % (s(sPhi), s(sPhi)))
        for i in range(2):
            A('buffer_load_dwordx4 %s, %s, %s, %s offen offset:%d' % (a(b + 16 + 4 * i, 4), v(vL16), s(SWS, 4), s(sWo), 1024 * i), tag='wo%d' % h)
        A('s_add_u32 %s, %s, 2048' % (s(sWo), s(sWo)))
    pair_slot = {}
    def issue_pair(p, base):
        pair_slot[p] = base
        if p == 10:
            A('s_cmp_eq_u32 %s, 3' % s(sWave))
            A('s_cselect_b32 %s, 0x7f000000, %s' % (s(sAct), s(sAct)))
        for i in range(4):
            A('buffer_load_dwordx4 %s, %s, %s, %s offen offset:%d' % (a(base + 4 * i, 4), v(vL16), s(SWS, 4), s(sAct), 1024 * i), tag='a%d' % p)
        for i in range(4):
            A('buffer_load_dwordx4 %s, %s, %s, %s offen offset:%d' % (a(base + 16 + 4 * i, 4), v(vL16), s(SWS, 4), s(sW), 1024 * i), tag='p%d' % p)
        if p < 10:
            A('s_add_u32 %s, %s, 4096' % (s(sAct), s(sAct)))
            A('s_add_u32 %s, %s, 4096' % (s(sW), s(sW)))
    for h in range(4):
        issue_head(h)
        issue_head2(h)
    issue_head2(4)
    vOo = 227
    A('v_lshrrev_b32 %s, 3, %s' % (v(vT), v(vLane)))
    A('v_and_b32 %s, 7, %s' % (v(vT + 1), v(vLane)))
    A('v_lshlrev_b32 %s, 10, %s' % (v(vOo), v(vT)))
    A('v_lshl_add_u32 %s, %s, 4, %s' % (v(vOo), v(vT + 1), v(vOo)))
    sXo = 63
    A('s_lshl_b32 %s, %s, 2' % (s(sXo), s(sRb2)))
    A('s_add_u32 %s, %s, %s' % (s(sXo), s(sXo), s(sWave)))
    A('s_lshl_b32 %s, %s, 14' % (s(sXo), s(sXo)))
    A('s_lshl_b32 %s, %s, 7' % (s(sT0), s(sCb)))
    A('s_add_u32 %s, %s, %s' % (s(sXo), s(sXo), s(sT0)))
    sXo2 = 66
    A('s_add_u32 %s, %s, 8192' % (s(sXo2), s(sXo)))
    A('buffer_load_dwordx4 %s, %s, %s, %s offen' % (v(vXres, 4), v(vOo), s(SX, 4), s(sXo)), tag='xres')
    A('buffer_load_dwordx4 %s, %s, %s, %s offen' % (v(vXres + 4, 4), v(vOo), s(SX, 4), s(sXo2)), tag='xres')
    issue_pair(0, 120)
    nextp = 1
    first = True
    for h in range(8):
        kvr = vKv + 16 * (h % 4)
        kb = vKb + 8 * (h & 1)
        b = head_regs(h)
        A.wait_vm('kv%d' % h)
        for i in range(8):
            A('v_cvt_pk_bf16_f32 %s, %s, %s' % (v(kb + i), v(kvr + 2 * i), v(kvr + 2 * i + 1)))
        if h + 4 < 8:
            issue_head(h + 4)
        A.wait_vm('phi%d' % h)
        if h == 0:
            stamp(A, 1, sTs, vT + 8, sWave, SWS, WS_STAMP + 0x40000, 4)
        D = vD + 32 * (h & 1)
        for rt in range(2):
            A('v_mfma_f32_32x32x16_bf16 %s, %s, %s, 0' % (v(D + 16 * rt, 16), v(kb, 4), a(b + 8 * rt, 4)))
            A('v_mfma_f32_32x32x16_bf16 %s, %s, %s, %s' % (v(D + 16 * rt, 16), v(kb + 4, 4), a(b + 8 * rt + 4, 4), v(D + 16 * rt, 16)))
        o = vO + 8 * (h & 1)
        for rt in range(2):
            d = D + 16 * rt
            A('v_add_f32 %s, 0x358637bd, %s' % (v(d + 8), v(d + 8)))
            A('v_rcp_f32 %s, %s' % (v(d + 8), v(d + 8)))
            for i in range(4):
                A('v_pk_mul_f32 %s, %s, %s op_sel_hi:[1,0]' % (v(d + 2 * i, 2), v(d + 2 * i, 2), v(d + 8, 2)))
            for i in range(4):
                A('v_cvt_pk_bf16_f32 %s, %s, %s' % (v(o + 4 * rt + i), v(d + 2 * i), v(d + 2 * i + 1)))
        A.wait_vm('wo%d' % h)
        for nt in range(2):
            for rt in range(2):
                acc = vAcc + 16 * (2 * nt + rt)
                A('v_mfma_f32_32x32x16_bf16 %s, %s, %s, %s' % (v(acc, 16), a(b + 16 + 4 * nt, 4), v(o + 4 * rt, 4), '0' if first else v(acc, 16)))
        first = False
        if h + HS < 8:
            issue_head2(h + HS)
        elif nextp < 4:
            issue_pair(nextp, 120 + 32 * nextp)
            nextp += 1
    for base in (0, 32, 64):
        issue_pair(nextp, base)
        nextp += 1
    for p in range(11):
        base = pair_slot[p]
        A.wait_vm('p%d' % p)
        for kk in range(2):
            for nt in range(2):
                for rt in range(2):
                    acc = vAcc + 16 * (2 * nt + rt)
                    A('v_mfma_f32_32x32x16_bf16 %s, %s, %s, %s' % (v(acc, 16), a(base + 16 + 8 * kk + 4 * nt, 4), a(base + 8 * kk + 4 * rt, 4), v(acc, 16)))
        if nextp < 11:
            issue_pair(nextp, base)
            nextp += 1
    stamp(A, 2, sTs, vT + 8, sWave, SWS, WS_STAMP + 0x40000, 4)
    A('v_and_b32 %s, 31, %s' % (v(vT), v(vLane)))
    A('v_mul_u32_u24 %s, %d, %s' % (v(vT), PITCH, v(vT)))
    A('v_lshrrev_b32 %s, 5, %s' % (v(vT + 1), v(vLane)))
    A('v_lshl_add_u32 %s, %s, 4, %s' % (v(vT), v(vT + 1), v(vT)))
    A('s_mul_i32 %s, %s, %d' % (s(sT0), s(sWave), 64 * PITCH))
    A('v_add_u32 %s, %s, %s' % (v(vT), s(sT0), v(vT)))
    for nt in range(2):
        for rt in range(2):
            acc = vAcc + 16 * (2 * nt + rt)
            for q4 in range(4):
                A('ds_write_b128 %s, %s offset:%d' % (v(vT), v(acc + 4 * q4, 4), 32 * rt * PITCH + (32 * nt + 8 * q4) * 4))
    A('v_lshrrev_b32 %s, 3, %s' % (v(vT + 1), v(vLane)))
    A('v_mul_u32_u24 %s, %d, %s' % (v(vT + 1), PITCH, v(vT + 1)))
    A('v_and_b32 %s, 7, %s' % (v(vT + 2), v(vLane)))
    A('v_lshl_add_u32 %s, %s, 5, %s' % (v(vT + 1), v(vT + 2), v(vT + 1)))
    A('s_mul_i32 %s, %s, %d' % (s(sT0), s(sWave), 16 * PITCH))
    A('v_add_u32 %s, %s, %s' % (v(vT + 1), s(sT0), v(vT + 1)))
    A('s_waitcnt lgkmcnt(0)')
    A.lg = []
    A('s_barrier')
    R = 64
    for p in range(2):
        for w in range(4):
            for hh in range(2):
                A('ds_read_b128 %s, %s offset:%d' % (v(R + 32 * p + 8 * w + 4 * hh, 4), v(vT + 1), w * 64 * PITCH + 8 * p * PITCH + 16 * hh), tag='r%d' % p)
    for p in range(2):
        A.wait_lg('r%d' % p)
        r = R + 32 * p
        X = 128 + 8 * p
        for i in range(4):
            A('v_lshlrev_b32 %s, 16, %s' % (v(X + 2 * i), v(vXres + 4 * p + i)))
            A('v_and_b32 %s, 0xffff0000, %s' % (v(X + 2 * i + 1), v(vXres + 4 * p + i)))
        for i in range(4):
            A('v_pk_add_f32 %s, %s, %s' % (v(r + 2 * i, 2), v(r + 2 * i, 2), v(r + 8 + 2 * i, 2)))
            A('v_pk_add_f32 %s, %s, %s' % (v(r + 16 + 2 * i, 2), v(r + 16 + 2 * i, 2), v(r + 24 + 2 * i, 2)))
        for i in range(4):
            A('v_pk_add_f32 %s, %s, %s' % (v(r + 2 * i, 2), v(r + 2 * i, 2), v(r + 16 + 2 * i, 2)))
        for i in range(4):
            A('v_pk_add_f32 %s, %s, %s' % (v(r + 2 * i, 2), v(r + 2 * i, 2), v(X + 2 * i, 2)))
        for i in range(4):
            A('v_cvt_pk_bf16_f32 %s, %s, %s' % (v(X + i), v(r + 2 * i), v(r + 2 * i + 1)))
        A('buffer_store_dwordx4 %s, %s, %s, %s offen' % (v(X, 4), v(vOo), s(SO, 4), s(sXo if p == 0 else sXo2)))
    if OPT['stamps']:
        stamp(A, 3, sTs, vT + 8, sWave, SWS, WS_STAMP + 0x40000, 4)
        A('s_waitcnt vmcnt(0)')
        stamp(A, 4, sTs, vT + 8, sWave, SWS, WS_STAMP + 0x40000, 4)
    A.label('K2_END')
    A('s_endpgm')
    return A.text(), 4 * 64 * PITCH

def kd(name, nv, acc):
    return '''.amdhsa_kernel %s
  .amdhsa_next_free_vgpr %d
  .amdhsa_next_free_sgpr 102
  .amdhsa_accum_offset %d
  .amdhsa_group_segment_fixed_size 0
  .amdhsa_kernarg_size 88
  .amdhsa_user_sgpr_count 2
  .amdhsa_user_sgpr_kernarg_segment_ptr 1
  .amdhsa_system_sgpr_workgroup_id_x 1
.end_amdhsa_kernel
''' % (name, nv, acc)

def main():
    k1, lds1 = gen_k1()
    k2, lds2 = gen_k2()
    out = []
    out.append('; @launch kernel=k1_kernel grid=(256,1,1) block=(512,1,1) lds=%d' % lds1)
    out.append('; @launch kernel=k2_kernel grid=(256,1,1) block=(256,1,1) lds=%d' % lds2)
    out.append('.amdgcn_target "amdgcn-amd-amdhsa--gfx950"')
    out.append('.text')
    out.append('.globl k1_kernel')
    out.append(k1)
    out.append('.globl k2_kernel')
    out.append(k2)
    out.append('.section .rodata,"a"')
    out.append('.p2align 6')
    out.append(kd('k1_kernel', 256, 256))
    out.append('.p2align 6')
    out.append(kd('k2_kernel', 512, 256))
    open(sys.argv[1], 'w').write('\n'.join(out))

main()
```

```python
import sys
from asmlib import Asm, v, a, s

NAME = 'parallel_sum__linear_kernel_hedgehog__dense_activation_mish__prompt'
OPT = dict(stamps=0, nodot=0, nomfma=0, nobounce=0, nowread=0, noldsadd=0)
for arg in sys.argv[2:]:
    k, val = arg.split('=')
    OPT[k] = int(val, 0)

WS_ACT = 0x000000
WS_PHI = 0x600000
WS_W2F = 0xA00000
WS_KV = 0xC00000
WS_STAMP = 0xD00000
WS_SIZE = 0xE00000
KVH = 8 * 17 * 16

LOG2E = 0x3fb8aa3b

def srd(A, d, lo, size):
    A('s_mov_b32 %s, %s' % (s(d), s(lo)))
    A('s_mov_b32 %s, %s' % (s(d + 1), s(lo + 1)))
    A('s_mov_b32 %s, 0x%x' % (s(d + 2), size))
    A('s_mov_b32 %s, 0x20000' % s(d + 3))

def stamp(A, idx, sT, vT, swave, srdws, base, nw):
    if not OPT['stamps']:
        return
    A('s_memrealtime %s' % s(sT, 2))
    A('s_memtime s[98:99]')
    A('s_waitcnt lgkmcnt(0)')
    A.lg = []
    A('v_mov_b32 %s, %s' % (v(vT), s(sT)))
    A('v_mov_b32 %s, s98' % v(vT + 2))
    A('s_mul_i32 %s, s2, %d' % (s(sT), nw))
    A('s_add_u32 %s, %s, %s' % (s(sT), s(sT), s(swave)))
    A('s_lshl_b32 %s, %s, 6' % (s(sT), s(sT)))
    A('s_add_u32 %s, %s, 0x%x' % (s(sT), s(sT), base + idx * 4))
    A('v_mov_b32 %s, 0' % v(vT + 1))
    A('buffer_store_dword %s, %s, %s, %s offen' % (v(vT), v(vT + 1), s(srdws, 4), s(sT)), tag='stamp')
    A('buffer_store_dword %s, %s, %s, %s offen offset:32' % (v(vT + 2), v(vT + 1), s(srdws, 4), s(sT)), tag='stamp')

def gen_k1():
    A = Asm()
    L_W = 0
    L_XB = 98304
    L_J = L_XB + 32768
    L_PH = L_J + 8192
    L_CS = L_PH + 4096
    L_KV = 0
    L_END = L_CS + 3072
    SX, SW, SP, SJ, SWS, SB, SD = 40, 44, 48, 52, 56, 60, 64
    sWave, sRb, sCg, sType, sU0, sNval, sStride, sCol, sJump, sRt = 68, 69, 70, 71, 72, 73, 74, 75, 76, 77
    sWoff, sM0, sT0, sT1, sT2, sOnes, sStg = 78, 79, 80, 81, 82, 83, 84
    sXo = 85
    sOut = 88
    sTs = 90
    vX = 0
    vAcc = 128
    vWf = 176
    vCf = 200
    vLane, vL16 = 212, 213
    vWd = 214
    vWa = 217
    vCa = 220
    vXo = 223
    vXw = 224
    vXr = 226
    vS1, vS2 = 230, 231
    vCs = 232
    vB1 = 235
    vT = 238
    vFlag = 254
    A.raw('.p2align 8')
    A.raw('.type k1_kernel,@function')
    A.raw('k1_kernel:')
    A('s_cmp_ge_u32 s2, 256')
    A.branch('s_cbranch_scc1 K1_END')
    A('s_load_dwordx16 s[16:31], s[0:1], 0')
    A('s_load_dwordx4 s[32:35], s[0:1], 64')
    A('s_load_dwordx2 s[36:37], s[0:1], 80')
    A('v_and_b32 %s, 63, v0' % v(vLane))
    A('v_lshrrev_b32 %s, 6, v0' % v(vT))
    A('v_lshlrev_b32 %s, 4, %s' % (v(vL16), v(vLane)))
    A('v_readfirstlane_b32 %s, %s' % (s(sWave), v(vT)))
    A('s_and_b32 %s, s2, 7' % s(sT0))
    A('s_lshr_b32 %s, s2, 3' % s(sT1))
    A('s_and_b32 %s, %s, 1' % (s(sRb), s(sT0)))
    A('s_lshl_b32 %s, %s, 2' % (s(sRb), s(sRb)))
    A('s_and_b32 %s, %s, 3' % (s(sT2), s(sT1)))
    A('s_add_u32 %s, %s, %s' % (s(sRb), s(sRb), s(sT2)))
    A('s_lshr_b32 %s, %s, 1' % (s(sCg), s(sT0)))
    A('s_lshl_b32 %s, %s, 3' % (s(sCg), s(sCg)))
    A('s_lshr_b32 %s, %s, 2' % (s(sT2), s(sT1)))
    A('s_add_u32 %s, %s, %s' % (s(sCg), s(sCg), s(sT2)))
    A('s_lshl_b32 %s, %s, 3' % (s(sRt), s(sRb)))
    A('s_add_u32 %s, %s, %s' % (s(sRt), s(sRt), s(sWave)))
    A('s_cmp_ge_u32 %s, 6' % s(sCg))
    A('s_cselect_b32 %s, 1, 0' % s(sType))
    A('s_cselect_b32 %s, 6, 0' % s(sT0))
    A('s_cselect_b32 %s, 32, 16' % s(sT1))
    A('s_cmp_ge_u32 %s, 17' % s(sCg))
    A('s_cselect_b32 %s, 2, %s' % (s(sType), s(sType)))
    A('s_cselect_b32 %s, 17, %s' % (s(sT0), s(sT0)))
    A('s_cselect_b32 %s, 43, %s' % (s(sT1), s(sT1)))
    A('s_movk_i32 %s, 3072' % s(sStride))
    A('s_cselect_b32 %s, 2752, %s' % (s(sStride), s(sStride)))
    A('s_sub_u32 %s, %s, %s' % (s(sU0), s(sCg), s(sT0)))
    A('s_mul_i32 %s, %s, 3' % (s(sU0), s(sU0)))
    A('s_sub_u32 %s, %s, %s' % (s(sNval), s(sT1), s(sU0)))
    A('s_min_u32 %s, %s, 3' % (s(sNval), s(sNval)))
    A('s_lshl_b32 %s, %s, 6' % (s(sCol), s(sU0)))
    A('s_lshl_b32 %s, %s, 5' % (s(sT0), s(sU0)))
    A('s_add_u32 %s, %s, 1024' % (s(sT0), s(sT0)))
    A('s_cmp_eq_u32 %s, 1' % s(sType))
    A('s_cselect_b32 %s, %s, %s' % (s(sCol), s(sT0), s(sCol)))
    A('s_cselect_b32 %s, 928, 0' % s(sJump))
    sUs, sNb = 92, 93
    A('s_cselect_b32 %s, 32, 64' % s(sUs))
    A('s_cselect_b32 %s, 96, 32' % s(sNb))
    A('s_mov_b32 %s, 0x3f803f80' % s(sOnes))
    for i in range(1, 4):
        A('s_movk_i32 %s, %d' % (s(sXo + i - 1), 8192 * i))
    for m in range(3):
        c, row, t = vT, vT + 1, vT + 2
        A('v_add_u32 %s, %d, %s' % (v(c), 64 * m, v(vLane)))
        A('v_mul_u32_u24 %s, 171, %s' % (v(row), v(c)))
        A('v_lshrrev_b32 %s, 11, %s' % (v(row), v(row)))
        A('v_mul_u32_u24 %s, 12, %s' % (v(t), v(row)))
        A('v_sub_u32 %s, %s, %s' % (v(c), v(c), v(t)))
        A('v_mul_u32_u24 %s, %s, %s' % (v(row), s(sStride), v(row)))
        A('v_lshl_add_u32 %s, %s, 4, %s' % (v(row), v(c), v(row)))
        A('v_cmp_le_u32 vcc, 6, %s' % v(c))
        A('v_mov_b32 %s, %s' % (v(t), s(sJump)))
        A('v_cndmask_b32 %s, 0, %s, vcc' % (v(t), v(t)))
        A('v_add3_u32 %s, %s, %s, %s' % (v(vWd + m), v(row), v(t), s(sCol)))
    A('v_lshrrev_b32 %s, 3, %s' % (v(vT), v(vLane)))
    A('v_and_b32 %s, 7, %s' % (v(vT + 1), v(vLane)))
    A('s_lshl_b32 %s, %s, 15' % (s(sT0), s(sRt)))
    A('v_lshlrev_b32 %s, 10, %s' % (v(vXo), v(vT)))
    A('v_lshl_add_u32 %s, %s, 4, %s' % (v(vXo), v(vT + 1), v(vXo)))
    A('v_add_u32 %s, %s, %s' % (v(vXo), s(sT0), v(vXo)))
    A('s_mul_i32 %s, %s, %s' % (s(sWoff), s(sWave), s(sStride)))
    A('s_lshl_b32 %s, %s, 4' % (s(sWoff), s(sWoff)))
    A('s_lshl_b32 %s, %s, 7' % (s(sStg), s(sStride)))
    A('s_mul_i32 %s, %s, 3072' % (s(sM0), s(sWave)))
    A('s_waitcnt lgkmcnt(0)')
    srd(A, SX, 16, 2048 * 1024)
    A('s_cmp_eq_u32 %s, 2' % s(sType))
    A('s_cselect_b32 %s, s26, s18' % s(SW))
    A('s_cselect_b32 %s, s27, s19' % s(SW + 1))
    A('s_mov_b32 %s, %d' % (s(SW + 2), 512 * 3072))
    A('s_cselect_b32 %s, %d, %s' % (s(SW + 2), 512 * 2752, s(SW + 2)))
    A('s_mov_b32 %s, 0x20000' % s(SW + 3))
    srd(A, SWS, 36, WS_SIZE)
    srd(A, SD, 34, 256)
    stamp(A, 0, sTs, vT + 8, sWave, SWS, WS_STAMP, 8)
    A('s_cmp_eq_u32 %s, 1' % s(sType))
    A('s_cselect_b32 %s, %s, 1' % (s(sT0), s(sRb)))
    A('s_cmp_lg_u32 %s, 0' % s(sT0))
    A.branch('s_cbranch_scc1 K1_NOZERO')
    for i in range(4):
        A('v_mov_b32 %s, 0' % v(vT + 4 + i))
    A('s_mul_i32 %s, %s, %d' % (s(sT1), s(sNval), KVH))
    A('s_lshl_b32 %s, %s, 10' % (s(sT2), s(sWave)))
    A('v_add_u32 %s, %s, %s' % (v(vT), s(sT2), v(vL16)))
    A('v_mov_b32 %s, 0x7f000000' % v(vT + 1))
    A('v_cmp_gt_u32 vcc, %s, %s' % (s(sT1), v(vT)))
    A('v_cndmask_b32 %s, %s, %s, vcc' % (v(vT), v(vT + 1), v(vT)))
    A('s_mul_i32 %s, %s, %d' % (s(sT1), s(sU0), KVH))
    A('s_add_u32 %s, %s, 0x%x' % (s(sT1), s(sT1), WS_KV))
    A('buffer_store_dwordx4 %s, %s, %s, %s offen sc0 sc1' % (v(vT + 4, 4), v(vT), s(SWS, 4), s(sT1)))
    A.label('K1_NOZERO')
    A.vm = []
    for st in range(4):
        for m in range(3):
            A('s_add_u32 m0, %s, %d' % (s(sM0), st * 8 * 3072 + 1024 * m + L_W))
            A('buffer_load_dwordx4 %s, %s, %s offen lds' % (v(vWd + m), s(SW, 4), s(sWoff)), tag='w%d' % st)
        if st < 3:
            A('s_add_u32 %s, %s, %s' % (s(sWoff), s(sWoff), s(sStg)))
        for b in (2 * st, 2 * st + 1):
            for i in range(4):
                so = '0' if i == 0 else s(sXo + i - 1)
                A('buffer_load_dwordx4 %s, %s, %s, %s offen offset:%d' % (v(vX + 16 * b + 4 * i, 4), v(vXo), s(SX, 4), so, 128 * b), tag='x%d' % b)
    stamp(A, 5, sTs, vT + 8, sWave, SWS, WS_STAMP, 8)
    srd(A, SP, 20, 16384)
    A('s_and_b32 %s, %s, 3' % (s(sT0), s(sWave)))
    A('s_lshl_b32 %s, %s, 10' % (s(sT0), s(sT0)))
    A('s_add_u32 m0, %s, %d' % (s(sT0), L_PH))
    A('s_lshl_b32 %s, %s, 10' % (s(sT1), s(sU0)))
    A('s_lshl_b32 %s, %s, 9' % (s(sT2), s(sU0)))
    A('s_cmp_eq_u32 %s, 1' % s(sType))
    A('s_cselect_b32 %s, %s, %s' % (s(sT1), s(sT2), s(sT1)))
    A('s_add_u32 %s, %s, %s' % (s(sT1), s(sT1), s(sT0)))
    A('buffer_load_dwordx4 %s, %s, %s offen lds' % (v(vL16), s(SP, 4), s(sT1)), tag='ph')
    A('s_mov_b32 %s, s28' % s(SB))
    A('s_mov_b32 %s, s29' % s(SB + 1))
    A('s_cmp_eq_u32 %s, 2' % s(sType))
    A('s_cselect_b32 %s, 2752, 0' % s(SB + 2))
    A('s_mov_b32 %s, 0x20000' % s(SB + 3))
    A('v_and_b32 %s, 31, %s' % (v(vT), v(vLane)))
    A('v_lshlrev_b32 %s, 1, %s' % (v(vT), v(vT)))
    A('s_lshl_b32 %s, %s, 6' % (s(sT0), s(sU0)))
    for u in range(3):
        A('buffer_load_ushort %s, %s, %s, %s offen offset:%d' % (v(vB1 + u), v(vT), s(SB, 4), s(sT0), 64 * u), tag='b1')
    A('s_lshr_b32 %s, s2, 1' % s(sT0))
    A('s_cmp_ge_u32 %s, 86' % s(sT0))
    A('s_cselect_b32 %s, s22, s30' % s(SJ))
    A('s_cselect_b32 %s, s23, s31' % s(SJ + 1))
    A('s_mov_b32 %s, %d' % (s(SJ + 2), 1376 * 1024))
    A('s_cselect_b32 %s, %d, %s' % (s(SJ + 2), 512 * 1024, s(SJ + 2)))
    A('s_mov_b32 %s, 0x20000' % s(SJ + 3))
    A('s_cselect_b32 %s, 86, 0' % s(sT1))
    A('s_sub_u32 %s, %s, %s' % (s(sT1), s(sT0), s(sT1)))
    A('s_lshl_b32 %s, %s, 14' % (s(sT1), s(sT1)))
    A('s_and_b32 %s, s2, 1' % s(sT2))
    A('s_lshl_b32 %s, %s, 3' % (s(sT2), s(sT2)))
    A('s_add_u32 %s, %s, %s' % (s(sT2), s(sT2), s(sWave)))
    sNt = 94
    A('s_mov_b32 %s, %s' % (s(sNt), s(sT2)))
    A('s_lshl_b32 %s, %s, 6' % (s(sT2), s(sT2)))
    A('s_add_u32 %s, %s, %s' % (s(sT1), s(sT1), s(sT2)))
    A('v_lshrrev_b32 %s, 2, %s' % (v(vT), v(vLane)))
    A('v_and_b32 %s, 3, %s' % (v(vT + 1), v(vLane)))
    A('v_lshlrev_b32 %s, 10, %s' % (v(vT), v(vT)))
    A('v_lshl_add_u32 %s, %s, 4, %s' % (v(vT), v(vT + 1), v(vT)))
    A('s_lshl_b32 %s, %s, 10' % (s(sT2), s(sWave)))
    A('s_add_u32 m0, %s, %d' % (s(sT2), L_J))
    A('buffer_load_dwordx4 %s, %s, %s offen lds' % (v(vT), s(SJ, 4), s(sT1)), tag='job')
    sJo = 95
    A('s_lshr_b32 %s, %s, 1' % (s(sT1), s(sNt)))
    A('s_mul_i32 %s, %s, 118' % (s(sT1), s(sT1)))
    A('s_add_u32 %s, %s, %s' % (s(sT1), s(sT1), s(sT0)))
    A('s_lshl_b32 %s, %s, 1' % (s(sT1), s(sT1)))
    A('s_and_b32 %s, %s, 1' % (s(sT2), s(sNt)))
    A('s_add_u32 %s, %s, %s' % (s(sT1), s(sT1), s(sT2)))
    A('s_lshl_b32 %s, %s, 10' % (s(sT1), s(sT1)))
    A('s_add_u32 %s, %s, 0x%x' % (s(sJo), s(sT1), WS_W2F))
    A('s_cmp_ge_u32 %s, 118' % s(sT0))
    A('s_cselect_b32 %s, 0x7f000000, %s' % (s(sJo), s(sJo)))
    A('v_lshrrev_b32 %s, 5, %s' % (v(vT), v(vLane)))
    A('v_bfe_u32 %s, %s, 2, 2' % (v(vT + 1), v(vLane)))
    A('v_lshl_add_u32 %s, %s, 3, %s' % (v(vT + 1), v(vT), v(vT + 1)))
    A('v_mul_u32_u24 %s, 192, %s' % (v(vT + 1), v(vT + 1)))
    A('v_bfe_u32 %s, %s, 4, 1' % (v(vT + 2), v(vLane)))
    A('v_mul_u32_u24 %s, %s, %s' % (v(vT + 2), s(sNb), v(vT + 2)))
    A('v_and_b32 %s, 3, %s' % (v(vT + 3), v(vLane)))
    A('v_lshlrev_b32 %s, 3, %s' % (v(vT + 3), v(vT + 3)))
    A('v_add3_u32 %s, %s, %s, %s' % (v(vWa), v(vT + 1), v(vT + 2), v(vT + 3)))
    A('v_add_u32 %s, %s, %s' % (v(vWa + 1), s(sUs), v(vWa)))
    A('v_add_u32 %s, %s, %s' % (v(vWa + 2), s(sUs), v(vWa + 1)))
    for u in range(3):
        A('v_add_u32 %s, %s, %s' % (v(vCa + u), s(sM0), v(vWa + u)))
    A('s_lshl_b32 %s, %s, 12' % (s(sT0), s(sWave)))
    A('s_add_u32 %s, %s, %d' % (s(sT0), s(sT0), L_XB))
    A('v_lshrrev_b32 %s, 3, %s' % (v(vT + 1), v(vLane)))
    A('v_lshrrev_b32 %s, 4, %s' % (v(vT + 2), v(vLane)))
    A('v_and_b32 %s, 7, %s' % (v(vT + 3), v(vLane)))
    A('v_xor_b32 %s, %s, %s' % (v(vT + 3), v(vT + 3), v(vT + 2)))
    A('v_lshlrev_b32 %s, 4, %s' % (v(vT + 3), v(vT + 3)))
    A('v_lshl_add_u32 %s, %s, 7, %s' % (v(vT + 3), v(vT + 1), v(vT + 3)))
    A('v_add_u32 %s, %s, %s' % (v(vXw), s(sT0), v(vT + 3)))
    A('v_xor_b32 %s, 64, %s' % (v(vXw + 1), v(vXw)))
    A('v_and_b32 %s, 31, %s' % (v(vT + 1), v(vLane)))
    A('v_bfe_u32 %s, %s, 1, 3' % (v(vT + 2), v(vLane)))
    A('v_xor_b32 %s, %s, %s' % (v(vT + 2), v(vT + 2), v(vT)))
    A('v_lshlrev_b32 %s, 4, %s' % (v(vT + 2), v(vT + 2)))
    A('v_lshl_add_u32 %s, %s, 7, %s' % (v(vT + 2), v(vT + 1), v(vT + 2)))
    A('v_add_u32 %s, %s, %s' % (v(vXr), s(sT0), v(vT + 2)))
    for tt in range(1, 4):
        A('v_xor_b32 %s, %d, %s' % (v(vXr + tt), 32 * tt, v(vXr)))
    A('v_mov_b32 %s, 0' % v(vS1))
    A('v_mov_b32 %s, 0' % v(vS2))
    for u in range(3):
        A('v_mov_b32 %s, 0' % v(vCs + u))
    def wread(t, buf):
        tl = t % 16
        if OPT['nowread']:
            return
        for u in range(3):
            for hh in range(2):
                A('ds_read_b64_tr_b16 %s, %s offset:%d' % (v(vWf + 12 * buf + 4 * u + 2 * hh, 2), v(vWa + u), tl * 3072 + 768 * hh), tag='wf%d' % t)
    for st in range(4):
        for b in (2 * st, 2 * st + 1):
            A.wait_vm('x%d' % b)
            if OPT['nobounce']:
                continue
            for i in range(4):
                A('ds_write_b128 %s, %s offset:%d' % (v(vXw + (i & 1)), v(vX + 16 * b + 4 * i, 4), 1024 * i), tag='xw')
            for tt in range(4):
                A('ds_read_b128 %s, %s' % (v(vX + 16 * b + 4 * tt, 4), v(vXr + tt)), tag='xr%d' % (4 * b + tt))
        A('s_barrier')
        if st == 0:
            stamp(A, 1, sTs, vT + 8, sWave, SWS, WS_STAMP, 8)
            A('s_cmp_eq_u32 %s, 1' % s(sType))
            A('s_cselect_b32 %s, %s, 1' % (s(sT0), s(sRb)))
            A('s_or_b32 %s, %s, %s' % (s(sT0), s(sT0), s(sWave)))
            A('s_cmp_lg_u32 %s, 0' % s(sT0))
            A.branch('s_cbranch_scc1 K1_NOFLAG')
            A('v_mov_b32 %s, 1' % v(vT))
            A('v_mov_b32 %s, 0' % v(vT + 1))
            A('s_lshl_b32 %s, %s, 2' % (s(sT0), s(sCg)))
            sv = list(A.vm)
            A('buffer_store_dword %s, %s, %s, %s offen sc0 sc1' % (v(vT), v(vT + 1), s(SD, 4), s(sT0)))
            A.vm = sv
            A.label('K1_NOFLAG')
        if st == 2:
            stamp(A, 6, sTs, vT + 8, sWave, SWS, WS_STAMP, 8)
            for u in range(3):
                A('v_add_u32 %s, %d, %s' % (v(vWa + u), 16 * 3072, v(vWa + u)))
                A('v_add_u32 %s, %d, %s' % (v(vCa + u), 16 * 3072, v(vCa + u)))
        wread(8 * st, 0)
        for u in range(3):
            for hh in range(2):
                A('ds_read_b64_tr_b16 %s, %s offset:%d' % (v(vCf + 4 * u + 2 * hh, 2), v(vCa + u), (st & 1) * 8 * 3072 + 768 * hh), tag='cf')
        for k in range(8):
            t = 8 * st + k
            buf = k & 1
            if k < 7:
                wread(t + 1, buf ^ 1)
            A.wait_lg('wf%d' % t)
            xr = vX + 4 * t
            for u in range(3):
                c = '0' if t == 0 else v(vAcc + 16 * u, 16)
                if not OPT['nomfma'] or t == 0:
                    A('v_mfma_f32_32x32x16_bf16 %s, %s, %s, %s' % (v(vAcc + 16 * u, 16), v(vWf + 12 * buf + 4 * u, 4), v(xr, 4), c))
                if OPT['nodot'] and not (u == 2 and k == 4 and st == 3):
                    pass
                elif u < 2:
                    for j in (2 * u, 2 * u + 1):
                        A('v_dot2c_f32_bf16 %s, %s, %s' % (v(vS1), s(sOnes), v(xr + j)))
                        A('v_dot2c_f32_bf16 %s, %s, %s' % (v(vS2), v(xr + j), v(xr + j)))
                elif 1 <= k <= 3:
                    uu = k - 1
                    for j in range(4):
                        A('v_dot2c_f32_bf16 %s, %s, %s' % (v(vCs + uu), s(sOnes), v(vCf + 4 * uu + j)))
                elif k == 4 and st == 3:
                    A('v_and_b32 %s, 31, %s' % (v(vT), v(vLane)))
                    A('v_lshlrev_b32 %s, 5, %s' % (v(vT), v(vT)))
                    A('v_add_u32 %s, %d, %s' % (v(vT), L_CS, v(vT)))
                    A('s_lshl_b32 %s, %s, 2' % (s(sT0), s(sWave)))
                    A('v_add_u32 %s, %s, %s' % (v(vT + 1), s(sT0), v(vT)))
                    for uu in range(3):
                        A('v_mov_b32 %s, %s' % (v(vT + 2 + uu), v(vCs + uu)))
                    for uu in range(3):
                        A('v_permlane32_swap_b32 %s, %s' % (v(vCs + uu), v(vT + 2 + uu)))
                    for uu in range(3):
                        A('v_add_f32 %s, %s, %s' % (v(vCs + uu), v(vCs + uu), v(vT + 2 + uu)))
                    for uu in range(3):
                        A('ds_write_b32 %s, %s offset:%d' % (v(vT + 1), v(vCs + uu), 1024 * uu), tag='csw')
    stamp(A, 2, sTs, vT + 8, sWave, SWS, WS_STAMP, 8)
    A('v_mov_b32 %s, %s' % (v(vT + 1), v(vS1)))
    A('v_mov_b32 %s, %s' % (v(vT + 2), v(vS2)))
    A('v_permlane32_swap_b32 %s, %s' % (v(vS1), v(vT + 1)))
    A('v_permlane32_swap_b32 %s, %s' % (v(vS2), v(vT + 2)))
    A('v_add_f32 %s, %s, %s' % (v(vS1), v(vS1), v(vT + 1)))
    A('v_add_f32 %s, %s, %s' % (v(vS2), v(vS2), v(vT + 2)))
    A('v_mul_f32 %s, 0x3b000000, %s' % (v(vS1), v(vS1)))
    A('v_mul_f32 %s, 0x3b000000, %s' % (v(vS2), v(vS2)))
    A('v_fma_f32 %s, -%s, %s, %s' % (v(vS2), v(vS1), v(vS1), v(vS2)))
    A('v_max_f32 %s, 0, %s' % (v(vS2), v(vS2)))
    A('v_cvt_pk_bf16_f32 %s, %s, %s' % (v(vS2), v(vS2), v(vS2)))
    A('v_lshlrev_b32 %s, 16, %s' % (v(vS2), v(vS2)))
    A('v_add_f32 %s, 0x3727c5ac, %s' % (v(vS2), v(vS2)))
    A('v_cvt_pk_bf16_f32 %s, %s, %s' % (v(vS2), v(vS2), v(vS2)))
    A('v_lshlrev_b32 %s, 16, %s' % (v(vS2), v(vS2)))
    A('v_sqrt_f32 %s, %s' % (v(vS2), v(vS2)))
    vBp = 0
    vAp = 4
    vR2 = 8
    vRL = 10
    vC2 = 12
    vCm2 = 14
    vC1 = 16
    vL2 = 18
    A('v_cvt_pk_bf16_f32 %s, -%s, -%s' % (v(vBp), v(vS1), v(vS1)))
    A('v_cvt_pk_bf16_f32 %s, %s, 0' % (v(vBp + 1), v(vS2)))
    A('v_lshlrev_b32 %s, 16, %s' % (v(vS2), v(vBp + 1)))
    A('v_rcp_f32 %s, %s' % (v(vR2), v(vS2)))
    A('v_cmp_gt_u32 vcc, 32, %s' % v(vLane))
    A('v_mov_b32 %s, 0' % v(vBp + 2))
    A('v_mov_b32 %s, 0' % v(vBp + 3))
    A('v_cndmask_b32 %s, 0, %s, vcc' % (v(vBp), v(vBp)))
    A('v_cndmask_b32 %s, 0, %s, vcc' % (v(vBp + 1), v(vBp + 1)))
    A('v_mov_b32 %s, %s' % (v(vR2 + 1), v(vR2)))
    A('v_mul_f32 %s, 0x%x, %s' % (v(vRL), LOG2E, v(vR2)))
    A('v_mul_f32 %s, 0x%x, %s' % (v(vRL + 1), LOG2E, v(vR2)))
    for r, c in ((vC2, '2.0'), (vCm2, '-2.0'), (vC1, '1.0'), (vL2, '0x%x' % LOG2E)):
        A('v_mov_b32 %s, %s' % (v(r), c))
        A('v_mov_b32 %s, %s' % (v(r + 1), c))
    A('v_mov_b32 %s, 0' % v(vAp + 2))
    A('v_mov_b32 %s, 0' % v(vAp + 3))
    A.wait_vm(None)
    A.wait_lg(None)
    A('s_barrier')
    vJ = 20
    A('v_lshrrev_b32 %s, 5, %s' % (v(vT + 1), v(vLane)))
    A('v_bfe_u32 %s, %s, 2, 2' % (v(vT + 2), v(vLane)))
    A('v_lshl_add_u32 %s, %s, 2, %s' % (v(vT + 2), v(vT + 1), v(vT + 2)))
    A('v_bfe_u32 %s, %s, 4, 1' % (v(vT + 3), v(vLane)))
    A('v_and_b32 %s, 3, %s' % (v(vT + 4), v(vLane)))
    A('v_lshl_add_u32 %s, %s, 2, %s' % (v(vT + 5), v(vT + 3), v(vT + 4)))
    A('v_lshlrev_b32 %s, 3, %s' % (v(vT + 5), v(vT + 5)))
    A('v_lshl_add_u32 %s, %s, 6, %s' % (v(vT + 5), v(vT + 2), v(vT + 5)))
    A('s_lshl_b32 %s, %s, 10' % (s(sT0), s(sWave)))
    A('v_add_u32 %s, %s, %s' % (v(vT + 5), s(sT0), v(vT + 5)))
    A('v_add_u32 %s, %d, %s' % (v(vT + 5), L_J, v(vT + 5)))
    A('ds_read_b64_tr_b16 %s, %s' % (v(vJ, 2), v(vT + 5)), tag='j')
    A('ds_read_b64_tr_b16 %s, %s offset:512' % (v(vJ + 2, 2), v(vT + 5)), tag='j')
    vCr = 96
    for u in range(3):
        for hh in range(2):
            A('ds_read_b128 %s, %s offset:%d' % (v(vCr + 8 * u + 4 * hh, 4), v(vT), 1024 * u + 16 * hh), tag='cs')
    vPa = 24
    vSg = 25
    A('v_lshrrev_b32 %s, 1, %s' % (v(vT + 4), v(vT + 4)))
    A('v_lshl_add_u32 %s, %s, 1, %s' % (v(vT + 4), v(vT + 3), v(vT + 4)))
    A('v_lshlrev_b32 %s, 3, %s' % (v(vT + 4), v(vT + 4)))
    A('v_lshl_add_u32 %s, %s, 5, %s' % (v(vPa), v(vT + 2), v(vT + 4)))
    A('v_add_u32 %s, %d, %s' % (v(vPa), L_PH, v(vPa)))
    A('v_bfe_u32 %s, %s, 2, 1' % (v(vSg), v(vLane)))
    A('v_mul_u32_u24 %s, 0x8000, %s' % (v(vSg), v(vSg)))
    A('v_lshl_or_b32 %s, %s, 16, %s' % (v(vSg), v(vSg), v(vSg)))
    A.wait_lg('j')
    A('buffer_store_dwordx4 %s, %s, %s, %s offen' % (v(vJ, 4), v(vL16), s(SWS, 4), s(sJo)))
    A.wait_lg('cs')
    for u in range(3):
        r = vCr + 8 * u
        A('v_pk_add_f32 %s, %s, %s' % (v(r, 2), v(r, 2), v(r + 2, 2)))
        A('v_pk_add_f32 %s, %s, %s' % (v(r + 4, 2), v(r + 4, 2), v(r + 6, 2)))
        A('v_pk_add_f32 %s, %s, %s' % (v(r, 2), v(r, 2), v(r + 4, 2)))
        A('v_add_f32 %s, %s, %s' % (v(vCs + u), v(r), v(r + 1)))
    for u in range(3):
        A('v_cvt_pk_bf16_f32 %s, %s, %s' % (v(vAp), v(vCs + u), v(vCs + u)))
        A('v_lshlrev_b32 %s, 16, %s' % (v(vAp), v(vAp)))
        A('v_sub_f32 %s, %s, %s' % (v(vAp), v(vCs + u), v(vAp)))
        A('v_cvt_pk_bf16_f32 %s, %s, %s' % (v(vAp), v(vCs + u), v(vAp)))
        A('v_mov_b32 %s, %s' % (v(vAp + 1), v(vB1 + u)))
        A('v_mfma_f32_32x32x16_bf16 %s, %s, %s, %s' % (v(vAcc + 16 * u, 16), v(vAp, 4), v(vBp, 4), v(vAcc + 16 * u, 16)))
    sRb2, sRt2 = 96, 97
    A('s_lshr_b32 %s, %s, 1' % (s(sRb2), s(sRt)))
    A('s_and_b32 %s, %s, 1' % (s(sRt2), s(sRt)))
    A('s_cmp_eq_u32 %s, 0' % s(sType))
    A.branch('s_cbranch_scc1 K1_Q')
    A('s_cmp_eq_u32 %s, 1' % s(sType))
    A.branch('s_cbranch_scc1 K1_KV')
    A('s_mul_i32 %s, %s, 86' % (s(sOut), s(sRb2)))
    A('s_lshl_b32 %s, %s, 1' % (s(sT0), s(sU0)))
    A('s_add_u32 %s, %s, %s' % (s(sOut), s(sOut), s(sT0)))
    A('s_lshl_b32 %s, %s, 1' % (s(sOut), s(sOut)))
    A('s_add_u32 %s, %s, %s' % (s(sOut), s(sOut), s(sRt2)))
    A('s_lshl_b32 %s, %s, 10' % (s(sOut), s(sOut)))
    for u in range(3):
        if u > 0:
            A('s_cmp_le_u32 %s, %d' % (s(sNval), u))
            A.branch('s_cbranch_scc1 K1_DONE')
        acc = vAcc + 16 * u
        H, T, U, P = 32, 48, 64, 80 + 8 * u
        for i in range(8):
            A('v_pk_mul_f32 %s, %s, %s' % (v(T + 2 * i, 2), v(acc + 2 * i, 2), v(vRL, 2)))
        for i in range(16):
            A('v_exp_f32 %s, %s' % (v(T + i), v(T + i)))
        for i in range(8):
            A('v_pk_mul_f32 %s, %s, %s' % (v(H + 2 * i, 2), v(acc + 2 * i, 2), v(vR2, 2)))
        for i in range(8):
            A('v_pk_add_f32 %s, %s, %s' % (v(U + 2 * i, 2), v(T + 2 * i, 2), v(vC2, 2)))
        for i in range(8):
            A('v_pk_fma_f32 %s, %s, %s, %s' % (v(U + 2 * i, 2), v(T + 2 * i, 2), v(U + 2 * i, 2), v(vC2, 2)))
        for i in range(16):
            A('v_rcp_f32 %s, %s' % (v(U + i), v(U + i)))
        for i in range(8):
            A('v_pk_fma_f32 %s, %s, %s, %s' % (v(U + 2 * i, 2), v(U + 2 * i, 2), v(vCm2, 2), v(vC1, 2)))
        for i in range(8):
            A('v_pk_mul_f32 %s, %s, %s' % (v(U + 2 * i, 2), v(U + 2 * i, 2), v(H + 2 * i, 2)))
        for i in range(8):
            A('v_cvt_pk_bf16_f32 %s, %s, %s' % (v(P + i), v(U + 2 * i), v(U + 2 * i + 1)))
        A('buffer_store_dwordx4 %s, %s, %s, %s offen' % (v(P, 4), v(vL16), s(SWS, 4), s(sOut)))
        A('buffer_store_dwordx4 %s, %s, %s, %s offen offset:2048' % (v(P + 4, 4), v(vL16), s(SWS, 4), s(sOut)))
        A('s_add_u32 %s, %s, 4096' % (s(sOut), s(sOut)))
    A.branch('s_branch K1_DONE')

    def softmax(D, P, M):
        A('v_max3_f32 %s, %s, %s, %s' % (v(M), v(D), v(D + 1), v(D + 2)))
        A('v_max3_f32 %s, %s, %s, %s' % (v(M + 1), v(D + 3), v(D + 4), v(D + 5)))
        A('v_max3_f32 %s, %s, %s, %s' % (v(M + 2), v(D + 6), v(D + 7), v(D + 8)))
        A('v_max3_f32 %s, %s, %s, %s' % (v(M + 3), v(D + 9), v(D + 10), v(D + 11)))
        A('v_max3_f32 %s, %s, %s, %s' % (v(M), v(M), v(D + 12), v(D + 13)))
        A('v_max3_f32 %s, %s, %s, %s' % (v(M + 1), v(M + 1), v(D + 14), v(D + 15)))
        A('v_max3_f32 %s, %s, %s, %s' % (v(M), v(M), v(M + 1), v(M + 2)))
        A('v_max_f32 %s, %s, %s' % (v(M), v(M), v(M + 3)))
        A('v_mul_f32 %s, 0x%x, %s' % (v(M), LOG2E | 0x80000000, v(M)))
        for i in range(8):
            A('v_pk_fma_f32 %s, %s, %s, %s op_sel_hi:[1,1,0]' % (v(D + 2 * i, 2), v(D + 2 * i, 2), v(vL2, 2), v(M, 2)))
        for i in range(16):
            A('v_exp_f32 %s, %s' % (v(D + i), v(D + i)))
        A('v_pk_add_f32 %s, %s, %s' % (v(M, 2), v(D, 2), v(D + 2, 2)))
        A('v_pk_add_f32 %s, %s, %s' % (v(M + 2, 2), v(D + 4, 2), v(D + 6, 2)))
        A('v_pk_add_f32 %s, %s, %s' % (v(M, 2), v(M, 2), v(D + 8, 2)))
        A('v_pk_add_f32 %s, %s, %s' % (v(M + 2, 2), v(M + 2, 2), v(D + 10, 2)))
        A('v_pk_add_f32 %s, %s, %s' % (v(M, 2), v(M, 2), v(D + 12, 2)))
        A('v_pk_add_f32 %s, %s, %s' % (v(M + 2, 2), v(M + 2, 2), v(D + 14, 2)))
        A('v_pk_add_f32 %s, %s, %s' % (v(M, 2), v(M, 2), v(M + 2, 2)))
        A('v_add_f32 %s, %s, %s' % (v(M), v(M), v(M + 1)))
        A('v_rcp_f32 %s, %s' % (v(M), v(M)))
        for i in range(8):
            A('v_pk_mul_f32 %s, %s, %s op_sel_hi:[1,0]' % (v(D + 2 * i, 2), v(D + 2 * i, 2), v(M, 2)))
        for i in range(8):
            A('v_cvt_pk_bf16_f32 %s, %s, %s' % (v(P + i), v(D + 2 * i), v(D + 2 * i + 1)))

    def scale_pack(acc, QP):
        for i in range(8):
            A('v_pk_mul_f32 %s, %s, %s' % (v(acc + 2 * i, 2), v(acc + 2 * i, 2), v(vR2, 2)))
        for i in range(8):
            A('v_cvt_pk_bf16_f32 %s, %s, %s' % (v(QP + i), v(acc + 2 * i), v(acc + 2 * i + 1)))

    def load_phi(dst, hl):
        A('ds_read_b64_tr_b16 %s, %s offset:%d' % (v(dst, 2), v(vPa), 512 * hl), tag='ph%d' % hl)
        A('ds_read_b64_tr_b16 %s, %s offset:%d' % (v(dst + 2, 2), v(vPa), 512 * hl + 256), tag='ph%d' % hl)

    A.label('K1_Q')
    A.lg = []; A.vm = []
    vPh = 176
    for hl in range(6):
        load_phi(vPh + 4 * hl, hl)
    A('s_lshl_b32 %s, %s, 5' % (s(sOut), s(sRb2)))
    A('s_lshl_b32 %s, %s, 1' % (s(sT0), s(sU0)))
    A('s_add_u32 %s, %s, %s' % (s(sOut), s(sOut), s(sT0)))
    A('s_lshl_b32 %s, %s, 1' % (s(sOut), s(sOut)))
    A('s_add_u32 %s, %s, %s' % (s(sOut), s(sOut), s(sRt2)))
    A('s_lshl_b32 %s, %s, 11' % (s(sOut), s(sOut)))
    A('s_add_u32 %s, %s, 0x%x' % (s(sOut), s(sOut), WS_PHI))
    A.wait_lg(None)
    for i in range(24):
        A('v_xor_b32 %s, %s, %s' % (v(vPh + i), v(vSg), v(vPh + i)))
    for u in range(3):
        if u > 0:
            A('s_cmp_le_u32 %s, %d' % (s(sNval), u))
            A.branch('s_cbranch_scc1 K1_DONE')
        acc = vAcc + 16 * u
        QP = 28
        scale_pack(acc, QP)
        D0, D1 = 48, 64
        A('v_mfma_f32_32x32x16_bf16 %s, %s, %s, 0' % (v(D0, 16), v(vPh + 8 * u, 4), v(QP, 4)))
        A('v_mfma_f32_32x32x16_bf16 %s, %s, %s, 0' % (v(D1, 16), v(vPh + 8 * u + 4, 4), v(QP + 4, 4)))
        for hh, D in enumerate((D0, D1)):
            P = 80 + 8 * hh
            softmax(D, P, 36)
            A('buffer_store_dwordx4 %s, %s, %s, %s offen' % (v(P, 4), v(vL16), s(SWS, 4), s(sOut)))
            A('buffer_store_dwordx4 %s, %s, %s, %s offen offset:1024' % (v(P + 4, 4), v(vL16), s(SWS, 4), s(sOut)))
            A('s_add_u32 %s, %s, 4096' % (s(sOut), s(sOut)))
    A.branch('s_branch K1_DONE')

    A.label('K1_KV')
    A.lg = []; A.vm = []
    for hl in range(3):
        load_phi(vPh + 4 * hl, hl)
    A('v_mov_b32 %s, 0' % v(vT + 6))
    A('s_lshl_b32 %s, %s, 2' % (s(sT2), s(sCg)))
    A('buffer_load_dword %s, %s, %s, %s offen sc0 sc1' % (v(vFlag), v(vT + 6), s(SD, 4), s(sT2)), tag='flag')
    vSel0, vSel1, vSelV, vOne = 188, 192, 196, 96
    A('v_and_b32 %s, 31, %s' % (v(vT), v(vLane)))
    A('v_lshrrev_b32 %s, 5, %s' % (v(vT + 1), v(vLane)))
    A('v_lshlrev_b32 %s, 4, %s' % (v(vT + 2), v(vT + 1)))
    A('v_sub_u32 %s, %s, %s' % (v(vT + 2), v(vT), v(vT + 2)))
    A('v_lshlrev_b32 %s, 2, %s' % (v(vT + 3), v(vT + 1)))
    A('v_sub_u32 %s, %s, %s' % (v(vT + 3), v(vT), v(vT + 3)))
    A('v_mov_b32 %s, 0x3f80' % v(vT + 4))
    A('v_mov_b32 %s, 0x3f800000' % v(vT + 5))
    def sel(dst, src, lo, hi):
        A('v_cmp_eq_u32 vcc, %d, %s' % (lo, v(src)))
        A('v_cndmask_b32 %s, 0, %s, vcc' % (v(dst), v(vT + 4)))
        A('v_cmp_eq_u32 vcc, %d, %s' % (hi, v(src)))
        A('v_cndmask_b32 %s, %s, %s, vcc' % (v(dst), v(dst), v(vT + 5)))
    for r in range(4):
        sel(vSel0 + r, vT + 2, 2 * r, 2 * r + 1)
        sel(vSel1 + r, vT + 2, 8 + 2 * r, 8 + 2 * r + 1)
        j0, j1 = 2 * r, 2 * r + 1
        sel(vSelV + r, vT + 3, (j0 & 3) + 8 * (j0 >> 2), (j1 & 3) + 8 * (j1 >> 2))
    A('v_and_b32 %s, 27, %s' % (v(vOne + 1), v(vT)))
    A('v_cmp_eq_u32 vcc, 16, %s' % v(vOne + 1))
    A('v_cndmask_b32 %s, 0, %s, vcc' % (v(vOne), v(vT + 5)))
    for i in range(1, 16):
        A('v_mov_b32 %s, %s' % (v(vOne + i), v(vOne)))
    vKa, vKz = 200, 201
    A('v_bfe_u32 %s, %s, 2, 2' % (v(vT + 2), v(vLane)))
    A('v_bfe_u32 %s, %s, 4, 1' % (v(vT + 3), v(vLane)))
    A('v_lshl_add_u32 %s, %s, 1, %s' % (v(vT + 2), v(vT + 2), v(vT + 3)))
    A('v_mul_u32_u24 %s, 272, %s' % (v(vT + 2), v(vT + 2)))
    A('v_and_b32 %s, 3, %s' % (v(vT + 3), v(vLane)))
    A('v_lshl_add_u32 %s, %s, 2, %s' % (v(vKz), v(vT + 3), v(vT + 2)))
    A('s_lshl_b32 %s, %s, 13' % (s(sT0), s(sWave)))
    A('v_add_u32 %s, %s, %s' % (v(vKz), s(sT0), v(vKz)))
    A('v_lshl_add_u32 %s, %s, 6, %s' % (v(vKa), v(vT + 1), v(vKz)))
    A.wait_lg(None)
    for i in range(12):
        A('v_xor_b32 %s, %s, %s' % (v(vPh + i), v(vSg), v(vPh + i)))
    for u in range(3):
        if u > 0:
            A('s_cmp_le_u32 %s, %d' % (s(sNval), u))
            A.branch('s_cbranch_scc1 K1_KVRED')
        acc = vAcc + 16 * u
        QP = 28
        scale_pack(acc, QP)
        D0, D1 = 48, 64
        A('v_mfma_f32_32x32x16_bf16 %s, %s, %s, 0' % (v(D0, 16), v(vPh + 4 * u, 4), v(QP, 4)))
        A('v_mfma_f32_32x32x16_bf16 %s, %s, %s, %s' % (v(D1, 16), v(QP + 4, 4), v(vSelV, 4), v(vOne, 16)))
        P = 80
        softmax(D0, P, 36)
        A('v_mfma_f32_32x32x16_bf16 %s, %s, %s, 0' % (v(D0, 16), v(P, 4), v(vSel0, 4)))
        A('v_mfma_f32_32x32x16_bf16 %s, %s, %s, %s' % (v(D0, 16), v(P + 4, 4), v(vSel1, 4), v(D0, 16)))
        VT = 88
        for i in range(8):
            A('v_cvt_pk_bf16_f32 %s, %s, %s' % (v(VT + i), v(D1 + 2 * i), v(D1 + 2 * i + 1)))
        PT = 112
        for i in range(8):
            A('v_cvt_pk_bf16_f32 %s, %s, %s' % (v(PT + i), v(D0 + 2 * i), v(D0 + 2 * i + 1)))
        A('v_mfma_f32_32x32x16_bf16 %s, %s, %s, 0' % (v(acc, 16), v(VT, 4), v(PT, 4)))
        A('v_mfma_f32_32x32x16_bf16 %s, %s, %s, %s' % (v(acc, 16), v(VT + 4, 4), v(PT + 4, 4), v(acc, 16)))
        for r in range(8):
            A('ds_write_b32 %s, %s offset:%d' % (v(vKa), v(acc + r), KVH * u + ((r & 3) + 8 * (r >> 2)) * 16))
        A('ds_write_b32 %s, %s offset:%d' % (v(vKz), v(acc + 8), KVH * u + 256))
    A.label('K1_KVRED')
    stamp(A, 7, sTs, vT + 8, sWave, SWS, WS_STAMP, 8)
    A('s_waitcnt lgkmcnt(0)')
    A('s_barrier')
    A('s_mov_b32 %s, 0' % s(sT0))
    A.label('K1_POLL')
    A('s_waitcnt vmcnt(0)')
    A('v_readfirstlane_b32 %s, %s' % (s(sT1), v(vFlag)))
    A('s_cmp_lg_u32 %s, 0' % s(sT1))
    A.branch('s_cbranch_scc1 K1_GO')
    A('s_add_u32 %s, %s, 1' % (s(sT0), s(sT0)))
    A('s_cmp_gt_u32 %s, 0x40000' % s(sT0))
    A.branch('s_cbranch_scc1 K1_GO')
    A('s_sleep 8')
    A('buffer_load_dword %s, %s, %s, %s offen sc0 sc1' % (v(vFlag), v(vT + 6), s(SD, 4), s(sT2)))
    A.branch('s_branch K1_POLL')
    A.label('K1_GO')
    A('s_lshl_b32 %s, %s, 8' % (s(sT0), s(sWave)))
    A('v_lshl_add_u32 %s, %s, 2, %s' % (v(vT), v(vLane), s(sT0)))
    vR = 32
    for i in range(4):
        for w in range(8):
            A('ds_read_b32 %s, %s offset:%d' % (v(vR + 8 * i + w), v(vT), 2048 * i + 8192 * w))
    A('s_mul_i32 %s, %s, %d' % (s(sT1), s(sNval), KVH))
    A('s_mul_i32 %s, %s, %d' % (s(sT2), s(sU0), KVH))
    A('s_add_u32 %s, %s, 0x%x' % (s(sT2), s(sT2), WS_KV))
    A('v_mov_b32 %s, 0x7f000000' % v(vT + 2))
    for i in range(4):
        A('v_add_u32 %s, %d, %s' % (v(vT + 4 + i), 2048 * i, v(vT)))
        A('v_cmp_gt_u32 vcc, %s, %s' % (s(sT1), v(vT + 4 + i)))
        A('v_cndmask_b32 %s, %s, %s, vcc' % (v(vT + 4 + i), v(vT + 2), v(vT + 4 + i)))
    A('s_waitcnt lgkmcnt(0)')
    for i in range(4):
        r = vR + 8 * i
        A('v_pk_add_f32 %s, %s, %s' % (v(r, 2), v(r, 2), v(r + 2, 2)))
        A('v_pk_add_f32 %s, %s, %s' % (v(r + 4, 2), v(r + 4, 2), v(r + 6, 2)))
        A('v_pk_add_f32 %s, %s, %s' % (v(r, 2), v(r, 2), v(r + 4, 2)))
        A('v_add_f32 %s, %s, %s' % (v(r), v(r), v(r + 1)))
        A('buffer_atomic_add_f32 %s, %s, %s, %s offen' % (v(r), v(vT + 4 + i), s(SWS, 4), s(sT2)))
    A.label('K1_DONE')
    if OPT['stamps']:
        stamp(A, 3, sTs, vT + 8, sWave, SWS, WS_STAMP, 8)
        A('s_waitcnt vmcnt(0)')
        stamp(A, 4, sTs, vT + 8, sWave, SWS, WS_STAMP, 8)
    A.label('K1_END')
    A('s_endpgm')
    lds = L_END
    return A.text(), lds

def gen_k2():
    A = Asm()
    SWS, SX, SO = 40, 44, 48
    sWave, sRb2, sCb, sT0, sT1, sT2 = 52, 53, 54, 55, 56, 57
    sAct, sW, sPhi, sWo, sKv = 58, 59, 60, 61, 62
    sTs = 64
    PITCH = 272
    vAcc = 0
    vKv = 64
    vKb = 128
    vD = 144
    vO = 208
    vLane, vL16, vKo = 224, 225, 226
    vT = 228
    vXres = 244
    A.raw('.p2align 8')
    A.raw('.type k2_kernel,@function')
    A.raw('k2_kernel:')
    A('s_cmp_ge_u32 s2, 256')
    A.branch('s_cbranch_scc1 K2_END')
    A('s_load_dwordx2 s[16:17], s[0:1], 0')
    A('s_load_dwordx2 s[32:33], s[0:1], 64')
    A('s_load_dwordx2 s[36:37], s[0:1], 80')
    A('v_and_b32 %s, 63, v0' % v(vLane))
    A('v_lshrrev_b32 %s, 6, v0' % v(vT))
    A('v_lshlrev_b32 %s, 4, %s' % (v(vL16), v(vLane)))
    A('v_readfirstlane_b32 %s, %s' % (s(sWave), v(vT)))
    A('s_and_b32 %s, s2, 7' % s(sT0))
    A('s_lshr_b32 %s, s2, 3' % s(sT1))
    A('s_lshl_b32 %s, %s, 2' % (s(sRb2), s(sT0)))
    A('s_and_b32 %s, %s, 3' % (s(sT2), s(sT1)))
    A('s_add_u32 %s, %s, %s' % (s(sRb2), s(sRb2), s(sT2)))
    A('s_lshr_b32 %s, %s, 2' % (s(sCb), s(sT1)))
    A('s_mul_i32 %s, %s, 22' % (s(sT0), s(sWave)))
    A('s_mul_i32 %s, %s, 86' % (s(sAct), s(sRb2)))
    A('s_add_u32 %s, %s, %s' % (s(sAct), s(sAct), s(sT0)))
    A('s_lshl_b32 %s, %s, 11' % (s(sAct), s(sAct)))
    A('s_mul_i32 %s, %s, 118' % (s(sT1), s(sCb)))
    A('s_add_u32 %s, %s, %s' % (s(sW), s(sT1), s(sT0)))
    A('s_lshl_b32 %s, %s, 11' % (s(sW), s(sW)))
    A('s_add_u32 %s, %s, 0x%x' % (s(sW), s(sW), WS_W2F))
    A('s_lshl_b32 %s, %s, 3' % (s(sT0), s(sWave)))
    A('s_add_u32 %s, %s, %s' % (s(sWo), s(sT1), s(sT0)))
    A('s_add_u32 %s, %s, 86' % (s(sWo), s(sWo)))
    A('s_lshl_b32 %s, %s, 11' % (s(sWo), s(sWo)))
    A('s_add_u32 %s, %s, 0x%x' % (s(sWo), s(sWo), WS_W2F))
    A('s_lshl_b32 %s, %s, 5' % (s(sPhi), s(sRb2)))
    A('s_add_u32 %s, %s, %s' % (s(sPhi), s(sPhi), s(sT0)))
    A('s_lshl_b32 %s, %s, 12' % (s(sPhi), s(sPhi)))
    A('s_add_u32 %s, %s, 0x%x' % (s(sPhi), s(sPhi), WS_PHI))
    A('s_mul_i32 %s, %s, %d' % (s(sKv), s(sT0), KVH))
    A('s_add_u32 %s, %s, 0x%x' % (s(sKv), s(sKv), WS_KV))
    A('v_and_b32 %s, 31, %s' % (v(vT), v(vLane)))
    A('v_min_u32 %s, 16, %s' % (v(vT), v(vT)))
    A('v_lshrrev_b32 %s, 5, %s' % (v(vT + 1), v(vLane)))
    A('v_mul_u32_u24 %s, 17, %s' % (v(vT + 1), v(vT + 1)))
    A('v_add_lshl_u32 %s, %s, %s, 4' % (v(vKo), v(vT), v(vT + 1)))
    A('s_waitcnt lgkmcnt(0)')
    srd(A, SWS, 36, WS_SIZE)
    srd(A, SX, 16, 2048 * 1024)
    srd(A, SO, 32, 2048 * 1024)
    stamp(A, 0, sTs, vT + 8, sWave, SWS, WS_STAMP + 0x40000, 4)
    HS = 5
    def head_regs(h):
        return 24 * (h % HS)
    def issue_head(h):
        kvr = vKv + 16 * (h % 4)
        for q in range(4):
            A('buffer_load_dwordx4 %s, %s, %s, %s offen offset:%d' % (v(kvr + 4 * q, 4), v(vKo), s(SWS, 4), s(sKv), q * 544), tag='kv%d' % h)
        A('s_add_u32 %s, %s, %d' % (s(sKv), s(sKv), KVH))
    def issue_head2(h):
        b = head_regs(h)
        for i in range(4):
            A('buffer_load_dwordx4 %s, %s, %s, %s offen offset:%d' % (a(b + 4 * i, 4), v(vL16), s(SWS, 4), s(sPhi), 1024 * i), tag='phi%d' % h)
        A('s_add_u32 %s, %s, 4096' % (s(sPhi), s(sPhi)))
        for i in range(2):
            A('buffer_load_dwordx4 %s, %s, %s, %s offen offset:%d' % (a(b + 16 + 4 * i, 4), v(vL16), s(SWS, 4), s(sWo), 1024 * i), tag='wo%d' % h)
        A('s_add_u32 %s, %s, 2048' % (s(sWo), s(sWo)))
    pair_slot = {}
    def issue_pair(p, base):
        pair_slot[p] = base
        if p == 10:
            A('s_cmp_eq_u32 %s, 3' % s(sWave))
            A('s_cselect_b32 %s, 0x7f000000, %s' % (s(sAct), s(sAct)))
        for i in range(4):
            A('buffer_load_dwordx4 %s, %s, %s, %s offen offset:%d' % (a(base + 4 * i, 4), v(vL16), s(SWS, 4), s(sAct), 1024 * i), tag='a%d' % p)
        for i in range(4):
            A('buffer_load_dwordx4 %s, %s, %s, %s offen offset:%d' % (a(base + 16 + 4 * i, 4), v(vL16), s(SWS, 4), s(sW), 1024 * i), tag='p%d' % p)
        if p < 10:
            A('s_add_u32 %s, %s, 4096' % (s(sAct), s(sAct)))
            A('s_add_u32 %s, %s, 4096' % (s(sW), s(sW)))
    for h in range(4):
        issue_head(h)
        issue_head2(h)
    issue_head2(4)
    vOo = 227
    A('v_lshrrev_b32 %s, 3, %s' % (v(vT), v(vLane)))
    A('v_and_b32 %s, 7, %s' % (v(vT + 1), v(vLane)))
    A('v_lshlrev_b32 %s, 10, %s' % (v(vOo), v(vT)))
    A('v_lshl_add_u32 %s, %s, 4, %s' % (v(vOo), v(vT + 1), v(vOo)))
    sXo = 63
    A('s_lshl_b32 %s, %s, 2' % (s(sXo), s(sRb2)))
    A('s_add_u32 %s, %s, %s' % (s(sXo), s(sXo), s(sWave)))
    A('s_lshl_b32 %s, %s, 14' % (s(sXo), s(sXo)))
    A('s_lshl_b32 %s, %s, 7' % (s(sT0), s(sCb)))
    A('s_add_u32 %s, %s, %s' % (s(sXo), s(sXo), s(sT0)))
    sXo2 = 66
    A('s_add_u32 %s, %s, 8192' % (s(sXo2), s(sXo)))
    A('buffer_load_dwordx4 %s, %s, %s, %s offen' % (v(vXres, 4), v(vOo), s(SX, 4), s(sXo)), tag='xres')
    A('buffer_load_dwordx4 %s, %s, %s, %s offen' % (v(vXres + 4, 4), v(vOo), s(SX, 4), s(sXo2)), tag='xres')
    issue_pair(0, 120)
    nextp = 1
    first = True
    for h in range(8):
        kvr = vKv + 16 * (h % 4)
        kb = vKb + 8 * (h & 1)
        b = head_regs(h)
        A.wait_vm('kv%d' % h)
        for i in range(8):
            A('v_cvt_pk_bf16_f32 %s, %s, %s' % (v(kb + i), v(kvr + 2 * i), v(kvr + 2 * i + 1)))
        if h + 4 < 8:
            issue_head(h + 4)
        A.wait_vm('phi%d' % h)
        if h == 0:
            stamp(A, 1, sTs, vT + 8, sWave, SWS, WS_STAMP + 0x40000, 4)
        D = vD + 32 * (h & 1)
        for rt in range(2):
            A('v_mfma_f32_32x32x16_bf16 %s, %s, %s, 0' % (v(D + 16 * rt, 16), v(kb, 4), a(b + 8 * rt, 4)))
            A('v_mfma_f32_32x32x16_bf16 %s, %s, %s, %s' % (v(D + 16 * rt, 16), v(kb + 4, 4), a(b + 8 * rt + 4, 4), v(D + 16 * rt, 16)))
        o = vO + 8 * (h & 1)
        for rt in range(2):
            d = D + 16 * rt
            A('v_add_f32 %s, 0x358637bd, %s' % (v(d + 8), v(d + 8)))
            A('v_rcp_f32 %s, %s' % (v(d + 8), v(d + 8)))
            for i in range(4):
                A('v_pk_mul_f32 %s, %s, %s op_sel_hi:[1,0]' % (v(d + 2 * i, 2), v(d + 2 * i, 2), v(d + 8, 2)))
            for i in range(4):
                A('v_cvt_pk_bf16_f32 %s, %s, %s' % (v(o + 4 * rt + i), v(d + 2 * i), v(d + 2 * i + 1)))
        A.wait_vm('wo%d' % h)
        for nt in range(2):
            for rt in range(2):
                acc = vAcc + 16 * (2 * nt + rt)
                A('v_mfma_f32_32x32x16_bf16 %s, %s, %s, %s' % (v(acc, 16), a(b + 16 + 4 * nt, 4), v(o + 4 * rt, 4), '0' if first else v(acc, 16)))
        first = False
        if h + HS < 8:
            issue_head2(h + HS)
        elif nextp < 4:
            issue_pair(nextp, 120 + 32 * nextp)
            nextp += 1
    for base in (0, 32, 64):
        issue_pair(nextp, base)
        nextp += 1
    for p in range(11):
        base = pair_slot[p]
        A.wait_vm('p%d' % p)
        for kk in range(2):
            for nt in range(2):
                for rt in range(2):
                    acc = vAcc + 16 * (2 * nt + rt)
                    A('v_mfma_f32_32x32x16_bf16 %s, %s, %s, %s' % (v(acc, 16), a(base + 16 + 8 * kk + 4 * nt, 4), a(base + 8 * kk + 4 * rt, 4), v(acc, 16)))
        if nextp < 11:
            issue_pair(nextp, base)
            nextp += 1
    stamp(A, 2, sTs, vT + 8, sWave, SWS, WS_STAMP + 0x40000, 4)
    A('v_and_b32 %s, 31, %s' % (v(vT), v(vLane)))
    A('v_mul_u32_u24 %s, %d, %s' % (v(vT), PITCH, v(vT)))
    A('v_lshrrev_b32 %s, 5, %s' % (v(vT + 1), v(vLane)))
    A('v_lshl_add_u32 %s, %s, 4, %s' % (v(vT), v(vT + 1), v(vT)))
    A('s_mul_i32 %s, %s, %d' % (s(sT0), s(sWave), 64 * PITCH))
    A('v_add_u32 %s, %s, %s' % (v(vT), s(sT0), v(vT)))
    for nt in range(2):
        for rt in range(2):
            acc = vAcc + 16 * (2 * nt + rt)
            for q4 in range(4):
                A('ds_write_b128 %s, %s offset:%d' % (v(vT), v(acc + 4 * q4, 4), 32 * rt * PITCH + (32 * nt + 8 * q4) * 4))
    A('v_lshrrev_b32 %s, 3, %s' % (v(vT + 1), v(vLane)))
    A('v_mul_u32_u24 %s, %d, %s' % (v(vT + 1), PITCH, v(vT + 1)))
    A('v_and_b32 %s, 7, %s' % (v(vT + 2), v(vLane)))
    A('v_lshl_add_u32 %s, %s, 5, %s' % (v(vT + 1), v(vT + 2), v(vT + 1)))
    A('s_mul_i32 %s, %s, %d' % (s(sT0), s(sWave), 16 * PITCH))
    A('v_add_u32 %s, %s, %s' % (v(vT + 1), s(sT0), v(vT + 1)))
    A('s_waitcnt lgkmcnt(0)')
    A.lg = []
    A('s_barrier')
    R = 64
    for p in range(2):
        for w in range(4):
            for hh in range(2):
                A('ds_read_b128 %s, %s offset:%d' % (v(R + 32 * p + 8 * w + 4 * hh, 4), v(vT + 1), w * 64 * PITCH + 8 * p * PITCH + 16 * hh), tag='r%d' % p)
    for p in range(2):
        A.wait_lg('r%d' % p)
        r = R + 32 * p
        X = 128 + 8 * p
        for i in range(4):
            A('v_lshlrev_b32 %s, 16, %s' % (v(X + 2 * i), v(vXres + 4 * p + i)))
            A('v_and_b32 %s, 0xffff0000, %s' % (v(X + 2 * i + 1), v(vXres + 4 * p + i)))
        for i in range(4):
            A('v_pk_add_f32 %s, %s, %s' % (v(r + 2 * i, 2), v(r + 2 * i, 2), v(r + 8 + 2 * i, 2)))
            A('v_pk_add_f32 %s, %s, %s' % (v(r + 16 + 2 * i, 2), v(r + 16 + 2 * i, 2), v(r + 24 + 2 * i, 2)))
        for i in range(4):
            A('v_pk_add_f32 %s, %s, %s' % (v(r + 2 * i, 2), v(r + 2 * i, 2), v(r + 16 + 2 * i, 2)))
        for i in range(4):
            A('v_pk_add_f32 %s, %s, %s' % (v(r + 2 * i, 2), v(r + 2 * i, 2), v(X + 2 * i, 2)))
        for i in range(4):
            A('v_cvt_pk_bf16_f32 %s, %s, %s' % (v(X + i), v(r + 2 * i), v(r + 2 * i + 1)))
        A('buffer_store_dwordx4 %s, %s, %s, %s offen' % (v(X, 4), v(vOo), s(SO, 4), s(sXo if p == 0 else sXo2)))
    if OPT['stamps']:
        stamp(A, 3, sTs, vT + 8, sWave, SWS, WS_STAMP + 0x40000, 4)
        A('s_waitcnt vmcnt(0)')
        stamp(A, 4, sTs, vT + 8, sWave, SWS, WS_STAMP + 0x40000, 4)
    A.label('K2_END')
    A('s_endpgm')
    return A.text(), 4 * 64 * PITCH

def kd(name, nv, acc):
    return '''.amdhsa_kernel %s
  .amdhsa_next_free_vgpr %d
  .amdhsa_next_free_sgpr 102
  .amdhsa_accum_offset %d
  .amdhsa_group_segment_fixed_size 0
  .amdhsa_kernarg_size 88
  .amdhsa_user_sgpr_count 2
  .amdhsa_user_sgpr_kernarg_segment_ptr 1
  .amdhsa_system_sgpr_workgroup_id_x 1
.end_amdhsa_kernel
''' % (name, nv, acc)

def main():
    k1, lds1 = gen_k1()
    k2, lds2 = gen_k2()
    out = []
    out.append('; @launch kernel=k1_kernel grid=(256,1,1) block=(512,1,1) lds=%d' % lds1)
    out.append('; @launch kernel=k2_kernel grid=(256,1,1) block=(256,1,1) lds=%d' % lds2)
    out.append('.amdgcn_target "amdgcn-amd-amdhsa--gfx950"')
    out.append('.text')
    out.append('.globl k1_kernel')
    out.append(k1)
    out.append('.globl k2_kernel')
    out.append(k2)
    out.append('.section .rodata,"a"')
    out.append('.p2align 6')
    out.append(kd('k1_kernel', 256, 256))
    out.append('.p2align 6')
    out.append(kd('k2_kernel', 512, 256))
    open(sys.argv[1], 'w').write('\n'.join(out))

main()
```

```python
import sys
from asmlib import Asm, v, a, s

NAME = 'parallel_sum__linear_kernel_hedgehog__dense_activation_mish__prompt'
OPT = dict(nomfma=0, nodma=0, notr=0, clk=0, stamps=0, rot=1, statb=6, statk=2, pbar=1)
for arg in sys.argv[2:]:
    k, val = arg.split('=')
    OPT[k] = int(val, 0)

WS_ACT = 0x000000
WS_PHI = 0x600000
WS_W2F = 0xA00000
WS_KV = 0xC00000
WS_STAT = 0xC80000
WS_STAMP = 0xD00000
WS_SIZE = 0xE00000
KVH = 8 * 17 * 16

LOG2E = 0x3fb8aa3b

def srd(A, d, lo, size):
    A('s_mov_b32 %s, %s' % (s(d), s(lo)))
    A('s_mov_b32 %s, %s' % (s(d + 1), s(lo + 1)))
    A('s_mov_b32 %s, 0x%x' % (s(d + 2), size))
    A('s_mov_b32 %s, 0x20000' % s(d + 3))

STREG = [8, 10, 12, 14, 24, 38, 98, 100]
def stamp(A, idx, sT, vT, swave, srdws, base, nw):
    if not OPT['stamps']:
        return
    if OPT['clk'] and idx in (5, 7):
        return
    A('s_memrealtime %s' % s(STREG[idx], 2))
    if OPT['clk'] and idx in (1, 2) and nw == 8:
        A('s_memtime %s' % s(STREG[5 if idx == 1 else 7], 2))
    if idx != 4:
        return
    A('s_waitcnt lgkmcnt(0)')
    A('s_mul_i32 %s, s2, %d' % (s(sT), nw))
    A('s_add_u32 %s, %s, %s' % (s(sT), s(sT), s(swave)))
    A('s_lshl_b32 %s, %s, 6' % (s(sT), s(sT)))
    A('s_add_u32 %s, %s, 0x%x' % (s(sT), s(sT), base))
    A('v_mov_b32 %s, 0' % v(vT + 1))
    for i in range(8):
        A('v_mov_b32 %s, %s' % (v(vT), s(STREG[i])))
        A('buffer_store_dword %s, %s, %s, %s offen offset:%d' % (v(vT), v(vT + 1), s(srdws, 4), s(sT), 4 * i))
    A('v_mov_b32 %s, s3' % v(vT))
    A('buffer_store_dword %s, %s, %s, %s offen offset:32' % (v(vT), v(vT + 1), s(srdws, 4), s(sT)))

def gen_k1():
    A = Asm()
    L_W = 0
    L_X = 98304
    L_KV = 0
    L_END = 163840
    SX, SW, SP, SJ, SWS, SB, SD = 40, 44, 48, 52, 56, 60, 64
    sWave, sRb, sCg, sType, sU0, sNval, sStride, sCol, sJump, sRt = 68, 69, 70, 71, 72, 73, 74, 75, 76, 77
    sWoff, sM0, sT0, sT1, sT2, sOnes, sF = 78, 79, 80, 81, 82, 83, 84
    sXo = 85
    sOut = 88
    sXm = 89
    sTs = 90
    sNonce = 4
    sX0 = 6
    sJs = 7
    sNt, sJo, sPo = 94, 95, 32
    sStat = 5
    vX = 0
    vRow = 96
    vCr = 96
    vC2, vL2, vPa, vSg, vJa, vCsa = 204, 206, 208, 209, 210, 211
    vAcc = 128
    vWf = 32
    vCf = 68
    vCa4 = 80
    vSel = 92
    vLane, vL16 = 212, 213
    vWd = 214
    vWa = 217
    vCa = 220
    vXo = 224
    vXr = 226
    vG = 230
    vCs = 232
    vB1 = 235
    vT = 238
    vFlag = 254
    vNon = 255
    A.raw('.p2align 8')
    A.raw('.type k1_kernel,@function')
    A.raw('k1_kernel:')
    A('s_cmp_ge_u32 s2, 256')
    A.branch('s_cbranch_scc1 K1_END')
    A('s_load_dwordx16 s[16:31], s[0:1], 0')
    A('s_load_dwordx4 s[32:35], s[0:1], 64')
    A('s_load_dwordx2 s[36:37], s[0:1], 80')
    A('s_memrealtime s[6:7]')
    A('v_and_b32 %s, 63, v0' % v(vLane))
    A('v_lshrrev_b32 %s, 6, v0' % v(vT))
    A('v_lshlrev_b32 %s, 4, %s' % (v(vL16), v(vLane)))
    A('v_readfirstlane_b32 %s, %s' % (s(sWave), v(vT)))
    A('s_and_b32 %s, s2, 7' % s(sT0))
    A('s_lshr_b32 %s, s2, 3' % s(sT1))
    A('s_and_b32 %s, %s, 1' % (s(sRb), s(sT0)))
    A('s_lshl_b32 %s, %s, 2' % (s(sRb), s(sRb)))
    A('s_and_b32 %s, %s, 3' % (s(sT2), s(sT1)))
    A('s_add_u32 %s, %s, %s' % (s(sRb), s(sRb), s(sT2)))
    A('s_lshr_b32 %s, %s, 1' % (s(sCg), s(sT0)))
    A('s_lshl_b32 %s, %s, 3' % (s(sCg), s(sCg)))
    A('s_lshr_b32 %s, %s, 2' % (s(sT2), s(sT1)))
    A('s_add_u32 %s, %s, %s' % (s(sCg), s(sCg), s(sT2)))
    A('s_lshl_b32 %s, %s, 3' % (s(sRt), s(sRb)))
    A('s_add_u32 %s, %s, %s' % (s(sRt), s(sRt), s(sWave)))
    A('s_lshl_b32 %s, %s, 1' % (s(sF), s(sRb)))
    A('s_add_u32 %s, %s, %s' % (s(sF), s(sF), s(sCg)))
    A('s_and_b32 %s, %s, %d' % (s(sF), s(sF), 7 if OPT['rot'] else 0))
    A('s_lshl_b32 %s, %s, 5' % (s(sStat), s(sRb)))
    A('s_add_u32 %s, %s, %s' % (s(sStat), s(sStat), s(sCg)))
    A('s_lshl_b32 %s, %s, 3' % (s(sStat), s(sStat)))
    A('s_add_u32 %s, %s, %s' % (s(sStat), s(sStat), s(sWave)))
    A('s_cmp_ge_u32 %s, 6' % s(sCg))
    A('s_cselect_b32 %s, 1, 0' % s(sType))
    A('s_cselect_b32 %s, 6, 0' % s(sT0))
    A('s_cselect_b32 %s, 32, 16' % s(sT1))
    A('s_cmp_ge_u32 %s, 17' % s(sCg))
    A('s_cselect_b32 %s, 2, %s' % (s(sType), s(sType)))
    A('s_cselect_b32 %s, 17, %s' % (s(sT0), s(sT0)))
    A('s_cselect_b32 %s, 43, %s' % (s(sT1), s(sT1)))
    A('s_movk_i32 %s, 3072' % s(sStride))
    A('s_cselect_b32 %s, 2752, %s' % (s(sStride), s(sStride)))
    A('s_sub_u32 %s, %s, %s' % (s(sU0), s(sCg), s(sT0)))
    A('s_mul_i32 %s, %s, 3' % (s(sU0), s(sU0)))
    A('s_sub_u32 %s, %s, %s' % (s(sNval), s(sT1), s(sU0)))
    A('s_min_u32 %s, %s, 3' % (s(sNval), s(sNval)))
    A('s_lshl_b32 %s, %s, 6' % (s(sCol), s(sU0)))
    A('s_lshl_b32 %s, %s, 5' % (s(sT0), s(sU0)))
    A('s_add_u32 %s, %s, 1024' % (s(sT0), s(sT0)))
    A('s_cmp_eq_u32 %s, 1' % s(sType))
    A('s_cselect_b32 %s, %s, %s' % (s(sCol), s(sT0), s(sCol)))
    A('s_cselect_b32 %s, 928, 0' % s(sJump))
    sUs, sNb = 92, 93
    A('s_cselect_b32 %s, 32, 64' % s(sUs))
    A('s_cselect_b32 %s, 96, 32' % s(sNb))
    A('s_mov_b32 %s, 0x3f803f80' % s(sOnes))
    for m in range(3):
        c, row, t = vT, vT + 1, vT + 2
        A('v_add_u32 %s, %d, %s' % (v(c), 64 * m, v(vLane)))
        A('v_mul_u32_u24 %s, 171, %s' % (v(row), v(c)))
        A('v_lshrrev_b32 %s, 11, %s' % (v(row), v(row)))
        A('v_mul_u32_u24 %s, 12, %s' % (v(t), v(row)))
        A('v_sub_u32 %s, %s, %s' % (v(c), v(c), v(t)))
        A('v_mul_u32_u24 %s, %s, %s' % (v(row), s(sStride), v(row)))
        A('v_lshl_add_u32 %s, %s, 4, %s' % (v(row), v(c), v(row)))
        A('v_cmp_le_u32 vcc, 6, %s' % v(c))
        A('v_mov_b32 %s, %s' % (v(t), s(sJump)))
        A('v_cndmask_b32 %s, 0, %s, vcc' % (v(t), v(t)))
        A('v_add3_u32 %s, %s, %s, %s' % (v(vWd + m), v(row), v(t), s(sCol)))
        if m:
            A('v_subrev_u32 %s, %d, %s' % (v(vWd + m), 1024 * m, v(vWd + m)))
    A('v_lshrrev_b32 %s, 3, %s' % (v(vT), v(vLane)))
    A('v_and_b32 %s, 7, %s' % (v(vT + 1), v(vLane)))
    A('v_lshrrev_b32 %s, 4, %s' % (v(vT + 2), v(vLane)))
    A('v_xor_b32 %s, %s, %s' % (v(vT + 1), v(vT + 1), v(vT + 2)))
    A('s_lshl_b32 %s, %s, 15' % (s(sT0), s(sRt)))
    A('v_lshlrev_b32 %s, 10, %s' % (v(vXo), v(vT)))
    A('v_lshl_add_u32 %s, %s, 4, %s' % (v(vXo), v(vT + 1), v(vXo)))
    A('v_add_u32 %s, %s, %s' % (v(vXo), s(sT0), v(vXo)))
    A('v_xor_b32 %s, 64, %s' % (v(vXo + 1), v(vXo)))
    A('s_mul_i32 %s, %s, 3072' % (s(sM0), s(sWave)))
    A('s_lshl_b32 %s, %s, 13' % (s(sXm), s(sWave)))
    A('s_add_u32 %s, %s, %d' % (s(sXm), s(sXm), L_X))
    A('s_lshl_b32 %s, %s, 4' % (s(sStride), s(sStride)))
    A('s_waitcnt lgkmcnt(0)')
    srd(A, SX, 16, 2048 * 1024)
    A('s_lshl_b32 %s, %s, 10' % (s(sT0), s(sStat)))
    A('buffer_load_dwordx4 %s, %s, %s, %s offen' % (v(vRow, 4), v(vL16), s(SX, 4), s(sT0)), tag='row')
    A('s_cmp_eq_u32 %s, 2' % s(sType))
    A('s_cselect_b32 %s, s26, s18' % s(SW))
    A('s_cselect_b32 %s, s27, s19' % s(SW + 1))
    A('s_mov_b32 %s, %d' % (s(SW + 2), 512 * 3072))
    A('s_cselect_b32 %s, %d, %s' % (s(SW + 2), 512 * 2752, s(SW + 2)))
    A('s_mov_b32 %s, 0x20000' % s(SW + 3))
    srd(A, SD, 34, 256)
    A('s_or_b32 %s, s2, %s' % (s(sT0), s(sWave)))
    A('s_cmp_lg_u32 %s, 0' % s(sT0))
    A.branch('s_cbranch_scc1 K1_NONONCE')
    A('s_or_b32 s6, s6, 1')
    A('v_mov_b32 %s, s6' % v(vT))
    A('v_mov_b32 %s, 0' % v(vT + 1))
    sv = list(A.vm)
    A('buffer_store_dword %s, %s, %s, 0 offen offset:128 sc0 sc1' % (v(vT), v(vT + 1), s(SD, 4)))
    A.vm = sv
    A.label('K1_NONONCE')
    srd(A, SWS, 36, WS_SIZE)
    stamp(A, 0, sTs, vT + 8, sWave, SWS, WS_STAMP, 8)
    def issue_w(st):
        L = []
        L.append('s_lshl_b32 %s, %s, 2' % (s(sT2), s(sF)))
        L.append('s_add_u32 %s, %s, %s' % (s(sT2), s(sT2), s(sWave)))
        if st:
            L.append('s_add_u32 %s, %s, %d' % (s(sT2), s(sT2), 8 * st))
        L.append('s_and_b32 %s, %s, 31' % (s(sT2), s(sT2)))
        L.append('s_add_u32 m0, %s, %d' % (s(sM0), st * 8 * 3072 + L_W))
        L.append('s_mul_i32 %s, %s, %s' % (s(sWoff), s(sT2), s(sStride)))
        for m in range(3):
            L.append(('buffer_load_dwordx4 %s, %s, %s offen offset:%d lds' % (v(vWd + m), s(SW, 4), s(sWoff), 1024 * m), 'w%d' % st))
        return L
    def issue_x(b):
        L = []
        L.append('s_add_u32 %s, %s, %d' % (s(sX0), s(sF), b))
        L.append('s_and_b32 %s, %s, 7' % (s(sX0), s(sX0)))
        L.append('s_lshl_b32 %s, %s, 7' % (s(sX0), s(sX0)))
        L.append('s_add_u32 m0, %s, %d' % (s(sXm), 4096 * (b & 1)))
        for i in range(1, 4):
            L.append('s_add_u32 %s, %s, %d' % (s(sXo + i - 1), s(sX0), 7168 * i))
        for i in range(4):
            L.append(('buffer_load_dwordx4 %s, %s, %s offen offset:%d lds' % (v(vXo + (i & 1)), s(SX, 4), s(sX0) if i == 0 else s(sXo + i - 1), 1024 * i), 'x%d' % b))
        return L
    def emit(L):
        for it in L:
            if isinstance(it, tuple):
                A(it[0], tag=it[1])
            else:
                A(it)
    emit(issue_w(0))
    emit(issue_x(0))
    if OPT['pbar']:
        A('s_barrier')
    emit(issue_w(1))
    emit(issue_x(1))
    stamp(A, 5, sTs, vT + 8, sWave, SWS, WS_STAMP, 8)
    A('s_cmp_eq_u32 %s, 1' % s(sType))
    A('s_cselect_b32 %s, %s, 1' % (s(sT0), s(sRb)))
    A('s_cmp_lg_u32 %s, 0' % s(sT0))
    A.branch('s_cbranch_scc1 K1_NOZERO')
    for i in range(4):
        A('v_mov_b32 %s, 0' % v(vT + 4 + i))
    A('s_mul_i32 %s, %s, %d' % (s(sT1), s(sNval), KVH))
    A('s_lshl_b32 %s, %s, 10' % (s(sT2), s(sWave)))
    A('v_add_u32 %s, %s, %s' % (v(vT), s(sT2), v(vL16)))
    A('v_mov_b32 %s, 0x7f000000' % v(vT + 1))
    A('v_cmp_gt_u32 vcc, %s, %s' % (s(sT1), v(vT)))
    A('v_cndmask_b32 %s, %s, %s, vcc' % (v(vT), v(vT + 1), v(vT)))
    A('s_mul_i32 %s, %s, %d' % (s(sT1), s(sU0), KVH))
    A('s_add_u32 %s, %s, 0x%x' % (s(sT1), s(sT1), WS_KV))
    sv = list(A.vm)
    A('buffer_store_dwordx4 %s, %s, %s, %s offen sc0 sc1' % (v(vT + 4, 4), v(vT), s(SWS, 4), s(sT1)))
    A.vm = sv
    A.label('K1_NOZERO')
    A('v_lshrrev_b32 %s, 5, %s' % (v(vT), v(vLane)))
    A('v_bfe_u32 %s, %s, 2, 2' % (v(vT + 1), v(vLane)))
    A('v_lshl_add_u32 %s, %s, 3, %s' % (v(vT + 1), v(vT), v(vT + 1)))
    A('v_mul_u32_u24 %s, 192, %s' % (v(vT + 1), v(vT + 1)))
    A('v_bfe_u32 %s, %s, 4, 1' % (v(vT + 2), v(vLane)))
    A('v_mul_u32_u24 %s, %s, %s' % (v(vT + 2), s(sNb), v(vT + 2)))
    A('v_and_b32 %s, 3, %s' % (v(vT + 3), v(vLane)))
    A('v_lshlrev_b32 %s, 3, %s' % (v(vT + 3), v(vT + 3)))
    A('v_add3_u32 %s, %s, %s, %s' % (v(vWa), v(vT + 1), v(vT + 2), v(vT + 3)))
    A('v_add_u32 %s, %s, %s' % (v(vWa + 1), s(sUs), v(vWa)))
    A('v_add_u32 %s, %s, %s' % (v(vWa + 2), s(sUs), v(vWa + 1)))
    for u in range(3):
        A('v_add_u32 %s, %s, %s' % (v(vCa + u), s(sM0), v(vWa + u)))
    A('v_and_b32 %s, 31, %s' % (v(vT + 1), v(vLane)))
    A('v_bfe_u32 %s, %s, 1, 3' % (v(vT + 2), v(vLane)))
    A('v_xor_b32 %s, %s, %s' % (v(vT + 2), v(vT + 2), v(vT)))
    A('v_lshlrev_b32 %s, 4, %s' % (v(vT + 2), v(vT + 2)))
    A('v_lshl_add_u32 %s, %s, 7, %s' % (v(vT + 2), v(vT + 1), v(vT + 2)))
    A('v_add_u32 %s, %s, %s' % (v(vXr), s(sXm), v(vT + 2)))
    for tt in range(1, 4):
        A('v_xor_b32 %s, %d, %s' % (v(vXr + tt), 32 * tt, v(vXr)))
    A('v_lshrrev_b32 %s, 2, %s' % (v(vT + 1), v(vLane)))
    A('v_xor_b32 %s, %s, %s' % (v(vT + 1), v(vT + 1), v(vLane)))
    A('v_and_b32 %s, 4, %s' % (v(vT + 1), v(vT + 1)))
    A('v_cmp_eq_u32 vcc, 0, %s' % v(vT + 1))
    A('v_mov_b32 %s, %s' % (v(vT + 2), s(sOnes)))
    A('v_cndmask_b32 %s, 0, %s, vcc' % (v(vSel), v(vT + 2)))
    for i in range(1, 4):
        A('v_mov_b32 %s, %s' % (v(vSel + i), v(vSel)))
    A('v_lshrrev_b32 %s, 5, %s' % (v(vT + 1), v(vLane)))
    A('v_bfe_u32 %s, %s, 2, 2' % (v(vT + 2), v(vLane)))
    A('v_lshl_add_u32 %s, %s, 2, %s' % (v(vT + 2), v(vT + 1), v(vT + 2)))
    A('v_bfe_u32 %s, %s, 4, 1' % (v(vT + 3), v(vLane)))
    A('v_and_b32 %s, 3, %s' % (v(vT + 4), v(vLane)))
    A('v_lshl_add_u32 %s, %s, 2, %s' % (v(vT + 5), v(vT + 3), v(vT + 4)))
    A('v_lshlrev_b32 %s, 3, %s' % (v(vT + 5), v(vT + 5)))
    A('v_lshl_add_u32 %s, %s, 6, %s' % (v(vT + 5), v(vT + 2), v(vT + 5)))
    A('v_add_u32 %s, %s, %s' % (v(vJa), s(sM0), v(vT + 5)))
    A('v_lshrrev_b32 %s, 1, %s' % (v(vT + 4), v(vT + 4)))
    A('v_lshl_add_u32 %s, %s, 1, %s' % (v(vT + 4), v(vT + 3), v(vT + 4)))
    A('v_lshlrev_b32 %s, 3, %s' % (v(vT + 4), v(vT + 4)))
    A('v_lshl_add_u32 %s, %s, 5, %s' % (v(vPa), v(vT + 2), v(vT + 4)))
    A('v_bfe_u32 %s, %s, 2, 1' % (v(vSg), v(vLane)))
    A('v_mul_u32_u24 %s, 0x8000, %s' % (v(vSg), v(vSg)))
    A('v_lshl_or_b32 %s, %s, 16, %s' % (v(vSg), v(vSg), v(vSg)))
    A('v_and_b32 %s, 31, %s' % (v(vCsa), v(vLane)))
    A('v_lshlrev_b32 %s, 4, %s' % (v(vCsa), v(vCsa)))
    for r, c in ((vC2, '2.0'), (vL2, '0x%x' % LOG2E)):
        A('v_mov_b32 %s, %s' % (v(r), c))
        A('v_mov_b32 %s, %s' % (v(r + 1), c))
    srd(A, SP, 20, 16384)
    A('s_and_b32 %s, %s, 3' % (s(sT0), s(sWave)))
    A('s_lshl_b32 %s, %s, 10' % (s(sT0), s(sT0)))
    A('s_lshl_b32 %s, %s, 10' % (s(sT1), s(sU0)))
    A('s_lshl_b32 %s, %s, 9' % (s(sT2), s(sU0)))
    A('s_cmp_eq_u32 %s, 1' % s(sType))
    A('s_cselect_b32 %s, %s, %s' % (s(sT1), s(sT2), s(sT1)))
    A('s_add_u32 %s, %s, %s' % (s(sPo), s(sT1), s(sT0)))
    A('s_mov_b32 %s, s28' % s(SB))
    A('s_mov_b32 %s, s29' % s(SB + 1))
    A('s_cmp_eq_u32 %s, 2' % s(sType))
    A('s_cselect_b32 %s, 2752, 0' % s(SB + 2))
    A('s_mov_b32 %s, 0x20000' % s(SB + 3))
    A('s_lshr_b32 %s, s2, 1' % s(sT0))
    A('s_cmp_ge_u32 %s, 86' % s(sT0))
    A('s_cselect_b32 %s, s22, s30' % s(SJ))
    A('s_cselect_b32 %s, s23, s31' % s(SJ + 1))
    A('s_mov_b32 %s, %d' % (s(SJ + 2), 1376 * 1024))
    A('s_cselect_b32 %s, %d, %s' % (s(SJ + 2), 512 * 1024, s(SJ + 2)))
    A('s_mov_b32 %s, 0x20000' % s(SJ + 3))
    A('s_cselect_b32 %s, 86, 0' % s(sT1))
    A('s_sub_u32 %s, %s, %s' % (s(sT1), s(sT0), s(sT1)))
    A('s_lshl_b32 %s, %s, 14' % (s(sT1), s(sT1)))
    A('s_and_b32 %s, s2, 1' % s(sT2))
    A('s_lshl_b32 %s, %s, 3' % (s(sT2), s(sT2)))
    A('s_add_u32 %s, %s, %s' % (s(sNt), s(sT2), s(sWave)))
    A('s_lshl_b32 %s, %s, 6' % (s(sT2), s(sNt)))
    A('s_add_u32 %s, %s, %s' % (s(sJs), s(sT1), s(sT2)))
    A('s_lshr_b32 %s, %s, 1' % (s(sT1), s(sNt)))
    A('s_mul_i32 %s, %s, 118' % (s(sT1), s(sT1)))
    A('s_add_u32 %s, %s, %s' % (s(sT1), s(sT1), s(sT0)))
    A('s_lshl_b32 %s, %s, 1' % (s(sT1), s(sT1)))
    A('s_and_b32 %s, %s, 1' % (s(sT2), s(sNt)))
    A('s_add_u32 %s, %s, %s' % (s(sT1), s(sT1), s(sT2)))
    A('s_lshl_b32 %s, %s, 10' % (s(sT1), s(sT1)))
    A('s_add_u32 %s, %s, 0x%x' % (s(sJo), s(sT1), WS_W2F))
    A('s_cmp_ge_u32 %s, 118' % s(sT0))
    A('s_cselect_b32 %s, 0x7f000000, %s' % (s(sJo), s(sJo)))
    def xsum(r, t):
        for ctl in ('quad_perm:[1,0,3,2]', 'quad_perm:[2,3,0,1]', 'row_half_mirror', 'row_mirror'):
            A('v_add_f32_dpp %s, %s, %s %s row_mask:0xf bank_mask:0xf' % (v(r), v(r), v(r), ctl))
        for op in ('v_permlane16_swap_b32', 'v_permlane32_swap_b32'):
            A('v_mov_b32 %s, %s' % (v(t), v(r)))
            A('%s %s, %s' % (op, v(r), v(t)))
            A('v_add_f32 %s, %s, %s' % (v(r), v(r), v(t)))
    A.wait_vm('row')
    A('v_mov_b32 %s, 0' % v(vT + 1))
    A('buffer_load_dword %s, %s, %s, 0 offen offset:128 sc0 sc1' % (v(vNon), v(vT + 1), s(SD, 4)), tag='non')
    U = vRow + 4
    for j in range(4):
        A('v_lshlrev_b32 %s, 16, %s' % (v(U + 2 * j), v(vRow + j)))
        A('v_and_b32 %s, 0xffff0000, %s' % (v(U + 2 * j + 1), v(vRow + j)))
    A('v_pk_add_f32 %s, %s, %s' % (v(vT, 2), v(U, 2), v(U + 2, 2)))
    A('v_pk_add_f32 %s, %s, %s' % (v(vT + 2, 2), v(U + 4, 2), v(U + 6, 2)))
    A('v_pk_add_f32 %s, %s, %s' % (v(vT, 2), v(vT, 2), v(vT + 2, 2)))
    A('v_add_f32 %s, %s, %s' % (v(vT), v(vT), v(vT + 1)))
    xsum(vT, vT + 1)
    A('v_mul_f32 %s, 0xbb000000, %s' % (v(vT), v(vT)))
    for j in range(4):
        A('v_pk_add_f32 %s, %s, %s op_sel_hi:[1,0]' % (v(U + 2 * j, 2), v(U + 2 * j, 2), v(vT, 2)))
    A('v_pk_mul_f32 %s, %s, %s' % (v(vT + 2, 2), v(U, 2), v(U, 2)))
    for j in range(1, 4):
        A('v_pk_fma_f32 %s, %s, %s, %s' % (v(vT + 2, 2), v(U + 2 * j, 2), v(U + 2 * j, 2), v(vT + 2, 2)))
    A('v_add_f32 %s, %s, %s' % (v(vT + 2), v(vT + 2), v(vT + 3)))
    xsum(vT + 2, vT + 3)
    A('v_mul_f32 %s, 0x3b000000, %s' % (v(vT + 2), v(vT + 2)))
    A('v_cvt_pk_bf16_f32 %s, %s, %s' % (v(vT + 2), v(vT + 2), v(vT + 2)))
    A('v_lshlrev_b32 %s, 16, %s' % (v(vT + 2), v(vT + 2)))
    A('v_add_f32 %s, 0x3727c5ac, %s' % (v(vT + 2), v(vT + 2)))
    A('v_cvt_pk_bf16_f32 %s, %s, %s' % (v(vT + 2), v(vT + 2), v(vT + 2)))
    A('v_lshlrev_b32 %s, 16, %s' % (v(vT + 2), v(vT + 2)))
    A('v_sqrt_f32 %s, %s' % (v(vT + 2), v(vT + 2)))
    A('v_cvt_pk_bf16_f32 %s, %s, %s' % (v(vG), v(vT), v(vT + 2)))
    A('s_lshl_b32 %s, %s, 3' % (s(sStat), s(sStat)))
    A('s_add_u32 %s, %s, 0x%x' % (s(sStat), s(sStat), WS_STAT))
    def wlist(t):
        if t >= 32 or OPT['notr']:
            return []
        L = []
        for u in range(3):
            for hh in range(2):
                L.append(('ds_read_b64_tr_b16 %s, %s offset:%d' % (v(vWf + 12 * (t % 3) + 4 * u + 2 * hh, 2), v(vWa + u), (t % 16) * 3072 + 768 * hh), 'wf%d' % t))
        return L
    vBp = 0
    vAp = 4
    vR2 = 8
    vRL = 10
    vJ = 12
    def xread(b):
        for tt in range(4):
            A('ds_read_b128 %s, %s offset:%d' % (v(vX + 16 * (b & 1) + 4 * tt, 4), v(vXr + tt), 4096 * (b & 1)), tag='xr%d' % b)
    def publish_stats():
        A.wait_vm('non')
        A('s_mov_b32 %s, 0' % s(sT0))
        A.label('K1_NPOLL')
        A('v_readfirstlane_b32 %s, %s' % (s(sNonce), v(vNon)))
        A('s_cmp_lg_u32 %s, 0' % s(sNonce))
        A.branch('s_cbranch_scc1 K1_NGO')
        A('s_add_u32 %s, %s, 1' % (s(sT0), s(sT0)))
        A('s_cmp_gt_u32 %s, 0x40000' % s(sT0))
        A.branch('s_cbranch_scc1 K1_NGO')
        A('v_mov_b32 %s, 0' % v(vT + 1))
        sv = list(A.vm)
        A('buffer_load_dword %s, %s, %s, 0 offen offset:128 sc0 sc1' % (v(vNon), v(vT + 1), s(SD, 4)))
        A.vm = sv
        A('s_waitcnt vmcnt(0)')
        A.branch('s_branch K1_NPOLL')
        A.label('K1_NGO')
        A('v_mov_b32 %s, %s' % (v(vG + 1), v(vNon)))
        A('v_mov_b32 %s, 0x7f000000' % v(vT + 1))
        A('v_cmp_eq_u32 vcc, 0, %s' % v(vLane))
        A('v_cndmask_b32 %s, %s, 0, vcc' % (v(vT + 1), v(vT + 1)))
        A('buffer_store_dwordx2 %s, %s, %s, %s offen sc0 sc1' % (v(vG, 2), v(vT + 1), s(SWS, 4), s(sStat)), tag='pub')
    def zero_flag():
        A('s_cmp_eq_u32 %s, 1' % s(sType))
        A('s_cselect_b32 %s, %s, 1' % (s(sT0), s(sRb)))
        A('s_or_b32 %s, %s, %s' % (s(sT0), s(sT0), s(sWave)))
        A('s_cmp_lg_u32 %s, 0' % s(sT0))
        A('s_cbranch_scc1 K1_NOFLAG')
        A('v_mov_b32 %s, 1' % v(vT))
        A('v_mov_b32 %s, 0' % v(vT + 1))
        A('s_lshl_b32 %s, %s, 2' % (s(sT0), s(sCg)))
        sv = list(A.vm)
        A('buffer_store_dword %s, %s, %s, %s offen sc0 sc1' % (v(vT), v(vT + 1), s(SD, 4), s(sT0)))
        A.vm = sv
        A.raw('K1_NOFLAG:')
    def split(L, n):
        mem = [i for i, it in enumerate(L) if isinstance(it, tuple)]
        out = [[] for _ in range(n)]
        per = -(-len(mem) // n) if mem else 1
        cnt = 0
        for it in L:
            out[min(cnt // per, n - 1)].append(it)
            if isinstance(it, tuple):
                cnt += 1
        return out
    CSP = {0: 0, 1: 1, 3: 2, 5: 3}
    A.wait_vm('x0')
    A('s_barrier')
    stamp(A, 1, sTs, vT + 8, sWave, SWS, WS_STAMP, 8)
    xread(0)
    for t in (0, 1):
        emit(wlist(t))
    for b in range(8):
        fill = {}
        def put(k0, u0, L, n):
            ch = split(L, n)
            for i, c in enumerate(ch):
                kk, uu = divmod(3 * k0 + u0 + i, 3)
                fill.setdefault((kk, uu), []).extend(c)
        if b + 2 < 8 and not OPT['nodma']:
            put(0, 0, issue_x(b + 2), 4)
        if b in (0, 2) and not OPT['nodma']:
            put(1, 1, issue_w(b // 2 + 2), 3)
        if b == 4:
            L = ['s_mov_b32 m0, %s' % s(sM0),
                 'v_lshrrev_b32 %s, 2, %s' % (v(vT), v(vLane)),
                 ('buffer_load_dwordx4 %s, %s, %s offen lds' % (v(vL16), s(SP, 4), s(sPo)), 'ph'),
                 'v_and_b32 %s, 3, %s' % (v(vT + 1), v(vLane)),
                 'v_lshlrev_b32 %s, 10, %s' % (v(vT), v(vT)),
                 's_add_u32 m0, %s, 1024' % s(sM0),
                 'v_lshl_add_u32 %s, %s, 4, %s' % (v(vT), v(vT + 1), v(vT)),
                 ('buffer_load_dwordx4 %s, %s, %s offen lds' % (v(vT), s(SJ, 4), s(sJs)), 'job')]
            put(1, 1, L, 2)
        if b == 6:
            L = ['v_lshrrev_b32 %s, 3, %s' % (v(vT), v(vCsa)),
                 's_lshl_b32 %s, %s, 6' % (s(sT0), s(sU0))]
            for u in range(3):
                L.append(('buffer_load_ushort %s, %s, %s, %s offen offset:%d' % (v(vB1 + u), v(vT), s(SB, 4), s(sT0), 64 * u), 'b1'))
            put(1, 0, L, 3)
            L = ['v_add_u32 %s, %s, %s' % (v(vT + 1), s(sM0), v(vCsa)),
                 'v_mov_b32 %s, %s' % (v(vCa4 + 1), v(vCa4 + 4)),
                 'v_mov_b32 %s, %s' % (v(vCa4 + 2), v(vCa4 + 8)),
                 ('ds_write_b128 %s, %s offset:2048' % (v(vT + 1), v(vCa4, 4)), 'csw')]
            put(0, 2, L, 1)
        if b == OPT['statb']:
            L = ['s_lshl_b32 %s, %s, 8' % (s(sStat), s(sRt)),
                 's_add_u32 %s, %s, 0x%x' % (s(sStat), s(sStat), WS_STAT),
                 'v_lshrrev_b32 %s, 1, %s' % (v(vFlag), v(vCsa)),
                 ('buffer_load_dwordx2 %s, %s, %s, %s offen sc0 sc1' % (v(vG, 2), v(vFlag), s(SWS, 4), s(sStat)), 'st')]
            put(OPT['statk'], 0, L, 1)
        if b in CSP:
            st = CSP[b]
            L = []
            for u in range(3):
                for hh in range(2):
                    L.append(('ds_read_b64_tr_b16 %s, %s offset:%d' % (v(vCf + 4 * u + 2 * hh, 2), v(vCa + u), (st & 1) * 8 * 3072 + 768 * hh), 'cf'))
            put(0, 0, L, 3)
        if b == 7:
            L = []
            for w in range(8):
                L.append(('ds_read_b128 %s, %s offset:%d' % (v(vCr + 4 * w, 4), v(vCsa), 3072 * w + 2048), 'cs'))
            L.append(('ds_read_b64_tr_b16 %s, %s offset:1024' % (v(vJ, 2), v(vJa)), 'j'))
            L.append(('ds_read_b64_tr_b16 %s, %s offset:1536' % (v(vJ + 2, 2), v(vJa)), 'j'))
            put(2, 0, L, 5)
        if b == 4:
            stamp(A, 6, sTs, vT + 8, sWave, SWS, WS_STAMP, 8)
        for k in range(4):
            t = 4 * b + k
            if t == 14:
                for u in range(3):
                    A('v_add_u32 %s, %d, %s' % (v(vWa + u), 16 * 3072, v(vWa + u)))
            if t == 9:
                for u in range(3):
                    A('v_add_u32 %s, %d, %s' % (v(vCa + u), 16 * 3072, v(vCa + u)))
            if k == 3 and b < 7:
                A.wait_vm('x%d' % (b + 1))
                if b == 0:
                    publish_stats()
                if b == 6:
                    A.wait_lg('csw')
                if b in (0, 2, 4, 6):
                    A('s_barrier')
                if b == 2:
                    zero_flag()
                xread(b + 1)
            nxt = wlist(t + 2)
            if k == 0:
                A.wait_lg('xr%d' % b)
            A.wait_lg('wf%d' % t)
            xr = vX + 16 * (b & 1) + 4 * k
            for u in range(3):
                c = '0' if t == 0 else v(vAcc + 16 * u, 16)
                if t == 0 or not OPT['nomfma']:
                    A('v_mfma_f32_32x32x16_bf16 %s, %s, %s, %s' % (v(vAcc + 16 * u, 16), v(vWf + 12 * (t % 3) + 4 * u, 4), v(xr, 4), c))
                emit(nxt[2 * u:2 * u + 2])
                emit(fill.get((k, u), []))
            if b in CSP and k == 2:
                A.wait_lg('cf')
                for u in range(3):
                    A('v_mfma_f32_16x16x32_bf16 %s, %s, %s, %s' % (v(vCa4 + 4 * u, 4), v(vSel, 4), v(vCf + 4 * u, 4), '0' if b == 0 else v(vCa4 + 4 * u, 4)))
    stamp(A, 2, sTs, vT + 8, sWave, SWS, WS_STAMP, 8)
    A.wait_vm(None)
    A('s_mov_b32 %s, 0' % s(sT0))
    A.raw('K1_SPOLL:')
    A('v_cmp_ne_u32 vcc, %s, %s' % (s(sNonce), v(vG + 1)))
    A('s_cmp_eq_u64 vcc, 0')
    A('s_cbranch_scc1 K1_SGO')
    A('s_add_u32 %s, %s, 1' % (s(sT0), s(sT0)))
    A('s_cmp_gt_u32 %s, 0x40000' % s(sT0))
    A('s_cbranch_scc1 K1_SGO')
    A('buffer_load_dwordx2 %s, %s, %s, %s offen sc0 sc1' % (v(vG, 2), v(vFlag), s(SWS, 4), s(sStat)))
    A('s_waitcnt vmcnt(0)')
    A.vm = []
    A('s_branch K1_SPOLL')
    A.raw('K1_SGO:')
    del A.hist[-6:]
    if OPT['stamps']:
        A('s_mov_b32 s3, %s' % s(sT0))
    A('v_and_b32 %s, 0xffff, %s' % (v(vBp), v(vG)))
    A('v_lshl_or_b32 %s, %s, 16, %s' % (v(vBp), v(vG), v(vBp)))
    A('v_lshrrev_b32 %s, 16, %s' % (v(vBp + 1), v(vG)))
    A('v_and_b32 %s, 0xffff0000, %s' % (v(vG), v(vG)))
    A('v_rcp_f32 %s, %s' % (v(vR2), v(vG)))
    A('v_cmp_gt_u32 vcc, 32, %s' % v(vLane))
    A('v_mov_b32 %s, 0' % v(vBp + 2))
    A('v_mov_b32 %s, 0' % v(vBp + 3))
    A('v_cndmask_b32 %s, 0, %s, vcc' % (v(vBp), v(vBp)))
    A('v_cndmask_b32 %s, 0, %s, vcc' % (v(vBp + 1), v(vBp + 1)))
    A('v_mul_f32 %s, -2.0, %s' % (v(vR2 + 1), v(vR2)))
    A('v_mul_f32 %s, 0x%x, %s' % (v(vRL), LOG2E, v(vR2)))
    A('v_mov_b32 %s, 0' % v(vAp + 2))
    A('v_mov_b32 %s, 0' % v(vAp + 3))
    A.wait_lg('cs')
    for step in (16, 8, 4):
        for r in range(vCr, vCr + step, 2):
            A('v_pk_add_f32 %s, %s, %s' % (v(r, 2), v(r, 2), v(r + step, 2)))
    vCs = vCr
    A.wait_lg('j')
    A('buffer_store_dwordx4 %s, %s, %s, %s offen' % (v(vJ, 4), v(vL16), s(SWS, 4), s(sJo)))
    for u in range(3):
        A('v_cvt_pk_bf16_f32 %s, %s, %s' % (v(vAp), v(vCs + u), v(vCs + u)))
        A('v_lshlrev_b32 %s, 16, %s' % (v(vAp), v(vAp)))
        A('v_sub_f32 %s, %s, %s' % (v(vAp), v(vCs + u), v(vAp)))
        A('v_cvt_pk_bf16_f32 %s, %s, %s' % (v(vAp), v(vCs + u), v(vAp)))
        A('v_mov_b32 %s, %s' % (v(vAp + 1), v(vB1 + u)))
        A('v_mfma_f32_32x32x16_bf16 %s, %s, %s, %s' % (v(vAcc + 16 * u, 16), v(vAp, 4), v(vBp, 4), v(vAcc + 16 * u, 16)))
    sRb2, sRt2 = 96, 97
    A('s_lshr_b32 %s, %s, 1' % (s(sRb2), s(sRt)))
    A('s_and_b32 %s, %s, 1' % (s(sRt2), s(sRt)))
    A('s_cmp_eq_u32 %s, 0' % s(sType))
    A.branch('s_cbranch_scc1 K1_Q')
    A('s_cmp_eq_u32 %s, 1' % s(sType))
    A.branch('s_cbranch_scc1 K1_KV')
    A('s_mul_i32 %s, %s, 86' % (s(sOut), s(sRb2)))
    A('s_lshl_b32 %s, %s, 1' % (s(sT0), s(sU0)))
    A('s_add_u32 %s, %s, %s' % (s(sOut), s(sOut), s(sT0)))
    A('s_lshl_b32 %s, %s, 1' % (s(sOut), s(sOut)))
    A('s_add_u32 %s, %s, %s' % (s(sOut), s(sOut), s(sRt2)))
    A('s_lshl_b32 %s, %s, 10' % (s(sOut), s(sOut)))
    for u in range(3):
        if u > 0:
            A('s_cmp_le_u32 %s, %d' % (s(sNval), u))
            A.branch('s_cbranch_scc1 K1_DONE')
        acc = vAcc + 16 * u
        T, U, P = 48, 64, 80 + 8 * u
        for i in range(8):
            A('v_pk_mul_f32 %s, %s, %s op_sel_hi:[1,0]' % (v(T + 2 * i, 2), v(acc + 2 * i, 2), v(vRL, 2)))
        for i in range(16):
            A('v_exp_f32 %s, %s' % (v(T + i), v(T + i)))
        for i in range(8):
            A('v_pk_add_f32 %s, %s, %s' % (v(U + 2 * i, 2), v(T + 2 * i, 2), v(vC2, 2)))
        for i in range(8):
            A('v_pk_fma_f32 %s, %s, %s, %s' % (v(U + 2 * i, 2), v(T + 2 * i, 2), v(U + 2 * i, 2), v(vC2, 2)))
        for i in range(16):
            A('v_rcp_f32 %s, %s' % (v(U + i), v(U + i)))
        for i in range(8):
            A('v_pk_fma_f32 %s, %s, %s, %s op_sel:[0,1,0] op_sel_hi:[1,1,0]' % (v(U + 2 * i, 2), v(U + 2 * i, 2), v(vR2, 2), v(vR2, 2)))
        for i in range(8):
            A('v_pk_mul_f32 %s, %s, %s' % (v(U + 2 * i, 2), v(U + 2 * i, 2), v(acc + 2 * i, 2)))
        for i in range(8):
            A('v_cvt_pk_bf16_f32 %s, %s, %s' % (v(P + i), v(U + 2 * i), v(U + 2 * i + 1)))
        A('buffer_store_dwordx4 %s, %s, %s, %s offen' % (v(P, 4), v(vL16), s(SWS, 4), s(sOut)))
        A('buffer_store_dwordx4 %s, %s, %s, %s offen offset:2048' % (v(P + 4, 4), v(vL16), s(SWS, 4), s(sOut)))
        A('s_add_u32 %s, %s, 4096' % (s(sOut), s(sOut)))
    A.branch('s_branch K1_DONE')

    def softmax(D, P, M):
        A('v_max3_f32 %s, %s, %s, %s' % (v(M), v(D), v(D + 1), v(D + 2)))
        A('v_max3_f32 %s, %s, %s, %s' % (v(M + 1), v(D + 3), v(D + 4), v(D + 5)))
        A('v_max3_f32 %s, %s, %s, %s' % (v(M + 2), v(D + 6), v(D + 7), v(D + 8)))
        A('v_max3_f32 %s, %s, %s, %s' % (v(M + 3), v(D + 9), v(D + 10), v(D + 11)))
        A('v_max3_f32 %s, %s, %s, %s' % (v(M), v(M), v(D + 12), v(D + 13)))
        A('v_max3_f32 %s, %s, %s, %s' % (v(M + 1), v(M + 1), v(D + 14), v(D + 15)))
        A('v_max3_f32 %s, %s, %s, %s' % (v(M), v(M), v(M + 1), v(M + 2)))
        A('v_max_f32 %s, %s, %s' % (v(M), v(M), v(M + 3)))
        A('v_mul_f32 %s, 0x%x, %s' % (v(M), LOG2E | 0x80000000, v(M)))
        for i in range(8):
            A('v_pk_fma_f32 %s, %s, %s, %s op_sel_hi:[1,1,0]' % (v(D + 2 * i, 2), v(D + 2 * i, 2), v(vL2, 2), v(M, 2)))
        for i in range(16):
            A('v_exp_f32 %s, %s' % (v(D + i), v(D + i)))
        A('v_pk_add_f32 %s, %s, %s' % (v(M, 2), v(D, 2), v(D + 2, 2)))
        A('v_pk_add_f32 %s, %s, %s' % (v(M + 2, 2), v(D + 4, 2), v(D + 6, 2)))
        A('v_pk_add_f32 %s, %s, %s' % (v(M, 2), v(M, 2), v(D + 8, 2)))
        A('v_pk_add_f32 %s, %s, %s' % (v(M + 2, 2), v(M + 2, 2), v(D + 10, 2)))
        A('v_pk_add_f32 %s, %s, %s' % (v(M, 2), v(M, 2), v(D + 12, 2)))
        A('v_pk_add_f32 %s, %s, %s' % (v(M + 2, 2), v(M + 2, 2), v(D + 14, 2)))
        A('v_pk_add_f32 %s, %s, %s' % (v(M, 2), v(M, 2), v(M + 2, 2)))
        A('v_add_f32 %s, %s, %s' % (v(M), v(M), v(M + 1)))
        A('v_rcp_f32 %s, %s' % (v(M), v(M)))
        for i in range(8):
            A('v_pk_mul_f32 %s, %s, %s op_sel_hi:[1,0]' % (v(D + 2 * i, 2), v(D + 2 * i, 2), v(M, 2)))
        for i in range(8):
            A('v_cvt_pk_bf16_f32 %s, %s, %s' % (v(P + i), v(D + 2 * i), v(D + 2 * i + 1)))

    def scale_pack(acc, QP):
        for i in range(8):
            A('v_pk_mul_f32 %s, %s, %s op_sel_hi:[1,0]' % (v(acc + 2 * i, 2), v(acc + 2 * i, 2), v(vR2, 2)))
        for i in range(8):
            A('v_cvt_pk_bf16_f32 %s, %s, %s' % (v(QP + i), v(acc + 2 * i), v(acc + 2 * i + 1)))

    def load_phi(dst, hl):
        o = 3072 * (hl >> 1) + 512 * (hl & 1)
        A('ds_read_b64_tr_b16 %s, %s offset:%d' % (v(dst, 2), v(vPa), o), tag='ph%d' % hl)
        A('ds_read_b64_tr_b16 %s, %s offset:%d' % (v(dst + 2, 2), v(vPa), o + 256), tag='ph%d' % hl)

    A.label('K1_Q')
    A.lg = []; A.vm = []
    vPh = 176
    for hl in range(6):
        load_phi(vPh + 4 * hl, hl)
    A('s_lshl_b32 %s, %s, 5' % (s(sOut), s(sRb2)))
    A('s_lshl_b32 %s, %s, 1' % (s(sT0), s(sU0)))
    A('s_add_u32 %s, %s, %s' % (s(sOut), s(sOut), s(sT0)))
    A('s_lshl_b32 %s, %s, 1' % (s(sOut), s(sOut)))
    A('s_add_u32 %s, %s, %s' % (s(sOut), s(sOut), s(sRt2)))
    A('s_lshl_b32 %s, %s, 11' % (s(sOut), s(sOut)))
    A('s_add_u32 %s, %s, 0x%x' % (s(sOut), s(sOut), WS_PHI))
    A.wait_lg(None)
    for i in range(24):
        A('v_xor_b32 %s, %s, %s' % (v(vPh + i), v(vSg), v(vPh + i)))
    for u in range(3):
        if u > 0:
            A('s_cmp_le_u32 %s, %d' % (s(sNval), u))
            A.branch('s_cbranch_scc1 K1_DONE')
        acc = vAcc + 16 * u
        QP = 28
        scale_pack(acc, QP)
        D0, D1 = 48, 64
        A('v_mfma_f32_32x32x16_bf16 %s, %s, %s, 0' % (v(D0, 16), v(vPh + 8 * u, 4), v(QP, 4)))
        A('v_mfma_f32_32x32x16_bf16 %s, %s, %s, 0' % (v(D1, 16), v(vPh + 8 * u + 4, 4), v(QP + 4, 4)))
        for hh, D in enumerate((D0, D1)):
            P = 80 + 8 * hh
            softmax(D, P, 36)
            A('buffer_store_dwordx4 %s, %s, %s, %s offen' % (v(P, 4), v(vL16), s(SWS, 4), s(sOut)))
            A('buffer_store_dwordx4 %s, %s, %s, %s offen offset:1024' % (v(P + 4, 4), v(vL16), s(SWS, 4), s(sOut)))
            A('s_add_u32 %s, %s, 4096' % (s(sOut), s(sOut)))
    A.branch('s_branch K1_DONE')

    A.label('K1_KV')
    A.lg = []; A.vm = []
    for hl in range(3):
        load_phi(vPh + 4 * hl, hl)
    A('v_mov_b32 %s, 0' % v(vT + 6))
    A('s_lshl_b32 %s, %s, 2' % (s(sT2), s(sCg)))
    A('buffer_load_dword %s, %s, %s, %s offen sc0 sc1' % (v(vFlag), v(vT + 6), s(SD, 4), s(sT2)), tag='flag')
    vSel0, vSel1, vSelV, vOne = 188, 192, 196, 96
    A('v_and_b32 %s, 31, %s' % (v(vT), v(vLane)))
    A('v_lshrrev_b32 %s, 5, %s' % (v(vT + 1), v(vLane)))
    A('v_lshlrev_b32 %s, 4, %s' % (v(vT + 2), v(vT + 1)))
    A('v_sub_u32 %s, %s, %s' % (v(vT + 2), v(vT), v(vT + 2)))
    A('v_lshlrev_b32 %s, 2, %s' % (v(vT + 3), v(vT + 1)))
    A('v_sub_u32 %s, %s, %s' % (v(vT + 3), v(vT), v(vT + 3)))
    A('v_mov_b32 %s, 0x3f80' % v(vT + 4))
    A('v_mov_b32 %s, 0x3f800000' % v(vT + 5))
    def sel(dst, src, lo, hi):
        A('v_cmp_eq_u32 vcc, %d, %s' % (lo, v(src)))
        A('v_cndmask_b32 %s, 0, %s, vcc' % (v(dst), v(vT + 4)))
        A('v_cmp_eq_u32 vcc, %d, %s' % (hi, v(src)))
        A('v_cndmask_b32 %s, %s, %s, vcc' % (v(dst), v(dst), v(vT + 5)))
    for r in range(4):
        sel(vSel0 + r, vT + 2, 2 * r, 2 * r + 1)
        sel(vSel1 + r, vT + 2, 8 + 2 * r, 8 + 2 * r + 1)
        j0, j1 = 2 * r, 2 * r + 1
        sel(vSelV + r, vT + 3, (j0 & 3) + 8 * (j0 >> 2), (j1 & 3) + 8 * (j1 >> 2))
    A('v_and_b32 %s, 27, %s' % (v(vOne + 1), v(vT)))
    A('v_cmp_eq_u32 vcc, 16, %s' % v(vOne + 1))
    A('v_cndmask_b32 %s, 0, %s, vcc' % (v(vOne), v(vT + 5)))
    for i in range(1, 16):
        A('v_mov_b32 %s, %s' % (v(vOne + i), v(vOne)))
    vKa, vKz = 200, 201
    A('v_bfe_u32 %s, %s, 2, 2' % (v(vT + 2), v(vLane)))
    A('v_bfe_u32 %s, %s, 4, 1' % (v(vT + 3), v(vLane)))
    A('v_lshl_add_u32 %s, %s, 1, %s' % (v(vT + 2), v(vT + 2), v(vT + 3)))
    A('v_mul_u32_u24 %s, 272, %s' % (v(vT + 2), v(vT + 2)))
    A('v_and_b32 %s, 3, %s' % (v(vT + 3), v(vLane)))
    A('v_lshl_add_u32 %s, %s, 2, %s' % (v(vKz), v(vT + 3), v(vT + 2)))
    A('v_add_u32 %s, %s, %s' % (v(vKz), s(sXm), v(vKz)))
    A('v_lshl_add_u32 %s, %s, 6, %s' % (v(vKa), v(vT + 1), v(vKz)))
    A.wait_lg(None)
    for i in range(12):
        A('v_xor_b32 %s, %s, %s' % (v(vPh + i), v(vSg), v(vPh + i)))
    for u in range(3):
        if u > 0:
            A('s_cmp_le_u32 %s, %d' % (s(sNval), u))
            A.branch('s_cbranch_scc1 K1_KVRED')
        acc = vAcc + 16 * u
        QP = 28
        scale_pack(acc, QP)
        D0, D1 = 48, 64
        A('v_mfma_f32_32x32x16_bf16 %s, %s, %s, 0' % (v(D0, 16), v(vPh + 4 * u, 4), v(QP, 4)))
        A('v_mfma_f32_32x32x16_bf16 %s, %s, %s, %s' % (v(D1, 16), v(QP + 4, 4), v(vSelV, 4), v(vOne, 16)))
        P = 80
        softmax(D0, P, 36)
        A('v_mfma_f32_32x32x16_bf16 %s, %s, %s, 0' % (v(D0, 16), v(P, 4), v(vSel0, 4)))
        A('v_mfma_f32_32x32x16_bf16 %s, %s, %s, %s' % (v(D0, 16), v(P + 4, 4), v(vSel1, 4), v(D0, 16)))
        VT = 88
        for i in range(8):
            A('v_cvt_pk_bf16_f32 %s, %s, %s' % (v(VT + i), v(D1 + 2 * i), v(D1 + 2 * i + 1)))
        PT = 112
        for i in range(8):
            A('v_cvt_pk_bf16_f32 %s, %s, %s' % (v(PT + i), v(D0 + 2 * i), v(D0 + 2 * i + 1)))
        A('v_mfma_f32_32x32x16_bf16 %s, %s, %s, 0' % (v(acc, 16), v(VT, 4), v(PT, 4)))
        A('v_mfma_f32_32x32x16_bf16 %s, %s, %s, %s' % (v(acc, 16), v(VT + 4, 4), v(PT + 4, 4), v(acc, 16)))
        for r in range(8):
            A('ds_write_b32 %s, %s offset:%d' % (v(vKa), v(acc + r), KVH * u + ((r & 3) + 8 * (r >> 2)) * 16))
        A('ds_write_b32 %s, %s offset:%d' % (v(vKz), v(acc + 8), KVH * u + 256))
    A.label('K1_KVRED')
    stamp(A, 7, sTs, vT + 8, sWave, SWS, WS_STAMP, 8)
    A('s_waitcnt lgkmcnt(0)')
    A('s_barrier')
    A('s_mov_b32 %s, 0' % s(sT0))
    A.label('K1_POLL')
    A('s_waitcnt vmcnt(0)')
    A('v_readfirstlane_b32 %s, %s' % (s(sT1), v(vFlag)))
    A('s_cmp_lg_u32 %s, 0' % s(sT1))
    A.branch('s_cbranch_scc1 K1_GO')
    A('s_add_u32 %s, %s, 1' % (s(sT0), s(sT0)))
    A('s_cmp_gt_u32 %s, 0x40000' % s(sT0))
    A.branch('s_cbranch_scc1 K1_GO')
    A('s_sleep 8')
    A('buffer_load_dword %s, %s, %s, %s offen sc0 sc1' % (v(vFlag), v(vT + 6), s(SD, 4), s(sT2)))
    A.branch('s_branch K1_POLL')
    A.label('K1_GO')
    A('s_lshl_b32 %s, %s, 8' % (s(sT0), s(sWave)))
    A('v_lshl_add_u32 %s, %s, 2, %s' % (v(vT), v(vLane), s(sT0)))
    vR = 32
    A('v_add_u32 %s, %d, %s' % (v(vT + 1), L_X, v(vT)))
    for i in range(4):
        for w in range(8):
            A('ds_read_b32 %s, %s offset:%d' % (v(vR + 8 * i + w), v(vT + 1), 2048 * i + 8192 * w))
    A('s_mul_i32 %s, %s, %d' % (s(sT1), s(sNval), KVH))
    A('s_mul_i32 %s, %s, %d' % (s(sT2), s(sU0), KVH))
    A('s_add_u32 %s, %s, 0x%x' % (s(sT2), s(sT2), WS_KV))
    A('v_mov_b32 %s, 0x7f000000' % v(vT + 2))
    for i in range(4):
        A('v_add_u32 %s, %d, %s' % (v(vT + 4 + i), 2048 * i, v(vT)))
        A('v_cmp_gt_u32 vcc, %s, %s' % (s(sT1), v(vT + 4 + i)))
        A('v_cndmask_b32 %s, %s, %s, vcc' % (v(vT + 4 + i), v(vT + 2), v(vT + 4 + i)))
    A('s_waitcnt lgkmcnt(0)')
    for i in range(4):
        r = vR + 8 * i
        A('v_pk_add_f32 %s, %s, %s' % (v(r, 2), v(r, 2), v(r + 2, 2)))
        A('v_pk_add_f32 %s, %s, %s' % (v(r + 4, 2), v(r + 4, 2), v(r + 6, 2)))
        A('v_pk_add_f32 %s, %s, %s' % (v(r, 2), v(r, 2), v(r + 4, 2)))
        A('v_add_f32 %s, %s, %s' % (v(r), v(r), v(r + 1)))
        A('buffer_atomic_add_f32 %s, %s, %s, %s offen' % (v(r), v(vT + 4 + i), s(SWS, 4), s(sT2)))
    A.label('K1_DONE')
    if OPT['stamps']:
        stamp(A, 3, sTs, vT + 8, sWave, SWS, WS_STAMP, 8)
        A('s_waitcnt vmcnt(0)')
        stamp(A, 4, sTs, vT + 8, sWave, SWS, WS_STAMP, 8)
    A.label('K1_END')
    A('s_endpgm')
    lds = L_END
    return A.text(), lds

def gen_k2():
    A = Asm()
    SWS, SX, SO = 40, 44, 48
    sWave, sRb2, sCb, sT0, sT1, sT2 = 52, 53, 54, 55, 56, 57
    sAct, sW, sPhi, sWo, sKv = 58, 59, 60, 61, 62
    sTs = 64
    PITCH = 272
    vAcc = 0
    vKv = 64
    vKb = 128
    vD = 144
    vO = 208
    vLane, vL16, vKo = 224, 225, 226
    vT = 228
    vXres = 244
    A.raw('.p2align 8')
    A.raw('.type k2_kernel,@function')
    A.raw('k2_kernel:')
    A('s_cmp_ge_u32 s2, 256')
    A.branch('s_cbranch_scc1 K2_END')
    A('s_load_dwordx2 s[16:17], s[0:1], 0')
    A('s_load_dwordx2 s[32:33], s[0:1], 64')
    A('s_load_dwordx2 s[36:37], s[0:1], 80')
    A('v_and_b32 %s, 63, v0' % v(vLane))
    A('v_lshrrev_b32 %s, 6, v0' % v(vT))
    A('v_lshlrev_b32 %s, 4, %s' % (v(vL16), v(vLane)))
    A('v_readfirstlane_b32 %s, %s' % (s(sWave), v(vT)))
    A('s_and_b32 %s, s2, 7' % s(sT0))
    A('s_lshr_b32 %s, s2, 3' % s(sT1))
    A('s_lshl_b32 %s, %s, 2' % (s(sRb2), s(sT0)))
    A('s_and_b32 %s, %s, 3' % (s(sT2), s(sT1)))
    A('s_add_u32 %s, %s, %s' % (s(sRb2), s(sRb2), s(sT2)))
    A('s_lshr_b32 %s, %s, 2' % (s(sCb), s(sT1)))
    A('s_mul_i32 %s, %s, 22' % (s(sT0), s(sWave)))
    A('s_mul_i32 %s, %s, 86' % (s(sAct), s(sRb2)))
    A('s_add_u32 %s, %s, %s' % (s(sAct), s(sAct), s(sT0)))
    A('s_lshl_b32 %s, %s, 11' % (s(sAct), s(sAct)))
    A('s_mul_i32 %s, %s, 118' % (s(sT1), s(sCb)))
    A('s_add_u32 %s, %s, %s' % (s(sW), s(sT1), s(sT0)))
    A('s_lshl_b32 %s, %s, 11' % (s(sW), s(sW)))
    A('s_add_u32 %s, %s, 0x%x' % (s(sW), s(sW), WS_W2F))
    A('s_lshl_b32 %s, %s, 3' % (s(sT0), s(sWave)))
    A('s_add_u32 %s, %s, %s' % (s(sWo), s(sT1), s(sT0)))
    A('s_add_u32 %s, %s, 86' % (s(sWo), s(sWo)))
    A('s_lshl_b32 %s, %s, 11' % (s(sWo), s(sWo)))
    A('s_add_u32 %s, %s, 0x%x' % (s(sWo), s(sWo), WS_W2F))
    A('s_lshl_b32 %s, %s, 5' % (s(sPhi), s(sRb2)))
    A('s_add_u32 %s, %s, %s' % (s(sPhi), s(sPhi), s(sT0)))
    A('s_lshl_b32 %s, %s, 12' % (s(sPhi), s(sPhi)))
    A('s_add_u32 %s, %s, 0x%x' % (s(sPhi), s(sPhi), WS_PHI))
    A('s_mul_i32 %s, %s, %d' % (s(sKv), s(sT0), KVH))
    A('s_add_u32 %s, %s, 0x%x' % (s(sKv), s(sKv), WS_KV))
    A('v_and_b32 %s, 31, %s' % (v(vT), v(vLane)))
    A('v_min_u32 %s, 16, %s' % (v(vT), v(vT)))
    A('v_lshrrev_b32 %s, 5, %s' % (v(vT + 1), v(vLane)))
    A('v_mul_u32_u24 %s, 17, %s' % (v(vT + 1), v(vT + 1)))
    A('v_add_lshl_u32 %s, %s, %s, 4' % (v(vKo), v(vT), v(vT + 1)))
    A('s_waitcnt lgkmcnt(0)')
    srd(A, SWS, 36, WS_SIZE)
    srd(A, SX, 16, 2048 * 1024)
    srd(A, SO, 32, 2048 * 1024)
    stamp(A, 0, sTs, vT + 8, sWave, SWS, WS_STAMP + 0x40000, 4)
    HS = 5
    def head_regs(h):
        return 24 * (h % HS)
    def issue_head(h):
        kvr = vKv + 16 * (h % 4)
        for q in range(4):
            A('buffer_load_dwordx4 %s, %s, %s, %s offen offset:%d' % (v(kvr + 4 * q, 4), v(vKo), s(SWS, 4), s(sKv), q * 544), tag='kv%d' % h)
        A('s_add_u32 %s, %s, %d' % (s(sKv), s(sKv), KVH))
    def issue_head2(h):
        b = head_regs(h)
        for i in range(4):
            A('buffer_load_dwordx4 %s, %s, %s, %s offen offset:%d' % (a(b + 4 * i, 4), v(vL16), s(SWS, 4), s(sPhi), 1024 * i), tag='phi%d' % h)
        A('s_add_u32 %s, %s, 4096' % (s(sPhi), s(sPhi)))
        for i in range(2):
            A('buffer_load_dwordx4 %s, %s, %s, %s offen offset:%d' % (a(b + 16 + 4 * i, 4), v(vL16), s(SWS, 4), s(sWo), 1024 * i), tag='wo%d' % h)
        A('s_add_u32 %s, %s, 2048' % (s(sWo), s(sWo)))
    pair_slot = {}
    def issue_pair(p, base):
        pair_slot[p] = base
        if p == 10:
            A('s_cmp_eq_u32 %s, 3' % s(sWave))
            A('s_cselect_b32 %s, 0x7f000000, %s' % (s(sAct), s(sAct)))
        for i in range(4):
            A('buffer_load_dwordx4 %s, %s, %s, %s offen offset:%d' % (a(base + 4 * i, 4), v(vL16), s(SWS, 4), s(sAct), 1024 * i), tag='a%d' % p)
        for i in range(4):
            A('buffer_load_dwordx4 %s, %s, %s, %s offen offset:%d' % (a(base + 16 + 4 * i, 4), v(vL16), s(SWS, 4), s(sW), 1024 * i), tag='p%d' % p)
        if p < 10:
            A('s_add_u32 %s, %s, 4096' % (s(sAct), s(sAct)))
            A('s_add_u32 %s, %s, 4096' % (s(sW), s(sW)))
    for h in range(4):
        issue_head(h)
        issue_head2(h)
    issue_head2(4)
    vOo = 227
    A('v_lshrrev_b32 %s, 3, %s' % (v(vT), v(vLane)))
    A('v_and_b32 %s, 7, %s' % (v(vT + 1), v(vLane)))
    A('v_lshlrev_b32 %s, 10, %s' % (v(vOo), v(vT)))
    A('v_lshl_add_u32 %s, %s, 4, %s' % (v(vOo), v(vT + 1), v(vOo)))
    sXo = 63
    A('s_lshl_b32 %s, %s, 2' % (s(sXo), s(sRb2)))
    A('s_add_u32 %s, %s, %s' % (s(sXo), s(sXo), s(sWave)))
    A('s_lshl_b32 %s, %s, 14' % (s(sXo), s(sXo)))
    A('s_lshl_b32 %s, %s, 7' % (s(sT0), s(sCb)))
    A('s_add_u32 %s, %s, %s' % (s(sXo), s(sXo), s(sT0)))
    sXo2 = 66
    A('s_add_u32 %s, %s, 8192' % (s(sXo2), s(sXo)))
    A('buffer_load_dwordx4 %s, %s, %s, %s offen' % (v(vXres, 4), v(vOo), s(SX, 4), s(sXo)), tag='xres')
    A('buffer_load_dwordx4 %s, %s, %s, %s offen' % (v(vXres + 4, 4), v(vOo), s(SX, 4), s(sXo2)), tag='xres')
    issue_pair(0, 120)
    nextp = 1
    first = True
    for h in range(8):
        kvr = vKv + 16 * (h % 4)
        kb = vKb + 8 * (h & 1)
        b = head_regs(h)
        A.wait_vm('kv%d' % h)
        for i in range(8):
            A('v_cvt_pk_bf16_f32 %s, %s, %s' % (v(kb + i), v(kvr + 2 * i), v(kvr + 2 * i + 1)))
        if h + 4 < 8:
            issue_head(h + 4)
        A.wait_vm('phi%d' % h)
        if h == 0:
            stamp(A, 1, sTs, vT + 8, sWave, SWS, WS_STAMP + 0x40000, 4)
        D = vD + 32 * (h & 1)
        for rt in range(2):
            A('v_mfma_f32_32x32x16_bf16 %s, %s, %s, 0' % (v(D + 16 * rt, 16), v(kb, 4), a(b + 8 * rt, 4)))
            A('v_mfma_f32_32x32x16_bf16 %s, %s, %s, %s' % (v(D + 16 * rt, 16), v(kb + 4, 4), a(b + 8 * rt + 4, 4), v(D + 16 * rt, 16)))
        o = vO + 8 * (h & 1)
        for rt in range(2):
            d = D + 16 * rt
            A('v_add_f32 %s, 0x358637bd, %s' % (v(d + 8), v(d + 8)))
            A('v_rcp_f32 %s, %s' % (v(d + 8), v(d + 8)))
            for i in range(4):
                A('v_pk_mul_f32 %s, %s, %s op_sel_hi:[1,0]' % (v(d + 2 * i, 2), v(d + 2 * i, 2), v(d + 8, 2)))
            for i in range(4):
                A('v_cvt_pk_bf16_f32 %s, %s, %s' % (v(o + 4 * rt + i), v(d + 2 * i), v(d + 2 * i + 1)))
        A.wait_vm('wo%d' % h)
        for nt in range(2):
            for rt in range(2):
                acc = vAcc + 16 * (2 * nt + rt)
                A('v_mfma_f32_32x32x16_bf16 %s, %s, %s, %s' % (v(acc, 16), a(b + 16 + 4 * nt, 4), v(o + 4 * rt, 4), '0' if first else v(acc, 16)))
        first = False
        if h + HS < 8:
            issue_head2(h + HS)
        elif nextp < 4:
            issue_pair(nextp, 120 + 32 * nextp)
            nextp += 1
    for base in (0, 32, 64):
        issue_pair(nextp, base)
        nextp += 1
    for p in range(11):
        base = pair_slot[p]
        A.wait_vm('p%d' % p)
        for kk in range(2):
            for nt in range(2):
                for rt in range(2):
                    acc = vAcc + 16 * (2 * nt + rt)
                    A('v_mfma_f32_32x32x16_bf16 %s, %s, %s, %s' % (v(acc, 16), a(base + 16 + 8 * kk + 4 * nt, 4), a(base + 8 * kk + 4 * rt, 4), v(acc, 16)))
        if nextp < 11:
            issue_pair(nextp, base)
            nextp += 1
    stamp(A, 2, sTs, vT + 8, sWave, SWS, WS_STAMP + 0x40000, 4)
    A('v_and_b32 %s, 31, %s' % (v(vT), v(vLane)))
    A('v_mul_u32_u24 %s, %d, %s' % (v(vT), PITCH, v(vT)))
    A('v_lshrrev_b32 %s, 5, %s' % (v(vT + 1), v(vLane)))
    A('v_lshl_add_u32 %s, %s, 4, %s' % (v(vT), v(vT + 1), v(vT)))
    A('s_mul_i32 %s, %s, %d' % (s(sT0), s(sWave), 64 * PITCH))
    A('v_add_u32 %s, %s, %s' % (v(vT), s(sT0), v(vT)))
    for nt in range(2):
        for rt in range(2):
            acc = vAcc + 16 * (2 * nt + rt)
            for q4 in range(4):
                A('ds_write_b128 %s, %s offset:%d' % (v(vT), v(acc + 4 * q4, 4), 32 * rt * PITCH + (32 * nt + 8 * q4) * 4))
    A('v_lshrrev_b32 %s, 3, %s' % (v(vT + 1), v(vLane)))
    A('v_mul_u32_u24 %s, %d, %s' % (v(vT + 1), PITCH, v(vT + 1)))
    A('v_and_b32 %s, 7, %s' % (v(vT + 2), v(vLane)))
    A('v_lshl_add_u32 %s, %s, 5, %s' % (v(vT + 1), v(vT + 2), v(vT + 1)))
    A('s_mul_i32 %s, %s, %d' % (s(sT0), s(sWave), 16 * PITCH))
    A('v_add_u32 %s, %s, %s' % (v(vT + 1), s(sT0), v(vT + 1)))
    A('s_waitcnt lgkmcnt(0)')
    A.lg = []
    A('s_barrier')
    R = 64
    for p in range(2):
        for w in range(4):
            for hh in range(2):
                A('ds_read_b128 %s, %s offset:%d' % (v(R + 32 * p + 8 * w + 4 * hh, 4), v(vT + 1), w * 64 * PITCH + 8 * p * PITCH + 16 * hh), tag='r%d' % p)
    for p in range(2):
        A.wait_lg('r%d' % p)
        r = R + 32 * p
        X = 128 + 8 * p
        for i in range(4):
            A('v_lshlrev_b32 %s, 16, %s' % (v(X + 2 * i), v(vXres + 4 * p + i)))
            A('v_and_b32 %s, 0xffff0000, %s' % (v(X + 2 * i + 1), v(vXres + 4 * p + i)))
        for i in range(4):
            A('v_pk_add_f32 %s, %s, %s' % (v(r + 2 * i, 2), v(r + 2 * i, 2), v(r + 8 + 2 * i, 2)))
            A('v_pk_add_f32 %s, %s, %s' % (v(r + 16 + 2 * i, 2), v(r + 16 + 2 * i, 2), v(r + 24 + 2 * i, 2)))
        for i in range(4):
            A('v_pk_add_f32 %s, %s, %s' % (v(r + 2 * i, 2), v(r + 2 * i, 2), v(r + 16 + 2 * i, 2)))
        for i in range(4):
            A('v_pk_add_f32 %s, %s, %s' % (v(r + 2 * i, 2), v(r + 2 * i, 2), v(X + 2 * i, 2)))
        for i in range(4):
            A('v_cvt_pk_bf16_f32 %s, %s, %s' % (v(X + i), v(r + 2 * i), v(r + 2 * i + 1)))
        A('buffer_store_dwordx4 %s, %s, %s, %s offen' % (v(X, 4), v(vOo), s(SO, 4), s(sXo if p == 0 else sXo2)))
    if OPT['stamps']:
        stamp(A, 3, sTs, vT + 8, sWave, SWS, WS_STAMP + 0x40000, 4)
        A('s_waitcnt vmcnt(0)')
        stamp(A, 4, sTs, vT + 8, sWave, SWS, WS_STAMP + 0x40000, 4)
    A.label('K2_END')
    A('s_endpgm')
    return A.text(), 4 * 64 * PITCH

def kd(name, nv, acc):
    return '''.amdhsa_kernel %s
  .amdhsa_next_free_vgpr %d
  .amdhsa_next_free_sgpr 102
  .amdhsa_accum_offset %d
  .amdhsa_group_segment_fixed_size 0
  .amdhsa_kernarg_size 88
  .amdhsa_user_sgpr_count 2
  .amdhsa_user_sgpr_kernarg_segment_ptr 1
  .amdhsa_system_sgpr_workgroup_id_x 1
.end_amdhsa_kernel
''' % (name, nv, acc)

def main():
    k1, lds1 = gen_k1()
    k2, lds2 = gen_k2()
    out = []
    out.append('; @launch kernel=k1_kernel grid=(256,1,1) block=(512,1,1) lds=%d' % lds1)
    out.append('; @launch kernel=k2_kernel grid=(256,1,1) block=(256,1,1) lds=%d' % lds2)
    out.append('.amdgcn_target "amdgcn-amd-amdhsa--gfx950"')
    out.append('.text')
    out.append('.globl k1_kernel')
    out.append(k1)
    out.append('.globl k2_kernel')
    out.append(k2)
    out.append('.section .rodata,"a"')
    out.append('.p2align 6')
    out.append(kd('k1_kernel', 256, 256))
    out.append('.p2align 6')
    out.append(kd('k2_kernel', 512, 256))
    open(sys.argv[1], 'w').write('\n'.join(out))

main()
```

```python
import sys
from asmlib import Asm, v, a, s

NAME = 'parallel_sum__linear_kernel_hedgehog__dense_activation_mish__prompt'
OPT = dict(fine=0, stamps=0, rot=1, prio=1, sched=0, slp=2, phr=4)
for arg in sys.argv[2:]:
    k, val = arg.split('=')
    OPT[k] = int(val, 0)

WS_ACT = 0x000000
WS_PHI = 0x600000
WS_KV = 0xC00000
WS_STAT = 0xC80000
WS_F = 0xC90000
WS_KD = 0xC98000
WS_CSF = 0xC99000
WS_CS = 0xCA0000
WS_STAMP = 0xD00000
WS_SIZE = 0xE00000
KVH = 2304
OOB = 0x7f000000
LOG2E = 0x3fb8aa3b
BOUND = 0x8000

L_W = 65536
def XP(sg, j=0): return 16384 * sg + 4096 * j
def WP(sg, j=0): return L_W + 24576 * sg + 4096 * j
def SPARE(sg): return L_W + 24576 * sg + 16384
TA, TB, TR, TN, TPH = SPARE(0), SPARE(0) + 1536, SPARE(0) + 2560, SPARE(0) + 3072, SPARE(0) + 4096

SX, SQ, S1, SP1, SWS, SD, SW2, SWO, STMP = 40, 44, 48, 52, 56, 60, 64, 68, 72
SO = SQ
sNonce, sWave, sRb, sCg, sTyp, sG, sF, sRb2, sCb = 3, 4, 5, 8, 9, 10, 11, 12, 13
sT0, sT1, sT2, sT3 = 14, 15, 76, 77
sO = [78, 79, 80, 81, 82, 83]
sJ = 84
sM = 85
sA, sB = 86, 87
STREG = [88, 90, 92, 94, 96, 98, 100, 24, 38]

def srd(A, d, lo, size):
    A('s_mov_b32 %s, %s' % (s(d), s(lo)))
    A('s_mov_b32 %s, %s' % (s(d + 1), s(lo + 1)))
    A('s_mov_b32 %s, 0x%x' % (s(d + 2), size))
    A('s_mov_b32 %s, 0x20000' % s(d + 3))

def stamp(A, idx, fine=None):
    if fine is None and idx in (1, 2) and OPT['fine']:
        return
    if fine is not None and OPT['fine'] != fine:
        return
    if OPT['stamps']:
        A('s_memrealtime %s' % s(STREG[idx], 2))

def emit(A, L):
    for it in L:
        if isinstance(it, tuple):
            A(it[0], tag=it[1])
        else:
            A(it)

class Keep:
    def __init__(self, A): self.A = A
    def __enter__(self): self.sv = list(self.A.vm)
    def __exit__(self, *e): self.A.vm = self.sv

def poll(A, name, reload, vreg, mask, cmp_nonce=True, extra=None):
    A('s_mov_b32 %s, 0' % s(sT0))
    A.label(name + '_P')
    if cmp_nonce:
        A('v_cmp_ne_u32 vcc, %s, %s' % (s(sNonce), v(vreg)))
    else:
        A('v_cmp_eq_u32 vcc, 0, %s' % v(vreg))
    if mask is not None:
        A('s_and_b32 vcc_lo, vcc_lo, %s' % mask)
        A('s_cmp_eq_u32 vcc_lo, 0')
    else:
        A('s_cmp_eq_u64 vcc, 0')
    A.branch('s_cbranch_scc1 %s_G' % name)
    A('s_add_u32 %s, %s, 1' % (s(sT0), s(sT0)))
    A('s_cmp_gt_u32 %s, 0x%x' % (s(sT0), BOUND))
    A.branch('s_cbranch_scc1 %s_G' % name)
    if OPT['slp']:
        A('s_sleep %d' % OPT['slp'])
    with Keep(A):
        A(reload)
    A('s_waitcnt vmcnt(0)')
    A.branch('s_branch %s_P' % name)
    A.label(name + '_G')

vLane, vL16 = 255, 254

def tr_addr(A, dst, t, rowhalf, sel):
    A('v_lshrrev_b32 %s, 5, %s' % (v(t), v(vLane)))
    A('v_bfe_u32 %s, %s, 2, 2' % (v(t + 1), v(vLane)))
    A('v_mul_u32_u24 %s, %d, %s' % (v(t), rowhalf, v(t)))
    A('v_add_lshl_u32 %s, %s, %s, 7' % (v(dst), v(t), v(t + 1)))
    A('v_bfe_u32 %s, %s, 3, 1' % (v(t), v(vLane)))
    if sel:
        A('v_xor_b32 %s, %s, %s' % (v(t), sel, v(t)))
    A('v_lshl_add_u32 %s, %s, 6, %s' % (v(dst), v(t), v(dst)))
    A('v_bfe_u32 %s, %s, 4, 1' % (v(t), v(vLane)))
    A('v_lshl_add_u32 %s, %s, 5, %s' % (v(dst), v(t), v(dst)))
    A('v_and_b32 %s, 3, %s' % (v(t), v(vLane)))
    A('v_lshl_add_u32 %s, %s, 3, %s' % (v(dst), v(t), v(dst)))

def selector(A, dst, t):
    A('v_lshrrev_b32 %s, 2, %s' % (v(t), v(vLane)))
    A('v_xor_b32 %s, %s, %s' % (v(t), v(t), v(vLane)))
    A('v_and_b32 %s, 4, %s' % (v(t), v(t)))
    A('v_cmp_eq_u32 vcc, 0, %s' % v(t))
    A('v_mov_b32 %s, 0x3f803f80' % v(t + 1))
    A('v_cndmask_b32 %s, 0, %s, vcc' % (v(dst), v(t + 1)))
    for i in range(1, 4):
        A('v_mov_b32 %s, %s' % (v(dst + i), v(dst)))

def reduce_write(A, acc, t, base_s, stride):
    A('v_and_b32 %s, 31, %s' % (v(t), v(vLane)))
    A('v_lshrrev_b32 %s, 5, %s' % (v(t + 1), v(vLane)))
    A('v_xor_b32 %s, %s, %s' % (v(t + 1), v(t + 1), v(vLane)))
    A('v_and_b32 %s, 7, %s' % (v(t + 1), v(t + 1)))
    A('v_lshlrev_b32 %s, 4, %s' % (v(t + 1), v(t + 1)))
    A('v_lshl_add_u32 %s, %s, 7, %s' % (v(t), v(t), v(t + 1)))
    A('v_add_u32 %s, %s, %s' % (v(t), s(base_s), v(t)))
    for q4 in range(1, 4):
        A('v_xor_b32 %s, %d, %s' % (v(t + q4), 32 * q4, v(t)))
    for q4 in range(4):
        A('v_xor_b32 %s, 16, %s' % (v(t + 4 + q4), v(t + q4)))
        A('v_add_u32 %s, %d, %s' % (v(t + 4 + q4), 2 * stride, v(t + 4 + q4)))
    return [('ds_write_b128 %s, %s offset:%d' % (v(t + 4 * nt + q4), v(acc + 16 * (2 * nt + rt) + 4 * q4, 4), rt * stride))
            for nt in range(2) for rt in range(2) for q4 in range(4)]

def gen():
    A = Asm()
    vT = 236
    A.raw('.p2align 8')
    A.raw('.type %s_kernel,@function' % NAME)
    A.raw('%s_kernel:' % NAME)
    A('s_cmp_ge_u32 s2, 256')
    A.branch('s_cbranch_scc1 L_END')
    A('s_load_dwordx16 s[16:31], s[0:1], 0')
    A('s_load_dwordx4 s[32:35], s[0:1], 64')
    A('s_load_dwordx2 s[36:37], s[0:1], 80')
    A('s_memrealtime s[6:7]')
    A('v_and_b32 %s, 63, v0' % v(vLane))
    A('v_lshrrev_b32 %s, 6, v0' % v(vT))
    A('v_lshlrev_b32 %s, 4, %s' % (v(vL16), v(vLane)))
    A('v_readfirstlane_b32 %s, %s' % (s(sWave), v(vT)))
    A('s_and_b32 %s, s2, 7' % s(sT0))
    A('s_lshr_b32 %s, s2, 3' % s(sT1))
    A('s_and_b32 %s, %s, 1' % (s(sRb), s(sT0)))
    A('s_lshl_b32 %s, %s, 3' % (s(sRb), s(sRb)))
    A('s_and_b32 %s, %s, 7' % (s(sT2), s(sT1)))
    A('s_add_u32 %s, %s, %s' % (s(sRb), s(sRb), s(sT2)))
    A('s_lshr_b32 %s, %s, 1' % (s(sCg), s(sT0)))
    A('s_lshl_b32 %s, %s, 2' % (s(sCg), s(sCg)))
    A('s_lshr_b32 %s, %s, 3' % (s(sT2), s(sT1)))
    A('s_add_u32 %s, %s, %s' % (s(sCg), s(sCg), s(sT2)))
    A('s_and_b32 %s, %s, 1' % (s(sTyp), s(sCg)))
    A('s_lshr_b32 %s, %s, 1' % (s(sG), s(sCg)))
    A('s_lshl_b32 %s, %s, 1' % (s(sF), s(sCg)))
    A('s_add_u32 %s, %s, %s' % (s(sF), s(sF), s(sRb)))
    A('s_and_b32 %s, %s, 7' % (s(sF), s(sF)))
    A('s_lshl_b32 %s, %s, 2' % (s(sRb2), s(sT0)))
    A('s_and_b32 %s, %s, 3' % (s(sT2), s(sT1)))
    A('s_add_u32 %s, %s, %s' % (s(sRb2), s(sRb2), s(sT2)))
    A('s_lshr_b32 %s, %s, 2' % (s(sCb), s(sT1)))
    A('s_and_b32 %s, %s, 3' % (s(sJ), s(sWave)))
    A('s_cmp_ge_u32 %s, 4' % s(sWave))
    A.branch('s_cbranch_scc1 C_START')
    gen_loader(A)
    gen_compute(A)
    gen_final(A)
    return A.text()

def gen_loader(A):
    vXo, vP0, vP1, vP2, v2o = 224, 226, 227, 228, 229
    vFo, vNon, vG, vTa, vFl = 230, 231, 232, 234, 235
    vT = 236
    vRow = 0
    vCf = 32
    vCa = 56
    vSel = 68
    vGa = 72
    vB1 = 104
    sC1, sC2 = sA, sB
    A('s_lshl_b32 %s, %s, 7' % (s(sT0), s(sG)))
    A('s_lshl_b32 %s, %s, 8' % (s(sT1), s(sG)))
    A('s_add_u32 %s, %s, 2048' % (s(sT2), s(sT0)))
    A('s_add_u32 %s, %s, 128' % (s(sT3), s(sT1)))
    A('s_cmp_eq_u32 %s, 1' % s(sTyp))
    A('s_cselect_b32 %s, %s, %s' % (s(sC1), s(sT2), s(sT1)))
    A('s_cselect_b32 %s, %s, %s' % (s(sC2), s(sT2), s(sT3)))
    A('s_movk_i32 %s, 2752' % s(sT1))
    A('s_cselect_b32 %s, 3072, %s' % (s(sT1), s(sT1)))
    A('s_lshl_b32 %s, %s, 10' % (s(sT2), s(sTyp)))
    A('s_add_u32 %s, %s, %s' % (s(sT0), s(sT0), s(sT2)))
    A('v_lshrrev_b32 %s, 3, %s' % (v(vT), v(vLane)))
    A('v_lshrrev_b32 %s, 2, %s' % (v(vT + 1), v(vLane)))
    A('v_and_b32 %s, 4, %s' % (v(vT + 1), v(vT + 1)))
    A('v_and_b32 %s, 7, %s' % (v(vT + 2), v(vLane)))
    A('v_xor_b32 %s, %s, %s' % (v(vT + 1), v(vT + 1), v(vT + 2)))
    A('v_lshlrev_b32 %s, 4, %s' % (v(vT + 1), v(vT + 1)))
    A('v_mul_u32_u24 %s, 3072, %s' % (v(vP0), v(vT)))
    A('v_add3_u32 %s, %s, %s, %s' % (v(vP0), v(vP0), v(vT + 1), s(sT0)))
    A('v_mul_u32_u24 %s, %s, %s' % (v(vP1), s(sT1), v(vT)))
    A('v_add3_u32 %s, %s, %s, %s' % (v(vP1), v(vP1), v(vT + 1), s(sC1)))
    A('v_add_u32 %s, %s, %s' % (v(vT + 3), s(sC2), v(vT + 1)))
    A('v_mul_u32_u24 %s, 2752, %s' % (v(vP2), v(vT)))
    A('v_add_u32 %s, %s, %s' % (v(vP2), v(vP2), v(vT + 3)))
    A('v_cmp_gt_u32 vcc, 2752, %s' % v(vT + 3))
    A('v_mov_b32 %s, 0x%x' % (v(vT + 3), OOB))
    A('v_cndmask_b32 %s, %s, %s, vcc' % (v(vP2), v(vT + 3), v(vP2)))
    A('s_lshl_b32 %s, %s, 7' % (s(sT0), s(sCb)))
    A('v_lshl_add_u32 %s, %s, 10, %s' % (v(v2o), v(vT), v(vT + 1)))
    A('v_add_u32 %s, %s, %s' % (v(v2o), s(sT0), v(v2o)))
    A('v_lshrrev_b32 %s, 4, %s' % (v(vT + 1), v(vLane)))
    A('v_xor_b32 %s, %s, %s' % (v(vT + 1), v(vT + 1), v(vT + 2)))
    A('s_lshl_b32 %s, %s, 2' % (s(sT0), s(sRb)))
    A('s_add_u32 %s, %s, %s' % (s(sT0), s(sT0), s(sJ)))
    A('s_lshl_b32 %s, %s, 15' % (s(sT0), s(sT0)))
    A('v_lshlrev_b32 %s, 10, %s' % (v(vXo), v(vT)))
    A('v_lshl_add_u32 %s, %s, 4, %s' % (v(vXo), v(vT + 1), v(vXo)))
    A('v_add_u32 %s, %s, %s' % (v(vXo), s(sT0), v(vXo)))
    A('v_xor_b32 %s, 64, %s' % (v(vXo + 1), v(vXo)))
    A('s_lshl_b32 %s, %s, 11' % (s(sM), s(sJ)))
    A('s_waitcnt lgkmcnt(0)')
    srd(A, SQ, 18, 512 * 3072)
    srd(A, S1, 26, 512 * 2752)
    srd(A, SX, 16, 2048 * 1024)
    A('s_cmp_eq_u32 %s, 1' % s(sTyp))
    A('s_cselect_b32 %s, s18, s26' % s(SP1))
    A('s_cselect_b32 %s, s19, s27' % s(SP1 + 1))
    A('s_cselect_b32 %s, %s, %s' % (s(SP1 + 2), s(SQ + 2), s(S1 + 2)))
    A('s_mov_b32 %s, 0x20000' % s(SP1 + 3))
    stamp(A, 0)

    def grp_w(st):
        L = []
        L.append('s_add_u32 %s, %s, %d' % (s(sT3), s(sF), st))
        L.append('s_and_b32 %s, %s, 7' % (s(sT3), s(sT3)))
        L.append('s_lshl_b32 %s, %s, 2' % (s(sT3), s(sT3)))
        L.append('s_add_u32 %s, %s, %s' % (s(sT3), s(sT3), s(sJ)))
        L.append('s_mul_i32 %s, %s, %d' % (s(sO[0]), s(sT3), 16 * 3072))
        L.append('s_mul_i32 %s, %s, %d' % (s(sO[2]), s(sT3), 16 * 2752))
        L.append('s_add_u32 m0, %s, %d' % (s(sM), WP(st & 3)))
        L.append('s_add_u32 %s, %s, %d' % (s(sO[1]), s(sO[0]), 8 * 3072 - 1024))
        L.append(('buffer_load_dwordx4 %s, %s, %s offen lds' % (v(vP0), s(SQ, 4), s(sO[0])), 's%d' % st))
        L.append('s_add_u32 %s, %s, %d' % (s(sO[3]), s(sO[2]), 8 * 2752 - 1024))
        L.append(('buffer_load_dwordx4 %s, %s, %s offen offset:1024 lds' % (v(vP0), s(SQ, 4), s(sO[1])), 's%d' % st))
        L.append('s_cmp_eq_u32 %s, 1' % s(sTyp))
        L.append('s_cselect_b32 %s, %s, %s' % (s(sO[0]), s(sO[0]), s(sO[2])))
        L.append('s_cselect_b32 %s, %s, %s' % (s(sO[1]), s(sO[1]), s(sO[3])))
        L.append('s_add_u32 m0, %s, %d' % (s(sM), WP(st & 3) + 8192))
        L.append(('buffer_load_dwordx4 %s, %s, %s offen lds' % (v(vP1), s(SP1, 4), s(sO[0])), 's%d' % st))
        L.append(('buffer_load_dwordx4 %s, %s, %s offen offset:1024 lds' % (v(vP1), s(SP1, 4), s(sO[1])), 's%d' % st))
        L.append('s_add_u32 m0, %s, %d' % (s(sM), WP(st & 3) + 16384))
        L.append(('buffer_load_dwordx4 %s, %s, %s offen lds' % (v(vP2), s(S1, 4), s(sO[2])), 's%d' % st))
        L.append(('buffer_load_dwordx4 %s, %s, %s offen offset:1024 lds' % (v(vP2), s(S1, 4), s(sO[3])), 's%d' % st))
        return L
    def quad(vo, srdn, ldsbase, tag):
        L = []
        L.append('s_lshl_b32 m0, %s, 1' % s(sM))
        if ldsbase:
            L.append('s_add_u32 m0, m0, %d' % ldsbase)
        for i in range(4):
            if i:
                L.append('s_add_u32 %s, %s, %d' % (s(sO[i]), s(sO[0]), 7168 * i))
            L.append(('buffer_load_dwordx4 %s, %s, %s offen offset:%d lds' % (v(vo[i & 1]), s(srdn, 4), s(sO[i]), 1024 * i), tag))
        return L
    def grp_x(st):
        L = []
        L.append('s_add_u32 %s, %s, %d' % (s(sT3), s(sF), st))
        L.append('s_and_b32 %s, %s, 7' % (s(sT3), s(sT3)))
        L.append('s_lshl_b32 %s, %s, 7' % (s(sO[0]), s(sT3)))
        return L + quad((vXo, vXo + 1), SX, XP(st & 3), 's%d' % st)
    UL = [(8, 0), (8, 1), (8, 4), (8, 5), (8, 2), (8, 3), (8, 6), (8, 7), (3, 32), (3, 33), (3, 34)]
    def grp_w2(i, ldsbase):
        m, c = UL[i]
        L = ['s_mul_i32 %s, %s, %d' % (s(sO[0]), s(sJ), m * 32768)]
        if c:
            L.append('s_add_u32 %s, %s, %d' % (s(sO[0]), s(sO[0]), c * 32768))
        return L + quad((v2o, v2o), SW2, ldsbase, 'u%d' % i)
    def grp_wo(p):
        L = ['s_lshl_b32 %s, %s, 17' % (s(sO[0]), s(sJ))]
        if p:
            L.append('s_add_u32 %s, %s, %d' % (s(sO[0]), s(sO[0]), p * 32768))
        return L + quad((v2o, v2o), SWO, XP(p), 'wo')
    groups = []
    for st in range(8):
        groups += [('w', st), ('x', st)]
    SCHED = {0: [4, 2, 2, 2, 3, 3, 0], 1: [4, 2, 2, 2, 2, 2, 2], 2: [4, 2, 3, 3, 2, 2, 0], 3: [4, 3, 3, 2, 2, 2, 0]}[OPT['sched']]
    pos = [0]
    def issue(n, iv):
        for _ in range(n):
            kind, st = groups[pos[0]]
            assert st <= iv + 3 or st < 4, (st, iv)
            emit(A, grp_w(st) if kind == 'w' else grp_x(st))
            pos[0] += 1

    issue(2, -1)
    srd(A, SD, 34, 256)
    srd(A, SWS, 36, WS_SIZE)
    A('s_or_b32 %s, s2, %s' % (s(sT0), s(sWave)))
    A('v_mov_b32 %s, 0' % v(vT + 1))
    A('s_cmp_lg_u32 %s, 0' % s(sT0))
    A.branch('s_cbranch_scc1 L_NONONCE')
    A('s_or_b32 s6, s6, 1')
    A('v_mov_b32 %s, s6' % v(vT))
    with Keep(A):
        A('buffer_store_dword %s, %s, %s, 0 offen offset:128 sc1' % (v(vT), v(vT + 1), s(SD, 4)))
    A.label('L_NONONCE')
    sStat = 7
    A('s_lshl_b32 %s, %s, 4' % (s(sStat), s(sRb)))
    A('s_add_u32 %s, %s, %s' % (s(sStat), s(sStat), s(sCg)))
    A('s_lshl_b32 %s, %s, 2' % (s(sStat), s(sStat)))
    A('s_add_u32 %s, %s, %s' % (s(sStat), s(sStat), s(sJ)))
    A('s_lshl_b32 %s, %s, 11' % (s(sT0), s(sStat)))
    A('v_and_b32 %s, 32, %s' % (v(vT), v(vLane)))
    A('v_lshl_add_u32 %s, %s, 4, %s' % (v(vT), v(vT), v(vL16)))
    A('buffer_load_dwordx4 %s, %s, %s, %s offen' % (v(vRow, 4), v(vT), s(SX, 4), s(sT0)), tag='row')
    A('buffer_load_dwordx4 %s, %s, %s, %s offen offset:512' % (v(vRow + 4, 4), v(vT), s(SX, 4), s(sT0)), tag='row')
    issue(SCHED[0] - 2, -1)
    A('s_lshl_b32 %s, %s, 4' % (s(sStat), s(sStat)))
    A('s_add_u32 %s, %s, 0x%x' % (s(sStat), s(sStat), WS_STAT))
    srd(A, SW2, 30, 1376 * 1024)
    srd(A, SWO, 22, 512 * 1024)
    A('v_mov_b32 %s, 0x%x' % (v(vT), OOB))
    A('v_cmp_eq_u32 vcc, 0, %s' % v(vLane))
    A('v_cndmask_b32 %s, %s, 0, vcc' % (v(vFo), v(vT)))
    A('s_cmp_ge_u32 %s, 2' % s(sJ))
    A.branch('s_cbranch_scc1 LB_START')
    vm0 = list(A.vm)
    pos0 = pos[0]

    def xsum32(r, t):
        for ctl in ('quad_perm:[1,0,3,2]', 'quad_perm:[2,3,0,1]', 'row_half_mirror', 'row_mirror'):
            A('v_add_f32_dpp %s, %s, %s %s row_mask:0xf bank_mask:0xf' % (v(r), v(r), v(r), ctl))
        A('v_mov_b32 %s, %s' % (v(t), v(r)))
        A('v_permlane16_swap_b32 %s, %s' % (v(r), v(t)))
        A('v_add_f32 %s, %s, %s' % (v(r), v(r), v(t)))
    U = vRow + 8
    def stats1():
        A.wait_vm('row')
        for j in range(8):
            A('v_lshlrev_b32 %s, 16, %s' % (v(U + 2 * j), v(vRow + j)))
            A('v_and_b32 %s, 0xffff0000, %s' % (v(U + 2 * j + 1), v(vRow + j)))
        for j in range(4):
            A('v_add_f32 %s, %s, %s' % (v(vRow + j), v(U + j), v(U + 4 + j)))
            A('v_add_f32 %s, %s, %s' % (v(vRow + 4 + j), v(U + 8 + j), v(U + 12 + j)))
        for st_ in (4, 2, 1):
            for j in range(st_):
                A('v_add_f32 %s, %s, %s' % (v(vRow + j), v(vRow + j), v(vRow + st_ + j)))
        xsum32(vRow, vRow + 1)
        A('v_mul_f32 %s, 0xbb000000, %s' % (v(vRow), v(vRow)))
    def stats2(k):
        for j in range(16):
            A('v_add_f32 %s, %s, %s' % (v(U + j), v(U + j), v(vRow)))
        for j in range(4):
            A('v_mul_f32 %s, %s, %s' % (v(vRow + 4 + j), v(U + j), v(U + j)))
        for j in range(4, 16):
            A('v_fmac_f32 %s, %s, %s' % (v(vRow + 4 + (j & 3)), v(U + j), v(U + j)))
        r = vRow + 4
        A('v_add_f32 %s, %s, %s' % (v(r), v(r), v(r + 1)))
        A('v_add_f32 %s, %s, %s' % (v(r + 2), v(r + 2), v(r + 3)))
        A('v_add_f32 %s, %s, %s' % (v(r), v(r), v(r + 2)))
        xsum32(r, r + 1)
        A('v_mul_f32 %s, 0x3b000000, %s' % (v(r), v(r)))
        A('v_cvt_pk_bf16_f32 %s, %s, %s' % (v(r), v(r), v(r)))
        A('v_lshlrev_b32 %s, 16, %s' % (v(r), v(r)))
        A('v_add_f32 %s, 0x3727c5ac, %s' % (v(r), v(r)))
        A('v_cvt_pk_bf16_f32 %s, %s, %s' % (v(r), v(r), v(r)))
        A('v_lshlrev_b32 %s, 16, %s' % (v(r), v(r)))
        A('v_sqrt_f32 %s, %s' % (v(r), v(r)))
        A('v_cvt_pk_bf16_f32 %s, %s, %s' % (v(vG), v(vRow), v(r)))
        A.wait_vm('non')
        A('v_mov_b32 %s, 0' % v(vT + 1))
        poll(A, 'LN' + k, 'buffer_load_dword %s, %s, %s, 0 offen offset:128 sc1' % (v(vNon), v(vT + 1), s(SD, 4)), vNon, None, cmp_nonce=False)
        A('v_readfirstlane_b32 %s, %s' % (s(sNonce), v(vNon)))
        A('v_mov_b32 %s, %s' % (v(vG + 1), v(vNon)))
        A('v_and_b32 %s, 31, %s' % (v(vT), v(vLane)))
        A('v_cmp_eq_u32 vcc, 0, %s' % v(vT))
        A('v_lshrrev_b32 %s, 2, %s' % (v(vT), v(vLane)))
        A('v_mov_b32 %s, 0x%x' % (v(vT + 1), OOB))
        A('v_cndmask_b32 %s, %s, %s, vcc' % (v(vT), v(vT + 1), v(vT)))
        A('buffer_store_dwordx2 %s, %s, %s, %s offen sc1' % (v(vG, 2), v(vT), s(SWS, 4), s(sStat)), tag='pub')
    def bar(n, k):
        A('s_barrier')
        if n == 0:
            stamp(A, 1)
        if n == 4:
            stamp(A, 2)

    for k in 'AB':
        if k == 'B':
            A.label('LB_START')
            A.vm = list(vm0); A.lg = []; pos[0] = pos0
        if k == 'A':
            tr_addr(A, vTa, vT, 8, s(sJ))
            A('s_lshr_b32 %s, %s, 3' % (s(sT0), s(sRb)))
            A('s_lshl_b32 %s, %s, 12' % (s(sT0), s(sT0)))
            A('s_add_u32 %s, %s, %d' % (s(sT0), s(sT0), L_W))
            A('v_add_u32 %s, %s, %s' % (v(vTa), s(sT0), v(vTa)))
            selector(A, vSel, vT)
        A.wait_vm('s0')
        bar(0, k)
        if k == 'A':
            for ks in range(2):
                for u in range(3):
                    for hh in range(2):
                        A('ds_read_b64_tr_b16 %s, %s offset:%d' % (v(vCf + 12 * ks + 4 * u + 2 * hh, 2), v(vTa), 8192 * u + 2048 * ks + 512 * hh), tag='cf')
        A('v_mov_b32 %s, 0' % v(vT + 1))
        A('buffer_load_dword %s, %s, %s, 0 offen offset:128 sc1' % (v(vNon), v(vT + 1), s(SD, 4)), tag='non')
        issue(SCHED[1], 0)
        A.wait_lg('cf')
        A.wait_vm('s1')
        bar(1, k)
        if k == 'A':
            for ks in range(2):
                for u in range(3):
                    A('v_mfma_f32_16x16x32_bf16 %s, %s, %s, %s' % (v(vCa + 4 * u, 4), v(vSel, 4), v(vCf + 12 * ks + 4 * u, 4), '0' if ks == 0 else v(vCa + 4 * u, 4)))
            A('s_lshl_b32 %s, %s, 1' % (s(sT0), s(sCg)))
            A('s_add_u32 %s, %s, %s' % (s(sT0), s(sT0), s(sJ)))
            A('s_lshl_b32 %s, %s, 4' % (s(sT1), s(sT0)))
            A('s_add_u32 %s, %s, %s' % (s(sT1), s(sT1), s(sRb)))
            A('s_lshl_b32 %s, %s, 9' % (s(sT1), s(sT1)))
            A('s_add_u32 %s, %s, 0x%x' % (s(sT1), s(sT1), WS_CS))
            A('v_and_b32 %s, 0x1ff, %s' % (v(vT), v(vL16)))
            A('v_mov_b32 %s, %s' % (v(vCa + 1), v(vCa + 4)))
            A('v_mov_b32 %s, %s' % (v(vCa + 2), v(vCa + 8)))
            A('buffer_store_dwordx4 %s, %s, %s, %s offen sc1' % (v(vCa, 4), v(vT), s(SWS, 4), s(sT1)), tag='css')
        issue(SCHED[2], 1)
        stats1()
        A.wait_vm('s2')
        bar(2, k)
        issue(SCHED[3], 2)
        stats2(k)
        A.wait_vm('s3')
        if k == 'A':
            A.wait_vm('css')
            sCf = 6
            A('s_lshl_b32 %s, %s, 1' % (s(sCf), s(sCg)))
            A('s_add_u32 %s, %s, %s' % (s(sCf), s(sCf), s(sJ)))
            A('s_lshl_b32 %s, %s, 7' % (s(sCf), s(sCf)))
            A('s_add_u32 %s, %s, 0x%x' % (s(sCf), s(sCf), WS_CSF))
            A('s_lshl_b32 %s, %s, 2' % (s(sT0), s(sRb)))
            A('s_add_u32 %s, %s, %s' % (s(sT0), s(sT0), s(sCf)))
            A('buffer_store_dword %s, %s, %s, %s offen sc1' % (v(vNon), v(vFo), s(SWS, 4), s(sT0)), tag='csf')
        bar(3, k)
        issue(SCHED[4], 3)
        A.wait_vm('s4')
        bar(4, k)
        issue(SCHED[5], 4)
        A.wait_vm('s5')
        bar(5, k)
        issue(SCHED[6], 5)
        A('v_lshlrev_b32 %s, 2, %s' % (v(vFl), v(vLane)))
        A('v_and_b32 %s, 0x7c, %s' % (v(vFl), v(vFl)))
        if k == 'A':
            csl = 'buffer_load_dword %s, %s, %s, %s offen sc1' % (v(vG), v(vFl), s(SWS, 4), s(sCf))
            A(csl, tag='csq')
            srd(A, STMP, 28, 2752)
            A('s_lshl_b32 %s, %s, 6' % (s(sT0), s(sJ)))
            A('s_add_u32 %s, %s, %s' % (s(sT1), s(sT0), s(sC1)))
            A('s_add_u32 %s, %s, %s' % (s(sT2), s(sT0), s(sC2)))
            A('s_cmp_eq_u32 %s, 1' % s(sTyp))
            A('s_cselect_b32 %s, 0x%x, %s' % (s(sT1), OOB, s(sT1)))
            A('v_lshrrev_b32 %s, 1, %s' % (v(vT), v(vFl)))
            A('buffer_load_ushort %s, %s, %s, %s offen' % (v(vB1), v(vT), s(STMP, 4), s(sT1)), tag='b1')
            A('buffer_load_ushort %s, %s, %s, %s offen' % (v(vB1 + 1), v(vT), s(STMP, 4), s(sT2)), tag='b1')
        else:
            A('s_lshl_b32 %s, %s, 1' % (s(sStat), s(sRb)))
            A('s_add_u32 %s, %s, %s' % (s(sStat), s(sStat), s(sJ)))
            A('s_lshl_b32 %s, %s, 9' % (s(sStat), s(sStat)))
            A('s_add_u32 %s, %s, 0x%x' % (s(sStat), s(sStat), WS_STAT - 1024))
            A('v_lshlrev_b32 %s, 3, %s' % (v(vTa), v(vLane)))
            stl = 'buffer_load_dwordx2 %s, %s, %s, %s offen sc1' % (v(vG, 2), v(vTa), s(SWS, 4), s(sStat))
            A(stl, tag='stq')
            zfl = 'buffer_load_dword %s, %s, %s, 0 offen sc1' % (v(vB1), v(vFl), s(SD, 4))
            A(zfl, tag='zf')
            srd(A, STMP, 20, 16384)
            A('s_lshl_b32 %s, %s, 1' % (s(sT0), s(sG)))
            A('s_add_u32 %s, %s, %s' % (s(sT0), s(sT0), s(sJ)))
            A('s_lshl_b32 %s, %s, 10' % (s(sT0), s(sT0)))
            A('s_sub_u32 %s, %s, 2048' % (s(sT0), s(sT0)))
            A('s_lshr_b32 %s, %s, 1' % (s(sT1), s(sM)))
            A('s_add_u32 m0, %s, %d' % (s(sT1), TPH - 2048))
            A('buffer_load_dwordx4 %s, %s, %s offen lds' % (v(vL16), s(STMP, 4), s(sT0)), tag='ph')
        emit(A, grp_w2(0, XP(0)))
        emit(A, grp_w2(1, WP(0)))
        A.wait_vm('s6')
        bar(6, k)
        if k == 'A':
            A.wait_vm('csq')
            poll(A, 'LCS', csl, vG, '0xffff')
            A('s_lshl_b32 %s, %s, 1' % (s(sT0), s(sCg)))
            A('s_add_u32 %s, %s, %s' % (s(sT0), s(sT0), s(sJ)))
            A('s_lshl_b32 %s, %s, 13' % (s(sT0), s(sT0)))
            A('s_add_u32 %s, %s, 0x%x' % (s(sT0), s(sT0), WS_CS))
            A('s_add_u32 %s, %s, 4096' % (s(sT1), s(sT0)))
            for i in range(8):
                A('buffer_load_dwordx4 %s, %s, %s, %s offen offset:%d sc1' % (v(vGa + 4 * i, 4), v(vL16), s(SWS, 4), s(sT0 if i < 4 else sT1), 1024 * (i & 3)), tag='ga')
        emit(A, grp_w2(2, XP(1)))
        emit(A, grp_w2(3, WP(1)))
        if k == 'B':
            A.wait_vm('ph')
            poll(A, 'LST', stl, vG + 1, None)
            A('s_lshl_b32 %s, %s, 2' % (s(sT1), s(sG)))
            A('s_lshl_b32 %s, 15, %s' % (s(sT1), s(sT1)))
            A('s_cmp_eq_u32 %s, 1' % s(sTyp))
            A('s_cselect_b32 %s, %s, 0' % (s(sT1), s(sT1)))
            poll(A, 'LZF', zfl, vB1, s(sT1), cmp_nonce=False)
            A('v_and_b32 %s, 0xffff, %s' % (v(vT), v(vG)))
            A('v_lshl_or_b32 %s, %s, 16, %s' % (v(vT), v(vG), v(vT)))
            A('v_lshrrev_b32 %s, 16, %s' % (v(vT + 1), v(vG)))
            A('v_and_b32 %s, 0xffff0000, %s' % (v(vG), v(vG)))
            A('v_rcp_f32 %s, %s' % (v(vT + 2), v(vG)))
            A('s_lshr_b32 %s, %s, 2' % (s(sT0), s(sM)))
            A('s_add_u32 %s, %s, %d' % (s(sT0), s(sT0), TB - 1024))
            A('v_add_u32 %s, %s, %s' % (v(vT + 3), s(sT0), v(vTa)))
            A('ds_write_b64 %s, %s' % (v(vT + 3), v(vT, 2)))
            A('s_lshr_b32 %s, %s, 3' % (s(sT0), s(sM)))
            A('s_add_u32 %s, %s, %d' % (s(sT0), s(sT0), TR - 512))
            A('v_lshl_add_u32 %s, %s, 2, %s' % (v(vT + 3), v(vLane), s(sT0)))
            A('ds_write_b32 %s, %s' % (v(vT + 3), v(vT + 2)))
            A('v_cmp_eq_u32 vcc, 0, %s' % v(vFl))
            A('v_cndmask_b32 %s, 0, %s, vcc' % (v(vT + 4), v(vNon)))
            A('v_add_u32 %s, %d, %s' % (v(vT + 5), TN, v(vFl)))
            A('ds_write_b32 %s, %s' % (v(vT + 5), v(vT + 4)))
        A.wait_vm('s7')
        bar(7, k)
        emit(A, grp_w2(4, XP(2)))
        emit(A, grp_w2(5, WP(2)))
        if k == 'A':
            A.wait_vm('ga')
            for st_ in (16, 8, 4):
                for r in range(st_):
                    if r & 3 != 3:
                        A('v_add_f32 %s, %s, %s' % (v(vGa + r), v(vGa + r), v(vGa + st_ + r)))
            for u in range(3):
                A('v_mov_b32 %s, %s' % (v(vGa + 4 + u), v(vGa + u)))
            for u in range(3):
                A('v_permlane32_swap_b32 %s, %s' % (v(vGa + u), v(vGa + 4 + u)))
            for u in range(3):
                A('v_add_f32 %s, %s, %s' % (v(vGa + u), v(vGa + u), v(vGa + 4 + u)))
            A('s_mul_i32 %s, %s, 768' % (s(sT0), s(sJ)))
            A('s_add_u32 %s, %s, %d' % (s(sT0), s(sT0), TA))
            A('v_lshl_add_u32 %s, %s, 1, %s' % (v(vT), v(vFl), s(sT0)))
            for u in range(3):
                p = vGa + 8 + 2 * u
                A('v_cvt_pk_bf16_f32 %s, %s, %s' % (v(p), v(vGa + u), v(vGa + u)))
                A('v_lshlrev_b32 %s, 16, %s' % (v(p), v(p)))
                A('v_sub_f32 %s, %s, %s' % (v(p), v(vGa + u), v(p)))
                A('v_cvt_pk_bf16_f32 %s, %s, %s' % (v(p), v(vGa + u), v(p)))
                A('v_mov_b32 %s, %s' % (v(p + 1), '0' if u == 0 else v(vB1 + u - 1)))
                A('ds_write_b64 %s, %s offset:%d' % (v(vT), v(p, 2), 256 * u))
        A('s_waitcnt lgkmcnt(0)')
        A.lg = []
        if k == 'A':
            vmA = list(A.vm)
            A.branch('s_branch L_JOIN')
    A.label('L_JOIN')
    vmB = list(A.vm)
    assert vmA == vmB[len(vmB) - len(vmA):] or vmB == vmA[len(vmA) - len(vmB):], (vmA, vmB)
    A.vm = vmA if len(vmA) > len(vmB) else vmB
    A('s_barrier')
    stamp(A, 3)
    vAcc, vW, vR = 0, 64, 176
    vA0, vA1 = 226, 227
    emit(A, grp_w2(6, XP(3)))
    emit(A, grp_w2(10, WP(3)))
    tr_addr(A, vA0, vT, 4, None)
    A('s_lshl_b32 %s, %s, 1' % (s(sT0), s(sM)))
    A('v_add_u32 %s, %s, %s' % (v(vA0), s(sT0), v(vA0)))
    A('v_xor_b32 %s, 64, %s' % (v(vA1), v(vA0)))
    vB0 = 224
    A('v_add_u32 %s, %d, %s' % (v(vB0), L_W, v(vA0)))
    A('v_add_u32 %s, %d, %s' % (v(vB0 + 1), L_W, v(vA1)))
    vC0 = 232
    A('v_add_u32 %s, %d, %s' % (v(vC0), WP(3), v(vA0)))
    A('v_add_u32 %s, %d, %s' % (v(vC0 + 1), WP(3), v(vA1)))
    def wread(slot, lds, tag):
        if lds < L_W:
            base, off = vA0, lds
        elif lds < WP(3):
            base, off = vB0, lds - L_W
        else:
            base, off = vC0, 0
        return [('ds_read_b64_tr_b16 %s, %s offset:%d' % (v(vW + 16 * slot + 8 * c + 4 * nt + 2 * hh, 2), v(base + nt), off + 2048 * c + 1024 * hh), tag)
                for c in range(2) for nt in range(2) for hh in range(2)]
    for p in range(3):
        A.wait_vm('u%d' % (2 * p + 1))
        emit(A, wread(2 * p, XP(p), 'm'))
        emit(A, wread(2 * p + 1, WP(p), 'm'))
        A.wait_lg(None)
        emit(A, grp_w2(7 + p, WP(p)))
        emit(A, grp_wo(p))
    A.wait_vm('u6')
    stamp(A, 1, 1)
    emit(A, wread(6, XP(3), 'm'))
    A.wait_lg(None)
    emit(A, grp_wo(3))
    sFl, sAct = sA, sB
    A('s_lshl_b32 %s, %s, 3' % (s(sFl), s(sRb2)))
    A('s_add_u32 %s, %s, %s' % (s(sFl), s(sFl), s(sJ)))
    A('s_lshl_b32 %s, %s, 7' % (s(sFl), s(sFl)))
    A('s_add_u32 %s, %s, 0x%x' % (s(sFl), s(sFl), WS_F))
    vFv = 228
    fload = 'buffer_load_dword %s, %s, %s, %s offen sc1' % (v(vFv), v(vFl), s(SWS, 4), s(sFl))
    A(fload, tag='fl')
    A('s_mul_i32 %s, %s, %d' % (s(sAct), s(sRb2), 44 * 4096))
    A('s_lshl_b32 %s, %s, 15' % (s(sO[4]), s(sJ)))
    A('s_add_u32 %s, %s, %s' % (s(sO[4]), s(sO[4]), s(sAct)))
    A('s_mul_i32 %s, %s, %d' % (s(sO[5]), s(sJ), 3 * 4096))
    A('s_add_u32 %s, %s, %s' % (s(sO[5]), s(sO[5]), s(sAct)))
    A('s_lshl_b32 %s, %s, 2' % (s(sT0), s(sJ)))
    A('s_add_u32 %s, %s, %d' % (s(sT0), s(sT0), TN + 16))
    A('v_mov_b32 %s, %s' % (v(vT), s(sT0)))
    A('v_mov_b32 %s, 1' % v(vT + 1))
    A.wait_vm('wo')
    stamp(A, 2, 1)
    A('ds_write_b32 %s, %s' % (v(vT), v(vT + 1)))
    def aload(i):
        m, c = UL[i]
        A('s_add_u32 %s, %s, %d' % (s(sT1), s(sO[4] if m == 8 else sO[5]), c * 4096))
        for q in range(4):
            A('buffer_load_dwordx4 %s, %s, %s, %s offen offset:%d sc1' % (v(vR + 16 * (i % 3) + 4 * q, 4), v(vL16), s(SWS, 4), s(sT1), 1024 * q), tag='a%d' % i)
    def gate(i):
        if i in (0, 4, 8):
            A.wait_vm('fl')
            poll(A, 'LA%d' % i, fload, vFv, {0: '0xf', 4: '0xff', 8: '0x7ff'}[i])
            if i == 0:
                stamp(A, 4)
    for i in range(3):
        gate(i)
        aload(i)
    A(fload, tag='fl')
    for i in range(11):
        A.wait_vm('a%d' % i)
        if i == 0:
            stamp(A, 5)
        if i >= 7:
            A.wait_lg('b%d' % i)
        wb = vW + 16 * (i % 7)
        rb_ = vR + 16 * (i % 3)
        for c in range(2):
            for nt in range(2):
                for rt in range(2):
                    acc = vAcc + 16 * (2 * nt + rt)
                    A('v_mfma_f32_32x32x16_bf16 %s, %s, %s, %s' % (v(acc, 16), v(wb + 8 * c + 4 * nt, 4), v(rb_ + 8 * c + 4 * rt, 4), '0' if (i == 0 and c == 0) else v(acc, 16)))
        if i + 3 < 11:
            gate(i + 3)
            aload(i + 3)
            if i + 3 == 6:
                A(fload, tag='fl')
        if i < 4:
            emit(A, wread(i, WP(i), 'b%d' % (i + 7)))
        if i == 8:
            xres(A, 240, 244)
    stamp(A, 6)
    A('s_lshl_b32 %s, %s, 1' % (s(sT0), s(sM)))
    A('s_add_u32 %s, %s, %d' % (s(sT0), s(sT0), L_W))
    emit(A, reduce_write(A, vAcc, 64, sT0, 24576))
    A.branch('s_branch F_START')

def xres(A, vOo, vX):
    A('v_lshrrev_b32 %s, 3, %s' % (v(vOo), v(vLane)))
    A('v_and_b32 %s, 7, %s' % (v(vOo + 1), v(vLane)))
    A('v_lshlrev_b32 %s, 10, %s' % (v(vOo), v(vOo)))
    A('v_lshl_add_u32 %s, %s, 4, %s' % (v(vOo), v(vOo + 1), v(vOo)))
    A('s_lshl_b32 %s, %s, 3' % (s(6), s(sRb2)))
    A('s_add_u32 %s, %s, %s' % (s(6), s(6), s(sWave)))
    A('s_lshl_b32 %s, %s, 13' % (s(6), s(6)))
    A('s_lshl_b32 %s, %s, 7' % (s(7), s(sCb)))
    A('s_add_u32 %s, %s, %s' % (s(6), s(6), s(7)))
    A('buffer_load_dwordx4 %s, %s, %s, %s offen' % (v(vX, 4), v(vOo), s(SX, 4), s(6)), tag='xres')

def gen_compute(A):
    A.label('C_START')
    A.vm = []; A.lg = []
    vAcc = 0
    vWf, vXf = 96, 132
    vAp, vBp = 160, 172
    vSel0, vSel1, vSel = 180, 184, 188
    vPh = 192
    vR2, vRL = 200, 204
    vC2, vL2 = 208, 210
    vSg, vNon, vFo = 212, 213, 214
    vWa, vXr = 215, 217
    vTa, vTb, vTr, vTq, vPa = 221, 222, 223, 224, 225
    vKa, vKr, vKz = 226, 228, 230
    vT = 236
    sCh, sRg, sP2 = sA, sB, sM
    A('s_and_b32 %s, %s, 1' % (s(sCh), s(sJ)))
    A('s_lshr_b32 %s, %s, 1' % (s(sRg), s(sJ)))
    A('s_lshl_b32 %s, %s, 1' % (s(sP2), s(sRb)))
    A('s_add_u32 %s, %s, %s' % (s(sP2), s(sP2), s(sRg)))
    A('s_waitcnt lgkmcnt(0)')
    srd(A, SWS, 36, WS_SIZE)
    srd(A, SD, 34, 256)
    srd(A, SX, 16, 2048 * 1024)
    stamp(A, 0)
    A('v_mov_b32 %s, 0x%x' % (v(vT), OOB))
    A('v_cmp_eq_u32 vcc, 0, %s' % v(vLane))
    A('v_cndmask_b32 %s, %s, 0, vcc' % (v(vFo), v(vT)))
    A('s_cmp_eq_u32 %s, 1' % s(sTyp))
    A('s_cselect_b32 %s, %s, 1' % (s(sT3), s(sRb)))
    A('s_cmp_lg_u32 %s, 0' % s(sT3))
    A.branch('s_cbranch_scc1 C_NOZERO')
    for i in range(4):
        A('v_mov_b32 %s, 0' % v(vT + 4 + i))
    A('s_lshl_b32 %s, %s, 2' % (s(sT0), s(sG)))
    A('s_add_u32 %s, %s, %s' % (s(sT0), s(sT0), s(sJ)))
    A('s_mul_i32 %s, %s, %d' % (s(sT1), s(sT0), KVH))
    A('s_add_u32 %s, %s, 0x%x' % (s(sT1), s(sT1), WS_KV))
    A('v_cmp_gt_u32 vcc, 16, %s' % v(vLane))
    A('v_cndmask_b32 %s, %s, %s, vcc' % (v(vT + 1), v(vT), v(vL16)))
    with Keep(A):
        A('buffer_store_dwordx4 %s, %s, %s, %s offen sc1' % (v(vT + 4, 4), v(vL16), s(SWS, 4), s(sT1)))
        A('buffer_store_dwordx4 %s, %s, %s, %s offen offset:1024 sc1' % (v(vT + 4, 4), v(vL16), s(SWS, 4), s(sT1)))
        A('buffer_store_dwordx4 %s, %s, %s, %s offen offset:2048 sc1' % (v(vT + 4, 4), v(vT + 1), s(SWS, 4), s(sT1)))
    A.label('C_NOZERO')
    tr_addr(A, vWa, vT, 8, s(sCh))
    A('v_add_u32 %s, %d, %s' % (v(vWa), L_W, v(vWa)))
    A('v_add_u32 %s, %d, %s' % (v(vWa + 1), 49152, v(vWa)))
    A('v_lshrrev_b32 %s, 5, %s' % (v(vT), v(vLane)))
    A('v_and_b32 %s, 31, %s' % (v(vT + 1), v(vLane)))
    A('v_bfe_u32 %s, %s, 1, 3' % (v(vT + 2), v(vLane)))
    A('v_xor_b32 %s, %s, %s' % (v(vT + 2), v(vT + 2), v(vT)))
    A('v_lshlrev_b32 %s, 4, %s' % (v(vT + 2), v(vT + 2)))
    A('v_lshl_add_u32 %s, %s, 7, %s' % (v(vT + 2), v(vT + 1), v(vT + 2)))
    A('s_lshl_b32 %s, %s, 13' % (s(sT0), s(sRg)))
    A('v_add_u32 %s, %s, %s' % (v(vXr), s(sT0), v(vT + 2)))
    for tt in range(1, 4):
        A('v_xor_b32 %s, %d, %s' % (v(vXr + tt), 32 * tt, v(vXr)))
    A('v_lshlrev_b32 %s, 3, %s' % (v(vT + 2), v(vT + 1)))
    A('v_lshl_add_u32 %s, %s, 2, %s' % (v(vT + 2), v(vT), v(vT + 2)))
    A('s_mul_i32 %s, %s, 768' % (s(sT0), s(sCh)))
    A('s_add_u32 %s, %s, %d' % (s(sT0), s(sT0), TA))
    A('v_add_u32 %s, %s, %s' % (v(vTa), s(sT0), v(vT + 2)))
    A('s_lshl_b32 %s, %s, 9' % (s(sT0), s(sRg)))
    A('s_add_u32 %s, %s, %d' % (s(sT0), s(sT0), TB))
    A('v_add_u32 %s, %s, %s' % (v(vTb), s(sT0), v(vT + 2)))
    A('s_lshl_b32 %s, %s, 8' % (s(sT0), s(sRg)))
    A('s_add_u32 %s, %s, %d' % (s(sT0), s(sT0), TR))
    A('v_lshl_add_u32 %s, %s, 2, %s' % (v(vTr), v(vT + 1), s(sT0)))
    A('v_lshl_add_u32 %s, %s, 4, %s' % (v(vTq), v(vT), s(sT0)))
    A('v_bfe_u32 %s, %s, 2, 2' % (v(vT + 2), v(vLane)))
    A('v_lshl_add_u32 %s, %s, 2, %s' % (v(vT + 2), v(vT), v(vT + 2)))
    A('v_bfe_u32 %s, %s, 4, 1' % (v(vT + 3), v(vLane)))
    A('v_bfe_u32 %s, %s, 1, 1' % (v(vT + 4), v(vLane)))
    A('v_lshl_add_u32 %s, %s, 1, %s' % (v(vT + 4), v(vT + 3), v(vT + 4)))
    A('v_lshlrev_b32 %s, 3, %s' % (v(vT + 4), v(vT + 4)))
    A('v_lshl_add_u32 %s, %s, 5, %s' % (v(vPa), v(vT + 2), v(vT + 4)))
    A('s_lshl_b32 %s, %s, 10' % (s(sT0), s(sCh)))
    A('s_add_u32 %s, %s, %d' % (s(sT0), s(sT0), TPH))
    A('v_add_u32 %s, %s, %s' % (v(vPa), s(sT0), v(vPa)))
    A('v_bfe_u32 %s, %s, 2, 1' % (v(vSg), v(vLane)))
    A('v_mul_u32_u24 %s, 0x8000, %s' % (v(vSg), v(vSg)))
    A('v_lshl_or_b32 %s, %s, 16, %s' % (v(vSg), v(vSg), v(vSg)))
    for r, c in ((vC2, '2.0'), (vL2, '0x%x' % LOG2E)):
        A('v_mov_b32 %s, %s' % (v(r), c))
        A('v_mov_b32 %s, %s' % (v(r + 1), c))
    for i in range(20):
        if i & 3:
            A('v_mov_b32 %s, 0' % v(vAp + i))
    A('v_lshlrev_b32 %s, 4, %s' % (v(vT + 2), v(vT)))
    A('v_sub_u32 %s, %s, %s' % (v(vT + 2), v(vT + 1), v(vT + 2)))
    A('v_mov_b32 %s, 0x3f80' % v(vT + 4))
    A('v_mov_b32 %s, 0x3f800000' % v(vT + 5))
    def sel(dst, src, lo, hi):
        A('v_cmp_eq_u32 vcc, %d, %s' % (lo, v(src)))
        A('v_cndmask_b32 %s, 0, %s, vcc' % (v(dst), v(vT + 4)))
        A('v_cmp_eq_u32 vcc, %d, %s' % (hi, v(src)))
        A('v_cndmask_b32 %s, %s, %s, vcc' % (v(dst), v(dst), v(vT + 5)))
    for r in range(4):
        sel(vSel0 + r, vT + 2, 2 * r, 2 * r + 1)
        sel(vSel1 + r, vT + 2, 8 + 2 * r, 8 + 2 * r + 1)
    A('v_bfe_u32 %s, %s, 2, 2' % (v(vT + 2), v(vLane)))
    A('v_bfe_u32 %s, %s, 4, 1' % (v(vT + 3), v(vLane)))
    A('v_lshl_add_u32 %s, %s, 1, %s' % (v(vT + 2), v(vT + 2), v(vT + 3)))
    A('v_mul_u32_u24 %s, 272, %s' % (v(vT + 2), v(vT + 2)))
    A('v_and_b32 %s, 3, %s' % (v(vT + 3), v(vLane)))
    A('v_lshl_add_u32 %s, %s, 2, %s' % (v(vT + 2), v(vT + 3), v(vT + 2)))
    A('v_mul_u32_u24 %s, %d, %s' % (v(vKz), KVH, v(vT)))
    A('v_add_u32 %s, %s, %s' % (v(vKz), v(vKz), v(vT + 2)))
    A('v_lshl_add_u32 %s, %s, 6, %s' % (v(vT + 2), v(vT), v(vT + 2)))
    A('s_mul_i32 %s, %s, 24576' % (s(sT0), s(sJ)))
    A('s_add_u32 %s, %s, %d' % (s(sT0), s(sT0), SPARE(1)))
    A('s_add_u32 %s, %s, 2176' % (s(sT1), s(sT0)))
    A('s_cmp_eq_u32 %s, 3' % s(sJ))
    A('s_cselect_b32 %s, %d, %s' % (s(sT0), SPARE(1) + 4352, s(sT0)))
    A('s_cselect_b32 %s, %d, %s' % (s(sT1), SPARE(2) + 4352, s(sT1)))
    A('v_add_u32 %s, %s, %s' % (v(vKa), s(sT0), v(vT + 2)))
    A('v_add_u32 %s, %s, %s' % (v(vKa + 1), s(sT1), v(vT + 2)))
    A('v_lshl_add_u32 %s, %s, 2, %s' % (v(vKr), v(vLane), s(sT0)))
    A('v_lshl_add_u32 %s, %s, 2, %s' % (v(vKr + 1), v(vLane), s(sT1)))
    selector(A, vSel, vT)
    A('s_cmp_lg_u32 %s, 0' % s(sT3))
    A.branch('s_cbranch_scc1 C_NOFLAG')
    A('s_lshl_b32 %s, %s, 2' % (s(sT0), s(sG)))
    A('s_add_u32 %s, %s, %s' % (s(sT0), s(sT0), s(sJ)))
    A('s_lshl_b32 %s, %s, 2' % (s(sT0), s(sT0)))
    A('v_mov_b32 %s, 1' % v(vT))
    A('s_waitcnt vmcnt(0)')
    with Keep(A):
        A('buffer_store_dword %s, %s, %s, %s offen sc1' % (v(vT), v(vFo), s(SD, 4), s(sT0)))
    A.label('C_NOFLAG')
    if OPT['prio']:
        A('s_setprio %d' % OPT['prio'])
    A('s_cmp_eq_u32 %s, 1' % s(sTyp))
    A.branch('s_cbranch_scc1 CX_START')

    def frags(t):
        if t >= 32:
            return []
        st, k = divmod(t, 4)
        sl = st & 3
        L = []
        def wf(u):
            return [('ds_read_b64_tr_b16 %s, %s offset:%d' % (v(vWf + 12 * (t % 3) + 4 * u + 2 * hh, 2), v(vWa + (sl >> 1)), (sl & 1) * 24576 + 8192 * u + 2048 * k + 512 * hh), 'f%d' % t) for hh in range(2)]
        xf = [('ds_read_b128 %s, %s offset:%d' % (v(vXf + 8 * (t % 3) + 4 * rt, 4), v(vXr + k), 16384 * sl + 4096 * rt), 'f%d' % t) for rt in range(2)]
        return wf(0) + xf + wf(1) + wf(2)
    def softmax(D, P, M):
        A('v_max3_f32 %s, %s, %s, %s' % (v(M), v(D), v(D + 1), v(D + 2)))
        A('v_max3_f32 %s, %s, %s, %s' % (v(M + 1), v(D + 3), v(D + 4), v(D + 5)))
        A('v_max3_f32 %s, %s, %s, %s' % (v(M + 2), v(D + 6), v(D + 7), v(D + 8)))
        A('v_max3_f32 %s, %s, %s, %s' % (v(M + 3), v(D + 9), v(D + 10), v(D + 11)))
        A('v_max3_f32 %s, %s, %s, %s' % (v(M), v(M), v(D + 12), v(D + 13)))
        A('v_max3_f32 %s, %s, %s, %s' % (v(M + 1), v(M + 1), v(D + 14), v(D + 15)))
        A('v_max3_f32 %s, %s, %s, %s' % (v(M), v(M), v(M + 1), v(M + 2)))
        A('v_max_f32 %s, %s, %s' % (v(M), v(M), v(M + 3)))
        A('v_mul_f32 %s, 0x%x, %s' % (v(M), LOG2E | 0x80000000, v(M)))
        for i in range(8):
            A('v_pk_fma_f32 %s, %s, %s, %s op_sel_hi:[1,1,0]' % (v(D + 2 * i, 2), v(D + 2 * i, 2), v(vL2, 2), v(M, 2)))
        for i in range(16):
            A('v_exp_f32 %s, %s' % (v(D + i), v(D + i)))
        A('v_pk_add_f32 %s, %s, %s' % (v(M, 2), v(D, 2), v(D + 2, 2)))
        A('v_pk_add_f32 %s, %s, %s' % (v(M + 2, 2), v(D + 4, 2), v(D + 6, 2)))
        A('v_pk_add_f32 %s, %s, %s' % (v(M, 2), v(M, 2), v(D + 8, 2)))
        A('v_pk_add_f32 %s, %s, %s' % (v(M + 2, 2), v(M + 2, 2), v(D + 10, 2)))
        A('v_pk_add_f32 %s, %s, %s' % (v(M, 2), v(M, 2), v(D + 12, 2)))
        A('v_pk_add_f32 %s, %s, %s' % (v(M + 2, 2), v(M + 2, 2), v(D + 14, 2)))
        A('v_pk_add_f32 %s, %s, %s' % (v(M, 2), v(M, 2), v(M + 2, 2)))
        A('v_add_f32 %s, %s, %s' % (v(M), v(M), v(M + 1)))
        A('v_rcp_f32 %s, %s' % (v(M), v(M)))
        for i in range(8):
            A('v_pk_mul_f32 %s, %s, %s op_sel_hi:[1,0]' % (v(D + 2 * i, 2), v(D + 2 * i, 2), v(M, 2)))
        for i in range(8):
            A('v_cvt_pk_bf16_f32 %s, %s, %s' % (v(P + i), v(D + 2 * i), v(D + 2 * i + 1)))
    def scale_pack(acc, QP, rt):
        for i in range(8):
            A('v_pk_mul_f32 %s, %s, %s op_sel_hi:[1,0]' % (v(acc + 2 * i, 2), v(acc + 2 * i, 2), v(vR2 + 2 * rt, 2)))
        for i in range(8):
            A('v_cvt_pk_bf16_f32 %s, %s, %s' % (v(QP + i), v(acc + 2 * i), v(acc + 2 * i + 1)))
    def mish(acc, rt, T, U, P, so, tag):
        for i in range(8):
            A('v_pk_mul_f32 %s, %s, %s op_sel_hi:[1,0]' % (v(T + 2 * i, 2), v(acc + 2 * i, 2), v(vRL + 2 * rt, 2)))
        for i in range(16):
            A('v_exp_f32 %s, %s' % (v(T + i), v(T + i)))
        for i in range(8):
            A('v_pk_add_f32 %s, %s, %s' % (v(U + 2 * i, 2), v(T + 2 * i, 2), v(vC2, 2)))
        for i in range(8):
            A('v_pk_fma_f32 %s, %s, %s, %s' % (v(U + 2 * i, 2), v(T + 2 * i, 2), v(U + 2 * i, 2), v(vC2, 2)))
        for i in range(16):
            A('v_rcp_f32 %s, %s' % (v(U + i), v(U + i)))
        for i in range(8):
            A('v_pk_fma_f32 %s, %s, %s, %s op_sel:[0,1,0] op_sel_hi:[1,1,0]' % (v(U + 2 * i, 2), v(U + 2 * i, 2), v(vR2 + 2 * rt, 2), v(vR2 + 2 * rt, 2)))
        for i in range(8):
            A('v_pk_mul_f32 %s, %s, %s' % (v(U + 2 * i, 2), v(U + 2 * i, 2), v(acc + 2 * i, 2)))
        for i in range(8):
            A('v_cvt_pk_bf16_f32 %s, %s, %s' % (v(P + i), v(U + 2 * i), v(U + 2 * i + 1)))
        A('buffer_store_dwordx4 %s, %s, %s, %s offen offset:%d sc1' % (v(P, 4), v(vL16), s(SWS, 4), s(so), 1024 * rt), tag=tag)
        A('buffer_store_dwordx4 %s, %s, %s, %s offen offset:%d sc1' % (v(P + 4, 4), v(vL16), s(SWS, 4), s(so), 2048 + 1024 * rt), tag=tag)
    def flag(tag, so, off=0):
        A.wait_vm(tag)
        A('buffer_store_dword %s, %s, %s, %s offen offset:%d sc1' % (v(vNon), v(vFo), s(SWS, 4), s(so), off))

    vRq = 96
    for X in (0, 1):
        A.vm = []; A.lg = []
        if X:
            A.label('CX_START')
        A('s_barrier')
        stamp(A, 1)
        emit(A, frags(0))
        emit(A, frags(1))
        for t in range(32):
            st, k = divmod(t, 4)
            nxt = frags(t + 2)
            if t == 30:
                nxt = [('ds_read_b32 %s, %s offset:%d' % (v(vAp + 4 * u), v(vTa), 256 * u), 'tb') for u in range(3)]
                nxt += [('ds_read_b32 %s, %s offset:%d' % (v(vBp + 4 * rt), v(vTb), 256 * rt), 'tb') for rt in range(2)]
                nxt += [('ds_read_b32 %s, %s offset:%d' % (v(vR2 + 2 * rt), v(vTr), 128 * rt), 'tb') for rt in range(2)]
                nxt += ['v_mov_b32 %s, %d' % (v(vNon), TN), ('ds_read_b32 %s, %s' % (v(vNon), v(vNon)), 'tb')]
            if t == 31:
                nxt = [('ds_read_b64_tr_b16 %s, %s offset:%d' % (v(vPh + 4 * h + 2 * hh, 2), v(vPa), 512 * h + 256 * hh), 'ph') for h in range(2) for hh in range(2)]
            A.wait_lg('f%d' % t)
            first = 2 if k == 2 else 0
            n = 0
            for u in range(3):
                for rt in range(2):
                    acc = vAcc + 16 * (3 * rt + u)
                    w_, x_ = v(vWf + 12 * (t % 3) + 4 * u, 4), v(vXf + 8 * (t % 3) + 4 * rt, 4)
                    if X and u == 1:
                        w_, x_ = x_, w_
                    A('v_mfma_f32_32x32x16_bf16 %s, %s, %s, %s' % (v(acc, 16), w_, x_, '0' if t == 0 else v(acc, 16)))
                    if k == 2 and n == 1:
                        A.wait_lg(None)
                        A('s_barrier')
                        if st == 3:
                            stamp(A, 2)
                    if n >= first:
                        i = n - first
                        emit(A, nxt[2 * i:2 * i + 2] if i < 3 else nxt[2 * i:] if i == 3 else [])
                    n += 1
        stamp(A, 3)
        if OPT['prio']:
            A('s_setprio 0')
        A.wait_lg('tb')
        order = [(2, 0), (2, 1)] if False else []
        seq = [(0, 0), (0, 1), (1, 0), (1, 1), (2, 0), (2, 1)] if X else [(1, 0), (1, 1), (2, 0), (2, 1), (0, 0), (0, 1)]
        for u, rt in seq:
            acc = vAcc + 16 * (3 * rt + u)
            p_, q_ = v(vAp + 4 * u, 4), v(vBp + 4 * rt, 4)
            if X and u == 1:
                p_, q_ = q_, p_
            A('v_mfma_f32_32x32x16_bf16 %s, %s, %s, %s' % (v(acc, 16), p_, q_, v(acc, 16)))
        if X:
            for rt in range(2):
                for q4 in range(4):
                    A('ds_read_b128 %s, %s offset:%d' % (v(vRq + 16 * rt + 4 * q4, 4), v(vTq), 128 * rt + 32 * q4), tag='rq')
        for rt in range(2):
            A('v_mul_f32 %s, -2.0, %s' % (v(vR2 + 2 * rt + 1), v(vR2 + 2 * rt)))
            A('v_mul_f32 %s, 0x%x, %s' % (v(vRL + 2 * rt), LOG2E, v(vR2 + 2 * rt)))
        A('v_readfirstlane_b32 %s, %s' % (s(sNonce), v(vNon)))
        sOut, sFl = sO[0], sO[1]
        A('s_lshl_b32 %s, %s, 10' % (s(sFl), s(sP2)))
        A('s_add_u32 %s, %s, 0x%x' % (s(sFl), s(sFl), WS_F))
        A('s_mul_i32 %s, %s, 44' % (s(sOut), s(sP2)))
        if not X:
            A('s_lshl_b32 %s, %s, 2' % (s(sT0), s(sG)))
            A('s_add_u32 %s, %s, %s' % (s(sT0), s(sT0), s(sCh)))
            A('s_add_u32 %s, %s, %s' % (s(sOut), s(sOut), s(sT0)))
            A('s_lshl_b32 %s, %s, 12' % (s(sOut), s(sOut)))
            A('s_add_u32 %s, %s, 8192' % (s(sO[2]), s(sOut)))
            A('s_lshr_b32 %s, %s, 1' % (s(sT0), s(sG)))
            A('s_lshl_b32 %s, %s, 7' % (s(sT0), s(sT0)))
            A('s_add_u32 %s, %s, %s' % (s(sFl), s(sFl), s(sT0)))
            A('s_and_b32 %s, %s, 1' % (s(sT0), s(sG)))
            A('s_lshl_b32 %s, %s, 1' % (s(sT0), s(sT0)))
            A('s_add_u32 %s, %s, %s' % (s(sT0), s(sT0), s(sCh)))
            A('s_lshl_b32 %s, %s, 2' % (s(sT0), s(sT0)))
            A('s_add_u32 %s, %s, %s' % (s(sFl), s(sFl), s(sT0)))
            A('s_lshl_b32 %s, %s, 3' % (s(sT0), s(sP2)))
            A('s_add_u32 %s, %s, %s' % (s(sT0), s(sT0), s(sG)))
            A('s_lshl_b32 %s, %s, 1' % (s(sT0), s(sT0)))
            A('s_add_u32 %s, %s, %s' % (s(sT0), s(sT0), s(sCh)))
            A('s_lshl_b32 %s, %s, 13' % (s(sT0), s(sT0)))
            A('s_add_u32 %s, %s, 0x%x' % (s(sO[3]), s(sT0), WS_PHI))
            A('s_add_u32 %s, %s, 4096' % (s(sO[4]), s(sO[3])))
            T, U = 96, 112
            mish(vAcc + 16, 0, T, U, 128, sOut, 'h1')
            stamp(A, 1, 1)
            mish(vAcc + 64, 1, T, U, 136, sOut, 'h1')
            mish(vAcc + 32, 0, T, U, 144, sO[2], 'h2')
            stamp(A, 2, 1)
            flag('h1', sFl)
            stamp(A, 8, 1)
            mish(vAcc + 80, 1, T, U, 152, sO[2], 'h2')
            A.wait_lg('ph')
            for i in range(8):
                A('v_xor_b32 %s, %s, %s' % (v(vPh + i), v(vSg), v(vPh + i)))
            D = {(0, 0): 16, (0, 1): 32, (1, 0): 64, (1, 1): 80}
            for rt in range(2):
                QP = 96 + 8 * rt
                scale_pack(vAcc + 48 * rt, QP, rt)
                for h in range(2):
                    A('v_mfma_f32_32x32x16_bf16 %s, %s, %s, 0' % (v(D[rt, h], 16), v(vPh + 4 * h, 4), v(QP + 4 * h, 4)))
            n = 0
            for rt in range(2):
                for h in range(2):
                    P = 112 + 8 * (n & 1) if n < 2 else 0 + 8 * (n & 1)
                    softmax(D[rt, h], P, vT)
                    A('buffer_store_dwordx4 %s, %s, %s, %s offen offset:%d sc1' % (v(P, 4), v(vL16), s(SWS, 4), s(sO[3 + h]), 2048 * rt), tag='q')
                    A('buffer_store_dwordx4 %s, %s, %s, %s offen offset:%d sc1' % (v(P + 4, 4), v(vL16), s(SWS, 4), s(sO[3 + h]), 2048 * rt + 1024), tag='q')
                    if n == 0:
                        flag('h2', sFl, 16)
                    n += 1
            flag('q', sFl, 512)
            A.branch('s_branch C_P2')
        else:
            A.wait_lg('ph')
            for i in range(8):
                A('v_xor_b32 %s, %s, %s' % (v(vPh + i), v(vSg), v(vPh + i)))
            QP, VT, PT = 160, 128, 168
            D = {(0, 0): 144, (0, 1): 0, (1, 0): 16, (1, 1): 48}
            scale_pack(vAcc, QP, 0)
            for h in range(2):
                A('v_mfma_f32_32x32x16_bf16 %s, %s, %s, 0' % (v(D[0, h], 16), v(vPh + 4 * h, 4), v(QP + 4 * h, 4)))
            A.wait_lg('rq')
            for rt in range(2):
                acc = vAcc + 16 + 48 * rt
                for i in range(8):
                    A('v_pk_mul_f32 %s, %s, %s' % (v(acc + 2 * i, 2), v(acc + 2 * i, 2), v(vRq + 16 * rt + 2 * i, 2)))
                for i in range(8):
                    A('v_cvt_pk_bf16_f32 %s, %s, %s' % (v(VT + 8 * rt + i), v(acc + 2 * i), v(acc + 2 * i + 1)))
            scale_pack(vAcc + 48, PT, 1)
            for h in range(2):
                A('v_mfma_f32_32x32x16_bf16 %s, %s, %s, 0' % (v(D[1, h], 16), v(vPh + 4 * h, 4), v(PT + 4 * h, 4)))
            stamp(A, 1, 1)
            KV = [96, 112]
            Z = [64, 68]
            Pb = [72, 160]
            items = [(0, 0), (0, 1), (1, 0), (1, 1)]
            def finish(n):
                rt, h = items[n]
                d = D[rt, h]
                for i in range(8):
                    A('v_cvt_pk_bf16_f32 %s, %s, %s' % (v(PT + i), v(d + 2 * i), v(d + 2 * i + 1)))
                for c in range(2):
                    z0 = rt == 0 and c == 0
                    A('v_mfma_f32_32x32x16_bf16 %s, %s, %s, %s' % (v(KV[h], 16), v(VT + 8 * rt + 4 * c, 4), v(PT + 4 * c, 4), '0' if z0 else v(KV[h], 16)))
                    A('v_mfma_f32_16x16x32_bf16 %s, %s, %s, %s' % (v(Z[h], 4), v(vSel, 4), v(PT + 4 * c, 4), '0' if z0 else v(Z[h], 4)))
            def kvwrite(h):
                for r in range(8):
                    A('ds_write_b32 %s, %s offset:%d' % (v(vKa + h), v(KV[h] + 8 * h + r), ((r & 3) + 8 * (r >> 2)) * 16))
            for n, (rt, h) in enumerate(items):
                d = D[rt, h]
                P = Pb[n & 1]
                softmax(d, P, vT)
                A('v_mfma_f32_32x32x16_bf16 %s, %s, %s, 0' % (v(d, 16), v(P, 4), v(vSel0, 4)))
                A('v_mfma_f32_32x32x16_bf16 %s, %s, %s, %s' % (v(d, 16), v(P + 4, 4), v(vSel1, 4), v(d, 16)))
                if n:
                    finish(n - 1)
            A('s_lshl_b32 %s, %s, 1' % (s(sT0), s(sG)))
            A('s_add_u32 %s, %s, %s' % (s(sT0), s(sT0), s(sCh)))
            A('s_mul_i32 %s, %s, %d' % (s(sO[2]), s(sT0), 2 * KVH))
            A('s_add_u32 %s, %s, 0x%x' % (s(sO[2]), s(sO[2]), WS_KV))
            A('s_add_u32 %s, %s, %d' % (s(sO[3]), s(sO[2]), KVH))
            A('s_add_u32 %s, %s, %s' % (s(sOut), s(sOut), s(sT0)))
            A('s_add_u32 %s, %s, 32' % (s(sOut), s(sOut)))
            A('s_lshl_b32 %s, %s, 12' % (s(sOut), s(sOut)))
            A('s_mul_i32 %s, %s, 43' % (s(sT1), s(sT0)))
            A('s_lshr_b32 %s, %s, 7' % (s(sT1), s(sT1)))
            A('s_mul_i32 %s, %s, %d' % (s(sT1), s(sT1), 128 - 12))
            A('s_lshl_b32 %s, %s, 2' % (s(sT2), s(sT0)))
            A('s_add_u32 %s, %s, %s' % (s(sFl), s(sFl), s(sT1)))
            A('s_add_u32 %s, %s, %s' % (s(sFl), s(sFl), s(sT2)))
            finish(3)
            kvwrite(0)
            kvwrite(1)
            A('v_lshlrev_b32 %s, 2, %s' % (v(vT + 4), v(vLane)))
            A('v_cmp_gt_u32 vcc, 32, %s' % v(vLane))
            A('v_cndmask_b32 %s, %s, %s, vcc' % (v(Z[0]), v(Z[1]), v(Z[0])))
            A.wait_lg(None)
            R = 0
            stamp(A, 2, 1)
            for h in range(2):
                for t_ in range(8):
                    A('ds_read_b32 %s, %s offset:%d' % (v(R + 8 * h + t_), v(vKr + h), 272 * t_), tag='kr%d' % h)
            A('buffer_atomic_add_f32 %s, %s, %s, %s offen offset:256 sc1' % (v(Z[0]), v(vKz), s(SWS, 4), s(sO[2])), tag='at')
            for h in range(2):
                A.wait_lg('kr%d' % h)
                for t_ in range(8):
                    A('buffer_atomic_add_f32 %s, %s, %s, %s offen offset:%d sc1' % (v(R + 8 * h + t_), v(vT + 4), s(SWS, 4), s(sO[2 + h]), 272 * t_), tag='at')
            stamp(A, 8)
            vCnt = 231
            def count():
                A.wait_vm('at')
                A('v_mov_b32 %s, 1' % v(vCnt))
                A('buffer_atomic_add %s, %s, %s, %s offen offset:2176 sc0 sc1' % (v(vCnt), v(vFo), s(SWS, 4), s(sO[2])), tag='cnt')
            A('s_cmp_ge_u32 %s, 6' % s(sG))
            A.branch('s_cbranch_scc1 CX_NOH')
            sv = list(A.vm)
            T, U = 96, 112
            mish(vAcc + 32, 0, T, U, 128, sOut, 'h')
            mish(vAcc + 80, 1, T, U, 136, sOut, 'h')
            count()
            flag('h', sFl, 32)
            A.wait_vm('cnt')
            A.branch('s_branch CX_CNT')
            A.label('CX_NOH')
            A.vm = sv
            count()
            A.wait_vm('cnt')
            A.label('CX_CNT')
            A('v_readfirstlane_b32 %s, %s' % (s(sT0), v(vCnt)))
            A('s_cmp_lg_u32 %s, 31' % s(sT0))
            A.branch('s_cbranch_scc1 C_P2')
            A('s_lshr_b32 %s, %s, 1' % (s(sT0), s(sG)))
            A('s_lshl_b32 %s, %s, 7' % (s(sT0), s(sT0)))
            A('s_and_b32 %s, %s, 1' % (s(sT1), s(sG)))
            A('s_lshl_b32 %s, %s, 1' % (s(sT1), s(sT1)))
            A('s_add_u32 %s, %s, %s' % (s(sT1), s(sT1), s(sCh)))
            A('s_lshl_b32 %s, %s, 2' % (s(sT1), s(sT1)))
            A('s_add_u32 %s, %s, %s' % (s(sT0), s(sT0), s(sT1)))
            A('s_add_u32 %s, %s, 0x%x' % (s(sT0), s(sT0), WS_KD))
            A('buffer_store_dword %s, %s, %s, %s offen sc1' % (v(vNon), v(vFo), s(SWS, 4), s(sT0)))
    A.label('C_P2')
    A.vm = []; A.lg = []
    stamp(A, 4)
    PH = OPT['phr']
    vAcc = 0
    vPhi = 64
    vKv = 64 + 16 * PH
    KR = 7 - PH
    vD = 176
    vKb, vO, vWo = 208, 216, 224
    vA0, vKo, vFl, vFv = 232, 234, 235, 248
    sPhi, sKv, sFl, sKd = sO[0], sO[1], sO[2], sO[3]
    A('v_lshlrev_b32 %s, 2, %s' % (v(vFl), v(vLane)))
    A('v_and_b32 %s, 0x7c, %s' % (v(vFl), v(vFl)))
    A('s_lshl_b32 %s, %s, 3' % (s(sFl), s(sRb2)))
    A('s_add_u32 %s, %s, %s' % (s(sFl), s(sFl), s(sWave)))
    A('s_lshl_b32 %s, %s, 7' % (s(sFl), s(sFl)))
    A('s_add_u32 %s, %s, 0x%x' % (s(sFl), s(sFl), WS_F))
    qload = 'buffer_load_dword %s, %s, %s, %s offen sc1' % (v(vFv), v(vFl), s(SWS, 4), s(sFl))
    A(qload, tag='fl')
    A('s_lshl_b32 %s, %s, 7' % (s(sKd), s(sJ)))
    A('s_add_u32 %s, %s, 0x%x' % (s(sKd), s(sKd), WS_KD))
    kload = 'buffer_load_dword %s, %s, %s, %s offen sc1' % (v(vFv + 1), v(vFl), s(SWS, 4), s(sKd))
    A('s_lshl_b32 %s, %s, 2' % (s(sPhi), s(sRb2)))
    A('s_add_u32 %s, %s, %s' % (s(sPhi), s(sPhi), s(sJ)))
    A('s_lshl_b32 %s, %s, 15' % (s(sPhi), s(sPhi)))
    A('s_add_u32 %s, %s, 0x%x' % (s(sPhi), s(sPhi), WS_PHI))
    A('s_mul_i32 %s, %s, %d' % (s(sKv), s(sJ), 8 * KVH))
    A('s_add_u32 %s, %s, 0x%x' % (s(sKv), s(sKv), WS_KV))
    A('v_and_b32 %s, 31, %s' % (v(vT), v(vLane)))
    A('v_min_u32 %s, 16, %s' % (v(vT), v(vT)))
    A('v_lshrrev_b32 %s, 5, %s' % (v(vT + 1), v(vLane)))
    A('v_mul_u32_u24 %s, 17, %s' % (v(vT + 1), v(vT + 1)))
    A('v_add_lshl_u32 %s, %s, %s, 4' % (v(vKo), v(vT), v(vT + 1)))
    tr_addr(A, vA0, vT, 4, None)
    A('s_lshl_b32 %s, %s, 12' % (s(sT0), s(sJ)))
    A('v_add_u32 %s, %s, %s' % (v(vA0), s(sT0), v(vA0)))
    A('v_xor_b32 %s, 64, %s' % (v(vA0 + 1), v(vA0)))
    xres(A, 240, 244)
    def phi_load(h):
        for i in range(4):
            A('buffer_load_dwordx4 %s, %s, %s, %s offen offset:%d sc1' % (v(vPhi + 16 * (h % PH) + 4 * i, 4), v(vL16), s(SWS, 4), s(sPhi), 1024 * i), tag='phi%d' % h)
        A('s_add_u32 %s, %s, 4096' % (s(sPhi), s(sPhi)))
    def kv_load(h):
        for q in range(4):
            A('buffer_load_dwordx4 %s, %s, %s, %s offen offset:%d sc1' % (v(vKv + 16 * (h % KR) + 4 * q, 4), v(vKo), s(SWS, 4), s(sKv), q * 544), tag='kv%d' % h)
        A('s_add_u32 %s, %s, %d' % (s(sKv), s(sKv), KVH))
    A.wait_vm('fl')
    poll(A, 'CQ', qload, vFv, '0xf')
    stamp(A, 5)
    A(kload, tag='kd')
    for h in range(PH):
        phi_load(h)
    A('s_lshl_b32 %s, %s, 2' % (s(sT1), s(sJ)))
    A('s_add_u32 %s, %s, %d' % (s(sT1), s(sT1), TN + 16))
    A('v_mov_b32 %s, %s' % (v(vT), s(sT1)))
    A('s_mov_b32 %s, 0' % s(sT0))
    A.label('CW_P')
    A('ds_read_b32 %s, %s' % (v(vT + 1), v(vT)))
    A('s_waitcnt lgkmcnt(0)')
    A.lg = []
    A('v_readfirstlane_b32 %s, %s' % (s(sT1), v(vT + 1)))
    A('s_add_u32 %s, %s, 1' % (s(sT0), s(sT0)))
    A('s_cmp_gt_u32 %s, 0x%x' % (s(sT0), BOUND * 16))
    A('s_cselect_b32 %s, 1, %s' % (s(sT1), s(sT1)))
    A('s_cmp_eq_u32 %s, 0' % s(sT1))
    A.branch('s_cbranch_scc1 CW_P')
    A.wait_vm('kd')
    poll(A, 'CK', kload, vFv + 1, '0xf')
    stamp(A, 6)
    for h in range(KR):
        kv_load(h)
    for h in range(8):
        kvr = vKv + 16 * (h % KR)
        b = vPhi + 16 * (h % PH)
        A.wait_vm('kv%d' % h)
        for i in range(8):
            A('v_cvt_pk_bf16_f32 %s, %s, %s' % (v(vKb + i), v(kvr + 2 * i), v(kvr + 2 * i + 1)))
        if h + KR < 8:
            kv_load(h + KR)
        A.wait_vm('phi%d' % h)
        for rt in range(2):
            A('v_mfma_f32_32x32x16_bf16 %s, %s, %s, 0' % (v(vD + 16 * rt, 16), v(vKb, 4), v(b + 8 * rt, 4)))
        for rt in range(2):
            A('v_mfma_f32_32x32x16_bf16 %s, %s, %s, %s' % (v(vD + 16 * rt, 16), v(vKb + 4, 4), v(b + 8 * rt + 4, 4), v(vD + 16 * rt, 16)))
        for nt in range(2):
            for hh in range(2):
                A('ds_read_b64_tr_b16 %s, %s offset:%d' % (v(vWo + 4 * nt + 2 * hh, 2), v(vA0 + nt), 16384 * (h >> 1) + 2048 * (h & 1) + 1024 * hh), tag='wo')
        if h + PH < 8:
            phi_load(h + PH)
        for rt in range(2):
            d = vD + 16 * rt
            A('v_add_f32 %s, 0x358637bd, %s' % (v(d + 8), v(d + 8)))
            A('v_rcp_f32 %s, %s' % (v(d + 8), v(d + 8)))
            for i in range(4):
                A('v_pk_mul_f32 %s, %s, %s op_sel_hi:[1,0]' % (v(d + 2 * i, 2), v(d + 2 * i, 2), v(d + 8, 2)))
            for i in range(4):
                A('v_cvt_pk_bf16_f32 %s, %s, %s' % (v(vO + 4 * rt + i), v(d + 2 * i), v(d + 2 * i + 1)))
        A.wait_lg('wo')
        for rt in range(2):
            for nt in range(2):
                acc = vAcc + 16 * (2 * nt + rt)
                A('v_mfma_f32_32x32x16_bf16 %s, %s, %s, %s' % (v(acc, 16), v(vWo + 4 * nt, 4), v(vO + 4 * rt, 4), '0' if h == 0 else v(acc, 16)))
    A('s_lshl_b32 %s, %s, 12' % (s(sT0), s(sJ)))
    emit(A, reduce_write(A, vAcc, 64, sT0, 16384))

def gen_final(A):
    A.label('F_START')
    vOo, vX, t = 240, 244, 72
    srd(A, SO, 32, 2048 * 1024)
    A('s_and_b32 %s, %s, 3' % (s(sT0), s(sWave)))
    A('s_lshl_b32 %s, %s, 10' % (s(sT0), s(sT0)))
    A('s_lshr_b32 %s, %s, 2' % (s(sT1), s(sWave)))
    A('v_lshrrev_b32 %s, 3, %s' % (v(t), v(vLane)))
    A('v_bfe_u32 %s, %s, 2, 1' % (v(t + 1), v(vLane)))
    A('v_and_b32 %s, 3, %s' % (v(t + 2), v(vLane)))
    A('v_lshlrev_b32 %s, 1, %s' % (v(t + 2), v(t + 2)))
    A('v_xor_b32 %s, %s, %s' % (v(t + 2), v(t + 2), v(t)))
    A('v_xor_b32 %s, %s, %s' % (v(t + 2), v(t + 2), v(t + 1)))
    A('v_lshlrev_b32 %s, 4, %s' % (v(t + 2), v(t + 2)))
    A('v_lshl_add_u32 %s, %s, 7, %s' % (v(t + 2), v(t), v(t + 2)))
    A('v_add_u32 %s, %s, %s' % (v(t + 2), s(sT0), v(t + 2)))
    A('v_lshl_add_u32 %s, %s, 1, %s' % (v(t + 1), v(t + 1), s(sT1)))
    A('v_lshl_add_u32 %s, %s, 14, %s' % (v(t + 3), v(t + 1), v(t + 2)))
    A('v_mul_u32_u24 %s, 24576, %s' % (v(t + 1), v(t + 1)))
    A('v_add_u32 %s, %d, %s' % (v(t + 2), L_W, v(t + 2)))
    A('v_add_u32 %s, %s, %s' % (v(t + 5), v(t + 1), v(t + 2)))
    A('v_xor_b32 %s, 16, %s' % (v(t + 4), v(t + 3)))
    A('v_xor_b32 %s, 16, %s' % (v(t + 6), v(t + 5)))
    A('s_waitcnt lgkmcnt(0)')
    A.lg = []
    A('s_barrier')
    stamp(A, 7)
    R = 96
    for g in range(2):
        for p in range(4):
            for hh in range(2):
                A('ds_read_b128 %s, %s offset:%d' % (v(R + 32 * g + 8 * p + 4 * hh, 4), v(t + 3 + 2 * g + hh), 4096 * p), tag='r%d' % g)
    A('s_waitcnt vmcnt(0)')
    X = 80
    for i in range(4):
        A('v_lshlrev_b32 %s, 16, %s' % (v(X + 2 * i), v(vX + i)))
        A('v_and_b32 %s, 0xffff0000, %s' % (v(X + 2 * i + 1), v(vX + i)))
    for g in range(2):
        A.wait_lg('r%d' % g)
        r = R + 32 * g
        for i in range(4):
            A('v_pk_add_f32 %s, %s, %s' % (v(r + 2 * i, 2), v(r + 2 * i, 2), v(r + 8 + 2 * i, 2)))
            A('v_pk_add_f32 %s, %s, %s' % (v(r + 16 + 2 * i, 2), v(r + 16 + 2 * i, 2), v(r + 24 + 2 * i, 2)))
        for i in range(4):
            A('v_pk_add_f32 %s, %s, %s' % (v(r + 2 * i, 2), v(r + 2 * i, 2), v(r + 16 + 2 * i, 2)))
        for i in range(4):
            A('v_pk_add_f32 %s, %s, %s' % (v(X + 2 * i, 2), v(X + 2 * i, 2), v(r + 2 * i, 2)))
    for i in range(4):
        A('v_cvt_pk_bf16_f32 %s, %s, %s' % (v(X + i), v(X + 2 * i), v(X + 2 * i + 1)))
    A('buffer_store_dwordx4 %s, %s, %s, %s offen' % (v(X, 4), v(vOo), s(SO, 4), s(6)))
    if OPT['stamps']:
        A('s_waitcnt vmcnt(0)')
        A('s_memrealtime s[14:15]')
        A('s_waitcnt lgkmcnt(0)')
        A('s_lshl_b32 %s, s2, 3' % s(sT2))
        A('s_add_u32 %s, %s, %s' % (s(sT2), s(sT2), s(sWave)))
        A('s_lshl_b32 %s, %s, 6' % (s(sT2), s(sT2)))
        A('s_add_u32 %s, %s, 0x%x' % (s(sT2), s(sT2), WS_STAMP))
        A('v_mov_b32 %s, 0' % v(1))
        for i, r in enumerate(STREG + [14]):
            A('v_mov_b32 %s, %s' % (v(0), s(r)))
            A('buffer_store_dword %s, %s, %s, %s offen offset:%d' % (v(0), v(1), s(SWS, 4), s(sT2), 4 * i))
    A.label('L_END')
    A('s_endpgm')

def main():
    body = gen()
    out = []
    out.append('; @launch grid=(256,1,1) block=(512,1,1) lds=163840')
    out.append('.amdgcn_target "amdgcn-amd-amdhsa--gfx950"')
    out.append('.text')
    out.append('.globl %s_kernel' % NAME)
    out.append(body)
    out.append('.section .rodata,"a"')
    out.append('.p2align 6')
    out.append('''.amdhsa_kernel %s_kernel
  .amdhsa_next_free_vgpr 256
  .amdhsa_next_free_sgpr 102
  .amdhsa_accum_offset 256
  .amdhsa_group_segment_fixed_size 0
  .amdhsa_kernarg_size 88
  .amdhsa_user_sgpr_count 2
  .amdhsa_user_sgpr_kernarg_segment_ptr 1
  .amdhsa_system_sgpr_workgroup_id_x 1
.end_amdhsa_kernel
''' % NAME)
    open(sys.argv[1], 'w').write('\n'.join(out))

main()
```

```python
import sys
from asmlib import Asm, v, a, s

NAME = 'parallel_sum__linear_kernel_hedgehog__dense_activation_mish__prompt'
OPT = dict(fine=0, stamps=0, rot=1, prio=1, sched=0, slp=2, phr=4, wt0=7, wd=2, warm=1, xmap=1, xred=1, noact=0, nopoll=0, clk=0, pi=3, rslp=0, kall=1)
for arg in sys.argv[2:]:
    k, val = arg.split('=')
    OPT[k] = int(val, 0)

WS_ACT = 0x000000
WS_PHI = 0x600000
WS_KV = 0xC00000
WS_STAT = 0xC80000
WS_F = 0xC90000
WS_KD = 0xC98000
WS_CSF = 0xC99000
WS_CS = 0xCA0000
WS_STAMP = 0xD00000
WS_PART = 0xE00000
WS_SIZE = 0x1100000
KVH = 1088
PSL = 4352
OOB = 0x7f000000
LOG2E = 0x3fb8aa3b
BOUND = 0x8000

L_W = 65536
def XP(sg, j=0): return 16384 * sg + 4096 * j
def WP(sg, j=0): return L_W + 24576 * sg + 4096 * j
def SPARE(sg): return L_W + 24576 * sg + 16384
TA, TB, TR, TN, TPH = SPARE(0), SPARE(0) + 1536, SPARE(0) + 2560, SPARE(0) + 3072, SPARE(0) + 4096

SX, SQ, S1, SP1, SWS, SD, SW2, SWO, STMP = 40, 44, 48, 52, 56, 60, 64, 68, 72
SO = SQ
sNonce, sWave, sRb, sCg, sTyp, sG, sF, sRb2, sCb = 3, 4, 5, 8, 9, 10, 11, 12, 13
sT0, sT1, sT2, sT3 = 14, 15, 76, 77
sO = [78, 79, 80, 81, 82, 83]
sJ = 84
sM = 85
sA, sB = 86, 87
STREG = [88, 90, 92, 94, 96, 98, 100, 24, 38]

def srd(A, d, lo, size):
    A('s_mov_b32 %s, %s' % (s(d), s(lo)))
    A('s_mov_b32 %s, %s' % (s(d + 1), s(lo + 1)))
    A('s_mov_b32 %s, 0x%x' % (s(d + 2), size))
    A('s_mov_b32 %s, 0x20000' % s(d + 3))

def stamp(A, idx, fine=None):
    if fine is None and idx in (1, 2) and OPT['fine']:
        return
    if fine is None and idx in (4, 5, 6, 8) and OPT['fine'] == 2:
        return
    if fine is None and idx in (5, 6, 8) and OPT['fine'] == 3:
        return
    if fine is not None and OPT['fine'] != fine:
        return
    if OPT['stamps']:
        A('%s %s' % ('s_memtime' if OPT['clk'] else 's_memrealtime', s(STREG[idx], 2)))

def emit(A, L):
    for it in L:
        if isinstance(it, tuple):
            A(it[0], tag=it[1])
        else:
            A(it)

class Keep:
    def __init__(self, A): self.A = A
    def __enter__(self): self.sv = list(self.A.vm)
    def __exit__(self, *e): self.A.vm = self.sv

def poll(A, name, reload, vreg, mask, cmp_nonce=True, extra=None):
    A('s_mov_b32 %s, 0' % s(sT0))
    A.label(name + '_P')
    if cmp_nonce:
        A('v_cmp_ne_u32 vcc, %s, %s' % (s(sNonce), v(vreg)))
    else:
        A('v_cmp_eq_u32 vcc, 0, %s' % v(vreg))
    if mask is not None:
        A('s_and_b32 vcc_lo, vcc_lo, %s' % mask)
        A('s_cmp_eq_u32 vcc_lo, 0')
    else:
        A('s_cmp_eq_u64 vcc, 0')
    A.branch('s_cbranch_scc1 %s_G' % name)
    A('s_add_u32 %s, %s, 1' % (s(sT0), s(sT0)))
    A('s_cmp_gt_u32 %s, 0x%x' % (s(sT0), BOUND))
    A.branch('s_cbranch_scc1 %s_G' % name)
    if OPT['slp']:
        A('s_sleep %d' % OPT['slp'])
    with Keep(A):
        A(reload)
    A('s_waitcnt vmcnt(0)')
    A.branch('s_branch %s_P' % name)
    A.label(name + '_G')

vLane, vL16 = 255, 254

def tr_addr(A, dst, t, rowhalf, sel):
    A('v_lshrrev_b32 %s, 5, %s' % (v(t), v(vLane)))
    A('v_bfe_u32 %s, %s, 2, 2' % (v(t + 1), v(vLane)))
    A('v_mul_u32_u24 %s, %d, %s' % (v(t), rowhalf, v(t)))
    A('v_add_lshl_u32 %s, %s, %s, 7' % (v(dst), v(t), v(t + 1)))
    A('v_bfe_u32 %s, %s, 3, 1' % (v(t), v(vLane)))
    if sel:
        A('v_xor_b32 %s, %s, %s' % (v(t), sel, v(t)))
    A('v_lshl_add_u32 %s, %s, 6, %s' % (v(dst), v(t), v(dst)))
    A('v_bfe_u32 %s, %s, 4, 1' % (v(t), v(vLane)))
    A('v_lshl_add_u32 %s, %s, 5, %s' % (v(dst), v(t), v(dst)))
    A('v_and_b32 %s, 3, %s' % (v(t), v(vLane)))
    A('v_lshl_add_u32 %s, %s, 3, %s' % (v(dst), v(t), v(dst)))

def selector(A, dst, t):
    A('v_lshrrev_b32 %s, 2, %s' % (v(t), v(vLane)))
    A('v_xor_b32 %s, %s, %s' % (v(t), v(t), v(vLane)))
    A('v_and_b32 %s, 4, %s' % (v(t), v(t)))
    A('v_cmp_eq_u32 vcc, 0, %s' % v(t))
    A('v_mov_b32 %s, 0x3f803f80' % v(t + 1))
    A('v_cndmask_b32 %s, 0, %s, vcc' % (v(dst), v(t + 1)))
    for i in range(1, 4):
        A('v_mov_b32 %s, %s' % (v(dst + i), v(dst)))

def reduce_write(A, acc, t, base_s, stride):
    A('v_and_b32 %s, 31, %s' % (v(t), v(vLane)))
    A('v_lshrrev_b32 %s, 5, %s' % (v(t + 1), v(vLane)))
    A('v_xor_b32 %s, %s, %s' % (v(t + 1), v(t + 1), v(vLane)))
    A('v_and_b32 %s, 7, %s' % (v(t + 1), v(t + 1)))
    A('v_lshlrev_b32 %s, 4, %s' % (v(t + 1), v(t + 1)))
    A('v_lshl_add_u32 %s, %s, 7, %s' % (v(t), v(t), v(t + 1)))
    A('v_add_u32 %s, %s, %s' % (v(t), s(base_s), v(t)))
    for q4 in range(1, 4):
        A('v_xor_b32 %s, %d, %s' % (v(t + q4), 32 * q4, v(t)))
    for q4 in range(4):
        A('v_xor_b32 %s, 16, %s' % (v(t + 4 + q4), v(t + q4)))
        A('v_add_u32 %s, %d, %s' % (v(t + 4 + q4), 2 * stride, v(t + 4 + q4)))
    return [('ds_write_b128 %s, %s offset:%d' % (v(t + 4 * nt + q4), v(acc + 16 * (2 * nt + rt) + 4 * q4, 4), rt * stride))
            for nt in range(2) for rt in range(2) for q4 in range(4)]

def gen():
    A = Asm()
    vT = 236
    A.raw('.p2align 8')
    A.raw('.type %s_kernel,@function' % NAME)
    A.raw('%s_kernel:' % NAME)
    A('s_cmp_ge_u32 s2, 256')
    A.branch('s_cbranch_scc1 L_END')
    A('s_load_dwordx16 s[16:31], s[0:1], 0')
    A('s_load_dwordx4 s[32:35], s[0:1], 64')
    A('s_load_dwordx2 s[36:37], s[0:1], 80')
    A('s_memrealtime s[6:7]')
    A('v_and_b32 %s, 63, v0' % v(vLane))
    A('v_lshrrev_b32 %s, 6, v0' % v(vT))
    A('v_lshlrev_b32 %s, 4, %s' % (v(vL16), v(vLane)))
    A('v_readfirstlane_b32 %s, %s' % (s(sWave), v(vT)))
    A('s_and_b32 %s, s2, 7' % s(sT0))
    A('s_lshr_b32 %s, s2, 3' % s(sT1))
    A('s_and_b32 %s, %s, 1' % (s(sRb), s(sT0)))
    A('s_lshl_b32 %s, %s, 3' % (s(sRb), s(sRb)))
    A('s_and_b32 %s, %s, 7' % (s(sT2), s(sT1)))
    A('s_add_u32 %s, %s, %s' % (s(sRb), s(sRb), s(sT2)))
    A('s_lshr_b32 %s, %s, 1' % (s(sCg), s(sT0)))
    A('s_lshl_b32 %s, %s, 2' % (s(sCg), s(sCg)))
    A('s_lshr_b32 %s, %s, 3' % (s(sT2), s(sT1)))
    A('s_add_u32 %s, %s, %s' % (s(sCg), s(sCg), s(sT2)))
    A('s_and_b32 %s, %s, 1' % (s(sTyp), s(sCg)))
    A('s_lshr_b32 %s, %s, 1' % (s(sG), s(sCg)))
    A('s_lshl_b32 %s, %s, 1' % (s(sF), s(sCg)))
    A('s_add_u32 %s, %s, %s' % (s(sF), s(sF), s(sRb)))
    A('s_and_b32 %s, %s, 7' % (s(sF), s(sF)))
    if OPT['xmap']:
        A('s_lshr_b32 %s, %s, 1' % (s(sRb2), s(sT0)))
        A('s_andn2_b32 %s, 1, %s' % (s(sT2), s(sT0)))
        A('s_lshl_b32 %s, %s, 2' % (s(sT2), s(sT2)))
        A('s_add_u32 %s, %s, %s' % (s(sRb2), s(sRb2), s(sT2)))
        A('s_lshl_b32 %s, %s, 2' % (s(sRb2), s(sRb2)))
    else:
        A('s_lshl_b32 %s, %s, 2' % (s(sRb2), s(sT0)))
    A('s_and_b32 %s, %s, 3' % (s(sT2), s(sT1)))
    A('s_add_u32 %s, %s, %s' % (s(sRb2), s(sRb2), s(sT2)))
    A('s_lshr_b32 %s, %s, 2' % (s(sCb), s(sT1)))
    A('s_and_b32 %s, %s, 3' % (s(sJ), s(sWave)))
    A('s_cmp_ge_u32 %s, 4' % s(sWave))
    A.branch('s_cbranch_scc1 C_START')
    gen_loader(A)
    gen_compute(A)
    gen_final(A)
    return A.text()

def gen_loader(A):
    vXo, vP0, vP1, vP2, v2o = 224, 226, 227, 228, 229
    vFo, vNon, vG, vTa, vFl = 230, 231, 232, 234, 235
    vT = 236
    vRow = 0
    vCf = 32
    vCa = 56
    vSel = 68
    vGa = 72
    vB1 = 104
    sC1, sC2 = sA, sB
    A('s_lshl_b32 %s, %s, 7' % (s(sT0), s(sG)))
    A('s_lshl_b32 %s, %s, 8' % (s(sT1), s(sG)))
    A('s_add_u32 %s, %s, 2048' % (s(sT2), s(sT0)))
    A('s_add_u32 %s, %s, 128' % (s(sT3), s(sT1)))
    A('s_cmp_eq_u32 %s, 1' % s(sTyp))
    A('s_cselect_b32 %s, %s, %s' % (s(sC1), s(sT2), s(sT1)))
    A('s_cselect_b32 %s, %s, %s' % (s(sC2), s(sT2), s(sT3)))
    A('s_movk_i32 %s, 2752' % s(sT1))
    A('s_cselect_b32 %s, 3072, %s' % (s(sT1), s(sT1)))
    A('s_lshl_b32 %s, %s, 10' % (s(sT2), s(sTyp)))
    A('s_add_u32 %s, %s, %s' % (s(sT0), s(sT0), s(sT2)))
    A('v_lshrrev_b32 %s, 3, %s' % (v(vT), v(vLane)))
    A('v_lshrrev_b32 %s, 2, %s' % (v(vT + 1), v(vLane)))
    A('v_and_b32 %s, 4, %s' % (v(vT + 1), v(vT + 1)))
    A('v_and_b32 %s, 7, %s' % (v(vT + 2), v(vLane)))
    A('v_xor_b32 %s, %s, %s' % (v(vT + 1), v(vT + 1), v(vT + 2)))
    A('v_lshlrev_b32 %s, 4, %s' % (v(vT + 1), v(vT + 1)))
    A('v_mul_u32_u24 %s, 3072, %s' % (v(vP0), v(vT)))
    A('v_add3_u32 %s, %s, %s, %s' % (v(vP0), v(vP0), v(vT + 1), s(sT0)))
    A('v_mul_u32_u24 %s, %s, %s' % (v(vP1), s(sT1), v(vT)))
    A('v_add3_u32 %s, %s, %s, %s' % (v(vP1), v(vP1), v(vT + 1), s(sC1)))
    A('v_add_u32 %s, %s, %s' % (v(vT + 3), s(sC2), v(vT + 1)))
    A('v_mul_u32_u24 %s, 2752, %s' % (v(vP2), v(vT)))
    A('v_add_u32 %s, %s, %s' % (v(vP2), v(vP2), v(vT + 3)))
    A('v_cmp_gt_u32 vcc, 2752, %s' % v(vT + 3))
    A('v_mov_b32 %s, 0x%x' % (v(vT + 3), OOB))
    A('v_cndmask_b32 %s, %s, %s, vcc' % (v(vP2), v(vT + 3), v(vP2)))
    A('s_lshl_b32 %s, %s, 7' % (s(sT0), s(sCb)))
    A('v_lshl_add_u32 %s, %s, 10, %s' % (v(v2o), v(vT), v(vT + 1)))
    A('v_add_u32 %s, %s, %s' % (v(v2o), s(sT0), v(v2o)))
    A('v_lshrrev_b32 %s, 4, %s' % (v(vT + 1), v(vLane)))
    A('v_xor_b32 %s, %s, %s' % (v(vT + 1), v(vT + 1), v(vT + 2)))
    A('s_lshl_b32 %s, %s, 2' % (s(sT0), s(sRb)))
    A('s_add_u32 %s, %s, %s' % (s(sT0), s(sT0), s(sJ)))
    A('s_lshl_b32 %s, %s, 15' % (s(sT0), s(sT0)))
    A('v_lshlrev_b32 %s, 10, %s' % (v(vXo), v(vT)))
    A('v_lshl_add_u32 %s, %s, 4, %s' % (v(vXo), v(vT + 1), v(vXo)))
    A('v_add_u32 %s, %s, %s' % (v(vXo), s(sT0), v(vXo)))
    A('v_xor_b32 %s, 64, %s' % (v(vXo + 1), v(vXo)))
    A('s_lshl_b32 %s, %s, 11' % (s(sM), s(sJ)))
    A('s_waitcnt lgkmcnt(0)')
    srd(A, SQ, 18, 512 * 3072)
    srd(A, S1, 26, 512 * 2752)
    srd(A, SX, 16, 2048 * 1024)
    A('s_cmp_eq_u32 %s, 1' % s(sTyp))
    A('s_cselect_b32 %s, s18, s26' % s(SP1))
    A('s_cselect_b32 %s, s19, s27' % s(SP1 + 1))
    A('s_cselect_b32 %s, %s, %s' % (s(SP1 + 2), s(SQ + 2), s(S1 + 2)))
    A('s_mov_b32 %s, 0x20000' % s(SP1 + 3))
    stamp(A, 0)

    def grp_w(st):
        L = []
        L.append('s_add_u32 %s, %s, %d' % (s(sT3), s(sF), st))
        L.append('s_and_b32 %s, %s, 7' % (s(sT3), s(sT3)))
        L.append('s_lshl_b32 %s, %s, 2' % (s(sT3), s(sT3)))
        L.append('s_add_u32 %s, %s, %s' % (s(sT3), s(sT3), s(sJ)))
        L.append('s_mul_i32 %s, %s, %d' % (s(sO[0]), s(sT3), 16 * 3072))
        L.append('s_mul_i32 %s, %s, %d' % (s(sO[2]), s(sT3), 16 * 2752))
        L.append('s_add_u32 m0, %s, %d' % (s(sM), WP(st & 3)))
        L.append('s_add_u32 %s, %s, %d' % (s(sO[1]), s(sO[0]), 8 * 3072 - 1024))
        L.append(('buffer_load_dwordx4 %s, %s, %s offen lds' % (v(vP0), s(SQ, 4), s(sO[0])), 's%d' % st))
        L.append('s_add_u32 %s, %s, %d' % (s(sO[3]), s(sO[2]), 8 * 2752 - 1024))
        L.append(('buffer_load_dwordx4 %s, %s, %s offen offset:1024 lds' % (v(vP0), s(SQ, 4), s(sO[1])), 's%d' % st))
        L.append('s_cmp_eq_u32 %s, 1' % s(sTyp))
        L.append('s_cselect_b32 %s, %s, %s' % (s(sO[0]), s(sO[0]), s(sO[2])))
        L.append('s_cselect_b32 %s, %s, %s' % (s(sO[1]), s(sO[1]), s(sO[3])))
        L.append('s_add_u32 m0, %s, %d' % (s(sM), WP(st & 3) + 8192))
        L.append(('buffer_load_dwordx4 %s, %s, %s offen lds' % (v(vP1), s(SP1, 4), s(sO[0])), 's%d' % st))
        L.append(('buffer_load_dwordx4 %s, %s, %s offen offset:1024 lds' % (v(vP1), s(SP1, 4), s(sO[1])), 's%d' % st))
        L.append('s_add_u32 m0, %s, %d' % (s(sM), WP(st & 3) + 16384))
        L.append(('buffer_load_dwordx4 %s, %s, %s offen lds' % (v(vP2), s(S1, 4), s(sO[2])), 's%d' % st))
        L.append(('buffer_load_dwordx4 %s, %s, %s offen offset:1024 lds' % (v(vP2), s(S1, 4), s(sO[3])), 's%d' % st))
        return L
    def quad(vo, srdn, ldsbase, tag):
        L = []
        L.append('s_lshl_b32 m0, %s, 1' % s(sM))
        if ldsbase:
            L.append('s_add_u32 m0, m0, %d' % ldsbase)
        for i in range(4):
            if i:
                L.append('s_add_u32 %s, %s, %d' % (s(sO[i]), s(sO[0]), 7168 * i))
            L.append(('buffer_load_dwordx4 %s, %s, %s offen offset:%d lds' % (v(vo[i & 1]), s(srdn, 4), s(sO[i]), 1024 * i), tag))
        return L
    def grp_x(st):
        L = []
        L.append('s_add_u32 %s, %s, %d' % (s(sT3), s(sF), st))
        L.append('s_and_b32 %s, %s, 7' % (s(sT3), s(sT3)))
        L.append('s_lshl_b32 %s, %s, 7' % (s(sO[0]), s(sT3)))
        return L + quad((vXo, vXo + 1), SX, XP(st & 3), 's%d' % st)
    UL = [(8, 0), (8, 1), (8, 4), (8, 5), (8, 2), (8, 3), (8, 6), (8, 7), (3, 32), (3, 33), (3, 34)]
    def grp_w2(i, ldsbase):
        m, c = UL[i]
        L = ['s_mul_i32 %s, %s, %d' % (s(sO[0]), s(sJ), m * 32768)]
        if c:
            L.append('s_add_u32 %s, %s, %d' % (s(sO[0]), s(sO[0]), c * 32768))
        return L + quad((v2o, v2o), SW2, ldsbase, 'u%d' % i)
    def grp_wo(p):
        L = ['s_lshl_b32 %s, %s, 17' % (s(sO[0]), s(sJ))]
        if p:
            L.append('s_add_u32 %s, %s, %d' % (s(sO[0]), s(sO[0]), p * 32768))
        return L + quad((v2o, v2o), SWO, XP(p), 'wo')
    groups = []
    for st in range(8):
        groups += [('w', st), ('x', st)]
    SCHED = {0: [4, 2, 2, 2, 3, 3, 0], 1: [4, 2, 2, 2, 2, 2, 2], 2: [4, 2, 3, 3, 2, 2, 0], 3: [4, 3, 3, 2, 2, 2, 0]}[OPT['sched']]
    pos = [0]
    def issue(n, iv):
        for _ in range(n):
            kind, st = groups[pos[0]]
            assert st <= iv + 3 or st < 4, (st, iv)
            emit(A, grp_w(st) if kind == 'w' else grp_x(st))
            pos[0] += 1
        if iv == OPT['pi']:
            stamp(A, 2, 2)
        if iv == OPT['pi'] + 1:
            stamp(A, 5, 2)

    issue(2, -1)
    srd(A, SD, 34, 256)
    srd(A, SWS, 36, WS_SIZE)
    A('s_or_b32 %s, s2, %s' % (s(sT0), s(sWave)))
    A('v_mov_b32 %s, 0' % v(vT + 1))
    A('s_cmp_lg_u32 %s, 0' % s(sT0))
    A.branch('s_cbranch_scc1 L_NONONCE')
    A('s_or_b32 s6, s6, 1')
    A('v_mov_b32 %s, s6' % v(vT))
    with Keep(A):
        A('buffer_store_dword %s, %s, %s, 0 offen offset:128 sc1' % (v(vT), v(vT + 1), s(SD, 4)))
    A.label('L_NONONCE')
    sStat = 7
    A('s_lshl_b32 %s, %s, 4' % (s(sStat), s(sRb)))
    A('s_add_u32 %s, %s, %s' % (s(sStat), s(sStat), s(sCg)))
    A('s_lshl_b32 %s, %s, 2' % (s(sStat), s(sStat)))
    A('s_add_u32 %s, %s, %s' % (s(sStat), s(sStat), s(sJ)))
    A('s_lshl_b32 %s, %s, 11' % (s(sT0), s(sStat)))
    A('v_and_b32 %s, 32, %s' % (v(vT), v(vLane)))
    A('v_lshl_add_u32 %s, %s, 4, %s' % (v(vT), v(vT), v(vL16)))
    A('buffer_load_dwordx4 %s, %s, %s, %s offen' % (v(vRow, 4), v(vT), s(SX, 4), s(sT0)), tag='row')
    A('buffer_load_dwordx4 %s, %s, %s, %s offen offset:512' % (v(vRow + 4, 4), v(vT), s(SX, 4), s(sT0)), tag='row')
    issue(SCHED[0] - 2, -1)
    A('s_lshl_b32 %s, %s, 4' % (s(sStat), s(sStat)))
    A('s_add_u32 %s, %s, 0x%x' % (s(sStat), s(sStat), WS_STAT))
    srd(A, SW2, 30, 1376 * 1024)
    srd(A, SWO, 22, 512 * 1024)
    A('v_mov_b32 %s, 0x%x' % (v(vT), OOB))
    A('v_cmp_eq_u32 vcc, 0, %s' % v(vLane))
    A('v_cndmask_b32 %s, %s, 0, vcc' % (v(vFo), v(vT)))
    A('s_cmp_ge_u32 %s, 2' % s(sJ))
    A.branch('s_cbranch_scc1 LB_START')
    vm0 = list(A.vm)
    pos0 = pos[0]

    def xsum32(r, t):
        for ctl in ('quad_perm:[1,0,3,2]', 'quad_perm:[2,3,0,1]', 'row_half_mirror', 'row_mirror'):
            A('v_add_f32_dpp %s, %s, %s %s row_mask:0xf bank_mask:0xf' % (v(r), v(r), v(r), ctl))
        A('v_mov_b32 %s, %s' % (v(t), v(r)))
        A('v_permlane16_swap_b32 %s, %s' % (v(r), v(t)))
        A('v_add_f32 %s, %s, %s' % (v(r), v(r), v(t)))
    U = vRow + 8
    def stats1():
        A.wait_vm('row')
        for j in range(8):
            A('v_lshlrev_b32 %s, 16, %s' % (v(U + 2 * j), v(vRow + j)))
            A('v_and_b32 %s, 0xffff0000, %s' % (v(U + 2 * j + 1), v(vRow + j)))
        for j in range(4):
            A('v_add_f32 %s, %s, %s' % (v(vRow + j), v(U + j), v(U + 4 + j)))
            A('v_add_f32 %s, %s, %s' % (v(vRow + 4 + j), v(U + 8 + j), v(U + 12 + j)))
        for st_ in (4, 2, 1):
            for j in range(st_):
                A('v_add_f32 %s, %s, %s' % (v(vRow + j), v(vRow + j), v(vRow + st_ + j)))
        xsum32(vRow, vRow + 1)
        A('v_mul_f32 %s, 0xbb000000, %s' % (v(vRow), v(vRow)))
    def stats2(k):
        for j in range(16):
            A('v_add_f32 %s, %s, %s' % (v(U + j), v(U + j), v(vRow)))
        for j in range(4):
            A('v_mul_f32 %s, %s, %s' % (v(vRow + 4 + j), v(U + j), v(U + j)))
        for j in range(4, 16):
            A('v_fmac_f32 %s, %s, %s' % (v(vRow + 4 + (j & 3)), v(U + j), v(U + j)))
        r = vRow + 4
        A('v_add_f32 %s, %s, %s' % (v(r), v(r), v(r + 1)))
        A('v_add_f32 %s, %s, %s' % (v(r + 2), v(r + 2), v(r + 3)))
        A('v_add_f32 %s, %s, %s' % (v(r), v(r), v(r + 2)))
        xsum32(r, r + 1)
        A('v_mul_f32 %s, 0x3b000000, %s' % (v(r), v(r)))
        A('v_cvt_pk_bf16_f32 %s, %s, %s' % (v(r), v(r), v(r)))
        A('v_lshlrev_b32 %s, 16, %s' % (v(r), v(r)))
        A('v_add_f32 %s, 0x3727c5ac, %s' % (v(r), v(r)))
        A('v_cvt_pk_bf16_f32 %s, %s, %s' % (v(r), v(r), v(r)))
        A('v_lshlrev_b32 %s, 16, %s' % (v(r), v(r)))
        A('v_sqrt_f32 %s, %s' % (v(r), v(r)))
        A('v_cvt_pk_bf16_f32 %s, %s, %s' % (v(vG), v(vRow), v(r)))
        A.wait_vm('non')
        A('v_mov_b32 %s, 0' % v(vT + 1))
        poll(A, 'LN' + k, 'buffer_load_dword %s, %s, %s, 0 offen offset:128 sc1' % (v(vNon), v(vT + 1), s(SD, 4)), vNon, None, cmp_nonce=False)
        A('v_readfirstlane_b32 %s, %s' % (s(sNonce), v(vNon)))
        A('v_mov_b32 %s, %s' % (v(vG + 1), v(vNon)))
        A('v_and_b32 %s, 31, %s' % (v(vT), v(vLane)))
        A('v_cmp_eq_u32 vcc, 0, %s' % v(vT))
        A('v_lshrrev_b32 %s, 2, %s' % (v(vT), v(vLane)))
        A('v_mov_b32 %s, 0x%x' % (v(vT + 1), OOB))
        A('v_cndmask_b32 %s, %s, %s, vcc' % (v(vT), v(vT + 1), v(vT)))
        A('buffer_store_dwordx2 %s, %s, %s, %s offen sc1' % (v(vG, 2), v(vT), s(SWS, 4), s(sStat)), tag='pub')
    def bar(n, k):
        if n == OPT['pi'] + 1:
            stamp(A, 8, 2)
        if n == OPT['pi'] + 2:
            stamp(A, 6, 2)
        A('s_barrier')
        if n == OPT['pi']:
            stamp(A, 1, 2)
        if n == OPT['pi'] + 1:
            stamp(A, 4, 2)
        if n == 0:
            stamp(A, 1)
        if n == 4:
            stamp(A, 2)

    for k in 'AB':
        if k == 'B':
            A.label('LB_START')
            A.vm = list(vm0); A.lg = []; pos[0] = pos0
        if k == 'A':
            tr_addr(A, vTa, vT, 8, s(sJ))
            A('s_lshr_b32 %s, %s, 3' % (s(sT0), s(sRb)))
            A('s_lshl_b32 %s, %s, 12' % (s(sT0), s(sT0)))
            A('s_add_u32 %s, %s, %d' % (s(sT0), s(sT0), L_W))
            A('v_add_u32 %s, %s, %s' % (v(vTa), s(sT0), v(vTa)))
            selector(A, vSel, vT)
        A.wait_vm('s0')
        bar(0, k)
        if k == 'A':
            for ks in range(2):
                for u in range(3):
                    for hh in range(2):
                        A('ds_read_b64_tr_b16 %s, %s offset:%d' % (v(vCf + 12 * ks + 4 * u + 2 * hh, 2), v(vTa), 8192 * u + 2048 * ks + 512 * hh), tag='cf')
        A('v_mov_b32 %s, 0' % v(vT + 1))
        A('buffer_load_dword %s, %s, %s, 0 offen offset:128 sc1' % (v(vNon), v(vT + 1), s(SD, 4)), tag='non')
        issue(SCHED[1], 0)
        A.wait_lg('cf')
        A.wait_vm('s1')
        bar(1, k)
        if k == 'A':
            for ks in range(2):
                for u in range(3):
                    A('v_mfma_f32_16x16x32_bf16 %s, %s, %s, %s' % (v(vCa + 4 * u, 4), v(vSel, 4), v(vCf + 12 * ks + 4 * u, 4), '0' if ks == 0 else v(vCa + 4 * u, 4)))
            A('s_lshl_b32 %s, %s, 1' % (s(sT0), s(sCg)))
            A('s_add_u32 %s, %s, %s' % (s(sT0), s(sT0), s(sJ)))
            A('s_lshl_b32 %s, %s, 4' % (s(sT1), s(sT0)))
            A('s_add_u32 %s, %s, %s' % (s(sT1), s(sT1), s(sRb)))
            A('s_lshl_b32 %s, %s, 9' % (s(sT1), s(sT1)))
            A('s_add_u32 %s, %s, 0x%x' % (s(sT1), s(sT1), WS_CS))
            A('v_and_b32 %s, 0x1ff, %s' % (v(vT), v(vL16)))
            A('v_mov_b32 %s, %s' % (v(vCa + 1), v(vCa + 4)))
            A('v_mov_b32 %s, %s' % (v(vCa + 2), v(vCa + 8)))
            A('buffer_store_dwordx4 %s, %s, %s, %s offen sc1' % (v(vCa, 4), v(vT), s(SWS, 4), s(sT1)), tag='css')
        issue(SCHED[2], 1)
        stats1()
        A.wait_vm('s2')
        bar(2, k)
        issue(SCHED[3], 2)
        stats2(k)
        A.wait_vm('s3')
        if k == 'A':
            A.wait_vm('css')
            sCf = 6
            A('s_lshl_b32 %s, %s, 1' % (s(sCf), s(sCg)))
            A('s_add_u32 %s, %s, %s' % (s(sCf), s(sCf), s(sJ)))
            A('s_lshl_b32 %s, %s, 7' % (s(sCf), s(sCf)))
            A('s_add_u32 %s, %s, 0x%x' % (s(sCf), s(sCf), WS_CSF))
            A('s_lshl_b32 %s, %s, 2' % (s(sT0), s(sRb)))
            A('s_add_u32 %s, %s, %s' % (s(sT0), s(sT0), s(sCf)))
            A('buffer_store_dword %s, %s, %s, %s offen sc1' % (v(vNon), v(vFo), s(SWS, 4), s(sT0)), tag='csf')
        bar(3, k)
        issue(SCHED[4], 3)
        A.wait_vm('s4')
        bar(4, k)
        issue(SCHED[5], 4)
        A.wait_vm('s5')
        bar(5, k)
        issue(SCHED[6], 5)
        A('v_lshlrev_b32 %s, 2, %s' % (v(vFl), v(vLane)))
        A('v_and_b32 %s, 0x7c, %s' % (v(vFl), v(vFl)))
        if k == 'A':
            csl = 'buffer_load_dword %s, %s, %s, %s offen sc1' % (v(vG), v(vFl), s(SWS, 4), s(sCf))
            A(csl, tag='csq')
            srd(A, STMP, 28, 2752)
            A('s_lshl_b32 %s, %s, 6' % (s(sT0), s(sJ)))
            A('s_add_u32 %s, %s, %s' % (s(sT1), s(sT0), s(sC1)))
            A('s_add_u32 %s, %s, %s' % (s(sT2), s(sT0), s(sC2)))
            A('s_cmp_eq_u32 %s, 1' % s(sTyp))
            A('s_cselect_b32 %s, 0x%x, %s' % (s(sT1), OOB, s(sT1)))
            A('v_lshrrev_b32 %s, 1, %s' % (v(vT), v(vFl)))
            A('buffer_load_ushort %s, %s, %s, %s offen' % (v(vB1), v(vT), s(STMP, 4), s(sT1)), tag='b1')
            A('buffer_load_ushort %s, %s, %s, %s offen' % (v(vB1 + 1), v(vT), s(STMP, 4), s(sT2)), tag='b1')
        else:
            A('s_lshl_b32 %s, %s, 1' % (s(sStat), s(sRb)))
            A('s_add_u32 %s, %s, %s' % (s(sStat), s(sStat), s(sJ)))
            A('s_lshl_b32 %s, %s, 9' % (s(sStat), s(sStat)))
            A('s_add_u32 %s, %s, 0x%x' % (s(sStat), s(sStat), WS_STAT - 1024))
            A('v_lshlrev_b32 %s, 3, %s' % (v(vTa), v(vLane)))
            stl = 'buffer_load_dwordx2 %s, %s, %s, %s offen sc1' % (v(vG, 2), v(vTa), s(SWS, 4), s(sStat))
            A(stl, tag='stq')
            zfl = 'buffer_load_dword %s, %s, %s, 0 offen sc1' % (v(vB1), v(vFl), s(SD, 4))
            A(zfl, tag='zf')
            srd(A, STMP, 20, 16384)
            A('s_lshl_b32 %s, %s, 1' % (s(sT0), s(sG)))
            A('s_add_u32 %s, %s, %s' % (s(sT0), s(sT0), s(sJ)))
            A('s_lshl_b32 %s, %s, 10' % (s(sT0), s(sT0)))
            A('s_sub_u32 %s, %s, 2048' % (s(sT0), s(sT0)))
            A('s_lshr_b32 %s, %s, 1' % (s(sT1), s(sM)))
            A('s_add_u32 m0, %s, %d' % (s(sT1), TPH - 2048))
            A('buffer_load_dwordx4 %s, %s, %s offen lds' % (v(vL16), s(STMP, 4), s(sT0)), tag='ph')
        emit(A, grp_w2(0, XP(0)))
        emit(A, grp_w2(1, WP(0)))
        A.wait_vm('s6')
        bar(6, k)
        if k == 'A':
            A.wait_vm('csq')
            poll(A, 'LCS', csl, vG, '0xffff')
            A('s_lshl_b32 %s, %s, 1' % (s(sT0), s(sCg)))
            A('s_add_u32 %s, %s, %s' % (s(sT0), s(sT0), s(sJ)))
            A('s_lshl_b32 %s, %s, 13' % (s(sT0), s(sT0)))
            A('s_add_u32 %s, %s, 0x%x' % (s(sT0), s(sT0), WS_CS))
            A('s_add_u32 %s, %s, 4096' % (s(sT1), s(sT0)))
            for i in range(8):
                A('buffer_load_dwordx4 %s, %s, %s, %s offen offset:%d sc1' % (v(vGa + 4 * i, 4), v(vL16), s(SWS, 4), s(sT0 if i < 4 else sT1), 1024 * (i & 3)), tag='ga')
        emit(A, grp_w2(2, XP(1)))
        emit(A, grp_w2(3, WP(1)))
        if k == 'B':
            A.wait_vm('ph')
            poll(A, 'LST', stl, vG + 1, None)
            poll(A, 'LZF', zfl, vB1, None, cmp_nonce=False)
            A('v_and_b32 %s, 0xffff, %s' % (v(vT), v(vG)))
            A('v_lshl_or_b32 %s, %s, 16, %s' % (v(vT), v(vG), v(vT)))
            A('v_lshrrev_b32 %s, 16, %s' % (v(vT + 1), v(vG)))
            A('v_and_b32 %s, 0xffff0000, %s' % (v(vG), v(vG)))
            A('v_rcp_f32 %s, %s' % (v(vT + 2), v(vG)))
            A('s_lshr_b32 %s, %s, 2' % (s(sT0), s(sM)))
            A('s_add_u32 %s, %s, %d' % (s(sT0), s(sT0), TB - 1024))
            A('v_add_u32 %s, %s, %s' % (v(vT + 3), s(sT0), v(vTa)))
            A('ds_write_b64 %s, %s' % (v(vT + 3), v(vT, 2)))
            A('s_lshr_b32 %s, %s, 3' % (s(sT0), s(sM)))
            A('s_add_u32 %s, %s, %d' % (s(sT0), s(sT0), TR - 512))
            A('v_lshl_add_u32 %s, %s, 2, %s' % (v(vT + 3), v(vLane), s(sT0)))
            A('ds_write_b32 %s, %s' % (v(vT + 3), v(vT + 2)))
            A('v_cmp_eq_u32 vcc, 0, %s' % v(vFl))
            A('v_cndmask_b32 %s, 0, %s, vcc' % (v(vT + 4), v(vNon)))
            A('v_add_u32 %s, %d, %s' % (v(vT + 5), TN, v(vFl)))
            A('ds_write_b32 %s, %s' % (v(vT + 5), v(vT + 4)))
        A.wait_vm('s7')
        bar(7, k)
        emit(A, grp_w2(4, XP(2)))
        emit(A, grp_w2(5, WP(2)))
        if k == 'A':
            A.wait_vm('ga')
            for st_ in (16, 8, 4):
                for r in range(st_):
                    if r & 3 != 3:
                        A('v_add_f32 %s, %s, %s' % (v(vGa + r), v(vGa + r), v(vGa + st_ + r)))
            for u in range(3):
                A('v_mov_b32 %s, %s' % (v(vGa + 4 + u), v(vGa + u)))
            for u in range(3):
                A('v_permlane32_swap_b32 %s, %s' % (v(vGa + u), v(vGa + 4 + u)))
            for u in range(3):
                A('v_add_f32 %s, %s, %s' % (v(vGa + u), v(vGa + u), v(vGa + 4 + u)))
            A('s_mul_i32 %s, %s, 768' % (s(sT0), s(sJ)))
            A('s_add_u32 %s, %s, %d' % (s(sT0), s(sT0), TA))
            A('v_lshl_add_u32 %s, %s, 1, %s' % (v(vT), v(vFl), s(sT0)))
            for u in range(3):
                p = vGa + 8 + 2 * u
                A('v_cvt_pk_bf16_f32 %s, %s, %s' % (v(p), v(vGa + u), v(vGa + u)))
                A('v_lshlrev_b32 %s, 16, %s' % (v(p), v(p)))
                A('v_sub_f32 %s, %s, %s' % (v(p), v(vGa + u), v(p)))
                A('v_cvt_pk_bf16_f32 %s, %s, %s' % (v(p), v(vGa + u), v(p)))
                A('v_mov_b32 %s, %s' % (v(p + 1), '0' if u == 0 else v(vB1 + u - 1)))
                A('ds_write_b64 %s, %s offset:%d' % (v(vT), v(p, 2), 256 * u))
        A('s_waitcnt lgkmcnt(0)')
        A.lg = []
        if k == 'A':
            vmA = list(A.vm)
            A.branch('s_branch L_JOIN')
    A.label('L_JOIN')
    vmB = list(A.vm)
    assert vmA == vmB[len(vmB) - len(vmA):] or vmB == vmA[len(vmA) - len(vmB):], (vmA, vmB)
    A.vm = vmA if len(vmA) > len(vmB) else vmB
    A('s_barrier')
    stamp(A, 3)
    vAcc, vW, vR = 0, 64, 176
    vA0, vA1 = 226, 227
    emit(A, grp_w2(6, XP(3)))
    emit(A, grp_w2(10, WP(3)))
    tr_addr(A, vA0, vT, 4, None)
    A('s_lshl_b32 %s, %s, 1' % (s(sT0), s(sM)))
    A('v_add_u32 %s, %s, %s' % (v(vA0), s(sT0), v(vA0)))
    A('v_xor_b32 %s, 64, %s' % (v(vA1), v(vA0)))
    vB0 = 224
    A('v_add_u32 %s, %d, %s' % (v(vB0), L_W, v(vA0)))
    A('v_add_u32 %s, %d, %s' % (v(vB0 + 1), L_W, v(vA1)))
    vC0 = 232
    A('v_add_u32 %s, %d, %s' % (v(vC0), WP(3), v(vA0)))
    A('v_add_u32 %s, %d, %s' % (v(vC0 + 1), WP(3), v(vA1)))
    def wread(slot, lds, tag):
        if lds < L_W:
            base, off = vA0, lds
        elif lds < WP(3):
            base, off = vB0, lds - L_W
        else:
            base, off = vC0, 0
        return [('ds_read_b64_tr_b16 %s, %s offset:%d' % (v(vW + 16 * slot + 8 * c + 4 * nt + 2 * hh, 2), v(base + nt), off + 2048 * c + 1024 * hh), tag)
                for c in range(2) for nt in range(2) for hh in range(2)]
    for p in range(3):
        A.wait_vm('u%d' % (2 * p + 1))
        emit(A, wread(2 * p, XP(p), 'm'))
        emit(A, wread(2 * p + 1, WP(p), 'm'))
        A.wait_lg(None)
        emit(A, grp_w2(7 + p, WP(p)))
        emit(A, grp_wo(p))
    A.wait_vm('u6')
    stamp(A, 1, 1)
    emit(A, wread(6, XP(3), 'm'))
    A.wait_lg(None)
    emit(A, grp_wo(3))
    sFl, sAct = sA, sB
    A('s_lshl_b32 %s, %s, 3' % (s(sFl), s(sRb2)))
    A('s_add_u32 %s, %s, %s' % (s(sFl), s(sFl), s(sJ)))
    A('s_lshl_b32 %s, %s, 7' % (s(sFl), s(sFl)))
    A('s_add_u32 %s, %s, 0x%x' % (s(sFl), s(sFl), WS_F))
    vFv = 228
    fload = 'buffer_load_dword %s, %s, %s, %s offen sc1' % (v(vFv), v(vFl), s(SWS, 4), s(sFl))
    A(fload, tag='fl')
    A('s_mul_i32 %s, %s, %d' % (s(sAct), s(sRb2), 44 * 4096))
    A('s_lshl_b32 %s, %s, 15' % (s(sO[4]), s(sJ)))
    A('s_add_u32 %s, %s, %s' % (s(sO[4]), s(sO[4]), s(sAct)))
    A('s_mul_i32 %s, %s, %d' % (s(sO[5]), s(sJ), 3 * 4096))
    A('s_add_u32 %s, %s, %s' % (s(sO[5]), s(sO[5]), s(sAct)))
    A('s_lshl_b32 %s, %s, 2' % (s(sT0), s(sJ)))
    A('s_add_u32 %s, %s, %d' % (s(sT0), s(sT0), TN + 16))
    A('v_mov_b32 %s, %s' % (v(vT), s(sT0)))
    A('v_mov_b32 %s, 1' % v(vT + 1))
    A.wait_vm('wo')
    stamp(A, 2, 1)
    A('ds_write_b32 %s, %s' % (v(vT), v(vT + 1)))
    def aload(i):
        if OPT['noact']:
            return
        m, c = UL[i]
        A('s_add_u32 %s, %s, %d' % (s(sT1), s(sO[4] if m == 8 else sO[5]), c * 4096))
        for q in range(4):
            A('buffer_load_dwordx4 %s, %s, %s, %s offen offset:%d sc1' % (v(vR + 16 * (i % 3) + 4 * q, 4), v(vL16), s(SWS, 4), s(sT1), 1024 * q), tag='a%d' % i)
    def gate(i):
        if i in (0, 4, 8) and not OPT['nopoll']:
            A.wait_vm('fl')
            poll(A, 'LA%d' % i, fload, vFv, {0: '0xf', 4: '0xff', 8: '0x7ff'}[i])
            if i == 0:
                stamp(A, 4)
    for i in range(3):
        gate(i)
        aload(i)
    A(fload, tag='fl')
    for i in range(11):
        A.wait_vm('a%d' % i)
        if i == 0:
            stamp(A, 5)
        if i >= 7:
            A.wait_lg('b%d' % i)
        wb = vW + 16 * (i % 7)
        rb_ = vR + 16 * (i % 3)
        for c in range(2):
            for nt in range(2):
                for rt in range(2):
                    acc = vAcc + 16 * (2 * nt + rt)
                    A('v_mfma_f32_32x32x16_bf16 %s, %s, %s, %s' % (v(acc, 16), v(wb + 8 * c + 4 * nt, 4), v(rb_ + 8 * c + 4 * rt, 4), '0' if (i == 0 and c == 0) else v(acc, 16)))
        if i + 3 < 11:
            gate(i + 3)
            aload(i + 3)
            if i + 3 == 6:
                A(fload, tag='fl')
        if i < 4:
            emit(A, wread(i, WP(i), 'b%d' % (i + 7)))
        if i == 8:
            xres(A, 240, 244)
    stamp(A, 6)
    A('s_lshl_b32 %s, %s, 1' % (s(sT0), s(sM)))
    A('s_add_u32 %s, %s, %d' % (s(sT0), s(sT0), L_W))
    emit(A, reduce_write(A, vAcc, 64, sT0, 24576))
    A.branch('s_branch F_START')

def xres(A, vOo, vX):
    A('v_lshrrev_b32 %s, 3, %s' % (v(vOo), v(vLane)))
    A('v_and_b32 %s, 7, %s' % (v(vOo + 1), v(vLane)))
    A('v_lshlrev_b32 %s, 10, %s' % (v(vOo), v(vOo)))
    A('v_lshl_add_u32 %s, %s, 4, %s' % (v(vOo), v(vOo + 1), v(vOo)))
    A('s_lshl_b32 %s, %s, 3' % (s(6), s(sRb2)))
    A('s_add_u32 %s, %s, %s' % (s(6), s(6), s(sWave)))
    A('s_lshl_b32 %s, %s, 13' % (s(6), s(6)))
    A('s_lshl_b32 %s, %s, 7' % (s(7), s(sCb)))
    A('s_add_u32 %s, %s, %s' % (s(6), s(6), s(7)))
    A('buffer_load_dwordx4 %s, %s, %s, %s offen' % (v(vX, 4), v(vOo), s(SX, 4), s(6)), tag='xres')

def gen_compute(A):
    A.label('C_START')
    A.vm = []; A.lg = []
    vAcc = 0
    vWf, vXf = 96, 132
    vAp, vBp = 160, 172
    vSel0, vSel1, vSel = 180, 184, 188
    vPh = 192
    vR2, vRL = 200, 204
    vC2, vL2 = 208, 210
    vSg, vNon, vFo = 212, 213, 214
    vWa, vXr = 215, 217
    vTa, vTb, vTr, vTq, vPa = 221, 222, 223, 224, 225
    vPo, vRo, vRi, vWm = 226, 234, 235, 252
    vT = 236
    sCh, sRg, sP2 = sA, sB, sM
    A('s_and_b32 %s, %s, 1' % (s(sCh), s(sJ)))
    A('s_lshr_b32 %s, %s, 1' % (s(sRg), s(sJ)))
    A('s_lshl_b32 %s, %s, 1' % (s(sP2), s(sRb)))
    A('s_add_u32 %s, %s, %s' % (s(sP2), s(sP2), s(sRg)))
    A('s_waitcnt lgkmcnt(0)')
    srd(A, SWS, 36, WS_SIZE)
    srd(A, SD, 34, 256)
    srd(A, SX, 16, 2048 * 1024)
    stamp(A, 0)
    A('v_mov_b32 %s, 0x%x' % (v(vT), OOB))
    A('v_cmp_eq_u32 vcc, 0, %s' % v(vLane))
    A('v_cndmask_b32 %s, %s, 0, vcc' % (v(vFo), v(vT)))
    sPs = sO[2]
    A('s_lshl_b32 %s, %s, 1' % (s(sPs), s(sG)))
    A('s_add_u32 %s, %s, %s' % (s(sPs), s(sPs), s(sCh)))
    A('s_lshl_b32 %s, %s, 5' % (s(sPs), s(sPs)))
    A('s_add_u32 %s, %s, %s' % (s(sPs), s(sPs), s(sP2)))
    A('s_mul_i32 %s, %s, %d' % (s(sPs), s(sPs), PSL))
    A('s_add_u32 %s, %s, 0x%x' % (s(sPs), s(sPs), WS_PART))
    A('s_cmp_eq_u32 %s, 1' % s(sTyp))
    A('s_cselect_b32 %s, %s, 1' % (s(sT3), s(sRb)))
    if OPT['warm'] & 2:
        srd(A, SW2, 30, 1376 * 1024)
        A('s_lshl_b32 %s, s2, 2' % s(sT0))
        A('s_add_u32 %s, %s, %s' % (s(sT0), s(sT0), s(sJ)))
        A('s_lshl_b32 %s, %s, 11' % (s(sT0), s(sT0)))
        A('s_sub_u32 %s, %s, %d' % (s(sT1), s(sT0), 1376 * 1024))
        A('s_cmp_ge_u32 %s, %d' % (s(sT0), 1376 * 1024))
        A('s_cselect_b32 %s, %s, %s' % (s(sT0), s(sT1), s(sT0)))
        A('s_cselect_b32 %s, s22, s30' % s(SW2))
        A('s_cselect_b32 %s, s23, s31' % s(SW2 + 1))
        A('s_cselect_b32 %s, %d, %s' % (s(SW2 + 2), 512 * 1024, s(SW2 + 2)))
        A('v_lshrrev_b32 %s, 2, %s' % (v(vT + 2), v(vLane)))
        A('v_and_b32 %s, 3, %s' % (v(vT + 3), v(vLane)))
        A('v_lshlrev_b32 %s, 2, %s' % (v(vT + 3), v(vT + 3)))
        A('v_lshl_add_u32 %s, %s, 7, %s' % (v(vT + 2), v(vT + 2), v(vT + 3)))
        A('v_add_u32 %s, %s, %s' % (v(vWm), s(sT0), v(vT + 2)))
        if OPT['wt0'] < 0 or OPT['warm'] == 3:
            with Keep(A):
                A('buffer_load_dword %s, %s, %s, 0 offen' % (v(vWm + 1), v(vWm), s(SW2, 4)))
    A('s_cmp_lg_u32 %s, 0' % s(sT3))
    A.branch('s_cbranch_scc1 C_NOZERO')
    for i in range(4):
        A('v_mov_b32 %s, -1' % v(vT + 4 + i))
    A('s_lshl_b32 %s, %s, 2' % (s(sT0), s(sG)))
    A('s_add_u32 %s, %s, %s' % (s(sT0), s(sT0), s(sJ)))
    A('s_mul_i32 %s, %s, %d' % (s(sT1), s(sT0), KVH))
    A('s_add_u32 %s, %s, 0x%x' % (s(sT1), s(sT1), WS_KV))
    A('v_cmp_gt_u32 vcc, 4, %s' % v(vLane))
    A('v_cndmask_b32 %s, %s, %s, vcc' % (v(vT + 1), v(vT), v(vL16)))
    with Keep(A):
        A('buffer_store_dwordx4 %s, %s, %s, %s offen sc1' % (v(vT + 4, 4), v(vL16), s(SWS, 4), s(sT1)))
        A('buffer_store_dwordx4 %s, %s, %s, %s offen offset:1024 sc1' % (v(vT + 4, 4), v(vT + 1), s(SWS, 4), s(sT1)))
    A.label('C_NOZERO')
    tr_addr(A, vWa, vT, 8, s(sCh))
    A('v_add_u32 %s, %d, %s' % (v(vWa), L_W, v(vWa)))
    A('v_add_u32 %s, %d, %s' % (v(vWa + 1), 49152, v(vWa)))
    A('v_lshrrev_b32 %s, 5, %s' % (v(vT), v(vLane)))
    A('v_and_b32 %s, 31, %s' % (v(vT + 1), v(vLane)))
    A('v_bfe_u32 %s, %s, 1, 3' % (v(vT + 2), v(vLane)))
    A('v_xor_b32 %s, %s, %s' % (v(vT + 2), v(vT + 2), v(vT)))
    A('v_lshlrev_b32 %s, 4, %s' % (v(vT + 2), v(vT + 2)))
    A('v_lshl_add_u32 %s, %s, 7, %s' % (v(vT + 2), v(vT + 1), v(vT + 2)))
    A('s_lshl_b32 %s, %s, 13' % (s(sT0), s(sRg)))
    A('v_add_u32 %s, %s, %s' % (v(vXr), s(sT0), v(vT + 2)))
    for tt in range(1, 4):
        A('v_xor_b32 %s, %d, %s' % (v(vXr + tt), 32 * tt, v(vXr)))
    A('v_lshlrev_b32 %s, 3, %s' % (v(vT + 2), v(vT + 1)))
    A('v_lshl_add_u32 %s, %s, 2, %s' % (v(vT + 2), v(vT), v(vT + 2)))
    A('s_mul_i32 %s, %s, 768' % (s(sT0), s(sCh)))
    A('s_add_u32 %s, %s, %d' % (s(sT0), s(sT0), TA))
    A('v_add_u32 %s, %s, %s' % (v(vTa), s(sT0), v(vT + 2)))
    A('s_lshl_b32 %s, %s, 9' % (s(sT0), s(sRg)))
    A('s_add_u32 %s, %s, %d' % (s(sT0), s(sT0), TB))
    A('v_add_u32 %s, %s, %s' % (v(vTb), s(sT0), v(vT + 2)))
    A('s_lshl_b32 %s, %s, 8' % (s(sT0), s(sRg)))
    A('s_add_u32 %s, %s, %d' % (s(sT0), s(sT0), TR))
    A('v_lshl_add_u32 %s, %s, 2, %s' % (v(vTr), v(vT + 1), s(sT0)))
    A('v_lshl_add_u32 %s, %s, 4, %s' % (v(vTq), v(vT), s(sT0)))
    A('v_bfe_u32 %s, %s, 2, 2' % (v(vT + 2), v(vLane)))
    A('v_lshl_add_u32 %s, %s, 2, %s' % (v(vT + 2), v(vT), v(vT + 2)))
    A('v_bfe_u32 %s, %s, 4, 1' % (v(vT + 3), v(vLane)))
    A('v_bfe_u32 %s, %s, 1, 1' % (v(vT + 4), v(vLane)))
    A('v_lshl_add_u32 %s, %s, 1, %s' % (v(vT + 4), v(vT + 3), v(vT + 4)))
    A('v_lshlrev_b32 %s, 3, %s' % (v(vT + 4), v(vT + 4)))
    A('v_lshl_add_u32 %s, %s, 5, %s' % (v(vPa), v(vT + 2), v(vT + 4)))
    A('s_lshl_b32 %s, %s, 10' % (s(sT0), s(sCh)))
    A('s_add_u32 %s, %s, %d' % (s(sT0), s(sT0), TPH))
    A('v_add_u32 %s, %s, %s' % (v(vPa), s(sT0), v(vPa)))
    A('v_bfe_u32 %s, %s, 2, 1' % (v(vSg), v(vLane)))
    A('v_mul_u32_u24 %s, 0x8000, %s' % (v(vSg), v(vSg)))
    A('v_lshl_or_b32 %s, %s, 16, %s' % (v(vSg), v(vSg), v(vSg)))
    for r, c in ((vC2, '2.0'), (vL2, '0x%x' % LOG2E)):
        A('v_mov_b32 %s, %s' % (v(r), c))
        A('v_mov_b32 %s, %s' % (v(r + 1), c))
    for i in range(20):
        if i & 3:
            A('v_mov_b32 %s, 0' % v(vAp + i))
    A('v_lshrrev_b32 %s, 3, %s' % (v(vT + 2), v(vT + 1)))
    A('v_and_b32 %s, 3, %s' % (v(vT + 3), v(vLane)))
    A('v_lshl_add_u32 %s, %s, 2, %s' % (v(vT + 2), v(vT + 2), v(vT + 3)))
    A('v_bfe_u32 %s, %s, 2, 1' % (v(vT + 3), v(vLane)))
    A('v_xor_b32 %s, %s, %s' % (v(vT + 3), v(vT + 3), v(vT)))
    A('v_lshl_add_u32 %s, %s, 5, %s' % (v(vT + 2), v(vT + 3), v(vT + 2)))
    A('v_mov_b32 %s, 0x3f80' % v(vT + 4))
    A('v_mov_b32 %s, 0x3f800000' % v(vT + 5))
    def sel(dst, src, lo, hi):
        A('v_cmp_eq_u32 vcc, %d, %s' % (lo, v(src)))
        A('v_cndmask_b32 %s, 0, %s, vcc' % (v(dst), v(vT + 4)))
        A('v_cmp_eq_u32 vcc, %d, %s' % (hi, v(src)))
        A('v_cndmask_b32 %s, %s, %s, vcc' % (v(dst), v(dst), v(vT + 5)))
    for r in range(4):
        sel(vSel0 + r, vT + 2, 2 * r, 2 * r + 1)
        sel(vSel1 + r, vT + 2, 8 + 2 * r, 8 + 2 * r + 1)
    A('v_and_b32 %s, 15, %s' % (v(vT + 2), v(vLane)))
    A('v_lshlrev_b32 %s, 4, %s' % (v(vT + 3), v(vT + 2)))
    A('v_lshl_add_u32 %s, %s, 8, %s' % (v(vT + 4), v(vT), v(vT + 3)))
    A('v_lshlrev_b32 %s, 4, %s' % (v(vT + 5), v(vT)))
    A('v_add_u32 %s, 4096, %s' % (v(vT + 5), v(vT + 5)))
    A('v_mov_b32 %s, 0x%x' % (v(vT + 6), OOB))
    A('v_cmp_eq_u32 vcc, 0, %s' % v(vT + 2))
    A('v_cndmask_b32 %s, %s, %s, vcc' % (v(vT + 5), v(vT + 6), v(vT + 5)))
    A('v_cmp_gt_u32 vcc, 16, %s' % v(vT + 1))
    for h in range(2):
        for q in range(4):
            A('v_add_u32 %s, %d, %s' % (v(vT + 7), 1024 * q + 512 * h, v(vT + 4)))
            A('v_add_u32 %s, %d, %s' % (v(vT + 8), 64 * q + 32 * h, v(vT + 5)))
            A('v_cndmask_b32 %s, %s, %s, vcc' % (v(vPo + 4 * h + q), v(vT + 8 - h), v(vT + 7 + h)))
    A('v_lshrrev_b32 %s, 4, %s' % (v(vT + 4), v(vLane)))
    A('v_mul_u32_u24 %s, %d, %s' % (v(vRi), PSL, v(vT + 4)))
    A('v_add_u32 %s, %s, %s' % (v(vRi), v(vRi), v(vT + 3)))
    A('s_cmp_eq_u32 %s, 0' % s(sRg))
    A('s_cselect_b64 vcc, -1, 0')
    A('v_mov_b32 %s, %s' % (v(vT + 5), s(sRb)))
    A('v_cndmask_b32 %s, %s, %s, vcc' % (v(vT + 5), v(vT + 2), v(vT + 5)))
    A('v_cndmask_b32 %s, 16, %s, vcc' % (v(vT + 2), v(vT + 2)))
    A('v_and_b32 %s, 1, %s' % (v(vT + 7), v(vT + 5)))
    A('v_mul_u32_u24 %s, 17, %s' % (v(vT + 7), v(vT + 7)))
    A('v_add_lshl_u32 %s, %s, %s, 4' % (v(vRo), v(vT + 7), v(vT + 2)))
    A('v_bfe_u32 %s, %s, 1, 1' % (v(vT + 7), v(vT + 5)))
    A('v_mul_u32_u24 %s, %d, %s' % (v(vT + 7), KVH, v(vT + 7)))
    A('v_add_u32 %s, %s, %s' % (v(vRo), v(vRo), v(vT + 7)))
    A('v_bfe_u32 %s, %s, 2, 1' % (v(vT + 7), v(vT + 5)))
    A('v_lshl_add_u32 %s, %s, 3, %s' % (v(vRo), v(vT + 7), v(vRo)))
    A('v_lshrrev_b32 %s, 3, %s' % (v(vT + 7), v(vT + 5)))
    A('v_mul_u32_u24 %s, 544, %s' % (v(vT + 7), v(vT + 7)))
    A('v_add_u32 %s, %s, %s' % (v(vRo), v(vRo), v(vT + 7)))
    A('v_cmp_eq_u32 vcc, 0, %s' % v(vT + 4))
    A('v_cndmask_b32 %s, %s, %s, vcc' % (v(vRo), v(vT + 6), v(vRo)))
    if OPT['warm'] & 1:
        srd(A, SW2, 30, 1376 * 1024)
        srd(A, SWO, 22, 512 * 1024)
        A('v_lshrrev_b32 %s, 2, %s' % (v(vT + 2), v(vT + 1)))
        A('v_and_b32 %s, 3, %s' % (v(vT + 3), v(vLane)))
        A('v_lshlrev_b32 %s, 2, %s' % (v(vT + 3), v(vT + 3)))
        A('v_lshl_add_u32 %s, %s, 7, %s' % (v(vT + 2), v(vT + 2), v(vT + 3)))
        A('v_lshl_add_u32 %s, %s, 15, %s' % (v(vT + 2), v(vT), v(vT + 2)))
        A('s_lshr_b32 %s, s2, 3' % s(sT0))
        A('s_lshl_b32 %s, %s, 10' % (s(sT0), s(sT0)))
        A('v_add_u32 %s, %s, %s' % (v(vWm), s(sT0), v(vT + 2)))
        A('s_lshl_b32 %s, %s, 18' % (s(sO[3]), s(sJ)))
        A('s_mul_i32 %s, %s, %d' % (s(sO[4]), s(sJ), 3 * 32768))
        A('s_lshl_b32 %s, %s, 17' % (s(sO[5]), s(sJ)))
    A('s_lshl_b32 %s, %s, 2' % (s(sT0), s(sG)))
    A('s_add_u32 %s, %s, %s' % (s(sT0), s(sT0), s(sJ)))
    A('s_lshl_b32 %s, %s, 2' % (s(sT0), s(sT0)))
    A('s_cmp_lg_u32 %s, 0' % s(sT3))
    A('s_cselect_b32 %s, 0x1000, %s' % (s(sT0), s(sT0)))
    A('v_add_u32 %s, %s, %s' % (v(vT + 14), s(sT0), v(vFo)))
    A('v_mov_b32 %s, 1' % v(vT + 15))
    if OPT['prio']:
        A('s_setprio %d' % OPT['prio'])
    A('s_cmp_eq_u32 %s, 1' % s(sTyp))
    A.branch('s_cbranch_scc1 CX_START')

    def frags(t):
        if t >= 32:
            return []
        st, k = divmod(t, 4)
        sl = st & 3
        L = []
        def wf(u):
            return [('ds_read_b64_tr_b16 %s, %s offset:%d' % (v(vWf + 12 * (t % 3) + 4 * u + 2 * hh, 2), v(vWa + (sl >> 1)), (sl & 1) * 24576 + 8192 * u + 2048 * k + 512 * hh), 'f%d' % t) for hh in range(2)]
        xf = [('ds_read_b128 %s, %s offset:%d' % (v(vXf + 8 * (t % 3) + 4 * rt, 4), v(vXr + k), 16384 * sl + 4096 * rt), 'f%d' % t) for rt in range(2)]
        return wf(0) + xf + wf(1) + wf(2)
    def softmax(D, P, M):
        A('v_max3_f32 %s, %s, %s, %s' % (v(M), v(D), v(D + 1), v(D + 2)))
        A('v_max3_f32 %s, %s, %s, %s' % (v(M + 1), v(D + 3), v(D + 4), v(D + 5)))
        A('v_max3_f32 %s, %s, %s, %s' % (v(M + 2), v(D + 6), v(D + 7), v(D + 8)))
        A('v_max3_f32 %s, %s, %s, %s' % (v(M + 3), v(D + 9), v(D + 10), v(D + 11)))
        A('v_max3_f32 %s, %s, %s, %s' % (v(M), v(M), v(D + 12), v(D + 13)))
        A('v_max3_f32 %s, %s, %s, %s' % (v(M + 1), v(M + 1), v(D + 14), v(D + 15)))
        A('v_max3_f32 %s, %s, %s, %s' % (v(M), v(M), v(M + 1), v(M + 2)))
        A('v_max_f32 %s, %s, %s' % (v(M), v(M), v(M + 3)))
        A('v_mul_f32 %s, 0x%x, %s' % (v(M), LOG2E | 0x80000000, v(M)))
        for i in range(8):
            A('v_pk_fma_f32 %s, %s, %s, %s op_sel_hi:[1,1,0]' % (v(D + 2 * i, 2), v(D + 2 * i, 2), v(vL2, 2), v(M, 2)))
        for i in range(16):
            A('v_exp_f32 %s, %s' % (v(D + i), v(D + i)))
        A('v_pk_add_f32 %s, %s, %s' % (v(M, 2), v(D, 2), v(D + 2, 2)))
        A('v_pk_add_f32 %s, %s, %s' % (v(M + 2, 2), v(D + 4, 2), v(D + 6, 2)))
        A('v_pk_add_f32 %s, %s, %s' % (v(M, 2), v(M, 2), v(D + 8, 2)))
        A('v_pk_add_f32 %s, %s, %s' % (v(M + 2, 2), v(M + 2, 2), v(D + 10, 2)))
        A('v_pk_add_f32 %s, %s, %s' % (v(M, 2), v(M, 2), v(D + 12, 2)))
        A('v_pk_add_f32 %s, %s, %s' % (v(M + 2, 2), v(M + 2, 2), v(D + 14, 2)))
        A('v_pk_add_f32 %s, %s, %s' % (v(M, 2), v(M, 2), v(M + 2, 2)))
        A('v_add_f32 %s, %s, %s' % (v(M), v(M), v(M + 1)))
        A('v_rcp_f32 %s, %s' % (v(M), v(M)))
        for i in range(8):
            A('v_pk_mul_f32 %s, %s, %s op_sel_hi:[1,0]' % (v(D + 2 * i, 2), v(D + 2 * i, 2), v(M, 2)))
        for i in range(8):
            A('v_cvt_pk_bf16_f32 %s, %s, %s' % (v(P + i), v(D + 2 * i), v(D + 2 * i + 1)))
    def scale_pack(acc, QP, rt):
        for i in range(8):
            A('v_pk_mul_f32 %s, %s, %s op_sel_hi:[1,0]' % (v(acc + 2 * i, 2), v(acc + 2 * i, 2), v(vR2 + 2 * rt, 2)))
        for i in range(8):
            A('v_cvt_pk_bf16_f32 %s, %s, %s' % (v(QP + i), v(acc + 2 * i), v(acc + 2 * i + 1)))
    def mish(acc, rt, T, U, P, so, tag):
        for i in range(8):
            A('v_pk_mul_f32 %s, %s, %s op_sel_hi:[1,0]' % (v(T + 2 * i, 2), v(acc + 2 * i, 2), v(vRL + 2 * rt, 2)))
        for i in range(16):
            A('v_exp_f32 %s, %s' % (v(T + i), v(T + i)))
        for i in range(8):
            A('v_pk_add_f32 %s, %s, %s' % (v(U + 2 * i, 2), v(T + 2 * i, 2), v(vC2, 2)))
        for i in range(8):
            A('v_pk_fma_f32 %s, %s, %s, %s' % (v(U + 2 * i, 2), v(T + 2 * i, 2), v(U + 2 * i, 2), v(vC2, 2)))
        for i in range(16):
            A('v_rcp_f32 %s, %s' % (v(U + i), v(U + i)))
        for i in range(8):
            A('v_pk_fma_f32 %s, %s, %s, %s op_sel:[0,1,0] op_sel_hi:[1,1,0]' % (v(U + 2 * i, 2), v(U + 2 * i, 2), v(vR2 + 2 * rt, 2), v(vR2 + 2 * rt, 2)))
        for i in range(8):
            A('v_pk_mul_f32 %s, %s, %s' % (v(U + 2 * i, 2), v(U + 2 * i, 2), v(acc + 2 * i, 2)))
        for i in range(8):
            A('v_cvt_pk_bf16_f32 %s, %s, %s' % (v(P + i), v(U + 2 * i), v(U + 2 * i + 1)))
        A('buffer_store_dwordx4 %s, %s, %s, %s offen offset:%d sc1' % (v(P, 4), v(vL16), s(SWS, 4), s(so), 1024 * rt), tag=tag)
        A('buffer_store_dwordx4 %s, %s, %s, %s offen offset:%d sc1' % (v(P + 4, 4), v(vL16), s(SWS, 4), s(so), 2048 + 1024 * rt), tag=tag)
    def flag(tag, so, off=0):
        A.wait_vm(tag)
        A('buffer_store_dword %s, %s, %s, %s offen offset:%d sc1' % (v(vNon), v(vFo), s(SWS, 4), s(so), off))

    vRq = 96
    for X in (0, 1):
        A.vm = []; A.lg = []
        if X:
            A.label('CX_START')
        A('s_barrier')
        stamp(A, 1)
        emit(A, frags(0))
        emit(A, frags(1))
        for t in range(32):
            st, k = divmod(t, 4)
            nxt = frags(t + 2)
            if t == 30:
                nxt = [('ds_read_b32 %s, %s offset:%d' % (v(vAp + 4 * u), v(vTa), 256 * u), 'tb') for u in range(3)]
                nxt += [('ds_read_b32 %s, %s offset:%d' % (v(vBp + 4 * rt), v(vTb), 256 * rt), 'tb') for rt in range(2)]
                nxt += [('ds_read_b32 %s, %s offset:%d' % (v(vR2 + 2 * rt), v(vTr), 128 * rt), 'tb') for rt in range(2)]
                nxt += ['v_mov_b32 %s, %d' % (v(vNon), TN), ('ds_read_b32 %s, %s' % (v(vNon), v(vNon)), 'tb')]
            if t == 31:
                nxt = [('ds_read_b64_tr_b16 %s, %s offset:%d' % (v(vPh + 4 * h + 2 * hh, 2), v(vPa), 512 * h + 256 * hh), 'ph') for h in range(2) for hh in range(2)]
            A.wait_lg('f%d' % t)
            first = 2 if k == 2 else 0
            n = 0
            for u in range(3):
                for rt in range(2):
                    acc = vAcc + 16 * (3 * rt + u)
                    w_, x_ = v(vWf + 12 * (t % 3) + 4 * u, 4), v(vXf + 8 * (t % 3) + 4 * rt, 4)
                    if X and u == 1:
                        w_, x_ = x_, w_
                    A('v_mfma_f32_32x32x16_bf16 %s, %s, %s, %s' % (v(acc, 16), w_, x_, '0' if t == 0 else v(acc, 16)))
                    if k == 2 and n == 1:
                        A.wait_lg(None)
                        if st == 1 and X:
                            A('s_waitcnt vmcnt(0)')
                            A.vm = []
                        if st == OPT['pi']:
                            stamp(A, 1, 2)
                        if st == OPT['pi'] + 1:
                            stamp(A, 8, 2)
                        A('s_barrier')
                        if st == OPT['pi']:
                            stamp(A, 2, 2)
                        if st == OPT['pi'] + 1:
                            stamp(A, 4, 2)
                        if st == 1 and X:
                            A('buffer_store_dword %s, %s, %s, 0 offen sc1' % (v(vT + 15), v(vT + 14), s(SD, 4)))
                        if st == 3:
                            stamp(A, 2)
                    if n == 5 and OPT['warm'] == 2 and t == OPT['wt0']:
                        A('buffer_load_dword %s, %s, %s, 0 offen' % (v(vWm + 1), v(vWm), s(SW2, 4)), tag='wm')
                    if n == 5 and OPT['warm'] & 1 and t >= OPT['wt0'] and (t - OPT['wt0']) % OPT['wd'] == 0 and (t - OPT['wt0']) // OPT['wd'] < 8:
                        base, c_, sr = [(3, 0, SW2), (3, 4, SW2), (3, 2, SW2), (3, 6, SW2), (4, 34, SW2), (5, 0, SWO), (4, 32, SW2), (5, 2, SWO)][(t - OPT['wt0']) // OPT['wd']]
                        A('s_add_u32 %s, %s, %d' % (s(sT0), s(sO[base]), c_ * 32768))
                        A('buffer_load_dword %s, %s, %s, %s offen' % (v(vWm + 1), v(vWm), s(sr, 4), s(sT0)), tag='wm')
                    if n >= first:
                        i = n - first
                        emit(A, nxt[2 * i:2 * i + 2] if i < 3 else nxt[2 * i:] if i == 3 else [])
                    n += 1
        stamp(A, 3)
        if OPT['prio']:
            A('s_setprio 0')
        A.wait_lg('tb')
        order = [(2, 0), (2, 1)] if False else []
        seq = [(0, 0), (0, 1), (1, 0), (1, 1), (2, 0), (2, 1)] if X else [(1, 0), (1, 1), (2, 0), (2, 1), (0, 0), (0, 1)]
        for u, rt in seq:
            acc = vAcc + 16 * (3 * rt + u)
            p_, q_ = v(vAp + 4 * u, 4), v(vBp + 4 * rt, 4)
            if X and u == 1:
                p_, q_ = q_, p_
            A('v_mfma_f32_32x32x16_bf16 %s, %s, %s, %s' % (v(acc, 16), p_, q_, v(acc, 16)))
        if X:
            for rt in range(2):
                for q4 in range(4):
                    A('ds_read_b128 %s, %s offset:%d' % (v(vRq + 16 * rt + 4 * q4, 4), v(vTq), 128 * rt + 32 * q4), tag='rq')
        for rt in range(2):
            A('v_mul_f32 %s, -2.0, %s' % (v(vR2 + 2 * rt + 1), v(vR2 + 2 * rt)))
            A('v_mul_f32 %s, 0x%x, %s' % (v(vRL + 2 * rt), LOG2E, v(vR2 + 2 * rt)))
        A('v_readfirstlane_b32 %s, %s' % (s(sNonce), v(vNon)))
        sOut, sFl = sO[0], sO[1]
        A('s_lshl_b32 %s, %s, 10' % (s(sFl), s(sP2)))
        A('s_add_u32 %s, %s, 0x%x' % (s(sFl), s(sFl), WS_F))
        A('s_mul_i32 %s, %s, 44' % (s(sOut), s(sP2)))
        if not X:
            A('s_lshl_b32 %s, %s, 2' % (s(sT0), s(sG)))
            A('s_add_u32 %s, %s, %s' % (s(sT0), s(sT0), s(sCh)))
            A('s_add_u32 %s, %s, %s' % (s(sOut), s(sOut), s(sT0)))
            A('s_lshl_b32 %s, %s, 12' % (s(sOut), s(sOut)))
            A('s_add_u32 %s, %s, 8192' % (s(sO[2]), s(sOut)))
            A('s_lshr_b32 %s, %s, 1' % (s(sT0), s(sG)))
            A('s_lshl_b32 %s, %s, 7' % (s(sT0), s(sT0)))
            A('s_add_u32 %s, %s, %s' % (s(sFl), s(sFl), s(sT0)))
            A('s_and_b32 %s, %s, 1' % (s(sT0), s(sG)))
            A('s_lshl_b32 %s, %s, 1' % (s(sT0), s(sT0)))
            A('s_add_u32 %s, %s, %s' % (s(sT0), s(sT0), s(sCh)))
            A('s_lshl_b32 %s, %s, 2' % (s(sT0), s(sT0)))
            A('s_add_u32 %s, %s, %s' % (s(sFl), s(sFl), s(sT0)))
            A('s_lshl_b32 %s, %s, 3' % (s(sT0), s(sP2)))
            A('s_add_u32 %s, %s, %s' % (s(sT0), s(sT0), s(sG)))
            A('s_lshl_b32 %s, %s, 1' % (s(sT0), s(sT0)))
            A('s_add_u32 %s, %s, %s' % (s(sT0), s(sT0), s(sCh)))
            A('s_lshl_b32 %s, %s, 13' % (s(sT0), s(sT0)))
            A('s_add_u32 %s, %s, 0x%x' % (s(sO[3]), s(sT0), WS_PHI))
            A('s_add_u32 %s, %s, 4096' % (s(sO[4]), s(sO[3])))
            T, U = 96, 112
            mish(vAcc + 16, 0, T, U, 128, sOut, 'h1')
            stamp(A, 1, 1)
            mish(vAcc + 64, 1, T, U, 136, sOut, 'h1')
            mish(vAcc + 32, 0, T, U, 144, sO[2], 'h2')
            stamp(A, 2, 1)
            flag('h1', sFl)
            stamp(A, 8, 1)
            mish(vAcc + 80, 1, T, U, 152, sO[2], 'h2')
            stamp(A, 1, 3)
            A.wait_lg('ph')
            for i in range(8):
                A('v_xor_b32 %s, %s, %s' % (v(vPh + i), v(vSg), v(vPh + i)))
            D = {(0, 0): 16, (0, 1): 32, (1, 0): 64, (1, 1): 80}
            for rt in range(2):
                QP = 96 + 8 * rt
                scale_pack(vAcc + 48 * rt, QP, rt)
                for h in range(2):
                    A('v_mfma_f32_32x32x16_bf16 %s, %s, %s, 0' % (v(D[rt, h], 16), v(vPh + 4 * h, 4), v(QP + 4 * h, 4)))
            n = 0
            for rt in range(2):
                for h in range(2):
                    P = 112 + 8 * (n & 1) if n < 2 else 0 + 8 * (n & 1)
                    softmax(D[rt, h], P, vT)
                    A('buffer_store_dwordx4 %s, %s, %s, %s offen offset:%d sc1' % (v(P, 4), v(vL16), s(SWS, 4), s(sO[3 + h]), 2048 * rt), tag='q')
                    A('buffer_store_dwordx4 %s, %s, %s, %s offen offset:%d sc1' % (v(P + 4, 4), v(vL16), s(SWS, 4), s(sO[3 + h]), 2048 * rt + 1024), tag='q')
                    if n == 0:
                        stamp(A, 2, 3)
                        flag('h2', sFl, 16)
                        stamp(A, 8, 3)
                    n += 1
            stamp(A, 5, 3)
            flag('q', sFl, 512)
            A.branch('s_branch C_P2')
        else:
            A.wait_lg('ph')
            for i in range(8):
                A('v_xor_b32 %s, %s, %s' % (v(vPh + i), v(vSg), v(vPh + i)))
            QP, VT, PT = 160, 128, 168
            D = {(0, 0): 144, (0, 1): 0, (1, 0): 16, (1, 1): 48}
            scale_pack(vAcc, QP, 0)
            for h in range(2):
                A('v_mfma_f32_32x32x16_bf16 %s, %s, %s, 0' % (v(D[0, h], 16), v(vPh + 4 * h, 4), v(QP + 4 * h, 4)))
            A.wait_lg('rq')
            VH = {(0, 0): 128, (1, 0): 136, (0, 1): 216, (1, 1): 64}
            A('v_and_b32 %s, 16, %s' % (v(vT + 4), v(vLane)))
            A('v_cmp_eq_u32 vcc, 0, %s' % v(vT + 4))
            A('v_mov_b32 %s, 0x3f803f80' % v(vT + 4))
            for rt in range(2):
                acc = vAcc + 16 + 48 * rt
                for i in range(8):
                    A('v_pk_mul_f32 %s, %s, %s' % (v(acc + 2 * i, 2), v(acc + 2 * i, 2), v(vRq + 16 * rt + 2 * i, 2)))
                for i in range(8):
                    A('v_cvt_pk_bf16_f32 %s, %s, %s' % (v(VT + 8 * rt + i), v(acc + 2 * i), v(acc + 2 * i + 1)))
                for i in range(8):
                    A('v_cndmask_b32 %s, %s, %s, vcc' % (v(VH[rt, 1] + i), v(VT + 8 * rt + i), v(vT + 4)))
                for i in range(8):
                    A('v_cndmask_b32 %s, %s, %s, vcc' % (v(VH[rt, 0] + i), v(vT + 4), v(VT + 8 * rt + i)))
            scale_pack(vAcc + 48, PT, 1)
            for h in range(2):
                A('v_mfma_f32_32x32x16_bf16 %s, %s, %s, 0' % (v(D[1, h], 16), v(vPh + 4 * h, 4), v(PT + 4 * h, 4)))
            stamp(A, 1, 1)
            KV = [96, 112]
            Pb = [72, 160]
            items = [(0, 0), (1, 0), (0, 1), (1, 1)]
            def finish(n):
                rt, h = items[n]
                d = D[rt, h]
                for i in range(8):
                    A('v_cvt_pk_bf16_f32 %s, %s, %s' % (v(PT + i), v(d + 2 * i), v(d + 2 * i + 1)))
                for c in range(2):
                    z0 = rt == 0 and c == 0
                    A('v_mfma_f32_32x32x16_bf16 %s, %s, %s, %s' % (v(KV[h], 16), v(PT + 4 * c, 4), v(VH[rt, h] + 4 * c, 4), '0' if z0 else v(KV[h], 16)))
            sSel = [SQ, SQ + 1, SQ + 2, SQ + 3, S1, S1 + 1]
            for i in range(4):
                A('s_mov_b32 %s, 0x%08x' % (s(sSel[i]), 0x07060500 + i))
            A('s_mov_b32 %s, 0x00000400' % s(sSel[4]))
            A('s_mov_b32 %s, 0x05040100' % s(sSel[5]))
            def kvstore(h):
                for r in range(16):
                    A('v_perm_b32 %s, %s, %s, %s' % (v(KV[h] + r), v(KV[h] + r), v(vNon), s(sSel[r & 3])))
                for q in range(4):
                    A('buffer_store_dwordx4 %s, %s, %s, %s offen sc1' % (v(KV[h] + 4 * q, 4), v(vPo + 4 * h + q), s(SWS, 4), s(sPs)), tag='kp')
            for n, (rt, h) in enumerate(items):
                d = D[rt, h]
                P = Pb[n & 1]
                softmax(d, P, vT)
                A('v_mfma_f32_32x32x16_bf16 %s, %s, %s, 0' % (v(d, 16), v(P, 4), v(vSel0, 4)))
                A('v_mfma_f32_32x32x16_bf16 %s, %s, %s, %s' % (v(d, 16), v(P + 4, 4), v(vSel1, 4), v(d, 16)))
                if n == 3:
                    kvstore(0)
                if n:
                    finish(n - 1)
            sRi, sRo, sU = sO[3], sO[4], sO[5]
            A('s_lshl_b32 %s, %s, 1' % (s(sT0), s(sG)))
            A('s_add_u32 %s, %s, %s' % (s(sT0), s(sT0), s(sCh)))
            A('s_xor_b32 %s, %s, %d' % (s(sT2), s(sT0), 4 * OPT['xred']))
            A('s_mul_i32 %s, %s, %d' % (s(sRo), s(sT2), 2 * KVH))
            A('s_add_u32 %s, %s, 0x%x' % (s(sRo), s(sRo), WS_KV))
            A('s_lshl_b32 %s, %s, 4' % (s(sU), s(sRg)))
            A('s_add_u32 %s, %s, %s' % (s(sU), s(sU), s(sRb)))
            A('s_mul_i32 %s, %s, %d' % (s(sRi), s(sT2), 32 * PSL))
            A('s_lshl_b32 %s, %s, 8' % (s(sT1), s(sU)))
            A('s_add_u32 %s, %s, %s' % (s(sRi), s(sRi), s(sT1)))
            A('s_add_u32 %s, %s, 0x%x' % (s(sRi), s(sRi), WS_PART))
            A('s_add_u32 %s, %s, %s' % (s(sOut), s(sOut), s(sT0)))
            A('s_add_u32 %s, %s, 32' % (s(sOut), s(sOut)))
            A('s_lshl_b32 %s, %s, 12' % (s(sOut), s(sOut)))
            A('s_mul_i32 %s, %s, 43' % (s(sT1), s(sT0)))
            A('s_lshr_b32 %s, %s, 7' % (s(sT1), s(sT1)))
            A('s_mul_i32 %s, %s, %d' % (s(sT1), s(sT1), 128 - 12))
            A('s_lshl_b32 %s, %s, 2' % (s(sT2), s(sT0)))
            A('s_add_u32 %s, %s, %s' % (s(sFl), s(sFl), s(sT1)))
            A('s_add_u32 %s, %s, %s' % (s(sFl), s(sFl), s(sT2)))
            finish(3)
            stamp(A, 2, 1)
            kvstore(1)
            stamp(A, 8)
            R = 0
            def rload():
                for i in range(8):
                    A('s_add_u32 %s, %s, %d' % (s(sT1), s(sRi), 4 * PSL * i))
                    A('buffer_load_dwordx4 %s, %s, %s, %s offen sc1' % (v(R + 4 * i, 4), v(vRi), s(SWS, 4), s(sT1)))
            def rcheck():
                for i in range(8):
                    r = R + 4 * i
                    A('v_perm_b32 %s, %s, %s, %s' % (v(vT), v(r + 1), v(r), s(sSel[4])))
                    A('v_perm_b32 %s, %s, %s, %s' % (v(vT + 1), v(r + 3), v(r + 2), s(sSel[4])))
                    A('v_perm_b32 %s, %s, %s, %s' % (v(vT + 2 + (i & 1)), v(vT + 1), v(vT), s(sSel[5])))
                    A('v_xor_b32 %s, %s, %s' % (v(vT + 2 + (i & 1)), v(vT + 2 + (i & 1)), v(vNon)))
                    if i == 1:
                        A('v_or_b32 %s, %s, %s' % (v(vT + 4), v(vT + 2), v(vT + 3)))
                    elif i & 1:
                        A('v_or3_b32 %s, %s, %s, %s' % (v(vT + 4), v(vT + 4), v(vT + 2), v(vT + 3)))
                A('v_cmp_ne_u32 vcc, 0, %s' % v(vT + 4))
                A('s_cmp_lg_u64 vcc, 0')
            def rsum():
                for st_ in (16, 8, 4):
                    for r in range(0, st_, 2):
                        A('v_pk_add_f32 %s, %s, %s' % (v(R + r, 2), v(R + r, 2), v(R + st_ + r, 2)))
                for op in ('v_permlane16_swap_b32', 'v_permlane32_swap_b32'):
                    for r in range(4):
                        A('v_mov_b32 %s, %s' % (v(R + 4 + r), v(R + r)))
                    for r in range(4):
                        A('%s %s, %s' % (op, v(R + r), v(R + 4 + r)))
                    for r in range(0, 4, 2):
                        A('v_pk_add_f32 %s, %s, %s' % (v(R + r, 2), v(R + r, 2), v(R + 4 + r, 2)))
                A('v_cvt_pk_bf16_f32 %s, %s, %s' % (v(R), v(R), v(R + 1)))
                A('v_cvt_pk_bf16_f32 %s, %s, %s' % (v(R + 1), v(R + 2), v(R + 3)))
                A('buffer_store_dwordx2 %s, %s, %s, %s offen sc1' % (v(R, 2), v(vRo), s(SWS, 4), s(sRo)))
            T, U = 144, 48
            A('s_mov_b32 %s, 0' % s(sT0))
            A('s_cmp_ge_u32 %s, 6' % s(sG))
            A.branch('s_cbranch_scc1 CX_NOH')
            A('s_cmp_gt_u32 %s, 16' % s(sU))
            A.branch('s_cbranch_scc1 CX_M0')
            with Keep(A):
                rload()
            A.label('CX_M0')
            stamp(A, 1, 3)
            mish(vAcc + 32, 0, T, U, 128, sOut, 'h')
            stamp(A, 2, 3)
            A('s_cmp_gt_u32 %s, 16' % s(sU))
            A.branch('s_cbranch_scc1 CX_M1')
            A('s_waitcnt vmcnt(2)')
            rcheck()
            A.branch('s_cbranch_scc1 CX_AG')
            with Keep(A):
                rsum()
            A('s_mov_b32 %s, 17' % s(sU))
            A.branch('s_branch CX_M1')
            A.label('CX_AG')
            with Keep(A):
                rload()
            A.label('CX_M1')
            stamp(A, 8, 3)
            mish(vAcc + 80, 1, T, U, 136, sOut, 'h')
            stamp(A, 5, 3)
            flag('h', sFl, 32)
            stamp(A, 6, 3)
            A('s_cmp_gt_u32 %s, 16' % s(sU))
            A.branch('s_cbranch_scc1 C_P2')
            A.branch('s_branch CX_CK')
            A.label('CX_NOH')
            A('s_cmp_gt_u32 %s, 16' % s(sU))
            A.branch('s_cbranch_scc1 C_P2')
            A.label('CX_RL')
            rload()
            A('s_waitcnt vmcnt(0)')
            A.label('CX_CK')
            rcheck()
            A.branch('s_cbranch_scc0 CX_OUT')
            A('s_add_u32 %s, %s, 1' % (s(sT0), s(sT0)))
            A('s_cmp_gt_u32 %s, 0x%x' % (s(sT0), BOUND))
            if OPT['rslp']:
                A('s_sleep %d' % OPT['rslp'])
            A.branch('s_cbranch_scc0 CX_RL')
            A.label('CX_OUT')
            rsum()
    A.label('C_P2')
    A.vm = []; A.lg = []
    stamp(A, 4)
    PH = OPT['phr']
    vAcc = 0
    vPhi = 64
    vKv = 64 + 16 * PH
    KR = min(8, 14 - 2 * PH)
    vD = 176
    vKb, vO, vWo = 208, 216, 224
    vA0, vKo, vFl, vFv = 232, 234, 235, 248
    sPhi, sKv, sFl, sKd = sO[0], sO[1], sO[2], sO[3]
    A('v_lshlrev_b32 %s, 2, %s' % (v(vFl), v(vLane)))
    A('v_and_b32 %s, 0x7c, %s' % (v(vFl), v(vFl)))
    A('s_lshl_b32 %s, %s, 3' % (s(sFl), s(sRb2)))
    A('s_add_u32 %s, %s, %s' % (s(sFl), s(sFl), s(sWave)))
    A('s_lshl_b32 %s, %s, 7' % (s(sFl), s(sFl)))
    A('s_add_u32 %s, %s, 0x%x' % (s(sFl), s(sFl), WS_F))
    qload = 'buffer_load_dword %s, %s, %s, %s offen sc1' % (v(vFv), v(vFl), s(SWS, 4), s(sFl))
    A(qload, tag='fl')
    A('s_lshl_b32 %s, %s, 2' % (s(sPhi), s(sRb2)))
    A('s_add_u32 %s, %s, %s' % (s(sPhi), s(sPhi), s(sJ)))
    A('s_lshl_b32 %s, %s, 15' % (s(sPhi), s(sPhi)))
    A('s_add_u32 %s, %s, 0x%x' % (s(sPhi), s(sPhi), WS_PHI))
    A('s_mul_i32 %s, %s, %d' % (s(sKv), s(sJ), 8 * KVH))
    A('s_add_u32 %s, %s, 0x%x' % (s(sKv), s(sKv), WS_KV))
    A('s_add_u32 %s, %s, %d' % (s(sKd), s(sKv), 3 * KVH))
    A('s_add_u32 %s, %s, %d' % (s(sO[4]), s(sKv), 6 * KVH))
    A('v_and_b32 %s, 31, %s' % (v(vT), v(vLane)))
    A('v_min_u32 %s, 16, %s' % (v(vT), v(vT)))
    A('v_lshrrev_b32 %s, 5, %s' % (v(vT + 1), v(vLane)))
    A('v_mul_u32_u24 %s, 17, %s' % (v(vT + 1), v(vT + 1)))
    A('v_add_lshl_u32 %s, %s, %s, 4' % (v(vKo), v(vT), v(vT + 1)))
    tr_addr(A, vA0, vT, 4, None)
    A('s_lshl_b32 %s, %s, 12' % (s(sT0), s(sJ)))
    A('v_add_u32 %s, %s, %s' % (v(vA0), s(sT0), v(vA0)))
    A('v_xor_b32 %s, 64, %s' % (v(vA0 + 1), v(vA0)))
    xres(A, 240, 244)
    def phi_load(h):
        for i in range(4):
            A('buffer_load_dwordx4 %s, %s, %s, %s offen offset:%d sc1' % (v(vPhi + 16 * (h % PH) + 4 * i, 4), v(vL16), s(SWS, 4), s(sPhi), 1024 * i), tag='phi%d' % h)
        A('s_add_u32 %s, %s, 4096' % (s(sPhi), s(sPhi)))
    def kv_load(h):
        for q in range(2):
            A('buffer_load_dwordx4 %s, %s, %s, %s offen offset:%d sc1' % (v(vKv + 8 * (h % KR) + 4 * q, 4), v(vKo), s(SWS, 4), s((sKv, sKd, sO[4])[h // 3]), (h % 3) * KVH + q * 544), tag='kv%d' % h)
    def kv_check(kvr):
        A('v_max3_u32 %s, %s, %s, %s' % (v(vKb), v(kvr), v(kvr + 1), v(kvr + 2)))
        A('v_max3_u32 %s, %s, %s, %s' % (v(vKb + 1), v(kvr + 3), v(kvr + 4), v(kvr + 5)))
        A('v_max3_u32 %s, %s, %s, %s' % (v(vKb), v(vKb), v(kvr + 6), v(kvr + 7)))
        A('v_max_u32 %s, %s, %s' % (v(vKb), v(vKb), v(vKb + 1)))
        A('v_cmp_eq_u32 vcc, -1, %s' % v(vKb))
    A.wait_vm('fl')
    poll(A, 'CQ', qload, vFv, '0xf')
    stamp(A, 5)
    for h in range(max(PH, KR)):
        if h < KR:
            kv_load(h)
        if h < PH:
            phi_load(h)
    A('s_lshl_b32 %s, %s, 2' % (s(sT1), s(sJ)))
    A('s_add_u32 %s, %s, %d' % (s(sT1), s(sT1), TN + 16))
    A('v_mov_b32 %s, %s' % (v(vT), s(sT1)))
    A('s_mov_b32 %s, 0' % s(sT0))
    A.label('CW_P')
    A('ds_read_b32 %s, %s' % (v(vT + 1), v(vT)))
    A('s_waitcnt lgkmcnt(0)')
    A.lg = []
    A('v_readfirstlane_b32 %s, %s' % (s(sT1), v(vT + 1)))
    A('s_add_u32 %s, %s, 1' % (s(sT0), s(sT0)))
    A('s_cmp_gt_u32 %s, 0x%x' % (s(sT0), BOUND * 16))
    A('s_cselect_b32 %s, 1, %s' % (s(sT1), s(sT1)))
    A('s_cmp_eq_u32 %s, 0' % s(sT1))
    A.branch('s_cbranch_scc1 CW_P')
    for h in range(8):
        kvr = vKv + 8 * (h % KR)
        b = vPhi + 16 * (h % PH)
        A.wait_vm('kv%d' % h)
        kv_check(kvr)
        A.branch('s_cbranch_vccnz CK_R%d' % h)
        A.label('CK_G%d' % h)
        if h == 0:
            stamp(A, 6)
        A.wait_vm('phi%d' % h)
        for rt in range(2):
            A('v_mfma_f32_32x32x16_bf16 %s, %s, %s, 0' % (v(vD + 16 * rt, 16), v(kvr, 4), v(b + 8 * rt, 4)))
        for rt in range(2):
            A('v_mfma_f32_32x32x16_bf16 %s, %s, %s, %s' % (v(vD + 16 * rt, 16), v(kvr + 4, 4), v(b + 8 * rt + 4, 4), v(vD + 16 * rt, 16)))
        if h + KR < 8:
            kv_load(h + KR)
        for nt in range(2):
            for hh in range(2):
                A('ds_read_b64_tr_b16 %s, %s offset:%d' % (v(vWo + 4 * nt + 2 * hh, 2), v(vA0 + nt), 16384 * (h >> 1) + 2048 * (h & 1) + 1024 * hh), tag='wo')
        if h + PH < 8:
            phi_load(h + PH)
        for rt in range(2):
            d = vD + 16 * rt
            A('v_add_f32 %s, 0x358637bd, %s' % (v(d + 8), v(d + 8)))
            A('v_rcp_f32 %s, %s' % (v(d + 8), v(d + 8)))
            for i in range(4):
                A('v_pk_mul_f32 %s, %s, %s op_sel_hi:[1,0]' % (v(d + 2 * i, 2), v(d + 2 * i, 2), v(d + 8, 2)))
            for i in range(4):
                A('v_cvt_pk_bf16_f32 %s, %s, %s' % (v(vO + 4 * rt + i), v(d + 2 * i), v(d + 2 * i + 1)))
        A.wait_lg('wo')
        for rt in range(2):
            for nt in range(2):
                acc = vAcc + 16 * (2 * nt + rt)
                A('v_mfma_f32_32x32x16_bf16 %s, %s, %s, %s' % (v(acc, 16), v(vWo + 4 * nt, 4), v(vO + 4 * rt, 4), '0' if h == 0 else v(acc, 16)))
    A('s_lshl_b32 %s, %s, 12' % (s(sT0), s(sJ)))
    emit(A, reduce_write(A, vAcc, 64, sT0, 16384))
    A.branch('s_branch F_START')
    for h in range(8):
        kvr = vKv + 8 * (h % KR)
        A.vm = []
        A.label('CK_R%d' % h)
        A('s_mov_b32 %s, 0' % s(sT0))
        A.label('CK_L%d' % h)
        if OPT['slp']:
            A('s_sleep %d' % OPT['slp'])
        for h2 in range(h, min(8, h + KR) if OPT['kall'] else h + 1):
            kv_load(h2)
        A('s_add_u32 %s, %s, 1' % (s(sT0), s(sT0)))
        A('s_waitcnt vmcnt(0)')
        A('s_cmp_gt_u32 %s, 0x%x' % (s(sT0), BOUND))
        A.branch('s_cbranch_scc1 CK_G%d' % h)
        kv_check(kvr)
        A.branch('s_cbranch_vccnz CK_L%d' % h)
        if not OPT['kall']:
            for h2 in range(h + 1, min(8, h + KR)):
                kv_load(h2)
            A('s_waitcnt vmcnt(0)')
        A.branch('s_branch CK_G%d' % h)

def gen_final(A):
    A.label('F_START')
    vOo, vX, t = 240, 244, 72
    srd(A, SO, 32, 2048 * 1024)
    A('s_and_b32 %s, %s, 3' % (s(sT0), s(sWave)))
    A('s_lshl_b32 %s, %s, 10' % (s(sT0), s(sT0)))
    A('s_lshr_b32 %s, %s, 2' % (s(sT1), s(sWave)))
    A('v_lshrrev_b32 %s, 3, %s' % (v(t), v(vLane)))
    A('v_bfe_u32 %s, %s, 2, 1' % (v(t + 1), v(vLane)))
    A('v_and_b32 %s, 3, %s' % (v(t + 2), v(vLane)))
    A('v_lshlrev_b32 %s, 1, %s' % (v(t + 2), v(t + 2)))
    A('v_xor_b32 %s, %s, %s' % (v(t + 2), v(t + 2), v(t)))
    A('v_xor_b32 %s, %s, %s' % (v(t + 2), v(t + 2), v(t + 1)))
    A('v_lshlrev_b32 %s, 4, %s' % (v(t + 2), v(t + 2)))
    A('v_lshl_add_u32 %s, %s, 7, %s' % (v(t + 2), v(t), v(t + 2)))
    A('v_add_u32 %s, %s, %s' % (v(t + 2), s(sT0), v(t + 2)))
    A('v_lshl_add_u32 %s, %s, 1, %s' % (v(t + 1), v(t + 1), s(sT1)))
    A('v_lshl_add_u32 %s, %s, 14, %s' % (v(t + 3), v(t + 1), v(t + 2)))
    A('v_mul_u32_u24 %s, 24576, %s' % (v(t + 1), v(t + 1)))
    A('v_add_u32 %s, %d, %s' % (v(t + 2), L_W, v(t + 2)))
    A('v_add_u32 %s, %s, %s' % (v(t + 5), v(t + 1), v(t + 2)))
    A('v_xor_b32 %s, 16, %s' % (v(t + 4), v(t + 3)))
    A('v_xor_b32 %s, 16, %s' % (v(t + 6), v(t + 5)))
    A('s_waitcnt lgkmcnt(0)')
    A.lg = []
    A('s_barrier')
    stamp(A, 7)
    R = 96
    for g in range(2):
        for p in range(4):
            for hh in range(2):
                A('ds_read_b128 %s, %s offset:%d' % (v(R + 32 * g + 8 * p + 4 * hh, 4), v(t + 3 + 2 * g + hh), 4096 * p), tag='r%d' % g)
    A('s_waitcnt vmcnt(0)')
    X = 80
    for i in range(4):
        A('v_lshlrev_b32 %s, 16, %s' % (v(X + 2 * i), v(vX + i)))
        A('v_and_b32 %s, 0xffff0000, %s' % (v(X + 2 * i + 1), v(vX + i)))
    for g in range(2):
        A.wait_lg('r%d' % g)
        r = R + 32 * g
        for i in range(4):
            A('v_pk_add_f32 %s, %s, %s' % (v(r + 2 * i, 2), v(r + 2 * i, 2), v(r + 8 + 2 * i, 2)))
            A('v_pk_add_f32 %s, %s, %s' % (v(r + 16 + 2 * i, 2), v(r + 16 + 2 * i, 2), v(r + 24 + 2 * i, 2)))
        for i in range(4):
            A('v_pk_add_f32 %s, %s, %s' % (v(r + 2 * i, 2), v(r + 2 * i, 2), v(r + 16 + 2 * i, 2)))
        for i in range(4):
            A('v_pk_add_f32 %s, %s, %s' % (v(X + 2 * i, 2), v(X + 2 * i, 2), v(r + 2 * i, 2)))
    for i in range(4):
        A('v_cvt_pk_bf16_f32 %s, %s, %s' % (v(X + i), v(X + 2 * i), v(X + 2 * i + 1)))
    A('buffer_store_dwordx4 %s, %s, %s, %s offen' % (v(X, 4), v(vOo), s(SO, 4), s(6)))
    if OPT['stamps']:
        A('s_waitcnt vmcnt(0)')
        A('%s s[14:15]' % ('s_memtime' if OPT['clk'] else 's_memrealtime'))
        A('s_waitcnt lgkmcnt(0)')
        A('s_lshl_b32 %s, s2, 3' % s(sT2))
        A('s_add_u32 %s, %s, %s' % (s(sT2), s(sT2), s(sWave)))
        A('s_lshl_b32 %s, %s, 6' % (s(sT2), s(sT2)))
        A('s_add_u32 %s, %s, 0x%x' % (s(sT2), s(sT2), WS_STAMP))
        A('v_mov_b32 %s, 0' % v(1))
        for i, r in enumerate(STREG + [14]):
            A('v_mov_b32 %s, %s' % (v(0), s(r)))
            A('buffer_store_dword %s, %s, %s, %s offen offset:%d' % (v(0), v(1), s(SWS, 4), s(sT2), 4 * i))
    A.label('L_END')
    A('s_endpgm')

def main():
    body = gen()
    out = []
    out.append('; generated by gen/gen3.py (hand-written generator; no compiler output)')
    out.append('; @launch grid=(256,1,1) block=(512,1,1) lds=163840')
    out.append('.amdgcn_target "amdgcn-amd-amdhsa--gfx950"')
    out.append('.text')
    out.append('.globl %s_kernel' % NAME)
    out.append(body)
    out.append('.section .rodata,"a"')
    out.append('.p2align 6')
    out.append('''.amdhsa_kernel %s_kernel
  .amdhsa_next_free_vgpr 256
  .amdhsa_next_free_sgpr 102
  .amdhsa_accum_offset 256
  .amdhsa_group_segment_fixed_size 0
  .amdhsa_kernarg_size 88
  .amdhsa_user_sgpr_count 2
  .amdhsa_user_sgpr_kernarg_segment_ptr 1
  .amdhsa_system_sgpr_workgroup_id_x 1
.end_amdhsa_kernel
''' % NAME)
    open(sys.argv[1], 'w').write('\n'.join(out))

main()
```

```python
import sys
from asmlib import Asm, v, a, s

NAME = 'parallel_sum__linear_kernel_hedgehog__dense_activation_mish__prompt'
OPT = dict(fine=0, stamps=0, prio=1, sched=0, slp=8, wt0=12, wd=2, warm=1, xmap=1, xq=1, clk=0, ost=1, gi=5, f2=6)
for arg in sys.argv[2:]:
    k, val = arg.split('=')
    OPT[k] = int(val, 0)

NU = 60
WS_ACT = 0x000000
WS_KVP = 0x800000
KVS = 9216
WS_KF = 0x8A0000
WS_STAT = 0xC80000
WS_F = 0xC90000
WS_CS = 0xCA0000
WS_STAMP = 0xD00000
WS_SIZE = 0xE00000
KVH = 1088
OOB = 0x7f000000
LOG2E = 0x3fb8aa3b
LN2 = 0x3f317218
BOUND = 0x8000

L_W = 65536
L_E = 131072
def XP(sg): return 16384 * sg
def WP(sg): return L_W + 16384 * sg
TA, TZ, TB, TR, TS, TN, TPH = L_E, L_E + 1536, L_E + 2048, L_E + 3072, L_E + 3584, L_E + 3840, L_E + 6144
KVL = L_E + 24576
P3B = [L_E + 8192, L_E + 16384, XP(0), XP(0) + 8192, WP(0), WP(0) + 8192, XP(1), XP(1) + 8192]
FL_P3, FL_PB, FL_EX, FL_KV = TN + 16, TN + 32, TN + 48, TN + 80

SX, SA, SB, SWS, SD, SW2, SWO, STMP = 40, 44, 48, 56, 60, 64, 68, 72
SO = SA
sNonce, sWave, sRb, sCg, sTyp, sG, sF, sRb2, sCb = 3, 4, 5, 8, 9, 10, 11, 12, 13
sT0, sT1, sT2, sT3 = 14, 15, 76, 77
sO = [78, 79, 80, 81, 82, 83]
sJ = 84
sM = 85
sA, sB = 86, 87
sGq = 39
STREG = [88, 90, 92, 94, 96, 98, 100, 24, 74]

def srd(A, d, lo, size):
    A('s_mov_b32 %s, %s' % (s(d), s(lo)))
    A('s_mov_b32 %s, %s' % (s(d + 1), s(lo + 1)))
    A('s_mov_b32 %s, 0x%x' % (s(d + 2), size))
    A('s_mov_b32 %s, 0x20000' % s(d + 3))

def stamp(A, idx, fine=0):
    over = {0: (), 1: (1, 2), 2: (1, 2, 8, 4), 3: (1, 2, 8, 4, 5, 6)}[OPT['fine']]
    if fine == 0 and idx in over:
        return
    if fine and OPT['fine'] != fine:
        return
    if OPT['stamps']:
        A('%s %s' % ('s_memtime' if OPT['clk'] else 's_memrealtime', s(STREG[idx], 2)))

def emit(A, L):
    for it in L:
        if isinstance(it, tuple):
            A(it[0], tag=it[1])
        else:
            A(it)

class Keep:
    def __init__(self, A): self.A = A
    def __enter__(self): self.sv = list(self.A.vm); self.sl = list(self.A.lg)
    def __exit__(self, *e): self.A.vm = self.sv; self.A.lg = self.sl

def poll(A, name, reload, vreg, mask, cmp_nonce=True, pre=()):
    A('s_mov_b32 %s, 0' % s(sT0))
    A.label(name + '_P')
    emit(A, pre)
    if cmp_nonce:
        A('v_cmp_ne_u32 vcc, %s, %s' % (s(sNonce), v(vreg)))
    else:
        A('v_cmp_eq_u32 vcc, 0, %s' % v(vreg))
    if mask is not None:
        A('s_and_b32 vcc_lo, vcc_lo, %s' % mask)
        A('s_cmp_eq_u32 vcc_lo, 0')
    else:
        A('s_cmp_eq_u64 vcc, 0')
    A.branch('s_cbranch_scc1 %s_G' % name)
    A('s_add_u32 %s, %s, 1' % (s(sT0), s(sT0)))
    A('s_cmp_gt_u32 %s, 0x%x' % (s(sT0), BOUND))
    A.branch('s_cbranch_scc1 %s_G' % name)
    if OPT['slp']:
        A('s_sleep %d' % OPT['slp'])
    with Keep(A):
        emit(A, [reload] if isinstance(reload, str) else reload)
    A('s_waitcnt vmcnt(0)')
    A.branch('s_branch %s_P' % name)
    A.label(name + '_G')

def lds_wait(A, name, addr, n, minval, t, extra=()):
    A('s_mov_b32 %s, 0' % s(sT0))
    A.label(name + '_P')
    with Keep(A):
        A('ds_read_b128 %s, %s' % (v(t, 4), addr) if n == 4 else 'ds_read_b32 %s, %s' % (v(t), addr))
        emit(A, extra)
    A('s_add_u32 %s, %s, 1' % (s(sT0), s(sT0)))
    A('s_waitcnt lgkmcnt(0)')
    A.lg = []
    if n == 4:
        A('v_min3_u32 %s, %s, %s, %s' % (v(t), v(t), v(t + 1), v(t + 2)))
        A('v_min_u32 %s, %s, %s' % (v(t), v(t), v(t + 3)))
    A('v_readfirstlane_b32 %s, %s' % (s(sT1), v(t)))
    A('s_cmp_gt_u32 %s, 0x%x' % (s(sT0), BOUND * 16))
    A('s_cselect_b32 %s, %d, %s' % (s(sT1), minval, s(sT1)))
    A('s_cmp_lt_u32 %s, %d' % (s(sT1), minval))
    A.branch('s_cbranch_scc1 %s_P' % name)

vLane, vL16 = 255, 254

def tr_addr(A, dst, t, rowhalf, sel):
    A('v_lshrrev_b32 %s, 5, %s' % (v(t), v(vLane)))
    A('v_bfe_u32 %s, %s, 2, 2' % (v(t + 1), v(vLane)))
    A('v_mul_u32_u24 %s, %d, %s' % (v(t), rowhalf, v(t)))
    A('v_add_lshl_u32 %s, %s, %s, 7' % (v(dst), v(t), v(t + 1)))
    A('v_bfe_u32 %s, %s, 3, 1' % (v(t), v(vLane)))
    if sel:
        A('v_xor_b32 %s, %s, %s' % (v(t), sel, v(t)))
    A('v_lshl_add_u32 %s, %s, 6, %s' % (v(dst), v(t), v(dst)))
    A('v_bfe_u32 %s, %s, 4, 1' % (v(t), v(vLane)))
    A('v_lshl_add_u32 %s, %s, 5, %s' % (v(dst), v(t), v(dst)))
    A('v_and_b32 %s, 3, %s' % (v(t), v(vLane)))
    A('v_lshl_add_u32 %s, %s, 3, %s' % (v(dst), v(t), v(dst)))

def selector(A, dst, t):
    A('v_lshrrev_b32 %s, 2, %s' % (v(t), v(vLane)))
    A('v_xor_b32 %s, %s, %s' % (v(t), v(t), v(vLane)))
    A('v_and_b32 %s, 4, %s' % (v(t), v(t)))
    A('v_cmp_eq_u32 vcc, 0, %s' % v(t))
    A('v_mov_b32 %s, 0x3f803f80' % v(t + 1))
    A('v_cndmask_b32 %s, 0, %s, vcc' % (v(dst), v(t + 1)))
    for i in range(1, 4):
        A('v_mov_b32 %s, %s' % (v(dst + i), v(dst)))

def onehot(A, dst, key, t, first=0):
    A('v_mov_b32 %s, 0x3f80' % v(t))
    A('v_mov_b32 %s, 0x3f800000' % v(t + 1))
    for r in range(4):
        A('v_cmp_eq_u32 vcc, %d, %s' % (first + 2 * r, v(key)))
        A('v_cndmask_b32 %s, 0, %s, vcc' % (v(dst + r), v(t)))
        A('v_cmp_eq_u32 vcc, %d, %s' % (first + 2 * r + 1, v(key)))
        A('v_cndmask_b32 %s, %s, %s, vcc' % (v(dst + r), v(dst + r), v(t + 1)))

def reduce_write(A, acc, t, base_s):
    A('v_and_b32 %s, 31, %s' % (v(t), v(vLane)))
    A('v_lshrrev_b32 %s, 5, %s' % (v(t + 1), v(vLane)))
    A('v_xor_b32 %s, %s, %s' % (v(t + 1), v(t + 1), v(vLane)))
    A('v_and_b32 %s, 7, %s' % (v(t + 1), v(t + 1)))
    A('v_lshlrev_b32 %s, 4, %s' % (v(t + 1), v(t + 1)))
    A('v_lshl_add_u32 %s, %s, 7, %s' % (v(t), v(t), v(t + 1)))
    A('v_add_u32 %s, %s, %s' % (v(t), s(base_s), v(t)))
    for q4 in range(1, 4):
        A('v_xor_b32 %s, %d, %s' % (v(t + q4), 32 * q4, v(t)))
    for q4 in range(4):
        A('v_xor_b32 %s, 16, %s' % (v(t + 4 + q4), v(t + q4)))
        A('v_add_u32 %s, %d, %s' % (v(t + 4 + q4), 65536, v(t + 4 + q4)))
    return [('ds_write_b128 %s, %s offset:%d' % (v(t + 4 * nt + q4), v(acc + 16 * (2 * nt + rt) + 4 * q4, 4), rt * 16384))
            for nt in range(2) for rt in range(2) for q4 in range(4)]

def w2_voff(A, dst, t):
    A('v_lshrrev_b32 %s, 3, %s' % (v(t), v(vLane)))
    A('v_lshrrev_b32 %s, 2, %s' % (v(t + 1), v(vLane)))
    A('v_and_b32 %s, 4, %s' % (v(t + 1), v(t + 1)))
    A('v_and_b32 %s, 7, %s' % (v(t + 2), v(vLane)))
    A('v_xor_b32 %s, %s, %s' % (v(t + 1), v(t + 1), v(t + 2)))
    A('v_lshlrev_b32 %s, 4, %s' % (v(t + 1), v(t + 1)))
    A('s_lshl_b32 %s, %s, 7' % (s(sT0), s(sCb)))
    A('v_lshl_add_u32 %s, %s, 10, %s' % (v(dst), v(t), v(t + 1)))
    A('v_add_u32 %s, %s, %s' % (v(dst), s(sT0), v(dst)))

def quad(vo, srdn, ldsbase, tag):
    L = []
    L.append('s_lshl_b32 m0, %s, 12' % s(sJ))
    if ldsbase:
        L.append('s_add_u32 m0, m0, %d' % ldsbase)
    for i in range(4):
        if i:
            L.append('s_add_u32 %s, %s, %d' % (s(sO[i]), s(sO[0]), 7168 * i))
        L.append(('buffer_load_dwordx4 %s, %s, %s offen offset:%d lds' % (v(vo[i & 1]), s(srdn, 4), s(sO[i]), 1024 * i), tag))
    return L

def xres(A, vOo, vX):
    A('v_lshrrev_b32 %s, 3, %s' % (v(vOo), v(vLane)))
    A('v_and_b32 %s, 7, %s' % (v(vOo + 1), v(vLane)))
    A('v_lshlrev_b32 %s, 10, %s' % (v(vOo), v(vOo)))
    A('v_lshl_add_u32 %s, %s, 4, %s' % (v(vOo), v(vOo + 1), v(vOo)))
    A('s_lshl_b32 %s, %s, 3' % (s(6), s(sRb2)))
    A('s_add_u32 %s, %s, %s' % (s(6), s(6), s(sWave)))
    A('s_lshl_b32 %s, %s, 13' % (s(6), s(6)))
    A('s_lshl_b32 %s, %s, 7' % (s(7), s(sCb)))
    A('s_add_u32 %s, %s, %s' % (s(6), s(6), s(7)))
    A('buffer_load_dwordx4 %s, %s, %s, %s offen' % (v(vX, 4), v(vOo), s(SX, 4), s(6)), tag='xres')

def gen():
    A = Asm()
    vT = 236
    A.raw('.p2align 8')
    A.raw('.type %s_kernel,@function' % NAME)
    A.raw('%s_kernel:' % NAME)
    A('s_cmp_ge_u32 s2, 256')
    A.branch('s_cbranch_scc1 L_END')
    A('s_load_dwordx16 s[16:31], s[0:1], 0')
    A('s_load_dwordx4 s[32:35], s[0:1], 64')
    A('s_load_dwordx2 s[36:37], s[0:1], 80')
    A('s_memrealtime s[6:7]')
    A('v_and_b32 %s, 63, v0' % v(vLane))
    A('v_lshrrev_b32 %s, 6, v0' % v(vT))
    A('v_lshlrev_b32 %s, 4, %s' % (v(vL16), v(vLane)))
    A('v_readfirstlane_b32 %s, %s' % (s(sWave), v(vT)))
    A('s_and_b32 %s, s2, 7' % s(sT0))
    A('s_lshr_b32 %s, s2, 3' % s(sT1))
    A('s_and_b32 %s, %s, 1' % (s(sRb), s(sT0)))
    A('s_lshl_b32 %s, %s, 3' % (s(sRb), s(sRb)))
    A('s_and_b32 %s, %s, 7' % (s(sT2), s(sT1)))
    A('s_add_u32 %s, %s, %s' % (s(sRb), s(sRb), s(sT2)))
    A('s_lshr_b32 %s, %s, 1' % (s(sCg), s(sT0)))
    A('s_lshl_b32 %s, %s, 2' % (s(sCg), s(sCg)))
    A('s_lshr_b32 %s, %s, 3' % (s(sT2), s(sT1)))
    A('s_add_u32 %s, %s, %s' % (s(sCg), s(sCg), s(sT2)))
    A('s_and_b32 %s, %s, 1' % (s(sTyp), s(sCg)))
    A('s_lshr_b32 %s, %s, 1' % (s(sG), s(sCg)))
    A('s_xor_b32 %s, %s, %d' % (s(sGq), s(sG), 2 * OPT['xq']))
    A('s_cmp_eq_u32 %s, 1' % s(sTyp))
    A('s_cselect_b32 %s, %s, %s' % (s(sGq), s(sG), s(sGq)))
    A('s_lshl_b32 %s, %s, 1' % (s(sF), s(sCg)))
    A('s_add_u32 %s, %s, %s' % (s(sF), s(sF), s(sRb)))
    A('s_and_b32 %s, %s, 7' % (s(sF), s(sF)))
    if OPT['xmap']:
        A('s_lshr_b32 %s, %s, 1' % (s(sRb2), s(sT0)))
        A('s_andn2_b32 %s, 1, %s' % (s(sT2), s(sT0)))
        A('s_lshl_b32 %s, %s, 2' % (s(sT2), s(sT2)))
        A('s_add_u32 %s, %s, %s' % (s(sRb2), s(sRb2), s(sT2)))
        A('s_lshl_b32 %s, %s, 2' % (s(sRb2), s(sRb2)))
    else:
        A('s_lshl_b32 %s, %s, 2' % (s(sRb2), s(sT0)))
    A('s_and_b32 %s, %s, 3' % (s(sT2), s(sT1)))
    A('s_add_u32 %s, %s, %s' % (s(sRb2), s(sRb2), s(sT2)))
    A('s_lshr_b32 %s, %s, 2' % (s(sCb), s(sT1)))
    A('s_and_b32 %s, %s, 3' % (s(sJ), s(sWave)))
    A('s_cmp_ge_u32 %s, 4' % s(sWave))
    A.branch('s_cbranch_scc1 C_START')
    gen_loader(A)
    gen_compute(A)
    gen_final(A)
    return A.text()

def gen_loader(A):
    vXo, vP1, vP2, vP3, v2o = 224, 226, 227, 228, 229
    vNon, vG, vTa, vFl = 230, 232, 234, 253
    vT = 236
    vRow = 0
    vCf = 32
    vCa = 56
    vSel = 68
    vGa = 72
    vB1 = 104
    sPA16, sPA8, sPB16, sPB8 = 52, 53, 54, 55
    sC1, sC2, sC3 = SWO, SWO + 1, SWO + 2
    sStat = 7
    A('s_lshl_b32 %s, %s, 7' % (s(sT0), s(sG)))
    A('s_lshl_b32 %s, %s, 8' % (s(sT1), s(sG)))
    A('s_add_u32 %s, %s, 1024' % (s(sC1), s(sT0)))
    A('s_add_u32 %s, %s, 2048' % (s(sC2), s(sT0)))
    A('s_add_u32 %s, %s, 128' % (s(sT3), s(sT1)))
    A('s_lshl_b32 %s, %s, 7' % (s(sT2), s(sGq)))
    A('s_cmp_eq_u32 %s, 1' % s(sTyp))
    A('s_cselect_b32 %s, %s, %s' % (s(sC3), s(sC2), s(sT2)))
    A('s_cselect_b32 %s, %s, %s' % (s(sC1), s(sC1), s(sT1)))
    A('s_cselect_b32 %s, %s, %s' % (s(sC2), s(sC2), s(sT3)))
    A('s_movk_i32 %s, 2752' % s(sT1))
    A('s_cselect_b32 %s, 3072, %s' % (s(sT2), s(sT1)))
    A('s_cselect_b32 %s, %s, 3072' % (s(sT3), s(sT1)))
    w2_voff(A, v2o, vT)
    A('v_mul_u32_u24 %s, %s, %s' % (v(vP2), s(sT2), v(vT)))
    A('v_add3_u32 %s, %s, %s, %s' % (v(vP1), v(vP2), v(vT + 1), s(sC1)))
    A('v_add3_u32 %s, %s, %s, %s' % (v(vP2), v(vP2), v(vT + 1), s(sC2)))
    A('v_add_u32 %s, %s, %s' % (v(vT + 3), s(sC3), v(vT + 1)))
    A('v_mul_u32_u24 %s, %s, %s' % (v(vP3), s(sT3), v(vT)))
    A('v_add_u32 %s, %s, %s' % (v(vP3), v(vP3), v(vT + 3)))
    A('v_cmp_gt_u32 vcc, 2752, %s' % v(vT + 3))
    A('v_mov_b32 %s, 0x%x' % (v(vT + 3), OOB))
    A('v_cndmask_b32 %s, %s, %s, vcc' % (v(vP3), v(vT + 3), v(vP3)))
    A('s_lshl_b32 %s, %s, 4' % (s(sPA16), s(sT2)))
    A('s_lshl_b32 %s, %s, 3' % (s(sPA8), s(sT2)))
    A('s_sub_u32 %s, %s, 1024' % (s(sPA8), s(sPA8)))
    A('s_lshl_b32 %s, %s, 4' % (s(sPB16), s(sT3)))
    A('s_lshl_b32 %s, %s, 3' % (s(sPB8), s(sT3)))
    A('s_sub_u32 %s, %s, 1024' % (s(sPB8), s(sPB8)))
    A('v_lshrrev_b32 %s, 4, %s' % (v(vT + 1), v(vLane)))
    A('v_xor_b32 %s, %s, %s' % (v(vT + 1), v(vT + 1), v(vT + 2)))
    A('s_lshl_b32 %s, %s, 2' % (s(sT0), s(sRb)))
    A('s_add_u32 %s, %s, %s' % (s(sT0), s(sT0), s(sJ)))
    A('s_lshl_b32 %s, %s, 15' % (s(sT0), s(sT0)))
    A('v_lshlrev_b32 %s, 10, %s' % (v(vXo), v(vT)))
    A('v_lshl_add_u32 %s, %s, 4, %s' % (v(vXo), v(vT + 1), v(vXo)))
    A('v_add_u32 %s, %s, %s' % (v(vXo), s(sT0), v(vXo)))
    A('v_xor_b32 %s, 64, %s' % (v(vXo + 1), v(vXo)))
    A('s_lshl_b32 %s, %s, 11' % (s(sM), s(sJ)))
    A('s_lshl_b32 %s, %s, 4' % (s(sA), s(sRb)))
    A('s_add_u32 %s, %s, %s' % (s(sA), s(sA), s(sCg)))
    A('s_lshl_b32 %s, %s, 2' % (s(sA), s(sA)))
    A('s_add_u32 %s, %s, %s' % (s(sA), s(sA), s(sJ)))
    A('s_lshl_b32 %s, %s, 11' % (s(sB), s(sA)))
    A('v_and_b32 %s, 32, %s' % (v(vT + 4), v(vLane)))
    A('v_lshl_add_u32 %s, %s, 4, %s' % (v(vT + 4), v(vT + 4), v(vL16)))
    A('v_mov_b32 %s, 0' % v(vT + 5))
    A('s_or_b32 %s, s2, %s' % (s(sT0), s(sWave)))
    A('s_waitcnt lgkmcnt(0)')
    srd(A, SD, 34, 256)
    A('s_cmp_lg_u32 %s, 0' % s(sT0))
    A.branch('s_cbranch_scc1 L_NONONCE')
    A('s_or_b32 s6, s6, 1')
    A('v_mov_b32 %s, s6' % v(vT))
    with Keep(A):
        A('buffer_store_dword %s, %s, %s, 0 offen offset:128 sc1' % (v(vT), v(vT + 5), s(SD, 4)))
    A.label('L_NONONCE')
    srd(A, SX, 16, 2048 * 1024)
    A('s_cmp_eq_u32 %s, 1' % s(sTyp))
    for d, x_, y_, p16 in ((SA, 18, 26, sPA16), (SB, 26, 18, sPB16)):
        A('s_cselect_b32 %s, %s, %s' % (s(d), s(x_), s(y_)))
        A('s_cselect_b32 %s, %s, %s' % (s(d + 1), s(x_ + 1), s(y_ + 1)))
        A('s_mov_b32 %s, 0x20000' % s(d + 3))
    A('s_lshl_b32 %s, %s, 5' % (s(SA + 2), s(sPA16)))
    A('s_lshl_b32 %s, %s, 5' % (s(SB + 2), s(sPB16)))
    stamp(A, 0)

    def krow(st):
        return ['s_add_u32 %s, %s, %d' % (s(sT3), s(sF), st),
                's_and_b32 %s, %s, 7' % (s(sT3), s(sT3)),
                's_lshl_b32 %s, %s, 2' % (s(sT3), s(sT3)),
                's_add_u32 %s, %s, %s' % (s(sT3), s(sT3), s(sJ))]
    def grp_w(st):
        L = krow(st)
        L.append('s_mul_i32 %s, %s, %s' % (s(sO[0]), s(sT3), s(sPA16)))
        L.append('s_add_u32 m0, %s, %d' % (s(sM), WP(st & 3)))
        L.append('s_add_u32 %s, %s, %s' % (s(sO[1]), s(sO[0]), s(sPA8)))
        L.append(('buffer_load_dwordx4 %s, %s, %s offen lds' % (v(vP1), s(SA, 4), s(sO[0])), 's%d' % st))
        L.append(('buffer_load_dwordx4 %s, %s, %s offen offset:1024 lds' % (v(vP1), s(SA, 4), s(sO[1])), 's%d' % st))
        L.append('s_add_u32 m0, %s, %d' % (s(sM), WP(st & 3) + 8192))
        L.append(('buffer_load_dwordx4 %s, %s, %s offen lds' % (v(vP2), s(SA, 4), s(sO[0])), 's%d' % st))
        L.append(('buffer_load_dwordx4 %s, %s, %s offen offset:1024 lds' % (v(vP2), s(SA, 4), s(sO[1])), 's%d' % st))
        return L
    def grp_p3(st):
        tag = 's0' if st == 0 else 'p3'
        L = krow(st)
        L.append('s_mul_i32 %s, %s, %s' % (s(sO[0]), s(sT3), s(sPB16)))
        L.append('s_add_u32 m0, %s, %d' % (s(sM), P3B[st]))
        L.append('s_add_u32 %s, %s, %s' % (s(sO[1]), s(sO[0]), s(sPB8)))
        L.append(('buffer_load_dwordx4 %s, %s, %s offen lds' % (v(vP3), s(SB, 4), s(sO[0])), tag))
        L.append(('buffer_load_dwordx4 %s, %s, %s offen offset:1024 lds' % (v(vP3), s(SB, 4), s(sO[1])), tag))
        return L
    def grp_x(st):
        L = []
        L.append('s_add_u32 %s, %s, %d' % (s(sT3), s(sF), st))
        L.append('s_and_b32 %s, %s, 7' % (s(sT3), s(sT3)))
        L.append('s_lshl_b32 %s, %s, 7' % (s(sO[0]), s(sT3)))
        return L + quad((vXo, vXo + 1), SX, XP(st & 3), 's%d' % st)
    UL = [(8, 0), (8, 1), (8, 4), (8, 5), (8, 2), (8, 3), (8, 6), (8, 7), (3, 32), (3, 33), (3, 34)]
    UP = [WP(1), XP(2), WP(2), XP(3), WP(3), XP(2), WP(2), XP(3), WP(3), XP(2), WP(2)]
    def grp_w2(i):
        m, c = UL[i]
        L = ['s_mul_i32 %s, %s, %d' % (s(sO[0]), s(sJ), m * 32768)]
        if c:
            L.append('s_add_u32 %s, %s, %d' % (s(sO[0]), s(sO[0]), c * 32768))
        return L + quad((v2o, v2o), SW2, UP[i], 'u%d' % i)
    groups = []
    for st in range(8):
        groups += [('w', st), ('x', st)]
    SCHED = {0: [6, 2, 2, 2, 2, 2], 1: [4, 4, 2, 2, 2, 2], 2: [8, 0, 2, 2, 2, 2], 3: [5, 3, 2, 2, 2, 2]}[OPT['sched']]
    pos = [0]
    def issue(n, iv):
        for _ in range(n):
            kind, st = groups[pos[0]]
            assert st <= iv + 3 or st < 4, (st, iv)
            emit(A, grp_w(st) if kind == 'w' else grp_x(st))
            pos[0] += 1

    nload = 'buffer_load_dword %s, %s, %s, 0 offen offset:128 sc1' % (v(vNon), v(vT + 5), s(SD, 4))
    A('buffer_load_dwordx4 %s, %s, %s, %s offen' % (v(vRow, 4), v(vT + 4), s(SX, 4), s(sB)), tag='row')
    A('buffer_load_dwordx4 %s, %s, %s, %s offen offset:512' % (v(vRow + 4, 4), v(vT + 4), s(SX, 4), s(sB)), tag='row')
    issue(2, -1)
    emit(A, grp_p3(0))
    A(nload, tag='s0')
    issue(2, -1)
    A('buffer_load_dword %s, %s, %s, 0 offen offset:128 sc1' % (v(vNon + 1), v(vT + 5), s(SD, 4)), tag='non2')
    srd(A, SWS, 36, WS_SIZE)
    A('s_lshl_b32 %s, %s, 4' % (s(sStat), s(sA)))
    A('s_add_u32 %s, %s, 0x%x' % (s(sStat), s(sStat), WS_STAT))
    srd(A, SW2, 30, 1376 * 1024)

    def xsum32(r, t):
        for ctl in ('quad_perm:[1,0,3,2]', 'quad_perm:[2,3,0,1]', 'row_half_mirror', 'row_mirror'):
            A('v_add_f32_dpp %s, %s, %s %s row_mask:0xf bank_mask:0xf' % (v(r), v(r), v(r), ctl))
        A('v_mov_b32 %s, %s' % (v(t), v(r)))
        A('v_permlane16_swap_b32 %s, %s' % (v(r), v(t)))
        A('v_add_f32 %s, %s, %s' % (v(r), v(r), v(t)))
    U = vRow + 8
    tr_addr(A, vTa, vT, 8, s(sJ))
    A('s_lshr_b32 %s, %s, 3' % (s(sT0), s(sRb)))
    A('s_lshl_b32 %s, %s, 12' % (s(sT0), s(sT0)))
    A('s_add_u32 %s, %s, %d' % (s(sT0), s(sT0), L_W))
    A('v_add_u32 %s, %s, %s' % (v(vTa), s(sT0), v(vTa)))
    A('v_add_u32 %s, %d, %s' % (v(vTa + 1), P3B[0] - L_W, v(vTa)))
    selector(A, vSel, vT)
    A('v_lshlrev_b32 %s, 2, %s' % (v(vFl), v(vLane)))
    A('v_and_b32 %s, 0x7c, %s' % (v(vFl), v(vFl)))
    A.wait_vm('row')
    for j in range(8):
        A('v_lshlrev_b32 %s, 16, %s' % (v(U + 2 * j), v(vRow + j)))
        A('v_and_b32 %s, 0xffff0000, %s' % (v(U + 2 * j + 1), v(vRow + j)))
    for j in range(4):
        A('v_add_f32 %s, %s, %s' % (v(vRow + j), v(U + j), v(U + 4 + j)))
        A('v_add_f32 %s, %s, %s' % (v(vRow + 4 + j), v(U + 8 + j), v(U + 12 + j)))
    for st_ in (4, 2, 1):
        for j in range(st_):
            A('v_add_f32 %s, %s, %s' % (v(vRow + j), v(vRow + j), v(vRow + st_ + j)))
    xsum32(vRow, vRow + 1)
    A('v_mul_f32 %s, 0xbb000000, %s' % (v(vRow), v(vRow)))
    for j in range(16):
        A('v_add_f32 %s, %s, %s' % (v(U + j), v(U + j), v(vRow)))
    for j in range(4):
        A('v_mul_f32 %s, %s, %s' % (v(vRow + 4 + j), v(U + j), v(U + j)))
    for j in range(4, 16):
        A('v_fmac_f32 %s, %s, %s' % (v(vRow + 4 + (j & 3)), v(U + j), v(U + j)))
    r = vRow + 4
    A('v_add_f32 %s, %s, %s' % (v(r), v(r), v(r + 1)))
    A('v_add_f32 %s, %s, %s' % (v(r + 2), v(r + 2), v(r + 3)))
    A('v_add_f32 %s, %s, %s' % (v(r), v(r), v(r + 2)))
    xsum32(r, r + 1)
    A('v_mul_f32 %s, 0x3b000000, %s' % (v(r), v(r)))
    A('v_cvt_pk_bf16_f32 %s, %s, %s' % (v(r), v(r), v(r)))
    A('v_lshlrev_b32 %s, 16, %s' % (v(r), v(r)))
    A('v_add_f32 %s, 0x3727c5ac, %s' % (v(r), v(r)))
    A('v_cvt_pk_bf16_f32 %s, %s, %s' % (v(r), v(r), v(r)))
    A('v_lshlrev_b32 %s, 16, %s' % (v(r), v(r)))
    A('v_sqrt_f32 %s, %s' % (v(r), v(r)))
    A('v_cvt_pk_bf16_f32 %s, %s, %s' % (v(vG), v(vRow), v(r)))
    A('v_cmp_eq_u32 vcc, 0, %s' % v(vFl))
    A('v_lshrrev_b32 %s, 2, %s' % (v(vT), v(vLane)))
    A('v_mov_b32 %s, 0x%x' % (v(vT + 1), OOB))
    A('v_cndmask_b32 %s, %s, %s, vcc' % (v(vT + 4), v(vT + 1), v(vT)))
    issue(SCHED[0] - 4, -1)
    A.wait_vm('s0')
    A('s_barrier')
    stamp(A, 1)
    A('s_cmp_ge_u32 %s, 2' % s(sJ))
    A.branch('s_cbranch_scc1 L_NOCF')
    with Keep(A):
        for ks in range(2):
            for u in range(3):
                for hh in range(2):
                    A('ds_read_b64_tr_b16 %s, %s offset:%d' % (v(vCf + 12 * ks + 4 * u + 2 * hh, 2), v(vTa + (u >> 1)), 8192 * (u & 1) + 2048 * ks + 512 * hh))
    A.label('L_NOCF')
    A('v_readfirstlane_b32 %s, %s' % (s(sNonce), v(vNon)))
    A('s_cmp_lg_u32 %s, 0' % s(sNonce))
    A.branch('s_cbranch_scc1 LN_DONE')
    with Keep(A):
        A.wait_vm('non2')
        A('v_mov_b32 %s, %s' % (v(vNon), v(vNon + 1)))
        poll(A, 'LN', nload, vNon, None, cmp_nonce=False)
        A('v_readfirstlane_b32 %s, %s' % (s(sNonce), v(vNon)))
    A.label('LN_DONE')
    A('v_mov_b32 %s, %s' % (v(vG + 1), v(vNon)))
    A('buffer_store_dwordx2 %s, %s, %s, %s offen sc1' % (v(vG, 2), v(vT + 4), s(SWS, 4), s(sStat)), tag='pub')
    A('s_cmp_ge_u32 %s, 2' % s(sJ))
    A.branch('s_cbranch_scc1 LB_START')
    vm0 = list(A.vm)
    pos0 = pos[0]

    def bar(n):
        A('s_barrier')
        if n == 4:
            stamp(A, 2)
    GI = OPT['gi']
    for k in 'AB':
        if k == 'B':
            A.label('LB_START')
            A.vm = list(vm0); A.lg = []; pos[0] = pos0
        sCs = 6
        if k == 'A':
            A('s_lshl_b32 %s, %s, 1' % (s(sCs), s(sCg)))
            A('s_add_u32 %s, %s, %s' % (s(sCs), s(sCs), s(sJ)))
            A('s_lshl_b32 %s, %s, 13' % (s(sCs), s(sCs)))
            A('s_add_u32 %s, %s, 0x%x' % (s(sCs), s(sCs), WS_CS))
            A('s_lshl_b32 %s, %s, 9' % (s(sT1), s(sRb)))
            A('s_add_u32 %s, %s, %s' % (s(sT1), s(sT1), s(sCs)))
            A('v_and_b32 %s, 0x1ff, %s' % (v(vT), v(vL16)))
            A('s_waitcnt lgkmcnt(0)')
            for ks in range(2):
                for u in range(3):
                    A('v_mfma_f32_16x16x32_bf16 %s, %s, %s, %s' % (v(vCa + 4 * u, 4), v(vSel, 4), v(vCf + 12 * ks + 4 * u, 4), '0' if ks == 0 else v(vCa + 4 * u, 4)))
            A('v_mov_b32 %s, %s' % (v(vCa + 1), v(vCa + 4)))
            A('v_mov_b32 %s, %s' % (v(vCa + 2), v(vCa + 8)))
            A('v_mov_b32 %s, %s' % (v(vCa + 3), v(vNon)))
            A('buffer_store_dwordx4 %s, %s, %s, %s offen sc1' % (v(vCa, 4), v(vT), s(SWS, 4), s(sT1)), tag='css')
            A('s_add_u32 %s, %s, 4096' % (s(sStat), s(sCs)))
            gal = ['buffer_load_dwordx4 %s, %s, %s, %s offen offset:%d sc1' % (v(vGa + 4 * i, 4), v(vL16), s(SWS, 4), s(sCs if i < 4 else sStat), 1024 * (i & 3)) for i in range(8)]
        else:
            A('s_lshl_b32 %s, %s, 1' % (s(sStat), s(sRb)))
            A('s_add_u32 %s, %s, %s' % (s(sStat), s(sStat), s(sJ)))
            A('s_lshl_b32 %s, %s, 9' % (s(sStat), s(sStat)))
            A('s_add_u32 %s, %s, 0x%x' % (s(sStat), s(sStat), WS_STAT - 1024))
            A('v_lshlrev_b32 %s, 3, %s' % (v(vTa), v(vLane)))
            gal = ['buffer_load_dwordx2 %s, %s, %s, %s offen sc1' % (v(vGa, 2), v(vTa), s(SWS, 4), s(sStat))]
        def gather():
            emit(A, [(x, 'ga') for x in gal])
        def small():
            if k == 'A':
                srd(A, STMP, 28, 2752)
                A('s_lshl_b32 %s, %s, 6' % (s(sT0), s(sJ)))
                A('s_add_u32 %s, %s, %s' % (s(sC1), s(sC1), s(sT0)))
                A('s_add_u32 %s, %s, %s' % (s(sC2), s(sC2), s(sT0)))
                A('s_add_u32 %s, %s, %s' % (s(sC3), s(sC3), s(sT0)))
                A('s_cmp_eq_u32 %s, 1' % s(sTyp))
                A('s_cselect_b32 %s, 0x%x, %s' % (s(sC1), OOB, s(sC1)))
                A('s_cselect_b32 %s, 0x%x, %s' % (s(sC2), OOB, s(sC2)))
                A('s_cselect_b32 %s, %s, 0x%x' % (s(sC3), s(sC3), OOB))
                A('v_lshrrev_b32 %s, 1, %s' % (v(vT), v(vFl)))
                for u in range(3):
                    A('buffer_load_ushort %s, %s, %s, %s offen' % (v(vB1 + u), v(vT), s(STMP, 4), s(sC1 + u)), tag='b1')
            else:
                srd(A, STMP, 20, 16384)
                A('s_lshl_b32 %s, %s, 1' % (s(sT0), s(sGq)))
                A('s_add_u32 %s, %s, %s' % (s(sT0), s(sT0), s(sJ)))
                A('s_lshl_b32 %s, %s, 10' % (s(sT0), s(sT0)))
                A('s_sub_u32 %s, %s, 2048' % (s(sT0), s(sT0)))
                A('s_lshr_b32 %s, %s, 1' % (s(sT1), s(sM)))
                A('s_add_u32 m0, %s, %d' % (s(sT1), TPH - 2048))
                A('buffer_load_dwordx4 %s, %s, %s offen lds' % (v(vL16), s(STMP, 4), s(sT0)), tag='b1')
        def tables():
            A.wait_vm('ga')
            if k == 'B':
                poll(A, 'LST', gal, vGa + 1, None)
                A('v_and_b32 %s, 0xffff, %s' % (v(vT), v(vGa)))
                A('v_lshl_or_b32 %s, %s, 16, %s' % (v(vT), v(vGa), v(vT)))
                A('v_lshrrev_b32 %s, 16, %s' % (v(vT + 1), v(vGa)))
                A('v_and_b32 %s, 0xffff0000, %s' % (v(vGa), v(vGa)))
                A('v_rcp_f32 %s, %s' % (v(vT + 2), v(vGa)))
                A('s_lshr_b32 %s, %s, 2' % (s(sT0), s(sM)))
                A('s_add_u32 %s, %s, %d' % (s(sT0), s(sT0), TB - 1024))
                A('v_add_u32 %s, %s, %s' % (v(vT + 3), s(sT0), v(vTa)))
                A('ds_write_b64 %s, %s' % (v(vT + 3), v(vT, 2)))
                A('s_lshr_b32 %s, %s, 3' % (s(sT0), s(sM)))
                A('s_add_u32 %s, %s, %d' % (s(sT0), s(sT0), TR - 512))
                A('v_lshl_add_u32 %s, %s, 2, %s' % (v(vT + 3), v(vLane), s(sT0)))
                A('ds_write_b32 %s, %s' % (v(vT + 3), v(vT + 2)))
                A('s_lshr_b32 %s, %s, 4' % (s(sT0), s(sM)))
                A('s_add_u32 %s, %s, %d' % (s(sT0), s(sT0), TS - 256))
                A('v_lshl_add_u32 %s, %s, 1, %s' % (v(vT + 3), v(vLane), s(sT0)))
                A('ds_write_b16 %s, %s' % (v(vT + 3), v(vT + 1)))
                A('v_cmp_eq_u32 vcc, 0, %s' % v(vFl))
                A('v_cndmask_b32 %s, 0, %s, vcc' % (v(vT + 4), v(vNon)))
                A('v_add_u32 %s, %d, %s' % (v(vT + 6), TN, v(vFl)))
                A('ds_write_b32 %s, %s' % (v(vT + 6), v(vT + 4)))
            else:
                pre = ['v_min3_u32 %s, %s, %s, %s' % (v(vT), v(vGa + 3), v(vGa + 7), v(vGa + 11)),
                       'v_max3_u32 %s, %s, %s, %s' % (v(vT + 1), v(vGa + 3), v(vGa + 7), v(vGa + 11)),
                       'v_min3_u32 %s, %s, %s, %s' % (v(vT), v(vT), v(vGa + 15), v(vGa + 19)),
                       'v_max3_u32 %s, %s, %s, %s' % (v(vT + 1), v(vT + 1), v(vGa + 15), v(vGa + 19)),
                       'v_min3_u32 %s, %s, %s, %s' % (v(vT), v(vT), v(vGa + 23), v(vGa + 27)),
                       'v_max3_u32 %s, %s, %s, %s' % (v(vT + 1), v(vT + 1), v(vGa + 23), v(vGa + 27)),
                       'v_min_u32 %s, %s, %s' % (v(vT), v(vT), v(vGa + 31)),
                       'v_max_u32 %s, %s, %s' % (v(vT + 1), v(vT + 1), v(vGa + 31)),
                       'v_cmp_eq_u32 vcc, %s, %s' % (v(vT), v(vT + 1)),
                       'v_cndmask_b32 %s, 0, %s, vcc' % (v(vT), v(vT))]
                poll(A, 'LCS', gal, vT, None, pre=pre)
                for st_ in (16, 8, 4):
                    for r in range(st_):
                        if r & 3 != 3:
                            A('v_add_f32 %s, %s, %s' % (v(vGa + r), v(vGa + r), v(vGa + st_ + r)))
                for u in range(3):
                    A('v_mov_b32 %s, %s' % (v(vGa + 4 + u), v(vGa + u)))
                for u in range(3):
                    A('v_permlane32_swap_b32 %s, %s' % (v(vGa + u), v(vGa + 4 + u)))
                for u in range(3):
                    A('v_add_f32 %s, %s, %s' % (v(vGa + u), v(vGa + u), v(vGa + 4 + u)))
                A('s_mul_i32 %s, %s, 768' % (s(sT0), s(sJ)))
                A('s_add_u32 %s, %s, %d' % (s(sT0), s(sT0), TA))
                A('v_lshl_add_u32 %s, %s, 1, %s' % (v(vT), v(vFl), s(sT0)))
                for u in range(3):
                    p = vGa + 8 + 2 * u
                    A('v_cvt_pk_bf16_f32 %s, %s, %s' % (v(p), v(vGa + u), v(vGa + u)))
                    A('v_lshlrev_b32 %s, 16, %s' % (v(p), v(p)))
                    A('v_sub_f32 %s, %s, %s' % (v(p), v(vGa + u), v(p)))
                    A('v_cvt_pk_bf16_f32 %s, %s, %s' % (v(p), v(vGa + u), v(p)))
                    A('v_mov_b32 %s, %s' % (v(p + 1), v(vB1 + u)))
                    A('ds_write_b64 %s, %s offset:%d' % (v(vT), v(p, 2), 256 * u))
        for iv in range(8):
            if iv == GI:
                gather()
            if iv < 5:
                issue(SCHED[iv + 1], iv)
            if iv == 2:
                small()
            if iv == 4:
                emit(A, grp_p3(1))
            if iv == 5:
                for st in (2, 3, 4, 5):
                    emit(A, grp_p3(st))
            if iv == 6:
                for st in (6, 7):
                    emit(A, grp_p3(st))
                emit(A, grp_w2(0))
            if iv == 7:
                tables()
                emit(A, grp_w2(1))
                emit(A, grp_w2(2))
            if iv < 7:
                A.wait_vm('s%d' % (iv + 1))
                bar(iv + 1)
        A('s_waitcnt lgkmcnt(0)')
        A.lg = []
        if k == 'A':
            vmA = list(A.vm)
            A.branch('s_branch L_JOIN')
    A.label('L_JOIN')
    vmB = list(A.vm)
    assert vmA == vmB, (vmA, vmB)
    A('s_barrier')
    stamp(A, 3)
    vAcc, vW, vR = 0, 64, 176
    vA0, vB0 = 226, 224
    vFw = 232
    emit(A, grp_w2(3))
    emit(A, grp_w2(4))
    tr_addr(A, vA0, vT, 4, None)
    A('s_lshl_b32 %s, %s, 1' % (s(sT0), s(sM)))
    A('v_add_u32 %s, %s, %s' % (v(vA0), s(sT0), v(vA0)))
    A('v_xor_b32 %s, 64, %s' % (v(vA0 + 1), v(vA0)))
    A('v_add_u32 %s, %d, %s' % (v(vB0), L_W, v(vA0)))
    A('v_add_u32 %s, %d, %s' % (v(vB0 + 1), L_W, v(vA0 + 1)))
    A('s_lshl_b32 %s, %s, 2' % (s(sT0), s(sJ)))
    A('s_add_u32 %s, %s, %d' % (s(sT0), s(sT0), FL_P3))
    A('v_mov_b32 %s, %s' % (v(vFw), s(sT0)))
    A('v_mov_b32 %s, 1' % v(vFw + 1))
    A.wait_vm('p3')
    A('ds_write_b32 %s, %s' % (v(vFw), v(vFw + 1)))
    A('v_mov_b32 %s, 2' % v(vFw + 2))
    def wread(slot, lds, tag):
        base, off = (vA0, lds) if lds < L_W else (vB0, lds - L_W)
        return [('ds_read_b64_tr_b16 %s, %s offset:%d' % (v(vW + 16 * slot + 8 * c + 4 * nt + 2 * hh, 2), v(base + nt), off + 2048 * c + 1024 * hh), tag)
                for c in range(2) for nt in range(2) for hh in range(2)]
    sFl, sAct = sA, sB
    A('s_lshl_b32 %s, %s, 3' % (s(sFl), s(sRb2)))
    A('s_add_u32 %s, %s, %s' % (s(sFl), s(sFl), s(sJ)))
    A('s_lshl_b32 %s, %s, 7' % (s(sFl), s(sFl)))
    A('s_add_u32 %s, %s, 0x%x' % (s(sFl), s(sFl), WS_F))
    vFv = 228
    fload = 'buffer_load_dword %s, %s, %s, %s offen sc1' % (v(vFv), v(vFl), s(SWS, 4), s(sFl))
    A('s_mul_i32 %s, %s, %d' % (s(sAct), s(sRb2), NU * 4096))
    A('s_lshl_b32 %s, %s, 15' % (s(sO[4]), s(sJ)))
    A('s_add_u32 %s, %s, %s' % (s(sO[4]), s(sO[4]), s(sAct)))
    A('s_mul_i32 %s, %s, %d' % (s(sO[5]), s(sJ), 3 * 4096))
    A('s_add_u32 %s, %s, %s' % (s(sO[5]), s(sO[5]), s(sAct)))
    for i in range(7):
        A.wait_vm('u%d' % i)
        emit(A, wread(i, UP[i], 'm'))
        A.wait_lg(None)
        if i == 0:
            A('ds_write_b32 %s, %s' % (v(vFw), v(vFw + 2)))
        else:
            emit(A, grp_w2(4 + i))
        if i == 4:
            A(fload, tag='fl')
    stamp(A, 8)
    def aload(i):
        m, c = UL[i]
        A('s_add_u32 %s, %s, %d' % (s(sT1), s(sO[4] if m == 8 else sO[5]), c * 4096))
        for q in range(4):
            A('buffer_load_dwordx4 %s, %s, %s, %s offen offset:%d sc1' % (v(vR + 16 * (i % 3) + 4 * q, 4), v(vL16), s(SWS, 4), s(sT1), 1024 * q), tag='a%d' % i)
    def gate(i):
        if i in (0, 4, 8):
            A.wait_vm('fl')
            poll(A, 'LA%d' % i, fload, vFv, {0: '0xf', 4: '0xff', 8: '0x3fff'}[i])
            if i == 0:
                stamp(A, 4)
    for i in range(3):
        gate(i)
        aload(i)
    A('s_cmp_eq_u32 %s, 1' % s(sTyp))
    A.branch('s_cbranch_scc1 L_NOKV')
    with Keep(A):
        vK, vD, vSg, vZo, vKw = 0, 36, 44, 48, 49
        sKf, sKp = sO[0], sO[1]
        A('s_lshl_b32 %s, %s, 3' % (s(sT0), s(sGq)))
        A('s_add_u32 %s, %s, %s' % (s(sT0), s(sT0), s(sJ)))
        A('s_lshl_b32 %s, %s, 7' % (s(sKf), s(sT0)))
        A('s_add_u32 %s, %s, 0x%x' % (s(sKf), s(sKf), WS_KF))
        kfl = ['buffer_load_dword %s, %s, %s, %s offen offset:%d sc1' % (v(vFw + 2), v(vFl), s(SWS, 4), s(sKf), 512 * h) for h in range(2)]
        A(kfl[0])
        A('s_mul_i32 %s, %s, %d' % (s(sKp), s(sT0), KVS))
        A('s_add_u32 %s, %s, 0x%x' % (s(sKp), s(sKp), WS_KVP))
        A('v_and_b32 %s, 15, %s' % (v(vT), v(vLane)))
        A('v_lshrrev_b32 %s, 4, %s' % (v(vT + 1), v(vLane)))
        A('v_lshlrev_b32 %s, 3, %s' % (v(vT + 2), v(vT + 1)))
        A('v_xor_b32 %s, %s, %s' % (v(vT + 2), v(vT + 2), v(vT)))
        A('v_and_b32 %s, 15, %s' % (v(vT + 2), v(vT + 2)))
        onehot(A, vSg, vT + 2, vT + 3)
        A('v_lshlrev_b32 %s, 4, %s' % (v(vZo), v(vT + 1)))
        A('v_lshl_add_u32 %s, %s, 6, %s' % (v(vZo), v(vT), v(vZo)))
        A('v_mov_b32 %s, 0x%x' % (v(vT + 3), OOB))
        A('v_cmp_gt_u32 vcc, 8, %s' % v(vT))
        A('v_cndmask_b32 %s, %s, %s, vcc' % (v(vZo), v(vT + 3), v(vZo)))
        A('v_lshrrev_b32 %s, 1, %s' % (v(vT + 2), v(vT + 1)))
        A('v_mul_u32_u24 %s, 272, %s' % (v(vT + 2), v(vT + 2)))
        A('v_and_b32 %s, 1, %s' % (v(vT + 1), v(vT + 1)))
        A('v_lshl_add_u32 %s, %s, 3, %s' % (v(vT + 2), v(vT + 1), v(vT + 2)))
        A('s_lshr_b32 %s, %s, 1' % (s(sT0), s(sJ)))
        A('s_mul_i32 %s, %s, %d' % (s(sT0), s(sT0), 2 * KVH))
        A('s_and_b32 %s, %s, 1' % (s(sT1), s(sJ)))
        A('s_mul_i32 %s, %s, 544' % (s(sT1), s(sT1)))
        A('s_add_u32 %s, %s, %s' % (s(sT0), s(sT0), s(sT1)))
        A('s_add_u32 %s, %s, %d' % (s(sT0), s(sT0), KVL))
        A('v_add_u32 %s, %s, %s' % (v(vKw + 1), s(sT0), v(vT + 2)))
        A('v_lshl_add_u32 %s, %s, 4, %s' % (v(vKw), v(vT), v(vKw + 1)))
        for h in range(2):
            A('s_waitcnt vmcnt(0)')
            poll(A, 'LK%d' % h, kfl[h], vFw + 2, '0xffff')
            A.vm = []
            for i in range(9):
                if i % 4 == 0:
                    A('s_add_u32 %s, %s, %d' % (s(sT1), s(sKp), 4 * KVS * h + 1024 * i))
                A('buffer_load_dwordx4 %s, %s, %s, %s offen offset:%d sc1' % (v(vK + 4 * i, 4), v(vL16 if i < 8 else vZo), s(SWS, 4), s(sT1), 1024 * (i & 3)), tag='k%d' % i)
            if h == 0:
                A(kfl[1])
            for i in range(9):
                A.wait_vm('k%d' % i)
                d = vD if i < 8 else vD + 4
                A('v_mfma_f32_16x16x32_bf16 %s, %s, %s, %s' % (v(d, 4), v(vSg, 4), v(vK + 4 * i, 4), '0' if i in (0, 8) else v(d, 4)))
            A('v_cvt_pk_bf16_f32 %s, %s, %s' % (v(vD), v(vD), v(vD + 1)))
            A('v_cvt_pk_bf16_f32 %s, %s, %s' % (v(vD + 1), v(vD + 2), v(vD + 3)))
            A('ds_write_b64 %s, %s offset:%d' % (v(vKw), v(vD, 2), KVH * h))
            for ctl in ('quad_perm:[1,0,3,2]', 'quad_perm:[2,3,0,1]', 'row_half_mirror', 'row_mirror'):
                for r in range(4):
                    A('v_add_f32_dpp %s, %s, %s %s row_mask:0xf bank_mask:0xf' % (v(vD + 4 + r), v(vD + 4 + r), v(vD + 4 + r), ctl))
            A('v_cvt_pk_bf16_f32 %s, %s, %s' % (v(vD + 4), v(vD + 4), v(vD + 5)))
            A('v_cvt_pk_bf16_f32 %s, %s, %s' % (v(vD + 5), v(vD + 6), v(vD + 7)))
            A('ds_write_b64 %s, %s offset:%d' % (v(vKw + 1), v(vD + 4, 2), KVH * h + 256))
            A('ds_write_b32 %s, %s offset:%d' % (v(vFw), v(vFw + 1), FL_KV - FL_P3 + 16 * h))
    A.label('L_NOKV')
    stamp(A, 5)
    A(fload, tag='fl')
    for i in range(11):
        A.wait_vm('a%d' % i)
        if i >= 7:
            A.wait_lg('b%d' % i)
        wb = vW + 16 * (i % 7)
        rb_ = vR + 16 * (i % 3)
        for c in range(2):
            for nt in range(2):
                for rt in range(2):
                    acc = vAcc + 16 * (2 * nt + rt)
                    A('v_mfma_f32_32x32x16_bf16 %s, %s, %s, %s' % (v(acc, 16), v(wb + 8 * c + 4 * nt, 4), v(rb_ + 8 * c + 4 * rt, 4), '0' if (i == 0 and c == 0) else v(acc, 16)))
        if i + 3 < 11:
            gate(i + 3)
            aload(i + 3)
            if i + 3 == 6:
                A(fload, tag='fl')
        if i < 4:
            emit(A, wread(i, UP[7 + i], 'b%d' % (i + 7)))
        if i == 8:
            xres(A, 240, 244)
    stamp(A, 6)
    A('s_lshl_b32 %s, %s, 1' % (s(sT0), s(sM)))
    A('s_add_u32 %s, %s, %d' % (s(sT0), s(sT0), 32768))
    wr = reduce_write(A, vAcc, 64, sT0)
    A('s_mov_b32 %s, 0x%x' % (s(sO[0]), LN2))
    A('s_mov_b32 %s, 0x%x' % (s(sO[1]), LN2))
    for n, w in enumerate(wr):
        r = vAcc + 4 * n
        A('v_pk_mul_f32 %s, %s, %s' % (v(r, 2), v(r, 2), s(sO[0], 2)))
        A('v_pk_mul_f32 %s, %s, %s' % (v(r + 2, 2), v(r + 2, 2), s(sO[0], 2)))
        A(w)
    A.branch('s_branch F_START')

def gen_compute(A):
    A.label('C_START')
    A.vm = []; A.lg = []
    vX = 0
    def ACC(u, r): return 128 + 32 * u + 16 * r
    vWf, vXf = 192, 216
    vXo, vXt = 228, 232
    vSel0, vSel1 = 236, 240
    vWa, vTa, vTb, vTr, vPa, vFo, vWm, vNon = 244, 245, 246, 247, 248, 249, 250, 252
    vR = [232, 234]
    vT = 0
    sCh, sRg, sP2 = sA, sB, sM
    sL2, sHO = 52, 54
    A('s_and_b32 %s, %s, 1' % (s(sCh), s(sJ)))
    A('s_lshr_b32 %s, %s, 1' % (s(sRg), s(sJ)))
    A('s_lshl_b32 %s, %s, 1' % (s(sP2), s(sRb)))
    A('s_add_u32 %s, %s, %s' % (s(sP2), s(sP2), s(sRg)))
    A('s_mov_b32 %s, 0x%x' % (s(sL2), LOG2E))
    A('s_mov_b32 %s, 0x%x' % (s(sL2 + 1), LOG2E))
    A('s_mov_b32 %s, 0.5' % s(sHO))
    A('s_mov_b32 %s, 1.0' % s(sHO + 1))
    A('v_mov_b32 %s, 0x%x' % (v(vT), OOB))
    A('v_cmp_eq_u32 vcc, 0, %s' % v(vLane))
    A('v_cndmask_b32 %s, %s, 0, vcc' % (v(vFo), v(vT)))
    tr_addr(A, vWa, vT, 8, s(sCh))
    A('v_add_u32 %s, %d, %s' % (v(vWa), L_W, v(vWa)))
    A('v_lshrrev_b32 %s, 5, %s' % (v(vT), v(vLane)))
    A('v_and_b32 %s, 31, %s' % (v(vT + 1), v(vLane)))
    A('v_bfe_u32 %s, %s, 1, 3' % (v(vT + 2), v(vLane)))
    A('v_xor_b32 %s, %s, %s' % (v(vT + 2), v(vT + 2), v(vT)))
    A('v_lshlrev_b32 %s, 4, %s' % (v(vT + 2), v(vT + 2)))
    A('v_lshl_add_u32 %s, %s, 7, %s' % (v(vT + 2), v(vT + 1), v(vT + 2)))
    A('s_lshl_b32 %s, %s, 12' % (s(sT0), s(sJ)))
    A('v_add_u32 %s, %s, %s' % (v(vXo), s(sT0), v(vT + 2)))
    for tt in range(1, 4):
        A('v_xor_b32 %s, %d, %s' % (v(vXo + tt), 32 * tt, v(vXo)))
    for tt in range(4):
        A('v_xor_b32 %s, 0x1000, %s' % (v(vXt + tt), v(vXo + tt)))
    A('v_lshlrev_b32 %s, 3, %s' % (v(vT + 2), v(vT + 1)))
    A('v_lshl_add_u32 %s, %s, 2, %s' % (v(vT + 2), v(vT), v(vT + 2)))
    A('v_add_u32 %s, %d, %s' % (v(vTa), TA, v(vT + 2)))
    A('s_lshl_b32 %s, %s, 8' % (s(sT0), s(sJ)))
    A('s_add_u32 %s, %s, %d' % (s(sT0), s(sT0), TB))
    A('v_add_u32 %s, %s, %s' % (v(vTb), s(sT0), v(vT + 2)))
    A('s_lshl_b32 %s, %s, 7' % (s(sT0), s(sJ)))
    A('s_add_u32 %s, %s, %d' % (s(sT0), s(sT0), TR))
    A('v_lshl_add_u32 %s, %s, 2, %s' % (v(vTr), v(vT + 1), s(sT0)))
    A('v_bfe_u32 %s, %s, 2, 2' % (v(vT + 2), v(vLane)))
    A('v_lshl_add_u32 %s, %s, 2, %s' % (v(vT + 2), v(vT), v(vT + 2)))
    A('v_bfe_u32 %s, %s, 4, 1' % (v(vT + 3), v(vLane)))
    A('v_bfe_u32 %s, %s, 1, 1' % (v(vT + 4), v(vLane)))
    A('v_lshl_add_u32 %s, %s, 1, %s' % (v(vT + 4), v(vT + 3), v(vT + 4)))
    A('v_lshlrev_b32 %s, 3, %s' % (v(vT + 4), v(vT + 4)))
    A('v_lshl_add_u32 %s, %s, 5, %s' % (v(vPa), v(vT + 2), v(vT + 4)))
    A('s_and_b32 %s, %s, %s' % (s(sT0), s(sCh), s(sTyp)))
    A('s_lshl_b32 %s, %s, 10' % (s(sT0), s(sT0)))
    A('s_add_u32 %s, %s, %d' % (s(sT0), s(sT0), TPH))
    A('v_add_u32 %s, %s, %s' % (v(vPa), s(sT0), v(vPa)))
    A('v_lshrrev_b32 %s, 3, %s' % (v(vT + 2), v(vT + 1)))
    A('v_and_b32 %s, 3, %s' % (v(vT + 3), v(vLane)))
    A('v_lshl_add_u32 %s, %s, 2, %s' % (v(vT + 2), v(vT + 2), v(vT + 3)))
    A('s_lshl_b32 %s, %s, 3' % (s(sT0), s(sRg)))
    A('v_xor_b32 %s, %s, %s' % (v(vT + 2), s(sT0), v(vT + 2)))
    A('v_bfe_u32 %s, %s, 2, 1' % (v(vT + 3), v(vLane)))
    A('v_xor_b32 %s, %s, %s' % (v(vT + 3), v(vT + 3), v(vT)))
    A('v_lshl_add_u32 %s, %s, 5, %s' % (v(vT + 2), v(vT + 3), v(vT + 2)))
    onehot(A, vSel0, vT + 2, vT + 4, 0)
    onehot(A, vSel1, vT + 2, vT + 4, 8)
    if OPT['warm']:
        A('v_lshrrev_b32 %s, 2, %s' % (v(vT + 2), v(vT + 1)))
        A('v_and_b32 %s, 3, %s' % (v(vT + 3), v(vLane)))
        A('v_lshlrev_b32 %s, 2, %s' % (v(vT + 3), v(vT + 3)))
        A('v_lshl_add_u32 %s, %s, 7, %s' % (v(vT + 2), v(vT + 2), v(vT + 3)))
        A('v_lshl_add_u32 %s, %s, 15, %s' % (v(vT + 2), v(vT), v(vT + 2)))
        A('s_lshr_b32 %s, s2, 3' % s(sT0))
        A('s_lshl_b32 %s, %s, 10' % (s(sT0), s(sT0)))
        A('v_add_u32 %s, %s, %s' % (v(vWm), s(sT0), v(vT + 2)))
        A('s_lshl_b32 %s, %s, 18' % (s(sO[3]), s(sJ)))
        A('s_mul_i32 %s, %s, %d' % (s(sO[4]), s(sJ), 3 * 32768))
        A('s_lshl_b32 %s, %s, 17' % (s(sO[5]), s(sJ)))
    A('s_mul_i32 %s, %s, 768' % (s(sO[2]), s(sCh)))
    A('s_waitcnt lgkmcnt(0)')
    srd(A, SWS, 36, WS_SIZE)
    srd(A, SX, 16, 2048 * 1024)
    srd(A, SW2, 30, 1376 * 1024)
    srd(A, SWO, 22, 512 * 1024)
    stamp(A, 0)
    if OPT['prio']:
        A('s_setprio %d' % OPT['prio'])
    A('s_cmp_eq_u32 %s, 1' % s(sTyp))
    A.branch('s_cbranch_scc1 CX_START')

    def mfma(d, a_, b_, c):
        return 'v_mfma_f32_32x32x16_bf16 %s, %s, %s, %s' % (v(d, 16), v(a_, 4), v(b_, 4), v(d, 16) if c else '0')
    def frags(t):
        if t >= 32:
            return []
        st, k = divmod(t, 4)
        sl = st & 3
        tg = 'f%d' % t
        def wf(u):
            return [('ds_read_b64_tr_b16 %s, %s offset:%d' % (v(vWf + 8 * (t % 3) + 4 * u + 2 * hh, 2), v(vWa), 16384 * sl + 8192 * u + 2048 * k + 512 * hh), tg) for hh in range(2)]
        xf = [('ds_read_b128 %s, %s offset:%d' % (v(vX + 4 * t, 4), v(vXo + k), 16384 * sl), tg),
              ('ds_read_b128 %s, %s offset:%d' % (v(vXf + 4 * (t % 3), 4), v(vXt + k), 16384 * sl), tg)]
        return wf(0) + xf + wf(1)
    def softmax(D, P, M, rs=None):
        L = []
        L.append('v_max3_f32 %s, %s, %s, %s' % (v(M), v(D), v(D + 1), v(D + 2)))
        L.append('v_max3_f32 %s, %s, %s, %s' % (v(M + 1), v(D + 3), v(D + 4), v(D + 5)))
        L.append('v_max3_f32 %s, %s, %s, %s' % (v(M + 2), v(D + 6), v(D + 7), v(D + 8)))
        L.append('v_max3_f32 %s, %s, %s, %s' % (v(M + 3), v(D + 9), v(D + 10), v(D + 11)))
        L.append('v_max3_f32 %s, %s, %s, %s' % (v(M), v(M), v(D + 12), v(D + 13)))
        L.append('v_max3_f32 %s, %s, %s, %s' % (v(M + 1), v(M + 1), v(D + 14), v(D + 15)))
        L.append('v_max3_f32 %s, %s, %s, %s' % (v(M), v(M), v(M + 1), v(M + 2)))
        L.append('v_max_f32 %s, %s, %s' % (v(M), v(M), v(M + 3)))
        L.append('v_mul_f32 %s, 0x%x, %s' % (v(M), LOG2E | 0x80000000, v(M)))
        for i in range(8):
            L.append('v_pk_fma_f32 %s, %s, %s, %s op_sel_hi:[1,1,0]' % (v(D + 2 * i, 2), v(D + 2 * i, 2), s(sL2, 2), v(M, 2)))
        for i in range(16):
            L.append('v_exp_f32 %s, %s' % (v(D + i), v(D + i)))
        L.append('v_pk_add_f32 %s, %s, %s' % (v(M, 2), v(D, 2), v(D + 2, 2)))
        L.append('v_pk_add_f32 %s, %s, %s' % (v(M + 2, 2), v(D + 4, 2), v(D + 6, 2)))
        L.append('v_pk_add_f32 %s, %s, %s' % (v(M, 2), v(M, 2), v(D + 8, 2)))
        L.append('v_pk_add_f32 %s, %s, %s' % (v(M + 2, 2), v(M + 2, 2), v(D + 10, 2)))
        L.append('v_pk_add_f32 %s, %s, %s' % (v(M, 2), v(M, 2), v(D + 12, 2)))
        L.append('v_pk_add_f32 %s, %s, %s' % (v(M + 2, 2), v(M + 2, 2), v(D + 14, 2)))
        L.append('v_pk_add_f32 %s, %s, %s' % (v(M, 2), v(M, 2), v(M + 2, 2)))
        L.append('v_add_f32 %s, %s, %s' % (v(M), v(M), v(M + 1)))
        L.append('v_rcp_f32 %s, %s' % (v(M), v(M)))
        if rs is not None:
            L.append('v_mul_f32 %s, %s, %s' % (v(M), v(M), v(rs)))
        for i in range(8):
            L.append('v_pk_mul_f32 %s, %s, %s op_sel_hi:[1,0]' % (v(D + 2 * i, 2), v(D + 2 * i, 2), v(M, 2)))
        for i in range(8):
            L.append('v_cvt_pk_bf16_f32 %s, %s, %s' % (v(P + i), v(D + 2 * i), v(D + 2 * i + 1)))
        return L
    def pack(acc, P):
        for i in range(8):
            A('v_cvt_pk_bf16_f32 %s, %s, %s' % (v(P + i), v(acc + 2 * i), v(acc + 2 * i + 1)))
    def scale_pack(acc, P, r):
        for i in range(8):
            A('v_pk_mul_f32 %s, %s, %s op_sel_hi:[1,0]' % (v(acc + 2 * i, 2), v(acc + 2 * i, 2), v(vR[r], 2)))
        pack(acc, P)
    def mish(acc, r, E, V, so, tag):
        for i in range(8):
            A('v_pk_mul_f32 %s, %s, %s op_sel:[0,1] op_sel_hi:[1,1]' % (v(acc + 2 * i, 2), v(acc + 2 * i, 2), v(vR[r], 2)))
        for i in range(16):
            A('v_exp_f32 %s, %s' % (v(E + i), v(acc + i)))
        for i in range(8):
            A('v_pk_fma_f32 %s, %s, %s, %s op_sel:[0,0,1] op_sel_hi:[1,0,1]' % (v(V + 2 * i, 2), v(E + 2 * i, 2), s(sHO, 2), s(sHO, 2)))
        for i in range(8):
            A('v_pk_fma_f32 %s, %s, %s, %s op_sel:[0,0,1] op_sel_hi:[1,1,1]' % (v(V + 2 * i, 2), v(E + 2 * i, 2), v(V + 2 * i, 2), s(sHO, 2)))
        for i in range(16):
            A('v_rcp_f32 %s, %s' % (v(V + i), v(V + i)))
        for i in range(8):
            A('v_pk_fma_f32 %s, %s, %s, %s neg_lo:[1,0,0] neg_hi:[1,0,0]' % (v(acc + 2 * i, 2), v(acc + 2 * i, 2), v(V + 2 * i, 2), v(acc + 2 * i, 2)))
        pack(acc, acc)
        A('buffer_store_dwordx4 %s, %s, %s, %s offen sc1' % (v(acc, 4), v(vL16), s(SWS, 4), s(so)), tag=tag)
        A('buffer_store_dwordx4 %s, %s, %s, %s offen offset:2048 sc1' % (v(acc + 4, 4), v(vL16), s(SWS, 4), s(so)), tag=tag)
    def flag(tag, so, off=0, vo=vFo):
        A.wait_vm(tag)
        A('buffer_store_dword %s, %s, %s, %s offen offset:%d sc1' % (v(vNon), v(vo), s(SWS, 4), s(so), off))
    def sign_flip(ph, n, t):
        A('v_bfe_u32 %s, %s, 2, 1' % (v(t), v(vLane)))
        A('v_mul_u32_u24 %s, 0x8000, %s' % (v(t), v(t)))
        A('v_lshl_or_b32 %s, %s, 16, %s' % (v(t), v(t), v(t)))
        A.wait_lg('ph')
        for i in range(n):
            A('v_xor_b32 %s, %s, %s' % (v(ph + i), v(t), v(ph + i)))

    def pass_b(X, hooks):
        vBa = 216
        vAp, vBp = 0, 8
        if OPT['prio']:
            A('s_setprio %d' % OPT['prio'])
        A('s_lshl_b32 %s, %s, 6' % (s(sT0), s(sCh)))
        A('v_xor_b32 %s, %s, %s' % (v(vBa), s(sT0), v(vWa)))
        A('v_add_u32 %s, %d, %s' % (v(vBa), L_E - L_W, v(vBa)))
        A('v_xor_b32 %s, 64, %s' % (v(vBa + 1), v(vBa)))
        A('v_mov_b32 %s, %d' % (v(vBa + 2), FL_P3))
        lds_wait(A, 'CP3%d' % X, v(vBa + 2), 4, 1, 220)
        win = [L_E]
        def fr(t):
            if t >= 32:
                return []
            st, k = divmod(t, 4)
            L = []
            w = P3B[st] & ~0xffff
            if w != win[0]:
                for uu in range(2):
                    L.append('v_add_u32 %s, %d, %s' % (v(vBa + uu), w - win[0], v(vBa + uu)))
                win[0] = w
            for uu in range(2):
                for hh in range(2):
                    L.append(('ds_read_b64_tr_b16 %s, %s offset:%d' % (v(vWf + 8 * (t % 3) + 4 * uu + 2 * hh, 2), v(vBa + uu), P3B[st] - w + 2048 * k + 512 * hh), 'g%d' % t))
            return L
        emit(A, fr(0))
        emit(A, fr(1))
        for t in range(32):
            nxt = fr(t + 2)
            if t == 28:
                nxt += ['v_mov_b32 %s, 0' % v(vAp + i) for i in range(12) if i & 3]
            if t == 30:
                nxt = [('ds_read_b32 %s, %s offset:%d' % (v(vAp + 4 * uu), v(vTa), 768 * uu + 512), 'tb') for uu in range(2)]
                nxt += [('ds_read_b32 %s, %s' % (v(vBp), v(vTb)), 'tb')]
            if t == 31 and not X:
                nxt = [('ds_read_b64_tr_b16 %s, %s offset:%d' % (v(16 + 4 * h + 2 * hh, 2), v(vPa), 512 * h + 256 * hh), 'ph') for h in range(4) for hh in range(2)]
            A.wait_lg('g%d' % t)
            hf = (len(nxt) + 1) // 2
            for uu in range(2):
                A(mfma(ACC(0, uu), vWf + 8 * (t % 3) + 4 * uu, vX + 4 * t, t > 0))
                emit(A, nxt[:hf] if uu == 0 else nxt[hf:])
            if t in hooks:
                hooks[t]()
        A('s_lshl_b32 %s, %s, 2' % (s(sT0), s(sJ)))
        A('s_add_u32 %s, %s, %d' % (s(sT0), s(sT0), FL_PB))
        A('v_mov_b32 %s, %s' % (v(vBa), s(sT0)))
        A('v_mov_b32 %s, 2' % v(vBa + 1))
        A.wait_lg('tb')
        A('ds_write_b32 %s, %s' % (v(vBa), v(vBa + 1)))
        for uu in range(2):
            A(mfma(ACC(0, uu), vAp + 4 * uu, vBp, True))
        if OPT['prio']:
            A('s_setprio 0')
        stamp(A, 4)

    def wo_dma(X):
        t = 216
        A('v_mov_b32 %s, %d' % (v(t + 8), FL_P3))
        w2_voff(A, t + 9, t)
        lds_wait(A, 'CWA%d' % X, v(t + 8), 4, 2, t)
        lds_wait(A, 'CWB%d' % X, v(t + 8) + ' offset:%d' % (FL_PB - FL_P3), 4, 2, t)
        for p in range(4):
            A('s_lshl_b32 %s, %s, 17' % (s(sO[0]), s(sJ)))
            if p:
                A('s_add_u32 %s, %s, %d' % (s(sO[0]), s(sO[0]), p * 32768))
            emit(A, quad((t + 9, t + 9), SWO, 16384 * (p & 1) + 65536 * (p >> 1), 'wo'))

    vAp, vBp, vPh = [208, 212], [224, 228], 192
    for X in (0, 1):
        A.vm = []; A.lg = []
        if X:
            A.label('CX_START')
        A('s_barrier')
        stamp(A, 1)
        emit(A, frags(0))
        emit(A, frags(1))
        for t in range(32):
            st, k = divmod(t, 4)
            nxt = frags(t + 2)
            if t == 30:
                A('v_add_u32 %s, %s, %s' % (v(vAp[0]), s(sO[2]), v(vTa)))
                A('v_xor_b32 %s, 256, %s' % (v(vBp[1]), v(vTb)))
                A('v_xor_b32 %s, 128, %s' % (v(vR[1]), v(vTr)))
                A('v_mov_b32 %s, %d' % (v(vNon), TN))
                nxt = [('ds_read_b32 %s, %s offset:256' % (v(vAp[1]), v(vAp[0])), 'tb'),
                       ('ds_read_b32 %s, %s' % (v(vAp[0]), v(vAp[0])), 'tb'),
                       ('ds_read_b32 %s, %s' % (v(vBp[0]), v(vTb)), 'tb'),
                       ('ds_read_b32 %s, %s' % (v(vBp[1]), v(vBp[1])), 'tb'),
                       ('ds_read_b32 %s, %s' % (v(vR[0]), v(vTr)), 'tb'),
                       ('ds_read_b32 %s, %s' % (v(vR[1]), v(vR[1])), 'tb'),
                       ('ds_read_b32 %s, %s' % (v(vNon), v(vNon)), 'tb')]
            if t == 31:
                nxt = ['v_mov_b32 %s, 0' % v(b + i) for b in vAp + vBp for i in range(1, 4)]
                if X:
                    nxt = [('ds_read_b64_tr_b16 %s, %s offset:%d' % (v(vPh + 4 * h + 2 * hh, 2), v(vPa), 512 * h + 256 * hh), 'ph') for h in range(2) for hh in range(2)] + nxt
            A.wait_lg('f%d' % t)
            per = (len(nxt) + 2) // 3
            n = 0
            for u in range(2):
                for r in range(2):
                    w_, x_ = vWf + 8 * (t % 3) + 4 * u, (vX + 4 * t if r == 0 else vXf + 4 * (t % 3))
                    if X and u == 1:
                        w_, x_ = x_, w_
                    A(mfma(ACC(u, r), w_, x_, t > 0))
                    if k == 2 and n == 0:
                        A.wait_lg(None)
                        A('s_barrier')
                        if st == 3:
                            stamp(A, 2)
                    if n == 3 and OPT['warm'] and t >= OPT['wt0'] and (t - OPT['wt0']) % OPT['wd'] == 0 and (t - OPT['wt0']) // OPT['wd'] < 8:
                        base, c_, sr = [(3, 0, SW2), (3, 4, SW2), (3, 2, SW2), (3, 6, SW2), (4, 34, SW2), (4, 32, SW2), (5, 0, SWO), (5, 2, SWO)][(t - OPT['wt0']) // OPT['wd']]
                        A('s_add_u32 %s, %s, %d' % (s(sT0), s(sO[base]), c_ * 32768))
                        A('buffer_load_dword %s, %s, %s, %s offen' % (v(vWm + 1), v(vWm), s(sr, 4), s(sT0)), tag='wm')
                    emit(A, nxt[per * n:per * n + per])
                    n += 1
        stamp(A, 3)
        if OPT['prio']:
            A('s_setprio 0')
        A.wait_lg('tb')
        for u in range(2):
            for r in range(2):
                p_, q_ = vAp[u], vBp[r]
                if X and u == 1:
                    p_, q_ = q_, p_
                A(mfma(ACC(u, r), p_, q_, True))
        for r in range(2):
            A('v_mul_f32 %s, 0x%x, %s' % (v(vR[r] + 1), LOG2E, v(vR[r])))
        A('v_readfirstlane_b32 %s, %s' % (s(sNonce), v(vNon)))
        sOut, sFl = sO[4], sO[5]
        A('s_lshl_b32 %s, %s, 10' % (s(sFl), s(sP2)))
        A('s_add_u32 %s, %s, 0x%x' % (s(sFl), s(sFl), WS_F))
        A('s_mul_i32 %s, %s, %d' % (s(sOut), s(sP2), NU * 4096))
        A('s_lshl_b32 %s, %s, 10' % (s(sT0), s(sCh)))
        A('s_add_u32 %s, %s, %s' % (s(sOut), s(sOut), s(sT0)))
        if not X:
            A('s_lshl_b32 %s, %s, 2' % (s(sT0), s(sG)))
            A('s_add_u32 %s, %s, %s' % (s(sT0), s(sT0), s(sCh)))
            A('s_lshl_b32 %s, %s, 12' % (s(sT0), s(sT0)))
            A('s_add_u32 %s, %s, %s' % (s(sO[0]), s(sOut), s(sT0)))
            A('s_xor_b32 %s, %s, 1024' % (s(sO[1]), s(sO[0])))
            A('s_add_u32 %s, %s, 8192' % (s(sO[2]), s(sO[0])))
            A('s_add_u32 %s, %s, 8192' % (s(sO[3]), s(sO[1])))
            sF2 = sT3
            for dst, g_ in ((sF2, sG), (sFl, sGq)):
                A('s_lshr_b32 %s, %s, 1' % (s(sT0), s(g_)))
                A('s_lshl_b32 %s, %s, 5' % (s(sT0), s(sT0)))
                A('s_and_b32 %s, %s, 1' % (s(sT1), s(g_)))
                A('s_lshl_b32 %s, %s, 1' % (s(sT1), s(sT1)))
                A('s_add_u32 %s, %s, %s' % (s(sT0), s(sT0), s(sT1)))
                A('s_add_u32 %s, %s, %s' % (s(sT0), s(sT0), s(sCh)))
                A('s_lshl_b32 %s, %s, 2' % (s(sT0), s(sT0)))
                A('s_add_u32 %s, %s, %s' % (s(dst), s(sFl), s(sT0)))
            A('s_lshl_b32 %s, %s, 13' % (s(sT0), s(sGq)))
            A('s_add_u32 %s, %s, %s' % (s(sOut), s(sOut), s(sT0)))
            A('s_add_u32 %s, %s, %d' % (s(sOut), s(sOut), 44 * 4096))
            E, V = 192, 208
            mish(ACC(0, 0), 0, E, V, sO[0], 'h1')
            mish(ACC(0, 1), 1, E, V, sO[1], 'h1')
            mish(ACC(1, 0), 0, E, V, sO[2], 'h2')
            stamp(A, 1, 1)
            flag('h1', sF2)
            stamp(A, 2, 1)
            mish(ACC(1, 1), 1, E, V, sO[3], 'h2')
            stamp(A, 8)
            pass_b(0, {OPT['f2']: lambda: flag('h2', sF2, 16)})
            ph, D, P, M = 16, [32, 48, 64, 80], [96, 104, 112, 120], 12
            sign_flip(ph, 16, M)
            for uu in range(2):
                scale_pack(ACC(0, uu), ACC(0, uu), 0)
                for h in range(2):
                    A(mfma(D[2 * uu + h], ph + 8 * uu + 4 * h, ACC(0, uu) + 4 * h, False))
            for n in (0, 2, 1, 3):
                emit(A, softmax(D[n], P[n], M))
            stamp(A, 1, 2)
            wo_dma(0)
            stamp(A, 2, 2)
            vKa, KF = 216, 160
            A('v_and_b32 %s, 31, %s' % (v(vKa), v(vLane)))
            A('v_min_u32 %s, 16, %s' % (v(vKa), v(vKa)))
            A('v_lshrrev_b32 %s, 5, %s' % (v(vKa + 1), v(vLane)))
            A('v_mul_u32_u24 %s, 17, %s' % (v(vKa + 1), v(vKa + 1)))
            A('v_add_lshl_u32 %s, %s, %s, 4' % (v(vKa), v(vKa), v(vKa + 1)))
            A('v_add_u32 %s, %d, %s' % (v(vKa), KVL, v(vKa)))
            A('v_mov_b32 %s, %d' % (v(vKa + 1), FL_KV))
            A('s_add_u32 %s, %s, 4096' % (s(sO[0]), s(sOut)))
            for h in range(2):
                rd = ['ds_read_b128 %s, %s offset:%d' % (v(KF + 16 * h + 8 * uu + 4 * c, 4), v(vKa), KVH * (2 * uu + h) + 544 * c) for uu in range(2) for c in range(2)]
                lds_wait(A, 'CKV%d' % h, v(vKa + 1) + ' offset:%d' % (16 * h), 4, 1, 220, rd)
                if h:
                    stamp(A, 8, 2)
                for c in range(2):
                    for uu in range(2):
                        A(mfma(D[2 * uu + h], KF + 16 * h + 8 * uu + 4 * c, P[2 * uu + h] + 4 * c, c > 0))
                for uu in range(2):
                    d = D[2 * uu + h]
                    A('v_add_f32 %s, 0x358637bd, %s' % (v(d + 8), v(d + 8)))
                    A('v_rcp_f32 %s, %s' % (v(d + 8), v(d + 8)))
                    for i in range(4):
                        A('v_pk_mul_f32 %s, %s, %s op_sel_hi:[1,0]' % (v(d + 2 * i, 2), v(d + 2 * i, 2), v(d + 8, 2)))
                    for i in range(4):
                        A('v_cvt_pk_bf16_f32 %s, %s, %s' % (v(d + i), v(d + 2 * i), v(d + 2 * i + 1)))
                    A('buffer_store_dwordx4 %s, %s, %s, %s offen offset:%d sc1' % (v(d, 4), v(vL16), s(SWS, 4), s(sO[0] if uu else sOut), 2048 * h), tag='o')
            stamp(A, 4, 2)
            flag('o', sFl, 512)
            A.branch('s_branch C_P2')
        else:
            Kp, Vp, D = [128, 136], [160, 168], [144, 176]
            KV, P, M = 200, 216, 224
            VH = [128, 136]
            vEw, vPo, vSa = [228, 229], [230, 231], 250
            vEf = 248
            sKp, sKf = sO[0], sO[1]
            sign_flip(vPh, 8, 253)
            scale_pack(ACC(0, 0), Kp[0], 0)
            scale_pack(ACC(0, 1), Kp[1], 1)
            A(mfma(D[0], vPh, Kp[0], False))
            pack(ACC(1, 0), Vp[0])
            pack(ACC(1, 1), Vp[1])
            A(mfma(D[1], vPh, Kp[1], False))
            t = M
            A('v_lshrrev_b32 %s, 5, %s' % (v(t), v(vLane)))
            A('v_and_b32 %s, 15, %s' % (v(t + 1), v(vLane)))
            A('s_lshl_b32 %s, %s, 6' % (s(sT0), s(sJ)))
            A('s_add_u32 %s, %s, %d' % (s(sT0), s(sT0), TS))
            A('v_lshl_add_u32 %s, %s, 3, %s' % (v(vSa), v(t), s(sT0)))
            A('v_xor_b32 %s, 64, %s' % (v(253), v(vSa)))
            def sdread(n):
                for q in range(4):
                    A('ds_read_b64 %s, %s offset:%d' % (v(VH[q >> 1] + 2 * (q & 1), 2), v(253 if n & 1 else vSa), 16 * q), tag='sd')
            sdread(0)
            A('v_lshl_add_u32 %s, %s, 4, %s' % (v(t + 2), v(t), v(t + 1)))
            A('s_lshl_b32 %s, %s, 11' % (s(sT0), s(sJ)))
            A('s_add_u32 %s, %s, %d' % (s(sT0), s(sT0), KVL))
            A('v_lshl_add_u32 %s, %s, 5, %s' % (v(vEw[0]), v(t + 2), s(sT0)))
            A('s_lshl_b32 %s, %s, 12' % (s(sT0), s(sRg)))
            A('s_lshl_b32 %s, %s, 7' % (s(sT1), s(sCh)))
            A('s_add_u32 %s, %s, %s' % (s(sT0), s(sT0), s(sT1)))
            A('s_add_u32 %s, %s, %d' % (s(sT0), s(sT0), TZ))
            A('v_lshl_add_u32 %s, %s, 5, %s' % (v(t + 3), v(t), s(sT0)))
            A('s_lshl_b32 %s, %s, 9' % (s(sT0), s(sRb)))
            A('v_lshl_add_u32 %s, %s, 4, %s' % (v(vPo[0]), v(t + 2), s(sT0)))
            A('s_lshl_b32 %s, %s, 5' % (s(sT0), s(sRb)))
            A('s_add_u32 %s, %s, 8192' % (s(sT0), s(sT0)))
            A('v_lshl_add_u32 %s, %s, 4, %s' % (v(t), v(t), s(sT0)))
            A('v_mov_b32 %s, 0x%x' % (v(t + 2), OOB))
            A('v_cmp_eq_u32 vcc, 0, %s' % v(t + 1))
            A('v_cndmask_b32 %s, %s, %s, vcc' % (v(t), v(t + 2), v(t)))
            sH0 = SB
            A('v_and_b32 %s, 16, %s' % (v(t + 1), v(vLane)))
            A('v_cmp_eq_u32 %s, 0, %s' % (s(sH0, 2), v(t + 1)))
            A('v_cndmask_b32 %s, %s, %s, %s' % (v(vPo[1]), v(vPo[0]), v(t), s(sH0, 2)))
            A('v_cndmask_b32 %s, %s, %s, %s' % (v(vPo[0]), v(t), v(vPo[0]), s(sH0, 2)))
            A('v_add_u32 %s, 1024, %s' % (v(t), v(vEw[0])))
            A('v_add_u32 %s, 64, %s' % (v(t + 1), v(t + 3)))
            A('v_cndmask_b32 %s, %s, %s, %s' % (v(vEw[1]), v(t), v(t + 1), s(sH0, 2)))
            A('v_cndmask_b32 %s, %s, %s, %s' % (v(vEw[0]), v(t + 3), v(vEw[0]), s(sH0, 2)))
            A('s_lshl_b32 %s, %s, 3' % (s(sT0), s(sJ)))
            A('s_add_u32 %s, %s, %d' % (s(sT0), s(sT0), FL_EX))
            A('v_mov_b32 %s, %s' % (v(vEf), s(sT0)))
            A('s_lshl_b32 %s, %s, 2' % (s(sT0), s(sG)))
            A('s_add_u32 %s, %s, %s' % (s(sT0), s(sT0), s(sCh)))
            A('s_lshl_b32 %s, %s, 1' % (s(sT0), s(sT0)))
            A('s_add_u32 %s, %s, %s' % (s(sT0), s(sT0), s(sRg)))
            A('s_mul_i32 %s, %s, %d' % (s(sKp), s(sT0), KVS))
            A('s_add_u32 %s, %s, 0x%x' % (s(sKp), s(sKp), WS_KVP))
            A('s_add_u32 %s, %s, %d' % (s(sO[2]), s(sKp), 4 * KVS))
            A('s_lshl_b32 %s, %s, 5' % (s(sKf), s(sT0)))
            A('s_add_u32 %s, %s, %s' % (s(sKf), s(sKf), s(sRb)))
            A('s_lshl_b32 %s, %s, 2' % (s(sKf), s(sKf)))
            A('s_add_u32 %s, %s, 0x%x' % (s(sKf), s(sKf), WS_KF))
            def vh(n):
                r, h = n & 1, n >> 1
                A.wait_lg('sd')
                for i in range(8):
                    d = VH[i >> 2] + (i & 3)
                    if h == 0:
                        A('v_cndmask_b32 %s, %s, %s, %s' % (v(d), v(d), v(Vp[r] + i), s(sH0, 2)))
                    else:
                        A('v_cndmask_b32 %s, %s, %s, %s' % (v(d), v(Vp[r] + i), v(d), s(sH0, 2)))
            def finish(n):
                r, h = n & 1, n >> 1
                d = D[r]
                pack(d, d)
                for c in range(2):
                    A(mfma(KV, d + 4 * c, VH[c], not (r == 0 and c == 0)))
                if n < 2:
                    A(mfma(d, vPh + 4, Kp[r] + 4, False))
                if n < 3:
                    sdread(n + 1)
            def ex_send(h):
                A('ds_write_b128 %s, %s' % (v(vEw[h]), v(KV + 8, 4)))
                A('ds_write_b128 %s, %s offset:16' % (v(vEw[h]), v(KV + 12, 4)))
                A('ds_write_b32 %s, %s offset:%d' % (v(vEf), v(vEf), 4 * h))
                A('v_xor_b32 %s, 0x1000, %s' % (v(vEw[h]), v(vEw[h])))
            def ex_recv(h, t):
                A('v_xor_b32 %s, %d, %s' % (v(t + 1), FL_EX ^ (FL_EX + 16), v(vEf)))
                rd = ['ds_read_b128 %s, %s offset:%d' % (v(KV + 8 + 4 * q, 4), v(vEw[h]), 16 * q) for q in range(2)]
                lds_wait(A, 'CEX%d' % h, v(t + 1) + ' offset:%d' % (4 * h), 1, 1, t, rd)
                for i in range(4):
                    A('v_pk_add_f32 %s, %s, %s' % (v(KV + 2 * i, 2), v(KV + 2 * i, 2), v(KV + 8 + 2 * i, 2)))
                for i in range(4):
                    A('v_cvt_pk_bf16_f32 %s, %s, %s' % (v(KV + 8 + i), v(KV + 2 * i), v(KV + 2 * i + 1)))
                A('buffer_store_dwordx4 %s, %s, %s, %s offen sc1' % (v(KV + 8, 4), v(vPo[h]), s(SWS, 4), s(sO[2] if h else sKp)), tag='kp%d' % h)
            stamp(A, 1, 1)
            for n in range(4):
                r = n & 1
                sm = softmax(D[r], P, M, vR[r])
                emit(A, sm[:17])
                if n:
                    finish(n - 1)
                emit(A, sm[17:33])
                if n == 2:
                    ex_send(0)
                if n == 3:
                    flag('kp0', sKf)
                emit(A, sm[33:])
                A(mfma(D[r], P, vSel0, False))
                A(mfma(D[r], P + 4, vSel1, True))
                if n == 2:
                    ex_recv(0, M)
                    stamp(A, 2, 1)
                vh(n)
            finish(3)
            A('s_lshl_b32 %s, %s, 13' % (s(sT0), s(sG)))
            A('s_add_u32 %s, %s, %s' % (s(sOut), s(sOut), s(sT0)))
            A('s_add_u32 %s, %s, %d' % (s(sOut), s(sOut), 32 * 4096))
            A('s_add_u32 %s, %s, 4096' % (s(sO[3]), s(sOut)))
            vF2 = 253
            A('s_lshl_b32 %s, %s, 1' % (s(sT0), s(sG)))
            A('v_add_u32 %s, %s, %s' % (v(M), s(sT0), v(vLane)))
            A('v_mul_u32_u24 %s, 43, %s' % (v(M + 1), v(M)))
            A('v_lshrrev_b32 %s, 7, %s' % (v(M + 1), v(M + 1)))
            A('v_mul_u32_u24 %s, %d, %s' % (v(M + 1), 128 - 24, v(M + 1)))
            A('v_lshl_add_u32 %s, %s, 3, %s' % (v(M), v(M), v(M + 1)))
            A('v_mov_b32 %s, 0x%x' % (v(M + 1), OOB))
            A('v_cmp_gt_u32 vcc, 2, %s' % v(vLane))
            A('v_cndmask_b32 %s, %s, %s, vcc' % (v(vF2), v(M + 1), v(M)))
            A('s_lshl_b32 %s, %s, 2' % (s(sT0), s(sCh)))
            A('s_add_u32 %s, %s, %s' % (s(sFl), s(sFl), s(sT0)))
            ex_send(1)
            ex_recv(1, M)
            stamp(A, 8)
            A('s_cmp_ge_u32 %s, 6' % s(sG))
            A.branch('s_cbranch_scc1 CX_NOH')
            vm1 = list(A.vm)
            pass_b(1, {OPT['f2']: lambda: flag('kp1', sKf, 512)})
            mish(ACC(0, 0), 0, 16, 32, sOut, 'h')
            mish(ACC(0, 1), 0, 16, 32, sO[3], 'h')
            stamp(A, 1, 2)
            flag('h', sFl, 32, vF2)
            A.branch('s_branch CX_WO')
            A.label('CX_NOH')
            A.vm = vm1
            flag('kp1', sKf, 512)
            A('s_lshl_b32 %s, %s, 2' % (s(sT0), s(sJ)))
            A('s_add_u32 %s, %s, %d' % (s(sT0), s(sT0), FL_PB))
            A('v_mov_b32 %s, %s' % (v(M), s(sT0)))
            A('v_mov_b32 %s, 2' % v(M + 1))
            A('ds_write_b32 %s, %s' % (v(M), v(M + 1)))
            A.label('CX_WO')
            A.vm = []; A.lg = []
            wo_dma(1)
    A.label('C_P2')
    A.vm = []; A.lg = []
    stamp(A, 5)
    vAcc, vW, vO = 0, 64, 128
    vA0, vFl, vFv, vT = 232, 236, 237, 216
    sFl, sAct = sO[0], sO[1]
    A('v_lshlrev_b32 %s, 2, %s' % (v(vFl), v(vLane)))
    A('v_and_b32 %s, 0x7c, %s' % (v(vFl), v(vFl)))
    A('s_lshl_b32 %s, %s, 3' % (s(sFl), s(sRb2)))
    A('s_add_u32 %s, %s, %s' % (s(sFl), s(sFl), s(sWave)))
    A('s_lshl_b32 %s, %s, 7' % (s(sFl), s(sFl)))
    A('s_add_u32 %s, %s, 0x%x' % (s(sFl), s(sFl), WS_F))
    xres(A, 240, 244)
    qload = 'buffer_load_dword %s, %s, %s, %s offen sc1' % (v(vFv), v(vFl), s(SWS, 4), s(sFl))
    A(qload, tag='fl')
    A('s_mul_i32 %s, %s, %d' % (s(sAct), s(sRb2), NU * 4096))
    A('s_lshl_b32 %s, %s, 14' % (s(sT0), s(sJ)))
    A('s_add_u32 %s, %s, %s' % (s(sAct), s(sAct), s(sT0)))
    A('s_add_u32 %s, %s, %d' % (s(sAct), s(sAct), 44 * 4096))
    tr_addr(A, vA0, vT, 4, None)
    A('s_lshl_b32 %s, %s, 12' % (s(sT2), s(sJ)))
    A('v_add_u32 %s, %s, %s' % (v(vA0), s(sT2), v(vA0)))
    A('v_xor_b32 %s, 64, %s' % (v(vA0 + 1), v(vA0)))
    A('v_add_u32 %s, %d, %s' % (v(vA0 + 2), L_W, v(vA0)))
    A('v_add_u32 %s, %d, %s' % (v(vA0 + 3), L_W, v(vA0 + 1)))
    wr = reduce_write(A, vAcc, 192, sT2)
    A.wait_vm('fl')
    for p in range(4):
        for c in range(2):
            for nt in range(2):
                for hh in range(2):
                    A('ds_read_b64_tr_b16 %s, %s offset:%d' % (v(vW + 16 * p + 8 * c + 4 * nt + 2 * hh, 2), v(vA0 + 2 * (p >> 1) + nt), 16384 * (p & 1) + 2048 * c + 1024 * hh))
    poll(A, 'CQ', qload, vFv, '0xf')
    stamp(A, 6)
    for p in range(4):
        for q in range(4):
            A('buffer_load_dwordx4 %s, %s, %s, %s offen offset:%d sc1' % (v(vO + 16 * p + 4 * q, 4), v(vL16), s(SWS, 4), s(sAct), 1024 * q), tag='o%d' % (2 * p + (q >> 1)))
        if p < 3:
            A('s_add_u32 %s, %s, 4096' % (s(sAct), s(sAct)))
    A.wait_lg(None)
    for p in range(4):
        for c in range(2):
            A.wait_vm('o%d' % (2 * p + c))
            for nt in range(2):
                for rt in range(2):
                    A(mfma(vAcc + 16 * (2 * nt + rt), vW + 16 * p + 8 * c + 4 * nt, vO + 16 * p + 8 * c + 4 * rt, p or c))
    emit(A, wr)

def gen_final(A):
    A.label('F_START')
    vOo, vX, t = 240, 244, 72
    srd(A, SO, 32, 2048 * 1024)
    A('s_and_b32 %s, %s, 3' % (s(sT0), s(sWave)))
    A('s_lshl_b32 %s, %s, 10' % (s(sT0), s(sT0)))
    A('s_lshr_b32 %s, %s, 2' % (s(sT1), s(sWave)))
    A('s_lshl_b32 %s, %s, 14' % (s(sT1), s(sT1)))
    A('s_add_u32 %s, %s, %s' % (s(sT0), s(sT0), s(sT1)))
    A('v_lshrrev_b32 %s, 3, %s' % (v(t), v(vLane)))
    A('v_bfe_u32 %s, %s, 2, 1' % (v(t + 1), v(vLane)))
    A('v_and_b32 %s, 3, %s' % (v(t + 2), v(vLane)))
    A('v_lshlrev_b32 %s, 1, %s' % (v(t + 2), v(t + 2)))
    A('v_xor_b32 %s, %s, %s' % (v(t + 2), v(t + 2), v(t)))
    A('v_xor_b32 %s, %s, %s' % (v(t + 2), v(t + 2), v(t + 1)))
    A('v_lshlrev_b32 %s, 4, %s' % (v(t + 2), v(t + 2)))
    A('v_lshl_add_u32 %s, %s, 7, %s' % (v(t + 2), v(t), v(t + 2)))
    A('v_add_u32 %s, %s, %s' % (v(t + 2), s(sT0), v(t + 2)))
    A('v_lshl_add_u32 %s, %s, 16, %s' % (v(t + 3), v(t + 1), v(t + 2)))
    A('v_xor_b32 %s, 16, %s' % (v(t + 4), v(t + 3)))
    A('s_waitcnt lgkmcnt(0)')
    A.lg = []
    A('s_barrier')
    stamp(A, 7)
    R = 96
    for g in range(2):
        for p in range(4):
            for hh in range(2):
                A('ds_read_b128 %s, %s offset:%d' % (v(R + 32 * g + 8 * p + 4 * hh, 4), v(t + 3 + hh), 32768 * g + 4096 * p), tag='r%d' % g)
    A('s_waitcnt vmcnt(0)')
    X = 80
    for i in range(4):
        A('v_lshlrev_b32 %s, 16, %s' % (v(X + 2 * i), v(vX + i)))
        A('v_and_b32 %s, 0xffff0000, %s' % (v(X + 2 * i + 1), v(vX + i)))
    for g in range(2):
        A.wait_lg('r%d' % g)
        r = R + 32 * g
        for i in range(4):
            A('v_pk_add_f32 %s, %s, %s' % (v(r + 2 * i, 2), v(r + 2 * i, 2), v(r + 8 + 2 * i, 2)))
            A('v_pk_add_f32 %s, %s, %s' % (v(r + 16 + 2 * i, 2), v(r + 16 + 2 * i, 2), v(r + 24 + 2 * i, 2)))
        for i in range(4):
            A('v_pk_add_f32 %s, %s, %s' % (v(r + 2 * i, 2), v(r + 2 * i, 2), v(r + 16 + 2 * i, 2)))
        for i in range(4):
            A('v_pk_add_f32 %s, %s, %s' % (v(X + 2 * i, 2), v(X + 2 * i, 2), v(r + 2 * i, 2)))
    for i in range(4):
        A('v_cvt_pk_bf16_f32 %s, %s, %s' % (v(X + i), v(X + 2 * i), v(X + 2 * i + 1)))
    A('buffer_store_dwordx4 %s, %s, %s, %s offen%s' % (v(X, 4), v(vOo), s(SO, 4), s(6), {0: '', 1: ' sc1', 2: ' nt', 3: ' sc0 sc1'}[OPT['ost']]))
    if OPT['stamps']:
        A('s_waitcnt vmcnt(0)')
        A('%s s[14:15]' % ('s_memtime' if OPT['clk'] else 's_memrealtime'))
        A('s_waitcnt lgkmcnt(0)')
        A('s_lshl_b32 %s, s2, 3' % s(sT2))
        A('s_add_u32 %s, %s, %s' % (s(sT2), s(sT2), s(sWave)))
        A('s_lshl_b32 %s, %s, 6' % (s(sT2), s(sT2)))
        A('s_add_u32 %s, %s, 0x%x' % (s(sT2), s(sT2), WS_STAMP))
        A('v_mov_b32 %s, 0' % v(1))
        for i, r in enumerate(STREG + [14]):
            A('v_mov_b32 %s, %s' % (v(0), s(r)))
            A('buffer_store_dword %s, %s, %s, %s offen offset:%d' % (v(0), v(1), s(SWS, 4), s(sT2), 4 * i))
    A.label('L_END')
    A('s_endpgm')

def main():
    body = gen()
    out = []
    out.append('; @launch grid=(256,1,1) block=(512,1,1) lds=163840')
    out.append('.amdgcn_target "amdgcn-amd-amdhsa--gfx950"')
    out.append('.text')
    out.append('.globl %s_kernel' % NAME)
    out.append(body)
    out.append('.section .rodata,"a"')
    out.append('.p2align 6')
    out.append('''.amdhsa_kernel %s_kernel
  .amdhsa_next_free_vgpr 256
  .amdhsa_next_free_sgpr 102
  .amdhsa_accum_offset 256
  .amdhsa_group_segment_fixed_size 0
  .amdhsa_kernarg_size 88
  .amdhsa_user_sgpr_count 2
  .amdhsa_user_sgpr_kernarg_segment_ptr 1
  .amdhsa_system_sgpr_workgroup_id_x 1
.end_amdhsa_kernel
''' % NAME)
    open(sys.argv[1], 'w').write('\n'.join(out))

main()
```

```python
import sys
from asmlib import Asm, v, a, s

NAME = 'parallel_sum__linear_kernel_hedgehog__dense_activation_mish__prompt'
OPT = dict(fine=0, stamps=0, prio=1, sched=0, slp=8, wt0=12, wd=2, warm=1, xmap=1, xq=1, clk=0, ost=1, gi=5, f2=6, ps=0, win=5, mv=0)
for arg in sys.argv[2:]:
    k, val = arg.split('=')
    OPT[k] = int(val, 0)

NU = 60
WS_ACT = 0x000000
WS_KVP = 0x800000
KVS = 9216
WS_KF = 0x8A0000
WS_STAT = 0xC80000
WS_F = 0xC90000
WS_CS = 0xCA0000
WS_STAMP = 0xD00000
WS_SIZE = 0xE00000
KVH = 1088
OOB = 0x7f000000
LOG2E = 0x3fb8aa3b
LN2 = 0x3f317218
BOUND = 0x8000

L_W = 65536
L_E = 131072
def XP(sg): return 16384 * sg
def WP(sg): return L_W + 16384 * sg
TA, TZ, TB, TR, TS, TN, TPH = L_E, L_E + 1536, L_E + 2048, L_E + 3072, L_E + 3584, L_E + 3840, L_E + 6144
KVL = L_E + 24576
P3B = [L_E + 8192, L_E + 16384, XP(0), XP(0) + 8192, WP(0), WP(0) + 8192, XP(1), XP(1) + 8192]
FL_P3, FL_PB, FL_EX, FL_KV = TN + 16, TN + 32, TN + 48, TN + 80

SX, SA, SB, SWS, SD, SW2, SWO, STMP = 40, 44, 48, 56, 60, 64, 68, 72
SO = SA
sNonce, sWave, sRb, sCg, sTyp, sG, sF, sRb2, sCb = 3, 4, 5, 8, 9, 10, 11, 12, 13
sT0, sT1, sT2, sT3 = 14, 15, 76, 77
sO = [78, 79, 80, 81, 82, 83]
sJ = 84
sM = 85
sA, sB = 86, 87
sGq = 39
STREG = [88, 90, 92, 94, 96, 98, 100, 24, 74]

def srd(A, d, lo, size):
    A('s_mov_b32 %s, %s' % (s(d), s(lo)))
    A('s_mov_b32 %s, %s' % (s(d + 1), s(lo + 1)))
    A('s_mov_b32 %s, 0x%x' % (s(d + 2), size))
    A('s_mov_b32 %s, 0x20000' % s(d + 3))

def stamp(A, idx, fine=0):
    over = {0: (), 1: (1, 2), 2: (1, 2, 8, 4), 3: (1, 2, 8, 4, 5, 6)}[OPT['fine']]
    if fine == 0 and idx in over:
        return
    if fine and OPT['fine'] != fine:
        return
    if OPT['stamps']:
        A('%s %s' % ('s_memtime' if OPT['clk'] else 's_memrealtime', s(STREG[idx], 2)))

def emit(A, L):
    for it in L:
        if isinstance(it, tuple):
            A(it[0], tag=it[1])
        else:
            A(it)

class Keep:
    def __init__(self, A): self.A = A
    def __enter__(self): self.sv = list(self.A.vm); self.sl = list(self.A.lg)
    def __exit__(self, *e): self.A.vm = self.sv; self.A.lg = self.sl

def poll(A, name, reload, vreg, mask, cmp_nonce=True, pre=()):
    A('s_mov_b32 %s, 0' % s(sT0))
    A.label(name + '_P')
    emit(A, pre)
    if cmp_nonce:
        A('v_cmp_ne_u32 vcc, %s, %s' % (s(sNonce), v(vreg)))
    else:
        A('v_cmp_eq_u32 vcc, 0, %s' % v(vreg))
    if mask is not None:
        A('s_and_b32 vcc_lo, vcc_lo, %s' % mask)
        A('s_cmp_eq_u32 vcc_lo, 0')
    else:
        A('s_cmp_eq_u64 vcc, 0')
    A.branch('s_cbranch_scc1 %s_G' % name)
    A('s_add_u32 %s, %s, 1' % (s(sT0), s(sT0)))
    A('s_cmp_gt_u32 %s, 0x%x' % (s(sT0), BOUND))
    A.branch('s_cbranch_scc1 %s_G' % name)
    if OPT['slp']:
        A('s_sleep %d' % OPT['slp'])
    with Keep(A):
        emit(A, [reload] if isinstance(reload, str) else reload)
    A('s_waitcnt vmcnt(0)')
    A.branch('s_branch %s_P' % name)
    A.label(name + '_G')

def lds_wait(A, name, addr, n, minval, t, extra=()):
    A('s_mov_b32 %s, 0' % s(sT0))
    A.label(name + '_P')
    with Keep(A):
        A('ds_read_b128 %s, %s' % (v(t, 4), addr) if n == 4 else 'ds_read_b32 %s, %s' % (v(t), addr))
        emit(A, extra)
    A('s_add_u32 %s, %s, 1' % (s(sT0), s(sT0)))
    A('s_waitcnt lgkmcnt(0)')
    A.lg = []
    if n == 4:
        A('v_min3_u32 %s, %s, %s, %s' % (v(t), v(t), v(t + 1), v(t + 2)))
        A('v_min_u32 %s, %s, %s' % (v(t), v(t), v(t + 3)))
    A('v_readfirstlane_b32 %s, %s' % (s(sT1), v(t)))
    A('s_cmp_gt_u32 %s, 0x%x' % (s(sT0), BOUND * 16))
    A('s_cselect_b32 %s, %d, %s' % (s(sT1), minval, s(sT1)))
    A('s_cmp_lt_u32 %s, %d' % (s(sT1), minval))
    A.branch('s_cbranch_scc1 %s_P' % name)

vLane, vL16 = 255, 254

def tr_addr(A, dst, t, rowhalf, sel):
    A('v_lshrrev_b32 %s, 5, %s' % (v(t), v(vLane)))
    A('v_bfe_u32 %s, %s, 2, 2' % (v(t + 1), v(vLane)))
    A('v_mul_u32_u24 %s, %d, %s' % (v(t), rowhalf, v(t)))
    A('v_add_lshl_u32 %s, %s, %s, 7' % (v(dst), v(t), v(t + 1)))
    A('v_bfe_u32 %s, %s, 3, 1' % (v(t), v(vLane)))
    if sel:
        A('v_xor_b32 %s, %s, %s' % (v(t), sel, v(t)))
    A('v_lshl_add_u32 %s, %s, 6, %s' % (v(dst), v(t), v(dst)))
    A('v_bfe_u32 %s, %s, 4, 1' % (v(t), v(vLane)))
    A('v_lshl_add_u32 %s, %s, 5, %s' % (v(dst), v(t), v(dst)))
    A('v_and_b32 %s, 3, %s' % (v(t), v(vLane)))
    A('v_lshl_add_u32 %s, %s, 3, %s' % (v(dst), v(t), v(dst)))

def selector(A, dst, t):
    A('v_lshrrev_b32 %s, 2, %s' % (v(t), v(vLane)))
    A('v_xor_b32 %s, %s, %s' % (v(t), v(t), v(vLane)))
    A('v_and_b32 %s, 4, %s' % (v(t), v(t)))
    A('v_cmp_eq_u32 vcc, 0, %s' % v(t))
    A('v_mov_b32 %s, 0x3f803f80' % v(t + 1))
    A('v_cndmask_b32 %s, 0, %s, vcc' % (v(dst), v(t + 1)))
    for i in range(1, 4):
        A('v_mov_b32 %s, %s' % (v(dst + i), v(dst)))

def onehot(A, dst, key, t, first=0):
    A('v_mov_b32 %s, 0x3f80' % v(t))
    A('v_mov_b32 %s, 0x3f800000' % v(t + 1))
    for r in range(4):
        A('v_cmp_eq_u32 vcc, %d, %s' % (first + 2 * r, v(key)))
        A('v_cndmask_b32 %s, 0, %s, vcc' % (v(dst + r), v(t)))
        A('v_cmp_eq_u32 vcc, %d, %s' % (first + 2 * r + 1, v(key)))
        A('v_cndmask_b32 %s, %s, %s, vcc' % (v(dst + r), v(dst + r), v(t + 1)))

def reduce_write(A, acc, t, base_s):
    A('v_and_b32 %s, 31, %s' % (v(t), v(vLane)))
    A('v_lshrrev_b32 %s, 5, %s' % (v(t + 1), v(vLane)))
    A('v_xor_b32 %s, %s, %s' % (v(t + 1), v(t + 1), v(vLane)))
    A('v_and_b32 %s, 7, %s' % (v(t + 1), v(t + 1)))
    A('v_lshlrev_b32 %s, 4, %s' % (v(t + 1), v(t + 1)))
    A('v_lshl_add_u32 %s, %s, 7, %s' % (v(t), v(t), v(t + 1)))
    A('v_add_u32 %s, %s, %s' % (v(t), s(base_s), v(t)))
    for q4 in range(1, 4):
        A('v_xor_b32 %s, %d, %s' % (v(t + q4), 32 * q4, v(t)))
    for q4 in range(4):
        A('v_xor_b32 %s, 16, %s' % (v(t + 4 + q4), v(t + q4)))
        A('v_add_u32 %s, %d, %s' % (v(t + 4 + q4), 65536, v(t + 4 + q4)))
    return [('ds_write_b128 %s, %s offset:%d' % (v(t + 4 * nt + q4), v(acc + 16 * (2 * nt + rt) + 4 * q4, 4), rt * 16384))
            for nt in range(2) for rt in range(2) for q4 in range(4)]

def w2_voff(A, dst, t):
    A('v_lshrrev_b32 %s, 3, %s' % (v(t), v(vLane)))
    A('v_lshrrev_b32 %s, 2, %s' % (v(t + 1), v(vLane)))
    A('v_and_b32 %s, 4, %s' % (v(t + 1), v(t + 1)))
    A('v_and_b32 %s, 7, %s' % (v(t + 2), v(vLane)))
    A('v_xor_b32 %s, %s, %s' % (v(t + 1), v(t + 1), v(t + 2)))
    A('v_lshlrev_b32 %s, 4, %s' % (v(t + 1), v(t + 1)))
    A('s_lshl_b32 %s, %s, 7' % (s(sT0), s(sCb)))
    A('v_lshl_add_u32 %s, %s, 10, %s' % (v(dst), v(t), v(t + 1)))
    A('v_add_u32 %s, %s, %s' % (v(dst), s(sT0), v(dst)))

def quad(vo, srdn, ldsbase, tag):
    L = []
    L.append('s_lshl_b32 m0, %s, 12' % s(sJ))
    if ldsbase:
        L.append('s_add_u32 m0, m0, %d' % ldsbase)
    for i in range(4):
        if i:
            L.append('s_add_u32 %s, %s, %d' % (s(sO[i]), s(sO[0]), 7168 * i))
        L.append(('buffer_load_dwordx4 %s, %s, %s offen offset:%d lds' % (v(vo[i & 1]), s(srdn, 4), s(sO[i]), 1024 * i), tag))
    return L

def xres(A, vOo, vX):
    A('v_lshrrev_b32 %s, 3, %s' % (v(vOo), v(vLane)))
    A('v_and_b32 %s, 7, %s' % (v(vOo + 1), v(vLane)))
    A('v_lshlrev_b32 %s, 10, %s' % (v(vOo), v(vOo)))
    A('v_lshl_add_u32 %s, %s, 4, %s' % (v(vOo), v(vOo + 1), v(vOo)))
    A('s_lshl_b32 %s, %s, 3' % (s(6), s(sRb2)))
    A('s_add_u32 %s, %s, %s' % (s(6), s(6), s(sWave)))
    A('s_lshl_b32 %s, %s, 13' % (s(6), s(6)))
    A('s_lshl_b32 %s, %s, 7' % (s(7), s(sCb)))
    A('s_add_u32 %s, %s, %s' % (s(6), s(6), s(7)))
    A('buffer_load_dwordx4 %s, %s, %s, %s offen' % (v(vX, 4), v(vOo), s(SX, 4), s(6)), tag='xres')

def gen():
    A = Asm()
    vT = 236
    A.raw('.p2align 8')
    A.raw('.type %s_kernel,@function' % NAME)
    A.raw('%s_kernel:' % NAME)
    A('s_cmp_ge_u32 s2, 256')
    A.branch('s_cbranch_scc1 L_END')
    A('s_load_dwordx16 s[16:31], s[0:1], 0')
    A('s_load_dwordx4 s[32:35], s[0:1], 64')
    A('s_load_dwordx2 s[36:37], s[0:1], 80')
    A('s_memrealtime s[6:7]')
    A('v_and_b32 %s, 63, v0' % v(vLane))
    A('v_lshrrev_b32 %s, 6, v0' % v(vT))
    A('v_lshlrev_b32 %s, 4, %s' % (v(vL16), v(vLane)))
    A('v_readfirstlane_b32 %s, %s' % (s(sWave), v(vT)))
    A('s_and_b32 %s, s2, 7' % s(sT0))
    A('s_lshr_b32 %s, s2, 3' % s(sT1))
    A('s_and_b32 %s, %s, 1' % (s(sRb), s(sT0)))
    A('s_lshl_b32 %s, %s, 3' % (s(sRb), s(sRb)))
    A('s_and_b32 %s, %s, 7' % (s(sT2), s(sT1)))
    A('s_add_u32 %s, %s, %s' % (s(sRb), s(sRb), s(sT2)))
    A('s_lshr_b32 %s, %s, 1' % (s(sCg), s(sT0)))
    A('s_lshl_b32 %s, %s, 2' % (s(sCg), s(sCg)))
    A('s_lshr_b32 %s, %s, 3' % (s(sT2), s(sT1)))
    A('s_add_u32 %s, %s, %s' % (s(sCg), s(sCg), s(sT2)))
    A('s_and_b32 %s, %s, 1' % (s(sTyp), s(sCg)))
    A('s_lshr_b32 %s, %s, 1' % (s(sG), s(sCg)))
    A('s_xor_b32 %s, %s, %d' % (s(sGq), s(sG), 2 * OPT['xq']))
    A('s_cmp_eq_u32 %s, 1' % s(sTyp))
    A('s_cselect_b32 %s, %s, %s' % (s(sGq), s(sG), s(sGq)))
    A('s_lshl_b32 %s, %s, 1' % (s(sF), s(sCg)))
    A('s_add_u32 %s, %s, %s' % (s(sF), s(sF), s(sRb)))
    A('s_and_b32 %s, %s, 7' % (s(sF), s(sF)))
    if OPT['xmap']:
        A('s_lshr_b32 %s, %s, 1' % (s(sRb2), s(sT0)))
        A('s_andn2_b32 %s, 1, %s' % (s(sT2), s(sT0)))
        A('s_lshl_b32 %s, %s, 2' % (s(sT2), s(sT2)))
        A('s_add_u32 %s, %s, %s' % (s(sRb2), s(sRb2), s(sT2)))
        A('s_lshl_b32 %s, %s, 2' % (s(sRb2), s(sRb2)))
    else:
        A('s_lshl_b32 %s, %s, 2' % (s(sRb2), s(sT0)))
    A('s_and_b32 %s, %s, 3' % (s(sT2), s(sT1)))
    A('s_add_u32 %s, %s, %s' % (s(sRb2), s(sRb2), s(sT2)))
    A('s_lshr_b32 %s, %s, 2' % (s(sCb), s(sT1)))
    A('s_and_b32 %s, %s, 3' % (s(sJ), s(sWave)))
    A('s_cmp_ge_u32 %s, 4' % s(sWave))
    A.branch('s_cbranch_scc1 C_START')
    gen_loader(A)
    gen_compute(A)
    gen_final(A)
    return A.text()

def gen_loader(A):
    vXo, vP1, vP2, vP3, v2o = 224, 226, 227, 228, 229
    vNon, vG, vTa, vFl = 230, 232, 234, 253
    vT = 236
    vRow = 0
    vCf = 32
    vCa = 56
    vSel = 68
    vGa = 72
    vB1 = 104
    sPA16, sPA8, sPB16, sPB8 = 52, 53, 54, 55
    sC1, sC2, sC3 = SWO, SWO + 1, SWO + 2
    sStat = 7
    A('s_lshl_b32 %s, %s, 7' % (s(sT0), s(sG)))
    A('s_lshl_b32 %s, %s, 8' % (s(sT1), s(sG)))
    A('s_add_u32 %s, %s, 1024' % (s(sC1), s(sT0)))
    A('s_add_u32 %s, %s, 2048' % (s(sC2), s(sT0)))
    A('s_add_u32 %s, %s, 128' % (s(sT3), s(sT1)))
    A('s_lshl_b32 %s, %s, 7' % (s(sT2), s(sGq)))
    A('s_cmp_eq_u32 %s, 1' % s(sTyp))
    A('s_cselect_b32 %s, %s, %s' % (s(sC3), s(sC2), s(sT2)))
    A('s_cselect_b32 %s, %s, %s' % (s(sC1), s(sC1), s(sT1)))
    A('s_cselect_b32 %s, %s, %s' % (s(sC2), s(sC2), s(sT3)))
    A('s_movk_i32 %s, 2752' % s(sT1))
    A('s_cselect_b32 %s, 3072, %s' % (s(sT2), s(sT1)))
    A('s_cselect_b32 %s, %s, 3072' % (s(sT3), s(sT1)))
    w2_voff(A, v2o, vT)
    A('v_mul_u32_u24 %s, %s, %s' % (v(vP2), s(sT2), v(vT)))
    A('v_add3_u32 %s, %s, %s, %s' % (v(vP1), v(vP2), v(vT + 1), s(sC1)))
    A('v_add3_u32 %s, %s, %s, %s' % (v(vP2), v(vP2), v(vT + 1), s(sC2)))
    A('v_add_u32 %s, %s, %s' % (v(vT + 3), s(sC3), v(vT + 1)))
    A('v_mul_u32_u24 %s, %s, %s' % (v(vP3), s(sT3), v(vT)))
    A('v_add_u32 %s, %s, %s' % (v(vP3), v(vP3), v(vT + 3)))
    A('v_cmp_gt_u32 vcc, 2752, %s' % v(vT + 3))
    A('v_mov_b32 %s, 0x%x' % (v(vT + 3), OOB))
    A('v_cndmask_b32 %s, %s, %s, vcc' % (v(vP3), v(vT + 3), v(vP3)))
    A('s_lshl_b32 %s, %s, 4' % (s(sPA16), s(sT2)))
    A('s_lshl_b32 %s, %s, 3' % (s(sPA8), s(sT2)))
    A('s_sub_u32 %s, %s, 1024' % (s(sPA8), s(sPA8)))
    A('s_lshl_b32 %s, %s, 4' % (s(sPB16), s(sT3)))
    A('s_lshl_b32 %s, %s, 3' % (s(sPB8), s(sT3)))
    A('s_sub_u32 %s, %s, 1024' % (s(sPB8), s(sPB8)))
    A('v_lshrrev_b32 %s, 4, %s' % (v(vT + 1), v(vLane)))
    A('v_xor_b32 %s, %s, %s' % (v(vT + 1), v(vT + 1), v(vT + 2)))
    A('s_lshl_b32 %s, %s, 2' % (s(sT0), s(sRb)))
    A('s_add_u32 %s, %s, %s' % (s(sT0), s(sT0), s(sJ)))
    A('s_lshl_b32 %s, %s, 15' % (s(sT0), s(sT0)))
    A('v_lshlrev_b32 %s, 10, %s' % (v(vXo), v(vT)))
    A('v_lshl_add_u32 %s, %s, 4, %s' % (v(vXo), v(vT + 1), v(vXo)))
    A('v_add_u32 %s, %s, %s' % (v(vXo), s(sT0), v(vXo)))
    A('v_xor_b32 %s, 64, %s' % (v(vXo + 1), v(vXo)))
    A('s_lshl_b32 %s, %s, 11' % (s(sM), s(sJ)))
    A('s_lshl_b32 %s, %s, 4' % (s(sA), s(sRb)))
    A('s_add_u32 %s, %s, %s' % (s(sA), s(sA), s(sCg)))
    A('s_lshl_b32 %s, %s, 2' % (s(sA), s(sA)))
    A('s_add_u32 %s, %s, %s' % (s(sA), s(sA), s(sJ)))
    A('s_lshl_b32 %s, %s, 11' % (s(sB), s(sA)))
    A('v_and_b32 %s, 32, %s' % (v(vT + 4), v(vLane)))
    A('v_lshl_add_u32 %s, %s, 4, %s' % (v(vT + 4), v(vT + 4), v(vL16)))
    A('v_mov_b32 %s, 0' % v(vT + 5))
    A('s_or_b32 %s, s2, %s' % (s(sT0), s(sWave)))
    A('s_waitcnt lgkmcnt(0)')
    srd(A, SD, 34, 256)
    A('s_cmp_lg_u32 %s, 0' % s(sT0))
    A.branch('s_cbranch_scc1 L_NONONCE')
    A('s_or_b32 s6, s6, 1')
    A('v_mov_b32 %s, s6' % v(vT))
    with Keep(A):
        A('buffer_store_dword %s, %s, %s, 0 offen offset:128 sc1' % (v(vT), v(vT + 5), s(SD, 4)))
    A.label('L_NONONCE')
    srd(A, SX, 16, 2048 * 1024)
    A('s_cmp_eq_u32 %s, 1' % s(sTyp))
    for d, x_, y_, p16 in ((SA, 18, 26, sPA16), (SB, 26, 18, sPB16)):
        A('s_cselect_b32 %s, %s, %s' % (s(d), s(x_), s(y_)))
        A('s_cselect_b32 %s, %s, %s' % (s(d + 1), s(x_ + 1), s(y_ + 1)))
        A('s_mov_b32 %s, 0x20000' % s(d + 3))
    A('s_lshl_b32 %s, %s, 5' % (s(SA + 2), s(sPA16)))
    A('s_lshl_b32 %s, %s, 5' % (s(SB + 2), s(sPB16)))
    stamp(A, 0)

    def krow(st):
        return ['s_add_u32 %s, %s, %d' % (s(sT3), s(sF), st),
                's_and_b32 %s, %s, 7' % (s(sT3), s(sT3)),
                's_lshl_b32 %s, %s, 2' % (s(sT3), s(sT3)),
                's_add_u32 %s, %s, %s' % (s(sT3), s(sT3), s(sJ))]
    def grp_w(st):
        L = krow(st)
        L.append('s_mul_i32 %s, %s, %s' % (s(sO[0]), s(sT3), s(sPA16)))
        L.append('s_add_u32 m0, %s, %d' % (s(sM), WP(st & 3)))
        L.append('s_add_u32 %s, %s, %s' % (s(sO[1]), s(sO[0]), s(sPA8)))
        L.append(('buffer_load_dwordx4 %s, %s, %s offen lds' % (v(vP1), s(SA, 4), s(sO[0])), 's%d' % st))
        L.append(('buffer_load_dwordx4 %s, %s, %s offen offset:1024 lds' % (v(vP1), s(SA, 4), s(sO[1])), 's%d' % st))
        L.append('s_add_u32 m0, %s, %d' % (s(sM), WP(st & 3) + 8192))
        L.append(('buffer_load_dwordx4 %s, %s, %s offen lds' % (v(vP2), s(SA, 4), s(sO[0])), 's%d' % st))
        L.append(('buffer_load_dwordx4 %s, %s, %s offen offset:1024 lds' % (v(vP2), s(SA, 4), s(sO[1])), 's%d' % st))
        return L
    def grp_p3(st):
        tag = 's0' if st == 0 else 'p3'
        L = krow(st)
        L.append('s_mul_i32 %s, %s, %s' % (s(sO[0]), s(sT3), s(sPB16)))
        L.append('s_add_u32 m0, %s, %d' % (s(sM), P3B[st]))
        L.append('s_add_u32 %s, %s, %s' % (s(sO[1]), s(sO[0]), s(sPB8)))
        L.append(('buffer_load_dwordx4 %s, %s, %s offen lds' % (v(vP3), s(SB, 4), s(sO[0])), tag))
        L.append(('buffer_load_dwordx4 %s, %s, %s offen offset:1024 lds' % (v(vP3), s(SB, 4), s(sO[1])), tag))
        return L
    def grp_x(st):
        L = []
        L.append('s_add_u32 %s, %s, %d' % (s(sT3), s(sF), st))
        L.append('s_and_b32 %s, %s, 7' % (s(sT3), s(sT3)))
        L.append('s_lshl_b32 %s, %s, 7' % (s(sO[0]), s(sT3)))
        return L + quad((vXo, vXo + 1), SX, XP(st & 3), 's%d' % st)
    UL = [(8, 0), (8, 1), (8, 4), (8, 5), (8, 2), (8, 3), (8, 6), (8, 7), (3, 32), (3, 33), (3, 34)]
    UP = [WP(1), XP(2), WP(2), XP(3), WP(3), XP(2), WP(2), XP(3), WP(3), XP(2), WP(2)]
    def grp_w2(i):
        m, c = UL[i]
        L = ['s_mul_i32 %s, %s, %d' % (s(sO[0]), s(sJ), m * 32768)]
        if c:
            L.append('s_add_u32 %s, %s, %d' % (s(sO[0]), s(sO[0]), c * 32768))
        return L + quad((v2o, v2o), SW2, UP[i], 'u%d' % i)
    groups = []
    for st in range(8):
        groups += [('w', st), ('x', st)]
    SCHED = {0: [6, 2, 2, 2, 2, 2], 1: [4, 4, 2, 2, 2, 2], 2: [8, 0, 2, 2, 2, 2], 3: [5, 3, 2, 2, 2, 2]}[OPT['sched']]
    pos = [0]
    def issue(n, iv):
        for _ in range(n):
            kind, st = groups[pos[0]]
            assert st <= iv + 3 or st < 4, (st, iv)
            emit(A, grp_w(st) if kind == 'w' else grp_x(st))
            pos[0] += 1

    nload = 'buffer_load_dword %s, %s, %s, 0 offen offset:128 sc1' % (v(vNon), v(vT + 5), s(SD, 4))
    A('buffer_load_dwordx4 %s, %s, %s, %s offen' % (v(vRow, 4), v(vT + 4), s(SX, 4), s(sB)), tag='row')
    A('buffer_load_dwordx4 %s, %s, %s, %s offen offset:512' % (v(vRow + 4, 4), v(vT + 4), s(SX, 4), s(sB)), tag='row')
    issue(2, -1)
    emit(A, grp_p3(0))
    A(nload, tag='s0')
    issue(2, -1)
    A('buffer_load_dword %s, %s, %s, 0 offen offset:128 sc1' % (v(vNon + 1), v(vT + 5), s(SD, 4)), tag='non2')
    srd(A, SWS, 36, WS_SIZE)
    A('s_lshl_b32 %s, %s, 4' % (s(sStat), s(sA)))
    A('s_add_u32 %s, %s, 0x%x' % (s(sStat), s(sStat), WS_STAT))
    srd(A, SW2, 30, 1376 * 1024)

    def xsum32(r, t):
        for ctl in ('quad_perm:[1,0,3,2]', 'quad_perm:[2,3,0,1]', 'row_half_mirror', 'row_mirror'):
            A('v_add_f32_dpp %s, %s, %s %s row_mask:0xf bank_mask:0xf' % (v(r), v(r), v(r), ctl))
        A('v_mov_b32 %s, %s' % (v(t), v(r)))
        A('v_permlane16_swap_b32 %s, %s' % (v(r), v(t)))
        A('v_add_f32 %s, %s, %s' % (v(r), v(r), v(t)))
    U = vRow + 8
    tr_addr(A, vTa, vT, 8, s(sJ))
    A('s_lshr_b32 %s, %s, 3' % (s(sT0), s(sRb)))
    A('s_lshl_b32 %s, %s, 12' % (s(sT0), s(sT0)))
    A('s_add_u32 %s, %s, %d' % (s(sT0), s(sT0), L_W))
    A('v_add_u32 %s, %s, %s' % (v(vTa), s(sT0), v(vTa)))
    A('v_add_u32 %s, %d, %s' % (v(vTa + 1), P3B[0] - L_W, v(vTa)))
    selector(A, vSel, vT)
    A('v_lshlrev_b32 %s, 2, %s' % (v(vFl), v(vLane)))
    A('v_and_b32 %s, 0x7c, %s' % (v(vFl), v(vFl)))
    A.wait_vm('row')
    for j in range(8):
        A('v_lshlrev_b32 %s, 16, %s' % (v(U + 2 * j), v(vRow + j)))
        A('v_and_b32 %s, 0xffff0000, %s' % (v(U + 2 * j + 1), v(vRow + j)))
    for j in range(4):
        A('v_add_f32 %s, %s, %s' % (v(vRow + j), v(U + j), v(U + 4 + j)))
        A('v_add_f32 %s, %s, %s' % (v(vRow + 4 + j), v(U + 8 + j), v(U + 12 + j)))
    for st_ in (4, 2, 1):
        for j in range(st_):
            A('v_add_f32 %s, %s, %s' % (v(vRow + j), v(vRow + j), v(vRow + st_ + j)))
    xsum32(vRow, vRow + 1)
    A('v_mul_f32 %s, 0xbb000000, %s' % (v(vRow), v(vRow)))
    for j in range(16):
        A('v_add_f32 %s, %s, %s' % (v(U + j), v(U + j), v(vRow)))
    for j in range(4):
        A('v_mul_f32 %s, %s, %s' % (v(vRow + 4 + j), v(U + j), v(U + j)))
    for j in range(4, 16):
        A('v_fmac_f32 %s, %s, %s' % (v(vRow + 4 + (j & 3)), v(U + j), v(U + j)))
    r = vRow + 4
    A('v_add_f32 %s, %s, %s' % (v(r), v(r), v(r + 1)))
    A('v_add_f32 %s, %s, %s' % (v(r + 2), v(r + 2), v(r + 3)))
    A('v_add_f32 %s, %s, %s' % (v(r), v(r), v(r + 2)))
    xsum32(r, r + 1)
    A('v_mul_f32 %s, 0x3b000000, %s' % (v(r), v(r)))
    A('v_cvt_pk_bf16_f32 %s, %s, %s' % (v(r), v(r), v(r)))
    A('v_lshlrev_b32 %s, 16, %s' % (v(r), v(r)))
    A('v_add_f32 %s, 0x3727c5ac, %s' % (v(r), v(r)))
    A('v_cvt_pk_bf16_f32 %s, %s, %s' % (v(r), v(r), v(r)))
    A('v_lshlrev_b32 %s, 16, %s' % (v(r), v(r)))
    A('v_sqrt_f32 %s, %s' % (v(r), v(r)))
    A('v_cvt_pk_bf16_f32 %s, %s, %s' % (v(vG), v(vRow), v(r)))
    A('v_cmp_eq_u32 vcc, 0, %s' % v(vFl))
    A('v_lshrrev_b32 %s, 2, %s' % (v(vT), v(vLane)))
    A('v_mov_b32 %s, 0x%x' % (v(vT + 1), OOB))
    A('v_cndmask_b32 %s, %s, %s, vcc' % (v(vT + 4), v(vT + 1), v(vT)))
    issue(SCHED[0] - 4, -1)
    A.wait_vm('s0')
    A('s_barrier')
    stamp(A, 1)
    A('s_cmp_ge_u32 %s, 2' % s(sJ))
    A.branch('s_cbranch_scc1 L_NOCF')
    with Keep(A):
        for ks in range(2):
            for u in range(3):
                for hh in range(2):
                    A('ds_read_b64_tr_b16 %s, %s offset:%d' % (v(vCf + 12 * ks + 4 * u + 2 * hh, 2), v(vTa + (u >> 1)), 8192 * (u & 1) + 2048 * ks + 512 * hh))
    A.label('L_NOCF')
    A('v_readfirstlane_b32 %s, %s' % (s(sNonce), v(vNon)))
    A('s_cmp_lg_u32 %s, 0' % s(sNonce))
    A.branch('s_cbranch_scc1 LN_DONE')
    with Keep(A):
        A.wait_vm('non2')
        A('v_mov_b32 %s, %s' % (v(vNon), v(vNon + 1)))
        poll(A, 'LN', nload, vNon, None, cmp_nonce=False)
        A('v_readfirstlane_b32 %s, %s' % (s(sNonce), v(vNon)))
    A.label('LN_DONE')
    A('v_mov_b32 %s, %s' % (v(vG + 1), v(vNon)))
    A('buffer_store_dwordx2 %s, %s, %s, %s offen sc1' % (v(vG, 2), v(vT + 4), s(SWS, 4), s(sStat)), tag='pub')
    A('s_cmp_ge_u32 %s, 2' % s(sJ))
    A.branch('s_cbranch_scc1 LB_START')
    vm0 = list(A.vm)
    pos0 = pos[0]

    def bar(n):
        A('s_barrier')
        if n == 4:
            stamp(A, 2)
        if n in (5, 6, 7):
            stamp(A, {5: 1, 6: 2, 7: 8}[n], 3)
    GI = OPT['gi']
    for k in 'AB':
        if k == 'B':
            A.label('LB_START')
            A.vm = list(vm0); A.lg = []; pos[0] = pos0
        sCs = 6
        if k == 'A':
            A('s_lshl_b32 %s, %s, 1' % (s(sCs), s(sCg)))
            A('s_add_u32 %s, %s, %s' % (s(sCs), s(sCs), s(sJ)))
            A('s_lshl_b32 %s, %s, 13' % (s(sCs), s(sCs)))
            A('s_add_u32 %s, %s, 0x%x' % (s(sCs), s(sCs), WS_CS))
            A('s_lshl_b32 %s, %s, 9' % (s(sT1), s(sRb)))
            A('s_add_u32 %s, %s, %s' % (s(sT1), s(sT1), s(sCs)))
            A('v_and_b32 %s, 0x1ff, %s' % (v(vT), v(vL16)))
            A('s_waitcnt lgkmcnt(0)')
            for ks in range(2):
                for u in range(3):
                    A('v_mfma_f32_16x16x32_bf16 %s, %s, %s, %s' % (v(vCa + 4 * u, 4), v(vSel, 4), v(vCf + 12 * ks + 4 * u, 4), '0' if ks == 0 else v(vCa + 4 * u, 4)))
            A('v_mov_b32 %s, %s' % (v(vCa + 1), v(vCa + 4)))
            A('v_mov_b32 %s, %s' % (v(vCa + 2), v(vCa + 8)))
            A('v_mov_b32 %s, %s' % (v(vCa + 3), v(vNon)))
            A('buffer_store_dwordx4 %s, %s, %s, %s offen sc1' % (v(vCa, 4), v(vT), s(SWS, 4), s(sT1)), tag='css')
            A('s_add_u32 %s, %s, 4096' % (s(sStat), s(sCs)))
            gal = ['buffer_load_dwordx4 %s, %s, %s, %s offen offset:%d sc1' % (v(vGa + 4 * i, 4), v(vL16), s(SWS, 4), s(sCs if i < 4 else sStat), 1024 * (i & 3)) for i in range(8)]
        else:
            A('s_lshl_b32 %s, %s, 1' % (s(sStat), s(sRb)))
            A('s_add_u32 %s, %s, %s' % (s(sStat), s(sStat), s(sJ)))
            A('s_lshl_b32 %s, %s, 9' % (s(sStat), s(sStat)))
            A('s_add_u32 %s, %s, 0x%x' % (s(sStat), s(sStat), WS_STAT - 1024))
            A('v_lshlrev_b32 %s, 3, %s' % (v(vTa), v(vLane)))
            gal = ['buffer_load_dwordx2 %s, %s, %s, %s offen sc1' % (v(vGa, 2), v(vTa), s(SWS, 4), s(sStat))]
        def gather():
            emit(A, [(x, 'ga') for x in gal])
        def small():
            if k == 'A':
                srd(A, STMP, 28, 2752)
                A('s_lshl_b32 %s, %s, 6' % (s(sT0), s(sJ)))
                A('s_add_u32 %s, %s, %s' % (s(sC1), s(sC1), s(sT0)))
                A('s_add_u32 %s, %s, %s' % (s(sC2), s(sC2), s(sT0)))
                A('s_add_u32 %s, %s, %s' % (s(sC3), s(sC3), s(sT0)))
                A('s_cmp_eq_u32 %s, 1' % s(sTyp))
                A('s_cselect_b32 %s, 0x%x, %s' % (s(sC1), OOB, s(sC1)))
                A('s_cselect_b32 %s, 0x%x, %s' % (s(sC2), OOB, s(sC2)))
                A('s_cselect_b32 %s, %s, 0x%x' % (s(sC3), s(sC3), OOB))
                A('v_lshrrev_b32 %s, 1, %s' % (v(vT), v(vFl)))
                for u in range(3):
                    A('buffer_load_ushort %s, %s, %s, %s offen' % (v(vB1 + u), v(vT), s(STMP, 4), s(sC1 + u)), tag='b1')
            else:
                srd(A, STMP, 20, 16384)
                A('s_lshl_b32 %s, %s, 1' % (s(sT0), s(sGq)))
                A('s_add_u32 %s, %s, %s' % (s(sT0), s(sT0), s(sJ)))
                A('s_lshl_b32 %s, %s, 10' % (s(sT0), s(sT0)))
                A('s_sub_u32 %s, %s, 2048' % (s(sT0), s(sT0)))
                A('s_lshr_b32 %s, %s, 1' % (s(sT1), s(sM)))
                A('s_add_u32 m0, %s, %d' % (s(sT1), TPH - 2048))
                A('buffer_load_dwordx4 %s, %s, %s offen lds' % (v(vL16), s(STMP, 4), s(sT0)), tag='b1')
        def tables():
            A.wait_vm('ga')
            stamp(A, 4, 3)
            if k == 'B':
                poll(A, 'LST', gal, vGa + 1, None)
                A('v_and_b32 %s, 0xffff, %s' % (v(vT), v(vGa)))
                A('v_lshl_or_b32 %s, %s, 16, %s' % (v(vT), v(vGa), v(vT)))
                A('v_lshrrev_b32 %s, 16, %s' % (v(vT + 1), v(vGa)))
                A('v_and_b32 %s, 0xffff0000, %s' % (v(vGa), v(vGa)))
                A('v_rcp_f32 %s, %s' % (v(vT + 2), v(vGa)))
                A('s_lshr_b32 %s, %s, 2' % (s(sT0), s(sM)))
                A('s_add_u32 %s, %s, %d' % (s(sT0), s(sT0), TB - 1024))
                A('v_add_u32 %s, %s, %s' % (v(vT + 3), s(sT0), v(vTa)))
                A('ds_write_b64 %s, %s' % (v(vT + 3), v(vT, 2)))
                A('s_lshr_b32 %s, %s, 3' % (s(sT0), s(sM)))
                A('s_add_u32 %s, %s, %d' % (s(sT0), s(sT0), TR - 512))
                A('v_lshl_add_u32 %s, %s, 2, %s' % (v(vT + 3), v(vLane), s(sT0)))
                A('ds_write_b32 %s, %s' % (v(vT + 3), v(vT + 2)))
                A('s_lshr_b32 %s, %s, 4' % (s(sT0), s(sM)))
                A('s_add_u32 %s, %s, %d' % (s(sT0), s(sT0), TS - 256))
                A('v_lshl_add_u32 %s, %s, 1, %s' % (v(vT + 3), v(vLane), s(sT0)))
                A('ds_write_b16 %s, %s' % (v(vT + 3), v(vT + 1)))
                A('v_cmp_eq_u32 vcc, 0, %s' % v(vFl))
                A('v_cndmask_b32 %s, 0, %s, vcc' % (v(vT + 4), v(vNon)))
                A('v_add_u32 %s, %d, %s' % (v(vT + 6), TN, v(vFl)))
                A('ds_write_b32 %s, %s' % (v(vT + 6), v(vT + 4)))
            else:
                pre = ['v_min3_u32 %s, %s, %s, %s' % (v(vT), v(vGa + 3), v(vGa + 7), v(vGa + 11)),
                       'v_max3_u32 %s, %s, %s, %s' % (v(vT + 1), v(vGa + 3), v(vGa + 7), v(vGa + 11)),
                       'v_min3_u32 %s, %s, %s, %s' % (v(vT), v(vT), v(vGa + 15), v(vGa + 19)),
                       'v_max3_u32 %s, %s, %s, %s' % (v(vT + 1), v(vT + 1), v(vGa + 15), v(vGa + 19)),
                       'v_min3_u32 %s, %s, %s, %s' % (v(vT), v(vT), v(vGa + 23), v(vGa + 27)),
                       'v_max3_u32 %s, %s, %s, %s' % (v(vT + 1), v(vT + 1), v(vGa + 23), v(vGa + 27)),
                       'v_min_u32 %s, %s, %s' % (v(vT), v(vT), v(vGa + 31)),
                       'v_max_u32 %s, %s, %s' % (v(vT + 1), v(vT + 1), v(vGa + 31)),
                       'v_cmp_eq_u32 vcc, %s, %s' % (v(vT), v(vT + 1)),
                       'v_cndmask_b32 %s, 0, %s, vcc' % (v(vT), v(vT))]
                poll(A, 'LCS', gal, vT, None, pre=pre)
                for st_ in (16, 8, 4):
                    for r in range(st_):
                        if r & 3 != 3:
                            A('v_add_f32 %s, %s, %s' % (v(vGa + r), v(vGa + r), v(vGa + st_ + r)))
                for u in range(3):
                    A('v_mov_b32 %s, %s' % (v(vGa + 4 + u), v(vGa + u)))
                for u in range(3):
                    A('v_permlane32_swap_b32 %s, %s' % (v(vGa + u), v(vGa + 4 + u)))
                for u in range(3):
                    A('v_add_f32 %s, %s, %s' % (v(vGa + u), v(vGa + u), v(vGa + 4 + u)))
                A('s_mul_i32 %s, %s, 768' % (s(sT0), s(sJ)))
                A('s_add_u32 %s, %s, %d' % (s(sT0), s(sT0), TA))
                A('v_lshl_add_u32 %s, %s, 1, %s' % (v(vT), v(vFl), s(sT0)))
                for u in range(3):
                    p = vGa + 8 + 2 * u
                    A('v_cvt_pk_bf16_f32 %s, %s, %s' % (v(p), v(vGa + u), v(vGa + u)))
                    A('v_lshlrev_b32 %s, 16, %s' % (v(p), v(p)))
                    A('v_sub_f32 %s, %s, %s' % (v(p), v(vGa + u), v(p)))
                    A('v_cvt_pk_bf16_f32 %s, %s, %s' % (v(p), v(vGa + u), v(p)))
                    A('v_mov_b32 %s, %s' % (v(p + 1), v(vB1 + u)))
                    A('ds_write_b64 %s, %s offset:%d' % (v(vT), v(p, 2), 256 * u))
        PS = {0: {4: ('p1', ''), 5: ('p2 p3 p4 p5', ''), 6: ('p6 p7 u0', ''), 7: ('', 'u1 u2')},
              1: {4: ('', 'p1'), 5: ('', 'p2 p3'), 6: ('', 'p4 p5 p6 p7'), 7: ('', 'u0')},
              2: {7: ('', 'p1 p2 p3 p4 p5 p6 p7')},
              3: {4: ('', 'p1'), 5: ('', 'p2 p3 p4 p5'), 6: ('', 'p6 p7 u0'), 7: ('u1', 'u2')},
              4: {4: ('', 'p1'), 5: ('', 'p2 p3 p4 p5'), 6: ('', 'p6 p7'), 7: ('u0', '')},
              5: {6: ('', 'p1 p2 p3 p4'), 7: ('p5 p6 p7', '')}}[OPT['ps']]
        nw2 = 0
        def extra(spec):
            n = 0
            for it in spec.split():
                emit(A, grp_p3(int(it[1:])) if it[0] == 'p' else grp_w2(int(it[1:])))
                n += it[0] == 'u'
            return n
        for iv in range(8):
            pre_, post_ = PS.get(iv, ('', ''))
            if iv == GI:
                gather()
            if iv < 5:
                issue(SCHED[iv + 1], iv)
            if iv == 2:
                small()
            nw2 += extra(pre_)
            if iv == 7:
                tables()
                stamp(A, 5, 3)
                nw2 += extra(post_)
                stamp(A, 6, 3)
            if iv < 7:
                A.wait_vm('s%d' % (iv + 1))
                nw2 += extra(post_)
                bar(iv + 1)
        A('s_waitcnt lgkmcnt(0)')
        A.lg = []
        if k == 'A':
            vmA = list(A.vm)
            A.branch('s_branch L_JOIN')
    A.label('L_JOIN')
    vmB = list(A.vm)
    assert vmA == vmB, (vmA, vmB)
    A('s_barrier')
    stamp(A, 3)
    vAcc, vW, vR = 0, 64, 176
    vA0, vB0 = 226, 224
    vFw = 232
    WIN = OPT['win']
    nx = [nw2]
    def w2_upto(n):
        while nx[0] <= min(n, 10):
            emit(A, grp_w2(nx[0]))
            nx[0] += 1
    w2_upto(min(WIN, 5) - 1 - (OPT['ps'] in (2, 5)) * 2)
    tr_addr(A, vA0, vT, 4, None)
    A('s_lshl_b32 %s, %s, 1' % (s(sT0), s(sM)))
    A('v_add_u32 %s, %s, %s' % (v(vA0), s(sT0), v(vA0)))
    A('v_xor_b32 %s, 64, %s' % (v(vA0 + 1), v(vA0)))
    A('v_add_u32 %s, %d, %s' % (v(vB0), L_W, v(vA0)))
    A('v_add_u32 %s, %d, %s' % (v(vB0 + 1), L_W, v(vA0 + 1)))
    A('s_lshl_b32 %s, %s, 2' % (s(sT0), s(sJ)))
    A('s_add_u32 %s, %s, %d' % (s(sT0), s(sT0), FL_P3))
    A('v_mov_b32 %s, %s' % (v(vFw), s(sT0)))
    A('v_mov_b32 %s, 1' % v(vFw + 1))
    A.wait_vm('p3')
    A('ds_write_b32 %s, %s' % (v(vFw), v(vFw + 1)))
    w2_upto(min(WIN, 5) - 1)
    A('v_mov_b32 %s, 2' % v(vFw + 2))
    def wread(slot, lds, tag):
        base, off = (vA0, lds) if lds < L_W else (vB0, lds - L_W)
        return [('ds_read_b64_tr_b16 %s, %s offset:%d' % (v(vW + 16 * slot + 8 * c + 4 * nt + 2 * hh, 2), v(base + nt), off + 2048 * c + 1024 * hh), tag)
                for c in range(2) for nt in range(2) for hh in range(2)]
    sFl, sAct = sA, sB
    A('s_lshl_b32 %s, %s, 3' % (s(sFl), s(sRb2)))
    A('s_add_u32 %s, %s, %s' % (s(sFl), s(sFl), s(sJ)))
    A('s_lshl_b32 %s, %s, 7' % (s(sFl), s(sFl)))
    A('s_add_u32 %s, %s, 0x%x' % (s(sFl), s(sFl), WS_F))
    vFv = 228
    fload = 'buffer_load_dword %s, %s, %s, %s offen sc1' % (v(vFv), v(vFl), s(SWS, 4), s(sFl))
    A('s_mul_i32 %s, %s, %d' % (s(sAct), s(sRb2), NU * 4096))
    A('s_lshl_b32 %s, %s, 15' % (s(sO[4]), s(sJ)))
    A('s_add_u32 %s, %s, %s' % (s(sO[4]), s(sO[4]), s(sAct)))
    A('s_mul_i32 %s, %s, %d' % (s(sO[5]), s(sJ), 3 * 4096))
    A('s_add_u32 %s, %s, %s' % (s(sO[5]), s(sO[5]), s(sAct)))
    for i in range(7):
        A.wait_vm('u%d' % i)
        emit(A, wread(i, UP[i], 'm'))
        A.wait_lg(None)
        if i == 0:
            A('ds_write_b32 %s, %s' % (v(vFw), v(vFw + 2)))
        w2_upto(min(i + WIN, 4 + i))
        if i == 4:
            A(fload, tag='fl')
    for i in range(7, 11):
        if nx[0] <= 10:
            A.wait_vm('u%d' % i)
            w2_upto(i + WIN)
    stamp(A, 8)
    def aload(i):
        m, c = UL[i]
        A('s_add_u32 %s, %s, %d' % (s(sT1), s(sO[4] if m == 8 else sO[5]), c * 4096))
        for q in range(4):
            A('buffer_load_dwordx4 %s, %s, %s, %s offen offset:%d sc1' % (v(vR + 16 * (i % 3) + 4 * q, 4), v(vL16), s(SWS, 4), s(sT1), 1024 * q), tag='a%d' % i)
    def gate(i):
        if i in (0, 4, 8):
            A.wait_vm('fl')
            poll(A, 'LA%d' % i, fload, vFv, {0: '0xf', 4: '0xff', 8: '0x3fff'}[i])
            if i == 0:
                stamp(A, 4)
    for i in range(3):
        gate(i)
        aload(i)
    A('s_cmp_eq_u32 %s, 1' % s(sTyp))
    A.branch('s_cbranch_scc1 L_NOKV')
    with Keep(A):
        vK, vD, vSg, vZo, vKw = 0, 36, 44, 48, 49
        sKf, sKp = sO[0], sO[1]
        A('s_lshl_b32 %s, %s, 3' % (s(sT0), s(sGq)))
        A('s_add_u32 %s, %s, %s' % (s(sT0), s(sT0), s(sJ)))
        A('s_lshl_b32 %s, %s, 7' % (s(sKf), s(sT0)))
        A('s_add_u32 %s, %s, 0x%x' % (s(sKf), s(sKf), WS_KF))
        kfl = ['buffer_load_dword %s, %s, %s, %s offen offset:%d sc1' % (v(vFw + 2), v(vFl), s(SWS, 4), s(sKf), 512 * h) for h in range(2)]
        A(kfl[0])
        A('s_mul_i32 %s, %s, %d' % (s(sKp), s(sT0), KVS))
        A('s_add_u32 %s, %s, 0x%x' % (s(sKp), s(sKp), WS_KVP))
        A('v_and_b32 %s, 15, %s' % (v(vT), v(vLane)))
        A('v_lshrrev_b32 %s, 4, %s' % (v(vT + 1), v(vLane)))
        A('v_lshlrev_b32 %s, 3, %s' % (v(vT + 2), v(vT + 1)))
        A('v_xor_b32 %s, %s, %s' % (v(vT + 2), v(vT + 2), v(vT)))
        A('v_and_b32 %s, 15, %s' % (v(vT + 2), v(vT + 2)))
        onehot(A, vSg, vT + 2, vT + 3)
        A('v_lshlrev_b32 %s, 4, %s' % (v(vZo), v(vT + 1)))
        A('v_lshl_add_u32 %s, %s, 6, %s' % (v(vZo), v(vT), v(vZo)))
        A('v_mov_b32 %s, 0x%x' % (v(vT + 3), OOB))
        A('v_cmp_gt_u32 vcc, 8, %s' % v(vT))
        A('v_cndmask_b32 %s, %s, %s, vcc' % (v(vZo), v(vT + 3), v(vZo)))
        A('v_lshrrev_b32 %s, 1, %s' % (v(vT + 2), v(vT + 1)))
        A('v_mul_u32_u24 %s, 272, %s' % (v(vT + 2), v(vT + 2)))
        A('v_and_b32 %s, 1, %s' % (v(vT + 1), v(vT + 1)))
        A('v_lshl_add_u32 %s, %s, 3, %s' % (v(vT + 2), v(vT + 1), v(vT + 2)))
        A('s_lshr_b32 %s, %s, 1' % (s(sT0), s(sJ)))
        A('s_mul_i32 %s, %s, %d' % (s(sT0), s(sT0), 2 * KVH))
        A('s_and_b32 %s, %s, 1' % (s(sT1), s(sJ)))
        A('s_mul_i32 %s, %s, 544' % (s(sT1), s(sT1)))
        A('s_add_u32 %s, %s, %s' % (s(sT0), s(sT0), s(sT1)))
        A('s_add_u32 %s, %s, %d' % (s(sT0), s(sT0), KVL))
        A('v_add_u32 %s, %s, %s' % (v(vKw + 1), s(sT0), v(vT + 2)))
        A('v_lshl_add_u32 %s, %s, 4, %s' % (v(vKw), v(vT), v(vKw + 1)))
        for h in range(2):
            A('s_waitcnt vmcnt(0)')
            poll(A, 'LK%d' % h, kfl[h], vFw + 2, '0xffff')
            A.vm = []
            for i in range(9):
                if i % 4 == 0:
                    A('s_add_u32 %s, %s, %d' % (s(sT1), s(sKp), 4 * KVS * h + 1024 * i))
                A('buffer_load_dwordx4 %s, %s, %s, %s offen offset:%d sc1' % (v(vK + 4 * i, 4), v(vL16 if i < 8 else vZo), s(SWS, 4), s(sT1), 1024 * (i & 3)), tag='k%d' % i)
            if h == 0:
                A(kfl[1])
            for i in range(9):
                A.wait_vm('k%d' % i)
                d = vD if i < 8 else vD + 4
                A('v_mfma_f32_16x16x32_bf16 %s, %s, %s, %s' % (v(d, 4), v(vSg, 4), v(vK + 4 * i, 4), '0' if i in (0, 8) else v(d, 4)))
            A('v_cvt_pk_bf16_f32 %s, %s, %s' % (v(vD), v(vD), v(vD + 1)))
            A('v_cvt_pk_bf16_f32 %s, %s, %s' % (v(vD + 1), v(vD + 2), v(vD + 3)))
            A('ds_write_b64 %s, %s offset:%d' % (v(vKw), v(vD, 2), KVH * h))
            for ctl in ('quad_perm:[1,0,3,2]', 'quad_perm:[2,3,0,1]', 'row_half_mirror', 'row_mirror'):
                for r in range(4):
                    A('v_add_f32_dpp %s, %s, %s %s row_mask:0xf bank_mask:0xf' % (v(vD + 4 + r), v(vD + 4 + r), v(vD + 4 + r), ctl))
            A('v_cvt_pk_bf16_f32 %s, %s, %s' % (v(vD + 4), v(vD + 4), v(vD + 5)))
            A('v_cvt_pk_bf16_f32 %s, %s, %s' % (v(vD + 5), v(vD + 6), v(vD + 7)))
            A('ds_write_b64 %s, %s offset:%d' % (v(vKw + 1), v(vD + 4, 2), KVH * h + 256))
            A('ds_write_b32 %s, %s offset:%d' % (v(vFw), v(vFw + 1), FL_KV - FL_P3 + 16 * h))
    A.label('L_NOKV')
    stamp(A, 5)
    A(fload, tag='fl')
    for i in range(11):
        A.wait_vm('a%d' % i)
        if i >= 7:
            A.wait_lg('b%d' % i)
        wb = vW + 16 * (i % 7)
        rb_ = vR + 16 * (i % 3)
        for c in range(2):
            for nt in range(2):
                for rt in range(2):
                    acc = vAcc + 16 * (2 * nt + rt)
                    A('v_mfma_f32_32x32x16_bf16 %s, %s, %s, %s' % (v(acc, 16), v(wb + 8 * c + 4 * nt, 4), v(rb_ + 8 * c + 4 * rt, 4), '0' if (i == 0 and c == 0) else v(acc, 16)))
        if i + 3 < 11:
            gate(i + 3)
            aload(i + 3)
            if i + 3 == 6:
                A(fload, tag='fl')
        if i < 4:
            emit(A, wread(i, UP[7 + i], 'b%d' % (i + 7)))
        if i == 8:
            xres(A, 240, 244)
    stamp(A, 6)
    A('s_lshl_b32 %s, %s, 1' % (s(sT0), s(sM)))
    A('s_add_u32 %s, %s, %d' % (s(sT0), s(sT0), 32768))
    wr = reduce_write(A, vAcc, 64, sT0)
    A('s_mov_b32 %s, 0x%x' % (s(sO[0]), LN2))
    A('s_mov_b32 %s, 0x%x' % (s(sO[1]), LN2))
    for n, w in enumerate(wr):
        r = vAcc + 4 * n
        A('v_pk_mul_f32 %s, %s, %s' % (v(r, 2), v(r, 2), s(sO[0], 2)))
        A('v_pk_mul_f32 %s, %s, %s' % (v(r + 2, 2), v(r + 2, 2), s(sO[0], 2)))
        A(w)
    A.branch('s_branch F_START')

def gen_compute(A):
    A.label('C_START')
    A.vm = []; A.lg = []
    vX = 0
    def ACC(u, r): return 128 + 32 * u + 16 * r
    vWf, vXf = 192, 216
    vXo, vXt = 228, 232
    vSel0, vSel1 = 236, 240
    vWa, vTa, vTb, vTr, vPa, vFo, vWm, vNon = 244, 245, 246, 247, 248, 249, 250, 252
    vR = [232, 234]
    vT = 0
    sCh, sRg, sP2 = sA, sB, sM
    sL2, sHO = 52, 54
    A('s_and_b32 %s, %s, 1' % (s(sCh), s(sJ)))
    A('s_lshr_b32 %s, %s, 1' % (s(sRg), s(sJ)))
    A('s_lshl_b32 %s, %s, 1' % (s(sP2), s(sRb)))
    A('s_add_u32 %s, %s, %s' % (s(sP2), s(sP2), s(sRg)))
    A('s_mov_b32 %s, 0x%x' % (s(sL2), LOG2E))
    A('s_mov_b32 %s, 0x%x' % (s(sL2 + 1), LOG2E))
    A('s_mov_b32 %s, 0.5' % s(sHO))
    A('s_mov_b32 %s, 1.0' % s(sHO + 1))
    A('v_mov_b32 %s, 0x%x' % (v(vT), OOB))
    A('v_cmp_eq_u32 vcc, 0, %s' % v(vLane))
    A('v_cndmask_b32 %s, %s, 0, vcc' % (v(vFo), v(vT)))
    tr_addr(A, vWa, vT, 8, s(sCh))
    A('v_add_u32 %s, %d, %s' % (v(vWa), L_W, v(vWa)))
    A('v_lshrrev_b32 %s, 5, %s' % (v(vT), v(vLane)))
    A('v_and_b32 %s, 31, %s' % (v(vT + 1), v(vLane)))
    A('v_bfe_u32 %s, %s, 1, 3' % (v(vT + 2), v(vLane)))
    A('v_xor_b32 %s, %s, %s' % (v(vT + 2), v(vT + 2), v(vT)))
    A('v_lshlrev_b32 %s, 4, %s' % (v(vT + 2), v(vT + 2)))
    A('v_lshl_add_u32 %s, %s, 7, %s' % (v(vT + 2), v(vT + 1), v(vT + 2)))
    A('s_lshl_b32 %s, %s, 12' % (s(sT0), s(sJ)))
    A('v_add_u32 %s, %s, %s' % (v(vXo), s(sT0), v(vT + 2)))
    for tt in range(1, 4):
        A('v_xor_b32 %s, %d, %s' % (v(vXo + tt), 32 * tt, v(vXo)))
    for tt in range(4):
        A('v_xor_b32 %s, 0x1000, %s' % (v(vXt + tt), v(vXo + tt)))
    A('v_lshlrev_b32 %s, 3, %s' % (v(vT + 2), v(vT + 1)))
    A('v_lshl_add_u32 %s, %s, 2, %s' % (v(vT + 2), v(vT), v(vT + 2)))
    A('v_add_u32 %s, %d, %s' % (v(vTa), TA, v(vT + 2)))
    A('s_lshl_b32 %s, %s, 8' % (s(sT0), s(sJ)))
    A('s_add_u32 %s, %s, %d' % (s(sT0), s(sT0), TB))
    A('v_add_u32 %s, %s, %s' % (v(vTb), s(sT0), v(vT + 2)))
    A('s_lshl_b32 %s, %s, 7' % (s(sT0), s(sJ)))
    A('s_add_u32 %s, %s, %d' % (s(sT0), s(sT0), TR))
    A('v_lshl_add_u32 %s, %s, 2, %s' % (v(vTr), v(vT + 1), s(sT0)))
    A('v_bfe_u32 %s, %s, 2, 2' % (v(vT + 2), v(vLane)))
    A('v_lshl_add_u32 %s, %s, 2, %s' % (v(vT + 2), v(vT), v(vT + 2)))
    A('v_bfe_u32 %s, %s, 4, 1' % (v(vT + 3), v(vLane)))
    A('v_bfe_u32 %s, %s, 1, 1' % (v(vT + 4), v(vLane)))
    A('v_lshl_add_u32 %s, %s, 1, %s' % (v(vT + 4), v(vT + 3), v(vT + 4)))
    A('v_lshlrev_b32 %s, 3, %s' % (v(vT + 4), v(vT + 4)))
    A('v_lshl_add_u32 %s, %s, 5, %s' % (v(vPa), v(vT + 2), v(vT + 4)))
    A('s_and_b32 %s, %s, %s' % (s(sT0), s(sCh), s(sTyp)))
    A('s_lshl_b32 %s, %s, 10' % (s(sT0), s(sT0)))
    A('s_add_u32 %s, %s, %d' % (s(sT0), s(sT0), TPH))
    A('v_add_u32 %s, %s, %s' % (v(vPa), s(sT0), v(vPa)))
    A('v_lshrrev_b32 %s, 3, %s' % (v(vT + 2), v(vT + 1)))
    A('v_and_b32 %s, 3, %s' % (v(vT + 3), v(vLane)))
    A('v_lshl_add_u32 %s, %s, 2, %s' % (v(vT + 2), v(vT + 2), v(vT + 3)))
    A('s_lshl_b32 %s, %s, 3' % (s(sT0), s(sRg)))
    A('v_xor_b32 %s, %s, %s' % (v(vT + 2), s(sT0), v(vT + 2)))
    A('v_bfe_u32 %s, %s, 2, 1' % (v(vT + 3), v(vLane)))
    A('v_xor_b32 %s, %s, %s' % (v(vT + 3), v(vT + 3), v(vT)))
    A('v_lshl_add_u32 %s, %s, 5, %s' % (v(vT + 2), v(vT + 3), v(vT + 2)))
    onehot(A, vSel0, vT + 2, vT + 4, 0)
    onehot(A, vSel1, vT + 2, vT + 4, 8)
    if OPT['warm']:
        A('v_lshrrev_b32 %s, 2, %s' % (v(vT + 2), v(vT + 1)))
        A('v_and_b32 %s, 3, %s' % (v(vT + 3), v(vLane)))
        A('v_lshlrev_b32 %s, 2, %s' % (v(vT + 3), v(vT + 3)))
        A('v_lshl_add_u32 %s, %s, 7, %s' % (v(vT + 2), v(vT + 2), v(vT + 3)))
        A('v_lshl_add_u32 %s, %s, 15, %s' % (v(vT + 2), v(vT), v(vT + 2)))
        A('s_lshr_b32 %s, s2, 3' % s(sT0))
        A('s_lshl_b32 %s, %s, 10' % (s(sT0), s(sT0)))
        A('v_add_u32 %s, %s, %s' % (v(vWm), s(sT0), v(vT + 2)))
        A('s_lshl_b32 %s, %s, 18' % (s(sO[3]), s(sJ)))
        A('s_mul_i32 %s, %s, %d' % (s(sO[4]), s(sJ), 3 * 32768))
        A('s_lshl_b32 %s, %s, 17' % (s(sO[5]), s(sJ)))
    A('s_mul_i32 %s, %s, 768' % (s(sO[2]), s(sCh)))
    A('s_waitcnt lgkmcnt(0)')
    srd(A, SWS, 36, WS_SIZE)
    srd(A, SX, 16, 2048 * 1024)
    srd(A, SW2, 30, 1376 * 1024)
    srd(A, SWO, 22, 512 * 1024)
    stamp(A, 0)
    if OPT['prio']:
        A('s_setprio %d' % OPT['prio'])
    A('s_cmp_eq_u32 %s, 1' % s(sTyp))
    A.branch('s_cbranch_scc1 CX_START')

    def mfma(d, a_, b_, c):
        return 'v_mfma_f32_32x32x16_bf16 %s, %s, %s, %s' % (v(d, 16), v(a_, 4), v(b_, 4), v(d, 16) if c else '0')
    def frags(t):
        if t >= 32:
            return []
        st, k = divmod(t, 4)
        sl = st & 3
        tg = 'f%d' % t
        def wf(u):
            return [('ds_read_b64_tr_b16 %s, %s offset:%d' % (v(vWf + 8 * (t % 3) + 4 * u + 2 * hh, 2), v(vWa), 16384 * sl + 8192 * u + 2048 * k + 512 * hh), tg) for hh in range(2)]
        xf = [('ds_read_b128 %s, %s offset:%d' % (v(vX + 4 * t, 4), v(vXo + k), 16384 * sl), tg),
              ('ds_read_b128 %s, %s offset:%d' % (v(vXf + 4 * (t % 3), 4), v(vXt + k), 16384 * sl), tg)]
        return wf(0) + xf + wf(1)
    def softmax(D, P, M, rs=None):
        L = []
        L.append('v_max3_f32 %s, %s, %s, %s' % (v(M), v(D), v(D + 1), v(D + 2)))
        L.append('v_max3_f32 %s, %s, %s, %s' % (v(M + 1), v(D + 3), v(D + 4), v(D + 5)))
        L.append('v_max3_f32 %s, %s, %s, %s' % (v(M + 2), v(D + 6), v(D + 7), v(D + 8)))
        L.append('v_max3_f32 %s, %s, %s, %s' % (v(M + 3), v(D + 9), v(D + 10), v(D + 11)))
        L.append('v_max3_f32 %s, %s, %s, %s' % (v(M), v(M), v(D + 12), v(D + 13)))
        L.append('v_max3_f32 %s, %s, %s, %s' % (v(M + 1), v(M + 1), v(D + 14), v(D + 15)))
        L.append('v_max3_f32 %s, %s, %s, %s' % (v(M), v(M), v(M + 1), v(M + 2)))
        L.append('v_max_f32 %s, %s, %s' % (v(M), v(M), v(M + 3)))
        L.append('v_mul_f32 %s, 0x%x, %s' % (v(M), LOG2E | 0x80000000, v(M)))
        for i in range(8):
            L.append('v_pk_fma_f32 %s, %s, %s, %s op_sel_hi:[1,1,0]' % (v(D + 2 * i, 2), v(D + 2 * i, 2), s(sL2, 2), v(M, 2)))
        for i in range(16):
            L.append('v_exp_f32 %s, %s' % (v(D + i), v(D + i)))
        L.append('v_pk_add_f32 %s, %s, %s' % (v(M, 2), v(D, 2), v(D + 2, 2)))
        L.append('v_pk_add_f32 %s, %s, %s' % (v(M + 2, 2), v(D + 4, 2), v(D + 6, 2)))
        L.append('v_pk_add_f32 %s, %s, %s' % (v(M, 2), v(M, 2), v(D + 8, 2)))
        L.append('v_pk_add_f32 %s, %s, %s' % (v(M + 2, 2), v(M + 2, 2), v(D + 10, 2)))
        L.append('v_pk_add_f32 %s, %s, %s' % (v(M, 2), v(M, 2), v(D + 12, 2)))
        L.append('v_pk_add_f32 %s, %s, %s' % (v(M + 2, 2), v(M + 2, 2), v(D + 14, 2)))
        L.append('v_pk_add_f32 %s, %s, %s' % (v(M, 2), v(M, 2), v(M + 2, 2)))
        L.append('v_add_f32 %s, %s, %s' % (v(M), v(M), v(M + 1)))
        L.append('v_rcp_f32 %s, %s' % (v(M), v(M)))
        if rs is not None:
            L.append('v_mul_f32 %s, %s, %s' % (v(M), v(M), v(rs)))
        for i in range(8):
            L.append('v_pk_mul_f32 %s, %s, %s op_sel_hi:[1,0]' % (v(D + 2 * i, 2), v(D + 2 * i, 2), v(M, 2)))
        for i in range(8):
            L.append('v_cvt_pk_bf16_f32 %s, %s, %s' % (v(P + i), v(D + 2 * i), v(D + 2 * i + 1)))
        return L
    def pack(acc, P):
        for i in range(8):
            A('v_cvt_pk_bf16_f32 %s, %s, %s' % (v(P + i), v(acc + 2 * i), v(acc + 2 * i + 1)))
    def scale_pack(acc, P, r):
        for i in range(8):
            A('v_pk_mul_f32 %s, %s, %s op_sel_hi:[1,0]' % (v(acc + 2 * i, 2), v(acc + 2 * i, 2), v(vR[r], 2)))
        pack(acc, P)
    def mish(acc, r, E, V, so, tag):
        mv = OPT['mv']
        for i in range(8):
            if mv & 1:
                A('v_mul_f32 %s, %s, %s' % (v(acc + 2 * i), v(acc + 2 * i), v(vR[r])))
                A('v_mul_f32 %s, %s, %s' % (v(acc + 2 * i + 1), v(acc + 2 * i + 1), v(vR[r])))
            else:
                A('v_pk_mul_f32 %s, %s, %s op_sel_hi:[1,0]' % (v(acc + 2 * i, 2), v(acc + 2 * i, 2), v(vR[r], 2)))
        for i in range(16):
            A('v_exp_f32 %s, %s' % (v(E + i), v(acc + i)))
        for i in range(8):
            if mv & 2:
                A('v_fma_f32 %s, %s, 0.5, 1.0' % (v(V + 2 * i), v(E + 2 * i)))
                A('v_fma_f32 %s, %s, 0.5, 1.0' % (v(V + 2 * i + 1), v(E + 2 * i + 1)))
            else:
                A('v_pk_fma_f32 %s, %s, %s, %s op_sel:[0,0,1] op_sel_hi:[1,0,1]' % (v(V + 2 * i, 2), v(E + 2 * i, 2), s(sHO, 2), s(sHO, 2)))
        for i in range(8):
            if mv & 4:
                A('v_fma_f32 %s, %s, %s, 1.0' % (v(V + 2 * i), v(E + 2 * i), v(V + 2 * i)))
                A('v_fma_f32 %s, %s, %s, 1.0' % (v(V + 2 * i + 1), v(E + 2 * i + 1), v(V + 2 * i + 1)))
            else:
                A('v_pk_fma_f32 %s, %s, %s, %s op_sel:[0,0,1] op_sel_hi:[1,1,1]' % (v(V + 2 * i, 2), v(E + 2 * i, 2), v(V + 2 * i, 2), s(sHO, 2)))
        for i in range(16):
            A('v_rcp_f32 %s, %s' % (v(V + i), v(V + i)))
        for i in range(8):
            if mv & 8:
                A('v_fma_f32 %s, -%s, %s, %s' % (v(acc + 2 * i), v(acc + 2 * i), v(V + 2 * i), v(acc + 2 * i)))
                A('v_fma_f32 %s, -%s, %s, %s' % (v(acc + 2 * i + 1), v(acc + 2 * i + 1), v(V + 2 * i + 1), v(acc + 2 * i + 1)))
            else:
                A('v_pk_fma_f32 %s, %s, %s, %s neg_lo:[1,0,0] neg_hi:[1,0,0]' % (v(acc + 2 * i, 2), v(acc + 2 * i, 2), v(V + 2 * i, 2), v(acc + 2 * i, 2)))
        pack(acc, acc)
        A('buffer_store_dwordx4 %s, %s, %s, %s offen sc1' % (v(acc, 4), v(vL16), s(SWS, 4), s(so)), tag=tag)
        A('buffer_store_dwordx4 %s, %s, %s, %s offen offset:2048 sc1' % (v(acc + 4, 4), v(vL16), s(SWS, 4), s(so)), tag=tag)
    def flag(tag, so, off=0, vo=vFo):
        A.wait_vm(tag)
        A('buffer_store_dword %s, %s, %s, %s offen offset:%d sc1' % (v(vNon), v(vo), s(SWS, 4), s(so), off))
    def sign_flip(ph, n, t):
        A('v_bfe_u32 %s, %s, 2, 1' % (v(t), v(vLane)))
        A('v_mul_u32_u24 %s, 0x8000, %s' % (v(t), v(t)))
        A('v_lshl_or_b32 %s, %s, 16, %s' % (v(t), v(t), v(t)))
        A.wait_lg('ph')
        for i in range(n):
            A('v_xor_b32 %s, %s, %s' % (v(ph + i), v(t), v(ph + i)))

    def pass_b(X, hooks):
        vBa = 216
        vAp, vBp = 0, 8
        if OPT['prio']:
            A('s_setprio %d' % OPT['prio'])
        A('s_lshl_b32 %s, %s, 6' % (s(sT0), s(sCh)))
        A('v_xor_b32 %s, %s, %s' % (v(vBa), s(sT0), v(vWa)))
        A('v_add_u32 %s, %d, %s' % (v(vBa), L_E - L_W, v(vBa)))
        A('v_xor_b32 %s, 64, %s' % (v(vBa + 1), v(vBa)))
        A('v_mov_b32 %s, %d' % (v(vBa + 2), FL_P3))
        lds_wait(A, 'CP3%d' % X, v(vBa + 2), 4, 1, 220)
        win = [L_E]
        def fr(t):
            if t >= 32:
                return []
            st, k = divmod(t, 4)
            L = []
            w = P3B[st] & ~0xffff
            if w != win[0]:
                for uu in range(2):
                    L.append('v_add_u32 %s, %d, %s' % (v(vBa + uu), w - win[0], v(vBa + uu)))
                win[0] = w
            for uu in range(2):
                for hh in range(2):
                    L.append(('ds_read_b64_tr_b16 %s, %s offset:%d' % (v(vWf + 8 * (t % 3) + 4 * uu + 2 * hh, 2), v(vBa + uu), P3B[st] - w + 2048 * k + 512 * hh), 'g%d' % t))
            return L
        emit(A, fr(0))
        emit(A, fr(1))
        for t in range(32):
            nxt = fr(t + 2)
            if t == 28:
                nxt += ['v_mov_b32 %s, 0' % v(vAp + i) for i in range(12) if i & 3]
            if t == 30:
                nxt = [('ds_read_b32 %s, %s offset:%d' % (v(vAp + 4 * uu), v(vTa), 768 * uu + 512), 'tb') for uu in range(2)]
                nxt += [('ds_read_b32 %s, %s' % (v(vBp), v(vTb)), 'tb')]
            if t == 31 and not X:
                nxt = [('ds_read_b64_tr_b16 %s, %s offset:%d' % (v(16 + 4 * h + 2 * hh, 2), v(vPa), 512 * h + 256 * hh), 'ph') for h in range(4) for hh in range(2)]
            A.wait_lg('g%d' % t)
            hf = (len(nxt) + 1) // 2
            for uu in range(2):
                A(mfma(ACC(0, uu), vWf + 8 * (t % 3) + 4 * uu, vX + 4 * t, t > 0))
                emit(A, nxt[:hf] if uu == 0 else nxt[hf:])
            if t in hooks:
                hooks[t]()
        A('s_lshl_b32 %s, %s, 2' % (s(sT0), s(sJ)))
        A('s_add_u32 %s, %s, %d' % (s(sT0), s(sT0), FL_PB))
        A('v_mov_b32 %s, %s' % (v(vBa), s(sT0)))
        A('v_mov_b32 %s, 2' % v(vBa + 1))
        A.wait_lg('tb')
        A('ds_write_b32 %s, %s' % (v(vBa), v(vBa + 1)))
        for uu in range(2):
            A(mfma(ACC(0, uu), vAp + 4 * uu, vBp, True))
        if OPT['prio']:
            A('s_setprio 0')
        stamp(A, 4)

    def wo_dma(X):
        t = 216
        A('v_mov_b32 %s, %d' % (v(t + 8), FL_P3))
        w2_voff(A, t + 9, t)
        lds_wait(A, 'CWA%d' % X, v(t + 8), 4, 2, t)
        lds_wait(A, 'CWB%d' % X, v(t + 8) + ' offset:%d' % (FL_PB - FL_P3), 4, 2, t)
        for p in range(4):
            A('s_lshl_b32 %s, %s, 17' % (s(sO[0]), s(sJ)))
            if p:
                A('s_add_u32 %s, %s, %d' % (s(sO[0]), s(sO[0]), p * 32768))
            emit(A, quad((t + 9, t + 9), SWO, 16384 * (p & 1) + 65536 * (p >> 1), 'wo'))

    vAp, vBp, vPh = [208, 212], [224, 228], 192
    for X in (0, 1):
        A.vm = []; A.lg = []
        if X:
            A.label('CX_START')
        A('s_barrier')
        stamp(A, 1)
        emit(A, frags(0))
        emit(A, frags(1))
        for t in range(32):
            st, k = divmod(t, 4)
            nxt = frags(t + 2)
            if t == 30:
                A('v_add_u32 %s, %s, %s' % (v(vAp[0]), s(sO[2]), v(vTa)))
                A('v_xor_b32 %s, 256, %s' % (v(vBp[1]), v(vTb)))
                A('v_xor_b32 %s, 128, %s' % (v(vR[1]), v(vTr)))
                A('v_mov_b32 %s, %d' % (v(vNon), TN))
                nxt = [('ds_read_b32 %s, %s offset:256' % (v(vAp[1]), v(vAp[0])), 'tb'),
                       ('ds_read_b32 %s, %s' % (v(vAp[0]), v(vAp[0])), 'tb'),
                       ('ds_read_b32 %s, %s' % (v(vBp[0]), v(vTb)), 'tb'),
                       ('ds_read_b32 %s, %s' % (v(vBp[1]), v(vBp[1])), 'tb'),
                       ('ds_read_b32 %s, %s' % (v(vR[0]), v(vTr)), 'tb'),
                       ('ds_read_b32 %s, %s' % (v(vR[1]), v(vR[1])), 'tb'),
                       ('ds_read_b32 %s, %s' % (v(vNon), v(vNon)), 'tb')]
            if t == 31:
                nxt = ['v_mov_b32 %s, 0' % v(b + i) for b in vAp + vBp for i in range(1, 4)]
                if X:
                    nxt = [('ds_read_b64_tr_b16 %s, %s offset:%d' % (v(vPh + 4 * h + 2 * hh, 2), v(vPa), 512 * h + 256 * hh), 'ph') for h in range(2) for hh in range(2)] + nxt
            A.wait_lg('f%d' % t)
            per = (len(nxt) + 2) // 3
            n = 0
            for u in range(2):
                for r in range(2):
                    w_, x_ = vWf + 8 * (t % 3) + 4 * u, (vX + 4 * t if r == 0 else vXf + 4 * (t % 3))
                    if X and u == 1:
                        w_, x_ = x_, w_
                    A(mfma(ACC(u, r), w_, x_, t > 0))
                    if k == 2 and n == 0:
                        A.wait_lg(None)
                        if st in (4, 5, 6, 7):
                            stamp(A, {4: 1, 5: 2, 6: 8, 7: 4}[st], 3)
                        A('s_barrier')
                        if st == 3:
                            stamp(A, 2)
                    if n == 3 and OPT['warm'] and t >= OPT['wt0'] and (t - OPT['wt0']) % OPT['wd'] == 0 and (t - OPT['wt0']) // OPT['wd'] < 8:
                        base, c_, sr = [(3, 0, SW2), (3, 4, SW2), (3, 2, SW2), (3, 6, SW2), (4, 34, SW2), (4, 32, SW2), (5, 0, SWO), (5, 2, SWO)][(t - OPT['wt0']) // OPT['wd']]
                        A('s_add_u32 %s, %s, %d' % (s(sT0), s(sO[base]), c_ * 32768))
                        A('buffer_load_dword %s, %s, %s, %s offen' % (v(vWm + 1), v(vWm), s(sr, 4), s(sT0)), tag='wm')
                    emit(A, nxt[per * n:per * n + per])
                    n += 1
        stamp(A, 3)
        if OPT['prio']:
            A('s_setprio 0')
        A.wait_lg('tb')
        for u in range(2):
            for r in range(2):
                p_, q_ = vAp[u], vBp[r]
                if X and u == 1:
                    p_, q_ = q_, p_
                A(mfma(ACC(u, r), p_, q_, True))
        if not X:
            A('v_mov_b32 %s, %s' % (v(vR[0] + 1), v(vR[0])))
            for r in range(2):
                A('v_mul_f32 %s, 0x%x, %s' % (v(vR[r]), LOG2E, v(vR[r])))
        A('v_readfirstlane_b32 %s, %s' % (s(sNonce), v(vNon)))
        sOut, sFl = sO[4], sO[5]
        A('s_lshl_b32 %s, %s, 10' % (s(sFl), s(sP2)))
        A('s_add_u32 %s, %s, 0x%x' % (s(sFl), s(sFl), WS_F))
        A('s_mul_i32 %s, %s, %d' % (s(sOut), s(sP2), NU * 4096))
        A('s_lshl_b32 %s, %s, 10' % (s(sT0), s(sCh)))
        A('s_add_u32 %s, %s, %s' % (s(sOut), s(sOut), s(sT0)))
        if not X:
            A('s_lshl_b32 %s, %s, 2' % (s(sT0), s(sG)))
            A('s_add_u32 %s, %s, %s' % (s(sT0), s(sT0), s(sCh)))
            A('s_lshl_b32 %s, %s, 12' % (s(sT0), s(sT0)))
            A('s_add_u32 %s, %s, %s' % (s(sO[0]), s(sOut), s(sT0)))
            A('s_xor_b32 %s, %s, 1024' % (s(sO[1]), s(sO[0])))
            A('s_add_u32 %s, %s, 8192' % (s(sO[2]), s(sO[0])))
            A('s_add_u32 %s, %s, 8192' % (s(sO[3]), s(sO[1])))
            sF2 = sT3
            for dst, g_ in ((sF2, sG), (sFl, sGq)):
                A('s_lshr_b32 %s, %s, 1' % (s(sT0), s(g_)))
                A('s_lshl_b32 %s, %s, 5' % (s(sT0), s(sT0)))
                A('s_and_b32 %s, %s, 1' % (s(sT1), s(g_)))
                A('s_lshl_b32 %s, %s, 1' % (s(sT1), s(sT1)))
                A('s_add_u32 %s, %s, %s' % (s(sT0), s(sT0), s(sT1)))
                A('s_add_u32 %s, %s, %s' % (s(sT0), s(sT0), s(sCh)))
                A('s_lshl_b32 %s, %s, 2' % (s(sT0), s(sT0)))
                A('s_add_u32 %s, %s, %s' % (s(dst), s(sFl), s(sT0)))
            A('s_lshl_b32 %s, %s, 13' % (s(sT0), s(sGq)))
            A('s_add_u32 %s, %s, %s' % (s(sOut), s(sOut), s(sT0)))
            A('s_add_u32 %s, %s, %d' % (s(sOut), s(sOut), 44 * 4096))
            E, V = 192, 208
            mish(ACC(0, 0), 0, E, V, sO[0], 'h1')
            mish(ACC(0, 1), 1, E, V, sO[1], 'h1')
            mish(ACC(1, 0), 0, E, V, sO[2], 'h2')
            stamp(A, 1, 1)
            flag('h1', sF2)
            stamp(A, 2, 1)
            mish(ACC(1, 1), 1, E, V, sO[3], 'h2')
            A('v_mov_b32 %s, %s' % (v(vR[0]), v(vR[0] + 1)))
            stamp(A, 8)
            pass_b(0, {OPT['f2']: lambda: flag('h2', sF2, 16)})
            ph, D, P, M = 16, [32, 48, 64, 80], [96, 104, 112, 120], 12
            sign_flip(ph, 16, M)
            for uu in range(2):
                scale_pack(ACC(0, uu), ACC(0, uu), 0)
                for h in range(2):
                    A(mfma(D[2 * uu + h], ph + 8 * uu + 4 * h, ACC(0, uu) + 4 * h, False))
            for n in (0, 2, 1, 3):
                emit(A, softmax(D[n], P[n], M))
            stamp(A, 1, 2)
            wo_dma(0)
            stamp(A, 2, 2)
            vKa, KF = 216, 160
            A('v_and_b32 %s, 31, %s' % (v(vKa), v(vLane)))
            A('v_min_u32 %s, 16, %s' % (v(vKa), v(vKa)))
            A('v_lshrrev_b32 %s, 5, %s' % (v(vKa + 1), v(vLane)))
            A('v_mul_u32_u24 %s, 17, %s' % (v(vKa + 1), v(vKa + 1)))
            A('v_add_lshl_u32 %s, %s, %s, 4' % (v(vKa), v(vKa), v(vKa + 1)))
            A('v_add_u32 %s, %d, %s' % (v(vKa), KVL, v(vKa)))
            A('v_mov_b32 %s, %d' % (v(vKa + 1), FL_KV))
            A('s_add_u32 %s, %s, 4096' % (s(sO[0]), s(sOut)))
            for h in range(2):
                rd = ['ds_read_b128 %s, %s offset:%d' % (v(KF + 16 * h + 8 * uu + 4 * c, 4), v(vKa), KVH * (2 * uu + h) + 544 * c) for uu in range(2) for c in range(2)]
                lds_wait(A, 'CKV%d' % h, v(vKa + 1) + ' offset:%d' % (16 * h), 4, 1, 220, rd)
                if h:
                    stamp(A, 8, 2)
                for c in range(2):
                    for uu in range(2):
                        A(mfma(D[2 * uu + h], KF + 16 * h + 8 * uu + 4 * c, P[2 * uu + h] + 4 * c, c > 0))
                for uu in range(2):
                    d = D[2 * uu + h]
                    A('v_add_f32 %s, 0x358637bd, %s' % (v(d + 8), v(d + 8)))
                    A('v_rcp_f32 %s, %s' % (v(d + 8), v(d + 8)))
                    for i in range(4):
                        A('v_pk_mul_f32 %s, %s, %s op_sel_hi:[1,0]' % (v(d + 2 * i, 2), v(d + 2 * i, 2), v(d + 8, 2)))
                    for i in range(4):
                        A('v_cvt_pk_bf16_f32 %s, %s, %s' % (v(d + i), v(d + 2 * i), v(d + 2 * i + 1)))
                    A('buffer_store_dwordx4 %s, %s, %s, %s offen offset:%d sc1' % (v(d, 4), v(vL16), s(SWS, 4), s(sO[0] if uu else sOut), 2048 * h), tag='o')
            stamp(A, 4, 2)
            flag('o', sFl, 512)
            A.branch('s_branch C_P2')
        else:
            Kp, Vp, D = [128, 136], [160, 168], [144, 176]
            KV, P, M = 200, 216, 224
            VH = [128, 136]
            vEw, vPo, vSa = [228, 229], [230, 231], 250
            vEf = 248
            sKp, sKf = sO[0], sO[1]
            sign_flip(vPh, 8, 253)
            scale_pack(ACC(0, 0), Kp[0], 0)
            scale_pack(ACC(0, 1), Kp[1], 1)
            A(mfma(D[0], vPh, Kp[0], False))
            pack(ACC(1, 0), Vp[0])
            pack(ACC(1, 1), Vp[1])
            A(mfma(D[1], vPh, Kp[1], False))
            t = M
            A('v_lshrrev_b32 %s, 5, %s' % (v(t), v(vLane)))
            A('v_and_b32 %s, 15, %s' % (v(t + 1), v(vLane)))
            A('s_lshl_b32 %s, %s, 6' % (s(sT0), s(sJ)))
            A('s_add_u32 %s, %s, %d' % (s(sT0), s(sT0), TS))
            A('v_lshl_add_u32 %s, %s, 3, %s' % (v(vSa), v(t), s(sT0)))
            A('v_xor_b32 %s, 64, %s' % (v(253), v(vSa)))
            def sdread(n):
                for q in range(4):
                    A('ds_read_b64 %s, %s offset:%d' % (v(VH[q >> 1] + 2 * (q & 1), 2), v(253 if n & 1 else vSa), 16 * q), tag='sd')
            sdread(0)
            A('v_lshl_add_u32 %s, %s, 4, %s' % (v(t + 2), v(t), v(t + 1)))
            A('s_lshl_b32 %s, %s, 11' % (s(sT0), s(sJ)))
            A('s_add_u32 %s, %s, %d' % (s(sT0), s(sT0), KVL))
            A('v_lshl_add_u32 %s, %s, 5, %s' % (v(vEw[0]), v(t + 2), s(sT0)))
            A('s_lshl_b32 %s, %s, 12' % (s(sT0), s(sRg)))
            A('s_lshl_b32 %s, %s, 7' % (s(sT1), s(sCh)))
            A('s_add_u32 %s, %s, %s' % (s(sT0), s(sT0), s(sT1)))
            A('s_add_u32 %s, %s, %d' % (s(sT0), s(sT0), TZ))
            A('v_lshl_add_u32 %s, %s, 5, %s' % (v(t + 3), v(t), s(sT0)))
            A('s_lshl_b32 %s, %s, 9' % (s(sT0), s(sRb)))
            A('v_lshl_add_u32 %s, %s, 4, %s' % (v(vPo[0]), v(t + 2), s(sT0)))
            A('s_lshl_b32 %s, %s, 5' % (s(sT0), s(sRb)))
            A('s_add_u32 %s, %s, 8192' % (s(sT0), s(sT0)))
            A('v_lshl_add_u32 %s, %s, 4, %s' % (v(t), v(t), s(sT0)))
            A('v_mov_b32 %s, 0x%x' % (v(t + 2), OOB))
            A('v_cmp_eq_u32 vcc, 0, %s' % v(t + 1))
            A('v_cndmask_b32 %s, %s, %s, vcc' % (v(t), v(t + 2), v(t)))
            sH0 = SB
            A('v_and_b32 %s, 16, %s' % (v(t + 1), v(vLane)))
            A('v_cmp_eq_u32 %s, 0, %s' % (s(sH0, 2), v(t + 1)))
            A('v_cndmask_b32 %s, %s, %s, %s' % (v(vPo[1]), v(vPo[0]), v(t), s(sH0, 2)))
            A('v_cndmask_b32 %s, %s, %s, %s' % (v(vPo[0]), v(t), v(vPo[0]), s(sH0, 2)))
            A('v_add_u32 %s, 1024, %s' % (v(t), v(vEw[0])))
            A('v_add_u32 %s, 64, %s' % (v(t + 1), v(t + 3)))
            A('v_cndmask_b32 %s, %s, %s, %s' % (v(vEw[1]), v(t), v(t + 1), s(sH0, 2)))
            A('v_cndmask_b32 %s, %s, %s, %s' % (v(vEw[0]), v(t + 3), v(vEw[0]), s(sH0, 2)))
            A('s_lshl_b32 %s, %s, 3' % (s(sT0), s(sJ)))
            A('s_add_u32 %s, %s, %d' % (s(sT0), s(sT0), FL_EX))
            A('v_mov_b32 %s, %s' % (v(vEf), s(sT0)))
            A('s_lshl_b32 %s, %s, 2' % (s(sT0), s(sG)))
            A('s_add_u32 %s, %s, %s' % (s(sT0), s(sT0), s(sCh)))
            A('s_lshl_b32 %s, %s, 1' % (s(sT0), s(sT0)))
            A('s_add_u32 %s, %s, %s' % (s(sT0), s(sT0), s(sRg)))
            A('s_mul_i32 %s, %s, %d' % (s(sKp), s(sT0), KVS))
            A('s_add_u32 %s, %s, 0x%x' % (s(sKp), s(sKp), WS_KVP))
            A('s_add_u32 %s, %s, %d' % (s(sO[2]), s(sKp), 4 * KVS))
            A('s_lshl_b32 %s, %s, 5' % (s(sKf), s(sT0)))
            A('s_add_u32 %s, %s, %s' % (s(sKf), s(sKf), s(sRb)))
            A('s_lshl_b32 %s, %s, 2' % (s(sKf), s(sKf)))
            A('s_add_u32 %s, %s, 0x%x' % (s(sKf), s(sKf), WS_KF))
            def vh(n):
                r, h = n & 1, n >> 1
                A.wait_lg('sd')
                for i in range(8):
                    d = VH[i >> 2] + (i & 3)
                    if h == 0:
                        A('v_cndmask_b32 %s, %s, %s, %s' % (v(d), v(d), v(Vp[r] + i), s(sH0, 2)))
                    else:
                        A('v_cndmask_b32 %s, %s, %s, %s' % (v(d), v(Vp[r] + i), v(d), s(sH0, 2)))
            def finish(n):
                r, h = n & 1, n >> 1
                d = D[r]
                pack(d, d)
                for c in range(2):
                    A(mfma(KV, d + 4 * c, VH[c], not (r == 0 and c == 0)))
                if n < 2:
                    A(mfma(d, vPh + 4, Kp[r] + 4, False))
                if n < 3:
                    sdread(n + 1)
            def ex_send(h):
                A('ds_write_b128 %s, %s' % (v(vEw[h]), v(KV + 8, 4)))
                A('ds_write_b128 %s, %s offset:16' % (v(vEw[h]), v(KV + 12, 4)))
                A('ds_write_b32 %s, %s offset:%d' % (v(vEf), v(vEf), 4 * h))
                A('v_xor_b32 %s, 0x1000, %s' % (v(vEw[h]), v(vEw[h])))
            def ex_recv(h, t):
                A('v_xor_b32 %s, %d, %s' % (v(t + 1), FL_EX ^ (FL_EX + 16), v(vEf)))
                rd = ['ds_read_b128 %s, %s offset:%d' % (v(KV + 8 + 4 * q, 4), v(vEw[h]), 16 * q) for q in range(2)]
                lds_wait(A, 'CEX%d' % h, v(t + 1) + ' offset:%d' % (4 * h), 1, 1, t, rd)
                for i in range(4):
                    A('v_pk_add_f32 %s, %s, %s' % (v(KV + 2 * i, 2), v(KV + 2 * i, 2), v(KV + 8 + 2 * i, 2)))
                for i in range(4):
                    A('v_cvt_pk_bf16_f32 %s, %s, %s' % (v(KV + 8 + i), v(KV + 2 * i), v(KV + 2 * i + 1)))
                A('buffer_store_dwordx4 %s, %s, %s, %s offen sc1' % (v(KV + 8, 4), v(vPo[h]), s(SWS, 4), s(sO[2] if h else sKp)), tag='kp%d' % h)
            stamp(A, 1, 1)
            for n in range(4):
                r = n & 1
                sm = softmax(D[r], P, M, vR[r])
                emit(A, sm[:17])
                if n:
                    finish(n - 1)
                emit(A, sm[17:33])
                if n == 2:
                    ex_send(0)
                if n == 3:
                    flag('kp0', sKf)
                emit(A, sm[33:])
                A(mfma(D[r], P, vSel0, False))
                A(mfma(D[r], P + 4, vSel1, True))
                if n == 2:
                    ex_recv(0, M)
                    stamp(A, 2, 1)
                vh(n)
            finish(3)
            A('s_lshl_b32 %s, %s, 13' % (s(sT0), s(sG)))
            A('s_add_u32 %s, %s, %s' % (s(sOut), s(sOut), s(sT0)))
            A('s_add_u32 %s, %s, %d' % (s(sOut), s(sOut), 32 * 4096))
            A('s_add_u32 %s, %s, 4096' % (s(sO[3]), s(sOut)))
            vF2 = 253
            A('s_lshl_b32 %s, %s, 1' % (s(sT0), s(sG)))
            A('v_add_u32 %s, %s, %s' % (v(M), s(sT0), v(vLane)))
            A('v_mul_u32_u24 %s, 43, %s' % (v(M + 1), v(M)))
            A('v_lshrrev_b32 %s, 7, %s' % (v(M + 1), v(M + 1)))
            A('v_mul_u32_u24 %s, %d, %s' % (v(M + 1), 128 - 24, v(M + 1)))
            A('v_lshl_add_u32 %s, %s, 3, %s' % (v(M), v(M), v(M + 1)))
            A('v_mov_b32 %s, 0x%x' % (v(M + 1), OOB))
            A('v_cmp_gt_u32 vcc, 2, %s' % v(vLane))
            A('v_cndmask_b32 %s, %s, %s, vcc' % (v(vF2), v(M + 1), v(M)))
            A('s_lshl_b32 %s, %s, 2' % (s(sT0), s(sCh)))
            A('s_add_u32 %s, %s, %s' % (s(sFl), s(sFl), s(sT0)))
            ex_send(1)
            ex_recv(1, M)
            stamp(A, 8)
            A('s_cmp_ge_u32 %s, 6' % s(sG))
            A.branch('s_cbranch_scc1 CX_NOH')
            vm1 = list(A.vm)
            A('v_mul_f32 %s, 0x%x, %s' % (v(vR[0]), LOG2E, v(vR[0])))
            pass_b(1, {OPT['f2']: lambda: flag('kp1', sKf, 512)})
            mish(ACC(0, 0), 0, 16, 32, sOut, 'h')
            mish(ACC(0, 1), 0, 16, 32, sO[3], 'h')
            stamp(A, 1, 2)
            flag('h', sFl, 32, vF2)
            A.branch('s_branch CX_WO')
            A.label('CX_NOH')
            A.vm = vm1
            flag('kp1', sKf, 512)
            A('s_lshl_b32 %s, %s, 2' % (s(sT0), s(sJ)))
            A('s_add_u32 %s, %s, %d' % (s(sT0), s(sT0), FL_PB))
            A('v_mov_b32 %s, %s' % (v(M), s(sT0)))
            A('v_mov_b32 %s, 2' % v(M + 1))
            A('ds_write_b32 %s, %s' % (v(M), v(M + 1)))
            A.label('CX_WO')
            A.vm = []; A.lg = []
            wo_dma(1)
    A.label('C_P2')
    A.vm = []; A.lg = []
    stamp(A, 5)
    vAcc, vW, vO = 0, 64, 128
    vA0, vFl, vFv, vT = 232, 236, 237, 216
    sFl, sAct = sO[0], sO[1]
    A('v_lshlrev_b32 %s, 2, %s' % (v(vFl), v(vLane)))
    A('v_and_b32 %s, 0x7c, %s' % (v(vFl), v(vFl)))
    A('s_lshl_b32 %s, %s, 3' % (s(sFl), s(sRb2)))
    A('s_add_u32 %s, %s, %s' % (s(sFl), s(sFl), s(sWave)))
    A('s_lshl_b32 %s, %s, 7' % (s(sFl), s(sFl)))
    A('s_add_u32 %s, %s, 0x%x' % (s(sFl), s(sFl), WS_F))
    xres(A, 240, 244)
    qload = 'buffer_load_dword %s, %s, %s, %s offen sc1' % (v(vFv), v(vFl), s(SWS, 4), s(sFl))
    A(qload, tag='fl')
    A('s_mul_i32 %s, %s, %d' % (s(sAct), s(sRb2), NU * 4096))
    A('s_lshl_b32 %s, %s, 14' % (s(sT0), s(sJ)))
    A('s_add_u32 %s, %s, %s' % (s(sAct), s(sAct), s(sT0)))
    A('s_add_u32 %s, %s, %d' % (s(sAct), s(sAct), 44 * 4096))
    tr_addr(A, vA0, vT, 4, None)
    A('s_lshl_b32 %s, %s, 12' % (s(sT2), s(sJ)))
    A('v_add_u32 %s, %s, %s' % (v(vA0), s(sT2), v(vA0)))
    A('v_xor_b32 %s, 64, %s' % (v(vA0 + 1), v(vA0)))
    A('v_add_u32 %s, %d, %s' % (v(vA0 + 2), L_W, v(vA0)))
    A('v_add_u32 %s, %d, %s' % (v(vA0 + 3), L_W, v(vA0 + 1)))
    wr = reduce_write(A, vAcc, 192, sT2)
    A.wait_vm('fl')
    for p in range(4):
        for c in range(2):
            for nt in range(2):
                for hh in range(2):
                    A('ds_read_b64_tr_b16 %s, %s offset:%d' % (v(vW + 16 * p + 8 * c + 4 * nt + 2 * hh, 2), v(vA0 + 2 * (p >> 1) + nt), 16384 * (p & 1) + 2048 * c + 1024 * hh))
    poll(A, 'CQ', qload, vFv, '0xf')
    stamp(A, 6)
    for p in range(4):
        for q in range(4):
            A('buffer_load_dwordx4 %s, %s, %s, %s offen offset:%d sc1' % (v(vO + 16 * p + 4 * q, 4), v(vL16), s(SWS, 4), s(sAct), 1024 * q), tag='o%d' % (2 * p + (q >> 1)))
        if p < 3:
            A('s_add_u32 %s, %s, 4096' % (s(sAct), s(sAct)))
    A.wait_lg(None)
    for p in range(4):
        for c in range(2):
            A.wait_vm('o%d' % (2 * p + c))
            for nt in range(2):
                for rt in range(2):
                    A(mfma(vAcc + 16 * (2 * nt + rt), vW + 16 * p + 8 * c + 4 * nt, vO + 16 * p + 8 * c + 4 * rt, p or c))
    emit(A, wr)

def gen_final(A):
    A.label('F_START')
    vOo, vX, t = 240, 244, 72
    srd(A, SO, 32, 2048 * 1024)
    A('s_and_b32 %s, %s, 3' % (s(sT0), s(sWave)))
    A('s_lshl_b32 %s, %s, 10' % (s(sT0), s(sT0)))
    A('s_lshr_b32 %s, %s, 2' % (s(sT1), s(sWave)))
    A('s_lshl_b32 %s, %s, 14' % (s(sT1), s(sT1)))
    A('s_add_u32 %s, %s, %s' % (s(sT0), s(sT0), s(sT1)))
    A('v_lshrrev_b32 %s, 3, %s' % (v(t), v(vLane)))
    A('v_bfe_u32 %s, %s, 2, 1' % (v(t + 1), v(vLane)))
    A('v_and_b32 %s, 3, %s' % (v(t + 2), v(vLane)))
    A('v_lshlrev_b32 %s, 1, %s' % (v(t + 2), v(t + 2)))
    A('v_xor_b32 %s, %s, %s' % (v(t + 2), v(t + 2), v(t)))
    A('v_xor_b32 %s, %s, %s' % (v(t + 2), v(t + 2), v(t + 1)))
    A('v_lshlrev_b32 %s, 4, %s' % (v(t + 2), v(t + 2)))
    A('v_lshl_add_u32 %s, %s, 7, %s' % (v(t + 2), v(t), v(t + 2)))
    A('v_add_u32 %s, %s, %s' % (v(t + 2), s(sT0), v(t + 2)))
    A('v_lshl_add_u32 %s, %s, 16, %s' % (v(t + 3), v(t + 1), v(t + 2)))
    A('v_xor_b32 %s, 16, %s' % (v(t + 4), v(t + 3)))
    A('s_waitcnt lgkmcnt(0)')
    A.lg = []
    A('s_barrier')
    stamp(A, 7)
    R = 96
    for g in range(2):
        for p in range(4):
            for hh in range(2):
                A('ds_read_b128 %s, %s offset:%d' % (v(R + 32 * g + 8 * p + 4 * hh, 4), v(t + 3 + hh), 32768 * g + 4096 * p), tag='r%d' % g)
    A('s_waitcnt vmcnt(0)')
    X = 80
    for i in range(4):
        A('v_lshlrev_b32 %s, 16, %s' % (v(X + 2 * i), v(vX + i)))
        A('v_and_b32 %s, 0xffff0000, %s' % (v(X + 2 * i + 1), v(vX + i)))
    for g in range(2):
        A.wait_lg('r%d' % g)
        r = R + 32 * g
        for i in range(4):
            A('v_pk_add_f32 %s, %s, %s' % (v(r + 2 * i, 2), v(r + 2 * i, 2), v(r + 8 + 2 * i, 2)))
            A('v_pk_add_f32 %s, %s, %s' % (v(r + 16 + 2 * i, 2), v(r + 16 + 2 * i, 2), v(r + 24 + 2 * i, 2)))
        for i in range(4):
            A('v_pk_add_f32 %s, %s, %s' % (v(r + 2 * i, 2), v(r + 2 * i, 2), v(r + 16 + 2 * i, 2)))
        for i in range(4):
            A('v_pk_add_f32 %s, %s, %s' % (v(X + 2 * i, 2), v(X + 2 * i, 2), v(r + 2 * i, 2)))
    for i in range(4):
        A('v_cvt_pk_bf16_f32 %s, %s, %s' % (v(X + i), v(X + 2 * i), v(X + 2 * i + 1)))
    A('buffer_store_dwordx4 %s, %s, %s, %s offen%s' % (v(X, 4), v(vOo), s(SO, 4), s(6), {0: '', 1: ' sc1', 2: ' nt', 3: ' sc0 sc1'}[OPT['ost']]))
    if OPT['stamps']:
        A('s_waitcnt vmcnt(0)')
        A('%s s[14:15]' % ('s_memtime' if OPT['clk'] else 's_memrealtime'))
        A('s_waitcnt lgkmcnt(0)')
        A('s_lshl_b32 %s, s2, 3' % s(sT2))
        A('s_add_u32 %s, %s, %s' % (s(sT2), s(sT2), s(sWave)))
        A('s_lshl_b32 %s, %s, 6' % (s(sT2), s(sT2)))
        A('s_add_u32 %s, %s, 0x%x' % (s(sT2), s(sT2), WS_STAMP))
        A('v_mov_b32 %s, 0' % v(1))
        for i, r in enumerate(STREG + [14]):
            A('v_mov_b32 %s, %s' % (v(0), s(r)))
            A('buffer_store_dword %s, %s, %s, %s offen offset:%d' % (v(0), v(1), s(SWS, 4), s(sT2), 4 * i))
    A.label('L_END')
    A('s_endpgm')

def main():
    body = gen()
    out = []
    out.append('; @launch grid=(256,1,1) block=(512,1,1) lds=163840')
    out.append('.amdgcn_target "amdgcn-amd-amdhsa--gfx950"')
    out.append('.text')
    out.append('.globl %s_kernel' % NAME)
    out.append(body)
    out.append('.section .rodata,"a"')
    out.append('.p2align 6')
    out.append('''.amdhsa_kernel %s_kernel
  .amdhsa_next_free_vgpr 256
  .amdhsa_next_free_sgpr 102
  .amdhsa_accum_offset 256
  .amdhsa_group_segment_fixed_size 0
  .amdhsa_kernarg_size 88
  .amdhsa_user_sgpr_count 2
  .amdhsa_user_sgpr_kernarg_segment_ptr 1
  .amdhsa_system_sgpr_workgroup_id_x 1
.end_amdhsa_kernel
''' % NAME)
    open(sys.argv[1], 'w').write('\n'.join(out))

main()
```

```python
import sys
from asmlib import Asm, v, a, s

NAME = 'parallel_sum__linear_kernel_hedgehog__dense_activation_mish__prompt'
OPT = dict(fine=0, stamps=0, prio=1, sched=0, slp=8, wt0=12, wd=8, wi=4, warm=1, xmap=1, xq=1, clk=0, ost=1, gi=5, f2=6, ps=4, win=3, f3=6, h2=1, xs=0, mv=0, rot=7, rm=0)
for arg in sys.argv[2:]:
    k, val = arg.split('=')
    OPT[k] = int(val, 0)

NU = 60
WS_ACT = 0x000000
WS_KVP = 0x800000
KVS = 9216
WS_KF = 0x8A0000
WS_STAT = 0xC80000
WS_F = 0xC90000
WS_CS = 0xCA0000
WS_STAMP = 0xD00000
WS_SIZE = 0xE00000
KVH = 1088
OOB = 0x7f000000
LOG2E = 0x3fb8aa3b
LN2 = 0x3f317218
BOUND = 0x8000

L_W = 65536
L_E = 131072
def XP(sg): return 16384 * sg
def WP(sg): return L_W + 16384 * sg
TA, TZ, TB, TR, TS, TN, TPH = L_E, L_E + 1536, L_E + 2048, L_E + 3072, L_E + 3584, L_E + 3840, L_E + 6144
KVL = L_E + 24576
P3B = [L_E + 8192, L_E + 16384, XP(0), XP(0) + 8192, WP(0), WP(0) + 8192, XP(1), XP(1) + 8192]
PH0, PH1, VB = XP(3), WP(3), XP(2)
FL_P3, FL_PB, FL_EX, FL_KV = TN + 16, TN + 32, TN + 48, TN + 80

SX, SA, SB, SWS, SD, SW2, SWO, STMP = 40, 44, 48, 56, 60, 64, 68, 72
SO = SA
sNonce, sWave, sRb, sCg, sTyp, sG, sF, sRb2, sCb = 3, 4, 5, 8, 9, 10, 11, 12, 13
sT0, sT1, sT2, sT3 = 14, 15, 76, 77
sO = [78, 79, 80, 81, 82, 83]
sJ = 84
sM = 85
sA, sB = 86, 87
sGq = 39
STREG = [88, 90, 92, 94, 96, 98, 100, 24, 74]

def srd(A, d, lo, size):
    A('s_mov_b32 %s, %s' % (s(d), s(lo)))
    A('s_mov_b32 %s, %s' % (s(d + 1), s(lo + 1)))
    A('s_mov_b32 %s, 0x%x' % (s(d + 2), size))
    A('s_mov_b32 %s, 0x20000' % s(d + 3))

def stamp(A, idx, fine=0):
    over = {0: (), 1: (1, 2), 2: (1, 2, 8, 4), 3: (1, 2, 8, 4, 5, 6), 4: (1, 2, 8, 4, 5, 6, 7), 5: (1, 2, 8, 4, 5, 6, 7)}[OPT['fine']]
    if fine == 0 and idx in over:
        return
    if fine and OPT['fine'] != fine:
        return
    if OPT['stamps']:
        A('%s %s' % ('s_memtime' if OPT['clk'] else 's_memrealtime', s(STREG[idx], 2)))

def emit(A, L):
    for it in L:
        if isinstance(it, tuple):
            A(it[0], tag=it[1])
        else:
            A(it)

class Keep:
    def __init__(self, A): self.A = A
    def __enter__(self): self.sv = list(self.A.vm); self.sl = list(self.A.lg)
    def __exit__(self, *e): self.A.vm = self.sv; self.A.lg = self.sl

def poll(A, name, reload, vreg, mask, cmp_nonce=True, pre=()):
    A('s_mov_b32 %s, 0' % s(sT0))
    A.label(name + '_P')
    emit(A, pre)
    if cmp_nonce:
        A('v_cmp_ne_u32 vcc, %s, %s' % (s(sNonce), v(vreg)))
    else:
        A('v_cmp_eq_u32 vcc, 0, %s' % v(vreg))
    if mask is not None:
        A('s_and_b32 vcc_lo, vcc_lo, %s' % mask)
        A('s_cmp_eq_u32 vcc_lo, 0')
    else:
        A('s_cmp_eq_u64 vcc, 0')
    A.branch('s_cbranch_scc1 %s_G' % name)
    A('s_add_u32 %s, %s, 1' % (s(sT0), s(sT0)))
    A('s_cmp_gt_u32 %s, 0x%x' % (s(sT0), BOUND))
    A.branch('s_cbranch_scc1 %s_G' % name)
    if OPT['slp']:
        A('s_sleep %d' % OPT['slp'])
    with Keep(A):
        emit(A, [reload] if isinstance(reload, str) else reload)
    A('s_waitcnt vmcnt(0)')
    A.branch('s_branch %s_P' % name)
    A.label(name + '_G')

def lds_wait(A, name, addr, n, minval, t, extra=()):
    A('s_mov_b32 %s, 0' % s(sT0))
    A.label(name + '_P')
    with Keep(A):
        A('ds_read_b128 %s, %s' % (v(t, 4), addr) if n == 4 else 'ds_read_b32 %s, %s' % (v(t), addr))
        emit(A, extra)
    A('s_add_u32 %s, %s, 1' % (s(sT0), s(sT0)))
    A('s_waitcnt lgkmcnt(0)')
    A.lg = []
    if n == 4:
        A('v_min3_u32 %s, %s, %s, %s' % (v(t), v(t), v(t + 1), v(t + 2)))
        A('v_min_u32 %s, %s, %s' % (v(t), v(t), v(t + 3)))
    A('v_readfirstlane_b32 %s, %s' % (s(sT1), v(t)))
    A('s_cmp_gt_u32 %s, 0x%x' % (s(sT0), BOUND * 16))
    A('s_cselect_b32 %s, %d, %s' % (s(sT1), minval, s(sT1)))
    A('s_cmp_lt_u32 %s, %d' % (s(sT1), minval))
    A.branch('s_cbranch_scc1 %s_P' % name)

vLane, vL16 = 255, 254

def tr_addr(A, dst, t, rowhalf, sel):
    A('v_lshrrev_b32 %s, 5, %s' % (v(t), v(vLane)))
    A('v_bfe_u32 %s, %s, 2, 2' % (v(t + 1), v(vLane)))
    A('v_mul_u32_u24 %s, %d, %s' % (v(t), rowhalf, v(t)))
    A('v_add_lshl_u32 %s, %s, %s, 7' % (v(dst), v(t), v(t + 1)))
    A('v_bfe_u32 %s, %s, 3, 1' % (v(t), v(vLane)))
    if sel:
        A('v_xor_b32 %s, %s, %s' % (v(t), sel, v(t)))
    A('v_lshl_add_u32 %s, %s, 6, %s' % (v(dst), v(t), v(dst)))
    A('v_bfe_u32 %s, %s, 4, 1' % (v(t), v(vLane)))
    A('v_lshl_add_u32 %s, %s, 5, %s' % (v(dst), v(t), v(dst)))
    A('v_and_b32 %s, 3, %s' % (v(t), v(vLane)))
    A('v_lshl_add_u32 %s, %s, 3, %s' % (v(dst), v(t), v(dst)))

def selector(A, dst, t):
    A('v_lshrrev_b32 %s, 2, %s' % (v(t), v(vLane)))
    A('v_xor_b32 %s, %s, %s' % (v(t), v(t), v(vLane)))
    A('v_and_b32 %s, 4, %s' % (v(t), v(t)))
    A('v_cmp_eq_u32 vcc, 0, %s' % v(t))
    A('v_mov_b32 %s, 0x3f803f80' % v(t + 1))
    A('v_cndmask_b32 %s, 0, %s, vcc' % (v(dst), v(t + 1)))
    for i in range(1, 4):
        A('v_mov_b32 %s, %s' % (v(dst + i), v(dst)))

def onehot(A, dst, key, t, first=0):
    A('v_mov_b32 %s, 0x3f80' % v(t))
    A('v_mov_b32 %s, 0x3f800000' % v(t + 1))
    for r in range(4):
        A('v_cmp_eq_u32 vcc, %d, %s' % (first + 2 * r, v(key)))
        A('v_cndmask_b32 %s, 0, %s, vcc' % (v(dst + r), v(t)))
        A('v_cmp_eq_u32 vcc, %d, %s' % (first + 2 * r + 1, v(key)))
        A('v_cndmask_b32 %s, %s, %s, vcc' % (v(dst + r), v(dst + r), v(t + 1)))

def reduce_write(A, acc, t, base_s):
    A('v_and_b32 %s, 31, %s' % (v(t), v(vLane)))
    A('v_lshrrev_b32 %s, 5, %s' % (v(t + 1), v(vLane)))
    A('v_xor_b32 %s, %s, %s' % (v(t + 1), v(t + 1), v(vLane)))
    A('v_and_b32 %s, 7, %s' % (v(t + 1), v(t + 1)))
    A('v_lshlrev_b32 %s, 4, %s' % (v(t + 1), v(t + 1)))
    A('v_lshl_add_u32 %s, %s, 7, %s' % (v(t), v(t), v(t + 1)))
    A('v_add_u32 %s, %s, %s' % (v(t), s(base_s), v(t)))
    for q4 in range(1, 4):
        A('v_xor_b32 %s, %d, %s' % (v(t + q4), 32 * q4, v(t)))
    for q4 in range(4):
        A('v_xor_b32 %s, 16, %s' % (v(t + 4 + q4), v(t + q4)))
        A('v_add_u32 %s, %d, %s' % (v(t + 4 + q4), 65536, v(t + 4 + q4)))
    return [('ds_write_b128 %s, %s offset:%d' % (v(t + 4 * nt + q4), v(acc + 16 * (2 * nt + rt) + 4 * q4, 4), rt * 16384))
            for nt in range(2) for rt in range(2) for q4 in range(4)]

def w2_voff(A, dst, t):
    A('v_lshrrev_b32 %s, 3, %s' % (v(t), v(vLane)))
    A('v_lshrrev_b32 %s, 2, %s' % (v(t + 1), v(vLane)))
    A('v_and_b32 %s, 4, %s' % (v(t + 1), v(t + 1)))
    A('v_and_b32 %s, 7, %s' % (v(t + 2), v(vLane)))
    A('v_xor_b32 %s, %s, %s' % (v(t + 1), v(t + 1), v(t + 2)))
    A('v_lshlrev_b32 %s, 4, %s' % (v(t + 1), v(t + 1)))
    A('s_lshl_b32 %s, %s, 7' % (s(sT0), s(sCb)))
    A('v_lshl_add_u32 %s, %s, 10, %s' % (v(dst), v(t), v(t + 1)))
    A('v_add_u32 %s, %s, %s' % (v(dst), s(sT0), v(dst)))

def quad(vo, srdn, ldsbase, tag):
    L = []
    L.append('s_lshl_b32 m0, %s, 12' % s(sJ))
    if ldsbase:
        L.append('s_add_u32 m0, m0, %d' % ldsbase)
    for i in range(4):
        if i:
            L.append('s_add_u32 %s, %s, %d' % (s(sO[i]), s(sO[0]), 7168 * i))
        L.append(('buffer_load_dwordx4 %s, %s, %s offen offset:%d lds' % (v(vo[i & 1]), s(srdn, 4), s(sO[i]), 1024 * i), tag))
    return L

def xres(A, vOo, vX):
    A('v_lshrrev_b32 %s, 3, %s' % (v(vOo), v(vLane)))
    A('v_and_b32 %s, 7, %s' % (v(vOo + 1), v(vLane)))
    A('v_lshlrev_b32 %s, 10, %s' % (v(vOo), v(vOo)))
    A('v_lshl_add_u32 %s, %s, 4, %s' % (v(vOo), v(vOo + 1), v(vOo)))
    A('s_lshl_b32 %s, %s, 3' % (s(6), s(sRb2)))
    A('s_add_u32 %s, %s, %s' % (s(6), s(6), s(sWave)))
    A('s_lshl_b32 %s, %s, 13' % (s(6), s(6)))
    A('s_lshl_b32 %s, %s, 7' % (s(7), s(sCb)))
    A('s_add_u32 %s, %s, %s' % (s(6), s(6), s(7)))
    A('buffer_load_dwordx4 %s, %s, %s, %s offen' % (v(vX, 4), v(vOo), s(SX, 4), s(6)), tag='xres')

def gen():
    A = Asm()
    vT = 236
    A.raw('.p2align 8')
    A.raw('.type %s_kernel,@function' % NAME)
    A.raw('%s_kernel:' % NAME)
    A('s_cmp_ge_u32 s2, 256')
    A.branch('s_cbranch_scc1 L_END')
    A('s_load_dwordx16 s[16:31], s[0:1], 0')
    A('s_load_dwordx4 s[32:35], s[0:1], 64')
    A('s_load_dwordx2 s[36:37], s[0:1], 80')
    A('s_memrealtime s[6:7]')
    A('v_and_b32 %s, 63, v0' % v(vLane))
    A('v_lshrrev_b32 %s, 6, v0' % v(vT))
    A('v_lshlrev_b32 %s, 4, %s' % (v(vL16), v(vLane)))
    A('v_readfirstlane_b32 %s, %s' % (s(sWave), v(vT)))
    A('s_and_b32 %s, s2, 7' % s(sT0))
    A('s_lshr_b32 %s, s2, 3' % s(sT1))
    A('s_and_b32 %s, %s, 1' % (s(sRb), s(sT0)))
    A('s_lshl_b32 %s, %s, 3' % (s(sRb), s(sRb)))
    A('s_and_b32 %s, %s, 7' % (s(sT2), s(sT1)))
    A('s_add_u32 %s, %s, %s' % (s(sRb), s(sRb), s(sT2)))
    A('s_lshr_b32 %s, %s, 1' % (s(sCg), s(sT0)))
    A('s_lshl_b32 %s, %s, 2' % (s(sCg), s(sCg)))
    A('s_lshr_b32 %s, %s, 3' % (s(sT2), s(sT1)))
    A('s_add_u32 %s, %s, %s' % (s(sCg), s(sCg), s(sT2)))
    A('s_and_b32 %s, %s, 1' % (s(sTyp), s(sCg)))
    A('s_lshr_b32 %s, %s, 1' % (s(sG), s(sCg)))
    A('s_xor_b32 %s, %s, %d' % (s(sGq), s(sG), 2 * OPT['xq']))
    A('s_cmp_eq_u32 %s, 1' % s(sTyp))
    A('s_cselect_b32 %s, %s, %s' % (s(sGq), s(sG), s(sGq)))
    A('s_lshl_b32 %s, %s, 1' % (s(sF), s(sCg)))
    A('s_add_u32 %s, %s, %s' % (s(sF), s(sF), s(sRb)))
    if OPT['rm']:
        A('s_and_b32 %s, %s, 3' % (s(sF), s(sCg)))
        A('s_lshl_b32 %s, %s, 1' % (s(sF), s(sF)))
        A('s_and_b32 %s, %s, 7' % (s(sT2), s(sRb)))
        A('s_add_u32 %s, %s, %s' % (s(sF), s(sF), s(sT2)))
        A('s_sub_u32 %s, %s, 7' % (s(sT2), s(sF)))
        A('s_cmp_ge_u32 %s, 7' % s(sF))
        A('s_cselect_b32 %s, %s, %s' % (s(sF), s(sT2), s(sF)))
        A('s_xor_b32 %s, %s, %s' % (s(38), s(sCg), s(sRb)))
        A('s_and_b32 %s, %s, %d' % (s(38), s(38), OPT['rm'] - 1))
    else:
        A('s_and_b32 %s, %s, %d' % (s(sF), s(sF), OPT['rot']))
    if OPT['xmap']:
        A('s_lshr_b32 %s, %s, 1' % (s(sRb2), s(sT0)))
        A('s_andn2_b32 %s, 1, %s' % (s(sT2), s(sT0)))
        A('s_lshl_b32 %s, %s, 2' % (s(sT2), s(sT2)))
        A('s_add_u32 %s, %s, %s' % (s(sRb2), s(sRb2), s(sT2)))
        A('s_lshl_b32 %s, %s, 2' % (s(sRb2), s(sRb2)))
    else:
        A('s_lshl_b32 %s, %s, 2' % (s(sRb2), s(sT0)))
    A('s_and_b32 %s, %s, 3' % (s(sT2), s(sT1)))
    A('s_add_u32 %s, %s, %s' % (s(sRb2), s(sRb2), s(sT2)))
    A('s_lshr_b32 %s, %s, 2' % (s(sCb), s(sT1)))
    A('s_and_b32 %s, %s, 3' % (s(sJ), s(sWave)))
    A('s_cmp_ge_u32 %s, 4' % s(sWave))
    A.branch('s_cbranch_scc1 C_START')
    gen_loader(A)
    gen_compute(A)
    gen_final(A)
    return A.text()

def gen_loader(A):
    vXo, vP1, vP2, vP3, v2o = 224, 226, 227, 228, 229
    vNon, vG, vTa, vFl = 230, 232, 234, 253
    vT = 236
    vRow = 0
    vCf = 32
    vCa = 56
    vSel = 68
    vGa = 72
    vB1 = 104
    sPA16, sPA8, sPB16, sPB8 = 52, 53, 54, 55
    sC1, sC2, sC3 = SWO, SWO + 1, SWO + 2
    sStat = 7
    A('s_lshl_b32 %s, %s, 7' % (s(sT0), s(sG)))
    A('s_lshl_b32 %s, %s, 8' % (s(sT1), s(sG)))
    A('s_add_u32 %s, %s, 1024' % (s(sC1), s(sT0)))
    A('s_add_u32 %s, %s, 2048' % (s(sC2), s(sT0)))
    A('s_add_u32 %s, %s, 128' % (s(sT3), s(sT1)))
    A('s_lshl_b32 %s, %s, 7' % (s(sT2), s(sGq)))
    A('s_cmp_eq_u32 %s, 1' % s(sTyp))
    A('s_cselect_b32 %s, %s, %s' % (s(sC3), s(sC2), s(sT2)))
    A('s_cselect_b32 %s, %s, %s' % (s(sC1), s(sC1), s(sT1)))
    A('s_cselect_b32 %s, %s, %s' % (s(sC2), s(sC2), s(sT3)))
    A('s_movk_i32 %s, 2752' % s(sT1))
    A('s_cselect_b32 %s, 3072, %s' % (s(sT2), s(sT1)))
    A('s_cselect_b32 %s, %s, 3072' % (s(sT3), s(sT1)))
    w2_voff(A, v2o, vT)
    A('v_mul_u32_u24 %s, %s, %s' % (v(vP2), s(sT2), v(vT)))
    A('v_add3_u32 %s, %s, %s, %s' % (v(vP1), v(vP2), v(vT + 1), s(sC1)))
    A('v_add3_u32 %s, %s, %s, %s' % (v(vP2), v(vP2), v(vT + 1), s(sC2)))
    A('v_add_u32 %s, %s, %s' % (v(vT + 3), s(sC3), v(vT + 1)))
    A('v_mul_u32_u24 %s, %s, %s' % (v(vP3), s(sT3), v(vT)))
    A('v_add_u32 %s, %s, %s' % (v(vP3), v(vP3), v(vT + 3)))
    A('v_cmp_gt_u32 vcc, 2752, %s' % v(vT + 3))
    A('v_mov_b32 %s, 0x%x' % (v(vT + 3), OOB))
    A('v_cndmask_b32 %s, %s, %s, vcc' % (v(vP3), v(vT + 3), v(vP3)))
    A('s_lshl_b32 %s, %s, 4' % (s(sPA16), s(sT2)))
    A('s_lshl_b32 %s, %s, 3' % (s(sPA8), s(sT2)))
    A('s_sub_u32 %s, %s, 1024' % (s(sPA8), s(sPA8)))
    A('s_lshl_b32 %s, %s, 4' % (s(sPB16), s(sT3)))
    A('s_lshl_b32 %s, %s, 3' % (s(sPB8), s(sT3)))
    A('s_sub_u32 %s, %s, 1024' % (s(sPB8), s(sPB8)))
    A('v_lshrrev_b32 %s, 4, %s' % (v(vT + 1), v(vLane)))
    A('v_xor_b32 %s, %s, %s' % (v(vT + 1), v(vT + 1), v(vT + 2)))
    A('s_lshl_b32 %s, %s, 2' % (s(sT0), s(sRb)))
    A('s_add_u32 %s, %s, %s' % (s(sT0), s(sT0), s(sJ)))
    A('s_lshl_b32 %s, %s, 15' % (s(sT0), s(sT0)))
    A('v_lshlrev_b32 %s, 10, %s' % (v(vXo), v(vT)))
    A('v_lshl_add_u32 %s, %s, 4, %s' % (v(vXo), v(vT + 1), v(vXo)))
    A('v_add_u32 %s, %s, %s' % (v(vXo), s(sT0), v(vXo)))
    A('v_xor_b32 %s, 64, %s' % (v(vXo + 1), v(vXo)))
    A('s_lshl_b32 %s, %s, 11' % (s(sM), s(sJ)))
    A('s_lshl_b32 %s, %s, 4' % (s(sA), s(sRb)))
    A('s_add_u32 %s, %s, %s' % (s(sA), s(sA), s(sCg)))
    A('s_lshl_b32 %s, %s, 2' % (s(sA), s(sA)))
    A('s_add_u32 %s, %s, %s' % (s(sA), s(sA), s(sJ)))
    A('s_lshl_b32 %s, %s, 11' % (s(sB), s(sA)))
    A('v_and_b32 %s, 32, %s' % (v(vT + 4), v(vLane)))
    A('v_lshl_add_u32 %s, %s, 4, %s' % (v(vT + 4), v(vT + 4), v(vL16)))
    A('v_mov_b32 %s, 0' % v(vT + 5))
    A('s_or_b32 %s, s2, %s' % (s(sT0), s(sWave)))
    A('s_waitcnt lgkmcnt(0)')
    srd(A, SD, 34, 256)
    A('s_cmp_lg_u32 %s, 0' % s(sT0))
    A.branch('s_cbranch_scc1 L_NONONCE')
    A('s_or_b32 s6, s6, 1')
    A('v_mov_b32 %s, s6' % v(vT))
    with Keep(A):
        A('buffer_store_dword %s, %s, %s, 0 offen offset:128 sc1' % (v(vT), v(vT + 5), s(SD, 4)))
    A.label('L_NONONCE')
    srd(A, SX, 16, 2048 * 1024)
    A('s_cmp_eq_u32 %s, 1' % s(sTyp))
    for d, x_, y_, p16 in ((SA, 18, 26, sPA16), (SB, 26, 18, sPB16)):
        A('s_cselect_b32 %s, %s, %s' % (s(d), s(x_), s(y_)))
        A('s_cselect_b32 %s, %s, %s' % (s(d + 1), s(x_ + 1), s(y_ + 1)))
        A('s_mov_b32 %s, 0x20000' % s(d + 3))
    A('s_lshl_b32 %s, %s, 5' % (s(SA + 2), s(sPA16)))
    A('s_lshl_b32 %s, %s, 5' % (s(SB + 2), s(sPB16)))
    stamp(A, 0)

    def chunk(st):
        if OPT['rm']:
            if st == 0:
                return ['s_mov_b32 %s, %s' % (s(sT3), s(38))]
            return ['s_add_u32 %s, %s, %d' % (s(sT3), s(sF), st),
                    's_sub_u32 %s, %s, 7' % (s(sO[0]), s(sT3)),
                    's_cmp_ge_u32 %s, 8' % s(sT3),
                    's_cselect_b32 %s, %s, %s' % (s(sT3), s(sO[0]), s(sT3)),
                    's_xor_b32 %s, %s, %s' % (s(sT3), s(sT3), s(38))]
        return ['s_add_u32 %s, %s, %d' % (s(sT3), s(sF), st),
                's_and_b32 %s, %s, 7' % (s(sT3), s(sT3))]
    def krow(st):
        return chunk(st) + [
                's_lshl_b32 %s, %s, 2' % (s(sT3), s(sT3)),
                's_add_u32 %s, %s, %s' % (s(sT3), s(sT3), s(sJ))]
    def grp_w(st):
        L = krow(st)
        L.append('s_mul_i32 %s, %s, %s' % (s(sO[0]), s(sT3), s(sPA16)))
        L.append('s_add_u32 m0, %s, %d' % (s(sM), WP(st & 3)))
        L.append('s_add_u32 %s, %s, %s' % (s(sO[1]), s(sO[0]), s(sPA8)))
        L.append(('buffer_load_dwordx4 %s, %s, %s offen lds' % (v(vP1), s(SA, 4), s(sO[0])), 's%d' % st))
        L.append(('buffer_load_dwordx4 %s, %s, %s offen offset:1024 lds' % (v(vP1), s(SA, 4), s(sO[1])), 's%d' % st))
        L.append('s_add_u32 m0, %s, %d' % (s(sM), WP(st & 3) + 8192))
        L.append(('buffer_load_dwordx4 %s, %s, %s offen lds' % (v(vP2), s(SA, 4), s(sO[0])), 's%d' % st))
        L.append(('buffer_load_dwordx4 %s, %s, %s offen offset:1024 lds' % (v(vP2), s(SA, 4), s(sO[1])), 's%d' % st))
        return L
    def grp_p3(st):
        tag = 's0' if st == 0 else 'p3'
        L = krow(st)
        L.append('s_mul_i32 %s, %s, %s' % (s(sO[0]), s(sT3), s(sPB16)))
        L.append('s_add_u32 m0, %s, %d' % (s(sM), P3B[st]))
        L.append('s_add_u32 %s, %s, %s' % (s(sO[1]), s(sO[0]), s(sPB8)))
        L.append(('buffer_load_dwordx4 %s, %s, %s offen lds' % (v(vP3), s(SB, 4), s(sO[0])), tag))
        L.append(('buffer_load_dwordx4 %s, %s, %s offen offset:1024 lds' % (v(vP3), s(SB, 4), s(sO[1])), tag))
        return L
    def grp_x(st):
        L = chunk(st)
        L.append('s_lshl_b32 %s, %s, 7' % (s(sO[0]), s(sT3)))
        return L + quad((vXo, vXo + 1), SX, XP(st & 3), 's%d' % st)
    UL = [(8, 0), (8, 1), (8, 4), (8, 5), (3, 32), (3, 33), (3, 34), (8, 2), (8, 3), (8, 6), (8, 7)]
    if OPT['h2'] < 2:
        UL = UL[:4] + UL[7:10] + UL[10:] + UL[4:7]
    UPY = [WP(1), WP(2), XP(2), XP(3), WP(3), WP(2), XP(2), XP(3), WP(3), WP(2), XP(2)]
    UPX = [WP(1), WP(2), WP(1), WP(2), WP(1), WP(2), WP(1), XP(3), WP(3), WP(2), XP(2)]
    def grp_w2(i, UP=UPY):
        m, c = UL[i]
        L = ['s_mul_i32 %s, %s, %d' % (s(sO[0]), s(sJ), m * 32768)]
        if c:
            L.append('s_add_u32 %s, %s, %d' % (s(sO[0]), s(sO[0]), c * 32768))
        return L + quad((v2o, v2o), SW2, UP[i], 'u%d' % i)
    groups = []
    for st in range(8):
        groups += [('w', st), ('x', st)]
    SCHED = {0: [6, 2, 2, 2, 2, 2], 1: [4, 4, 2, 2, 2, 2], 2: [8, 0, 2, 2, 2, 2], 3: [5, 3, 2, 2, 2, 2]}[OPT['sched']]
    pos = [0]
    def issue(n, iv):
        for _ in range(n):
            kind, st = groups[pos[0]]
            assert st <= iv + 3 or st < 4, (st, iv)
            emit(A, grp_w(st) if kind == 'w' else grp_x(st))
            pos[0] += 1

    nload = 'buffer_load_dword %s, %s, %s, 0 offen offset:128 sc1' % (v(vNon), v(vT + 5), s(SD, 4))
    A('buffer_load_dwordx4 %s, %s, %s, %s offen' % (v(vRow, 4), v(vT + 4), s(SX, 4), s(sB)), tag='row')
    A('buffer_load_dwordx4 %s, %s, %s, %s offen offset:512' % (v(vRow + 4, 4), v(vT + 4), s(SX, 4), s(sB)), tag='row')
    issue(2, -1)
    emit(A, grp_p3(0))
    A(nload, tag='s0')
    issue(2, -1)
    A('buffer_load_dword %s, %s, %s, 0 offen offset:128 sc1' % (v(vNon + 1), v(vT + 5), s(SD, 4)), tag='non2')
    srd(A, SWS, 36, WS_SIZE)
    A('s_lshl_b32 %s, %s, 4' % (s(sStat), s(sA)))
    A('s_add_u32 %s, %s, 0x%x' % (s(sStat), s(sStat), WS_STAT))
    srd(A, SW2, 30, 1376 * 1024)

    def xsum32(r, t):
        for ctl in ('quad_perm:[1,0,3,2]', 'quad_perm:[2,3,0,1]', 'row_half_mirror', 'row_mirror'):
            A('v_add_f32_dpp %s, %s, %s %s row_mask:0xf bank_mask:0xf' % (v(r), v(r), v(r), ctl))
        A('v_mov_b32 %s, %s' % (v(t), v(r)))
        A('v_permlane16_swap_b32 %s, %s' % (v(r), v(t)))
        A('v_add_f32 %s, %s, %s' % (v(r), v(r), v(t)))
    U = vRow + 8
    tr_addr(A, vTa, vT, 8, s(sJ))
    A('s_lshr_b32 %s, %s, 3' % (s(sT0), s(sRb)))
    A('s_lshl_b32 %s, %s, 12' % (s(sT0), s(sT0)))
    A('s_add_u32 %s, %s, %d' % (s(sT0), s(sT0), L_W))
    A('v_add_u32 %s, %s, %s' % (v(vTa), s(sT0), v(vTa)))
    A('v_add_u32 %s, %d, %s' % (v(vTa + 1), P3B[0] - L_W, v(vTa)))
    selector(A, vSel, vT)
    A('v_lshlrev_b32 %s, 2, %s' % (v(vFl), v(vLane)))
    A('v_and_b32 %s, 0x7c, %s' % (v(vFl), v(vFl)))
    A.wait_vm('row')
    for j in range(8):
        A('v_lshlrev_b32 %s, 16, %s' % (v(U + 2 * j), v(vRow + j)))
        A('v_and_b32 %s, 0xffff0000, %s' % (v(U + 2 * j + 1), v(vRow + j)))
    for j in range(4):
        A('v_add_f32 %s, %s, %s' % (v(vRow + j), v(U + j), v(U + 4 + j)))
        A('v_add_f32 %s, %s, %s' % (v(vRow + 4 + j), v(U + 8 + j), v(U + 12 + j)))
    for st_ in (4, 2, 1):
        for j in range(st_):
            A('v_add_f32 %s, %s, %s' % (v(vRow + j), v(vRow + j), v(vRow + st_ + j)))
    xsum32(vRow, vRow + 1)
    A('v_mul_f32 %s, 0xbb000000, %s' % (v(vRow), v(vRow)))
    for j in range(16):
        A('v_add_f32 %s, %s, %s' % (v(U + j), v(U + j), v(vRow)))
    for j in range(4):
        A('v_mul_f32 %s, %s, %s' % (v(vRow + 4 + j), v(U + j), v(U + j)))
    for j in range(4, 16):
        A('v_fmac_f32 %s, %s, %s' % (v(vRow + 4 + (j & 3)), v(U + j), v(U + j)))
    r = vRow + 4
    A('v_add_f32 %s, %s, %s' % (v(r), v(r), v(r + 1)))
    A('v_add_f32 %s, %s, %s' % (v(r + 2), v(r + 2), v(r + 3)))
    A('v_add_f32 %s, %s, %s' % (v(r), v(r), v(r + 2)))
    xsum32(r, r + 1)
    A('v_mul_f32 %s, 0x3b000000, %s' % (v(r), v(r)))
    A('v_cvt_pk_bf16_f32 %s, %s, %s' % (v(r), v(r), v(r)))
    A('v_lshlrev_b32 %s, 16, %s' % (v(r), v(r)))
    A('v_add_f32 %s, 0x3727c5ac, %s' % (v(r), v(r)))
    A('v_cvt_pk_bf16_f32 %s, %s, %s' % (v(r), v(r), v(r)))
    A('v_lshlrev_b32 %s, 16, %s' % (v(r), v(r)))
    A('v_sqrt_f32 %s, %s' % (v(r), v(r)))
    A('v_cvt_pk_bf16_f32 %s, %s, %s' % (v(vG), v(vRow), v(r)))
    A('v_cmp_eq_u32 vcc, 0, %s' % v(vFl))
    A('v_lshrrev_b32 %s, 2, %s' % (v(vT), v(vLane)))
    A('v_mov_b32 %s, 0x%x' % (v(vT + 1), OOB))
    A('v_cndmask_b32 %s, %s, %s, vcc' % (v(vT + 4), v(vT + 1), v(vT)))
    issue(SCHED[0] - 4, -1)
    A.wait_vm('s0')
    A('s_barrier')
    stamp(A, 1)
    A('s_cmp_ge_u32 %s, 2' % s(sJ))
    A.branch('s_cbranch_scc1 L_NOCF')
    with Keep(A):
        for ks in range(2):
            for u in range(3):
                for hh in range(2):
                    A('ds_read_b64_tr_b16 %s, %s offset:%d' % (v(vCf + 12 * ks + 4 * u + 2 * hh, 2), v(vTa + (u >> 1)), 8192 * (u & 1) + 2048 * ks + 512 * hh))
    A.label('L_NOCF')
    A('v_readfirstlane_b32 %s, %s' % (s(sNonce), v(vNon)))
    A('s_cmp_lg_u32 %s, 0' % s(sNonce))
    A.branch('s_cbranch_scc1 LN_DONE')
    with Keep(A):
        A.wait_vm('non2')
        A('v_mov_b32 %s, %s' % (v(vNon), v(vNon + 1)))
        poll(A, 'LN', nload, vNon, None, cmp_nonce=False)
        A('v_readfirstlane_b32 %s, %s' % (s(sNonce), v(vNon)))
    A.label('LN_DONE')
    A('v_mov_b32 %s, %s' % (v(vG + 1), v(vNon)))
    A('buffer_store_dwordx2 %s, %s, %s, %s offen sc1' % (v(vG, 2), v(vT + 4), s(SWS, 4), s(sStat)), tag='pub')
    A('s_cmp_ge_u32 %s, 2' % s(sJ))
    A.branch('s_cbranch_scc1 LB_START')
    vm0 = list(A.vm)
    pos0 = pos[0]

    def bar(n):
        A('s_barrier')
        if n == 4:
            stamp(A, 2)
        if n in (5, 6, 7):
            stamp(A, {5: 1, 6: 2, 7: 8}[n], 3)
    GI = OPT['gi']
    vA0, vB0 = 226, 224
    vFw = 232
    vSg, vZo, vKw, vSdw = 244, 248, 249, 251
    def prep_kv():
        A('v_and_b32 %s, 15, %s' % (v(vT), v(vLane)))
        A('v_lshrrev_b32 %s, 4, %s' % (v(vT + 1), v(vLane)))
        A('v_lshlrev_b32 %s, 3, %s' % (v(vT + 2), v(vT + 1)))
        A('v_xor_b32 %s, %s, %s' % (v(vT + 2), v(vT + 2), v(vT)))
        A('v_and_b32 %s, 15, %s' % (v(vT + 2), v(vT + 2)))
        onehot(A, vSg, vT + 2, vT + 3)
        A('v_lshrrev_b32 %s, 3, %s' % (v(vT + 3), v(vT)))
        A('v_mul_u32_u24 %s, %d, %s' % (v(vZo), KVS - 512, v(vT + 3)))
        A('v_lshl_add_u32 %s, %s, 4, %s' % (v(vZo), v(vT + 1), v(vZo)))
        A('v_lshl_add_u32 %s, %s, 6, %s' % (v(vZo), v(vT), v(vZo)))
        A('v_lshrrev_b32 %s, 1, %s' % (v(vT + 2), v(vT + 1)))
        A('v_mul_u32_u24 %s, 272, %s' % (v(vT + 2), v(vT + 2)))
        A('v_and_b32 %s, 1, %s' % (v(vT + 1), v(vT + 1)))
        A('v_lshl_add_u32 %s, %s, 3, %s' % (v(vT + 2), v(vT + 1), v(vT + 2)))
        A('s_mul_i32 %s, %s, %d' % (s(sT0), s(sJ), KVH))
        A('s_add_u32 %s, %s, %d' % (s(sT0), s(sT0), KVL))
        A('v_add_u32 %s, %s, %s' % (v(vT + 2), s(sT0), v(vT + 2)))
        A('v_lshl_add_u32 %s, %s, 4, %s' % (v(vKw), v(vT), v(vT + 2)))
        A('v_mul_u32_u24 %s, 544, %s' % (v(vT + 3), v(vT + 3)))
        A('v_add_u32 %s, %s, %s' % (v(vKw + 1), v(vT + 2), v(vT + 3)))
        A('v_and_b32 %s, 0x33, %s' % (v(vT), v(vLane)))
        A('v_bfe_u32 %s, %s, 2, 1' % (v(vT + 1), v(vLane)))
        A('v_lshl_or_b32 %s, %s, 3, %s' % (v(vT), v(vT + 1), v(vT)))
        A('v_bfe_u32 %s, %s, 3, 1' % (v(vT + 1), v(vLane)))
        A('v_lshl_or_b32 %s, %s, 2, %s' % (v(vT), v(vT + 1), v(vT)))
        A('v_lshlrev_b32 %s, 1, %s' % (v(vSdw), v(vT)))
    def lwarm():
        srd(A, STMP, 22, 512 * 1024)
        A('s_lshr_b32 %s, s2, 3' % s(sT0))
        A('s_lshl_b32 %s, %s, 2' % (s(sT0), s(sT0)))
        A('s_add_u32 %s, %s, %s' % (s(sT0), s(sT0), s(sJ)))
        A('v_lshlrev_b32 %s, 7, %s' % (v(vT), v(vLane)))
        A('s_mul_i32 %s, %s, %d' % (s(sT1), s(sT0), 86 * 128))
        A('buffer_load_dword %s, %s, %s, %s offen' % (v(107), v(vT), s(SW2, 4), s(sT1)), tag='wm')
        A('v_cmp_gt_u32 vcc, 22, %s' % v(vLane))
        A('v_mov_b32 %s, 0x%x' % (v(vT + 3), OOB))
        A('v_cndmask_b32 %s, %s, %s, vcc' % (v(vT + 2), v(vT + 3), v(vT)))
        A('s_add_u32 %s, %s, 8192' % (s(sT1), s(sT1)))
        A('buffer_load_dword %s, %s, %s, %s offen' % (v(107), v(vT + 2), s(SW2, 4), s(sT1)), tag='wm')
        A('v_cmp_gt_u32 vcc, 32, %s' % v(vLane))
        A('v_cndmask_b32 %s, %s, %s, vcc' % (v(vT + 2), v(vT + 3), v(vT)))
        A('s_lshl_b32 %s, %s, 12' % (s(sT1), s(sT0)))
        A('buffer_load_dword %s, %s, %s, %s offen' % (v(107), v(vT + 2), s(STMP, 4), s(sT1)), tag='wm')
    def prep2():
        tr_addr(A, vA0, vT, 4, None)
        A('s_lshl_b32 %s, %s, 1' % (s(sT0), s(sM)))
        A('v_add_u32 %s, %s, %s' % (v(vA0), s(sT0), v(vA0)))
        A('v_xor_b32 %s, 64, %s' % (v(vA0 + 1), v(vA0)))
        A('v_add_u32 %s, %d, %s' % (v(vB0), L_W, v(vA0)))
        A('v_add_u32 %s, %d, %s' % (v(vB0 + 1), L_W, v(vA0 + 1)))
        A('s_lshl_b32 %s, %s, 2' % (s(sT0), s(sJ)))
        A('s_add_u32 %s, %s, %d' % (s(sT0), s(sT0), FL_P3))
        A('v_mov_b32 %s, %s' % (v(vFw), s(sT0)))
        A('v_mov_b32 %s, 1' % v(vFw + 1))
        srd(A, SWO, 22, 512 * 1024)
    for k in 'AB':
        if k == 'B':
            A.label('LB_START')
            A.vm = list(vm0); A.lg = []; pos[0] = pos0
        sCs = 6
        if k == 'A':
            A('s_lshl_b32 %s, %s, 1' % (s(sCs), s(sCg)))
            A('s_add_u32 %s, %s, %s' % (s(sCs), s(sCs), s(sJ)))
            A('s_lshl_b32 %s, %s, 13' % (s(sCs), s(sCs)))
            A('s_add_u32 %s, %s, 0x%x' % (s(sCs), s(sCs), WS_CS))
            A('s_lshl_b32 %s, %s, 9' % (s(sT1), s(sRb)))
            A('s_add_u32 %s, %s, %s' % (s(sT1), s(sT1), s(sCs)))
            A('v_and_b32 %s, 0x1ff, %s' % (v(vT), v(vL16)))
            A('s_waitcnt lgkmcnt(0)')
            for ks in range(2):
                for u in range(3):
                    A('v_mfma_f32_16x16x32_bf16 %s, %s, %s, %s' % (v(vCa + 4 * u, 4), v(vSel, 4), v(vCf + 12 * ks + 4 * u, 4), '0' if ks == 0 else v(vCa + 4 * u, 4)))
            A('v_mov_b32 %s, %s' % (v(vCa + 1), v(vCa + 4)))
            A('v_mov_b32 %s, %s' % (v(vCa + 2), v(vCa + 8)))
            A('v_mov_b32 %s, %s' % (v(vCa + 3), v(vNon)))
            A('buffer_store_dwordx4 %s, %s, %s, %s offen sc1' % (v(vCa, 4), v(vT), s(SWS, 4), s(sT1)), tag='css')
            A('s_add_u32 %s, %s, 4096' % (s(sStat), s(sCs)))
            gal = ['buffer_load_dwordx4 %s, %s, %s, %s offen offset:%d sc1' % (v(vGa + 4 * i, 4), v(vL16), s(SWS, 4), s(sCs if i < 4 else sStat), 1024 * (i & 3)) for i in range(8)]
        else:
            A('s_lshl_b32 %s, %s, 1' % (s(sStat), s(sRb)))
            A('s_add_u32 %s, %s, %s' % (s(sStat), s(sStat), s(sJ)))
            A('s_lshl_b32 %s, %s, 9' % (s(sStat), s(sStat)))
            A('s_add_u32 %s, %s, 0x%x' % (s(sStat), s(sStat), WS_STAT - 1024))
            A('v_lshlrev_b32 %s, 3, %s' % (v(vTa), v(vLane)))
            gal = ['buffer_load_dwordx2 %s, %s, %s, %s offen sc1' % (v(vGa, 2), v(vTa), s(SWS, 4), s(sStat))]
        def gather():
            emit(A, [(x, 'ga') for x in gal])
        def small():
            if k == 'A':
                srd(A, STMP, 28, 2752)
                A('s_lshl_b32 %s, %s, 6' % (s(sT0), s(sJ)))
                A('s_add_u32 %s, %s, %s' % (s(sC1), s(sC1), s(sT0)))
                A('s_add_u32 %s, %s, %s' % (s(sC2), s(sC2), s(sT0)))
                A('s_add_u32 %s, %s, %s' % (s(sC3), s(sC3), s(sT0)))
                A('s_cmp_eq_u32 %s, 1' % s(sTyp))
                A('s_cselect_b32 %s, 0x%x, %s' % (s(sC1), OOB, s(sC1)))
                A('s_cselect_b32 %s, 0x%x, %s' % (s(sC2), OOB, s(sC2)))
                A('s_cselect_b32 %s, %s, 0x%x' % (s(sC3), s(sC3), OOB))
                A('v_lshrrev_b32 %s, 1, %s' % (v(vT), v(vFl)))
                for u in range(3):
                    A('buffer_load_ushort %s, %s, %s, %s offen' % (v(vB1 + u), v(vT), s(STMP, 4), s(sC1 + u)), tag='b1')
            else:
                srd(A, STMP, 20, 16384)
                A('s_lshl_b32 %s, %s, 1' % (s(sT0), s(sGq)))
                A('s_add_u32 %s, %s, %s' % (s(sT0), s(sT0), s(sJ)))
                A('s_lshl_b32 %s, %s, 10' % (s(sT0), s(sT0)))
                A('s_sub_u32 %s, %s, 2048' % (s(sT0), s(sT0)))
                A('s_lshr_b32 %s, %s, 1' % (s(sT1), s(sM)))
                A('s_add_u32 m0, %s, %d' % (s(sT1), TPH - 2048))
                A('buffer_load_dwordx4 %s, %s, %s offen lds' % (v(vL16), s(STMP, 4), s(sT0)), tag='b1')
        def tables():
            A.wait_vm('ga')
            stamp(A, 4, 3)
            if k == 'B':
                poll(A, 'LST', gal, vGa + 1, None)
                A('v_and_b32 %s, 0xffff, %s' % (v(vT), v(vGa)))
                A('v_lshl_or_b32 %s, %s, 16, %s' % (v(vT), v(vGa), v(vT)))
                A('v_lshrrev_b32 %s, 16, %s' % (v(vT + 1), v(vGa)))
                A('v_and_b32 %s, 0xffff0000, %s' % (v(vGa), v(vGa)))
                A('v_rcp_f32 %s, %s' % (v(vT + 2), v(vGa)))
                A('s_lshr_b32 %s, %s, 2' % (s(sT0), s(sM)))
                A('s_add_u32 %s, %s, %d' % (s(sT0), s(sT0), TB - 1024))
                A('v_add_u32 %s, %s, %s' % (v(vT + 3), s(sT0), v(vTa)))
                A('ds_write_b64 %s, %s' % (v(vT + 3), v(vT, 2)))
                A('s_lshr_b32 %s, %s, 3' % (s(sT0), s(sM)))
                A('s_add_u32 %s, %s, %d' % (s(sT0), s(sT0), TR - 512))
                A('v_lshl_add_u32 %s, %s, 2, %s' % (v(vT + 3), v(vLane), s(sT0)))
                A('ds_write_b32 %s, %s' % (v(vT + 3), v(vT + 2)))
                A('s_lshr_b32 %s, %s, 4' % (s(sT0), s(sM)))
                A('s_add_u32 %s, %s, %d' % (s(sT0), s(sT0), TS - 256))
                A('v_add_u32 %s, %s, %s' % (v(vT + 3), s(sT0), v(vSdw)))
                A('ds_write_b16 %s, %s' % (v(vT + 3), v(vT + 1)))
                A('v_cmp_eq_u32 vcc, 0, %s' % v(vFl))
                A('v_cndmask_b32 %s, 0, %s, vcc' % (v(vT + 4), v(vNon)))
                A('v_add_u32 %s, %d, %s' % (v(vT + 6), TN, v(vFl)))
                A('ds_write_b32 %s, %s' % (v(vT + 6), v(vT + 4)))
            else:
                pre = ['v_min3_u32 %s, %s, %s, %s' % (v(vT), v(vGa + 3), v(vGa + 7), v(vGa + 11)),
                       'v_max3_u32 %s, %s, %s, %s' % (v(vT + 1), v(vGa + 3), v(vGa + 7), v(vGa + 11)),
                       'v_min3_u32 %s, %s, %s, %s' % (v(vT), v(vT), v(vGa + 15), v(vGa + 19)),
                       'v_max3_u32 %s, %s, %s, %s' % (v(vT + 1), v(vT + 1), v(vGa + 15), v(vGa + 19)),
                       'v_min3_u32 %s, %s, %s, %s' % (v(vT), v(vT), v(vGa + 23), v(vGa + 27)),
                       'v_max3_u32 %s, %s, %s, %s' % (v(vT + 1), v(vT + 1), v(vGa + 23), v(vGa + 27)),
                       'v_min_u32 %s, %s, %s' % (v(vT), v(vT), v(vGa + 31)),
                       'v_max_u32 %s, %s, %s' % (v(vT + 1), v(vT + 1), v(vGa + 31)),
                       'v_cmp_eq_u32 vcc, %s, %s' % (v(vT), v(vT + 1)),
                       'v_cndmask_b32 %s, 0, %s, vcc' % (v(vT), v(vT))]
                poll(A, 'LCS', gal, vT, None, pre=pre)
                for st_ in (16, 8, 4):
                    for r in range(st_):
                        if r & 3 != 3:
                            A('v_add_f32 %s, %s, %s' % (v(vGa + r), v(vGa + r), v(vGa + st_ + r)))
                for u in range(3):
                    A('v_mov_b32 %s, %s' % (v(vGa + 4 + u), v(vGa + u)))
                for u in range(3):
                    A('v_permlane32_swap_b32 %s, %s' % (v(vGa + u), v(vGa + 4 + u)))
                for u in range(3):
                    A('v_add_f32 %s, %s, %s' % (v(vGa + u), v(vGa + u), v(vGa + 4 + u)))
                A('s_mul_i32 %s, %s, 768' % (s(sT0), s(sJ)))
                A('s_add_u32 %s, %s, %d' % (s(sT0), s(sT0), TA))
                A('v_lshl_add_u32 %s, %s, 1, %s' % (v(vT), v(vFl), s(sT0)))
                for u in range(3):
                    p = vGa + 8 + 2 * u
                    A('v_cvt_pk_bf16_f32 %s, %s, %s' % (v(p), v(vGa + u), v(vGa + u)))
                    A('v_lshlrev_b32 %s, 16, %s' % (v(p), v(p)))
                    A('v_sub_f32 %s, %s, %s' % (v(p), v(vGa + u), v(p)))
                    A('v_cvt_pk_bf16_f32 %s, %s, %s' % (v(p), v(vGa + u), v(p)))
                    A('v_mov_b32 %s, %s' % (v(p + 1), v(vB1 + u)))
                    A('ds_write_b64 %s, %s offset:%d' % (v(vT), v(p, 2), 256 * u))
        PS = {0: {4: ('p1', ''), 5: ('p2 p3 p4 p5', ''), 6: ('p6 p7 u0', ''), 7: ('', 'u1')},
              1: {4: ('', 'p1'), 5: ('', 'p2 p3'), 6: ('', 'p4 p5 p6 p7'), 7: ('', 'u0')},
              2: {7: ('', 'p1 p2 p3 p4 p5 p6 p7')},
              3: {4: ('', 'p1'), 5: ('', 'p2 p3 p4 p5'), 6: ('', 'p6 p7 u0'), 7: ('u1', '')},
              4: {4: ('', 'p1'), 5: ('', 'p2 p3 p4 p5'), 6: ('', 'p6 p7'), 7: ('u0', '')},
              5: {6: ('', 'p1 p2 p3 p4'), 7: ('p5 p6 p7', '')},
              6: {4: ('', 'p1'), 5: ('', 'p2 p3 p4 p5'), 6: ('', 'p6 p7'), 7: ('u0', 'u1')}}[OPT['ps']]
        nw2 = 0
        def extra(spec):
            n = 0
            for it in spec.split():
                emit(A, grp_p3(int(it[1:])) if it[0] == 'p' else grp_w2(int(it[1:])))
                n += it[0] == 'u'
            return n
        for iv in range(8):
            pre_, post_ = PS.get(iv, ('', ''))
            if iv == GI:
                gather()
            if iv < 5:
                issue(SCHED[iv + 1], iv)
            if iv == 2:
                small()
            if iv == OPT['wi'] and OPT['warm'] == 2:
                lwarm()
            if iv == 3:
                prep_kv()
            if iv == 5:
                prep2()
            nw2 += extra(pre_)
            if iv == 7:
                tables()
                stamp(A, 5, 3)
                nw2 += extra(post_)
                stamp(A, 6, 3)
            if iv < 7:
                A.wait_vm('s%d' % (iv + 1))
                nw2 += extra(post_)
                bar(iv + 1)
        A('s_waitcnt lgkmcnt(0)')
        A.lg = []
        if k == 'A':
            vmA = list(A.vm)
            A.branch('s_branch L_JOIN')
    A.label('L_JOIN')
    vmB = list(A.vm)
    assert vmA == vmB, (vmA, vmB)
    A('s_barrier')
    stamp(A, 3)
    vAcc, vW, vR = 0, 64, 176
    def wread(slot, lds, tag):
        base, off = (vA0, lds) if lds < L_W else (vB0, lds - L_W)
        return [('ds_read_b64_tr_b16 %s, %s offset:%d' % (v(vW + 16 * slot + 8 * c + 4 * nt + 2 * hh, 2), v(base + nt), off + 2048 * c + 1024 * hh), tag)
                for c in range(2) for nt in range(2) for hh in range(2)]
    sFl, sAct = sA, sB
    vFv = 228
    fload = 'buffer_load_dword %s, %s, %s, %s offen sc1' % (v(vFv), v(vFl), s(SWS, 4), s(sFl))
    RB = [vR, vR + 16, vR + 32, vR, vR, vR + 16, vR + 32, vR, vR + 16, vR + 32, vW + 64]
    def aload(i):
        m, c = UL[i]
        A('s_add_u32 %s, %s, %d' % (s(sT1), s(sO[4] if m == 8 else sO[5]), c * 4096))
        for q in range(4):
            A('buffer_load_dwordx4 %s, %s, %s, %s offen offset:%d sc1' % (v(RB[i] + 4 * q, 4), v(vL16), s(SWS, 4), s(sT1), 1024 * q), tag='a%d' % i)
    def lflag(val):
        A('v_mov_b32 %s, %d' % (v(vFw + 1), val))
        A('ds_write_b32 %s, %s' % (v(vFw), v(vFw + 1)))
    A('s_cmp_eq_u32 %s, 1' % s(sTyp))
    A.branch('s_cbranch_scc1 LX_START')
    vm8 = list(A.vm)
    for X in (0, 1):
        if X:
            A.label('LX_START')
            A.vm = list(vm8); A.lg = []
        UP = UPX if X else UPY
        WIN = 2 if X else OPT['win']
        nx = [nw2]
        def w2_upto(n):
            while nx[0] <= min(n, 10):
                emit(A, grp_w2(nx[0], UP))
                nx[0] += 1
        def gate(i, mask):
            A.wait_vm('fl')
            poll(A, 'LA%d%d' % (X, i), fload, vFv, mask)
        def unit(i):
            A.wait_vm('a%d' % i)
            if i >= 7:
                A.wait_lg('b%d' % i)
            wb = vW + 16 * (i % 7)
            for c in range(2):
                for nt in range(2):
                    for rt in range(2):
                        acc = vAcc + 16 * (2 * nt + rt)
                        A('v_mfma_f32_32x32x16_bf16 %s, %s, %s, %s' % (v(acc, 16), v(wb + 8 * c + 4 * nt, 4), v(RB[i] + 8 * c + 4 * rt, 4), '0' if (i == 0 and c == 0) else v(acc, 16)))
        XS = X and OPT['xs']
        if XS:
            UP = UPY; WIN = OPT['xs']
        else:
            w2_upto(min(WIN, 5) - 1 - (OPT['ps'] in (2, 5)) * 2)
        A('s_lshl_b32 %s, %s, 3' % (s(sFl), s(sRb2)))
        A('s_add_u32 %s, %s, %s' % (s(sFl), s(sFl), s(sJ)))
        A('s_lshl_b32 %s, %s, 7' % (s(sFl), s(sFl)))
        A('s_add_u32 %s, %s, 0x%x' % (s(sFl), s(sFl), WS_F))
        A('s_mul_i32 %s, %s, %d' % (s(sAct), s(sRb2), NU * 4096))
        A('s_lshl_b32 %s, %s, 15' % (s(sO[4]), s(sJ)))
        A('s_add_u32 %s, %s, %s' % (s(sO[4]), s(sO[4]), s(sAct)))
        A('s_mul_i32 %s, %s, %d' % (s(sO[5]), s(sJ), 3 * 4096))
        A('s_add_u32 %s, %s, %s' % (s(sO[5]), s(sO[5]), s(sAct)))
        A.wait_vm('p3')
        A('ds_write_b32 %s, %s' % (v(vFw), v(vFw + 1)))
        if XS:
            A('v_mov_b32 %s, %d' % (v(vT), FL_KV))
            lds_wait(A, 'LXK', v(vT), 4, 1, vT + 4)
        w2_upto(min(WIN, 5) - 1)
        for i in range(7):
            A.wait_vm('u%d' % i)
            emit(A, wread(i, UP[i], 'm'))
            A.wait_lg(None)
            if X and i == 6:
                lflag(2)
            w2_upto(min(i + 2, 6) if X and not XS else min(i + WIN, 4 + i))
            if i == 4:
                A(fload, tag='fl')
        if X and not XS:
            A('v_mov_b32 %s, %d' % (v(vT), FL_KV))
            lds_wait(A, 'LXK', v(vT), 4, 1, vT + 4)
            w2_upto(10)
        for i in range(7, 11):
            if nx[0] <= 10:
                A.wait_vm('u%d' % i)
                w2_upto(i + WIN)
        stamp(A, 8)
        if not X:
            sKf, sKp = sO[0], sO[1]
            A('s_lshl_b32 %s, %s, 2' % (s(sT0), s(sGq)))
            A('s_add_u32 %s, %s, %s' % (s(sT0), s(sT0), s(sJ)))
            A('s_lshl_b32 %s, %s, 7' % (s(sKf), s(sT0)))
            A('s_add_u32 %s, %s, 0x%x' % (s(sKf), s(sKf), WS_KF))
            A('s_mul_i32 %s, %s, %d' % (s(sKp), s(sT0), 2 * KVS))
            A('s_add_u32 %s, %s, 0x%x' % (s(sKp), s(sKp), WS_KVP))
            kfl = 'buffer_load_dword %s, %s, %s, %s offen sc1' % (v(vFw + 2), v(vFl), s(SWS, 4), s(sKf))
            A(kfl, tag='kf')
        gate(0, '0xf')
        stamp(A, 4)
        for i in range(3 if X else 2):
            aload(i)
        if not X:
            vK, vZ, vD = 0, 208, 212
            A.wait_vm('kf')
            poll(A, 'LK', kfl, vFw + 2, '0xffff')
            stamp(A, 1, 2)
            A('s_add_u32 %s, %s, %d' % (s(sO[2]), s(sKp), KVS))
            A('s_add_u32 %s, %s, %d' % (s(sO[3]), s(sKp), 4096))
            A('s_add_u32 %s, %s, %d' % (s(sT1), s(sKp), KVS + 4096))
            A('s_add_u32 %s, %s, %d' % (s(sKf), s(sKp), 8192))
            A('buffer_load_dwordx4 %s, %s, %s, %s offen sc1' % (v(vZ, 4), v(vZo), s(SWS, 4), s(sKf)), tag='kz')
            for i in range(16):
                c, q = i & 1, i >> 1
                A('buffer_load_dwordx4 %s, %s, %s, %s offen offset:%d sc1' % (v(vK + 4 * i, 4), v(vL16), s(SWS, 4), s([sKp, sO[2], sO[3], sT1][c + 2 * (q >> 2)]), 1024 * (q & 3)), tag='k%d' % i)
            A.wait_vm('kz')
            A('v_mfma_f32_16x16x32_bf16 %s, %s, %s, 0' % (v(vD + 8, 4), v(vSg, 4), v(vZ, 4)))
            for ctl in ('quad_perm:[1,0,3,2]', 'quad_perm:[2,3,0,1]', 'row_half_mirror'):
                for r in range(4):
                    A('v_add_f32_dpp %s, %s, %s %s row_mask:0xf bank_mask:0xf' % (v(vD + 8 + r), v(vD + 8 + r), v(vD + 8 + r), ctl))
            A('v_cvt_pk_bf16_f32 %s, %s, %s' % (v(vD + 8), v(vD + 8), v(vD + 9)))
            A('v_cvt_pk_bf16_f32 %s, %s, %s' % (v(vD + 9), v(vD + 10), v(vD + 11)))
            A('ds_write_b64 %s, %s offset:256' % (v(vKw + 1), v(vD + 8, 2)))
            for i in range(16):
                A.wait_vm('k%d' % i)
                d = vD + 4 * (i & 1)
                A('v_mfma_f32_16x16x32_bf16 %s, %s, %s, %s' % (v(d, 4), v(vSg, 4), v(vK + 4 * i, 4), '0' if i < 2 else v(d, 4)))
            for c in range(2):
                d = vD + 4 * c
                A('v_cvt_pk_bf16_f32 %s, %s, %s' % (v(d), v(d), v(d + 1)))
                A('v_cvt_pk_bf16_f32 %s, %s, %s' % (v(d + 1), v(d + 2), v(d + 3)))
                A('ds_write_b64 %s, %s offset:%d' % (v(vKw), v(d, 2), 544 * c))
            A('ds_write_b32 %s, %s offset:%d' % (v(vFw), v(vFw + 1), FL_KV - FL_P3))
            A('v_mov_b32 %s, %d' % (v(vT), FL_PB))
            lds_wait(A, 'LYB', v(vT), 4, 2, vT + 4)
            aload(2)
        stamp(A, 5)
        for i in range(4):
            unit(i)
            if i == 0:
                aload(3)
            if not X:
                A('s_lshl_b32 %s, %s, 17' % (s(sO[0]), s(sJ)))
                if i:
                    A('s_add_u32 %s, %s, %d' % (s(sO[0]), s(sO[0]), i * 32768))
                emit(A, quad((v2o, v2o), SWO, 16384 * (i & 1) + 65536 * (i >> 1), 'wo'))
            if i == (2 if X else 3):
                A(fload, tag='fl')
            emit(A, wread(i, UP[7 + i], 'b%d' % (i + 7)))
        stamp(A, 2, 2)
        if not X:
            A.wait_vm('fl')
            lflag(3)
        gate(4, '0x3f0f' if OPT['h2'] == 2 else '0xff')
        stamp(A, 8, 2)
        for i in (4, 5, 6):
            aload(i)
        xres(A, 240, 244)
        A(fload, tag='fl')
        for i in (4, 5, 6):
            unit(i)
        gate(7, '0x3fff')
        stamp(A, 4, 2)
        for i in range(7, 11):
            aload(i)
        for i in range(7, 11):
            unit(i)
        if not X:
            A.branch('s_branch L_RED')
    A.label('L_RED')
    stamp(A, 6)
    A('s_lshl_b32 %s, %s, 1' % (s(sT0), s(sM)))
    A('s_add_u32 %s, %s, %d' % (s(sT0), s(sT0), 32768))
    wr = reduce_write(A, vAcc, 64, sT0)
    A('s_mov_b32 %s, 0x%x' % (s(sO[0]), LN2))
    A('s_mov_b32 %s, 0x%x' % (s(sO[1]), LN2))
    for n, w in enumerate(wr):
        r = vAcc + 4 * n
        A('v_pk_mul_f32 %s, %s, %s' % (v(r, 2), v(r, 2), s(sO[0], 2)))
        A('v_pk_mul_f32 %s, %s, %s' % (v(r + 2, 2), v(r + 2, 2), s(sO[0], 2)))
        A(w)
    A.branch('s_branch F_START')

def gen_compute(A):
    A.label('C_START')
    A.vm = []; A.lg = []
    vX = 0
    def ACC(u, r): return 128 + 32 * u + 16 * r
    vWf, vXf = 192, 216
    vXo, vXt = 228, 232
    vPw, vVw, vPr, vVr, vSt, vPo, vF2 = 236, 237, 238, 239, 240, 241, 242
    vR0 = 236
    vWa, vTa, vTb, vTr, vPa, vFo, vWm, vNon = 244, 245, 246, 247, 248, 249, 250, 252
    vR = [232, 234]
    vT = 0
    sCh, sRg, sP2 = sA, sB, sM
    sL2, sHO = 52, 54
    A('s_and_b32 %s, %s, 1' % (s(sCh), s(sJ)))
    A('s_lshr_b32 %s, %s, 1' % (s(sRg), s(sJ)))
    A('s_lshl_b32 %s, %s, 1' % (s(sP2), s(sRb)))
    A('s_add_u32 %s, %s, %s' % (s(sP2), s(sP2), s(sRg)))
    A('s_mov_b32 %s, 0x%x' % (s(sL2), LOG2E))
    A('s_mov_b32 %s, 0x%x' % (s(sL2 + 1), LOG2E))
    A('s_mov_b32 %s, 0.5' % s(sHO))
    A('s_mov_b32 %s, 1.0' % s(sHO + 1))
    A('v_mov_b32 %s, 0x%x' % (v(vT), OOB))
    A('v_cmp_eq_u32 vcc, 0, %s' % v(vLane))
    A('v_cndmask_b32 %s, %s, 0, vcc' % (v(vFo), v(vT)))
    tr_addr(A, vWa, vT, 8, s(sCh))
    A('v_add_u32 %s, %d, %s' % (v(vWa), L_W, v(vWa)))
    A('v_lshrrev_b32 %s, 5, %s' % (v(vT), v(vLane)))
    A('v_and_b32 %s, 31, %s' % (v(vT + 1), v(vLane)))
    A('v_bfe_u32 %s, %s, 1, 3' % (v(vT + 2), v(vLane)))
    A('v_xor_b32 %s, %s, %s' % (v(vT + 2), v(vT + 2), v(vT)))
    A('v_lshlrev_b32 %s, 4, %s' % (v(vT + 2), v(vT + 2)))
    A('v_lshl_add_u32 %s, %s, 7, %s' % (v(vT + 2), v(vT + 1), v(vT + 2)))
    A('s_lshl_b32 %s, %s, 12' % (s(sT0), s(sJ)))
    A('v_add_u32 %s, %s, %s' % (v(vXo), s(sT0), v(vT + 2)))
    for tt in range(1, 4):
        A('v_xor_b32 %s, %d, %s' % (v(vXo + tt), 32 * tt, v(vXo)))
    for tt in range(4):
        A('v_xor_b32 %s, 0x1000, %s' % (v(vXt + tt), v(vXo + tt)))
    A('v_lshlrev_b32 %s, 3, %s' % (v(vT + 2), v(vT + 1)))
    A('v_lshl_add_u32 %s, %s, 2, %s' % (v(vT + 2), v(vT), v(vT + 2)))
    A('v_add_u32 %s, %d, %s' % (v(vTa), TA, v(vT + 2)))
    A('s_lshl_b32 %s, %s, 8' % (s(sT0), s(sJ)))
    A('s_add_u32 %s, %s, %d' % (s(sT0), s(sT0), TB))
    A('v_add_u32 %s, %s, %s' % (v(vTb), s(sT0), v(vT + 2)))
    A('s_lshl_b32 %s, %s, 7' % (s(sT0), s(sJ)))
    A('s_add_u32 %s, %s, %d' % (s(sT0), s(sT0), TR))
    A('v_lshl_add_u32 %s, %s, 2, %s' % (v(vTr), v(vT + 1), s(sT0)))
    A('v_bfe_u32 %s, %s, 2, 2' % (v(vT + 2), v(vLane)))
    A('v_lshl_add_u32 %s, %s, 2, %s' % (v(vT + 2), v(vT), v(vT + 2)))
    A('v_bfe_u32 %s, %s, 4, 1' % (v(vT + 3), v(vLane)))
    A('v_bfe_u32 %s, %s, 1, 1' % (v(vT + 4), v(vLane)))
    A('v_lshl_add_u32 %s, %s, 1, %s' % (v(vT + 4), v(vT + 3), v(vT + 4)))
    A('v_lshlrev_b32 %s, 3, %s' % (v(vT + 4), v(vT + 4)))
    A('v_lshl_add_u32 %s, %s, 5, %s' % (v(vPa), v(vT + 2), v(vT + 4)))
    A('s_and_b32 %s, %s, %s' % (s(sT0), s(sCh), s(sTyp)))
    A('s_lshl_b32 %s, %s, 10' % (s(sT0), s(sT0)))
    A('s_add_u32 %s, %s, %d' % (s(sT0), s(sT0), TPH))
    A('v_add_u32 %s, %s, %s' % (v(vPa), s(sT0), v(vPa)))
    A('v_and_b32 %s, 1, %s' % (v(vT + 2), v(vLane)))
    A('v_bfe_u32 %s, %s, 2, 1' % (v(vT + 3), v(vLane)))
    A('v_xor_b32 %s, %s, %s' % (v(vT + 4), v(vT + 3), v(vT)))
    A('v_lshl_or_b32 %s, %s, 1, %s' % (v(vT + 4), v(vT + 4), v(vT + 2)))
    A('v_bfe_u32 %s, %s, 1, 1' % (v(vT + 5), v(vLane)))
    A('v_lshl_or_b32 %s, %s, 2, %s' % (v(vT + 4), v(vT + 5), v(vT + 4)))
    A('v_lshlrev_b32 %s, 4, %s' % (v(vT + 4), v(vT + 4)))
    A('v_lshl_add_u32 %s, %s, 7, %s' % (v(vT + 4), v(vT + 1), v(vT + 4)))
    A('s_lshl_b32 %s, %s, 16' % (s(sT1), s(sCh)))
    A('s_add_u32 %s, %s, %d' % (s(sT1), s(sT1), PH0))
    A('s_lshl_b32 %s, %s, 12' % (s(sT0), s(sJ)))
    A('s_add_u32 %s, %s, %s' % (s(sT0), s(sT0), s(sT1)))
    A('v_add_u32 %s, %s, %s' % (v(vPw), s(sT0), v(vT + 4)))
    A('v_bfe_u32 %s, %s, 4, 1' % (v(vT + 4), v(vLane)))
    A('v_xor_b32 %s, %s, %s' % (v(vT + 4), v(vT + 4), v(vT + 3)))
    A('v_xor_b32 %s, %s, %s' % (v(vT + 2), v(vT + 2), v(vT)))
    A('v_lshl_or_b32 %s, %s, 1, %s' % (v(vT + 4), v(vT + 2), v(vT + 4)))
    A('v_bfe_u32 %s, %s, 3, 1' % (v(vT + 2), v(vLane)))
    A('v_xor_b32 %s, %s, %s' % (v(vT + 2), s(sRg), v(vT + 2)))
    A('v_lshl_or_b32 %s, %s, 2, %s' % (v(vT + 4), v(vT + 2), v(vT + 4)))
    A('v_lshl_or_b32 %s, %s, 1, %s' % (v(vT + 4), v(vT + 4), v(vT + 5)))
    A('v_lshlrev_b32 %s, 3, %s' % (v(vT + 4), v(vT + 4)))
    A('v_bfe_u32 %s, %s, 2, 2' % (v(vT + 2), v(vLane)))
    A('v_lshl_add_u32 %s, %s, 2, %s' % (v(vT + 2), v(vT), v(vT + 2)))
    A('v_lshl_add_u32 %s, %s, 7, %s' % (v(vT + 4), v(vT + 2), v(vT + 4)))
    A('s_lshl_b32 %s, %s, 13' % (s(sT0), s(sRg)))
    A('s_add_u32 %s, %s, %s' % (s(sT0), s(sT0), s(sT1)))
    A('v_add_u32 %s, %s, %s' % (v(vPr), s(sT0), v(vT + 4)))
    A('s_lshl_b32 %s, %s, 13' % (s(sT1), s(sCh)))
    A('s_add_u32 %s, %s, %d' % (s(sT1), s(sT1), VB))
    A('s_lshl_b32 %s, %s, 11' % (s(sT0), s(sJ)))
    A('s_add_u32 %s, %s, %s' % (s(sT0), s(sT0), s(sT1)))
    A('v_add_u32 %s, %s, %s' % (v(vVw), s(sT0), v(vL16)))
    A('s_mul_i32 %s, %s, %d' % (s(sT0), s(sRg), 4096 + 256))
    A('s_add_u32 %s, %s, %s' % (s(sT0), s(sT0), s(sT1)))
    A('v_add_u32 %s, %s, %s' % (v(vT + 2), s(sT0), v(vL16)))
    A('s_lshl_b32 %s, %s, 7' % (s(sT0), s(sRg)))
    A('s_add_u32 %s, %s, %d' % (s(sT0), s(sT0), TS))
    A('v_lshl_add_u32 %s, %s, 4, %s' % (v(vT + 3), v(vT), s(sT0)))
    A('v_cmp_gt_u32 vcc, 16, %s' % v(vT + 1))
    A('v_cndmask_b32 %s, %s, %s, vcc' % (v(vVr), v(vT + 3), v(vT + 2)))
    A('v_mov_b32 %s, 1024' % v(vT + 2))
    A('v_cndmask_b32 %s, 32, %s, vcc' % (v(vSt), v(vT + 2)))
    A('v_lshl_add_u32 %s, %s, 4, %s' % (v(vT + 2), v(vT), v(vT + 1)))
    A('s_lshl_b32 %s, %s, 9' % (s(sT0), s(sRb)))
    A('v_lshl_add_u32 %s, %s, 4, %s' % (v(vT + 2), v(vT + 2), s(sT0)))
    A('v_mov_b32 %s, 0x%x' % (v(vT + 4), OOB))
    A('v_cndmask_b32 %s, %s, %s, vcc' % (v(vPo), v(vT + 4), v(vT + 2)))
    A('s_lshl_b32 %s, %s, 5' % (s(sT0), s(sRb)))
    A('s_add_u32 %s, %s, 8192' % (s(sT0), s(sT0)))
    A('v_lshl_add_u32 %s, %s, 4, %s' % (v(vT + 2), v(vT), s(sT0)))
    A('v_cmp_eq_u32 vcc, 16, %s' % v(vT + 1))
    A('v_cndmask_b32 %s, %s, %s, vcc' % (v(vPo), v(vPo), v(vT + 2)))
    A('s_lshl_b32 %s, %s, 1' % (s(sT0), s(sG)))
    A('v_add_u32 %s, %s, %s' % (v(vT + 2), s(sT0), v(vLane)))
    A('v_mul_u32_u24 %s, 43, %s' % (v(vT + 3), v(vT + 2)))
    A('v_lshrrev_b32 %s, 7, %s' % (v(vT + 3), v(vT + 3)))
    A('v_mul_u32_u24 %s, %d, %s' % (v(vT + 3), 128 - 24, v(vT + 3)))
    A('v_lshl_add_u32 %s, %s, 3, %s' % (v(vT + 2), v(vT + 2), v(vT + 3)))
    A('v_cmp_gt_u32 vcc, 2, %s' % v(vLane))
    A('v_cndmask_b32 %s, %s, %s, vcc' % (v(vF2), v(vT + 4), v(vT + 2)))
    if OPT['warm'] == 1:
        A('v_lshrrev_b32 %s, 2, %s' % (v(vT + 2), v(vT + 1)))
        A('v_and_b32 %s, 3, %s' % (v(vT + 3), v(vLane)))
        A('v_lshlrev_b32 %s, 2, %s' % (v(vT + 3), v(vT + 3)))
        A('v_lshl_add_u32 %s, %s, 7, %s' % (v(vT + 2), v(vT + 2), v(vT + 3)))
        A('v_lshl_add_u32 %s, %s, 15, %s' % (v(vT + 2), v(vT), v(vT + 2)))
        A('s_lshr_b32 %s, s2, 3' % s(sT0))
        A('s_lshl_b32 %s, %s, 10' % (s(sT0), s(sT0)))
        A('v_add_u32 %s, %s, %s' % (v(vWm), s(sT0), v(vT + 2)))
        A('s_lshl_b32 %s, %s, 18' % (s(sO[3]), s(sJ)))
        A('s_mul_i32 %s, %s, %d' % (s(sO[4]), s(sJ), 3 * 32768))
        A('s_lshl_b32 %s, %s, 17' % (s(sO[5]), s(sJ)))
    A('s_mul_i32 %s, %s, 768' % (s(sO[2]), s(sCh)))
    A('s_waitcnt lgkmcnt(0)')
    srd(A, SWS, 36, WS_SIZE)
    srd(A, SX, 16, 2048 * 1024)
    srd(A, SW2, 30, 1376 * 1024)
    srd(A, SWO, 22, 512 * 1024)
    stamp(A, 0)
    if OPT['prio']:
        A('s_setprio %d' % OPT['prio'])
    A('s_cmp_eq_u32 %s, 1' % s(sTyp))
    A.branch('s_cbranch_scc1 CX_START')

    def mfma(d, a_, b_, c):
        return 'v_mfma_f32_32x32x16_bf16 %s, %s, %s, %s' % (v(d, 16), v(a_, 4), v(b_, 4), v(d, 16) if c else '0')
    def frags(t):
        if t >= 32:
            return []
        st, k = divmod(t, 4)
        sl = st & 3
        tg = 'f%d' % t
        def wf(u):
            return [('ds_read_b64_tr_b16 %s, %s offset:%d' % (v(vWf + 8 * (t % 3) + 4 * u + 2 * hh, 2), v(vWa), 16384 * sl + 8192 * u + 2048 * k + 512 * hh), tg) for hh in range(2)]
        xf = [('ds_read_b128 %s, %s offset:%d' % (v(vX + 4 * t, 4), v(vXo + k), 16384 * sl), tg),
              ('ds_read_b128 %s, %s offset:%d' % (v(vXf + 4 * (t % 3), 4), v(vXt + k), 16384 * sl), tg)]
        return wf(0) + xf + wf(1)
    def softmax(D, P, M, rs=None):
        L = []
        L.append('v_max3_f32 %s, %s, %s, %s' % (v(M), v(D), v(D + 1), v(D + 2)))
        L.append('v_max3_f32 %s, %s, %s, %s' % (v(M + 1), v(D + 3), v(D + 4), v(D + 5)))
        L.append('v_max3_f32 %s, %s, %s, %s' % (v(M + 2), v(D + 6), v(D + 7), v(D + 8)))
        L.append('v_max3_f32 %s, %s, %s, %s' % (v(M + 3), v(D + 9), v(D + 10), v(D + 11)))
        L.append('v_max3_f32 %s, %s, %s, %s' % (v(M), v(M), v(D + 12), v(D + 13)))
        L.append('v_max3_f32 %s, %s, %s, %s' % (v(M + 1), v(M + 1), v(D + 14), v(D + 15)))
        L.append('v_max3_f32 %s, %s, %s, %s' % (v(M), v(M), v(M + 1), v(M + 2)))
        L.append('v_max_f32 %s, %s, %s' % (v(M), v(M), v(M + 3)))
        L.append('v_mul_f32 %s, 0x%x, %s' % (v(M), LOG2E | 0x80000000, v(M)))
        for i in range(8):
            L.append('v_pk_fma_f32 %s, %s, %s, %s op_sel_hi:[1,1,0]' % (v(D + 2 * i, 2), v(D + 2 * i, 2), s(sL2, 2), v(M, 2)))
        for i in range(16):
            L.append('v_exp_f32 %s, %s' % (v(D + i), v(D + i)))
        L.append('v_pk_add_f32 %s, %s, %s' % (v(M, 2), v(D, 2), v(D + 2, 2)))
        L.append('v_pk_add_f32 %s, %s, %s' % (v(M + 2, 2), v(D + 4, 2), v(D + 6, 2)))
        L.append('v_pk_add_f32 %s, %s, %s' % (v(M, 2), v(M, 2), v(D + 8, 2)))
        L.append('v_pk_add_f32 %s, %s, %s' % (v(M + 2, 2), v(M + 2, 2), v(D + 10, 2)))
        L.append('v_pk_add_f32 %s, %s, %s' % (v(M, 2), v(M, 2), v(D + 12, 2)))
        L.append('v_pk_add_f32 %s, %s, %s' % (v(M + 2, 2), v(M + 2, 2), v(D + 14, 2)))
        L.append('v_pk_add_f32 %s, %s, %s' % (v(M, 2), v(M, 2), v(M + 2, 2)))
        L.append('v_add_f32 %s, %s, %s' % (v(M), v(M), v(M + 1)))
        L.append('v_rcp_f32 %s, %s' % (v(M), v(M)))
        if rs is not None:
            L.append('v_mul_f32 %s, %s, %s' % (v(M), v(M), v(rs)))
        for i in range(8):
            L.append('v_pk_mul_f32 %s, %s, %s op_sel_hi:[1,0]' % (v(D + 2 * i, 2), v(D + 2 * i, 2), v(M, 2)))
        for i in range(8):
            L.append('v_cvt_pk_bf16_f32 %s, %s, %s' % (v(P + i), v(D + 2 * i), v(D + 2 * i + 1)))
        return L
    def pack(acc, P):
        for i in range(8):
            A('v_cvt_pk_bf16_f32 %s, %s, %s' % (v(P + i), v(acc + 2 * i), v(acc + 2 * i + 1)))
    def scale_pack(acc, P, rs):
        for i in range(8):
            A('v_pk_mul_f32 %s, %s, %s op_sel_hi:[1,0]' % (v(acc + 2 * i, 2), v(acc + 2 * i, 2), v(rs, 2)))
        pack(acc, P)
    def zipl(a_, b_):
        return [x for pr in zip(a_, b_) for x in pr]
    def mish(acc, r, E, V, so, tag):
        mv = OPT['mv']
        for i in range(8):
            if mv & 1:
                A('v_mul_f32 %s, %s, %s' % (v(acc + 2 * i), v(acc + 2 * i), v(vR[r])))
                A('v_mul_f32 %s, %s, %s' % (v(acc + 2 * i + 1), v(acc + 2 * i + 1), v(vR[r])))
            else:
                A('v_pk_mul_f32 %s, %s, %s op_sel_hi:[1,0]' % (v(acc + 2 * i, 2), v(acc + 2 * i, 2), v(vR[r], 2)))
        for i in range(16):
            A('v_exp_f32 %s, %s' % (v(E + i), v(acc + i)))
        for i in range(8):
            if mv & 2:
                A('v_fma_f32 %s, %s, 0.5, 1.0' % (v(V + 2 * i), v(E + 2 * i)))
                A('v_fma_f32 %s, %s, 0.5, 1.0' % (v(V + 2 * i + 1), v(E + 2 * i + 1)))
            else:
                A('v_pk_fma_f32 %s, %s, %s, %s op_sel:[0,0,1] op_sel_hi:[1,0,1]' % (v(V + 2 * i, 2), v(E + 2 * i, 2), s(sHO, 2), s(sHO, 2)))
        for i in range(8):
            if mv & 4:
                A('v_fma_f32 %s, %s, %s, 1.0' % (v(V + 2 * i), v(E + 2 * i), v(V + 2 * i)))
                A('v_fma_f32 %s, %s, %s, 1.0' % (v(V + 2 * i + 1), v(E + 2 * i + 1), v(V + 2 * i + 1)))
            else:
                A('v_pk_fma_f32 %s, %s, %s, %s op_sel:[0,0,1] op_sel_hi:[1,1,1]' % (v(V + 2 * i, 2), v(E + 2 * i, 2), v(V + 2 * i, 2), s(sHO, 2)))
        for i in range(16):
            A('v_rcp_f32 %s, %s' % (v(V + i), v(V + i)))
        for i in range(8):
            if mv & 8:
                A('v_fma_f32 %s, -%s, %s, %s' % (v(acc + 2 * i), v(acc + 2 * i), v(V + 2 * i), v(acc + 2 * i)))
                A('v_fma_f32 %s, -%s, %s, %s' % (v(acc + 2 * i + 1), v(acc + 2 * i + 1), v(V + 2 * i + 1), v(acc + 2 * i + 1)))
            else:
                A('v_pk_fma_f32 %s, %s, %s, %s neg_lo:[1,0,0] neg_hi:[1,0,0]' % (v(acc + 2 * i, 2), v(acc + 2 * i, 2), v(V + 2 * i, 2), v(acc + 2 * i, 2)))
        pack(acc, acc)
        A('buffer_store_dwordx4 %s, %s, %s, %s offen sc1' % (v(acc, 4), v(vL16), s(SWS, 4), s(so)), tag=tag)
        A('buffer_store_dwordx4 %s, %s, %s, %s offen offset:2048 sc1' % (v(acc + 4, 4), v(vL16), s(SWS, 4), s(so)), tag=tag)
    def flag(tag, so, off=0, vo=vFo):
        A.wait_vm(tag)
        A('buffer_store_dword %s, %s, %s, %s offen offset:%d sc1' % (v(vNon), v(vo), s(SWS, 4), s(so), off))
    def sign_flip(ph, n, t):
        A('v_bfe_u32 %s, %s, 2, 1' % (v(t), v(vLane)))
        A('v_mul_u32_u24 %s, 0x8000, %s' % (v(t), v(t)))
        A('v_lshl_or_b32 %s, %s, 16, %s' % (v(t), v(t), v(t)))
        A.wait_lg('ph')
        for i in range(n):
            A('v_xor_b32 %s, %s, %s' % (v(ph + i), v(t), v(ph + i)))

    def pass_b(X, hooks):
        vBa = 216
        vAp, vBp = 0, 8
        if OPT['prio']:
            A('s_setprio %d' % OPT['prio'])
        A('s_lshl_b32 %s, %s, 6' % (s(sT0), s(sCh)))
        A('v_xor_b32 %s, %s, %s' % (v(vBa), s(sT0), v(vWa)))
        A('v_add_u32 %s, %d, %s' % (v(vBa), L_E - L_W, v(vBa)))
        A('v_xor_b32 %s, 64, %s' % (v(vBa + 1), v(vBa)))
        A('v_mov_b32 %s, %d' % (v(vBa + 2), FL_P3))
        lds_wait(A, 'CP3%d' % X, v(vBa + 2), 4, 1, 220)
        win = [L_E]
        def fr(t):
            if t >= 32:
                return []
            st, k = divmod(t, 4)
            L = []
            w = P3B[st] & ~0xffff
            if w != win[0]:
                for uu in range(2):
                    L.append('v_add_u32 %s, %d, %s' % (v(vBa + uu), w - win[0], v(vBa + uu)))
                win[0] = w
            for uu in range(2):
                for hh in range(2):
                    L.append(('ds_read_b64_tr_b16 %s, %s offset:%d' % (v(vWf + 8 * (t % 3) + 4 * uu + 2 * hh, 2), v(vBa + uu), P3B[st] - w + 2048 * k + 512 * hh), 'g%d' % t))
            return L
        emit(A, fr(0))
        emit(A, fr(1))
        for t in range(32):
            nxt = fr(t + 2)
            if t == 28:
                nxt += ['v_mov_b32 %s, 0' % v(vAp + i) for i in range(12) if i & 3]
            if t == 30:
                nxt = [('ds_read_b32 %s, %s offset:%d' % (v(vAp + 4 * uu), v(vTa), 768 * uu + 512), 'tb') for uu in range(2)]
                nxt += [('ds_read_b32 %s, %s' % (v(vBp), v(vTb)), 'tb')]
            if t == 31 and not X:
                nxt = [('ds_read_b64_tr_b16 %s, %s offset:%d' % (v(16 + 4 * h + 2 * hh, 2), v(vPa), 512 * h + 256 * hh), 'ph') for h in range(4) for hh in range(2)]
            A.wait_lg('g%d' % t)
            hf = (len(nxt) + 1) // 2
            for uu in range(2):
                A(mfma(ACC(0, uu), vWf + 8 * (t % 3) + 4 * uu, vX + 4 * t, t > 0))
                emit(A, nxt[:hf] if uu == 0 else nxt[hf:])
            if t in hooks:
                hooks[t]()
        A('s_lshl_b32 %s, %s, 2' % (s(sT0), s(sJ)))
        A('s_add_u32 %s, %s, %d' % (s(sT0), s(sT0), FL_PB))
        A('v_mov_b32 %s, %s' % (v(vBa), s(sT0)))
        A('v_mov_b32 %s, 2' % v(vBa + 1))
        A.wait_lg('tb')
        A('ds_write_b32 %s, %s' % (v(vBa), v(vBa + 1)))
        for uu in range(2):
            A(mfma(ACC(0, uu), vAp + 4 * uu, vBp, True))
        if OPT['prio']:
            A('s_setprio 0')
        stamp(A, 4)

    def wo_dma(X):
        t = 216
        A('v_mov_b32 %s, %d' % (v(t + 8), FL_P3))
        w2_voff(A, t + 9, t)
        lds_wait(A, 'CWA%d' % X, v(t + 8), 4, 2, t)
        lds_wait(A, 'CWB%d' % X, v(t + 8) + ' offset:%d' % (FL_PB - FL_P3), 4, 2, t)
        for p in range(4):
            A('s_lshl_b32 %s, %s, 17' % (s(sO[0]), s(sJ)))
            if p:
                A('s_add_u32 %s, %s, %d' % (s(sO[0]), s(sO[0]), p * 32768))
            emit(A, quad((t + 9, t + 9), SWO, 16384 * (p & 1) + 65536 * (p >> 1), 'wo'))

    vAp, vBp, vPh = [208, 212], [224, 228], 192
    for X in (0, 1):
        A.vm = []; A.lg = []
        if X:
            A.label('CX_START')
        A('s_barrier')
        stamp(A, 1)
        emit(A, frags(0))
        emit(A, frags(1))
        for t in range(32):
            st, k = divmod(t, 4)
            nxt = frags(t + 2)
            if t == 30:
                A('v_add_u32 %s, %s, %s' % (v(vAp[0]), s(sO[2]), v(vTa)))
                A('v_xor_b32 %s, 256, %s' % (v(vBp[1]), v(vTb)))
                A('v_xor_b32 %s, 128, %s' % (v(vR[1]), v(vTr)))
                A('v_mov_b32 %s, %d' % (v(vNon), TN))
                nxt = [('ds_read_b32 %s, %s offset:256' % (v(vAp[1]), v(vAp[0])), 'tb'),
                       ('ds_read_b32 %s, %s' % (v(vAp[0]), v(vAp[0])), 'tb'),
                       ('ds_read_b32 %s, %s' % (v(vBp[0]), v(vTb)), 'tb'),
                       ('ds_read_b32 %s, %s' % (v(vBp[1]), v(vBp[1])), 'tb'),
                       ('ds_read_b32 %s, %s' % (v(vR[0]), v(vTr)), 'tb'),
                       ('ds_read_b32 %s, %s' % (v(vR[1]), v(vR[1])), 'tb'),
                       ('ds_read_b32 %s, %s' % (v(vNon), v(vNon)), 'tb')]
            if t == 31:
                nxt = ['v_mov_b32 %s, 0' % v(b + i) for b in vAp + vBp for i in range(1, 4)]
                if X:
                    nxt = [('ds_read_b64_tr_b16 %s, %s offset:%d' % (v(vPh + 4 * h + 2 * hh, 2), v(vPa), 512 * h + 256 * hh), 'ph') for h in range(2) for hh in range(2)] + nxt
            A.wait_lg('f%d' % t)
            per = (len(nxt) + 2) // 3
            n = 0
            for u in range(2):
                for r in range(2):
                    w_, x_ = vWf + 8 * (t % 3) + 4 * u, (vX + 4 * t if r == 0 else vXf + 4 * (t % 3))
                    if X and u == 1:
                        w_, x_ = x_, w_
                    A(mfma(ACC(u, r), w_, x_, t > 0))
                    if k == 2 and n == 0:
                        A.wait_lg(None)
                        if st in (4, 5, 6, 7):
                            stamp(A, {4: 1, 5: 2, 6: 8, 7: 4}[st], 3)
                        A('s_barrier')
                        if st == 3:
                            stamp(A, 2)
                    WL = [(3, 0, SW2), (3, 4, SW2), (3, 2, SW2), (3, 6, SW2), (4, 34, SW2), (4, 32, SW2), (5, 0, SWO), (5, 2, SWO)]
                    wq = 4 * (t - OPT['wt0']) + n - 3
                    wk = []
                    if OPT['warm'] == 1 and wq >= 0:
                        wk = WL if (OPT['wd'] == 0 and wq == 0) else [WL[wq // OPT['wd']]] if (OPT['wd'] and wq % OPT['wd'] == 0 and wq // OPT['wd'] < 8) else []
                    for base, c_, sr in wk:
                        A('s_add_u32 %s, %s, %d' % (s(sT0), s(sO[base]), c_ * 32768))
                        A('buffer_load_dword %s, %s, %s, %s offen' % (v(vWm + 1), v(vWm), s(sr, 4), s(sT0)), tag='wm')
                    emit(A, nxt[per * n:per * n + per])
                    n += 1
        stamp(A, 3)
        if OPT['prio']:
            A('s_setprio 0')
        A.wait_lg('tb')
        for u in range(2):
            for r in range(2):
                p_, q_ = vAp[u], vBp[r]
                if X and u == 1:
                    p_, q_ = q_, p_
                A(mfma(ACC(u, r), p_, q_, True))
        if not X:
            A('v_mov_b32 %s, %s' % (v(vR0), v(vR[0])))
            for r in range(2):
                A('v_mul_f32 %s, 0x%x, %s' % (v(vR[r]), LOG2E, v(vR[r])))
        A('v_readfirstlane_b32 %s, %s' % (s(sNonce), v(vNon)))
        sOut, sFl = sO[4], sO[5]
        A('s_lshl_b32 %s, %s, 10' % (s(sFl), s(sP2)))
        A('s_add_u32 %s, %s, 0x%x' % (s(sFl), s(sFl), WS_F))
        A('s_mul_i32 %s, %s, %d' % (s(sOut), s(sP2), NU * 4096))
        A('s_lshl_b32 %s, %s, 10' % (s(sT0), s(sCh)))
        A('s_add_u32 %s, %s, %s' % (s(sOut), s(sOut), s(sT0)))
        if not X:
            A('s_lshl_b32 %s, %s, 2' % (s(sT0), s(sG)))
            A('s_add_u32 %s, %s, %s' % (s(sT0), s(sT0), s(sCh)))
            A('s_lshl_b32 %s, %s, 12' % (s(sT0), s(sT0)))
            A('s_add_u32 %s, %s, %s' % (s(sO[0]), s(sOut), s(sT0)))
            A('s_xor_b32 %s, %s, 1024' % (s(sO[1]), s(sO[0])))
            A('s_add_u32 %s, %s, 8192' % (s(SB), s(sO[0])))
            A('s_add_u32 %s, %s, 8192' % (s(SB + 1), s(sO[1])))
            sF2 = sT3
            for dst, g_ in ((sF2, sG), (sFl, sGq)):
                A('s_lshr_b32 %s, %s, 1' % (s(sT0), s(g_)))
                A('s_lshl_b32 %s, %s, 5' % (s(sT0), s(sT0)))
                A('s_and_b32 %s, %s, 1' % (s(sT1), s(g_)))
                A('s_lshl_b32 %s, %s, 1' % (s(sT1), s(sT1)))
                A('s_add_u32 %s, %s, %s' % (s(sT0), s(sT0), s(sT1)))
                A('s_add_u32 %s, %s, %s' % (s(sT0), s(sT0), s(sCh)))
                A('s_lshl_b32 %s, %s, 2' % (s(sT0), s(sT0)))
                A('s_add_u32 %s, %s, %s' % (s(dst), s(sFl), s(sT0)))
            A('s_lshl_b32 %s, %s, 13' % (s(sT0), s(sGq)))
            A('s_add_u32 %s, %s, %s' % (s(sOut), s(sOut), s(sT0)))
            A('s_add_u32 %s, %s, %d' % (s(sOut), s(sOut), 44 * 4096))
            E, V = 192, 208
            mish(ACC(0, 0), 0, E, V, sO[0], 'h1')
            mish(ACC(0, 1), 1, E, V, sO[1], 'h1')
            H2 = OPT['h2']
            if H2 == 0:
                mish(ACC(1, 0), 0, E, V, SB, 'h2')
                flag('h1', sF2)
                mish(ACC(1, 1), 1, E, V, SB + 1, 'h2')
            stamp(A, 8)
            pass_b(0, {OPT['f2']: lambda: flag('h1', sF2) if H2 else flag('h2', sF2, 16)})
            ph, D, P, M = 16, [32, 48, 64, 80], [96, 104, 112, 120], [12, 224]
            sign_flip(ph, 16, M[0])
            for uu in range(2):
                scale_pack(ACC(0, uu), ACC(0, uu), vR0)
                for h in range(2):
                    A(mfma(D[2 * uu + h], ph + 8 * uu + 4 * h, ACC(0, uu) + 4 * h, False))
            vKa, KF = 228, 128
            A('v_and_b32 %s, 31, %s' % (v(vKa), v(vLane)))
            A('v_min_u32 %s, 16, %s' % (v(vKa), v(vKa)))
            A('v_lshrrev_b32 %s, 5, %s' % (v(vKa + 1), v(vLane)))
            A('v_mul_u32_u24 %s, 17, %s' % (v(vKa + 1), v(vKa + 1)))
            A('v_add_lshl_u32 %s, %s, %s, 4' % (v(vKa), v(vKa), v(vKa + 1)))
            A('v_add_u32 %s, %d, %s' % (v(vKa), KVL, v(vKa)))
            A('v_mov_b32 %s, %d' % (v(vKa + 1), FL_KV))
            A('s_add_u32 %s, %s, 4096' % (s(sO[0]), s(sOut)))
            for n in (0, 2):
                emit(A, zipl(softmax(D[n], P[n], M[0]), softmax(D[n + 1], P[n + 1], M[1])))
            if H2 == 1:
                mish(ACC(1, 0), 0, E, V, SB, 'h2')
                mish(ACC(1, 1), 1, E, V, SB + 1, 'h2')
                flag('h2', sF2, 16)
            stamp(A, 1, 2)
            rd = ['ds_read_b128 %s, %s offset:%d' % (v(KF + 8 * n + 4 * c, 4), v(vKa), KVH * n + 544 * c) for n in range(4) for c in range(2)]
            lds_wait(A, 'CKV', v(vKa + 1), 4, 1, 220, rd)
            stamp(A, 2, 2)
            def omf(n):
                for c in range(2):
                    A(mfma(D[n], KF + 8 * n + 4 * c, P[n] + 4 * c, c > 0))
            def ofin(n):
                d = D[n]
                A('v_add_f32 %s, 0x358637bd, %s' % (v(d + 8), v(d + 8)))
                A('v_rcp_f32 %s, %s' % (v(d + 8), v(d + 8)))
                for i in range(8):
                    A('v_mul_f32 %s, %s, %s' % (v(d + i), v(d + i), v(d + 8)))
                for i in range(4):
                    A('v_cvt_pk_bf16_f32 %s, %s, %s' % (v(d + i), v(d + 2 * i), v(d + 2 * i + 1)))
                A('buffer_store_dwordx4 %s, %s, %s, %s offen offset:%d sc1' % (v(d, 4), v(vL16), s(SWS, 4), s(sO[0] if n >> 1 else sOut), 2048 * (n & 1)), tag='o')
            omf(0); omf(1); ofin(0); omf(2); ofin(1); omf(3); ofin(2); ofin(3)
            stamp(A, 8, 2)
            if H2 == 2:
                mish(ACC(1, 0), 0, E, V, SB, 'h2')
            flag('o', sFl, 512)
            stamp(A, 4, 2)
            if H2 == 2:
                mish(ACC(1, 1), 1, E, V, SB + 1, 'h2')
            A('s_lshl_b32 %s, %s, 2' % (s(sT0), s(sJ)))
            A('s_add_u32 %s, %s, %d' % (s(sT0), s(sT0), FL_P3))
            A('v_mov_b32 %s, %s' % (v(vKa), s(sT0)))
            if H2 == 2:
                flag('h2', sF2, 16)
            lds_wait(A, 'CWO', v(vKa), 1, 3, 220)
            A.branch('s_branch C_P2')
        else:
            D, M, vBd, KV = [200, 144, 176, 160], [224, 228], 216, 200
            vEf = 248
            sKp, sKf = sO[0], sO[1]
            for q in range(8):
                if q == 0:
                    A('v_lshlrev_b32 %s, 2, %s' % (v(vBd + 4), v(vSt)))
                elif q == 4:
                    A('v_xor_b32 %s, %s, %s' % (v(vBd + 4), v(vBd + 4), v(vVr)))
                else:
                    A('v_add_u32 %s, %s, %s' % (v(vBd + q), v(vVr if q == 1 else vBd + q - 1), v(vSt)))
            stamp(A, 1, 5)
            sign_flip(vPh, 8, 253)
            stamp(A, 2, 5)
            scale_pack(ACC(0, 0), 128, vR[0])
            A(mfma(D[0], vPh, 128, False))
            scale_pack(ACC(0, 1), 136, vR[1])
            A(mfma(D[1], vPh + 4, 132, False))
            stamp(A, 8, 5)
            for r in range(2):
                pack(ACC(1, r), 160 + 8 * r)
                if r == 0:
                    A('ds_write_b128 %s, %s' % (v(vVw), v(160, 4)))
            A('v_xor_b32 %s, 2048, %s' % (v(253), v(vVw)))
            A(mfma(D[2], vPh, 136, False))
            stamp(A, 4, 5)
            A('s_lshl_b32 %s, %s, 3' % (s(sT0), s(sJ)))
            A('s_add_u32 %s, %s, %d' % (s(sT0), s(sT0), FL_EX))
            A('v_mov_b32 %s, %s' % (v(vEf), s(sT0)))
            A('s_lshl_b32 %s, %s, 1' % (s(sT0), s(sG)))
            A('s_add_u32 %s, %s, %s' % (s(sT0), s(sT0), s(sCh)))
            A('s_lshl_b32 %s, %s, 1' % (s(sT0), s(sT0)))
            A('s_add_u32 %s, %s, %s' % (s(sT0), s(sT0), s(sRg)))
            A('s_mul_i32 %s, %s, %d' % (s(sKp), s(sT0), 2 * KVS))
            A('s_add_u32 %s, %s, 0x%x' % (s(sKp), s(sKp), WS_KVP))
            A('s_add_u32 %s, %s, %d' % (s(sO[2]), s(sKp), KVS))
            A('s_lshl_b32 %s, %s, 5' % (s(sKf), s(sT0)))
            A('s_add_u32 %s, %s, %s' % (s(sKf), s(sKf), s(sRb)))
            A('s_lshl_b32 %s, %s, 2' % (s(sKf), s(sKf)))
            A('s_add_u32 %s, %s, 0x%x' % (s(sKf), s(sKf), WS_KF))
            stamp(A, 1, 1)
            stamp(A, 1, 4)
            stamp(A, 5, 5)
            def spread(base, ins, first, step):
                L = list(base)
                for n_, it in reversed(list(enumerate(ins))):
                    L[first + step * n_:first + step * n_] = it
                return L
            def pwr(r, h, e):
                x_ = 4096 * r + 64 * h + 16 * e
                tmp = 128 + 2 * h + e
                return (['v_xor_b32 %s, %d, %s' % (v(tmp), x_, v(vPw))] if x_ else []) + ['ds_write_b128 %s, %s' % (v(tmp if x_ else vPw), v(D[2 * r + h] + 4 * e, 4))]
            sm = [softmax(D[n], D[n], M[n & 1], vR[n >> 1]) for n in range(4)]
            vw = [['ds_write_b128 %s, %s offset:%d' % (v(253 if n >> 1 else vVw), v(160 + 4 * n, 4), 1024 * (n & 1))] for n in range(1, 4)]
            emit(A, spread(zipl(sm[0], sm[1]), vw + [[mfma(D[3], vPh + 4, 140, False)]], 2, 20))
            stamp(A, 2, 4)
            emit(A, spread(zipl(sm[2][:-16], sm[3][:-16]), [pwr(0, h, e) for e in range(2) for h in range(2)], 0, 18))
            stamp(A, 4, 4)
            for n in (2, 3):
                emit(A, sm[n][-16:-12] + sm[n][-8:-4] + pwr(1, n & 1, 0) + sm[n][-12:-8] + sm[n][-4:] + pwr(1, n & 1, 1))
            stamp(A, 5, 4)
            A('ds_write_b32 %s, %s' % (v(vEf), v(vEf)))
            stamp(A, 2, 1)
            def kvf(q):
                L = [('ds_read_b64_tr_b16 %s, %s offset:%d' % (v(128 + 4 * q + 2 * hh, 2), v(vPr), 2048 * (q & 3) + 1024 * hh), 'q%d' % q) for hh in range(2)]
                return L + [('ds_read_b128 %s, %s' % (v(160 + 4 * q, 4), v(vBd + q if q else vVr)), 'q%d' % q)]
            for q in range(4):
                emit(A, kvf(q))
            A('v_xor_b32 %s, %d, %s' % (v(vEf), FL_EX ^ (FL_EX + 16), v(vEf)))
            A('v_xor_b32 %s, 8192, %s' % (v(vPr), v(vPr)))
            lds_wait(A, 'CEX', v(vEf), 1, 1, M[0])
            stamp(A, 6, 4)
            for q in range(8):
                A.wait_lg('q%d' % q)
                A(mfma(KV, 128 + 4 * q, 160 + 4 * q, q > 0))
                if q < 4:
                    emit(A, kvf(q + 4))
            A('s_lshl_b32 %s, %s, 13' % (s(sT0), s(sG)))
            A('s_add_u32 %s, %s, %s' % (s(sOut), s(sOut), s(sT0)))
            A('s_add_u32 %s, %s, %d' % (s(sOut), s(sOut), 32 * 4096))
            A('s_add_u32 %s, %s, 4096' % (s(sO[3]), s(sOut)))
            A('s_lshl_b32 %s, %s, 2' % (s(sT0), s(sCh)))
            A('s_add_u32 %s, %s, %s' % (s(sFl), s(sFl), s(sT0)))
            A('s_lshl_b32 %s, %s, 2' % (s(sT0), s(sJ)))
            A('s_add_u32 %s, %s, %d' % (s(sT0), s(sT0), FL_KV))
            A('v_mov_b32 %s, %s' % (v(vEf), s(sT0)))
            A('v_mul_f32 %s, 0x%x, %s' % (v(vR[0]), LOG2E, v(vR[0])))
            for c in range(2):
                for i in range(4):
                    A('v_cvt_pk_bf16_f32 %s, %s, %s' % (v(160 + 4 * c + i), v(KV + 8 * c + 2 * i), v(KV + 8 * c + 2 * i + 1)))
                A('buffer_store_dwordx4 %s, %s, %s, %s offen sc1' % (v(160 + 4 * c, 4), v(vPo), s(SWS, 4), s(sO[2] if c else sKp)), tag='kp')
            stamp(A, 8)
            stamp(A, 7, 4)
            def kflag():
                flag('kp', sKf)
                A('ds_write_b32 %s, %s' % (v(vEf), v(vEf)))
            A('s_cmp_ge_u32 %s, 6' % s(sG))
            A.branch('s_cbranch_scc1 CX_NOH')
            vm1 = list(A.vm)
            pass_b(1, {OPT['f3']: kflag})
            mish(ACC(0, 0), 0, 16, 32, sOut, 'h')
            mish(ACC(0, 1), 0, 16, 32, sO[3], 'h')
            stamp(A, 1, 2)
            flag('h', sFl, 32, vF2)
            A.branch('s_branch CX_WO')
            A.label('CX_NOH')
            A.vm = vm1
            kflag()
            A('s_lshl_b32 %s, %s, 2' % (s(sT0), s(sJ)))
            A('s_add_u32 %s, %s, %d' % (s(sT0), s(sT0), FL_PB))
            A('v_mov_b32 %s, %s' % (v(M[0]), s(sT0)))
            A('v_mov_b32 %s, 2' % v(M[0] + 1))
            A('ds_write_b32 %s, %s' % (v(M[0]), v(M[0] + 1)))
            A.label('CX_WO')
            A.vm = []; A.lg = []
            wo_dma(1)
    A.label('C_P2')
    A.vm = []; A.lg = []
    stamp(A, 5)
    vAcc, vW, vO = 0, 64, 128
    vA0, vFl, vFv, vT = 232, 236, 237, 216
    sFl, sAct = sO[0], sO[1]
    A('v_lshlrev_b32 %s, 2, %s' % (v(vFl), v(vLane)))
    A('v_and_b32 %s, 0x7c, %s' % (v(vFl), v(vFl)))
    A('s_lshl_b32 %s, %s, 3' % (s(sFl), s(sRb2)))
    A('s_add_u32 %s, %s, %s' % (s(sFl), s(sFl), s(sWave)))
    A('s_lshl_b32 %s, %s, 7' % (s(sFl), s(sFl)))
    A('s_add_u32 %s, %s, 0x%x' % (s(sFl), s(sFl), WS_F))
    xres(A, 240, 244)
    qload = 'buffer_load_dword %s, %s, %s, %s offen sc1' % (v(vFv), v(vFl), s(SWS, 4), s(sFl))
    A(qload, tag='fl')
    A('s_mul_i32 %s, %s, %d' % (s(sAct), s(sRb2), NU * 4096))
    A('s_lshl_b32 %s, %s, 14' % (s(sT0), s(sJ)))
    A('s_add_u32 %s, %s, %s' % (s(sAct), s(sAct), s(sT0)))
    A('s_add_u32 %s, %s, %d' % (s(sAct), s(sAct), 44 * 4096))
    tr_addr(A, vA0, vT, 4, None)
    A('s_lshl_b32 %s, %s, 12' % (s(sT2), s(sJ)))
    A('v_add_u32 %s, %s, %s' % (v(vA0), s(sT2), v(vA0)))
    A('v_xor_b32 %s, 64, %s' % (v(vA0 + 1), v(vA0)))
    A('v_add_u32 %s, %d, %s' % (v(vA0 + 2), L_W, v(vA0)))
    A('v_add_u32 %s, %d, %s' % (v(vA0 + 3), L_W, v(vA0 + 1)))
    wr = reduce_write(A, vAcc, 192, sT2)
    A.wait_vm('fl')
    for p in range(4):
        for c in range(2):
            for nt in range(2):
                for hh in range(2):
                    A('ds_read_b64_tr_b16 %s, %s offset:%d' % (v(vW + 16 * p + 8 * c + 4 * nt + 2 * hh, 2), v(vA0 + 2 * (p >> 1) + nt), 16384 * (p & 1) + 2048 * c + 1024 * hh))
    poll(A, 'CQ', qload, vFv, '0xf')
    stamp(A, 6)
    for p in range(4):
        for q in range(4):
            A('buffer_load_dwordx4 %s, %s, %s, %s offen offset:%d sc1' % (v(vO + 16 * p + 4 * q, 4), v(vL16), s(SWS, 4), s(sAct), 1024 * q), tag='o%d' % (2 * p + (q >> 1)))
        if p < 3:
            A('s_add_u32 %s, %s, 4096' % (s(sAct), s(sAct)))
    A.wait_lg(None)
    for p in range(4):
        for c in range(2):
            A.wait_vm('o%d' % (2 * p + c))
            for nt in range(2):
                for rt in range(2):
                    A(mfma(vAcc + 16 * (2 * nt + rt), vW + 16 * p + 8 * c + 4 * nt, vO + 16 * p + 8 * c + 4 * rt, p or c))
    emit(A, wr)

def gen_final(A):
    A.label('F_START')
    vOo, vX, t = 240, 244, 72
    srd(A, SO, 32, 2048 * 1024)
    A('s_and_b32 %s, %s, 3' % (s(sT0), s(sWave)))
    A('s_lshl_b32 %s, %s, 10' % (s(sT0), s(sT0)))
    A('s_lshr_b32 %s, %s, 2' % (s(sT1), s(sWave)))
    A('s_lshl_b32 %s, %s, 14' % (s(sT1), s(sT1)))
    A('s_add_u32 %s, %s, %s' % (s(sT0), s(sT0), s(sT1)))
    A('v_lshrrev_b32 %s, 3, %s' % (v(t), v(vLane)))
    A('v_bfe_u32 %s, %s, 2, 1' % (v(t + 1), v(vLane)))
    A('v_and_b32 %s, 3, %s' % (v(t + 2), v(vLane)))
    A('v_lshlrev_b32 %s, 1, %s' % (v(t + 2), v(t + 2)))
    A('v_xor_b32 %s, %s, %s' % (v(t + 2), v(t + 2), v(t)))
    A('v_xor_b32 %s, %s, %s' % (v(t + 2), v(t + 2), v(t + 1)))
    A('v_lshlrev_b32 %s, 4, %s' % (v(t + 2), v(t + 2)))
    A('v_lshl_add_u32 %s, %s, 7, %s' % (v(t + 2), v(t), v(t + 2)))
    A('v_add_u32 %s, %s, %s' % (v(t + 2), s(sT0), v(t + 2)))
    A('v_lshl_add_u32 %s, %s, 16, %s' % (v(t + 3), v(t + 1), v(t + 2)))
    A('v_xor_b32 %s, 16, %s' % (v(t + 4), v(t + 3)))
    A('s_waitcnt lgkmcnt(0)')
    A.lg = []
    A('s_barrier')
    stamp(A, 7)
    R = 96
    for g in range(2):
        for p in range(4):
            for hh in range(2):
                A('ds_read_b128 %s, %s offset:%d' % (v(R + 32 * g + 8 * p + 4 * hh, 4), v(t + 3 + hh), 32768 * g + 4096 * p), tag='r%d' % g)
    A('s_waitcnt vmcnt(0)')
    X = 80
    for i in range(4):
        A('v_lshlrev_b32 %s, 16, %s' % (v(X + 2 * i), v(vX + i)))
        A('v_and_b32 %s, 0xffff0000, %s' % (v(X + 2 * i + 1), v(vX + i)))
    for g in range(2):
        A.wait_lg('r%d' % g)
        r = R + 32 * g
        for i in range(4):
            A('v_pk_add_f32 %s, %s, %s' % (v(r + 2 * i, 2), v(r + 2 * i, 2), v(r + 8 + 2 * i, 2)))
            A('v_pk_add_f32 %s, %s, %s' % (v(r + 16 + 2 * i, 2), v(r + 16 + 2 * i, 2), v(r + 24 + 2 * i, 2)))
        for i in range(4):
            A('v_pk_add_f32 %s, %s, %s' % (v(r + 2 * i, 2), v(r + 2 * i, 2), v(r + 16 + 2 * i, 2)))
        for i in range(4):
            A('v_pk_add_f32 %s, %s, %s' % (v(X + 2 * i, 2), v(X + 2 * i, 2), v(r + 2 * i, 2)))
    for i in range(4):
        A('v_cvt_pk_bf16_f32 %s, %s, %s' % (v(X + i), v(X + 2 * i), v(X + 2 * i + 1)))
    A('buffer_store_dwordx4 %s, %s, %s, %s offen%s' % (v(X, 4), v(vOo), s(SO, 4), s(6), {0: '', 1: ' sc1', 2: ' nt', 3: ' sc0 sc1'}[OPT['ost']]))
    if OPT['stamps']:
        A('s_waitcnt vmcnt(0)')
        A('%s s[14:15]' % ('s_memtime' if OPT['clk'] else 's_memrealtime'))
        A('s_waitcnt lgkmcnt(0)')
        A('s_lshl_b32 %s, s2, 3' % s(sT2))
        A('s_add_u32 %s, %s, %s' % (s(sT2), s(sT2), s(sWave)))
        A('s_lshl_b32 %s, %s, 6' % (s(sT2), s(sT2)))
        A('s_add_u32 %s, %s, 0x%x' % (s(sT2), s(sT2), WS_STAMP))
        A('v_mov_b32 %s, 0' % v(1))
        for i, r in enumerate(STREG + [14]):
            A('v_mov_b32 %s, %s' % (v(0), s(r)))
            A('buffer_store_dword %s, %s, %s, %s offen offset:%d' % (v(0), v(1), s(SWS, 4), s(sT2), 4 * i))
    A.label('L_END')
    A('s_endpgm')

def main():
    body = gen()
    out = []
    out.append('; @launch grid=(256,1,1) block=(512,1,1) lds=163840')
    out.append('.amdgcn_target "amdgcn-amd-amdhsa--gfx950"')
    out.append('.text')
    out.append('.globl %s_kernel' % NAME)
    out.append(body)
    out.append('.section .rodata,"a"')
    out.append('.p2align 6')
    out.append('''.amdhsa_kernel %s_kernel
  .amdhsa_next_free_vgpr 256
  .amdhsa_next_free_sgpr 102
  .amdhsa_accum_offset 256
  .amdhsa_group_segment_fixed_size 0
  .amdhsa_kernarg_size 88
  .amdhsa_user_sgpr_count 2
  .amdhsa_user_sgpr_kernarg_segment_ptr 1
  .amdhsa_system_sgpr_workgroup_id_x 1
.end_amdhsa_kernel
''' % NAME)
    open(sys.argv[1], 'w').write('\n'.join(out))

main()
```

```python
import sys
from asmlib import Asm, v, a, s

NAME = 'parallel_sum__linear_kernel_hedgehog__dense_activation_mish__prompt'
OPT = dict(fine=0, stamps=0, prio=1, sched=0, slp=8, wt0=12, wd=8, wi=4, warm=1, xmap=1, xq=1, clk=0, ost=1, gi=5, f2=6, ps=4, win=3, f3=0, h2=4, xs=0, mv=0, rot=7, rm=0, kfp=3, hfp=0, h2p=0, ofp=0, rsl=2, pt0=-1, pd=4, nv=1, gp=0, wop=0, wopx=0, cont=1, fk=20, h2q=3, xsp=1, sst=1, oi=8, la=2, lb=3, lax=4, lbx=2, bq=0, h2w=1, xh=1, xmv=15, kpf=0, pr2=0, l8=0, l8x=0, fa=9, xs0=1, fke=1)
for arg in sys.argv[2:]:
    k, val = arg.split('=')
    OPT[k] = int(val, 0)

NU = 60
WS_ACT = 0x000000
WS_KVP = 0x800000
KVS = 9216
WS_KF = 0x8A0000
WS_STAT = 0xC80000
WS_F = 0xC90000
WS_CS = 0xCA0000
WS_STAMP = 0xD00000
WS_SIZE = 0xE00000
KVH = 1088
OOB = 0x7f000000
LOG2E = 0x3fb8aa3b
LN2 = 0x3f317218
BOUND = 0x8000

L_W = 65536
L_E = 131072
def XP(sg): return 16384 * sg
def WP(sg): return L_W + 16384 * sg
TA, TZ, TB, TR, TS, TN, TPH = L_E, L_E + 1536, L_E + 2048, L_E + 3072, L_E + 3584, L_E + 3840, L_E + 6144
KVL = L_E + 24576
P3B = [L_E + 8192, L_E + 16384, XP(0), XP(0) + 8192, WP(0), WP(0) + 8192, XP(1), XP(1) + 8192]
PH0, PH1, VB = XP(3), WP(3), XP(2)
FL_P3, FL_PB, FL_EX, FL_KV, FL_WR = TN + 16, TN + 32, TN + 48, TN + 80, TN + 96

SX, SA, SB, SWS, SD, SW2, SWO, STMP = 40, 44, 48, 56, 60, 64, 68, 72
SO = SA
sNonce, sWave, sRb, sCg, sTyp, sG, sF, sRb2, sCb = 3, 4, 5, 8, 9, 10, 11, 12, 13
sT0, sT1, sT2, sT3 = 14, 15, 76, 77
sO = [78, 79, 80, 81, 82, 83]
sJ = 84
sM = 85
sA, sB = 86, 87
sGq = 39
STREG = [88, 90, 92, 94, 96, 98, 100, 24, 74]

def srd(A, d, lo, size):
    A('s_mov_b32 %s, %s' % (s(d), s(lo)))
    A('s_mov_b32 %s, %s' % (s(d + 1), s(lo + 1)))
    A('s_mov_b32 %s, 0x%x' % (s(d + 2), size))
    A('s_mov_b32 %s, 0x20000' % s(d + 3))

def stamp(A, idx, fine=0):
    over = {0: (), 1: (1, 2), 2: (1, 2, 3, 8, 4), 3: (1, 2, 8, 4, 5, 6), 4: (1, 2, 8, 4, 5, 6, 7), 5: (1, 2, 8, 4, 5, 6, 7), 6: (1, 2, 3, 8), 7: (1, 2, 3, 8, 4, 5), 8: (1, 2, 6, 7)}[OPT['fine']]
    if fine == 0 and idx in over:
        return
    if fine and OPT['fine'] != fine:
        return
    if OPT['stamps']:
        A('%s %s' % ('s_memtime' if OPT['clk'] else 's_memrealtime', s(STREG[idx], 2)))

def emit(A, L):
    for it in L:
        if isinstance(it, tuple):
            A(it[0], tag=it[1])
        else:
            A(it)

class Keep:
    def __init__(self, A): self.A = A
    def __enter__(self): self.sv = list(self.A.vm); self.sl = list(self.A.lg)
    def __exit__(self, *e): self.A.vm = self.sv; self.A.lg = self.sl

def poll(A, name, reload, vreg, mask, cmp_nonce=True, pre=()):
    A('s_mov_b32 %s, 0' % s(sT0))
    A.label(name + '_P')
    emit(A, pre)
    if cmp_nonce:
        A('v_cmp_ne_u32 vcc, %s, %s' % (s(sNonce), v(vreg)))
    else:
        A('v_cmp_eq_u32 vcc, 0, %s' % v(vreg))
    if mask is not None:
        A('s_and_b32 vcc_lo, vcc_lo, %s' % mask)
        A('s_cmp_eq_u32 vcc_lo, 0')
    else:
        A('s_cmp_eq_u64 vcc, 0')
    A.branch('s_cbranch_scc1 %s_G' % name)
    A('s_add_u32 %s, %s, 1' % (s(sT0), s(sT0)))
    A('s_cmp_gt_u32 %s, 0x%x' % (s(sT0), BOUND))
    A.branch('s_cbranch_scc1 %s_G' % name)
    if OPT['slp']:
        A('s_sleep %d' % OPT['slp'])
    with Keep(A):
        emit(A, [reload] if isinstance(reload, str) else reload)
    A('s_waitcnt vmcnt(0)')
    A.branch('s_branch %s_P' % name)
    A.label(name + '_G')

def lds_wait(A, name, addr, n, minval, t, extra=()):
    A('s_mov_b32 %s, 0' % s(sT0))
    A.label(name + '_P')
    with Keep(A):
        A('ds_read_b128 %s, %s' % (v(t, 4), addr) if n == 4 else 'ds_read_b32 %s, %s' % (v(t), addr))
        emit(A, extra)
    A('s_add_u32 %s, %s, 1' % (s(sT0), s(sT0)))
    A('s_waitcnt lgkmcnt(0)')
    A.lg = []
    if n == 4:
        A('v_min3_u32 %s, %s, %s, %s' % (v(t), v(t), v(t + 1), v(t + 2)))
        A('v_min_u32 %s, %s, %s' % (v(t), v(t), v(t + 3)))
    A('v_readfirstlane_b32 %s, %s' % (s(sT1), v(t)))
    A('s_cmp_gt_u32 %s, 0x%x' % (s(sT0), BOUND * 16))
    A('s_cselect_b32 %s, %d, %s' % (s(sT1), minval, s(sT1)))
    A('s_cmp_lt_u32 %s, %d' % (s(sT1), minval))
    A.branch('s_cbranch_scc1 %s_P' % name)

vLane, vL16 = 255, 254
sRt = 38
TAIL = []

def vcheck(A, name, regs, t, reload, back=None):
    if back is None:
        A.raw(name + '_C:')
    r = list(regs)
    if len(r) > 1:
        first = True
        while r:
            if first:
                k = r[:3]; r = r[3:]
            else:
                k = [t] + r[:2]; r = r[2:]
            A(('v_max3_u32 %s, %s, %s, %s' if len(k) == 3 else 'v_max_u32 %s, %s, %s') % tuple([v(t)] + [v(x) for x in k]))
            first = False
        A('v_cmp_eq_u32 vcc, -1, %s' % v(t))
    else:
        A('v_cmp_eq_u32 vcc, -1, %s' % v(r[0]))
    A('s_cbranch_vccnz %s_R' % name)
    A.raw(name + '_K:')
    L = [name + '_R:', 's_add_u32 %s, %s, 1' % (s(sRt), s(sRt)), 's_cmp_gt_u32 %s, 0x%x' % (s(sRt), BOUND), 's_cbranch_scc1 %s_K' % name]
    if OPT['rsl']:
        L.append('s_sleep %d' % OPT['rsl'])
    L += ['s_nop 7', 's_nop 7']
    L += [x[0] if isinstance(x, tuple) else x for x in reload]
    L += ['s_waitcnt vmcnt(0)', 's_branch %s' % (back or name + '_C')]
    TAIL.extend(L)

def tr_addr(A, dst, t, rowhalf, sel):
    A('v_lshrrev_b32 %s, 5, %s' % (v(t), v(vLane)))
    A('v_bfe_u32 %s, %s, 2, 2' % (v(t + 1), v(vLane)))
    A('v_mul_u32_u24 %s, %d, %s' % (v(t), rowhalf, v(t)))
    A('v_add_lshl_u32 %s, %s, %s, 7' % (v(dst), v(t), v(t + 1)))
    A('v_bfe_u32 %s, %s, 3, 1' % (v(t), v(vLane)))
    if sel:
        A('v_xor_b32 %s, %s, %s' % (v(t), sel, v(t)))
    A('v_lshl_add_u32 %s, %s, 6, %s' % (v(dst), v(t), v(dst)))
    A('v_bfe_u32 %s, %s, 4, 1' % (v(t), v(vLane)))
    A('v_lshl_add_u32 %s, %s, 5, %s' % (v(dst), v(t), v(dst)))
    A('v_and_b32 %s, 3, %s' % (v(t), v(vLane)))
    A('v_lshl_add_u32 %s, %s, 3, %s' % (v(dst), v(t), v(dst)))

def selector(A, dst, t):
    A('v_lshrrev_b32 %s, 2, %s' % (v(t), v(vLane)))
    A('v_xor_b32 %s, %s, %s' % (v(t), v(t), v(vLane)))
    A('v_and_b32 %s, 4, %s' % (v(t), v(t)))
    A('v_cmp_eq_u32 vcc, 0, %s' % v(t))
    A('v_mov_b32 %s, 0x3f803f80' % v(t + 1))
    A('v_cndmask_b32 %s, 0, %s, vcc' % (v(dst), v(t + 1)))
    for i in range(1, 4):
        A('v_mov_b32 %s, %s' % (v(dst + i), v(dst)))

def onehot(A, dst, key, t, first=0):
    A('v_mov_b32 %s, 0x3f80' % v(t))
    A('v_mov_b32 %s, 0x3f800000' % v(t + 1))
    for r in range(4):
        A('v_cmp_eq_u32 vcc, %d, %s' % (first + 2 * r, v(key)))
        A('v_cndmask_b32 %s, 0, %s, vcc' % (v(dst + r), v(t)))
        A('v_cmp_eq_u32 vcc, %d, %s' % (first + 2 * r + 1, v(key)))
        A('v_cndmask_b32 %s, %s, %s, vcc' % (v(dst + r), v(dst + r), v(t + 1)))

def reduce_write(A, acc, t, base_s, nrt=2):
    A('v_and_b32 %s, 31, %s' % (v(t), v(vLane)))
    A('v_lshrrev_b32 %s, 5, %s' % (v(t + 1), v(vLane)))
    A('v_xor_b32 %s, %s, %s' % (v(t + 1), v(t + 1), v(vLane)))
    A('v_and_b32 %s, 7, %s' % (v(t + 1), v(t + 1)))
    A('v_lshlrev_b32 %s, 4, %s' % (v(t + 1), v(t + 1)))
    A('v_lshl_add_u32 %s, %s, 7, %s' % (v(t), v(t), v(t + 1)))
    A('v_add_u32 %s, %s, %s' % (v(t), s(base_s), v(t)))
    for q4 in range(1, 4):
        A('v_xor_b32 %s, %d, %s' % (v(t + q4), 32 * q4, v(t)))
    for q4 in range(4):
        A('v_xor_b32 %s, 16, %s' % (v(t + 4 + q4), v(t + q4)))
        A('v_add_u32 %s, %d, %s' % (v(t + 4 + q4), 65536, v(t + 4 + q4)))
    return [('ds_write_b128 %s, %s offset:%d' % (v(t + 4 * nt + q4), v(acc + 16 * (nrt * nt + rt) + 4 * q4, 4), rt * 16384))
            for nt in range(2) for rt in range(nrt) for q4 in range(4)]

def w2_voff(A, dst, t):
    A('v_lshrrev_b32 %s, 3, %s' % (v(t), v(vLane)))
    A('v_lshrrev_b32 %s, 2, %s' % (v(t + 1), v(vLane)))
    A('v_and_b32 %s, 4, %s' % (v(t + 1), v(t + 1)))
    A('v_and_b32 %s, 7, %s' % (v(t + 2), v(vLane)))
    A('v_xor_b32 %s, %s, %s' % (v(t + 1), v(t + 1), v(t + 2)))
    A('v_lshlrev_b32 %s, 4, %s' % (v(t + 1), v(t + 1)))
    A('s_lshl_b32 %s, %s, 7' % (s(sT0), s(sCb)))
    A('v_lshl_add_u32 %s, %s, 10, %s' % (v(dst), v(t), v(t + 1)))
    A('v_add_u32 %s, %s, %s' % (v(dst), s(sT0), v(dst)))

def quad(vo, srdn, ldsbase, tag):
    L = []
    L.append('s_lshl_b32 m0, %s, 12' % s(sJ))
    if ldsbase:
        L.append('s_add_u32 m0, m0, %d' % ldsbase)
    for i in range(4):
        if i:
            L.append('s_add_u32 %s, %s, %d' % (s(sO[i]), s(sO[0]), 7168 * i))
        L.append(('buffer_load_dwordx4 %s, %s, %s offen offset:%d lds' % (v(vo[i & 1]), s(srdn, 4), s(sO[i]), 1024 * i), tag))
    return L

def xres(A, vOo, vX):
    A('v_lshrrev_b32 %s, 3, %s' % (v(vOo), v(vLane)))
    A('v_and_b32 %s, 7, %s' % (v(vOo + 1), v(vLane)))
    A('v_lshlrev_b32 %s, 10, %s' % (v(vOo), v(vOo)))
    A('v_lshl_add_u32 %s, %s, 4, %s' % (v(vOo), v(vOo + 1), v(vOo)))
    A('s_lshl_b32 %s, %s, 3' % (s(6), s(sRb2)))
    A('s_add_u32 %s, %s, %s' % (s(6), s(6), s(sWave)))
    A('s_lshl_b32 %s, %s, 13' % (s(6), s(6)))
    A('s_lshl_b32 %s, %s, 7' % (s(7), s(sCb)))
    A('s_add_u32 %s, %s, %s' % (s(6), s(6), s(7)))
    A('buffer_load_dwordx4 %s, %s, %s, %s offen' % (v(vX, 4), v(vOo), s(SX, 4), s(6)), tag='xres')

def gen():
    A = Asm()
    vT = 236
    A.raw('.p2align 8')
    A.raw('.type %s_kernel,@function' % NAME)
    A.raw('%s_kernel:' % NAME)
    A('s_cmp_ge_u32 s2, 256')
    A.branch('s_cbranch_scc1 L_END')
    A('s_load_dwordx16 s[16:31], s[0:1], 0')
    A('s_load_dwordx4 s[32:35], s[0:1], 64')
    A('s_load_dwordx2 s[36:37], s[0:1], 80')
    A('s_memrealtime s[6:7]')
    A('v_and_b32 %s, 63, v0' % v(vLane))
    A('v_lshrrev_b32 %s, 6, v0' % v(vT))
    A('v_lshlrev_b32 %s, 4, %s' % (v(vL16), v(vLane)))
    A('v_readfirstlane_b32 %s, %s' % (s(sWave), v(vT)))
    A('s_and_b32 %s, s2, 7' % s(sT0))
    A('s_lshr_b32 %s, s2, 3' % s(sT1))
    A('s_and_b32 %s, %s, 1' % (s(sRb), s(sT0)))
    A('s_lshl_b32 %s, %s, 3' % (s(sRb), s(sRb)))
    A('s_and_b32 %s, %s, 7' % (s(sT2), s(sT1)))
    A('s_add_u32 %s, %s, %s' % (s(sRb), s(sRb), s(sT2)))
    A('s_lshr_b32 %s, %s, 1' % (s(sCg), s(sT0)))
    A('s_lshl_b32 %s, %s, 2' % (s(sCg), s(sCg)))
    A('s_lshr_b32 %s, %s, 3' % (s(sT2), s(sT1)))
    A('s_add_u32 %s, %s, %s' % (s(sCg), s(sCg), s(sT2)))
    A('s_and_b32 %s, %s, 1' % (s(sTyp), s(sCg)))
    A('s_lshr_b32 %s, %s, 1' % (s(sG), s(sCg)))
    A('s_xor_b32 %s, %s, %d' % (s(sGq), s(sG), 2 * OPT['xq']))
    A('s_cmp_eq_u32 %s, 1' % s(sTyp))
    A('s_cselect_b32 %s, %s, %s' % (s(sGq), s(sG), s(sGq)))
    A('s_lshl_b32 %s, %s, 1' % (s(sF), s(sCg)))
    A('s_add_u32 %s, %s, %s' % (s(sF), s(sF), s(sRb)))
    if OPT['rm']:
        A('s_and_b32 %s, %s, 3' % (s(sF), s(sCg)))
        A('s_lshl_b32 %s, %s, 1' % (s(sF), s(sF)))
        A('s_and_b32 %s, %s, 7' % (s(sT2), s(sRb)))
        A('s_add_u32 %s, %s, %s' % (s(sF), s(sF), s(sT2)))
        A('s_sub_u32 %s, %s, 7' % (s(sT2), s(sF)))
        A('s_cmp_ge_u32 %s, 7' % s(sF))
        A('s_cselect_b32 %s, %s, %s' % (s(sF), s(sT2), s(sF)))
        A('s_xor_b32 %s, %s, %s' % (s(38), s(sCg), s(sRb)))
        A('s_and_b32 %s, %s, %d' % (s(38), s(38), OPT['rm'] - 1))
    else:
        A('s_and_b32 %s, %s, %d' % (s(sF), s(sF), OPT['rot']))
    if OPT['xmap']:
        A('s_lshr_b32 %s, %s, 1' % (s(sRb2), s(sT0)))
        A('s_andn2_b32 %s, 1, %s' % (s(sT2), s(sT0)))
        A('s_lshl_b32 %s, %s, 2' % (s(sT2), s(sT2)))
        A('s_add_u32 %s, %s, %s' % (s(sRb2), s(sRb2), s(sT2)))
        A('s_lshl_b32 %s, %s, 2' % (s(sRb2), s(sRb2)))
    else:
        A('s_lshl_b32 %s, %s, 2' % (s(sRb2), s(sT0)))
    A('s_and_b32 %s, %s, 3' % (s(sT2), s(sT1)))
    A('s_add_u32 %s, %s, %s' % (s(sRb2), s(sRb2), s(sT2)))
    A('s_lshr_b32 %s, %s, 2' % (s(sCb), s(sT1)))
    A('s_and_b32 %s, %s, 3' % (s(sJ), s(sWave)))
    assert not OPT['rm']
    A('s_mov_b32 %s, 0' % s(sRt))
    A('s_cmp_ge_u32 %s, 4' % s(sWave))
    A.branch('s_cbranch_scc1 C_START')
    gen_loader(A)
    gen_compute(A)
    gen_final(A)
    return A.text()

def gen_loader(A):
    vXo, vP1, vP2, vP3, v2o = 224, 226, 227, 228, 252
    vNon, vG, vTa, vFl = 230, 232, 234, 253
    vT = 236
    vRow = 0
    vCf = 32
    vCa = 56
    vSel = 68
    vGa = 72
    vB1 = 104
    sPA16, sPA8, sPB16, sPB8 = 52, 53, 54, 55
    sC1, sC2, sC3 = SWO, SWO + 1, SWO + 2
    sStat = 7
    A('s_lshl_b32 %s, %s, 7' % (s(sT0), s(sG)))
    A('s_lshl_b32 %s, %s, 8' % (s(sT1), s(sG)))
    A('s_add_u32 %s, %s, 1024' % (s(sC1), s(sT0)))
    A('s_add_u32 %s, %s, 2048' % (s(sC2), s(sT0)))
    A('s_add_u32 %s, %s, 128' % (s(sT3), s(sT1)))
    A('s_lshl_b32 %s, %s, 7' % (s(sT2), s(sGq)))
    A('s_cmp_eq_u32 %s, 1' % s(sTyp))
    A('s_cselect_b32 %s, %s, %s' % (s(sC3), s(sC2), s(sT2)))
    A('s_cselect_b32 %s, %s, %s' % (s(sC1), s(sC1), s(sT1)))
    A('s_cselect_b32 %s, %s, %s' % (s(sC2), s(sC2), s(sT3)))
    A('s_movk_i32 %s, 2752' % s(sT1))
    A('s_cselect_b32 %s, 3072, %s' % (s(sT2), s(sT1)))
    A('s_cselect_b32 %s, %s, 3072' % (s(sT3), s(sT1)))
    w2_voff(A, v2o, vT)
    A('v_mul_u32_u24 %s, %s, %s' % (v(vP2), s(sT2), v(vT)))
    A('v_add3_u32 %s, %s, %s, %s' % (v(vP1), v(vP2), v(vT + 1), s(sC1)))
    A('v_add3_u32 %s, %s, %s, %s' % (v(vP2), v(vP2), v(vT + 1), s(sC2)))
    A('v_add_u32 %s, %s, %s' % (v(vT + 3), s(sC3), v(vT + 1)))
    A('v_mul_u32_u24 %s, %s, %s' % (v(vP3), s(sT3), v(vT)))
    A('v_add_u32 %s, %s, %s' % (v(vP3), v(vP3), v(vT + 3)))
    A('v_cmp_gt_u32 vcc, 2752, %s' % v(vT + 3))
    A('v_mov_b32 %s, 0x%x' % (v(vT + 3), OOB))
    A('v_cndmask_b32 %s, %s, %s, vcc' % (v(vP3), v(vT + 3), v(vP3)))
    A('s_lshl_b32 %s, %s, 4' % (s(sPA16), s(sT2)))
    A('s_lshl_b32 %s, %s, 3' % (s(sPA8), s(sT2)))
    A('s_sub_u32 %s, %s, 1024' % (s(sPA8), s(sPA8)))
    A('s_lshl_b32 %s, %s, 4' % (s(sPB16), s(sT3)))
    A('s_lshl_b32 %s, %s, 3' % (s(sPB8), s(sT3)))
    A('s_sub_u32 %s, %s, 1024' % (s(sPB8), s(sPB8)))
    A('v_lshrrev_b32 %s, 4, %s' % (v(vT + 1), v(vLane)))
    A('v_xor_b32 %s, %s, %s' % (v(vT + 1), v(vT + 1), v(vT + 2)))
    A('s_lshl_b32 %s, %s, 2' % (s(sT0), s(sRb)))
    A('s_add_u32 %s, %s, %s' % (s(sT0), s(sT0), s(sJ)))
    A('s_lshl_b32 %s, %s, 15' % (s(sT0), s(sT0)))
    A('v_lshlrev_b32 %s, 10, %s' % (v(vXo), v(vT)))
    A('v_lshl_add_u32 %s, %s, 4, %s' % (v(vXo), v(vT + 1), v(vXo)))
    A('v_add_u32 %s, %s, %s' % (v(vXo), s(sT0), v(vXo)))
    A('v_xor_b32 %s, 64, %s' % (v(vXo + 1), v(vXo)))
    A('s_lshl_b32 %s, %s, 11' % (s(sM), s(sJ)))
    A('s_lshl_b32 %s, %s, 4' % (s(sA), s(sRb)))
    A('s_add_u32 %s, %s, %s' % (s(sA), s(sA), s(sCg)))
    A('s_lshl_b32 %s, %s, 2' % (s(sA), s(sA)))
    A('s_add_u32 %s, %s, %s' % (s(sA), s(sA), s(sJ)))
    A('s_lshl_b32 %s, %s, 11' % (s(sB), s(sA)))
    A('v_and_b32 %s, 32, %s' % (v(vT + 4), v(vLane)))
    A('v_lshl_add_u32 %s, %s, 4, %s' % (v(vT + 4), v(vT + 4), v(vL16)))
    A('v_mov_b32 %s, 0' % v(vT + 5))
    A('s_or_b32 %s, s2, %s' % (s(sT0), s(sWave)))
    A('s_waitcnt lgkmcnt(0)')
    srd(A, SD, 34, 256)
    A('s_cmp_lg_u32 %s, 0' % s(sT0))
    A.branch('s_cbranch_scc1 L_NONONCE')
    A('s_or_b32 s6, s6, 1')
    A('v_mov_b32 %s, s6' % v(vT))
    with Keep(A):
        A('buffer_store_dword %s, %s, %s, 0 offen offset:128 sc1' % (v(vT), v(vT + 5), s(SD, 4)))
    A.label('L_NONONCE')
    srd(A, SX, 16, 2048 * 1024)
    A('s_cmp_eq_u32 %s, 1' % s(sTyp))
    for d, x_, y_, p16 in ((SA, 18, 26, sPA16), (SB, 26, 18, sPB16)):
        A('s_cselect_b32 %s, %s, %s' % (s(d), s(x_), s(y_)))
        A('s_cselect_b32 %s, %s, %s' % (s(d + 1), s(x_ + 1), s(y_ + 1)))
        A('s_mov_b32 %s, 0x20000' % s(d + 3))
    A('s_lshl_b32 %s, %s, 5' % (s(SA + 2), s(sPA16)))
    A('s_lshl_b32 %s, %s, 5' % (s(SB + 2), s(sPB16)))
    stamp(A, 0)

    def chunk(st):
        if OPT['rm']:
            if st == 0:
                return ['s_mov_b32 %s, %s' % (s(sT3), s(38))]
            return ['s_add_u32 %s, %s, %d' % (s(sT3), s(sF), st),
                    's_sub_u32 %s, %s, 7' % (s(sO[0]), s(sT3)),
                    's_cmp_ge_u32 %s, 8' % s(sT3),
                    's_cselect_b32 %s, %s, %s' % (s(sT3), s(sO[0]), s(sT3)),
                    's_xor_b32 %s, %s, %s' % (s(sT3), s(sT3), s(38))]
        return ['s_add_u32 %s, %s, %d' % (s(sT3), s(sF), st),
                's_and_b32 %s, %s, 7' % (s(sT3), s(sT3))]
    def krow(st):
        return chunk(st) + [
                's_lshl_b32 %s, %s, 2' % (s(sT3), s(sT3)),
                's_add_u32 %s, %s, %s' % (s(sT3), s(sT3), s(sJ))]
    def grp_w(st):
        L = krow(st)
        L.append('s_mul_i32 %s, %s, %s' % (s(sO[0]), s(sT3), s(sPA16)))
        L.append('s_add_u32 m0, %s, %d' % (s(sM), WP(st & 3)))
        L.append('s_add_u32 %s, %s, %s' % (s(sO[1]), s(sO[0]), s(sPA8)))
        L.append(('buffer_load_dwordx4 %s, %s, %s offen lds' % (v(vP1), s(SA, 4), s(sO[0])), 's%d' % st))
        L.append(('buffer_load_dwordx4 %s, %s, %s offen offset:1024 lds' % (v(vP1), s(SA, 4), s(sO[1])), 's%d' % st))
        L.append('s_add_u32 m0, %s, %d' % (s(sM), WP(st & 3) + 8192))
        L.append(('buffer_load_dwordx4 %s, %s, %s offen lds' % (v(vP2), s(SA, 4), s(sO[0])), 's%d' % st))
        L.append(('buffer_load_dwordx4 %s, %s, %s offen offset:1024 lds' % (v(vP2), s(SA, 4), s(sO[1])), 's%d' % st))
        return L
    def grp_p3(st):
        tag = 's0' if st == 0 else 'p3'
        L = krow(st)
        L.append('s_mul_i32 %s, %s, %s' % (s(sO[0]), s(sT3), s(sPB16)))
        L.append('s_add_u32 m0, %s, %d' % (s(sM), P3B[st]))
        L.append('s_add_u32 %s, %s, %s' % (s(sO[1]), s(sO[0]), s(sPB8)))
        L.append(('buffer_load_dwordx4 %s, %s, %s offen lds' % (v(vP3), s(SB, 4), s(sO[0])), tag))
        L.append(('buffer_load_dwordx4 %s, %s, %s offen offset:1024 lds' % (v(vP3), s(SB, 4), s(sO[1])), tag))
        return L
    def grp_x(st):
        L = chunk(st)
        L.append('s_lshl_b32 %s, %s, 7' % (s(sO[0]), s(sT3)))
        return L + quad((vXo, vXo + 1), SX, XP(st & 3), 's%d' % st)
    UL = [(8, 0), (8, 1), (8, 4), (8, 5), (3, 32), (3, 33), (3, 34), (8, 2), (8, 3), (8, 6), (8, 7)]
    UL = UL[:4] + UL[7:] + UL[4:7]
    UPY = [WP(1), WP(2), XP(2), XP(3), WP(3), WP(1), WP(2), WP(1), XP(0), XP(1), WP(0)]
    UPX = [WP(1), WP(2), WP(1), WP(2), WP(1), WP(2), WP(1), WP(1), XP(0), XP(1), WP(0)]
    def grp_w2(i, UP=UPY):
        m, c = UL[i]
        L = ['s_mul_i32 %s, %s, %d' % (s(sO[0]), s(sJ), m * 32768)]
        if c:
            L.append('s_add_u32 %s, %s, %d' % (s(sO[0]), s(sO[0]), c * 32768))
        return L + quad((v2o, v2o), SW2, UP[i], 'u%d' % i)
    groups = []
    for st in range(8):
        groups += [('w', st), ('x', st)]
    SCHED = {0: [6, 2, 2, 2, 2, 2], 1: [4, 4, 2, 2, 2, 2], 2: [8, 0, 2, 2, 2, 2], 3: [5, 3, 2, 2, 2, 2]}[OPT['sched']]
    pos = [0]
    def issue(n, iv):
        for _ in range(n):
            kind, st = groups[pos[0]]
            assert st <= iv + 3 or st < 4, (st, iv)
            emit(A, grp_w(st) if kind == 'w' else grp_x(st))
            pos[0] += 1

    nload = 'buffer_load_dword %s, %s, %s, 0 offen offset:128 sc1' % (v(vNon), v(vT + 5), s(SD, 4))
    A('buffer_load_dwordx4 %s, %s, %s, %s offen' % (v(vRow, 4), v(vT + 4), s(SX, 4), s(sB)), tag='row')
    A('buffer_load_dwordx4 %s, %s, %s, %s offen offset:512' % (v(vRow + 4, 4), v(vT + 4), s(SX, 4), s(sB)), tag='row')
    issue(2, -1)
    emit(A, grp_p3(0))
    A(nload, tag='s0')
    issue(2, -1)
    A('buffer_load_dword %s, %s, %s, 0 offen offset:128 sc1' % (v(vNon + 1), v(vT + 5), s(SD, 4)), tag='non2')
    srd(A, SWS, 36, WS_SIZE)
    A('s_lshl_b32 %s, %s, 4' % (s(sStat), s(sA)))
    A('s_add_u32 %s, %s, 0x%x' % (s(sStat), s(sStat), WS_STAT))
    srd(A, SW2, 30, 1376 * 1024)

    def xsum32(r, t):
        for ctl in ('quad_perm:[1,0,3,2]', 'quad_perm:[2,3,0,1]', 'row_half_mirror', 'row_mirror'):
            A('v_add_f32_dpp %s, %s, %s %s row_mask:0xf bank_mask:0xf' % (v(r), v(r), v(r), ctl))
        A('v_mov_b32 %s, %s' % (v(t), v(r)))
        A('v_permlane16_swap_b32 %s, %s' % (v(r), v(t)))
        A('v_add_f32 %s, %s, %s' % (v(r), v(r), v(t)))
    U = vRow + 8
    tr_addr(A, vTa, vT, 8, s(sJ))
    A('s_lshr_b32 %s, %s, 3' % (s(sT0), s(sRb)))
    A('s_lshl_b32 %s, %s, 12' % (s(sT0), s(sT0)))
    A('s_add_u32 %s, %s, %d' % (s(sT0), s(sT0), L_W))
    A('v_add_u32 %s, %s, %s' % (v(vTa), s(sT0), v(vTa)))
    A('v_add_u32 %s, %d, %s' % (v(vTa + 1), P3B[0] - L_W, v(vTa)))
    selector(A, vSel, vT)
    A('v_lshlrev_b32 %s, 2, %s' % (v(vFl), v(vLane)))
    A('v_and_b32 %s, 0x7c, %s' % (v(vFl), v(vFl)))
    A.wait_vm('row')
    for j in range(8):
        A('v_lshlrev_b32 %s, 16, %s' % (v(U + 2 * j), v(vRow + j)))
        A('v_and_b32 %s, 0xffff0000, %s' % (v(U + 2 * j + 1), v(vRow + j)))
    for j in range(4):
        A('v_add_f32 %s, %s, %s' % (v(vRow + j), v(U + j), v(U + 4 + j)))
        A('v_add_f32 %s, %s, %s' % (v(vRow + 4 + j), v(U + 8 + j), v(U + 12 + j)))
    for st_ in (4, 2, 1):
        for j in range(st_):
            A('v_add_f32 %s, %s, %s' % (v(vRow + j), v(vRow + j), v(vRow + st_ + j)))
    xsum32(vRow, vRow + 1)
    A('v_mul_f32 %s, 0xbb000000, %s' % (v(vRow), v(vRow)))
    for j in range(16):
        A('v_add_f32 %s, %s, %s' % (v(U + j), v(U + j), v(vRow)))
    for j in range(4):
        A('v_mul_f32 %s, %s, %s' % (v(vRow + 4 + j), v(U + j), v(U + j)))
    for j in range(4, 16):
        A('v_fmac_f32 %s, %s, %s' % (v(vRow + 4 + (j & 3)), v(U + j), v(U + j)))
    r = vRow + 4
    A('v_add_f32 %s, %s, %s' % (v(r), v(r), v(r + 1)))
    A('v_add_f32 %s, %s, %s' % (v(r + 2), v(r + 2), v(r + 3)))
    A('v_add_f32 %s, %s, %s' % (v(r), v(r), v(r + 2)))
    xsum32(r, r + 1)
    A('v_mul_f32 %s, 0x3b000000, %s' % (v(r), v(r)))
    A('v_cvt_pk_bf16_f32 %s, %s, %s' % (v(r), v(r), v(r)))
    A('v_lshlrev_b32 %s, 16, %s' % (v(r), v(r)))
    A('v_add_f32 %s, 0x3727c5ac, %s' % (v(r), v(r)))
    A('v_cvt_pk_bf16_f32 %s, %s, %s' % (v(r), v(r), v(r)))
    A('v_lshlrev_b32 %s, 16, %s' % (v(r), v(r)))
    A('v_sqrt_f32 %s, %s' % (v(r), v(r)))
    A('v_cvt_pk_bf16_f32 %s, %s, %s' % (v(vG), v(vRow), v(r)))
    A('v_cmp_eq_u32 vcc, 0, %s' % v(vFl))
    A('v_lshrrev_b32 %s, 2, %s' % (v(vT), v(vLane)))
    A('v_mov_b32 %s, 0x%x' % (v(vT + 1), OOB))
    A('v_cndmask_b32 %s, %s, %s, vcc' % (v(vT + 4), v(vT + 1), v(vT)))
    issue(SCHED[0] - 4, -1)
    A.wait_vm('s0')
    A('s_barrier')
    stamp(A, 1)
    A('s_cmp_ge_u32 %s, 2' % s(sJ))
    A.branch('s_cbranch_scc1 L_NOCF')
    with Keep(A):
        for ks in range(2):
            for u in range(3):
                for hh in range(2):
                    A('ds_read_b64_tr_b16 %s, %s offset:%d' % (v(vCf + 12 * ks + 4 * u + 2 * hh, 2), v(vTa + (u >> 1)), 8192 * (u & 1) + 2048 * ks + 512 * hh))
    A.label('L_NOCF')
    A('v_readfirstlane_b32 %s, %s' % (s(sNonce), v(vNon)))
    A('s_cmp_lg_u32 %s, 0' % s(sNonce))
    A.branch('s_cbranch_scc1 LN_DONE')
    with Keep(A):
        A.wait_vm('non2')
        A('v_mov_b32 %s, %s' % (v(vNon), v(vNon + 1)))
        poll(A, 'LN', nload, vNon, None, cmp_nonce=False)
        A('v_readfirstlane_b32 %s, %s' % (s(sNonce), v(vNon)))
    A.label('LN_DONE')
    A('v_mov_b32 %s, %s' % (v(vG + 1), v(vNon)))
    A('buffer_store_dwordx2 %s, %s, %s, %s offen sc1' % (v(vG, 2), v(vT + 4), s(SWS, 4), s(sStat)), tag='pub')
    A('s_cmp_ge_u32 %s, 2' % s(sJ))
    A.branch('s_cbranch_scc1 LB_START')
    vm0 = list(A.vm)
    pos0 = pos[0]

    def bar(n):
        A('s_barrier')
        if n == 4:
            stamp(A, 2)
        if n in (5, 6, 7):
            stamp(A, {5: 1, 6: 2, 7: 8}[n], 3)
    GI = OPT['gi']
    vA0, vB0 = 244, 246
    vFw = 248
    vSdw = 251
    vSg, vZo, vKw, vKf = 192, 196, 197, 199
    def prep_kv():
        A('v_and_b32 %s, 15, %s' % (v(vT), v(vLane)))
        A('v_lshrrev_b32 %s, 4, %s' % (v(vT + 1), v(vLane)))
        A('v_lshlrev_b32 %s, 3, %s' % (v(vT + 2), v(vT + 1)))
        A('v_xor_b32 %s, %s, %s' % (v(vT + 2), v(vT + 2), v(vT)))
        A('v_and_b32 %s, 15, %s' % (v(vT + 2), v(vT + 2)))
        onehot(A, vSg, vT + 2, vT + 3)
        A('v_lshrrev_b32 %s, 3, %s' % (v(vT + 3), v(vT)))
        A('v_mul_u32_u24 %s, %d, %s' % (v(vZo), KVS - 512, v(vT + 3)))
        A('v_lshl_add_u32 %s, %s, 4, %s' % (v(vZo), v(vT + 1), v(vZo)))
        A('v_lshl_add_u32 %s, %s, 6, %s' % (v(vZo), v(vT), v(vZo)))
        A('v_lshrrev_b32 %s, 1, %s' % (v(vT + 2), v(vT + 1)))
        A('v_mul_u32_u24 %s, 272, %s' % (v(vT + 2), v(vT + 2)))
        A('v_and_b32 %s, 1, %s' % (v(vT + 1), v(vT + 1)))
        A('v_lshl_add_u32 %s, %s, 3, %s' % (v(vT + 2), v(vT + 1), v(vT + 2)))
        A('s_mul_i32 %s, %s, %d' % (s(sT0), s(sJ), KVH))
        A('s_add_u32 %s, %s, %d' % (s(sT0), s(sT0), KVL))
        A('v_add_u32 %s, %s, %s' % (v(vT + 2), s(sT0), v(vT + 2)))
        A('v_lshl_add_u32 %s, %s, 4, %s' % (v(vKw), v(vT), v(vT + 2)))
        A('v_mul_u32_u24 %s, 544, %s' % (v(vT + 3), v(vT + 3)))
        A('v_add_u32 %s, %s, %s' % (v(vKw + 1), v(vT + 2), v(vT + 3)))
        A('v_and_b32 %s, 0x33, %s' % (v(vT), v(vLane)))
        A('v_bfe_u32 %s, %s, 2, 1' % (v(vT + 1), v(vLane)))
        A('v_lshl_or_b32 %s, %s, 3, %s' % (v(vT), v(vT + 1), v(vT)))
        A('v_bfe_u32 %s, %s, 3, 1' % (v(vT + 1), v(vLane)))
        A('v_lshl_or_b32 %s, %s, 2, %s' % (v(vT), v(vT + 1), v(vT)))
        A('v_lshlrev_b32 %s, 1, %s' % (v(vSdw), v(vT)))
    def lwarm():
        srd(A, STMP, 22, 512 * 1024)
        A('s_lshr_b32 %s, s2, 3' % s(sT0))
        A('s_lshl_b32 %s, %s, 2' % (s(sT0), s(sT0)))
        A('s_add_u32 %s, %s, %s' % (s(sT0), s(sT0), s(sJ)))
        A('v_lshlrev_b32 %s, 7, %s' % (v(vT), v(vLane)))
        A('s_mul_i32 %s, %s, %d' % (s(sT1), s(sT0), 86 * 128))
        A('buffer_load_dword %s, %s, %s, %s offen' % (v(107), v(vT), s(SW2, 4), s(sT1)), tag='wm')
        A('v_cmp_gt_u32 vcc, 22, %s' % v(vLane))
        A('v_mov_b32 %s, 0x%x' % (v(vT + 3), OOB))
        A('v_cndmask_b32 %s, %s, %s, vcc' % (v(vT + 2), v(vT + 3), v(vT)))
        A('s_add_u32 %s, %s, 8192' % (s(sT1), s(sT1)))
        A('buffer_load_dword %s, %s, %s, %s offen' % (v(107), v(vT + 2), s(SW2, 4), s(sT1)), tag='wm')
        A('v_cmp_gt_u32 vcc, 32, %s' % v(vLane))
        A('v_cndmask_b32 %s, %s, %s, vcc' % (v(vT + 2), v(vT + 3), v(vT)))
        A('s_lshl_b32 %s, %s, 12' % (s(sT1), s(sT0)))
        A('buffer_load_dword %s, %s, %s, %s offen' % (v(107), v(vT + 2), s(STMP, 4), s(sT1)), tag='wm')
    def prep2():
        tr_addr(A, vA0, vT, 4, None)
        A('s_lshl_b32 %s, %s, 1' % (s(sT0), s(sM)))
        A('v_add_u32 %s, %s, %s' % (v(vA0), s(sT0), v(vA0)))
        A('v_xor_b32 %s, 64, %s' % (v(vA0 + 1), v(vA0)))
        A('v_add_u32 %s, %d, %s' % (v(vB0), L_W, v(vA0)))
        A('v_add_u32 %s, %d, %s' % (v(vB0 + 1), L_W, v(vA0 + 1)))
        A('s_lshl_b32 %s, %s, 2' % (s(sT0), s(sJ)))
        A('s_add_u32 %s, %s, %d' % (s(sT0), s(sT0), FL_P3))
        A('v_mov_b32 %s, %s' % (v(vFw), s(sT0)))
        A('v_mov_b32 %s, 1' % v(vFw + 1))
        srd(A, SWO, 22, 512 * 1024)
    for k in 'AB':
        if k == 'B':
            A.label('LB_START')
            A.vm = list(vm0); A.lg = []; pos[0] = pos0
        sCs = 6
        if k == 'A':
            A('s_lshl_b32 %s, %s, 1' % (s(sCs), s(sCg)))
            A('s_add_u32 %s, %s, %s' % (s(sCs), s(sCs), s(sJ)))
            A('s_lshl_b32 %s, %s, 13' % (s(sCs), s(sCs)))
            A('s_add_u32 %s, %s, 0x%x' % (s(sCs), s(sCs), WS_CS))
            A('s_lshl_b32 %s, %s, 9' % (s(sT1), s(sRb)))
            A('s_add_u32 %s, %s, %s' % (s(sT1), s(sT1), s(sCs)))
            A('v_and_b32 %s, 0x1ff, %s' % (v(vT), v(vL16)))
            A('s_waitcnt lgkmcnt(0)')
            for ks in range(2):
                for u in range(3):
                    A('v_mfma_f32_16x16x32_bf16 %s, %s, %s, %s' % (v(vCa + 4 * u, 4), v(vSel, 4), v(vCf + 12 * ks + 4 * u, 4), '0' if ks == 0 else v(vCa + 4 * u, 4)))
            A('v_mov_b32 %s, %s' % (v(vCa + 1), v(vCa + 4)))
            A('v_mov_b32 %s, %s' % (v(vCa + 2), v(vCa + 8)))
            A('v_mov_b32 %s, %s' % (v(vCa + 3), v(vNon)))
            A('buffer_store_dwordx4 %s, %s, %s, %s offen sc1' % (v(vCa, 4), v(vT), s(SWS, 4), s(sT1)), tag='css')
            A('s_add_u32 %s, %s, 4096' % (s(sStat), s(sCs)))
            gal = ['buffer_load_dwordx4 %s, %s, %s, %s offen offset:%d sc1' % (v(vGa + 4 * i, 4), v(vL16), s(SWS, 4), s(sCs if i < 4 else sStat), 1024 * (i & 3)) for i in range(8)]
        else:
            A('s_lshl_b32 %s, %s, 1' % (s(sStat), s(sRb)))
            A('s_add_u32 %s, %s, %s' % (s(sStat), s(sStat), s(sJ)))
            A('s_lshl_b32 %s, %s, 9' % (s(sStat), s(sStat)))
            A('s_add_u32 %s, %s, 0x%x' % (s(sStat), s(sStat), WS_STAT - 1024))
            A('v_lshlrev_b32 %s, 3, %s' % (v(vTa), v(vLane)))
            gal = ['buffer_load_dwordx2 %s, %s, %s, %s offen sc1' % (v(vGa, 2), v(vTa), s(SWS, 4), s(sStat))]
        def gather():
            emit(A, [(x, 'ga') for x in gal])
        def small():
            if k == 'A':
                srd(A, STMP, 28, 2752)
                A('s_lshl_b32 %s, %s, 6' % (s(sT0), s(sJ)))
                A('s_add_u32 %s, %s, %s' % (s(sC1), s(sC1), s(sT0)))
                A('s_add_u32 %s, %s, %s' % (s(sC2), s(sC2), s(sT0)))
                A('s_add_u32 %s, %s, %s' % (s(sC3), s(sC3), s(sT0)))
                A('s_cmp_eq_u32 %s, 1' % s(sTyp))
                A('s_cselect_b32 %s, 0x%x, %s' % (s(sC1), OOB, s(sC1)))
                A('s_cselect_b32 %s, 0x%x, %s' % (s(sC2), OOB, s(sC2)))
                A('s_cselect_b32 %s, %s, 0x%x' % (s(sC3), s(sC3), OOB))
                A('v_lshrrev_b32 %s, 1, %s' % (v(vT), v(vFl)))
                for u in range(3):
                    A('buffer_load_ushort %s, %s, %s, %s offen' % (v(vB1 + u), v(vT), s(STMP, 4), s(sC1 + u)), tag='b1')
            else:
                srd(A, STMP, 20, 16384)
                A('s_lshl_b32 %s, %s, 1' % (s(sT0), s(sGq)))
                A('s_add_u32 %s, %s, %s' % (s(sT0), s(sT0), s(sJ)))
                A('s_lshl_b32 %s, %s, 10' % (s(sT0), s(sT0)))
                A('s_sub_u32 %s, %s, 2048' % (s(sT0), s(sT0)))
                A('s_lshr_b32 %s, %s, 1' % (s(sT1), s(sM)))
                A('s_add_u32 m0, %s, %d' % (s(sT1), TPH - 2048))
                A('buffer_load_dwordx4 %s, %s, %s offen lds' % (v(vL16), s(STMP, 4), s(sT0)), tag='b1')
        def tables():
            A.wait_vm('ga')
            stamp(A, 4, 3)
            if k == 'B':
                poll(A, 'LST', gal, vGa + 1, None)
                A('v_and_b32 %s, 0xffff, %s' % (v(vT), v(vGa)))
                A('v_lshl_or_b32 %s, %s, 16, %s' % (v(vT), v(vGa), v(vT)))
                A('v_lshrrev_b32 %s, 16, %s' % (v(vT + 1), v(vGa)))
                A('v_and_b32 %s, 0xffff0000, %s' % (v(vGa), v(vGa)))
                A('v_rcp_f32 %s, %s' % (v(vT + 2), v(vGa)))
                A('s_lshr_b32 %s, %s, 2' % (s(sT0), s(sM)))
                A('s_add_u32 %s, %s, %d' % (s(sT0), s(sT0), TB - 1024))
                A('v_add_u32 %s, %s, %s' % (v(vT + 3), s(sT0), v(vTa)))
                A('ds_write_b64 %s, %s' % (v(vT + 3), v(vT, 2)))
                A('s_lshr_b32 %s, %s, 3' % (s(sT0), s(sM)))
                A('s_add_u32 %s, %s, %d' % (s(sT0), s(sT0), TR - 512))
                A('v_lshl_add_u32 %s, %s, 2, %s' % (v(vT + 3), v(vLane), s(sT0)))
                A('ds_write_b32 %s, %s' % (v(vT + 3), v(vT + 2)))
                A('s_lshr_b32 %s, %s, 4' % (s(sT0), s(sM)))
                A('s_add_u32 %s, %s, %d' % (s(sT0), s(sT0), TS - 256))
                A('v_add_u32 %s, %s, %s' % (v(vT + 3), s(sT0), v(vSdw)))
                A('ds_write_b16 %s, %s' % (v(vT + 3), v(vT + 1)))
                A('v_cmp_eq_u32 vcc, 0, %s' % v(vFl))
                A('v_cndmask_b32 %s, 0, %s, vcc' % (v(vT + 4), v(vNon)))
                A('v_add_u32 %s, %d, %s' % (v(vT + 6), TN, v(vFl)))
                A('ds_write_b32 %s, %s' % (v(vT + 6), v(vT + 4)))
            else:
                pre = ['v_min3_u32 %s, %s, %s, %s' % (v(vT), v(vGa + 3), v(vGa + 7), v(vGa + 11)),
                       'v_max3_u32 %s, %s, %s, %s' % (v(vT + 1), v(vGa + 3), v(vGa + 7), v(vGa + 11)),
                       'v_min3_u32 %s, %s, %s, %s' % (v(vT), v(vT), v(vGa + 15), v(vGa + 19)),
                       'v_max3_u32 %s, %s, %s, %s' % (v(vT + 1), v(vT + 1), v(vGa + 15), v(vGa + 19)),
                       'v_min3_u32 %s, %s, %s, %s' % (v(vT), v(vT), v(vGa + 23), v(vGa + 27)),
                       'v_max3_u32 %s, %s, %s, %s' % (v(vT + 1), v(vT + 1), v(vGa + 23), v(vGa + 27)),
                       'v_min_u32 %s, %s, %s' % (v(vT), v(vT), v(vGa + 31)),
                       'v_max_u32 %s, %s, %s' % (v(vT + 1), v(vT + 1), v(vGa + 31)),
                       'v_cmp_eq_u32 vcc, %s, %s' % (v(vT), v(vT + 1)),
                       'v_cndmask_b32 %s, 0, %s, vcc' % (v(vT), v(vT))]
                poll(A, 'LCS', gal, vT, None, pre=pre)
                for st_ in (16, 8, 4):
                    for r in range(st_):
                        if r & 3 != 3:
                            A('v_add_f32 %s, %s, %s' % (v(vGa + r), v(vGa + r), v(vGa + st_ + r)))
                for u in range(3):
                    A('v_mov_b32 %s, %s' % (v(vGa + 4 + u), v(vGa + u)))
                for u in range(3):
                    A('v_permlane32_swap_b32 %s, %s' % (v(vGa + u), v(vGa + 4 + u)))
                for u in range(3):
                    A('v_add_f32 %s, %s, %s' % (v(vGa + u), v(vGa + u), v(vGa + 4 + u)))
                A('s_mul_i32 %s, %s, 768' % (s(sT0), s(sJ)))
                A('s_add_u32 %s, %s, %d' % (s(sT0), s(sT0), TA))
                A('v_lshl_add_u32 %s, %s, 1, %s' % (v(vT), v(vFl), s(sT0)))
                for u in range(3):
                    p = vGa + 8 + 2 * u
                    A('v_cvt_pk_bf16_f32 %s, %s, %s' % (v(p), v(vGa + u), v(vGa + u)))
                    A('v_lshlrev_b32 %s, 16, %s' % (v(p), v(p)))
                    A('v_sub_f32 %s, %s, %s' % (v(p), v(vGa + u), v(p)))
                    A('v_cvt_pk_bf16_f32 %s, %s, %s' % (v(p), v(vGa + u), v(p)))
                    A('v_mov_b32 %s, %s' % (v(p + 1), v(vB1 + u)))
                    A('ds_write_b64 %s, %s offset:%d' % (v(vT), v(p, 2), 256 * u))
        PS = {0: {4: ('p1', ''), 5: ('p2 p3 p4 p5', ''), 6: ('p6 p7 u0', ''), 7: ('', 'u1')},
              1: {4: ('', 'p1'), 5: ('', 'p2 p3'), 6: ('', 'p4 p5 p6 p7'), 7: ('', 'u0')},
              2: {7: ('', 'p1 p2 p3 p4 p5 p6 p7')},
              3: {4: ('', 'p1'), 5: ('', 'p2 p3 p4 p5'), 6: ('', 'p6 p7 u0'), 7: ('u1', '')},
              4: {4: ('', 'p1'), 5: ('', 'p2 p3 p4 p5'), 6: ('', 'p6 p7'), 7: ('u0', '')},
              5: {6: ('', 'p1 p2 p3 p4'), 7: ('p5 p6 p7', '')},
              6: {4: ('', 'p1'), 5: ('', 'p2 p3 p4 p5'), 6: ('', 'p6 p7'), 7: ('u0', 'u1')}}[OPT['ps']]
        nw2 = 0
        def extra(spec):
            n = 0
            for it in spec.split():
                emit(A, grp_p3(int(it[1:])) if it[0] == 'p' else grp_w2(int(it[1:])))
                n += it[0] == 'u'
            return n
        for iv in range(8):
            pre_, post_ = PS.get(iv, ('', ''))
            if iv == GI:
                gather()
            if iv < 5:
                issue(SCHED[iv + 1], iv)
            if iv == 2:
                small()
            if iv == OPT['wi'] and OPT['warm'] == 2:
                lwarm()
            if iv == 3:
                prep_kv()
            if iv == 5:
                prep2()
            nw2 += extra(pre_)
            if iv == 7:
                tables()
                stamp(A, 5, 3)
                nw2 += extra(post_)
                stamp(A, 6, 3)
            if iv < 7:
                A.wait_vm('s%d' % (iv + 1))
                nw2 += extra(post_)
                bar(iv + 1)
        A('s_waitcnt lgkmcnt(0)')
        A.lg = []
        if k == 'A':
            vmA = list(A.vm)
            A.branch('s_branch L_JOIN')
    A.label('L_JOIN')
    vmB = list(A.vm)
    assert vmA == vmB, (vmA, vmB)
    A('s_barrier')
    stamp(A, 3)
    vAcc, vW, vR = 0, 64, 176
    def wread(slot, lds, tag):
        base, off = (vA0, lds) if lds < L_W else (vB0, lds - L_W)
        return [('ds_read_b64_tr_b16 %s, %s offset:%d' % (v(vW + 16 * slot + 8 * c + 4 * nt + 2 * hh, 2), v(base + nt), off + 2048 * c + 1024 * hh), tag)
                for c in range(2) for nt in range(2) for hh in range(2)]
    sFl, sAct = sA, sB
    vFv, vLa, vLt = 250, 251, 240
    fload = 'buffer_load_dword %s, %s, %s, %s offen sc1' % (v(vFv), v(vFl), s(SWS, 4), s(sFl))
    RB = [vR + 16 * ((i + 2) & 3) for i in range(11)]
    def alist(i):
        m, c = UL[i]
        L = ['s_add_u32 %s, %s, %d' % (s(sT1), s(sO[4] if m == 8 else sO[5]), c * 4096)]
        for q in range(4):
            L.append(('buffer_load_dwordx4 %s, %s, %s, %s offen offset:%d sc1' % (v(RB[i] + 4 * q, 4), v(vL16), s(SWS, 4), s(sT1), 1024 * q), 'a%d' % i))
        return L
    def aload(i):
        emit(A, alist(i))
    def lflag(val):
        A('v_mov_b32 %s, %d' % (v(vFw + 1), val))
        A('ds_write_b32 %s, %s' % (v(vFw), v(vFw + 1)))
    A('s_cmp_eq_u32 %s, 1' % s(sTyp))
    A.branch('s_cbranch_scc1 LX_START')
    vm8 = list(A.vm)
    for X in (0, 1):
        if X:
            A.label('LX_START')
            A.vm = list(vm8); A.lg = []
        XS = X and OPT['xs']
        UP = UPX if X and not XS else UPY
        WIN = XS if XS else 2 if X else OPT['win']
        nx = [nw2]
        TRS = ['u%d' % i for i in range(7)] + (['w2', 'u7', 'w0', 'w1', 'w3'] if X and not XS else ['w0', 'w1', 'w3', 'u7', 'w2'])
        def wo(i):
            L = ['s_lshl_b32 %s, %s, 17' % (s(sO[0]), s(sJ))]
            if i:
                L.append('s_add_u32 %s, %s, %d' % (s(sO[0]), s(sO[0]), i * 32768))
            return L + quad((v2o, v2o), SWO, 32768 + 16384 * (i & 1) + 65536 * (i >> 1), 'w%d' % i)
        def w2_upto(n):
            while nx[0] <= min(n, 11):
                k = TRS[nx[0]]
                emit(A, grp_w2(int(k[1:]), UP) if k[0] == 'u' else wo(int(k[1:])))
                if nx[0] == OPT['fa']:
                    A(fload, tag='fl')
                nx[0] += 1
        def gate(i, mask):
            A.wait_vm('fl')
            poll(A, 'LA%d%d' % (X, i), fload, vFv, mask)
        def unit(i):
            A.wait_vm('a%d' % i)
            if i in (0, 3):
                stamp(A, {0: 1, 3: 2}[i], 6)
            if i in (4, 7, 8, 10):
                stamp(A, {4: 2, 7: 3, 8: 4, 10: 5}[i], 7)
            if i >= 7:
                A.wait_lg('b%d' % i)
            wb = vW + 16 * (i % 7)
            for c in range(2):
                for nt in range(2):
                    for rt in range(2):
                        acc = vAcc + 16 * (2 * nt + rt)
                        A('v_mfma_f32_32x32x16_bf16 %s, %s, %s, %s' % (v(acc, 16), v(wb + 8 * c + 4 * nt, 4), v(RB[i] + 8 * c + 4 * rt, 4), '0' if (i == 0 and c == 0) else v(acc, 16)))
        w2_upto(OPT['xs0'] if XS else WIN - 1)
        A('s_lshl_b32 %s, %s, 3' % (s(sFl), s(sRb2)))
        A('s_add_u32 %s, %s, %s' % (s(sFl), s(sFl), s(sJ)))
        A('s_lshl_b32 %s, %s, 7' % (s(sFl), s(sFl)))
        A('s_add_u32 %s, %s, 0x%x' % (s(sFl), s(sFl), WS_F))
        A('s_mul_i32 %s, %s, %d' % (s(sAct), s(sRb2), NU * 4096))
        A('s_lshl_b32 %s, %s, 15' % (s(sO[4]), s(sJ)))
        A('s_add_u32 %s, %s, %s' % (s(sO[4]), s(sO[4]), s(sAct)))
        A('s_mul_i32 %s, %s, %d' % (s(sO[5]), s(sJ), 3 * 4096))
        A('s_add_u32 %s, %s, %s' % (s(sO[5]), s(sO[5]), s(sAct)))
        A.wait_vm('p3')
        A('ds_write_b32 %s, %s' % (v(vFw), v(vFw + 1)))
        for i in range(7):
            if XS and i == OPT['xs0'] + 1:
                A('v_mov_b32 %s, %d' % (v(vLa), FL_KV))
                lds_wait(A, 'LXK', v(vLa), 4, 1, vLt)
                w2_upto(i - 1 + WIN)
            A.wait_vm('u%d' % i)
            emit(A, wread(i, UP[i], 'm'))
            A.wait_lg(None)
            if not XS or i > OPT['xs0']:
                w2_upto(i + WIN)
        if X and not XS:
            A('v_mov_b32 %s, %d' % (v(vLa), FL_KV))
            lds_wait(A, 'LXK', v(vLa), 4, 1, vLt)
            w2_upto(11)
        for i in range(7, 12):
            if nx[0] <= 11:
                A.wait_vm(TRS[i])
                w2_upto(i + WIN)
        stamp(A, 8)
        stamp(A, 3, 6)
        LA, LB, L8 = (OPT['lax'], OPT['lbx'], OPT['l8x']) if X else (OPT['la'], OPT['lb'], OPT['l8'])
        def late():
            A('v_mov_b32 %s, %d' % (v(vLa), FL_PB))
            lds_wait(A, 'LPB%d' % X, v(vLa), 4, 2, vLt)
            for i in range(8, 11):
                emit(A, grp_w2(i, UP))
        def lread():
            A.wait_vm('u10')
            for i in range(8, 11):
                emit(A, wread(i - 7, UP[i], 'b%d' % i))
        if not X:
            sKf, sK = sO[0], [sO[1], sO[2], sO[3], 6, 7]
            A('s_lshl_b32 %s, %s, 2' % (s(sT0), s(sGq)))
            A('s_add_u32 %s, %s, %s' % (s(sT0), s(sT0), s(sJ)))
            A('s_lshl_b32 %s, %s, 7' % (s(sKf), s(sT0)))
            A('s_add_u32 %s, %s, 0x%x' % (s(sKf), s(sKf), WS_KF))
            kfl = 'buffer_load_dword %s, %s, %s, %s offen sc1' % (v(vKf), v(vFl), s(SWS, 4), s(sKf))
            A(kfl, tag='kf')
            A('s_mul_i32 %s, %s, %d' % (s(sT0), s(sT0), 2 * KVS))
            for i_, o_ in enumerate((0, KVS, 4096, KVS + 4096, 8192)):
                A('s_add_u32 %s, %s, 0x%x' % (s(sK[i_]), s(sT0), WS_KVP + o_))
        gate(0, '0xf')
        stamp(A, 4)
        for i in range(LA if X else 2):
            aload(i)
        if not X:
            vK, vZ, vD = 0, 176, 180
            KL = [('buffer_load_dwordx4 %s, %s, %s, %s offen sc1' % (v(vZ, 4), v(vZo), s(SWS, 4), s(sK[4])), 'kz')]
            for i in range(16):
                c, q = i & 1, i >> 1
                KL.append(('buffer_load_dwordx4 %s, %s, %s, %s offen offset:%d sc1' % (v(vK + 4 * i, 4), v(vL16), s(SWS, 4), s(sK[c + 2 * (q >> 2)]), 1024 * (q & 3)), 'k%d' % i))
            pre = []
            if OPT['kpf'] == 1:
                emit(A, KL)
            if OPT['kpf'] >= 2:
                A('s_and_b32 %s, %s, 1' % (s(sT0), s(sRb)))
                A('s_mul_i32 %s, %s, %d' % (s(sT0), s(sT0), KVS))
                if OPT['kpf'] == 3:
                    A('s_lshl_b32 %s, %s, 11' % (s(sT1), s(sRb)))
                    A('s_and_b32 %s, %s, 4096' % (s(sT1), s(sT1)))
                    A('s_add_u32 %s, %s, %s' % (s(sT0), s(sT0), s(sT1)))
                    A('v_lshl_add_u32 %s, %s, 5, %s' % (v(vK), v(vFl), s(sT0)))
                else:
                    A('v_lshl_add_u32 %s, %s, 7, %s' % (v(vK), v(vLane), s(sT0)))
                pre = ['buffer_load_dword %s, %s, %s, %s offen sc1' % (v(vK + 1), v(vK), s(SWS, 4), s(sK[0]))]
                emit(A, pre)
            A.wait_vm('kf')
            poll(A, 'LK', [kfl] + pre, vKf, '0xffff')
            stamp(A, 1, 2)
            emit(A, KL)
            A.raw('VK_B:')
            A.wait_vm('kz')
            A('v_mfma_f32_16x16x32_bf16 %s, %s, %s, 0' % (v(vD + 8, 4), v(vSg, 4), v(vZ, 4)))
            zl = []
            for ctl in ('quad_perm:[1,0,3,2]', 'quad_perm:[2,3,0,1]', 'row_half_mirror'):
                for r in range(4):
                    zl.append('v_add_f32_dpp %s, %s, %s %s row_mask:0xf bank_mask:0xf' % (v(vD + 8 + r), v(vD + 8 + r), v(vD + 8 + r), ctl))
            zl.append('v_cvt_pk_bf16_f32 %s, %s, %s' % (v(vD + 8), v(vD + 8), v(vD + 9)))
            zl.append('v_cvt_pk_bf16_f32 %s, %s, %s' % (v(vD + 9), v(vD + 10), v(vD + 11)))
            zl.append('ds_write_b64 %s, %s offset:256' % (v(vKw + 1), v(vD + 8, 2)))
            for i in range(16):
                A.wait_vm('k%d' % i)
                d = vD + 4 * (i & 1)
                A('v_mfma_f32_16x16x32_bf16 %s, %s, %s, %s' % (v(d, 4), v(vSg, 4), v(vK + 4 * i, 4), '0' if i < 2 else v(d, 4)))
                if i & 1:
                    A('v_max3_u32 %s, %s, %s, %s' % (v(vKf), v(vZ if i == 1 else vKf), v(vK + 4 * i - 4), v(vK + 4 * i)))
                if i >= 4:
                    emit(A, zl[:2]); zl = zl[2:]
            vcheck(A, 'VK', [vKf], vKf, KL, back='VK_B')
            for c in range(2):
                d = vD + 4 * c
                A('v_cvt_pk_bf16_f32 %s, %s, %s' % (v(d), v(d), v(d + 1)))
                A('v_cvt_pk_bf16_f32 %s, %s, %s' % (v(d + 1), v(d + 2), v(d + 3)))
                A('ds_write_b64 %s, %s offset:%d' % (v(vKw), v(d, 2), 544 * c))
            A('ds_write_b32 %s, %s offset:%d' % (v(vFw), v(vFw + 1), FL_KV - FL_P3))
            stamp(A, 3, 2)
            if OPT['bq'] == 3:
                A('v_mov_b32 %s, %d' % (v(vLa), FL_EX))
                lds_wait(A, 'LYK', v(vLa), 4, 1, vLt)
            for i in range(2, LA):
                aload(i)
            if OPT['bq'] == 4:
                A('v_mov_b32 %s, %d' % (v(vLa), FL_EX))
                lds_wait(A, 'LYK', v(vLa), 4, 1, vLt)
        if X and OPT['xh']:
            A('v_mov_b32 %s, %d' % (v(vLa), FL_PB))
            lds_wait(A, 'LXH', v(vLa), 4, 2, vLt)
        for i in range(4):
            unit(i)
            if i + LA < 4:
                aload(i + LA)
            if i == 0:
                lflag(3)
                emit(A, wread(0, UP[7], 'b7'))
            if i == 2:
                A(fload, tag='fl')
        stamp(A, 5)
        if L8 == 0:
            late()
        if not X and OPT['bq'] == 2:
            A('v_mov_b32 %s, %d' % (v(vLa), FL_EX))
            lds_wait(A, 'LYK', v(vLa), 4, 1, vLt)
        stamp(A, 2, 2)
        gate(4, '0xff')
        stamp(A, 8, 2)
        stamp(A, 8, 6)
        stamp(A, 1, 7)
        for i in range(4, 4 + LB):
            aload(i)
        for i in range(4, 8):
            unit(i)
            if i + LB < 8:
                aload(i + LB)
            if i == 4 and L8 == 0:
                lread()
            if i == max(4, 8 - LB) and L8 == 1:
                late()
            if i == 6:
                A(fload, tag='fl')
        if L8 == 2:
            late()
            A(fload, tag='fl')
        gate(8, '0x3f00')
        stamp(A, 4, 2)
        stamp(A, 8, 7)
        for i in range(8, 11):
            aload(i)
        if L8:
            lread()
        xres(A, 240, 244)
        for i in range(8, 11):
            unit(i)
        if not X:
            A.branch('s_branch L_RED')
    A.label('L_RED')
    stamp(A, 6)
    A('s_lshl_b32 %s, %s, 1' % (s(sT0), s(sM)))
    wr = reduce_write(A, vAcc, 64, sT0)
    A('s_mov_b32 %s, 0x%x' % (s(sO[0]), LN2))
    A('s_mov_b32 %s, 0x%x' % (s(sO[1]), LN2))
    for n, w in enumerate(wr):
        r = vAcc + 4 * n
        A('v_pk_mul_f32 %s, %s, %s' % (v(r, 2), v(r, 2), s(sO[0], 2)))
        A('v_pk_mul_f32 %s, %s, %s' % (v(r + 2, 2), v(r + 2, 2), s(sO[0], 2)))
        A(w)
    A.branch('s_branch F_START')

def gen_compute(A):
    A.label('C_START')
    A.vm = []; A.lg = []
    vX = 0
    def ACC(u, r): return 128 + 32 * u + 16 * r
    vWf, vXf = 192, 216
    vXo, vXt = 228, 232
    vPw, vVw, vPr, vVr, vSt, vPo, vF2 = 236, 237, 238, 239, 240, 241, 242
    vR0 = 236
    vWa, vTa, vTb, vTr, vPa, vFo, vWm, vNon = 244, 245, 246, 247, 248, 249, 250, 252
    vR = [232, 234]
    vT = 0
    sCh, sRg, sP2 = sA, sB, sM
    sL2, sHO = 52, 54
    A('s_and_b32 %s, %s, 1' % (s(sCh), s(sJ)))
    A('s_lshr_b32 %s, %s, 1' % (s(sRg), s(sJ)))
    A('s_lshl_b32 %s, %s, 1' % (s(sP2), s(sRb)))
    A('s_add_u32 %s, %s, %s' % (s(sP2), s(sP2), s(sRg)))
    A('s_mov_b32 %s, 0x%x' % (s(sL2), LOG2E))
    A('s_mov_b32 %s, 0x%x' % (s(sL2 + 1), LOG2E))
    A('s_mov_b32 %s, 0.5' % s(sHO))
    A('s_mov_b32 %s, 1.0' % s(sHO + 1))
    A('v_mov_b32 %s, 0x%x' % (v(vT), OOB))
    A('v_cmp_eq_u32 vcc, 0, %s' % v(vLane))
    A('v_cndmask_b32 %s, %s, 0, vcc' % (v(vFo), v(vT)))
    tr_addr(A, vWa, vT, 8, s(sCh))
    A('v_add_u32 %s, %d, %s' % (v(vWa), L_W, v(vWa)))
    A('v_lshrrev_b32 %s, 5, %s' % (v(vT), v(vLane)))
    A('v_and_b32 %s, 31, %s' % (v(vT + 1), v(vLane)))
    A('v_bfe_u32 %s, %s, 1, 3' % (v(vT + 2), v(vLane)))
    A('v_xor_b32 %s, %s, %s' % (v(vT + 2), v(vT + 2), v(vT)))
    A('v_lshlrev_b32 %s, 4, %s' % (v(vT + 2), v(vT + 2)))
    A('v_lshl_add_u32 %s, %s, 7, %s' % (v(vT + 2), v(vT + 1), v(vT + 2)))
    A('s_lshl_b32 %s, %s, 12' % (s(sT0), s(sJ)))
    A('v_add_u32 %s, %s, %s' % (v(vXo), s(sT0), v(vT + 2)))
    for tt in range(1, 4):
        A('v_xor_b32 %s, %d, %s' % (v(vXo + tt), 32 * tt, v(vXo)))
    for tt in range(4):
        A('v_xor_b32 %s, 0x1000, %s' % (v(vXt + tt), v(vXo + tt)))
    A('v_lshlrev_b32 %s, 3, %s' % (v(vT + 2), v(vT + 1)))
    A('v_lshl_add_u32 %s, %s, 2, %s' % (v(vT + 2), v(vT), v(vT + 2)))
    A('v_add_u32 %s, %d, %s' % (v(vTa), TA, v(vT + 2)))
    A('s_lshl_b32 %s, %s, 8' % (s(sT0), s(sJ)))
    A('s_add_u32 %s, %s, %d' % (s(sT0), s(sT0), TB))
    A('v_add_u32 %s, %s, %s' % (v(vTb), s(sT0), v(vT + 2)))
    A('s_lshl_b32 %s, %s, 7' % (s(sT0), s(sJ)))
    A('s_add_u32 %s, %s, %d' % (s(sT0), s(sT0), TR))
    A('v_lshl_add_u32 %s, %s, 2, %s' % (v(vTr), v(vT + 1), s(sT0)))
    A('v_bfe_u32 %s, %s, 2, 2' % (v(vT + 2), v(vLane)))
    A('v_lshl_add_u32 %s, %s, 2, %s' % (v(vT + 2), v(vT), v(vT + 2)))
    A('v_bfe_u32 %s, %s, 4, 1' % (v(vT + 3), v(vLane)))
    A('v_bfe_u32 %s, %s, 1, 1' % (v(vT + 4), v(vLane)))
    A('v_lshl_add_u32 %s, %s, 1, %s' % (v(vT + 4), v(vT + 3), v(vT + 4)))
    A('v_lshlrev_b32 %s, 3, %s' % (v(vT + 4), v(vT + 4)))
    A('v_lshl_add_u32 %s, %s, 5, %s' % (v(vPa), v(vT + 2), v(vT + 4)))
    A('s_and_b32 %s, %s, %s' % (s(sT0), s(sCh), s(sTyp)))
    A('s_lshl_b32 %s, %s, 10' % (s(sT0), s(sT0)))
    A('s_add_u32 %s, %s, %d' % (s(sT0), s(sT0), TPH))
    A('v_add_u32 %s, %s, %s' % (v(vPa), s(sT0), v(vPa)))
    A('v_and_b32 %s, 1, %s' % (v(vT + 2), v(vLane)))
    A('v_bfe_u32 %s, %s, 2, 1' % (v(vT + 3), v(vLane)))
    A('v_xor_b32 %s, %s, %s' % (v(vT + 4), v(vT + 3), v(vT)))
    A('v_lshl_or_b32 %s, %s, 1, %s' % (v(vT + 4), v(vT + 4), v(vT + 2)))
    A('v_bfe_u32 %s, %s, 1, 1' % (v(vT + 5), v(vLane)))
    A('v_lshl_or_b32 %s, %s, 2, %s' % (v(vT + 4), v(vT + 5), v(vT + 4)))
    A('v_lshlrev_b32 %s, 4, %s' % (v(vT + 4), v(vT + 4)))
    A('v_lshl_add_u32 %s, %s, 7, %s' % (v(vT + 4), v(vT + 1), v(vT + 4)))
    A('s_lshl_b32 %s, %s, 16' % (s(sT1), s(sCh)))
    A('s_add_u32 %s, %s, %d' % (s(sT1), s(sT1), PH0))
    A('s_lshl_b32 %s, %s, 12' % (s(sT0), s(sJ)))
    A('s_add_u32 %s, %s, %s' % (s(sT0), s(sT0), s(sT1)))
    A('v_add_u32 %s, %s, %s' % (v(vPw), s(sT0), v(vT + 4)))
    A('v_bfe_u32 %s, %s, 4, 1' % (v(vT + 4), v(vLane)))
    A('v_xor_b32 %s, %s, %s' % (v(vT + 4), v(vT + 4), v(vT + 3)))
    A('v_xor_b32 %s, %s, %s' % (v(vT + 2), v(vT + 2), v(vT)))
    A('v_lshl_or_b32 %s, %s, 1, %s' % (v(vT + 4), v(vT + 2), v(vT + 4)))
    A('v_bfe_u32 %s, %s, 3, 1' % (v(vT + 2), v(vLane)))
    A('v_xor_b32 %s, %s, %s' % (v(vT + 2), s(sRg), v(vT + 2)))
    A('v_lshl_or_b32 %s, %s, 2, %s' % (v(vT + 4), v(vT + 2), v(vT + 4)))
    A('v_lshl_or_b32 %s, %s, 1, %s' % (v(vT + 4), v(vT + 4), v(vT + 5)))
    A('v_lshlrev_b32 %s, 3, %s' % (v(vT + 4), v(vT + 4)))
    A('v_bfe_u32 %s, %s, 2, 2' % (v(vT + 2), v(vLane)))
    A('v_lshl_add_u32 %s, %s, 2, %s' % (v(vT + 2), v(vT), v(vT + 2)))
    A('v_lshl_add_u32 %s, %s, 7, %s' % (v(vT + 4), v(vT + 2), v(vT + 4)))
    A('s_lshl_b32 %s, %s, 13' % (s(sT0), s(sRg)))
    A('s_add_u32 %s, %s, %s' % (s(sT0), s(sT0), s(sT1)))
    A('v_add_u32 %s, %s, %s' % (v(vPr), s(sT0), v(vT + 4)))
    A('s_lshl_b32 %s, %s, 13' % (s(sT1), s(sCh)))
    A('s_add_u32 %s, %s, %d' % (s(sT1), s(sT1), VB))
    A('s_lshl_b32 %s, %s, 11' % (s(sT0), s(sJ)))
    A('s_add_u32 %s, %s, %s' % (s(sT0), s(sT0), s(sT1)))
    A('v_add_u32 %s, %s, %s' % (v(vVw), s(sT0), v(vL16)))
    A('s_mul_i32 %s, %s, %d' % (s(sT0), s(sRg), 4096 + 256))
    A('s_add_u32 %s, %s, %s' % (s(sT0), s(sT0), s(sT1)))
    A('v_add_u32 %s, %s, %s' % (v(vT + 2), s(sT0), v(vL16)))
    A('s_lshl_b32 %s, %s, 7' % (s(sT0), s(sRg)))
    A('s_add_u32 %s, %s, %d' % (s(sT0), s(sT0), TS))
    A('v_lshl_add_u32 %s, %s, 4, %s' % (v(vT + 3), v(vT), s(sT0)))
    A('v_cmp_gt_u32 vcc, 16, %s' % v(vT + 1))
    A('v_cndmask_b32 %s, %s, %s, vcc' % (v(vVr), v(vT + 3), v(vT + 2)))
    A('v_mov_b32 %s, 1024' % v(vT + 2))
    A('v_cndmask_b32 %s, 32, %s, vcc' % (v(vSt), v(vT + 2)))
    A('v_lshl_add_u32 %s, %s, 4, %s' % (v(vT + 2), v(vT), v(vT + 1)))
    A('s_lshl_b32 %s, %s, 9' % (s(sT0), s(sRb)))
    A('v_lshl_add_u32 %s, %s, 4, %s' % (v(vT + 2), v(vT + 2), s(sT0)))
    A('v_mov_b32 %s, 0x%x' % (v(vT + 4), OOB))
    A('v_cndmask_b32 %s, %s, %s, vcc' % (v(vPo), v(vT + 4), v(vT + 2)))
    A('s_lshl_b32 %s, %s, 5' % (s(sT0), s(sRb)))
    A('s_add_u32 %s, %s, 8192' % (s(sT0), s(sT0)))
    A('v_lshl_add_u32 %s, %s, 4, %s' % (v(vT + 2), v(vT), s(sT0)))
    A('v_cmp_eq_u32 vcc, 16, %s' % v(vT + 1))
    A('v_cndmask_b32 %s, %s, %s, vcc' % (v(vPo), v(vPo), v(vT + 2)))
    A('s_lshl_b32 %s, %s, 1' % (s(sT0), s(sG)))
    A('v_add_u32 %s, %s, %s' % (v(vT + 2), s(sT0), v(vLane)))
    A('v_mul_u32_u24 %s, 43, %s' % (v(vT + 3), v(vT + 2)))
    A('v_lshrrev_b32 %s, 7, %s' % (v(vT + 3), v(vT + 3)))
    A('v_mul_u32_u24 %s, %d, %s' % (v(vT + 3), 128 - 24, v(vT + 3)))
    A('v_lshl_add_u32 %s, %s, 3, %s' % (v(vT + 2), v(vT + 2), v(vT + 3)))
    A('v_cmp_gt_u32 vcc, 2, %s' % v(vLane))
    A('v_cndmask_b32 %s, %s, %s, vcc' % (v(vF2), v(vT + 4), v(vT + 2)))
    if OPT['warm'] == 1:
        A('v_lshrrev_b32 %s, 2, %s' % (v(vT + 2), v(vT + 1)))
        A('v_and_b32 %s, 3, %s' % (v(vT + 3), v(vLane)))
        A('v_lshlrev_b32 %s, 2, %s' % (v(vT + 3), v(vT + 3)))
        A('v_lshl_add_u32 %s, %s, 7, %s' % (v(vT + 2), v(vT + 2), v(vT + 3)))
        A('v_lshl_add_u32 %s, %s, 15, %s' % (v(vT + 2), v(vT), v(vT + 2)))
        A('s_lshr_b32 %s, s2, 3' % s(sT0))
        A('s_lshl_b32 %s, %s, 10' % (s(sT0), s(sT0)))
        A('v_add_u32 %s, %s, %s' % (v(vWm), s(sT0), v(vT + 2)))
        A('s_lshl_b32 %s, %s, 18' % (s(sO[3]), s(sJ)))
        A('s_mul_i32 %s, %s, %d' % (s(sO[4]), s(sJ), 3 * 32768))
        A('s_lshl_b32 %s, %s, 17' % (s(sO[5]), s(sJ)))
    A('s_mul_i32 %s, %s, 768' % (s(sO[2]), s(sCh)))
    A('s_waitcnt lgkmcnt(0)')
    srd(A, SWS, 36, WS_SIZE)
    srd(A, SX, 16, 2048 * 1024)
    srd(A, SW2, 30, 1376 * 1024)
    srd(A, SWO, 22, 512 * 1024)
    stamp(A, 0)
    if OPT['prio']:
        A('s_setprio %d' % OPT['prio'])
    A('s_cmp_eq_u32 %s, 1' % s(sTyp))
    A.branch('s_cbranch_scc1 CX_START')

    def mfma(d, a_, b_, c):
        return 'v_mfma_f32_32x32x16_bf16 %s, %s, %s, %s' % (v(d, 16), v(a_, 4), v(b_, 4), v(d, 16) if c else '0')
    def frags(t):
        if t >= 32:
            return []
        st, k = divmod(t, 4)
        sl = st & 3
        tg = 'f%d' % t
        def wf(u):
            return [('ds_read_b64_tr_b16 %s, %s offset:%d' % (v(vWf + 8 * (t % 3) + 4 * u + 2 * hh, 2), v(vWa), 16384 * sl + 8192 * u + 2048 * k + 512 * hh), tg) for hh in range(2)]
        xf = [('ds_read_b128 %s, %s offset:%d' % (v(vX + 4 * t, 4), v(vXo + k), 16384 * sl), tg),
              ('ds_read_b128 %s, %s offset:%d' % (v(vXf + 4 * (t % 3), 4), v(vXt + k), 16384 * sl), tg)]
        return wf(0) + xf + wf(1)
    def softmax(D, P, M, rs=None):
        L = []
        L.append('v_max3_f32 %s, %s, %s, %s' % (v(M), v(D), v(D + 1), v(D + 2)))
        L.append('v_max3_f32 %s, %s, %s, %s' % (v(M + 1), v(D + 3), v(D + 4), v(D + 5)))
        L.append('v_max3_f32 %s, %s, %s, %s' % (v(M + 2), v(D + 6), v(D + 7), v(D + 8)))
        L.append('v_max3_f32 %s, %s, %s, %s' % (v(M + 3), v(D + 9), v(D + 10), v(D + 11)))
        L.append('v_max3_f32 %s, %s, %s, %s' % (v(M), v(M), v(D + 12), v(D + 13)))
        L.append('v_max3_f32 %s, %s, %s, %s' % (v(M + 1), v(M + 1), v(D + 14), v(D + 15)))
        L.append('v_max3_f32 %s, %s, %s, %s' % (v(M), v(M), v(M + 1), v(M + 2)))
        L.append('v_max_f32 %s, %s, %s' % (v(M), v(M), v(M + 3)))
        L.append('v_mul_f32 %s, 0x%x, %s' % (v(M), LOG2E | 0x80000000, v(M)))
        for i in range(8):
            L.append('v_pk_fma_f32 %s, %s, %s, %s op_sel_hi:[1,1,0]' % (v(D + 2 * i, 2), v(D + 2 * i, 2), s(sL2, 2), v(M, 2)))
        for i in range(16):
            L.append('v_exp_f32 %s, %s' % (v(D + i), v(D + i)))
        L.append('v_pk_add_f32 %s, %s, %s' % (v(M, 2), v(D, 2), v(D + 2, 2)))
        L.append('v_pk_add_f32 %s, %s, %s' % (v(M + 2, 2), v(D + 4, 2), v(D + 6, 2)))
        L.append('v_pk_add_f32 %s, %s, %s' % (v(M, 2), v(M, 2), v(D + 8, 2)))
        L.append('v_pk_add_f32 %s, %s, %s' % (v(M + 2, 2), v(M + 2, 2), v(D + 10, 2)))
        L.append('v_pk_add_f32 %s, %s, %s' % (v(M, 2), v(M, 2), v(D + 12, 2)))
        L.append('v_pk_add_f32 %s, %s, %s' % (v(M + 2, 2), v(M + 2, 2), v(D + 14, 2)))
        L.append('v_pk_add_f32 %s, %s, %s' % (v(M, 2), v(M, 2), v(M + 2, 2)))
        L.append('v_add_f32 %s, %s, %s' % (v(M), v(M), v(M + 1)))
        L.append('v_rcp_f32 %s, %s' % (v(M), v(M)))
        if rs is not None:
            L.append('v_mul_f32 %s, %s, %s' % (v(M), v(M), v(rs)))
        for i in range(8):
            L.append('v_pk_mul_f32 %s, %s, %s op_sel_hi:[1,0]' % (v(D + 2 * i, 2), v(D + 2 * i, 2), v(M, 2)))
        for i in range(8):
            L.append('v_cvt_pk_bf16_f32 %s, %s, %s' % (v(P + i), v(D + 2 * i), v(D + 2 * i + 1)))
        return L
    def pack(acc, P):
        for i in range(8):
            A('v_cvt_pk_bf16_f32 %s, %s, %s' % (v(P + i), v(acc + 2 * i), v(acc + 2 * i + 1)))
    def scale_pack(acc, P, rs):
        for i in range(8):
            A('v_pk_mul_f32 %s, %s, %s op_sel_hi:[1,0]' % (v(acc + 2 * i, 2), v(acc + 2 * i, 2), v(rs, 2)))
        pack(acc, P)
    def zipl(a_, b_):
        return [x for pr in zip(a_, b_) for x in pr]
    def mish(acc, r, E, V, so, tag, hook=(None, None), mv=None):
        mv = OPT['mv'] if mv is None else mv
        if hook[0] == 4: hook[1]()
        for i in range(8):
            if mv & 1:
                A('v_mul_f32 %s, %s, %s' % (v(acc + 2 * i), v(acc + 2 * i), v(vR[r])))
                A('v_mul_f32 %s, %s, %s' % (v(acc + 2 * i + 1), v(acc + 2 * i + 1), v(vR[r])))
            else:
                A('v_pk_mul_f32 %s, %s, %s op_sel_hi:[1,0]' % (v(acc + 2 * i, 2), v(acc + 2 * i, 2), v(vR[r], 2)))
        for i in range(16):
            A('v_exp_f32 %s, %s' % (v(E + i), v(acc + i)))
        for i in range(8):
            if mv & 2:
                A('v_fma_f32 %s, %s, 0.5, 1.0' % (v(V + 2 * i), v(E + 2 * i)))
                A('v_fma_f32 %s, %s, 0.5, 1.0' % (v(V + 2 * i + 1), v(E + 2 * i + 1)))
            else:
                A('v_pk_fma_f32 %s, %s, %s, %s op_sel:[0,0,1] op_sel_hi:[1,0,1]' % (v(V + 2 * i, 2), v(E + 2 * i, 2), s(sHO, 2), s(sHO, 2)))
        for i in range(8):
            if mv & 4:
                A('v_fma_f32 %s, %s, %s, 1.0' % (v(V + 2 * i), v(E + 2 * i), v(V + 2 * i)))
                A('v_fma_f32 %s, %s, %s, 1.0' % (v(V + 2 * i + 1), v(E + 2 * i + 1), v(V + 2 * i + 1)))
            else:
                A('v_pk_fma_f32 %s, %s, %s, %s op_sel:[0,0,1] op_sel_hi:[1,1,1]' % (v(V + 2 * i, 2), v(E + 2 * i, 2), v(V + 2 * i, 2), s(sHO, 2)))
        if hook[0] == 3: hook[1]()
        for i in range(16):
            A('v_rcp_f32 %s, %s' % (v(V + i), v(V + i)))
        if hook[0] == 2: hook[1]()
        for i in range(8):
            if mv & 8:
                A('v_fma_f32 %s, -%s, %s, %s' % (v(acc + 2 * i), v(acc + 2 * i), v(V + 2 * i), v(acc + 2 * i)))
                A('v_fma_f32 %s, -%s, %s, %s' % (v(acc + 2 * i + 1), v(acc + 2 * i + 1), v(V + 2 * i + 1), v(acc + 2 * i + 1)))
            else:
                A('v_pk_fma_f32 %s, %s, %s, %s neg_lo:[1,0,0] neg_hi:[1,0,0]' % (v(acc + 2 * i, 2), v(acc + 2 * i, 2), v(V + 2 * i, 2), v(acc + 2 * i, 2)))
        pack(acc, acc)
        A('buffer_store_dwordx4 %s, %s, %s, %s offen sc1' % (v(acc, 4), v(vL16), s(SWS, 4), s(so)), tag=tag)
        A('buffer_store_dwordx4 %s, %s, %s, %s offen offset:2048 sc1' % (v(acc + 4, 4), v(vL16), s(SWS, 4), s(so)), tag=tag)
        if hook[0] == 1: hook[1]()
    def flag(tag, so, off=0, vo=vFo):
        A.wait_vm(tag)
        A('buffer_store_dword %s, %s, %s, %s offen offset:%d sc1' % (v(vNon), v(vo), s(SWS, 4), s(so), off))
    def sign_flip(ph, n, t):
        A('v_bfe_u32 %s, %s, 2, 1' % (v(t), v(vLane)))
        A('v_mul_u32_u24 %s, 0x8000, %s' % (v(t), v(t)))
        A('v_lshl_or_b32 %s, %s, 16, %s' % (v(t), v(t), v(t)))
        A.wait_lg('ph')
        for i in range(n):
            A('v_xor_b32 %s, %s, %s' % (v(ph + i), v(t), v(ph + i)))

    def mish_fill(tiles, T):
        n = 16 * len(tiles)
        R = lambda i: tiles[i // 16][0] + i % 16
        E = lambda i: T + i % 3
        V = lambda i: T + 3 + i % 3
        mul = lambda i: 'v_mul_f32 %s, %s, %s' % (v(R(i)), v(R(i)), v(vR[tiles[i // 16][1]]))
        G = []; late = []
        for i in range(n + 2):
            a_ = [mul(0)] if i == 0 else []
            if i < n: a_.append('v_exp_f32 %s, %s' % (v(E(i)), v(R(i))))
            if 0 <= i - 1 < n: a_.append('v_fma_f32 %s, %s, %s, 1.0' % (v(V(i - 1)), v(E(i - 1)), v(V(i - 1))))
            if 0 <= i - 2 < n: a_.append('v_fma_f32 %s, -%s, %s, %s' % (v(R(i - 2)), v(R(i - 2)), v(V(i - 2)), v(R(i - 2))))
            b_ = []
            if 0 <= i - 1 < n: b_.append('v_rcp_f32 %s, %s' % (v(V(i - 1)), v(V(i - 1))))
            if i < n: b_.append('v_fma_f32 %s, %s, 0.5, 1.0' % (v(V(i)), v(E(i))))
            if i + 1 < n: b_.append(mul(i + 1))
            k = i - 2
            if k >= 0 and k & 1:
                acc, r, so, tag = tiles[k // 16]
                b_.append('v_cvt_pk_bf16_f32 %s, %s, %s' % (v(acc + (k % 16) // 2), v(R(k - 1)), v(R(k))))
                if k % 8 == 7:
                    st_ = ('buffer_store_dwordx4 %s, %s, %s, %s offen offset:%d sc1' % (v(acc + 4 * (k % 16 // 8), 4), v(vL16), s(SWS, 4), s(so), 2048 * (k % 16 // 8)), tag)
                    (b_ if OPT['sst'] else late).append(st_)
            G += [a_, b_]
        return G + [late]

    def pass_b(X, hooks, fill=(), split=False):
        vBa = 216
        vAp, vBp = (176, 184) if split else (0, 8)
        fill = list(fill)
        if OPT['prio']:
            A('s_setprio %d' % OPT['prio'])
        A('s_lshl_b32 %s, %s, 6' % (s(sT0), s(sCh)))
        A('v_xor_b32 %s, %s, %s' % (v(vBa), s(sT0), v(vWa)))
        A('v_add_u32 %s, %d, %s' % (v(vBa), L_E - L_W, v(vBa)))
        A('v_xor_b32 %s, 64, %s' % (v(vBa + 1), v(vBa)))
        A('v_mov_b32 %s, %d' % (v(vBa + 2), FL_P3))
        lds_wait(A, 'CP3%d' % X, v(vBa + 2), 4, 1, 220)
        stamp(A, 1, 8)
        win = [L_E, L_E]
        seq = [(uu, t) for uu in range(2) for t in range(32)] if split else [(uu, t) for t in range(32) for uu in range(2)]
        def fr(m):
            if m >= 64:
                return []
            uu, t = seq[m]
            st, k = divmod(t, 4)
            L = []
            w = P3B[st] & ~0xffff
            if w != win[uu]:
                L.append('v_add_u32 %s, %d, %s' % (v(vBa + uu), w - win[uu], v(vBa + uu)))
                win[uu] = w
            for hh in range(2):
                L.append(('ds_read_b64_tr_b16 %s, %s offset:%d' % (v(vWf + 4 * (m % 6) + 2 * hh, 2), v(vBa + uu), P3B[st] - w + 2048 * k + 512 * hh), 'g%d' % (m // 2)))
            return L
        for m in range(4):
            emit(A, fr(m))
        tb = [('ds_read_b32 %s, %s offset:%d' % (v(vAp + 4 * uu), v(vTa), 768 * uu + 512), 'tb') for uu in range(2)] + [('ds_read_b32 %s, %s' % (v(vBp), v(vTb)), 'tb')]
        zr = ['v_mov_b32 %s, 0' % v(vAp + i) for i in range(12) if i & 3]
        f0 = 34 if split else 0
        for m in range(64):
            uu, t = seq[m]
            nxt = fr(m + 4)
            z0 = 8 if split else 48
            if z0 <= m < z0 + 9:
                nxt.append(zr[m - z0])
            if m == (20 if split else 60):
                nxt += tb
            if m >= 61 and not X:
                nxt += [('ds_read_b64_tr_b16 %s, %s offset:%d' % (v(16 + 4 * h + 2 * hh, 2), v(vPa), 512 * h + 256 * hh), 'ph') for h in range(4) for hh in range(2)][3 * (m - 61):3 * (m - 60)]
            if m % 2 == 0:
                A.wait_lg('g%d' % (m // 2))
            A(mfma(ACC(0, uu), vWf + 4 * (m % 6), vX + 4 * t, t > 0))
            if split and m == 31:
                A(mfma(ACC(0, 0), vAp, vBp, True))
            if m in (15, 31, 63):
                stamp(A, {15: 2, 31: 6, 63: 7}[m], 8)
            emit(A, nxt)
            if m >= f0 and fill:
                emit(A, fill.pop(0))
            if m % 2 and m // 2 in hooks:
                hooks[m // 2]()
        A('s_lshl_b32 %s, %s, 2' % (s(sT0), s(sJ)))
        A('s_add_u32 %s, %s, %d' % (s(sT0), s(sT0), FL_PB))
        A('v_mov_b32 %s, %s' % (v(vBa), s(sT0)))
        A('v_mov_b32 %s, 2' % v(vBa + 1))
        A.wait_lg('tb')
        A('ds_write_b32 %s, %s' % (v(vBa), v(vBa + 1)))
        for uu in range(1 if split else 0, 2):
            A(mfma(ACC(0, uu), vAp + 4 * uu, vBp, True))
        for f in fill:
            emit(A, f)
        if OPT['prio']:
            A('s_setprio %d' % OPT['pr2'])
        stamp(A, 4)

    vAp, vBp, vPh = [208, 212], [224, 228], 192
    for X in (0, 1):
        A.vm = []; A.lg = []
        if X:
            A.label('CX_START')
        vOne = 8 if OPT['pt0'] < 0 else 124
        sPf = [SB, SB + 1, SB + 2, SB + 3]
        for i in range(4):
            A('v_mov_b32 %s, -1' % v(vOne + i))
        A('s_mul_i32 %s, %s, %d' % (s(sT1), s(sP2), NU * 4096))
        PF = []
        def pf(vo, so, off):
            PF.append(('buffer_store_dwordx4 %s, %s, %s, %s offen offset:%d sc1' % (v(vOne, 4), v(vo), s(SWS, 4), s(so), off), 'pf'))
        if X and OPT['kfp']:
            A('s_lshl_b32 %s, %s, 1' % (s(sT0), s(sG)))
            A('s_add_u32 %s, %s, %s' % (s(sT0), s(sT0), s(sCh)))
            A('s_lshl_b32 %s, %s, 1' % (s(sT0), s(sT0)))
            A('s_add_u32 %s, %s, %s' % (s(sT0), s(sT0), s(sRg)))
            A('s_mul_i32 %s, %s, %d' % (s(sT0), s(sT0), 2 * KVS))
            A('s_add_u32 %s, %s, 0x%x' % (s(sPf[0]), s(sT0), WS_KVP))
            A('s_add_u32 %s, %s, %d' % (s(sPf[1]), s(sPf[0]), KVS))
            pf(vPo, sPf[0], 0)
            pf(vPo, sPf[1], 0)
        if not X and OPT['h2p'] and not OPT['nv']:
            A('s_lshl_b32 %s, %s, 2' % (s(sT0), s(sG)))
            A('s_add_u32 %s, %s, %s' % (s(sT0), s(sT0), s(sCh)))
            A('s_add_u32 %s, %s, 2' % (s(sT0), s(sT0)))
            A('s_lshl_b32 %s, %s, 12' % (s(sT0), s(sT0)))
            A('s_add_u32 %s, %s, %s' % (s(sPf[0]), s(sT0), s(sT1)))
            for q in range(4):
                pf(vL16, sPf[0], 1024 * q)
        if OPT['hfp' if X else 'ofp'] and not OPT['nv']:
            A('s_lshl_b32 %s, %s, 3' % (s(sT0), s(sGq)))
            A('s_add_u32 %s, %s, %s' % (s(sT0), s(sT0), s(sCh)))
            A('s_add_u32 %s, %s, %d' % (s(sT0), s(sT0), 4 * (32 if X else 44)))
            A('s_lshl_b32 %s, %s, 10' % (s(sT0), s(sT0)))
            A('s_add_u32 %s, %s, %s' % (s(sPf[2]), s(sT0), s(sT1)))
            if X:
                A('s_cmp_ge_u32 %s, 6' % s(sG))
                A('s_cselect_b32 %s, 0x%x, %s' % (s(sPf[2]), OOB, s(sPf[2])))
            A('s_add_u32 %s, %s, 4096' % (s(sPf[3]), s(sPf[2])))
            for q in range(4):
                pf(vL16, sPf[2 + (q >> 1)], 2048 * (q & 1))
        if OPT['pt0'] < 0:
            emit(A, PF)
            PF = []
        A('s_barrier')
        stamp(A, 1)
        emit(A, frags(0))
        emit(A, frags(1))
        for t in range(32):
            st, k = divmod(t, 4)
            nxt = frags(t + 2)
            if t == 30:
                A('v_add_u32 %s, %s, %s' % (v(vAp[0]), s(sO[2]), v(vTa)))
                A('v_xor_b32 %s, 256, %s' % (v(vBp[1]), v(vTb)))
                A('v_xor_b32 %s, 128, %s' % (v(vR[1]), v(vTr)))
                A('v_mov_b32 %s, %d' % (v(vNon), TN))
                nxt = [('ds_read_b32 %s, %s offset:256' % (v(vAp[1]), v(vAp[0])), 'tb'),
                       ('ds_read_b32 %s, %s' % (v(vAp[0]), v(vAp[0])), 'tb'),
                       ('ds_read_b32 %s, %s' % (v(vBp[0]), v(vTb)), 'tb'),
                       ('ds_read_b32 %s, %s' % (v(vBp[1]), v(vBp[1])), 'tb'),
                       ('ds_read_b32 %s, %s' % (v(vR[0]), v(vTr)), 'tb'),
                       ('ds_read_b32 %s, %s' % (v(vR[1]), v(vR[1])), 'tb'),
                       ('ds_read_b32 %s, %s' % (v(vNon), v(vNon)), 'tb')]
            if t == 31:
                nxt = ['v_mov_b32 %s, 0' % v(b + i) for b in vAp + vBp for i in range(1, 4)]
                if X:
                    nxt = [('ds_read_b64_tr_b16 %s, %s offset:%d' % (v(vPh + 4 * h + 2 * hh, 2), v(vPa), 512 * h + 256 * hh), 'ph') for h in range(2) for hh in range(2)] + nxt
            A.wait_lg('f%d' % t)
            per = (len(nxt) + 2) // 3
            n = 0
            for u in range(2):
                for r in range(2):
                    w_, x_ = vWf + 8 * (t % 3) + 4 * u, (vX + 4 * t if r == 0 else vXf + 4 * (t % 3))
                    if X and u == 1:
                        w_, x_ = x_, w_
                    A(mfma(ACC(u, r), w_, x_, t > 0))
                    if k == 2 and n == 0:
                        A.wait_lg(None)
                        if st in (4, 5, 6, 7):
                            stamp(A, {4: 1, 5: 2, 6: 8, 7: 4}[st], 3)
                        A('s_barrier')
                        if st == 3:
                            stamp(A, 2)
                    WL = [(3, 0, SW2), (3, 4, SW2), (3, 2, SW2), (3, 6, SW2), (4, 34, SW2), (4, 32, SW2), (5, 0, SWO), (5, 2, SWO)]
                    wq = 4 * (t - OPT['wt0']) + n - 3
                    wk = []
                    if OPT['warm'] == 1 and wq >= 0:
                        wk = WL if (OPT['wd'] == 0 and wq == 0) else [WL[wq // OPT['wd']]] if (OPT['wd'] and wq % OPT['wd'] == 0 and wq // OPT['wd'] < 8) else []
                    for base, c_, sr in wk:
                        A('s_add_u32 %s, %s, %d' % (s(sT0), s(sO[base]), c_ * 32768))
                        A('buffer_load_dword %s, %s, %s, %s offen' % (v(vWm + 1), v(vWm), s(sr, 4), s(sT0)), tag='wm')
                    pq = 4 * (t - OPT['pt0']) + n - 1
                    if PF and t < 29 and pq >= 0 and pq % OPT['pd'] == 0:
                        emit(A, [PF.pop(0)])
                    emit(A, nxt[per * n:per * n + per])
                    n += 1
        assert not PF
        stamp(A, 3)
        if OPT['prio']:
            A('s_setprio 0')
        A.wait_lg('tb')
        for u in range(2):
            for r in range(2):
                p_, q_ = vAp[u], vBp[r]
                if X and u == 1:
                    p_, q_ = q_, p_
                A(mfma(ACC(u, r), p_, q_, True))
        if not X:
            A('v_mov_b32 %s, %s' % (v(vR0), v(vR[0])))
            for r in range(2):
                A('v_mul_f32 %s, 0x%x, %s' % (v(vR[r]), LOG2E, v(vR[r])))
        A('v_readfirstlane_b32 %s, %s' % (s(sNonce), v(vNon)))
        sOut, sFl = sO[4], sO[5]
        A('s_lshl_b32 %s, %s, 10' % (s(sFl), s(sP2)))
        A('s_add_u32 %s, %s, 0x%x' % (s(sFl), s(sFl), WS_F))
        A('s_mul_i32 %s, %s, %d' % (s(sOut), s(sP2), NU * 4096))
        A('s_lshl_b32 %s, %s, 10' % (s(sT0), s(sCh)))
        A('s_add_u32 %s, %s, %s' % (s(sOut), s(sOut), s(sT0)))
        if not X:
            A('s_lshl_b32 %s, %s, 2' % (s(sT0), s(sG)))
            A('s_add_u32 %s, %s, %s' % (s(sT0), s(sT0), s(sCh)))
            A('s_lshl_b32 %s, %s, 12' % (s(sT0), s(sT0)))
            A('s_add_u32 %s, %s, %s' % (s(sO[0]), s(sOut), s(sT0)))
            A('s_xor_b32 %s, %s, 1024' % (s(sO[1]), s(sO[0])))
            A('s_add_u32 %s, %s, 8192' % (s(SB), s(sO[0])))
            A('s_add_u32 %s, %s, 8192' % (s(SB + 1), s(sO[1])))
            sF2 = sT3
            A('s_lshr_b32 %s, %s, 1' % (s(sT0), s(sG)))
            A('s_lshl_b32 %s, %s, 5' % (s(sT0), s(sT0)))
            A('s_and_b32 %s, %s, 1' % (s(sT1), s(sG)))
            A('s_lshl_b32 %s, %s, 1' % (s(sT1), s(sT1)))
            A('s_add_u32 %s, %s, %s' % (s(sT0), s(sT0), s(sT1)))
            A('s_add_u32 %s, %s, %s' % (s(sT0), s(sT0), s(sCh)))
            A('s_lshl_b32 %s, %s, 2' % (s(sT0), s(sT0)))
            A('s_add_u32 %s, %s, %s' % (s(sF2), s(sFl), s(sT0)))
            A('s_lshr_b32 %s, %s, 2' % (s(sT0), s(sGq)))
            A('s_lshl_b32 %s, %s, 1' % (s(sT0), s(sT0)))
            A('s_add_u32 %s, %s, %s' % (s(sT0), s(sT0), s(sCh)))
            A('s_lshl_b32 %s, %s, 5' % (s(sT0), s(sT0)))
            A('s_and_b32 %s, %s, 3' % (s(sT1), s(sGq)))
            A('s_add_u32 %s, %s, %s' % (s(sT0), s(sT0), s(sT1)))
            A('s_lshl_b32 %s, %s, 2' % (s(sT0), s(sT0)))
            A('s_add_u32 %s, %s, %s' % (s(sFl), s(sFl), s(sT0)))
            A('s_lshl_b32 %s, %s, 13' % (s(sT0), s(sGq)))
            A('s_add_u32 %s, %s, %s' % (s(sOut), s(sOut), s(sT0)))
            A('s_add_u32 %s, %s, %d' % (s(sOut), s(sOut), 44 * 4096))
            E, V = 192, 208
            mish(ACC(0, 0), 0, E, V, sO[0], 'h1')
            mish(ACC(0, 1), 1, E, V, sO[1], 'h1')
            H2 = OPT['h2']
            stamp(A, 8)
            pass_b(0, {OPT['f2']: lambda: flag('h1', sF2)},
                   mish_fill([(ACC(1, r), r, SB + r, 'h2') for r in range(2)], 224) if H2 == 4 else ())
            ph, D, P, M = 16, [32, 48, 64, 80], [96, 104, 112, 120], [12, 224]
            sign_flip(ph, 16, M[0])
            for uu in range(2):
                scale_pack(ACC(0, uu), ACC(0, uu), vR0)
                for h in range(2):
                    A(mfma(D[2 * uu + h], ph + 8 * uu + 4 * h, ACC(0, uu) + 4 * h, False))
            vKa, KF = 228, 128
            A('v_and_b32 %s, 31, %s' % (v(vKa), v(vLane)))
            A('v_min_u32 %s, 16, %s' % (v(vKa), v(vKa)))
            A('v_lshrrev_b32 %s, 5, %s' % (v(vKa + 1), v(vLane)))
            A('v_mul_u32_u24 %s, 17, %s' % (v(vKa + 1), v(vKa + 1)))
            A('v_add_lshl_u32 %s, %s, %s, 4' % (v(vKa), v(vKa), v(vKa + 1)))
            A('v_add_u32 %s, %d, %s' % (v(vKa), KVL, v(vKa)))
            A('v_mov_b32 %s, %d' % (v(vKa + 1), FL_KV))
            A('s_lshl_b32 %s, %s, 2' % (s(sT0), s(sJ)))
            A('v_add_u32 %s, %s, %s' % (v(vKa + 2), s(sT0), v(vKa + 1)))
            A('s_add_u32 %s, %s, 4096' % (s(sO[0]), s(sOut)))
            stamp(A, 3, 2)
            emit(A, zipl(softmax(D[0], P[0], M[0]), softmax(D[1], P[1], M[1])))
            if H2 == 4 and OPT['h2w'] == 1:
                flag('h2', sF2, 16)
            emit(A, zipl(softmax(D[2], P[2], M[0]), softmax(D[3], P[3], M[1])))
            if H2 == 4 and OPT['h2w'] == 2:
                flag('h2', sF2, 16)
            stamp(A, 1, 2)
            h2f = lambda: flag('pf', sF2, 16)
            def h2m(r):
                mish(ACC(1, r), r, E, V, SB + r, 'h2', (OPT['h2p'] - 4 * (1 - r), h2f))
            if H2 in (1, 3):
                h2m(0)
            if H2 == 1:
                h2m(1)
            def ofl(k):
                if OPT['ofp'] == k:
                    flag('pf', sFl, 512)
                if H2 == 1 and not OPT['h2p'] and OPT['h2q'] == k:
                    flag('h2', sF2, 16)
            ofl(4)
            rd = ['ds_read_b128 %s, %s offset:%d' % (v(KF + 8 * n + 4 * c, 4), v(vKa), KVH * n + 544 * c) for n in range(4) for c in range(2)]
            lds_wait(A, 'CKV', v(vKa + 1), 4, 1, 220, rd)
            stamp(A, 2, 2)
            def omf(n):
                for c in range(2):
                    A(mfma(D[n], KF + 8 * n + 4 * c, P[n] + 4 * c, c > 0))
            def ofin(n):
                d = D[n]
                A('v_add_f32 %s, 0x358637bd, %s' % (v(d + 8), v(d + 8)))
                A('v_rcp_f32 %s, %s' % (v(d + 8), v(d + 8)))
                for i in range(8):
                    A('v_mul_f32 %s, %s, %s' % (v(d + i), v(d + i), v(d + 8)))
                for i in range(4):
                    A('v_cvt_pk_bf16_f32 %s, %s, %s' % (v(d + i), v(d + 2 * i), v(d + 2 * i + 1)))
                A('buffer_store_dwordx4 %s, %s, %s, %s offen offset:%d sc1' % (v(d, 4), v(vL16), s(SWS, 4), s(sO[0] if n >> 1 else sOut), 2048 * (n & 1)), tag='o')
            omf(0); omf(1); ofl(2); ofin(0); omf(2); ofin(1); ofl(3); omf(3); ofin(2); ofin(3); ofl(1)
            if OPT['bq'] >= 2:
                A('v_subrev_u32 %s, %d, %s' % (v(vKa + 2), FL_KV - FL_EX, v(vKa + 2)))
                A('ds_write_b32 %s, %s' % (v(vKa + 2), v(vKa + 2)))
            stamp(A, 4, 2)
            if H2 == 2:
                h2m(0)
            if H2 == 3:
                h2m(1)
            if not OPT['ofp']:
                flag('o', sFl, 512)
            if H2 == 2:
                h2m(1)
            if H2 in (2, 3) and not OPT['h2p']:
                flag('h2', sF2, 16)
            A.branch('s_branch C_P2')
        else:
            D, M, vBd, KV = [200, 144, 176, 160], [224, 228], 216, 200
            vEf = 248
            sKp, sKf = sO[0], sO[1]
            for q in range(8):
                if q == 0:
                    A('v_lshlrev_b32 %s, 2, %s' % (v(vBd + 4), v(vSt)))
                elif q == 4:
                    A('v_xor_b32 %s, %s, %s' % (v(vBd + 4), v(vBd + 4), v(vVr)))
                else:
                    A('v_add_u32 %s, %s, %s' % (v(vBd + q), v(vVr if q == 1 else vBd + q - 1), v(vSt)))
            stamp(A, 1, 5)
            sign_flip(vPh, 8, 253)
            stamp(A, 2, 5)
            scale_pack(ACC(0, 0), 128, vR[0])
            A(mfma(D[0], vPh, 128, False))
            scale_pack(ACC(0, 1), 136, vR[1])
            A(mfma(D[1], vPh + 4, 132, False))
            stamp(A, 8, 5)
            for r in range(2):
                pack(ACC(1, r), 160 + 8 * r)
                if r == 0:
                    A('ds_write_b128 %s, %s' % (v(vVw), v(160, 4)))
            A('v_xor_b32 %s, 2048, %s' % (v(253), v(vVw)))
            A(mfma(D[2], vPh, 136, False))
            stamp(A, 4, 5)
            A('s_lshl_b32 %s, %s, 3' % (s(sT0), s(sJ)))
            A('s_add_u32 %s, %s, %d' % (s(sT0), s(sT0), FL_EX))
            A('v_mov_b32 %s, %s' % (v(vEf), s(sT0)))
            A('s_lshl_b32 %s, %s, 1' % (s(sT0), s(sG)))
            A('s_add_u32 %s, %s, %s' % (s(sT0), s(sT0), s(sCh)))
            A('s_lshl_b32 %s, %s, 1' % (s(sT0), s(sT0)))
            A('s_add_u32 %s, %s, %s' % (s(sT0), s(sT0), s(sRg)))
            A('s_mul_i32 %s, %s, %d' % (s(sKp), s(sT0), 2 * KVS))
            A('s_add_u32 %s, %s, 0x%x' % (s(sKp), s(sKp), WS_KVP))
            A('s_add_u32 %s, %s, %d' % (s(sO[2]), s(sKp), KVS))
            A('s_lshl_b32 %s, %s, 5' % (s(sKf), s(sT0)))
            A('s_add_u32 %s, %s, %s' % (s(sKf), s(sKf), s(sRb)))
            A('s_lshl_b32 %s, %s, 2' % (s(sKf), s(sKf)))
            A('s_add_u32 %s, %s, 0x%x' % (s(sKf), s(sKf), WS_KF))
            if OPT['kfp'] == 5:
                flag('pf', sKf)
            stamp(A, 1, 1)
            stamp(A, 1, 4)
            stamp(A, 5, 5)
            def spread(base, ins, first, step):
                L = list(base)
                for n_, it in reversed(list(enumerate(ins))):
                    L[first + step * n_:first + step * n_] = it
                return L
            def pwr(r, h, e):
                x_ = 4096 * r + 64 * h + 16 * e
                tmp = 128 + 2 * h + e
                return (['v_xor_b32 %s, %d, %s' % (v(tmp), x_, v(vPw))] if x_ else []) + ['ds_write_b128 %s, %s' % (v(tmp if x_ else vPw), v(D[2 * r + h] + 4 * e, 4))]
            sm = [softmax(D[n], D[n], M[n & 1], vR[n >> 1]) for n in range(4)]
            vw = [['ds_write_b128 %s, %s offset:%d' % (v(253 if n >> 1 else vVw), v(160 + 4 * n, 4), 1024 * (n & 1))] for n in range(1, 4)]
            emit(A, spread(zipl(sm[0], sm[1]), vw + [[mfma(D[3], vPh + 4, 140, False)]], 2, 20))
            stamp(A, 2, 4)
            emit(A, spread(zipl(sm[2][:-16], sm[3][:-16]), [pwr(0, h, e) for e in range(2) for h in range(2)], 0, 18))
            stamp(A, 4, 4)
            def kfl(k):
                if OPT['kfp'] == k:
                    flag('pf', sKf)
            kfl(4)
            for n in (2, 3):
                emit(A, sm[n][-16:-12] + sm[n][-8:-4] + pwr(1, n & 1, 0) + sm[n][-12:-8] + sm[n][-4:] + pwr(1, n & 1, 1))
            stamp(A, 5, 4)
            A('ds_write_b32 %s, %s' % (v(vEf), v(vEf)))
            kfl(3)
            stamp(A, 2, 1)
            def kvf(q):
                L = [('ds_read_b64_tr_b16 %s, %s offset:%d' % (v(128 + 4 * q + 2 * hh, 2), v(vPr), 2048 * (q & 3) + 1024 * hh), 'q%d' % q) for hh in range(2)]
                return L + [('ds_read_b128 %s, %s' % (v(160 + 4 * q, 4), v(vBd + q if q else vVr)), 'q%d' % q)]
            for q in range(4):
                emit(A, kvf(q))
            A('v_xor_b32 %s, %d, %s' % (v(vEf), FL_EX ^ (FL_EX + 16), v(vEf)))
            A('v_xor_b32 %s, 8192, %s' % (v(vPr), v(vPr)))
            lds_wait(A, 'CEX', v(vEf), 1, 1, M[0])
            stamp(A, 6, 4)
            kfl(2)
            for q in range(8):
                A.wait_lg('q%d' % q)
                A(mfma(KV, 128 + 4 * q, 160 + 4 * q, q > 0))
                if q < 4:
                    emit(A, kvf(q + 4))
            A('s_lshl_b32 %s, %s, 13' % (s(sT0), s(sG)))
            A('s_add_u32 %s, %s, %s' % (s(sOut), s(sOut), s(sT0)))
            A('s_add_u32 %s, %s, %d' % (s(sOut), s(sOut), 32 * 4096))
            A('s_add_u32 %s, %s, 4096' % (s(sO[3]), s(sOut)))
            A('s_lshl_b32 %s, %s, 2' % (s(sT0), s(sCh)))
            A('s_add_u32 %s, %s, %s' % (s(sFl), s(sFl), s(sT0)))
            A('s_lshl_b32 %s, %s, 2' % (s(sT0), s(sJ)))
            A('s_add_u32 %s, %s, %d' % (s(sT0), s(sT0), FL_KV))
            A('v_mov_b32 %s, %s' % (v(vEf), s(sT0)))
            if OPT['fke']:
                A('ds_write_b32 %s, %s' % (v(vEf), v(vEf)))
            A('v_mul_f32 %s, 0x%x, %s' % (v(vR[0]), LOG2E, v(vR[0])))
            for c in range(2):
                for i in range(4):
                    A('v_cvt_pk_bf16_f32 %s, %s, %s' % (v(160 + 4 * c + i), v(KV + 8 * c + 2 * i), v(KV + 8 * c + 2 * i + 1)))
                A('buffer_store_dwordx4 %s, %s, %s, %s offen sc1' % (v(160 + 4 * c, 4), v(vPo), s(SWS, 4), s(sO[2] if c else sKp)), tag='kp')
            kfl(1)
            stamp(A, 8)
            stamp(A, 7, 4)
            def kflag():
                if not OPT['kfp']:
                    flag('kp', sKf)
                if not OPT['fke']:
                    A('ds_write_b32 %s, %s' % (v(vEf), v(vEf)))
            A('s_cmp_ge_u32 %s, 6' % s(sG))
            A.branch('s_cbranch_scc1 CX_NOH')
            vm1 = list(A.vm)
            hf = lambda: flag('pf', sFl, 32, vF2)
            if OPT['xsp']:
                pass_b(1, {OPT['f3']: kflag}, mish_fill([(ACC(0, 0), 0, sOut, 'h')], 224), True)
            else:
                pass_b(1, {OPT['f3']: kflag})
                mish(ACC(0, 0), 0, 16, 32, sOut, 'h', (OPT['hfp'] - 4, hf))
            mish(ACC(0, 1), 0, 16, 32, sO[3], 'h', (OPT['hfp'], hf), OPT['xmv'])
            stamp(A, 1, 2)
            if not OPT['hfp']:
                flag('h', sFl, 32, vF2)
            A.branch('s_branch C_P2')
            A.label('CX_NOH')
            A.vm = vm1
            kflag()
            A('s_lshl_b32 %s, %s, 2' % (s(sT0), s(sJ)))
            A('s_add_u32 %s, %s, %d' % (s(sT0), s(sT0), FL_PB))
            A('v_mov_b32 %s, %s' % (v(M[0]), s(sT0)))
            A('v_mov_b32 %s, 2' % v(M[0] + 1))
            A('ds_write_b32 %s, %s' % (v(M[0]), v(M[0] + 1)))
    A.label('C_P2')
    A.vm = []; A.lg = []
    stamp(A, 5)
    vAcc, vO, vW = 0, 32, 96
    vA0, vFl, vFv, vT = 232, 236, 237, 248
    sFl, sAct = sO[0], sO[1]
    A('v_lshlrev_b32 %s, 2, %s' % (v(vFl), v(vLane)))
    A('v_and_b32 %s, 0x7c, %s' % (v(vFl), v(vFl)))
    A('s_lshl_b32 %s, %s, 3' % (s(sFl), s(sRb2)))
    A('s_add_u32 %s, %s, %s' % (s(sFl), s(sFl), s(sWave)))
    A('s_lshl_b32 %s, %s, 7' % (s(sFl), s(sFl)))
    A('s_add_u32 %s, %s, 0x%x' % (s(sFl), s(sFl), WS_F))
    xres(A, 240, 244)
    qload = 'buffer_load_dword %s, %s, %s, %s offen sc1' % (v(vFv), v(vFl), s(SWS, 4), s(sFl))
    A(qload, tag='fl')
    A('s_mul_i32 %s, %s, %d' % (s(sAct), s(sRb2), NU * 4096))
    A('s_lshl_b32 %s, %s, 5' % (s(sT0), s(sRg)))
    A('s_add_u32 %s, %s, %s' % (s(sT0), s(sT0), s(sCh)))
    A('s_lshl_b32 %s, %s, 10' % (s(sT0), s(sT0)))
    A('s_add_u32 %s, %s, %s' % (s(sAct), s(sAct), s(sT0)))
    A('s_add_u32 %s, %s, %d' % (s(sAct), s(sAct), 44 * 4096))
    tr_addr(A, vA0, vT, 4, None)
    A('s_lshl_b32 %s, %s, 13' % (s(sT2), s(sRg)))
    A('s_add_u32 %s, %s, 32768' % (s(sT2), s(sT2)))
    A('v_add_u32 %s, %s, %s' % (v(vA0), s(sT2), v(vA0)))
    A('v_xor_b32 %s, 64, %s' % (v(vA0 + 1), v(vA0)))
    A('v_add_u32 %s, %d, %s' % (v(vA0 + 2), L_W, v(vA0)))
    A('v_add_u32 %s, %d, %s' % (v(vA0 + 3), L_W, v(vA0 + 1)))
    A('s_lshl_b32 %s, %s, 12' % (s(sT2), s(sJ)))
    A('s_add_u32 %s, %s, 32768' % (s(sT2), s(sT2)))
    wr = reduce_write(A, vAcc, 224, sT2, 1)
    A('v_mov_b32 %s, %d' % (v(238), FL_P3))
    A('s_lshl_b32 %s, %s, 2' % (s(sT2), s(sJ)))
    A('s_add_u32 %s, %s, %d' % (s(sT2), s(sT2), FL_WR))
    A('v_mov_b32 %s, %s' % (v(239), s(sT2)))
    lds_wait(A, 'CWO', v(238), 4, 3, vT)
    for u in range(8):
        a_, p = u >> 2, u & 3
        for c in range(2):
            for nt in range(2):
                for hh in range(2):
                    A('ds_read_b64_tr_b16 %s, %s offset:%d' % (v(vW + 16 * u + 8 * c + 4 * nt + 2 * hh, 2), v(vA0 + 2 * (p >> 1) + nt), 16384 * (p & 1) + 4096 * a_ + 2048 * c + 1024 * hh))
    A('ds_write_b32 %s, %s' % (v(239), v(239)))
    A('v_xor_b32 %s, 4, %s' % (v(238), v(239)))
    A.wait_vm('fl')
    poll(A, 'CQ', qload, vFv, '0xf')
    stamp(A, 6)
    def oload(n):
        if n < 16:
            if n and n % 2 == 0:
                A('s_add_u32 %s, %s, 4096' % (s(sAct), s(sAct)))
            A('buffer_load_dwordx4 %s, %s, %s, %s offen offset:%d sc1' % (v(vO + 4 * n, 4), v(vL16), s(SWS, 4), s(sAct), 2048 * (n & 1)), tag='o%d' % n)
    for n in range(OPT['oi']):
        oload(n)
    stamp(A, 1, 7)
    lds_wait(A, 'CWR', v(238), 1, 1, vT)
    for u in range(8):
        for c in range(2):
            A.wait_vm('o%d' % (2 * u + c))
            if 2 * u + c in (0, 7, 15):
                stamp(A, {0: 2, 7: 3, 15: 8}[2 * u + c], 7)
            for nt in range(2):
                A(mfma(vAcc + 16 * nt, vW + 16 * u + 8 * c + 4 * nt, vO + 8 * u + 4 * c, u or c))
            oload(2 * u + c + OPT['oi'])
    emit(A, wr)
    stamp(A, 4, 7)

def gen_final(A):
    A.label('F_START')
    vOo, vX, t = 240, 244, 72
    srd(A, SO, 32, 2048 * 1024)
    A('s_and_b32 %s, %s, 3' % (s(sT0), s(sWave)))
    A('s_lshl_b32 %s, %s, 10' % (s(sT0), s(sT0)))
    A('s_lshr_b32 %s, %s, 2' % (s(sT1), s(sWave)))
    A('s_lshl_b32 %s, %s, 14' % (s(sT1), s(sT1)))
    A('s_add_u32 %s, %s, %s' % (s(sT0), s(sT0), s(sT1)))
    A('v_lshrrev_b32 %s, 3, %s' % (v(t), v(vLane)))
    A('v_bfe_u32 %s, %s, 2, 1' % (v(t + 1), v(vLane)))
    A('v_and_b32 %s, 3, %s' % (v(t + 2), v(vLane)))
    A('v_lshlrev_b32 %s, 1, %s' % (v(t + 2), v(t + 2)))
    A('v_xor_b32 %s, %s, %s' % (v(t + 2), v(t + 2), v(t)))
    A('v_xor_b32 %s, %s, %s' % (v(t + 2), v(t + 2), v(t + 1)))
    A('v_lshlrev_b32 %s, 4, %s' % (v(t + 2), v(t + 2)))
    A('v_lshl_add_u32 %s, %s, 7, %s' % (v(t + 2), v(t), v(t + 2)))
    A('v_add_u32 %s, %s, %s' % (v(t + 2), s(sT0), v(t + 2)))
    A('v_lshl_add_u32 %s, %s, 16, %s' % (v(t + 3), v(t + 1), v(t + 2)))
    A('v_xor_b32 %s, 16, %s' % (v(t + 4), v(t + 3)))
    A('s_mul_i32 %s, %s, 3' % (s(sT1), s(sT1)))
    A('s_lshr_b32 %s, %s, 2' % (s(sT1), s(sT1)))
    for hh in range(2):
        A('v_subrev_u32 %s, %s, %s' % (v(t + 5 + hh), s(sT1), v(t + 3 + hh)))
    A('s_waitcnt vmcnt(0)')
    X = 80
    for i in range(4):
        A('v_lshlrev_b32 %s, 16, %s' % (v(X + 2 * i), v(vX + i)))
        A('v_and_b32 %s, 0xffff0000, %s' % (v(X + 2 * i + 1), v(vX + i)))
    A('s_waitcnt lgkmcnt(0)')
    A.lg = []
    A('s_barrier')
    stamp(A, 7)
    R = 96
    for p in range(6):
        for hh in range(2):
            A('ds_read_b128 %s, %s offset:%d' % (v(R + 8 * p + 4 * hh, 4), v(t + 3 + hh + (2 if p >= 4 else 0)), 4096 * p if p < 4 else 32768 + 8192 * (p - 4)), tag='r%d' % (p >> 1))
    for g in range(3):
        A.wait_lg('r%d' % g)
        r = R + 16 * g
        for i in range(4):
            A('v_pk_add_f32 %s, %s, %s' % (v(r + 2 * i, 2), v(r + 2 * i, 2), v(r + 8 + 2 * i, 2)))
        for i in range(4):
            A('v_pk_add_f32 %s, %s, %s' % (v(X + 2 * i, 2), v(X + 2 * i, 2), v(r + 2 * i, 2)))
    for i in range(4):
        A('v_cvt_pk_bf16_f32 %s, %s, %s' % (v(X + i), v(X + 2 * i), v(X + 2 * i + 1)))
    A('buffer_store_dwordx4 %s, %s, %s, %s offen%s' % (v(X, 4), v(vOo), s(SO, 4), s(6), {0: '', 1: ' sc1', 2: ' nt', 3: ' sc0 sc1'}[OPT['ost']]))
    if OPT['stamps']:
        A('s_waitcnt vmcnt(0)')
        A('%s s[14:15]' % ('s_memtime' if OPT['clk'] else 's_memrealtime'))
        A('s_waitcnt lgkmcnt(0)')
        A('s_lshl_b32 %s, s2, 3' % s(sT2))
        A('s_add_u32 %s, %s, %s' % (s(sT2), s(sT2), s(sWave)))
        A('s_lshl_b32 %s, %s, 6' % (s(sT2), s(sT2)))
        A('s_add_u32 %s, %s, 0x%x' % (s(sT2), s(sT2), WS_STAMP))
        A('v_mov_b32 %s, 0' % v(1))
        for i, r in enumerate(STREG + [14, sRt]):
            A('v_mov_b32 %s, %s' % (v(0), s(r)))
            A('buffer_store_dword %s, %s, %s, %s offen offset:%d' % (v(0), v(1), s(SWS, 4), s(sT2), 4 * i))
    A.label('L_END')
    A('s_endpgm')
    for x in TAIL:
        A.raw(x if x.endswith(':') else '    ' + x)

def main():
    body = gen()
    out = []
    out.append('; @launch grid=(256,1,1) block=(512,1,1) lds=163840')
    out.append('.amdgcn_target "amdgcn-amd-amdhsa--gfx950"')
    out.append('.text')
    out.append('.globl %s_kernel' % NAME)
    out.append(body)
    out.append('.section .rodata,"a"')
    out.append('.p2align 6')
    out.append('''.amdhsa_kernel %s_kernel
  .amdhsa_next_free_vgpr 256
  .amdhsa_next_free_sgpr 102
  .amdhsa_accum_offset 256
  .amdhsa_group_segment_fixed_size 0
  .amdhsa_kernarg_size 88
  .amdhsa_user_sgpr_count 2
  .amdhsa_user_sgpr_kernarg_segment_ptr 1
  .amdhsa_system_sgpr_workgroup_id_x 1
.end_amdhsa_kernel
''' % NAME)
    open(sys.argv[1], 'w').write('\n'.join(out))

main()
```

```python
import sys
from asmlib import Asm, v, a, s

NAME = 'parallel_sum__linear_kernel_hedgehog__dense_activation_mish__prompt'
OPT = dict(fine=0, stamps=0, prio=1, sched=0, slp=8, wt0=12, wd=8, wi=4, warm=1, xmap=1, xq=1, clk=0, ost=1, gi=5, f2=6, ps=7, win=3, f3=0, h2=4, xs=0, mv=0, rot=7, rm=0, kfp=3, hfp=0, h2p=0, ofp=0, rsl=2, pt0=-1, pd=4, nv=1, gp=0, wop=0, wopx=0, cont=1, fk=20, h2q=3, xsp=1, sst=1, oi=8, la=2, lb=3, lax=4, lbx=2, bq=0, h2w=1, xh=1, xmv=15, kpf=0, pr2=1, l8=0, l8x=0, fa=9, xs0=1, fke=0, tmo=0, ysm=0, ka=0, yd=0, yw=0, yf=1, pex=1, pey=1, wl=3, roll=2, rollx=2, pk=0, po=1, pr3=0, pr4=0, lnf=2, lnd=1)
for arg in sys.argv[2:]:
    k, val = arg.split('=')
    OPT[k] = int(val, 0)

NU = 60
WS_ACT = 0x000000
WS_KVP = 0x800000
KVS = 9216
WS_KF = 0x8A0000
WS_STAT = 0xC80000
WS_F = 0xC90000
WS_CS = 0xCA0000
WS_STAMP = 0xD00000
WS_SIZE = 0x6000000 if OPT['tmo'] else 0xE00000
KVH = 1088
OOB = 0x7f000000
LOG2E = 0x3fb8aa3b
LN2 = 0x3f317218
BOUND = 0x8000

L_W = 65536
L_E = 131072
def XP(sg): return 16384 * sg
def WP(sg): return L_W + 16384 * sg
TA, TZ, TB, TR, TS, TN, TPH = L_E, L_E + 1536, L_E + 2048, L_E + 3072, L_E + 3584, L_E + 3840, L_E + 6144
KVL = L_E + 24576
P3B = [L_E + 8192, L_E + 16384, XP(0), XP(0) + 8192, WP(0), WP(0) + 8192, XP(1), XP(1) + 8192]
PH0, PH1, VB = XP(3), WP(3), XP(2)
FL_P3, FL_PB, FL_EX, FL_KV, FL_WR = TN + 16, TN + 32, TN + 48, TN + 80, TN + 96

SX, SA, SB, SWS, SD, SW2, SWO, STMP = 40, 44, 48, 56, 60, 64, 68, 72
SO = SA
sNonce, sWave, sRb, sCg, sTyp, sG, sF, sRb2, sCb = 3, 4, 5, 8, 9, 10, 11, 12, 13
sT0, sT1, sT2, sT3 = 14, 15, 76, 77
sO = [78, 79, 80, 81, 82, 83]
sJ = 84
sM = 85
sA, sB = 86, 87
sGq = 39
STREG = [88, 90, 92, 94, 96, 98, 100, 24, 74]

def srd(A, d, lo, size):
    A('s_mov_b32 %s, %s' % (s(d), s(lo)))
    A('s_mov_b32 %s, %s' % (s(d + 1), s(lo + 1)))
    A('s_mov_b32 %s, 0x%x' % (s(d + 2), size))
    A('s_mov_b32 %s, 0x20000' % s(d + 3))

def stamp(A, idx, fine=0):
    over = {0: (), 1: (1, 2), 2: (1, 2, 3, 8, 4), 3: (1, 2, 8, 4, 5, 6), 4: (1, 2, 8, 4, 5, 6, 7), 5: (1, 2, 8, 4, 5, 6, 7), 6: (1, 2, 3, 8), 7: (1, 2, 3, 8, 4, 5), 8: (1, 2, 6, 7), 9: (1, 2, 3, 8, 5, 6, 7)}[OPT['fine']]
    if fine == 0 and idx in over:
        return
    if fine and OPT['fine'] != fine:
        return
    if OPT['stamps']:
        A('%s %s' % ('s_memtime' if OPT['clk'] else 's_memrealtime', s(STREG[idx], 2)))

def emit(A, L):
    for it in L:
        if isinstance(it, tuple):
            A(it[0], tag=it[1])
        else:
            A(it)

class Keep:
    def __init__(self, A): self.A = A
    def __enter__(self): self.sv = list(self.A.vm); self.sl = list(self.A.lg)
    def __exit__(self, *e): self.A.vm = self.sv; self.A.lg = self.sl

TIDS = []
TAIL = []
def tmo(name, cnt, lim, vreg):
    if not OPT['tmo']:
        return []
    TIDS.append(name)
    TAIL.extend([name + '_T:', 's_lshl_b32 s88, s2, 3', 's_add_u32 s88, s88, s4', 's_lshl_b32 s88, s88, 5', 's_add_u32 s88, s88, %d' % (len(TIDS) - 1),
                 's_lshl_b32 s88, s88, 10', 's_add_u32 s88, s88, 0x2000000', 's_memrealtime s[90:91]',
                 'buffer_store_dword %s, %s, %s, s88 offen sc1' % (v(vreg), v(254), s(SWS, 4)), 's_waitcnt vmcnt(0) lgkmcnt(0)',
                 'v_mov_b32 %s, s90' % v(vreg), 'buffer_store_dword %s, %s, %s, s88 offen offset:4 sc1' % (v(vreg), v(254), s(SWS, 4)), 's_waitcnt vmcnt(0)',
                 'v_mov_b32 %s, s3' % v(vreg), 'buffer_store_dword %s, %s, %s, s88 offen offset:8 sc1' % (v(vreg), v(254), s(SWS, 4)), 's_waitcnt vmcnt(0)',
                 's_branch %s_U' % name])
    return ['s_cmp_eq_u32 %s, %d' % (s(cnt), lim), 's_cbranch_scc1 %s_T' % name, name + '_U:']

def poll(A, name, reload, vreg, mask, cmp_nonce=True, pre=()):
    A('s_mov_b32 %s, 0' % s(sT0))
    A.label(name + '_P')
    emit(A, pre)
    if cmp_nonce:
        A('v_cmp_ne_u32 vcc, %s, %s' % (s(sNonce), v(vreg)))
    else:
        A('v_cmp_eq_u32 vcc, 0, %s' % v(vreg))
    if mask is not None:
        A('s_and_b32 vcc_lo, vcc_lo, %s' % mask)
        A('s_cmp_eq_u32 vcc_lo, 0')
    else:
        A('s_cmp_eq_u64 vcc, 0')
    A.branch('s_cbranch_scc1 %s_G' % name)
    A('s_add_u32 %s, %s, 1' % (s(sT0), s(sT0)))
    A('s_cmp_gt_u32 %s, 0x%x' % (s(sT0), BOUND))
    A.branch('s_cbranch_scc1 %s_G' % name)
    for x in tmo(name, sT0, 3000, vreg):
        A.raw(x)
    if OPT['slp']:
        A('s_sleep %d' % OPT['slp'])
    with Keep(A):
        emit(A, [reload] if isinstance(reload, str) else reload)
    A('s_waitcnt vmcnt(0)')
    A.branch('s_branch %s_P' % name)
    A.label(name + '_G')

def lds_wait(A, name, addr, n, minval, t, extra=()):
    A('s_mov_b32 %s, 0' % s(sT0))
    A.label(name + '_P')
    with Keep(A):
        A('ds_read_b128 %s, %s' % (v(t, 4), addr) if n == 4 else 'ds_read_b32 %s, %s' % (v(t), addr))
        emit(A, extra)
    A('s_add_u32 %s, %s, 1' % (s(sT0), s(sT0)))
    A('s_waitcnt lgkmcnt(0)')
    A.lg = []
    if n == 4:
        A('v_min3_u32 %s, %s, %s, %s' % (v(t), v(t), v(t + 1), v(t + 2)))
        A('v_min_u32 %s, %s, %s' % (v(t), v(t), v(t + 3)))
    A('v_readfirstlane_b32 %s, %s' % (s(sT1), v(t)))
    for x in tmo(name, sT0, 40000, t):
        A.raw(x)
    A('s_cmp_gt_u32 %s, 0x%x' % (s(sT0), BOUND * 16))
    A('s_cselect_b32 %s, %d, %s' % (s(sT1), minval, s(sT1)))
    A('s_cmp_lt_u32 %s, %d' % (s(sT1), minval))
    A.branch('s_cbranch_scc1 %s_P' % name)

vLane, vL16 = 255, 254
sRt = 38

def vcheck(A, name, regs, t, reload, back=None):
    if back is None:
        A.raw(name + '_C:')
    r = list(regs)
    if len(r) > 1:
        first = True
        while r:
            if first:
                k = r[:3]; r = r[3:]
            else:
                k = [t] + r[:2]; r = r[2:]
            A(('v_max3_u32 %s, %s, %s, %s' if len(k) == 3 else 'v_max_u32 %s, %s, %s') % tuple([v(t)] + [v(x) for x in k]))
            first = False
        A('v_cmp_eq_u32 vcc, -1, %s' % v(t))
    else:
        A('v_cmp_eq_u32 vcc, -1, %s' % v(r[0]))
    A('s_cbranch_vccnz %s_R' % name)
    A.raw(name + '_K:')
    L = [name + '_R:', 's_add_u32 %s, %s, 1' % (s(sRt), s(sRt)), 's_cmp_gt_u32 %s, 0x%x' % (s(sRt), BOUND), 's_cbranch_scc1 %s_K' % name]
    L += tmo(name, sRt, 2000, t)
    if OPT['rsl']:
        L.append('s_sleep %d' % OPT['rsl'])
    L += ['s_nop 7', 's_nop 7']
    L += [x[0] if isinstance(x, tuple) else x for x in reload]
    L += ['s_waitcnt vmcnt(0)', 's_branch %s' % (back or name + '_C')]
    TAIL.extend(L)

def tr_addr(A, dst, t, rowhalf, sel):
    A('v_lshrrev_b32 %s, 5, %s' % (v(t), v(vLane)))
    A('v_bfe_u32 %s, %s, 2, 2' % (v(t + 1), v(vLane)))
    A('v_mul_u32_u24 %s, %d, %s' % (v(t), rowhalf, v(t)))
    A('v_add_lshl_u32 %s, %s, %s, 7' % (v(dst), v(t), v(t + 1)))
    A('v_bfe_u32 %s, %s, 3, 1' % (v(t), v(vLane)))
    if sel:
        A('v_xor_b32 %s, %s, %s' % (v(t), sel, v(t)))
    A('v_lshl_add_u32 %s, %s, 6, %s' % (v(dst), v(t), v(dst)))
    A('v_bfe_u32 %s, %s, 4, 1' % (v(t), v(vLane)))
    A('v_lshl_add_u32 %s, %s, 5, %s' % (v(dst), v(t), v(dst)))
    A('v_and_b32 %s, 3, %s' % (v(t), v(vLane)))
    A('v_lshl_add_u32 %s, %s, 3, %s' % (v(dst), v(t), v(dst)))

def selector(A, dst, t):
    A('v_lshrrev_b32 %s, 2, %s' % (v(t), v(vLane)))
    A('v_xor_b32 %s, %s, %s' % (v(t), v(t), v(vLane)))
    A('v_and_b32 %s, 4, %s' % (v(t), v(t)))
    A('v_cmp_eq_u32 vcc, 0, %s' % v(t))
    A('v_mov_b32 %s, 0x3f803f80' % v(t + 1))
    A('v_cndmask_b32 %s, 0, %s, vcc' % (v(dst), v(t + 1)))
    for i in range(1, 4):
        A('v_mov_b32 %s, %s' % (v(dst + i), v(dst)))

def onehot(A, dst, key, t, first=0):
    A('v_mov_b32 %s, 0x3f80' % v(t))
    A('v_mov_b32 %s, 0x3f800000' % v(t + 1))
    for r in range(4):
        A('v_cmp_eq_u32 vcc, %d, %s' % (first + 2 * r, v(key)))
        A('v_cndmask_b32 %s, 0, %s, vcc' % (v(dst + r), v(t)))
        A('v_cmp_eq_u32 vcc, %d, %s' % (first + 2 * r + 1, v(key)))
        A('v_cndmask_b32 %s, %s, %s, vcc' % (v(dst + r), v(dst + r), v(t + 1)))

def reduce_write(A, acc, t, base_s, nrt=2):
    A('v_and_b32 %s, 31, %s' % (v(t), v(vLane)))
    A('v_lshrrev_b32 %s, 5, %s' % (v(t + 1), v(vLane)))
    A('v_xor_b32 %s, %s, %s' % (v(t + 1), v(t + 1), v(vLane)))
    A('v_and_b32 %s, 7, %s' % (v(t + 1), v(t + 1)))
    A('v_lshlrev_b32 %s, 4, %s' % (v(t + 1), v(t + 1)))
    A('v_lshl_add_u32 %s, %s, 7, %s' % (v(t), v(t), v(t + 1)))
    A('v_add_u32 %s, %s, %s' % (v(t), s(base_s), v(t)))
    for q4 in range(1, 4):
        A('v_xor_b32 %s, %d, %s' % (v(t + q4), 32 * q4, v(t)))
    for q4 in range(4):
        A('v_xor_b32 %s, 16, %s' % (v(t + 4 + q4), v(t + q4)))
        A('v_add_u32 %s, %d, %s' % (v(t + 4 + q4), 65536, v(t + 4 + q4)))
    return [('ds_write_b128 %s, %s offset:%d' % (v(t + 4 * nt + q4), v(acc + 16 * (nrt * nt + rt) + 4 * q4, 4), rt * 16384))
            for nt in range(2) for rt in range(nrt) for q4 in range(4)]

def w2_voff(A, dst, t):
    A('v_lshrrev_b32 %s, 3, %s' % (v(t), v(vLane)))
    A('v_lshrrev_b32 %s, 2, %s' % (v(t + 1), v(vLane)))
    A('v_and_b32 %s, 4, %s' % (v(t + 1), v(t + 1)))
    A('v_and_b32 %s, 7, %s' % (v(t + 2), v(vLane)))
    A('v_xor_b32 %s, %s, %s' % (v(t + 1), v(t + 1), v(t + 2)))
    A('v_lshlrev_b32 %s, 4, %s' % (v(t + 1), v(t + 1)))
    A('s_lshl_b32 %s, %s, 7' % (s(sT0), s(sCb)))
    A('v_lshl_add_u32 %s, %s, 10, %s' % (v(dst), v(t), v(t + 1)))
    A('v_add_u32 %s, %s, %s' % (v(dst), s(sT0), v(dst)))

def quad(vo, srdn, ldsbase, tag):
    L = []
    L.append('s_lshl_b32 m0, %s, 12' % s(sJ))
    if ldsbase:
        L.append('s_add_u32 m0, m0, %d' % ldsbase)
    for i in range(4):
        if i:
            L.append('s_add_u32 %s, %s, %d' % (s(sO[i]), s(sO[0]), 7168 * i))
        L.append(('buffer_load_dwordx4 %s, %s, %s offen offset:%d lds' % (v(vo[i & 1]), s(srdn, 4), s(sO[i]), 1024 * i), tag))
    return L

def xres(A, vOo, vX):
    A('v_lshrrev_b32 %s, 3, %s' % (v(vOo), v(vLane)))
    A('v_and_b32 %s, 7, %s' % (v(vOo + 1), v(vLane)))
    A('v_lshlrev_b32 %s, 10, %s' % (v(vOo), v(vOo)))
    A('v_lshl_add_u32 %s, %s, 4, %s' % (v(vOo), v(vOo + 1), v(vOo)))
    A('s_lshl_b32 %s, %s, 3' % (s(6), s(sRb2)))
    A('s_add_u32 %s, %s, %s' % (s(6), s(6), s(sWave)))
    A('s_lshl_b32 %s, %s, 13' % (s(6), s(6)))
    A('s_lshl_b32 %s, %s, 7' % (s(7), s(sCb)))
    A('s_add_u32 %s, %s, %s' % (s(6), s(6), s(7)))
    A('buffer_load_dwordx4 %s, %s, %s, %s offen' % (v(vX, 4), v(vOo), s(SX, 4), s(6)), tag='xres')

def gen():
    A = Asm()
    vT = 236
    A.raw('.p2align 8')
    A.raw('.type %s_kernel,@function' % NAME)
    A.raw('%s_kernel:' % NAME)
    A('s_cmp_ge_u32 s2, 256')
    A.branch('s_cbranch_scc1 L_END')
    A('s_load_dwordx16 s[16:31], s[0:1], 0')
    A('s_load_dwordx4 s[32:35], s[0:1], 64')
    A('s_load_dwordx2 s[36:37], s[0:1], 80')
    A('s_memrealtime s[6:7]')
    A('v_and_b32 %s, 63, v0' % v(vLane))
    A('v_lshrrev_b32 %s, 6, v0' % v(vT))
    A('v_lshlrev_b32 %s, 4, %s' % (v(vL16), v(vLane)))
    A('v_readfirstlane_b32 %s, %s' % (s(sWave), v(vT)))
    A('s_and_b32 %s, s2, 7' % s(sT0))
    A('s_lshr_b32 %s, s2, 3' % s(sT1))
    A('s_and_b32 %s, %s, 1' % (s(sRb), s(sT0)))
    A('s_lshl_b32 %s, %s, 3' % (s(sRb), s(sRb)))
    A('s_and_b32 %s, %s, 7' % (s(sT2), s(sT1)))
    A('s_add_u32 %s, %s, %s' % (s(sRb), s(sRb), s(sT2)))
    A('s_lshr_b32 %s, %s, 1' % (s(sCg), s(sT0)))
    A('s_lshl_b32 %s, %s, 2' % (s(sCg), s(sCg)))
    A('s_lshr_b32 %s, %s, 3' % (s(sT2), s(sT1)))
    A('s_add_u32 %s, %s, %s' % (s(sCg), s(sCg), s(sT2)))
    A('s_and_b32 %s, %s, 1' % (s(sTyp), s(sCg)))
    A('s_lshr_b32 %s, %s, 1' % (s(sG), s(sCg)))
    A('s_xor_b32 %s, %s, %d' % (s(sGq), s(sG), 2 * OPT['xq']))
    A('s_cmp_eq_u32 %s, 1' % s(sTyp))
    A('s_cselect_b32 %s, %s, %s' % (s(sGq), s(sG), s(sGq)))
    A('s_lshl_b32 %s, %s, 1' % (s(sF), s(sCg)))
    A('s_add_u32 %s, %s, %s' % (s(sF), s(sF), s(sRb)))
    if OPT['rm']:
        A('s_and_b32 %s, %s, 3' % (s(sF), s(sCg)))
        A('s_lshl_b32 %s, %s, 1' % (s(sF), s(sF)))
        A('s_and_b32 %s, %s, 7' % (s(sT2), s(sRb)))
        A('s_add_u32 %s, %s, %s' % (s(sF), s(sF), s(sT2)))
        A('s_sub_u32 %s, %s, 7' % (s(sT2), s(sF)))
        A('s_cmp_ge_u32 %s, 7' % s(sF))
        A('s_cselect_b32 %s, %s, %s' % (s(sF), s(sT2), s(sF)))
        A('s_xor_b32 %s, %s, %s' % (s(38), s(sCg), s(sRb)))
        A('s_and_b32 %s, %s, %d' % (s(38), s(38), OPT['rm'] - 1))
    else:
        A('s_and_b32 %s, %s, %d' % (s(sF), s(sF), OPT['rot']))
    if OPT['xmap']:
        A('s_lshr_b32 %s, %s, 1' % (s(sRb2), s(sT0)))
        A('s_andn2_b32 %s, 1, %s' % (s(sT2), s(sT0)))
        A('s_lshl_b32 %s, %s, 2' % (s(sT2), s(sT2)))
        A('s_add_u32 %s, %s, %s' % (s(sRb2), s(sRb2), s(sT2)))
        A('s_lshl_b32 %s, %s, 2' % (s(sRb2), s(sRb2)))
    else:
        A('s_lshl_b32 %s, %s, 2' % (s(sRb2), s(sT0)))
    A('s_and_b32 %s, %s, 3' % (s(sT2), s(sT1)))
    A('s_add_u32 %s, %s, %s' % (s(sRb2), s(sRb2), s(sT2)))
    A('s_lshr_b32 %s, %s, 2' % (s(sCb), s(sT1)))
    A('s_and_b32 %s, %s, 3' % (s(sJ), s(sWave)))
    if not OPT['rm']:
        A('s_mov_b32 %s, 0' % s(sRt))
    A('s_cmp_ge_u32 %s, 4' % s(sWave))
    A.branch('s_cbranch_scc1 C_START')
    gen_loader(A)
    gen_compute(A)
    gen_final(A)
    return A.text()

def gen_loader(A):
    vXo, vP1, vP2, vP3, v2o = 224, 226, 227, 228, 252
    vNon, vG, vTa, vFl = 230, 232, 234, 253
    vT = 236
    vRow = 0
    vCf = 32
    vCa = 56
    vSel = 68
    vGa = 72
    vB1 = 104
    sPA16, sPA8, sPB16, sPB8 = 52, 53, 54, 55
    sC1, sC2, sC3 = SWO, SWO + 1, SWO + 2
    sStat = 7
    A('s_lshl_b32 %s, %s, 7' % (s(sT0), s(sG)))
    A('s_lshl_b32 %s, %s, 8' % (s(sT1), s(sG)))
    A('s_add_u32 %s, %s, 1024' % (s(sC1), s(sT0)))
    A('s_add_u32 %s, %s, 2048' % (s(sC2), s(sT0)))
    A('s_add_u32 %s, %s, 128' % (s(sT3), s(sT1)))
    A('s_lshl_b32 %s, %s, 7' % (s(sT2), s(sGq)))
    A('s_cmp_eq_u32 %s, 1' % s(sTyp))
    A('s_cselect_b32 %s, %s, %s' % (s(sC3), s(sC2), s(sT2)))
    A('s_cselect_b32 %s, %s, %s' % (s(sC1), s(sC1), s(sT1)))
    A('s_cselect_b32 %s, %s, %s' % (s(sC2), s(sC2), s(sT3)))
    A('s_movk_i32 %s, 2752' % s(sT1))
    A('s_cselect_b32 %s, 3072, %s' % (s(sT2), s(sT1)))
    A('s_cselect_b32 %s, %s, 3072' % (s(sT3), s(sT1)))
    w2_voff(A, v2o, vT)
    A('v_mul_u32_u24 %s, %s, %s' % (v(vP2), s(sT2), v(vT)))
    A('v_add3_u32 %s, %s, %s, %s' % (v(vP1), v(vP2), v(vT + 1), s(sC1)))
    A('v_add3_u32 %s, %s, %s, %s' % (v(vP2), v(vP2), v(vT + 1), s(sC2)))
    A('v_add_u32 %s, %s, %s' % (v(vT + 3), s(sC3), v(vT + 1)))
    A('v_mul_u32_u24 %s, %s, %s' % (v(vP3), s(sT3), v(vT)))
    A('v_add_u32 %s, %s, %s' % (v(vP3), v(vP3), v(vT + 3)))
    A('v_cmp_gt_u32 vcc, 2752, %s' % v(vT + 3))
    A('v_mov_b32 %s, 0x%x' % (v(vT + 3), OOB))
    A('v_cndmask_b32 %s, %s, %s, vcc' % (v(vP3), v(vT + 3), v(vP3)))
    A('s_lshl_b32 %s, %s, 4' % (s(sPA16), s(sT2)))
    A('s_lshl_b32 %s, %s, 3' % (s(sPA8), s(sT2)))
    A('s_sub_u32 %s, %s, 1024' % (s(sPA8), s(sPA8)))
    A('s_lshl_b32 %s, %s, 4' % (s(sPB16), s(sT3)))
    A('s_lshl_b32 %s, %s, 3' % (s(sPB8), s(sT3)))
    A('s_sub_u32 %s, %s, 1024' % (s(sPB8), s(sPB8)))
    A('v_lshrrev_b32 %s, 4, %s' % (v(vT + 1), v(vLane)))
    A('v_xor_b32 %s, %s, %s' % (v(vT + 1), v(vT + 1), v(vT + 2)))
    A('s_lshl_b32 %s, %s, 2' % (s(sT0), s(sRb)))
    A('s_add_u32 %s, %s, %s' % (s(sT0), s(sT0), s(sJ)))
    A('s_lshl_b32 %s, %s, 15' % (s(sT0), s(sT0)))
    A('v_lshlrev_b32 %s, 10, %s' % (v(vXo), v(vT)))
    A('v_lshl_add_u32 %s, %s, 4, %s' % (v(vXo), v(vT + 1), v(vXo)))
    A('v_add_u32 %s, %s, %s' % (v(vXo), s(sT0), v(vXo)))
    A('v_xor_b32 %s, 64, %s' % (v(vXo + 1), v(vXo)))
    A('s_lshl_b32 %s, %s, 11' % (s(sM), s(sJ)))
    A('s_lshl_b32 %s, %s, 4' % (s(sA), s(sRb)))
    A('s_add_u32 %s, %s, %s' % (s(sA), s(sA), s(sCg)))
    A('s_lshl_b32 %s, %s, 2' % (s(sA), s(sA)))
    A('s_add_u32 %s, %s, %s' % (s(sA), s(sA), s(sJ)))
    A('s_lshl_b32 %s, %s, 11' % (s(sB), s(sA)))
    A('v_and_b32 %s, 32, %s' % (v(vT + 4), v(vLane)))
    A('v_lshl_add_u32 %s, %s, 4, %s' % (v(vT + 4), v(vT + 4), v(vL16)))
    A('v_mov_b32 %s, 0' % v(vT + 5))
    A('s_or_b32 %s, s2, %s' % (s(sT0), s(sWave)))
    A('s_waitcnt lgkmcnt(0)')
    srd(A, SD, 34, 256)
    A('s_cmp_lg_u32 %s, 0' % s(sT0))
    A.branch('s_cbranch_scc1 L_NONONCE')
    A('s_or_b32 s6, s6, 1')
    A('v_mov_b32 %s, s6' % v(vT))
    with Keep(A):
        A('buffer_store_dword %s, %s, %s, 0 offen offset:128 sc1' % (v(vT), v(vT + 5), s(SD, 4)))
    A.label('L_NONONCE')
    srd(A, SX, 16, 2048 * 1024)
    A('s_cmp_eq_u32 %s, 1' % s(sTyp))
    for d, x_, y_, p16 in ((SA, 18, 26, sPA16), (SB, 26, 18, sPB16)):
        A('s_cselect_b32 %s, %s, %s' % (s(d), s(x_), s(y_)))
        A('s_cselect_b32 %s, %s, %s' % (s(d + 1), s(x_ + 1), s(y_ + 1)))
        A('s_mov_b32 %s, 0x20000' % s(d + 3))
    A('s_lshl_b32 %s, %s, 5' % (s(SA + 2), s(sPA16)))
    A('s_lshl_b32 %s, %s, 5' % (s(SB + 2), s(sPB16)))
    stamp(A, 0)

    def chunk(st):
        if OPT['rm']:
            if st == 0:
                return ['s_mov_b32 %s, %s' % (s(sT3), s(38))]
            return ['s_add_u32 %s, %s, %d' % (s(sT3), s(sF), st),
                    's_sub_u32 %s, %s, 7' % (s(sO[0]), s(sT3)),
                    's_cmp_ge_u32 %s, 8' % s(sT3),
                    's_cselect_b32 %s, %s, %s' % (s(sT3), s(sO[0]), s(sT3)),
                    's_xor_b32 %s, %s, %s' % (s(sT3), s(sT3), s(38))]
        return ['s_add_u32 %s, %s, %d' % (s(sT3), s(sF), st),
                's_and_b32 %s, %s, 7' % (s(sT3), s(sT3))]
    def krow(st):
        return chunk(st) + [
                's_lshl_b32 %s, %s, 2' % (s(sT3), s(sT3)),
                's_add_u32 %s, %s, %s' % (s(sT3), s(sT3), s(sJ))]
    def grp_w(st):
        L = krow(st)
        L.append('s_mul_i32 %s, %s, %s' % (s(sO[0]), s(sT3), s(sPA16)))
        L.append('s_add_u32 m0, %s, %d' % (s(sM), WP(st & 3)))
        L.append('s_add_u32 %s, %s, %s' % (s(sO[1]), s(sO[0]), s(sPA8)))
        L.append(('buffer_load_dwordx4 %s, %s, %s offen lds' % (v(vP1), s(SA, 4), s(sO[0])), 's%d' % st))
        L.append(('buffer_load_dwordx4 %s, %s, %s offen offset:1024 lds' % (v(vP1), s(SA, 4), s(sO[1])), 's%d' % st))
        L.append('s_add_u32 m0, %s, %d' % (s(sM), WP(st & 3) + 8192))
        L.append(('buffer_load_dwordx4 %s, %s, %s offen lds' % (v(vP2), s(SA, 4), s(sO[0])), 's%d' % st))
        L.append(('buffer_load_dwordx4 %s, %s, %s offen offset:1024 lds' % (v(vP2), s(SA, 4), s(sO[1])), 's%d' % st))
        return L
    def grp_p3(st):
        tag = 's0' if st == 0 else 'p3'
        L = krow(st)
        L.append('s_mul_i32 %s, %s, %s' % (s(sO[0]), s(sT3), s(sPB16)))
        L.append('s_add_u32 m0, %s, %d' % (s(sM), P3B[st]))
        L.append('s_add_u32 %s, %s, %s' % (s(sO[1]), s(sO[0]), s(sPB8)))
        L.append(('buffer_load_dwordx4 %s, %s, %s offen lds' % (v(vP3), s(SB, 4), s(sO[0])), tag))
        L.append(('buffer_load_dwordx4 %s, %s, %s offen offset:1024 lds' % (v(vP3), s(SB, 4), s(sO[1])), tag))
        return L
    def grp_x(st):
        L = chunk(st)
        L.append('s_lshl_b32 %s, %s, 7' % (s(sO[0]), s(sT3)))
        return L + quad((vXo, vXo + 1), SX, XP(st & 3), 's%d' % st)
    UL = [(8, 0), (8, 1), (8, 4), (8, 5), (3, 32), (3, 33), (3, 34), (8, 2), (8, 3), (8, 6), (8, 7)]
    UL = UL[:4] + UL[7:] + UL[4:7]
    UPY = [WP(1), WP(2), XP(2), XP(3), WP(3), WP(1), WP(2), WP(1), XP(0), XP(1), WP(0)]
    UPX = [WP(1), WP(2), WP(1), WP(2), WP(1), WP(2), WP(1), WP(1), XP(0), XP(1), WP(0)]
    def grp_w2(i, UP=UPY):
        m, c = UL[i]
        L = ['s_mul_i32 %s, %s, %d' % (s(sO[0]), s(sJ), m * 32768)]
        if c:
            L.append('s_add_u32 %s, %s, %d' % (s(sO[0]), s(sO[0]), c * 32768))
        return L + quad((v2o, v2o), SW2, UP[i], 'u%d' % i)
    groups = []
    for st in range(8):
        groups += [('w', st), ('x', st)]
    SCHED = {0: [6, 2, 2, 2, 2, 2], 1: [4, 4, 2, 2, 2, 2], 2: [8, 0, 2, 2, 2, 2], 3: [5, 3, 2, 2, 2, 2]}[OPT['sched']]
    pos = [0]
    def issue(n, iv):
        for _ in range(n):
            kind, st = groups[pos[0]]
            assert st <= iv + 3 or st < 4, (st, iv)
            emit(A, grp_w(st) if kind == 'w' else grp_x(st))
            pos[0] += 1

    nload = 'buffer_load_dword %s, %s, %s, 0 offen offset:128 sc1' % (v(vNon), v(vT + 5), s(SD, 4))
    A('buffer_load_dwordx4 %s, %s, %s, %s offen' % (v(vRow, 4), v(vT + 4), s(SX, 4), s(sB)), tag='row')
    A('buffer_load_dwordx4 %s, %s, %s, %s offen offset:512' % (v(vRow + 4, 4), v(vT + 4), s(SX, 4), s(sB)), tag='row')
    issue(2, -1)
    emit(A, grp_p3(0))
    A(nload, tag='s0')
    issue(2, -1)
    A('buffer_load_dword %s, %s, %s, 0 offen offset:128 sc1' % (v(vNon + 1), v(vT + 5), s(SD, 4)), tag='non2')
    srd(A, SWS, 36, WS_SIZE)
    A('s_lshl_b32 %s, %s, 4' % (s(sStat), s(sA)))
    A('s_add_u32 %s, %s, 0x%x' % (s(sStat), s(sStat), WS_STAT))
    srd(A, SW2, 30, 1376 * 1024)

    def xsum32(r, t):
        for ctl in ('quad_perm:[1,0,3,2]', 'quad_perm:[2,3,0,1]', 'row_half_mirror', 'row_mirror'):
            A('v_add_f32_dpp %s, %s, %s %s row_mask:0xf bank_mask:0xf' % (v(r), v(r), v(r), ctl))
        A('v_mov_b32 %s, %s' % (v(t), v(r)))
        A('v_permlane16_swap_b32 %s, %s' % (v(r), v(t)))
        A('v_add_f32 %s, %s, %s' % (v(r), v(r), v(t)))
    U = vRow + 8
    tr_addr(A, vTa, vT, 8, s(sJ))
    A('s_lshr_b32 %s, %s, 3' % (s(sT0), s(sRb)))
    A('s_lshl_b32 %s, %s, 12' % (s(sT0), s(sT0)))
    A('s_add_u32 %s, %s, %d' % (s(sT0), s(sT0), L_W))
    A('v_add_u32 %s, %s, %s' % (v(vTa), s(sT0), v(vTa)))
    A('v_add_u32 %s, %d, %s' % (v(vTa + 1), P3B[0] - L_W, v(vTa)))
    selector(A, vSel, vT)
    A('v_lshlrev_b32 %s, 2, %s' % (v(vFl), v(vLane)))
    A('v_and_b32 %s, 0x7c, %s' % (v(vFl), v(vFl)))
    A.wait_vm('row')
    for j in range(8):
        A('v_lshlrev_b32 %s, 16, %s' % (v(U + 2 * j), v(vRow + j)))
        A('v_and_b32 %s, 0xffff0000, %s' % (v(U + 2 * j + 1), v(vRow + j)))
    for j in range(4):
        A('v_add_f32 %s, %s, %s' % (v(vRow + j), v(U + j), v(U + 4 + j)))
        A('v_add_f32 %s, %s, %s' % (v(vRow + 4 + j), v(U + 8 + j), v(U + 12 + j)))
    for st_ in (4, 2, 1):
        for j in range(st_):
            A('v_add_f32 %s, %s, %s' % (v(vRow + j), v(vRow + j), v(vRow + st_ + j)))
    xsum32(vRow, vRow + 1)
    A('v_mul_f32 %s, 0xbb000000, %s' % (v(vRow), v(vRow)))
    for j in range(16):
        A('v_add_f32 %s, %s, %s' % (v(U + j), v(U + j), v(vRow)))
    for j in range(4):
        A('v_mul_f32 %s, %s, %s' % (v(vRow + 4 + j), v(U + j), v(U + j)))
    for j in range(4, 16):
        A('v_fmac_f32 %s, %s, %s' % (v(vRow + 4 + (j & 3)), v(U + j), v(U + j)))
    r = vRow + 4
    A('v_add_f32 %s, %s, %s' % (v(r), v(r), v(r + 1)))
    A('v_add_f32 %s, %s, %s' % (v(r + 2), v(r + 2), v(r + 3)))
    A('v_add_f32 %s, %s, %s' % (v(r), v(r), v(r + 2)))
    xsum32(r, r + 1)
    A('v_mul_f32 %s, 0x3b000000, %s' % (v(r), v(r)))
    A('v_cvt_pk_bf16_f32 %s, %s, %s' % (v(r), v(r), v(r)))
    A('v_lshlrev_b32 %s, 16, %s' % (v(r), v(r)))
    A('v_add_f32 %s, 0x3727c5ac, %s' % (v(r), v(r)))
    A('v_cvt_pk_bf16_f32 %s, %s, %s' % (v(r), v(r), v(r)))
    A('v_lshlrev_b32 %s, 16, %s' % (v(r), v(r)))
    A('v_sqrt_f32 %s, %s' % (v(r), v(r)))
    A('v_cvt_pk_bf16_f32 %s, %s, %s' % (v(vG), v(vRow), v(r)))
    A('v_cmp_eq_u32 vcc, 0, %s' % v(vFl))
    A('v_lshrrev_b32 %s, 2, %s' % (v(vT), v(vLane)))
    A('v_mov_b32 %s, 0x%x' % (v(vT + 1), OOB))
    A('v_cndmask_b32 %s, %s, %s, vcc' % (v(vT + 4), v(vT + 1), v(vT)))
    issue(SCHED[0] - 4, -1)
    A.wait_vm('s0')
    A('s_barrier')
    stamp(A, 1)
    A('s_cmp_ge_u32 %s, 2' % s(sJ))
    A.branch('s_cbranch_scc1 L_NOCF')
    with Keep(A):
        for ks in range(2):
            for u in range(3):
                for hh in range(2):
                    A('ds_read_b64_tr_b16 %s, %s offset:%d' % (v(vCf + 12 * ks + 4 * u + 2 * hh, 2), v(vTa + (u >> 1)), 8192 * (u & 1) + 2048 * ks + 512 * hh))
    A.label('L_NOCF')
    A('v_readfirstlane_b32 %s, %s' % (s(sNonce), v(vNon)))
    A('s_cmp_lg_u32 %s, 0' % s(sNonce))
    A.branch('s_cbranch_scc1 LN_DONE')
    with Keep(A):
        A.wait_vm('non2')
        A('v_mov_b32 %s, %s' % (v(vNon), v(vNon + 1)))
        poll(A, 'LN', nload, vNon, None, cmp_nonce=False)
        A('v_readfirstlane_b32 %s, %s' % (s(sNonce), v(vNon)))
    A.label('LN_DONE')
    A('v_mov_b32 %s, %s' % (v(vG + 1), v(vNon)))
    A('buffer_store_dwordx2 %s, %s, %s, %s offen sc1' % (v(vG, 2), v(vT + 4), s(SWS, 4), s(sStat)), tag='pub')
    A('s_cmp_ge_u32 %s, 2' % s(sJ))
    A.branch('s_cbranch_scc1 LB_START')
    vm0 = list(A.vm)
    pos0 = pos[0]

    def bar(n):
        A('s_barrier')
        if n == 4:
            stamp(A, 2)
        if n in (5, 6, 7):
            stamp(A, {5: 1, 6: 2, 7: 8}[n], 3)
    GI = OPT['gi']
    vA0, vB0 = 244, 246
    vFw = 248
    vSdw = 251
    vSg, vZo, vKw, vKf = 192, 196, 197, 199
    def prep_kv():
        A('v_and_b32 %s, 15, %s' % (v(vT), v(vLane)))
        A('v_lshrrev_b32 %s, 4, %s' % (v(vT + 1), v(vLane)))
        A('v_lshlrev_b32 %s, 3, %s' % (v(vT + 2), v(vT + 1)))
        A('v_xor_b32 %s, %s, %s' % (v(vT + 2), v(vT + 2), v(vT)))
        A('v_and_b32 %s, 15, %s' % (v(vT + 2), v(vT + 2)))
        onehot(A, vSg, vT + 2, vT + 3)
        A('v_lshrrev_b32 %s, 3, %s' % (v(vT + 3), v(vT)))
        A('v_mul_u32_u24 %s, %d, %s' % (v(vZo), KVS - 512, v(vT + 3)))
        A('v_lshl_add_u32 %s, %s, 4, %s' % (v(vZo), v(vT + 1), v(vZo)))
        A('v_lshl_add_u32 %s, %s, 6, %s' % (v(vZo), v(vT), v(vZo)))
        A('v_lshrrev_b32 %s, 1, %s' % (v(vT + 2), v(vT + 1)))
        A('v_mul_u32_u24 %s, 272, %s' % (v(vT + 2), v(vT + 2)))
        A('v_and_b32 %s, 1, %s' % (v(vT + 1), v(vT + 1)))
        A('v_lshl_add_u32 %s, %s, 3, %s' % (v(vT + 2), v(vT + 1), v(vT + 2)))
        A('s_mul_i32 %s, %s, %d' % (s(sT0), s(sJ), KVH))
        A('s_add_u32 %s, %s, %d' % (s(sT0), s(sT0), KVL))
        A('v_add_u32 %s, %s, %s' % (v(vT + 2), s(sT0), v(vT + 2)))
        A('v_lshl_add_u32 %s, %s, 4, %s' % (v(vKw), v(vT), v(vT + 2)))
        A('v_mul_u32_u24 %s, 544, %s' % (v(vT + 3), v(vT + 3)))
        A('v_add_u32 %s, %s, %s' % (v(vKw + 1), v(vT + 2), v(vT + 3)))
        A('v_and_b32 %s, 0x33, %s' % (v(vT), v(vLane)))
        A('v_bfe_u32 %s, %s, 2, 1' % (v(vT + 1), v(vLane)))
        A('v_lshl_or_b32 %s, %s, 3, %s' % (v(vT), v(vT + 1), v(vT)))
        A('v_bfe_u32 %s, %s, 3, 1' % (v(vT + 1), v(vLane)))
        A('v_lshl_or_b32 %s, %s, 2, %s' % (v(vT), v(vT + 1), v(vT)))
        A('v_lshlrev_b32 %s, 1, %s' % (v(vSdw), v(vT)))
    def lwarm():
        srd(A, STMP, 22, 512 * 1024)
        A('s_lshr_b32 %s, s2, 3' % s(sT0))
        A('s_lshl_b32 %s, %s, 2' % (s(sT0), s(sT0)))
        A('s_add_u32 %s, %s, %s' % (s(sT0), s(sT0), s(sJ)))
        A('v_lshlrev_b32 %s, 7, %s' % (v(vT), v(vLane)))
        A('s_mul_i32 %s, %s, %d' % (s(sT1), s(sT0), 86 * 128))
        A('buffer_load_dword %s, %s, %s, %s offen' % (v(107), v(vT), s(SW2, 4), s(sT1)), tag='wm')
        A('v_cmp_gt_u32 vcc, 22, %s' % v(vLane))
        A('v_mov_b32 %s, 0x%x' % (v(vT + 3), OOB))
        A('v_cndmask_b32 %s, %s, %s, vcc' % (v(vT + 2), v(vT + 3), v(vT)))
        A('s_add_u32 %s, %s, 8192' % (s(sT1), s(sT1)))
        A('buffer_load_dword %s, %s, %s, %s offen' % (v(107), v(vT + 2), s(SW2, 4), s(sT1)), tag='wm')
        A('v_cmp_gt_u32 vcc, 32, %s' % v(vLane))
        A('v_cndmask_b32 %s, %s, %s, vcc' % (v(vT + 2), v(vT + 3), v(vT)))
        A('s_lshl_b32 %s, %s, 12' % (s(sT1), s(sT0)))
        A('buffer_load_dword %s, %s, %s, %s offen' % (v(107), v(vT + 2), s(STMP, 4), s(sT1)), tag='wm')
    def prep2():
        tr_addr(A, vA0, vT, 4, None)
        A('s_lshl_b32 %s, %s, 1' % (s(sT0), s(sM)))
        A('v_add_u32 %s, %s, %s' % (v(vA0), s(sT0), v(vA0)))
        A('v_xor_b32 %s, 64, %s' % (v(vA0 + 1), v(vA0)))
        A('v_add_u32 %s, %d, %s' % (v(vB0), L_W, v(vA0)))
        A('v_add_u32 %s, %d, %s' % (v(vB0 + 1), L_W, v(vA0 + 1)))
        A('s_lshl_b32 %s, %s, 2' % (s(sT0), s(sJ)))
        A('s_add_u32 %s, %s, %d' % (s(sT0), s(sT0), FL_P3))
        A('v_mov_b32 %s, %s' % (v(vFw), s(sT0)))
        A('v_mov_b32 %s, 1' % v(vFw + 1))
        srd(A, SWO, 22, 512 * 1024)
    for k in 'AB':
        if k == 'B':
            A.label('LB_START')
            A.vm = list(vm0); A.lg = []; pos[0] = pos0
        sCs = 6
        if k == 'A':
            A('s_lshl_b32 %s, %s, 1' % (s(sCs), s(sCg)))
            A('s_add_u32 %s, %s, %s' % (s(sCs), s(sCs), s(sJ)))
            A('s_lshl_b32 %s, %s, 13' % (s(sCs), s(sCs)))
            A('s_add_u32 %s, %s, 0x%x' % (s(sCs), s(sCs), WS_CS))
            A('s_lshl_b32 %s, %s, 9' % (s(sT1), s(sRb)))
            A('s_add_u32 %s, %s, %s' % (s(sT1), s(sT1), s(sCs)))
            A('v_and_b32 %s, 0x1ff, %s' % (v(vT), v(vL16)))
            A('s_waitcnt lgkmcnt(0)')
            for ks in range(2):
                for u in range(3):
                    A('v_mfma_f32_16x16x32_bf16 %s, %s, %s, %s' % (v(vCa + 4 * u, 4), v(vSel, 4), v(vCf + 12 * ks + 4 * u, 4), '0' if ks == 0 else v(vCa + 4 * u, 4)))
            A('v_mov_b32 %s, %s' % (v(vCa + 1), v(vCa + 4)))
            A('v_mov_b32 %s, %s' % (v(vCa + 2), v(vCa + 8)))
            A('v_mov_b32 %s, %s' % (v(vCa + 3), v(vNon)))
            A('buffer_store_dwordx4 %s, %s, %s, %s offen sc1' % (v(vCa, 4), v(vT), s(SWS, 4), s(sT1)), tag='css')
            A('s_add_u32 %s, %s, 4096' % (s(sStat), s(sCs)))
            gal = ['buffer_load_dwordx4 %s, %s, %s, %s offen offset:%d sc1' % (v(vGa + 4 * i, 4), v(vL16), s(SWS, 4), s(sCs if i < 4 else sStat), 1024 * (i & 3)) for i in range(8)]
        else:
            A('s_lshl_b32 %s, %s, 1' % (s(sStat), s(sRb)))
            A('s_add_u32 %s, %s, %s' % (s(sStat), s(sStat), s(sJ)))
            A('s_lshl_b32 %s, %s, 9' % (s(sStat), s(sStat)))
            A('s_add_u32 %s, %s, 0x%x' % (s(sStat), s(sStat), WS_STAT - 1024))
            A('v_lshlrev_b32 %s, 3, %s' % (v(vTa), v(vLane)))
            gal = ['buffer_load_dwordx2 %s, %s, %s, %s offen sc1' % (v(vGa, 2), v(vTa), s(SWS, 4), s(sStat))]
        def gather():
            emit(A, [(x, 'ga') for x in gal])
        def small():
            if k == 'A':
                srd(A, STMP, 28, 2752)
                A('s_lshl_b32 %s, %s, 6' % (s(sT0), s(sJ)))
                A('s_add_u32 %s, %s, %s' % (s(sC1), s(sC1), s(sT0)))
                A('s_add_u32 %s, %s, %s' % (s(sC2), s(sC2), s(sT0)))
                A('s_add_u32 %s, %s, %s' % (s(sC3), s(sC3), s(sT0)))
                A('s_cmp_eq_u32 %s, 1' % s(sTyp))
                A('s_cselect_b32 %s, 0x%x, %s' % (s(sC1), OOB, s(sC1)))
                A('s_cselect_b32 %s, 0x%x, %s' % (s(sC2), OOB, s(sC2)))
                A('s_cselect_b32 %s, %s, 0x%x' % (s(sC3), s(sC3), OOB))
                A('v_lshrrev_b32 %s, 1, %s' % (v(vT), v(vFl)))
                for u in range(3):
                    A('buffer_load_ushort %s, %s, %s, %s offen' % (v(vB1 + u), v(vT), s(STMP, 4), s(sC1 + u)), tag='b1')
            else:
                srd(A, STMP, 20, 16384)
                A('s_lshl_b32 %s, %s, 1' % (s(sT0), s(sGq)))
                A('s_add_u32 %s, %s, %s' % (s(sT0), s(sT0), s(sJ)))
                A('s_lshl_b32 %s, %s, 10' % (s(sT0), s(sT0)))
                A('s_sub_u32 %s, %s, 2048' % (s(sT0), s(sT0)))
                A('s_lshr_b32 %s, %s, 1' % (s(sT1), s(sM)))
                A('s_add_u32 m0, %s, %d' % (s(sT1), TPH - 2048))
                A('buffer_load_dwordx4 %s, %s, %s offen lds' % (v(vL16), s(STMP, 4), s(sT0)), tag='b1')
        def tables():
            A.wait_vm('ga')
            stamp(A, 4, 3)
            if k == 'B':
                poll(A, 'LST', gal, vGa + 1, None)
                A('v_and_b32 %s, 0xffff, %s' % (v(vT), v(vGa)))
                A('v_lshl_or_b32 %s, %s, 16, %s' % (v(vT), v(vGa), v(vT)))
                A('v_lshrrev_b32 %s, 16, %s' % (v(vT + 1), v(vGa)))
                A('v_and_b32 %s, 0xffff0000, %s' % (v(vGa), v(vGa)))
                A('v_rcp_f32 %s, %s' % (v(vT + 2), v(vGa)))
                A('s_lshr_b32 %s, %s, 2' % (s(sT0), s(sM)))
                A('s_add_u32 %s, %s, %d' % (s(sT0), s(sT0), TB - 1024))
                A('v_add_u32 %s, %s, %s' % (v(vT + 3), s(sT0), v(vTa)))
                A('ds_write_b64 %s, %s' % (v(vT + 3), v(vT, 2)))
                A('s_lshr_b32 %s, %s, 3' % (s(sT0), s(sM)))
                A('s_add_u32 %s, %s, %d' % (s(sT0), s(sT0), TR - 512))
                A('v_lshl_add_u32 %s, %s, 2, %s' % (v(vT + 3), v(vLane), s(sT0)))
                A('ds_write_b32 %s, %s' % (v(vT + 3), v(vT + 2)))
                A('s_lshr_b32 %s, %s, 4' % (s(sT0), s(sM)))
                A('s_add_u32 %s, %s, %d' % (s(sT0), s(sT0), TS - 256))
                A('v_add_u32 %s, %s, %s' % (v(vT + 3), s(sT0), v(vSdw)))
                A('ds_write_b16 %s, %s' % (v(vT + 3), v(vT + 1)))
                A('v_cmp_eq_u32 vcc, 0, %s' % v(vFl))
                A('v_cndmask_b32 %s, 0, %s, vcc' % (v(vT + 4), v(vNon)))
                A('v_add_u32 %s, %d, %s' % (v(vT + 6), TN, v(vFl)))
                A('ds_write_b32 %s, %s' % (v(vT + 6), v(vT + 4)))
            else:
                pre = ['v_min3_u32 %s, %s, %s, %s' % (v(vT), v(vGa + 3), v(vGa + 7), v(vGa + 11)),
                       'v_max3_u32 %s, %s, %s, %s' % (v(vT + 1), v(vGa + 3), v(vGa + 7), v(vGa + 11)),
                       'v_min3_u32 %s, %s, %s, %s' % (v(vT), v(vT), v(vGa + 15), v(vGa + 19)),
                       'v_max3_u32 %s, %s, %s, %s' % (v(vT + 1), v(vT + 1), v(vGa + 15), v(vGa + 19)),
                       'v_min3_u32 %s, %s, %s, %s' % (v(vT), v(vT), v(vGa + 23), v(vGa + 27)),
                       'v_max3_u32 %s, %s, %s, %s' % (v(vT + 1), v(vT + 1), v(vGa + 23), v(vGa + 27)),
                       'v_min_u32 %s, %s, %s' % (v(vT), v(vT), v(vGa + 31)),
                       'v_max_u32 %s, %s, %s' % (v(vT + 1), v(vT + 1), v(vGa + 31)),
                       'v_cmp_eq_u32 vcc, %s, %s' % (v(vT), v(vT + 1)),
                       'v_cndmask_b32 %s, 0, %s, vcc' % (v(vT), v(vT))]
                poll(A, 'LCS', gal, vT, None, pre=pre)
                for st_ in (16, 8, 4):
                    for r in range(st_):
                        if r & 3 != 3:
                            A('v_add_f32 %s, %s, %s' % (v(vGa + r), v(vGa + r), v(vGa + st_ + r)))
                for u in range(3):
                    A('v_mov_b32 %s, %s' % (v(vGa + 4 + u), v(vGa + u)))
                for u in range(3):
                    A('v_permlane32_swap_b32 %s, %s' % (v(vGa + u), v(vGa + 4 + u)))
                for u in range(3):
                    A('v_add_f32 %s, %s, %s' % (v(vGa + u), v(vGa + u), v(vGa + 4 + u)))
                A('s_mul_i32 %s, %s, 768' % (s(sT0), s(sJ)))
                A('s_add_u32 %s, %s, %d' % (s(sT0), s(sT0), TA))
                A('v_lshl_add_u32 %s, %s, 1, %s' % (v(vT), v(vFl), s(sT0)))
                for u in range(3):
                    p = vGa + 8 + 2 * u
                    A('v_cvt_pk_bf16_f32 %s, %s, %s' % (v(p), v(vGa + u), v(vGa + u)))
                    A('v_lshlrev_b32 %s, 16, %s' % (v(p), v(p)))
                    A('v_sub_f32 %s, %s, %s' % (v(p), v(vGa + u), v(p)))
                    A('v_cvt_pk_bf16_f32 %s, %s, %s' % (v(p), v(vGa + u), v(p)))
                    A('v_mov_b32 %s, %s' % (v(p + 1), v(vB1 + u)))
                    A('ds_write_b64 %s, %s offset:%d' % (v(vT), v(p, 2), 256 * u))
        PS = {0: {4: ('p1', ''), 5: ('p2 p3 p4 p5', ''), 6: ('p6 p7 u0', ''), 7: ('', 'u1')},
              1: {4: ('', 'p1'), 5: ('', 'p2 p3'), 6: ('', 'p4 p5 p6 p7'), 7: ('', 'u0')},
              2: {7: ('', 'p1 p2 p3 p4 p5 p6 p7')},
              3: {4: ('', 'p1'), 5: ('', 'p2 p3 p4 p5'), 6: ('', 'p6 p7 u0'), 7: ('u1', '')},
              4: {4: ('', 'p1'), 5: ('', 'p2 p3 p4 p5'), 6: ('', 'p6 p7'), 7: ('u0', '')},
              5: {6: ('', 'p1 p2 p3 p4'), 7: ('p5 p6 p7', '')},
              6: {4: ('', 'p1'), 5: ('', 'p2 p3 p4 p5'), 6: ('', 'p6 p7'), 7: ('u0', 'u1')},
              7: {8: ('p1 p2 p3 p4 p5 p6 p7', '')},
              8: {6: ('', 'p1'), 7: ('p2', ''), 8: ('p3 p4 p5 p6 p7', '')},
              9: {6: ('', 'p1 p2'), 7: ('', 'p3'), 8: ('p4 p5 p6 p7', '')},
              10: {5: ('', 'p1'), 6: ('', 'p2'), 7: ('p3', 'p4'), 8: ('p5 p6 p7', '')},
              11: {7: ('p1 p2', ''), 8: ('p3 p4 p5 p6 p7', '')}}[OPT['ps']]
        nw2 = 0
        def extra(spec):
            n = 0
            for it in spec.split():
                emit(A, grp_p3(int(it[1:])) if it[0] == 'p' else grp_w2(int(it[1:])))
                n += it[0] == 'u'
            return n
        for iv in range(8):
            pre_, post_ = PS.get(iv, ('', ''))
            if iv == GI:
                gather()
            if iv < 5:
                issue(SCHED[iv + 1], iv)
            if iv == 2:
                small()
            if iv == OPT['wi'] and OPT['warm'] == 2:
                lwarm()
            if iv == 3:
                prep_kv()
            if iv == 5:
                prep2()
            nw2 += extra(pre_)
            if iv == 7:
                tables()
                stamp(A, 5, 3)
                nw2 += extra(post_)
                stamp(A, 6, 3)
            if iv < 7:
                A.wait_vm('s%d' % (iv + 1))
                nw2 += extra(post_)
                bar(iv + 1)
        A('s_waitcnt lgkmcnt(0)')
        A.lg = []
        if k == 'A':
            vmA = list(A.vm)
            A.branch('s_branch L_JOIN')
    A.label('L_JOIN')
    vmB = list(A.vm)
    if vmA != vmB:
        assert vmA[-len(vmB):] == vmB or vmB[-len(vmA):] == vmA or not vmA or not vmB, (vmA, vmB)
        A.vm = list(vmA if len(vmA) > len(vmB) else vmB)
    A('s_barrier')
    stamp(A, 3)
    nw2 += extra(PS.get(8, ('', ''))[0])
    vAcc, vW, vR = 0, 64, 176
    def wread(slot, lds, tag):
        base, off = (vA0, lds) if lds < L_W else (vB0, lds - L_W)
        return [('ds_read_b64_tr_b16 %s, %s offset:%d' % (v(vW + 16 * slot + 8 * c + 4 * nt + 2 * hh, 2), v(base + nt), off + 2048 * c + 1024 * hh), tag)
                for c in range(2) for nt in range(2) for hh in range(2)]
    sFl, sAct = sA, sB
    vFv, vLa, vLt = 250, 251, 240
    fload = 'buffer_load_dword %s, %s, %s, %s offen sc1' % (v(vFv), v(vFl), s(SWS, 4), s(sFl))
    RB = [vR + 16 * ((i + 2) & 3) for i in range(11)]
    def alist(i):
        m, c = UL[i]
        L = ['s_add_u32 %s, %s, %d' % (s(sT1), s(sO[4] if m == 8 else sO[5]), c * 4096)]
        for q in range(4):
            L.append(('buffer_load_dwordx4 %s, %s, %s, %s offen offset:%d sc1' % (v(RB[i] + 4 * q, 4), v(vL16), s(SWS, 4), s(sT1), 1024 * q), 'a%d' % i))
        return L
    def aload(i):
        emit(A, alist(i))
    def lflag(val):
        A('v_mov_b32 %s, %d' % (v(vFw + 1), val))
        A('ds_write_b32 %s, %s' % (v(vFw), v(vFw + 1)))
    A('s_cmp_eq_u32 %s, 1' % s(sTyp))
    A.branch('s_cbranch_scc1 LX_START')
    vm8 = list(A.vm)
    for X in (0, 1):
        if X:
            A.label('LX_START')
            A.vm = list(vm8); A.lg = []
        XS = X and OPT['xs']
        UP = UPX if X and not XS else UPY
        WIN = XS if XS else 2 if X else OPT['win']
        nx = [nw2]
        TRS = ['u%d' % i for i in range(7)] + (['w2', 'u7', 'w0', 'w1', 'w3'] if X and not XS else ['w0', 'w1', 'w3', 'u7', 'w2'])
        def wo(i):
            L = ['s_lshl_b32 %s, %s, 17' % (s(sO[0]), s(sJ))]
            if i:
                L.append('s_add_u32 %s, %s, %d' % (s(sO[0]), s(sO[0]), i * 32768))
            return L + quad((v2o, v2o), SWO, 32768 + 16384 * (i & 1) + 65536 * (i >> 1), 'w%d' % i)
        cap = [11 if X else 11 - OPT['yd']]
        def w2_upto(n):
            while nx[0] <= min(n, cap[0]):
                k = TRS[nx[0]]
                emit(A, grp_w2(int(k[1:]), UP) if k[0] == 'u' else wo(int(k[1:])))
                if nx[0] == OPT['fa']:
                    A(fload, tag='fl')
                nx[0] += 1
        def gate(i, mask):
            A.wait_vm('fl')
            poll(A, 'LA%d%d' % (X, i), fload, vFv, mask)
        def unit(i):
            A.wait_vm('a%d' % i)
            if i in (0, 3):
                stamp(A, {0: 1, 3: 2}[i], 6)
            if i in (4, 7, 8, 10):
                stamp(A, {4: 2, 7: 3, 8: 4, 10: 5}[i], 7)
            if i >= 7:
                A.wait_lg('b%d' % i)
            wb = vW + 16 * (i % 7)
            for c in range(2):
                for nt in range(2):
                    for rt in range(2):
                        acc = vAcc + 16 * (2 * nt + rt)
                        A('v_mfma_f32_32x32x16_bf16 %s, %s, %s, %s' % (v(acc, 16), v(wb + 8 * c + 4 * nt, 4), v(RB[i] + 8 * c + 4 * rt, 4), '0' if (i == 0 and c == 0) else v(acc, 16)))
        w2_upto(OPT['xs0'] if XS else WIN - 1 - (0 if X else OPT['wl']))
        A('s_lshl_b32 %s, %s, 3' % (s(sFl), s(sRb2)))
        A('s_add_u32 %s, %s, %s' % (s(sFl), s(sFl), s(sJ)))
        A('s_lshl_b32 %s, %s, 7' % (s(sFl), s(sFl)))
        A('s_add_u32 %s, %s, 0x%x' % (s(sFl), s(sFl), WS_F))
        A('s_mul_i32 %s, %s, %d' % (s(sAct), s(sRb2), NU * 4096))
        A('s_lshl_b32 %s, %s, 15' % (s(sO[4]), s(sJ)))
        A('s_add_u32 %s, %s, %s' % (s(sO[4]), s(sO[4]), s(sAct)))
        A('s_mul_i32 %s, %s, %d' % (s(sO[5]), s(sJ), 3 * 4096))
        A('s_add_u32 %s, %s, %s' % (s(sO[5]), s(sO[5]), s(sAct)))
        A.wait_vm('p3')
        A('ds_write_b32 %s, %s' % (v(vFw), v(vFw + 1)))
        if not X:
            w2_upto(WIN - 1)
        for i in range(7):
            if XS and i == OPT['xs0'] + 1:
                A('v_mov_b32 %s, %d' % (v(vLa), FL_KV))
                lds_wait(A, 'LXK', v(vLa), 4, 1, vLt)
                w2_upto(i - 1 + WIN)
            A.wait_vm('u%d' % i)
            emit(A, wread(i, UP[i], 'm'))
            A.wait_lg(None)
            if not XS or i > OPT['xs0']:
                w2_upto(i + WIN)
        if X and not XS:
            A('v_mov_b32 %s, %d' % (v(vLa), FL_KV))
            lds_wait(A, 'LXK', v(vLa), 4, 1, vLt)
            w2_upto(11)
        for i in range(7, 12):
            if nx[0] <= cap[0]:
                A.wait_vm(TRS[i])
                w2_upto(i + WIN)
        stamp(A, 8)
        stamp(A, 3, 6)
        LA, LB, L8 = (OPT['lax'], OPT['lbx'], OPT['l8x']) if X else (OPT['la'], OPT['lb'], OPT['l8'])
        def late():
            A('v_mov_b32 %s, %d' % (v(vLa), FL_PB))
            lds_wait(A, 'LPB%d' % X, v(vLa), 4, 2, vLt)
            for i in range(8, 11):
                emit(A, grp_w2(i, UP))
        def lread():
            A.wait_vm('u10')
            for i in range(8, 11):
                emit(A, wread(i - 7, UP[i], 'b%d' % i))
        if not X:
            sKf, sK = (SB, [SB + 1, SB + 2, SB + 3, 6, 7]) if OPT['yd'] else (sO[0], [sO[1], sO[2], sO[3], 6, 7])
            A('s_lshl_b32 %s, %s, 2' % (s(sT0), s(sGq)))
            A('s_add_u32 %s, %s, %s' % (s(sT0), s(sT0), s(sJ)))
            A('s_lshl_b32 %s, %s, 7' % (s(sKf), s(sT0)))
            A('s_add_u32 %s, %s, 0x%x' % (s(sKf), s(sKf), WS_KF))
            kfl = 'buffer_load_dword %s, %s, %s, %s offen sc1' % (v(vKf), v(vFl), s(SWS, 4), s(sKf))
            A(kfl, tag='kf')
            A('s_mul_i32 %s, %s, %d' % (s(sT0), s(sT0), 2 * KVS))
            for i_, o_ in enumerate((0, KVS, 4096, KVS + 4096, 8192)):
                A('s_add_u32 %s, %s, 0x%x' % (s(sK[i_]), s(sT0), WS_KVP + o_))
        def gate_a():
            gate(0, '0xf')
            stamp(A, 4)
            for i in range(LA if X else 2):
                aload(i)
        if X or not OPT['ka']:
            gate_a()
        elif OPT['ka'] >= 2:
            A(fload, tag='fl')
        if not X:
            vK, vZ, vD = 0, 176, 180
            KL = [('buffer_load_dwordx4 %s, %s, %s, %s offen sc1' % (v(vZ, 4), v(vZo), s(SWS, 4), s(sK[4])), 'kz')]
            for i in range(16):
                c, q = i & 1, i >> 1
                KL.append(('buffer_load_dwordx4 %s, %s, %s, %s offen offset:%d sc1' % (v(vK + 4 * i, 4), v(vL16), s(SWS, 4), s(sK[c + 2 * (q >> 2)]), 1024 * (q & 3)), 'k%d' % i))
            pre = []
            if OPT['kpf'] == 1:
                emit(A, KL)
            if OPT['kpf'] >= 2:
                A('s_and_b32 %s, %s, 1' % (s(sT0), s(sRb)))
                A('s_mul_i32 %s, %s, %d' % (s(sT0), s(sT0), KVS))
                if OPT['kpf'] == 3:
                    A('s_lshl_b32 %s, %s, 11' % (s(sT1), s(sRb)))
                    A('s_and_b32 %s, %s, 4096' % (s(sT1), s(sT1)))
                    A('s_add_u32 %s, %s, %s' % (s(sT0), s(sT0), s(sT1)))
                    A('v_lshl_add_u32 %s, %s, 5, %s' % (v(vK), v(vFl), s(sT0)))
                else:
                    A('v_lshl_add_u32 %s, %s, 7, %s' % (v(vK), v(vLane), s(sT0)))
                pre = ['buffer_load_dword %s, %s, %s, %s offen sc1' % (v(vK + 1), v(vK), s(SWS, 4), s(sK[0]))]
                emit(A, pre)
            A.wait_vm('kf')
            poll(A, 'LK', [kfl] + pre + ([fload] if OPT['ka'] else []), vKf, '0xffff')
            stamp(A, 1, 2)
            emit(A, KL)
            if OPT['ka']:
                gate_a()
            if OPT['yw'] == 0:
                cap[0] = 11
                w2_upto(11)
            A.raw('VK_B:')
            A.wait_vm('kz')
            A('v_mfma_f32_16x16x32_bf16 %s, %s, %s, 0' % (v(vD + 8, 4), v(vSg, 4), v(vZ, 4)))
            zl = []
            for ctl in ('quad_perm:[1,0,3,2]', 'quad_perm:[2,3,0,1]', 'row_half_mirror'):
                for r in range(4):
                    zl.append('v_add_f32_dpp %s, %s, %s %s row_mask:0xf bank_mask:0xf' % (v(vD + 8 + r), v(vD + 8 + r), v(vD + 8 + r), ctl))
            zl.append('v_cvt_pk_bf16_f32 %s, %s, %s' % (v(vD + 8), v(vD + 8), v(vD + 9)))
            zl.append('v_cvt_pk_bf16_f32 %s, %s, %s' % (v(vD + 9), v(vD + 10), v(vD + 11)))
            zl.append('ds_write_b64 %s, %s offset:256' % (v(vKw + 1), v(vD + 8, 2)))
            for i in range(16):
                A.wait_vm('k%d' % i)
                d = vD + 4 * (i & 1)
                A('v_mfma_f32_16x16x32_bf16 %s, %s, %s, %s' % (v(d, 4), v(vSg, 4), v(vK + 4 * i, 4), '0' if i < 2 else v(d, 4)))
                if i & 1:
                    A('v_max3_u32 %s, %s, %s, %s' % (v(vKf), v(vZ if i == 1 else vKf), v(vK + 4 * i - 4), v(vK + 4 * i)))
                if i >= 4:
                    emit(A, zl[:2]); zl = zl[2:]
            vcheck(A, 'VK', [vKf], vKf, KL, back='VK_B')
            for c in range(2):
                d = vD + 4 * c
                A('v_cvt_pk_bf16_f32 %s, %s, %s' % (v(d), v(d), v(d + 1)))
                A('v_cvt_pk_bf16_f32 %s, %s, %s' % (v(d + 1), v(d + 2), v(d + 3)))
                A('ds_write_b64 %s, %s offset:%d' % (v(vKw), v(d, 2), 544 * c))
            A('ds_write_b32 %s, %s offset:%d' % (v(vFw), v(vFw + 1), FL_KV - FL_P3))
            stamp(A, 3, 2)
            cap[0] = 11
            w2_upto(11)
            if OPT['bq'] == 3:
                A('v_mov_b32 %s, %d' % (v(vLa), FL_EX))
                lds_wait(A, 'LYK', v(vLa), 4, 1, vLt)
            if OPT['roll']:
                A(fload, tag='fl')
            for i in range(2, 4 if OPT['roll'] else LA):
                aload(i)
            if OPT['bq'] == 4:
                A('v_mov_b32 %s, %d' % (v(vLa), FL_EX))
                lds_wait(A, 'LYK', v(vLa), 4, 1, vLt)
        if X and OPT['xh']:
            A('v_mov_b32 %s, %d' % (v(vLa), FL_PB))
            lds_wait(A, 'LXH', v(vLa), 4, 2, vLt)
        if OPT['roll']:
            assert not X or LA == 4
            seq = {1: 'U0 W U1 B a4 a5 F L U2 a6 U3 a7 U4 C a8 R U5 a9 U6 a10 x U7 U8 U9 U10',
                   2: 'L U0 W U1 B a4 a5 F U2 a6 U3 a7 R U4 C a8 U5 a9 U6 a10 x U7 U8 U9 U10',
                   3: 'U0 W U1 B a4 a5 U2 a6 F U3 a7 L U4 U5 C a8 a9 U6 a10 R x U7 U8 U9 U10',
                   4: 'U0 W B a4 U1 a5 F L U2 a6 U3 a7 U4 C a8 R U5 a9 U6 a10 x U7 U8 U9 U10'}[OPT['rollx'] if X else OPT['roll']]
            if X:
                A(fload, tag='fl')
            for it in seq.split():
                if it == 'U10' and OPT['lnf'] >= 2:
                    A.wait_vm('a10')
                    stamp(A, 5, 7)
                    A.wait_lg('b10')
                    for n in range(4 + OPT['lnd']):
                        if n < 4:
                            for c in range(2):
                                acc = vAcc + 16 * n
                                A('v_mfma_f32_32x32x16_bf16 %s, %s, %s, %s' % (v(acc, 16), v(vW + 48 + 8 * c + 4 * (n >> 1), 4), v(RB[10] + 8 * c + 4 * (n & 1), 4), v(acc, 16)))
                        if n == 3:
                            stamp(A, 6)
                        if n >= OPT['lnd']:
                            emit(A, wr[4 * (n - OPT['lnd']):4 * (n - OPT['lnd']) + 4])
                    A.branch('s_branch F_START')
                elif it[0] == 'U':
                    unit(int(it[1:]))
                    if it == 'U8' and OPT['lnf'] >= 2:
                        A('s_lshl_b32 %s, %s, 1' % (s(sT0), s(sM)))
                        wr = reduce_write(A, vAcc, 64, sT0)
                    if it == 'U3':
                        stamp(A, 5)
                elif it[0] == 'a':
                    aload(int(it[1:]))
                elif it == 'W':
                    A.wait_vm('w2')
                    lflag(3)
                    emit(A, wread(0, UP[7], 'b7'))
                elif it == 'B':
                    stamp(A, 2, 2)
                    gate(4, '0xff')
                    stamp(A, 8, 2)
                    stamp(A, 1, 7)
                elif it == 'C':
                    gate(8, '0x3f00')
                    stamp(A, 4, 2)
                    stamp(A, 8, 7)
                elif it == 'F':
                    A(fload, tag='fl')
                elif it == 'L':
                    late()
                elif it == 'R':
                    lread()
                elif it == 'x':
                    xres(A, 240, 244)
            if not X and OPT['lnf'] < 2:
                A.branch('s_branch L_RED')
            continue
        for i in range(4):
            unit(i)
            if i + LA < 4:
                aload(i + LA)
            if i == (OPT['yf'] if OPT['yd'] and not X else 0):
                A.wait_vm('w2')
                lflag(3)
                emit(A, wread(0, UP[7], 'b7'))
            if i == 2:
                A(fload, tag='fl')
        stamp(A, 5)
        if L8 == 0:
            late()
        if not X and OPT['bq'] == 2:
            A('v_mov_b32 %s, %d' % (v(vLa), FL_EX))
            lds_wait(A, 'LYK', v(vLa), 4, 1, vLt)
        stamp(A, 2, 2)
        gate(4, '0xff')
        stamp(A, 8, 2)
        stamp(A, 8, 6)
        stamp(A, 1, 7)
        for i in range(4, 4 + LB):
            aload(i)
        for i in range(4, 8):
            unit(i)
            if i + LB < 8:
                aload(i + LB)
            if i == 4 and L8 == 0:
                lread()
            if i == max(4, 8 - LB) and L8 == 1:
                late()
            if i == 6:
                A(fload, tag='fl')
        if L8 == 2:
            late()
            A(fload, tag='fl')
        gate(8, '0x3f00')
        stamp(A, 4, 2)
        stamp(A, 8, 7)
        for i in range(8, 11):
            aload(i)
        if L8:
            lread()
        xres(A, 240, 244)
        for i in range(8, 11):
            unit(i)
        if not X:
            A.branch('s_branch L_RED')
    if OPT['lnf'] >= 2:
        return
    A.label('L_RED')
    stamp(A, 6)
    A('s_lshl_b32 %s, %s, 1' % (s(sT0), s(sM)))
    wr = reduce_write(A, vAcc, 64, sT0)
    A('s_mov_b32 %s, 0x%x' % (s(sO[0]), LN2))
    A('s_mov_b32 %s, 0x%x' % (s(sO[1]), LN2))
    for n, w in enumerate(wr):
        r = vAcc + 4 * n
        if not OPT['lnf']:
            A('v_pk_mul_f32 %s, %s, %s' % (v(r, 2), v(r, 2), s(sO[0], 2)))
            A('v_pk_mul_f32 %s, %s, %s' % (v(r + 2, 2), v(r + 2, 2), s(sO[0], 2)))
        A(w)
    A.branch('s_branch F_START')

def gen_compute(A):
    A.label('C_START')
    A.vm = []; A.lg = []
    vX = 0
    def ACC(u, r): return 128 + 32 * u + 16 * r
    vWf, vXf = 192, 216
    vXo, vXt = 228, 232
    vPw, vVw, vPr, vVr, vSt, vPo, vF2 = 236, 237, 238, 239, 240, 241, 242
    vR0 = 236
    vWa, vTa, vTb, vTr, vPa, vFo, vWm, vNon = 244, 245, 246, 247, 248, 249, 250, 252
    vR = [232, 234]
    vT = 0
    sCh, sRg, sP2 = sA, sB, sM
    sL2, sHO = 52, 54
    A('s_and_b32 %s, %s, 1' % (s(sCh), s(sJ)))
    A('s_lshr_b32 %s, %s, 1' % (s(sRg), s(sJ)))
    A('s_lshl_b32 %s, %s, 1' % (s(sP2), s(sRb)))
    A('s_add_u32 %s, %s, %s' % (s(sP2), s(sP2), s(sRg)))
    A('s_mov_b32 %s, 0x%x' % (s(sL2), LOG2E))
    A('s_mov_b32 %s, 0x%x' % (s(sL2 + 1), LOG2E))
    A('s_mov_b32 %s, 0.5' % s(sHO))
    A('s_mov_b32 %s, 1.0' % s(sHO + 1))
    A('v_mov_b32 %s, 0x%x' % (v(vT), OOB))
    A('v_cmp_eq_u32 vcc, 0, %s' % v(vLane))
    A('v_cndmask_b32 %s, %s, 0, vcc' % (v(vFo), v(vT)))
    tr_addr(A, vWa, vT, 8, s(sCh))
    A('v_add_u32 %s, %d, %s' % (v(vWa), L_W, v(vWa)))
    A('v_lshrrev_b32 %s, 5, %s' % (v(vT), v(vLane)))
    A('v_and_b32 %s, 31, %s' % (v(vT + 1), v(vLane)))
    A('v_bfe_u32 %s, %s, 1, 3' % (v(vT + 2), v(vLane)))
    A('v_xor_b32 %s, %s, %s' % (v(vT + 2), v(vT + 2), v(vT)))
    A('v_lshlrev_b32 %s, 4, %s' % (v(vT + 2), v(vT + 2)))
    A('v_lshl_add_u32 %s, %s, 7, %s' % (v(vT + 2), v(vT + 1), v(vT + 2)))
    A('s_lshl_b32 %s, %s, 12' % (s(sT0), s(sJ)))
    A('v_add_u32 %s, %s, %s' % (v(vXo), s(sT0), v(vT + 2)))
    for tt in range(1, 4):
        A('v_xor_b32 %s, %d, %s' % (v(vXo + tt), 32 * tt, v(vXo)))
    for tt in range(4):
        A('v_xor_b32 %s, 0x1000, %s' % (v(vXt + tt), v(vXo + tt)))
    A('v_lshlrev_b32 %s, 3, %s' % (v(vT + 2), v(vT + 1)))
    A('v_lshl_add_u32 %s, %s, 2, %s' % (v(vT + 2), v(vT), v(vT + 2)))
    A('v_add_u32 %s, %d, %s' % (v(vTa), TA, v(vT + 2)))
    A('s_lshl_b32 %s, %s, 8' % (s(sT0), s(sJ)))
    A('s_add_u32 %s, %s, %d' % (s(sT0), s(sT0), TB))
    A('v_add_u32 %s, %s, %s' % (v(vTb), s(sT0), v(vT + 2)))
    A('s_lshl_b32 %s, %s, 7' % (s(sT0), s(sJ)))
    A('s_add_u32 %s, %s, %d' % (s(sT0), s(sT0), TR))
    A('v_lshl_add_u32 %s, %s, 2, %s' % (v(vTr), v(vT + 1), s(sT0)))
    A('v_bfe_u32 %s, %s, 2, 2' % (v(vT + 2), v(vLane)))
    A('v_lshl_add_u32 %s, %s, 2, %s' % (v(vT + 2), v(vT), v(vT + 2)))
    A('v_bfe_u32 %s, %s, 4, 1' % (v(vT + 3), v(vLane)))
    A('v_bfe_u32 %s, %s, 1, 1' % (v(vT + 4), v(vLane)))
    A('v_lshl_add_u32 %s, %s, 1, %s' % (v(vT + 4), v(vT + 3), v(vT + 4)))
    A('v_lshlrev_b32 %s, 3, %s' % (v(vT + 4), v(vT + 4)))
    A('v_lshl_add_u32 %s, %s, 5, %s' % (v(vPa), v(vT + 2), v(vT + 4)))
    A('s_and_b32 %s, %s, %s' % (s(sT0), s(sCh), s(sTyp)))
    A('s_lshl_b32 %s, %s, 10' % (s(sT0), s(sT0)))
    A('s_add_u32 %s, %s, %d' % (s(sT0), s(sT0), TPH))
    A('v_add_u32 %s, %s, %s' % (v(vPa), s(sT0), v(vPa)))
    A('v_and_b32 %s, 1, %s' % (v(vT + 2), v(vLane)))
    A('v_bfe_u32 %s, %s, 2, 1' % (v(vT + 3), v(vLane)))
    A('v_xor_b32 %s, %s, %s' % (v(vT + 4), v(vT + 3), v(vT)))
    A('v_lshl_or_b32 %s, %s, 1, %s' % (v(vT + 4), v(vT + 4), v(vT + 2)))
    A('v_bfe_u32 %s, %s, 1, 1' % (v(vT + 5), v(vLane)))
    A('v_lshl_or_b32 %s, %s, 2, %s' % (v(vT + 4), v(vT + 5), v(vT + 4)))
    A('v_lshlrev_b32 %s, 4, %s' % (v(vT + 4), v(vT + 4)))
    A('v_lshl_add_u32 %s, %s, 7, %s' % (v(vT + 4), v(vT + 1), v(vT + 4)))
    A('s_lshl_b32 %s, %s, 16' % (s(sT1), s(sCh)))
    A('s_add_u32 %s, %s, %d' % (s(sT1), s(sT1), PH0))
    A('s_lshl_b32 %s, %s, 12' % (s(sT0), s(sJ)))
    A('s_add_u32 %s, %s, %s' % (s(sT0), s(sT0), s(sT1)))
    A('v_add_u32 %s, %s, %s' % (v(vPw), s(sT0), v(vT + 4)))
    A('v_bfe_u32 %s, %s, 4, 1' % (v(vT + 4), v(vLane)))
    A('v_xor_b32 %s, %s, %s' % (v(vT + 4), v(vT + 4), v(vT + 3)))
    A('v_xor_b32 %s, %s, %s' % (v(vT + 2), v(vT + 2), v(vT)))
    A('v_lshl_or_b32 %s, %s, 1, %s' % (v(vT + 4), v(vT + 2), v(vT + 4)))
    A('v_bfe_u32 %s, %s, 3, 1' % (v(vT + 2), v(vLane)))
    A('v_xor_b32 %s, %s, %s' % (v(vT + 2), s(sRg), v(vT + 2)))
    A('v_lshl_or_b32 %s, %s, 2, %s' % (v(vT + 4), v(vT + 2), v(vT + 4)))
    A('v_lshl_or_b32 %s, %s, 1, %s' % (v(vT + 4), v(vT + 4), v(vT + 5)))
    A('v_lshlrev_b32 %s, 3, %s' % (v(vT + 4), v(vT + 4)))
    A('v_bfe_u32 %s, %s, 2, 2' % (v(vT + 2), v(vLane)))
    A('v_lshl_add_u32 %s, %s, 2, %s' % (v(vT + 2), v(vT), v(vT + 2)))
    A('v_lshl_add_u32 %s, %s, 7, %s' % (v(vT + 4), v(vT + 2), v(vT + 4)))
    A('s_lshl_b32 %s, %s, 13' % (s(sT0), s(sRg)))
    A('s_add_u32 %s, %s, %s' % (s(sT0), s(sT0), s(sT1)))
    A('v_add_u32 %s, %s, %s' % (v(vPr), s(sT0), v(vT + 4)))
    A('s_lshl_b32 %s, %s, 13' % (s(sT1), s(sCh)))
    A('s_add_u32 %s, %s, %d' % (s(sT1), s(sT1), VB))
    A('s_lshl_b32 %s, %s, 11' % (s(sT0), s(sJ)))
    A('s_add_u32 %s, %s, %s' % (s(sT0), s(sT0), s(sT1)))
    A('v_add_u32 %s, %s, %s' % (v(vVw), s(sT0), v(vL16)))
    A('s_mul_i32 %s, %s, %d' % (s(sT0), s(sRg), 4096 + 256))
    A('s_add_u32 %s, %s, %s' % (s(sT0), s(sT0), s(sT1)))
    A('v_add_u32 %s, %s, %s' % (v(vT + 2), s(sT0), v(vL16)))
    A('s_lshl_b32 %s, %s, 7' % (s(sT0), s(sRg)))
    A('s_add_u32 %s, %s, %d' % (s(sT0), s(sT0), TS))
    A('v_lshl_add_u32 %s, %s, 4, %s' % (v(vT + 3), v(vT), s(sT0)))
    A('v_cmp_gt_u32 vcc, 16, %s' % v(vT + 1))
    A('v_cndmask_b32 %s, %s, %s, vcc' % (v(vVr), v(vT + 3), v(vT + 2)))
    A('v_mov_b32 %s, 1024' % v(vT + 2))
    A('v_cndmask_b32 %s, 32, %s, vcc' % (v(vSt), v(vT + 2)))
    A('v_lshl_add_u32 %s, %s, 4, %s' % (v(vT + 2), v(vT), v(vT + 1)))
    A('s_lshl_b32 %s, %s, 9' % (s(sT0), s(sRb)))
    A('v_lshl_add_u32 %s, %s, 4, %s' % (v(vT + 2), v(vT + 2), s(sT0)))
    A('v_mov_b32 %s, 0x%x' % (v(vT + 4), OOB))
    A('v_cndmask_b32 %s, %s, %s, vcc' % (v(vPo), v(vT + 4), v(vT + 2)))
    A('s_lshl_b32 %s, %s, 5' % (s(sT0), s(sRb)))
    A('s_add_u32 %s, %s, 8192' % (s(sT0), s(sT0)))
    A('v_lshl_add_u32 %s, %s, 4, %s' % (v(vT + 2), v(vT), s(sT0)))
    A('v_cmp_eq_u32 vcc, 16, %s' % v(vT + 1))
    A('v_cndmask_b32 %s, %s, %s, vcc' % (v(vPo), v(vPo), v(vT + 2)))
    A('s_lshl_b32 %s, %s, 1' % (s(sT0), s(sG)))
    A('v_add_u32 %s, %s, %s' % (v(vT + 2), s(sT0), v(vLane)))
    A('v_mul_u32_u24 %s, 43, %s' % (v(vT + 3), v(vT + 2)))
    A('v_lshrrev_b32 %s, 7, %s' % (v(vT + 3), v(vT + 3)))
    A('v_mul_u32_u24 %s, %d, %s' % (v(vT + 3), 128 - 24, v(vT + 3)))
    A('v_lshl_add_u32 %s, %s, 3, %s' % (v(vT + 2), v(vT + 2), v(vT + 3)))
    A('v_cmp_gt_u32 vcc, 2, %s' % v(vLane))
    A('v_cndmask_b32 %s, %s, %s, vcc' % (v(vF2), v(vT + 4), v(vT + 2)))
    if OPT['warm'] == 1:
        A('v_lshrrev_b32 %s, 2, %s' % (v(vT + 2), v(vT + 1)))
        A('v_and_b32 %s, 3, %s' % (v(vT + 3), v(vLane)))
        A('v_lshlrev_b32 %s, 2, %s' % (v(vT + 3), v(vT + 3)))
        A('v_lshl_add_u32 %s, %s, 7, %s' % (v(vT + 2), v(vT + 2), v(vT + 3)))
        A('v_lshl_add_u32 %s, %s, 15, %s' % (v(vT + 2), v(vT), v(vT + 2)))
        A('s_lshr_b32 %s, s2, 3' % s(sT0))
        A('s_lshl_b32 %s, %s, 10' % (s(sT0), s(sT0)))
        A('v_add_u32 %s, %s, %s' % (v(vWm), s(sT0), v(vT + 2)))
        A('s_lshl_b32 %s, %s, 18' % (s(sO[3]), s(sJ)))
        A('s_mul_i32 %s, %s, %d' % (s(sO[4]), s(sJ), 3 * 32768))
        A('s_lshl_b32 %s, %s, 17' % (s(sO[5]), s(sJ)))
    A('s_mul_i32 %s, %s, 768' % (s(sO[2]), s(sCh)))
    A('s_waitcnt lgkmcnt(0)')
    srd(A, SWS, 36, WS_SIZE)
    srd(A, SX, 16, 2048 * 1024)
    srd(A, SW2, 30, 1376 * 1024)
    srd(A, SWO, 22, 512 * 1024)
    stamp(A, 0)
    if OPT['prio']:
        A('s_setprio %d' % OPT['prio'])
    A('s_cmp_eq_u32 %s, 1' % s(sTyp))
    A.branch('s_cbranch_scc1 CX_START')

    def mfma(d, a_, b_, c):
        return 'v_mfma_f32_32x32x16_bf16 %s, %s, %s, %s' % (v(d, 16), v(a_, 4), v(b_, 4), v(d, 16) if c else '0')
    def frags(t):
        if t >= 32:
            return []
        st, k = divmod(t, 4)
        sl = st & 3
        tg = 'f%d' % t
        def wf(u):
            return [('ds_read_b64_tr_b16 %s, %s offset:%d' % (v(vWf + 8 * (t % 3) + 4 * u + 2 * hh, 2), v(vWa), 16384 * sl + 8192 * u + 2048 * k + 512 * hh), tg) for hh in range(2)]
        xf = [('ds_read_b128 %s, %s offset:%d' % (v(vX + 4 * t, 4), v(vXo + k), 16384 * sl), tg),
              ('ds_read_b128 %s, %s offset:%d' % (v(vXf + 4 * (t % 3), 4), v(vXt + k), 16384 * sl), tg)]
        return wf(0) + xf + wf(1)
    def softmax(D, P, M, rs=None, np_=0):
        L = []
        L.append('v_max3_f32 %s, %s, %s, %s' % (v(M), v(D), v(D + 1), v(D + 2)))
        L.append('v_max3_f32 %s, %s, %s, %s' % (v(M + 1), v(D + 3), v(D + 4), v(D + 5)))
        L.append('v_max3_f32 %s, %s, %s, %s' % (v(M + 2), v(D + 6), v(D + 7), v(D + 8)))
        L.append('v_max3_f32 %s, %s, %s, %s' % (v(M + 3), v(D + 9), v(D + 10), v(D + 11)))
        L.append('v_max3_f32 %s, %s, %s, %s' % (v(M), v(M), v(D + 12), v(D + 13)))
        L.append('v_max3_f32 %s, %s, %s, %s' % (v(M + 1), v(M + 1), v(D + 14), v(D + 15)))
        L.append('v_max3_f32 %s, %s, %s, %s' % (v(M), v(M), v(M + 1), v(M + 2)))
        L.append('v_max_f32 %s, %s, %s' % (v(M), v(M), v(M + 3)))
        L.append('v_mul_f32 %s, 0x%x, %s' % (v(M), LOG2E | 0x80000000, v(M)))
        for i in range(8):
            if np_ & 1:
                L += ['v_fma_f32 %s, %s, %s, %s' % (v(D + 2 * i + e), v(D + 2 * i + e), s(sL2), v(M)) for e in range(2)]
            else:
                L.append('v_pk_fma_f32 %s, %s, %s, %s op_sel_hi:[1,1,0]' % (v(D + 2 * i, 2), v(D + 2 * i, 2), s(sL2, 2), v(M, 2)))
        for i in range(16):
            L.append('v_exp_f32 %s, %s' % (v(D + i), v(D + i)))
        for d_, a_, b_ in ((M, D, D + 2), (M + 2, D + 4, D + 6), (M, M, D + 8), (M + 2, M + 2, D + 10), (M, M, D + 12), (M + 2, M + 2, D + 14), (M, M, M + 2)):
            if np_ & 2:
                L += ['v_add_f32 %s, %s, %s' % (v(d_ + e), v(a_ + e), v(b_ + e)) for e in range(2)]
            else:
                L.append('v_pk_add_f32 %s, %s, %s' % (v(d_, 2), v(a_, 2), v(b_, 2)))
        L.append('v_add_f32 %s, %s, %s' % (v(M), v(M), v(M + 1)))
        L.append('v_rcp_f32 %s, %s' % (v(M), v(M)))
        if rs is not None:
            L.append('v_mul_f32 %s, %s, %s' % (v(M), v(M), v(rs)))
        for i in range(8):
            if np_ & 4:
                L += ['v_mul_f32 %s, %s, %s' % (v(D + 2 * i + e), v(D + 2 * i + e), v(M)) for e in range(2)]
            else:
                L.append('v_pk_mul_f32 %s, %s, %s op_sel_hi:[1,0]' % (v(D + 2 * i, 2), v(D + 2 * i, 2), v(M, 2)))
        for i in range(8):
            L.append('v_cvt_pk_bf16_f32 %s, %s, %s' % (v(P + i), v(D + 2 * i), v(D + 2 * i + 1)))
        return L
    def pack(acc, P):
        for i in range(8):
            A('v_cvt_pk_bf16_f32 %s, %s, %s' % (v(P + i), v(acc + 2 * i), v(acc + 2 * i + 1)))
    def scale_pack(acc, P, rs):
        for i in range(8):
            A('v_pk_mul_f32 %s, %s, %s op_sel_hi:[1,0]' % (v(acc + 2 * i, 2), v(acc + 2 * i, 2), v(rs, 2)))
        pack(acc, P)
    def zipl(a_, b_):
        return [x for pr in zip(a_, b_) for x in pr]
    def mish(acc, r, E, V, so, tag, hook=(None, None), mv=None):
        mv = OPT['mv'] if mv is None else mv
        if hook[0] == 4: hook[1]()
        for i in range(8):
            if mv & 1:
                A('v_mul_f32 %s, %s, %s' % (v(acc + 2 * i), v(acc + 2 * i), v(vR[r])))
                A('v_mul_f32 %s, %s, %s' % (v(acc + 2 * i + 1), v(acc + 2 * i + 1), v(vR[r])))
            else:
                A('v_pk_mul_f32 %s, %s, %s op_sel_hi:[1,0]' % (v(acc + 2 * i, 2), v(acc + 2 * i, 2), v(vR[r], 2)))
        for i in range(16):
            A('v_exp_f32 %s, %s' % (v(E + i), v(acc + i)))
        for i in range(8):
            if mv & 2:
                A('v_fma_f32 %s, %s, 0.5, 1.0' % (v(V + 2 * i), v(E + 2 * i)))
                A('v_fma_f32 %s, %s, 0.5, 1.0' % (v(V + 2 * i + 1), v(E + 2 * i + 1)))
            else:
                A('v_pk_fma_f32 %s, %s, %s, %s op_sel:[0,0,1] op_sel_hi:[1,0,1]' % (v(V + 2 * i, 2), v(E + 2 * i, 2), s(sHO, 2), s(sHO, 2)))
        for i in range(8):
            if mv & 4:
                A('v_fma_f32 %s, %s, %s, 1.0' % (v(V + 2 * i), v(E + 2 * i), v(V + 2 * i)))
                A('v_fma_f32 %s, %s, %s, 1.0' % (v(V + 2 * i + 1), v(E + 2 * i + 1), v(V + 2 * i + 1)))
            else:
                A('v_pk_fma_f32 %s, %s, %s, %s op_sel:[0,0,1] op_sel_hi:[1,1,1]' % (v(V + 2 * i, 2), v(E + 2 * i, 2), v(V + 2 * i, 2), s(sHO, 2)))
        if hook[0] == 3: hook[1]()
        for i in range(16):
            A('v_rcp_f32 %s, %s' % (v(V + i), v(V + i)))
        if hook[0] == 2: hook[1]()
        for i in range(8):
            if mv & 8:
                A('v_fma_f32 %s, -%s, %s, %s' % (v(acc + 2 * i), v(acc + 2 * i), v(V + 2 * i), v(acc + 2 * i)))
                A('v_fma_f32 %s, -%s, %s, %s' % (v(acc + 2 * i + 1), v(acc + 2 * i + 1), v(V + 2 * i + 1), v(acc + 2 * i + 1)))
            else:
                A('v_pk_fma_f32 %s, %s, %s, %s neg_lo:[1,0,0] neg_hi:[1,0,0]' % (v(acc + 2 * i, 2), v(acc + 2 * i, 2), v(V + 2 * i, 2), v(acc + 2 * i, 2)))
        pack(acc, acc)
        A('buffer_store_dwordx4 %s, %s, %s, %s offen sc1' % (v(acc, 4), v(vL16), s(SWS, 4), s(so)), tag=tag)
        A('buffer_store_dwordx4 %s, %s, %s, %s offen offset:2048 sc1' % (v(acc + 4, 4), v(vL16), s(SWS, 4), s(so)), tag=tag)
        if hook[0] == 1: hook[1]()
    def flag(tag, so, off=0, vo=vFo):
        A.wait_vm(tag)
        A('buffer_store_dword %s, %s, %s, %s offen offset:%d sc1' % (v(vNon), v(vo), s(SWS, 4), s(so), off))
    def sign_flip(ph, n, t):
        A('v_bfe_u32 %s, %s, 2, 1' % (v(t), v(vLane)))
        A('v_mul_u32_u24 %s, 0x8000, %s' % (v(t), v(t)))
        A('v_lshl_or_b32 %s, %s, 16, %s' % (v(t), v(t), v(t)))
        A.wait_lg('ph')
        for i in range(n):
            A('v_xor_b32 %s, %s, %s' % (v(ph + i), v(t), v(ph + i)))

    def mish_fill(tiles, T):
        n = 16 * len(tiles)
        R = lambda i: tiles[i // 16][0] + i % 16
        E = lambda i: T + i % 3
        V = lambda i: T + 3 + i % 3
        mul = lambda i: 'v_mul_f32 %s, %s, %s' % (v(R(i)), v(R(i)), v(vR[tiles[i // 16][1]]))
        G = []; late = []
        for i in range(n + 2):
            a_ = [mul(0)] if i == 0 else []
            if i < n: a_.append('v_exp_f32 %s, %s' % (v(E(i)), v(R(i))))
            if 0 <= i - 1 < n: a_.append('v_fma_f32 %s, %s, %s, 1.0' % (v(V(i - 1)), v(E(i - 1)), v(V(i - 1))))
            if 0 <= i - 2 < n: a_.append('v_fma_f32 %s, -%s, %s, %s' % (v(R(i - 2)), v(R(i - 2)), v(V(i - 2)), v(R(i - 2))))
            b_ = []
            if 0 <= i - 1 < n: b_.append('v_rcp_f32 %s, %s' % (v(V(i - 1)), v(V(i - 1))))
            if i < n: b_.append('v_fma_f32 %s, %s, 0.5, 1.0' % (v(V(i)), v(E(i))))
            if i + 1 < n: b_.append(mul(i + 1))
            k = i - 2
            if k >= 0 and k & 1:
                acc, r, so, tag = tiles[k // 16]
                b_.append('v_cvt_pk_bf16_f32 %s, %s, %s' % (v(acc + (k % 16) // 2), v(R(k - 1)), v(R(k))))
                if k % 8 == 7:
                    st_ = ('buffer_store_dwordx4 %s, %s, %s, %s offen offset:%d sc1' % (v(acc + 4 * (k % 16 // 8), 4), v(vL16), s(SWS, 4), s(so), 2048 * (k % 16 // 8)), tag)
                    (b_ if OPT['sst'] else late).append(st_)
            G += [a_, b_]
        return G + [late]

    def pass_b(X, hooks, fill=(), split=False):
        vBa = 216
        vAp, vBp = (176, 184) if split else (0, 8)
        fill = list(fill)
        if OPT['prio']:
            A('s_setprio %d' % OPT['prio'])
        A('s_lshl_b32 %s, %s, 6' % (s(sT0), s(sCh)))
        A('v_xor_b32 %s, %s, %s' % (v(vBa), s(sT0), v(vWa)))
        A('v_add_u32 %s, %d, %s' % (v(vBa), L_E - L_W, v(vBa)))
        A('v_xor_b32 %s, 64, %s' % (v(vBa + 1), v(vBa)))
        A('v_mov_b32 %s, %d' % (v(vBa + 2), FL_P3))
        lds_wait(A, 'CP3%d' % X, v(vBa + 2), 4, 1, 220)
        stamp(A, 1, 8)
        win = [L_E, L_E]
        seq = [(uu, t) for uu in range(2) for t in range(32)] if split else [(uu, t) for t in range(32) for uu in range(2)]
        def fr(m):
            if m >= 64:
                return []
            uu, t = seq[m]
            st, k = divmod(t, 4)
            L = []
            w = P3B[st] & ~0xffff
            if w != win[uu]:
                L.append('v_add_u32 %s, %d, %s' % (v(vBa + uu), w - win[uu], v(vBa + uu)))
                win[uu] = w
            for hh in range(2):
                L.append(('ds_read_b64_tr_b16 %s, %s offset:%d' % (v(vWf + 4 * (m % 6) + 2 * hh, 2), v(vBa + uu), P3B[st] - w + 2048 * k + 512 * hh), 'g%d' % (m // 2)))
            return L
        for m in range(4):
            emit(A, fr(m))
        tb = [('ds_read_b32 %s, %s offset:%d' % (v(vAp + 4 * uu), v(vTa), 768 * uu + 512), 'tb') for uu in range(2)] + [('ds_read_b32 %s, %s' % (v(vBp), v(vTb)), 'tb')]
        zr = ['v_mov_b32 %s, 0' % v(vAp + i) for i in range(12) if i & 3]
        f0 = 34 if split else 0
        for m in range(64):
            uu, t = seq[m]
            nxt = fr(m + 4)
            z0 = 8 if split else 48
            if z0 <= m < z0 + 9:
                nxt.append(zr[m - z0])
            if m == (20 if split else 60):
                nxt += tb
            if m >= 61 and not X:
                nxt += [('ds_read_b64_tr_b16 %s, %s offset:%d' % (v(16 + 4 * h + 2 * hh, 2), v(vPa), 512 * h + 256 * hh), 'ph') for h in range(4) for hh in range(2)][3 * (m - 61):3 * (m - 60)]
            if m % 2 == 0:
                A.wait_lg('g%d' % (m // 2))
            A(mfma(ACC(0, uu), vWf + 4 * (m % 6), vX + 4 * t, t > 0))
            if split and m == 31:
                A(mfma(ACC(0, 0), vAp, vBp, True))
            if m in (15, 31, 63):
                stamp(A, {15: 2, 31: 6, 63: 7}[m], 8)
            emit(A, nxt)
            if m >= f0 and fill:
                emit(A, fill.pop(0))
            if m % 2 and m // 2 in hooks:
                hooks[m // 2]()
        A('s_lshl_b32 %s, %s, 2' % (s(sT0), s(sJ)))
        A('s_add_u32 %s, %s, %d' % (s(sT0), s(sT0), FL_PB))
        A('v_mov_b32 %s, %s' % (v(vBa), s(sT0)))
        A('v_mov_b32 %s, 2' % v(vBa + 1))
        A.wait_lg('tb')
        A('ds_write_b32 %s, %s' % (v(vBa), v(vBa + 1)))
        for uu in range(1 if split else 0, 2):
            A(mfma(ACC(0, uu), vAp + 4 * uu, vBp, True))
        for f in fill:
            emit(A, f)
        if OPT['prio']:
            A('s_setprio %d' % OPT['pr2'])
        stamp(A, 4)

    vAp, vBp, vPh = [208, 212], [224, 228], 192
    for X in (0, 1):
        A.vm = []; A.lg = []
        if X:
            A.label('CX_START')
        vOne = 8 if OPT['pt0'] < 0 else 124
        sPf = [SB, SB + 1, SB + 2, SB + 3]
        for i in range(4):
            A('v_mov_b32 %s, -1' % v(vOne + i))
        A('s_mul_i32 %s, %s, %d' % (s(sT1), s(sP2), NU * 4096))
        PF = []
        def pf(vo, so, off):
            PF.append(('buffer_store_dwordx4 %s, %s, %s, %s offen offset:%d sc1' % (v(vOne, 4), v(vo), s(SWS, 4), s(so), off), 'pf'))
        if X and OPT['kfp']:
            A('s_lshl_b32 %s, %s, 1' % (s(sT0), s(sG)))
            A('s_add_u32 %s, %s, %s' % (s(sT0), s(sT0), s(sCh)))
            A('s_lshl_b32 %s, %s, 1' % (s(sT0), s(sT0)))
            A('s_add_u32 %s, %s, %s' % (s(sT0), s(sT0), s(sRg)))
            A('s_mul_i32 %s, %s, %d' % (s(sT0), s(sT0), 2 * KVS))
            A('s_add_u32 %s, %s, 0x%x' % (s(sPf[0]), s(sT0), WS_KVP))
            A('s_add_u32 %s, %s, %d' % (s(sPf[1]), s(sPf[0]), KVS))
            pf(vPo, sPf[0], 0)
            pf(vPo, sPf[1], 0)
        if not X and OPT['h2p'] and not OPT['nv']:
            A('s_lshl_b32 %s, %s, 2' % (s(sT0), s(sG)))
            A('s_add_u32 %s, %s, %s' % (s(sT0), s(sT0), s(sCh)))
            A('s_add_u32 %s, %s, 2' % (s(sT0), s(sT0)))
            A('s_lshl_b32 %s, %s, 12' % (s(sT0), s(sT0)))
            A('s_add_u32 %s, %s, %s' % (s(sPf[0]), s(sT0), s(sT1)))
            for q in range(4):
                pf(vL16, sPf[0], 1024 * q)
        if OPT['hfp' if X else 'ofp'] and not OPT['nv']:
            A('s_lshl_b32 %s, %s, 3' % (s(sT0), s(sGq)))
            A('s_add_u32 %s, %s, %s' % (s(sT0), s(sT0), s(sCh)))
            A('s_add_u32 %s, %s, %d' % (s(sT0), s(sT0), 4 * (32 if X else 44)))
            A('s_lshl_b32 %s, %s, 10' % (s(sT0), s(sT0)))
            A('s_add_u32 %s, %s, %s' % (s(sPf[2]), s(sT0), s(sT1)))
            if X:
                A('s_cmp_ge_u32 %s, 6' % s(sG))
                A('s_cselect_b32 %s, 0x%x, %s' % (s(sPf[2]), OOB, s(sPf[2])))
            A('s_add_u32 %s, %s, 4096' % (s(sPf[3]), s(sPf[2])))
            for q in range(4):
                pf(vL16, sPf[2 + (q >> 1)], 2048 * (q & 1))
        if OPT['pt0'] < 0:
            emit(A, PF)
            PF = []
        A('s_barrier')
        stamp(A, 1)
        emit(A, frags(0))
        emit(A, frags(1))
        for t in range(32):
            st, k = divmod(t, 4)
            nxt = frags(t + 2)
            if t == 30:
                A('v_add_u32 %s, %s, %s' % (v(vAp[0]), s(sO[2]), v(vTa)))
                A('v_xor_b32 %s, 256, %s' % (v(vBp[1]), v(vTb)))
                A('v_xor_b32 %s, 128, %s' % (v(vR[1]), v(vTr)))
                A('v_mov_b32 %s, %d' % (v(vNon), TN))
                nxt = [('ds_read_b32 %s, %s offset:256' % (v(vAp[1]), v(vAp[0])), 'tb'),
                       ('ds_read_b32 %s, %s' % (v(vAp[0]), v(vAp[0])), 'tb'),
                       ('ds_read_b32 %s, %s' % (v(vBp[0]), v(vTb)), 'tb'),
                       ('ds_read_b32 %s, %s' % (v(vBp[1]), v(vBp[1])), 'tb'),
                       ('ds_read_b32 %s, %s' % (v(vR[0]), v(vTr)), 'tb'),
                       ('ds_read_b32 %s, %s' % (v(vR[1]), v(vR[1])), 'tb'),
                       ('ds_read_b32 %s, %s' % (v(vNon), v(vNon)), 'tb')]
            if t == 31:
                nxt = ['v_mov_b32 %s, 0' % v(b + i) for b in vAp + vBp for i in range(1, 4)]
                if X:
                    nxt = [('ds_read_b64_tr_b16 %s, %s offset:%d' % (v(vPh + 4 * h + 2 * hh, 2), v(vPa), 512 * h + 256 * hh), 'ph') for h in range(2) for hh in range(2)] + nxt
            A.wait_lg('f%d' % t)
            per = (len(nxt) + 2) // 3
            n = 0
            for u in range(2):
                for r in range(2):
                    w_, x_ = vWf + 8 * (t % 3) + 4 * u, (vX + 4 * t if r == 0 else vXf + 4 * (t % 3))
                    if X and u == 1:
                        w_, x_ = x_, w_
                    A(mfma(ACC(u, r), w_, x_, t > 0))
                    if k == 2 and n == 0:
                        A.wait_lg(None)
                        if st in (4, 5, 6, 7):
                            stamp(A, {4: 1, 5: 2, 6: 8, 7: 4}[st], 3)
                        A('s_barrier')
                        if st == 3:
                            stamp(A, 2)
                    WL = [(3, 0, SW2), (3, 4, SW2), (3, 2, SW2), (3, 6, SW2), (4, 34, SW2), (4, 32, SW2), (5, 0, SWO), (5, 2, SWO)]
                    wq = 4 * (t - OPT['wt0']) + n - 3
                    wk = []
                    if OPT['warm'] == 1 and wq >= 0:
                        wk = WL if (OPT['wd'] == 0 and wq == 0) else [WL[wq // OPT['wd']]] if (OPT['wd'] and wq % OPT['wd'] == 0 and wq // OPT['wd'] < 8) else []
                    for base, c_, sr in wk:
                        A('s_add_u32 %s, %s, %d' % (s(sT0), s(sO[base]), c_ * 32768))
                        A('buffer_load_dword %s, %s, %s, %s offen' % (v(vWm + 1), v(vWm), s(sr, 4), s(sT0)), tag='wm')
                    pq = 4 * (t - OPT['pt0']) + n - 1
                    if PF and t < 29 and pq >= 0 and pq % OPT['pd'] == 0:
                        emit(A, [PF.pop(0)])
                    emit(A, nxt[per * n:per * n + per])
                    n += 1
        assert not PF
        stamp(A, 3)
        if OPT['prio']:
            A('s_setprio %d' % OPT['pex' if X else 'pey'])
        A.wait_lg('tb')
        for u in range(2):
            for r in range(2):
                p_, q_ = vAp[u], vBp[r]
                if X and u == 1:
                    p_, q_ = q_, p_
                A(mfma(ACC(u, r), p_, q_, True))
        if not X:
            A('v_mov_b32 %s, %s' % (v(vR0), v(vR[0])))
            for r in range(2):
                A('v_mul_f32 %s, 0x%x, %s' % (v(vR[r]), LOG2E, v(vR[r])))
        A('v_readfirstlane_b32 %s, %s' % (s(sNonce), v(vNon)))
        sOut, sFl = sO[4], sO[5]
        A('s_lshl_b32 %s, %s, 10' % (s(sFl), s(sP2)))
        A('s_add_u32 %s, %s, 0x%x' % (s(sFl), s(sFl), WS_F))
        A('s_mul_i32 %s, %s, %d' % (s(sOut), s(sP2), NU * 4096))
        A('s_lshl_b32 %s, %s, 10' % (s(sT0), s(sCh)))
        A('s_add_u32 %s, %s, %s' % (s(sOut), s(sOut), s(sT0)))
        if not X:
            A('s_lshl_b32 %s, %s, 2' % (s(sT0), s(sG)))
            A('s_add_u32 %s, %s, %s' % (s(sT0), s(sT0), s(sCh)))
            A('s_lshl_b32 %s, %s, 12' % (s(sT0), s(sT0)))
            A('s_add_u32 %s, %s, %s' % (s(sO[0]), s(sOut), s(sT0)))
            A('s_xor_b32 %s, %s, 1024' % (s(sO[1]), s(sO[0])))
            A('s_add_u32 %s, %s, 8192' % (s(SB), s(sO[0])))
            A('s_add_u32 %s, %s, 8192' % (s(SB + 1), s(sO[1])))
            sF2 = sT3
            A('s_lshr_b32 %s, %s, 1' % (s(sT0), s(sG)))
            A('s_lshl_b32 %s, %s, 5' % (s(sT0), s(sT0)))
            A('s_and_b32 %s, %s, 1' % (s(sT1), s(sG)))
            A('s_lshl_b32 %s, %s, 1' % (s(sT1), s(sT1)))
            A('s_add_u32 %s, %s, %s' % (s(sT0), s(sT0), s(sT1)))
            A('s_add_u32 %s, %s, %s' % (s(sT0), s(sT0), s(sCh)))
            A('s_lshl_b32 %s, %s, 2' % (s(sT0), s(sT0)))
            A('s_add_u32 %s, %s, %s' % (s(sF2), s(sFl), s(sT0)))
            A('s_lshr_b32 %s, %s, 2' % (s(sT0), s(sGq)))
            A('s_lshl_b32 %s, %s, 1' % (s(sT0), s(sT0)))
            A('s_add_u32 %s, %s, %s' % (s(sT0), s(sT0), s(sCh)))
            A('s_lshl_b32 %s, %s, 5' % (s(sT0), s(sT0)))
            A('s_and_b32 %s, %s, 3' % (s(sT1), s(sGq)))
            A('s_add_u32 %s, %s, %s' % (s(sT0), s(sT0), s(sT1)))
            A('s_lshl_b32 %s, %s, 2' % (s(sT0), s(sT0)))
            A('s_add_u32 %s, %s, %s' % (s(sFl), s(sFl), s(sT0)))
            A('s_lshl_b32 %s, %s, 13' % (s(sT0), s(sGq)))
            A('s_add_u32 %s, %s, %s' % (s(sOut), s(sOut), s(sT0)))
            A('s_add_u32 %s, %s, %d' % (s(sOut), s(sOut), 44 * 4096))
            E, V = 192, 208
            mish(ACC(0, 0), 0, E, V, sO[0], 'h1')
            mish(ACC(0, 1), 1, E, V, sO[1], 'h1')
            H2 = OPT['h2']
            stamp(A, 8)
            pass_b(0, {OPT['f2']: lambda: flag('h1', sF2)},
                   mish_fill([(ACC(1, r), r, SB + r, 'h2') for r in range(2)], 224) if H2 == 4 else ())
            ph, D, P, M = 16, [32, 48, 64, 80], [96, 104, 112, 120], [12, 224]
            sign_flip(ph, 16, M[0])
            for uu in range(2):
                scale_pack(ACC(0, uu), ACC(0, uu), vR0)
                for h in range(2):
                    A(mfma(D[2 * uu + h], ph + 8 * uu + 4 * h, ACC(0, uu) + 4 * h, False))
            vKa, KF = 228, 128
            A('v_and_b32 %s, 31, %s' % (v(vKa), v(vLane)))
            A('v_min_u32 %s, 16, %s' % (v(vKa), v(vKa)))
            A('v_lshrrev_b32 %s, 5, %s' % (v(vKa + 1), v(vLane)))
            A('v_mul_u32_u24 %s, 17, %s' % (v(vKa + 1), v(vKa + 1)))
            A('v_add_lshl_u32 %s, %s, %s, 4' % (v(vKa), v(vKa), v(vKa + 1)))
            A('v_add_u32 %s, %d, %s' % (v(vKa), KVL, v(vKa)))
            A('v_mov_b32 %s, %d' % (v(vKa + 1), FL_KV))
            A('s_lshl_b32 %s, %s, 2' % (s(sT0), s(sJ)))
            A('v_add_u32 %s, %s, %s' % (v(vKa + 2), s(sT0), v(vKa + 1)))
            A('s_add_u32 %s, %s, 4096' % (s(sO[0]), s(sOut)))
            stamp(A, 3, 2)
            stamp(A, 1, 9)
            emit(A, zipl(softmax(D[0], P[0], M[0], None, OPT['ysm']), softmax(D[1], P[1], M[1], None, OPT['ysm'])))
            stamp(A, 2, 9)
            if H2 == 4 and OPT['h2w'] == 1:
                flag('h2', sF2, 16)
            stamp(A, 3, 9)
            emit(A, zipl(softmax(D[2], P[2], M[0], None, OPT['ysm']), softmax(D[3], P[3], M[1], None, OPT['ysm'])))
            stamp(A, 8, 9)
            if H2 == 4 and OPT['h2w'] == 2:
                flag('h2', sF2, 16)
            stamp(A, 1, 2)
            h2f = lambda: flag('pf', sF2, 16)
            def h2m(r):
                mish(ACC(1, r), r, E, V, SB + r, 'h2', (OPT['h2p'] - 4 * (1 - r), h2f))
            if H2 in (1, 3):
                h2m(0)
            if H2 == 1:
                h2m(1)
            def ofl(k):
                if OPT['ofp'] == k:
                    flag('pf', sFl, 512)
                if H2 == 1 and not OPT['h2p'] and OPT['h2q'] == k:
                    flag('h2', sF2, 16)
            ofl(4)
            rd = ['ds_read_b128 %s, %s offset:%d' % (v(KF + 8 * n + 4 * c, 4), v(vKa), KVH * n + 544 * c) for n in range(4) for c in range(2)]
            if OPT['pk'] != OPT['pr2']:
                A('s_setprio %d' % OPT['pk'])
            lds_wait(A, 'CKV', v(vKa + 1), 4, 1, 220, rd)
            if OPT['pk'] != OPT['po']:
                A('s_setprio %d' % OPT['po'])
            stamp(A, 2, 2)
            stamp(A, 5, 9)
            def omf(n):
                for c in range(2):
                    A(mfma(D[n], KF + 8 * n + 4 * c, P[n] + 4 * c, c > 0))
            def ofin(n):
                d = D[n]
                A('v_add_f32 %s, 0x358637bd, %s' % (v(d + 8), v(d + 8)))
                A('v_rcp_f32 %s, %s' % (v(d + 8), v(d + 8)))
                for i in range(8):
                    A('v_mul_f32 %s, %s, %s' % (v(d + i), v(d + i), v(d + 8)))
                for i in range(4):
                    A('v_cvt_pk_bf16_f32 %s, %s, %s' % (v(d + i), v(d + 2 * i), v(d + 2 * i + 1)))
                A('buffer_store_dwordx4 %s, %s, %s, %s offen offset:%d sc1' % (v(d, 4), v(vL16), s(SWS, 4), s(sO[0] if n >> 1 else sOut), 2048 * (n & 1)), tag='o')
            omf(0); omf(1); ofl(2); ofin(0); stamp(A, 6, 9); omf(2); ofin(1); ofl(3); omf(3); ofin(2); ofin(3); ofl(1)
            if OPT['bq'] >= 2:
                A('v_subrev_u32 %s, %d, %s' % (v(vKa + 2), FL_KV - FL_EX, v(vKa + 2)))
                A('ds_write_b32 %s, %s' % (v(vKa + 2), v(vKa + 2)))
            stamp(A, 4, 2)
            stamp(A, 7, 9)
            if H2 == 2:
                h2m(0)
            if H2 == 3:
                h2m(1)
            if not OPT['ofp']:
                flag('o', sFl, 512)
            if H2 == 2:
                h2m(1)
            if H2 in (2, 3) and not OPT['h2p']:
                flag('h2', sF2, 16)
            A.branch('s_branch C_P2')
        else:
            D, M, vBd, KV = [200, 144, 176, 160], [224, 228], 216, 200
            vEf = 248
            sKp, sKf = sO[0], sO[1]
            for q in range(8):
                if q == 0:
                    A('v_lshlrev_b32 %s, 2, %s' % (v(vBd + 4), v(vSt)))
                elif q == 4:
                    A('v_xor_b32 %s, %s, %s' % (v(vBd + 4), v(vBd + 4), v(vVr)))
                else:
                    A('v_add_u32 %s, %s, %s' % (v(vBd + q), v(vVr if q == 1 else vBd + q - 1), v(vSt)))
            stamp(A, 1, 5)
            sign_flip(vPh, 8, 253)
            stamp(A, 2, 5)
            scale_pack(ACC(0, 0), 128, vR[0])
            A(mfma(D[0], vPh, 128, False))
            scale_pack(ACC(0, 1), 136, vR[1])
            A(mfma(D[1], vPh + 4, 132, False))
            stamp(A, 8, 5)
            for r in range(2):
                pack(ACC(1, r), 160 + 8 * r)
                if r == 0:
                    A('ds_write_b128 %s, %s' % (v(vVw), v(160, 4)))
            A('v_xor_b32 %s, 2048, %s' % (v(253), v(vVw)))
            A(mfma(D[2], vPh, 136, False))
            stamp(A, 4, 5)
            A('s_lshl_b32 %s, %s, 3' % (s(sT0), s(sJ)))
            A('s_add_u32 %s, %s, %d' % (s(sT0), s(sT0), FL_EX))
            A('v_mov_b32 %s, %s' % (v(vEf), s(sT0)))
            A('s_lshl_b32 %s, %s, 1' % (s(sT0), s(sG)))
            A('s_add_u32 %s, %s, %s' % (s(sT0), s(sT0), s(sCh)))
            A('s_lshl_b32 %s, %s, 1' % (s(sT0), s(sT0)))
            A('s_add_u32 %s, %s, %s' % (s(sT0), s(sT0), s(sRg)))
            A('s_mul_i32 %s, %s, %d' % (s(sKp), s(sT0), 2 * KVS))
            A('s_add_u32 %s, %s, 0x%x' % (s(sKp), s(sKp), WS_KVP))
            A('s_add_u32 %s, %s, %d' % (s(sO[2]), s(sKp), KVS))
            A('s_lshl_b32 %s, %s, 5' % (s(sKf), s(sT0)))
            A('s_add_u32 %s, %s, %s' % (s(sKf), s(sKf), s(sRb)))
            A('s_lshl_b32 %s, %s, 2' % (s(sKf), s(sKf)))
            A('s_add_u32 %s, %s, 0x%x' % (s(sKf), s(sKf), WS_KF))
            if OPT['kfp'] == 5:
                flag('pf', sKf)
            stamp(A, 1, 1)
            stamp(A, 1, 4)
            stamp(A, 5, 5)
            def spread(base, ins, first, step):
                L = list(base)
                for n_, it in reversed(list(enumerate(ins))):
                    L[first + step * n_:first + step * n_] = it
                return L
            def pwr(r, h, e):
                x_ = 4096 * r + 64 * h + 16 * e
                tmp = 128 + 2 * h + e
                return (['v_xor_b32 %s, %d, %s' % (v(tmp), x_, v(vPw))] if x_ else []) + ['ds_write_b128 %s, %s' % (v(tmp if x_ else vPw), v(D[2 * r + h] + 4 * e, 4))]
            sm = [softmax(D[n], D[n], M[n & 1], vR[n >> 1]) for n in range(4)]
            vw = [['ds_write_b128 %s, %s offset:%d' % (v(253 if n >> 1 else vVw), v(160 + 4 * n, 4), 1024 * (n & 1))] for n in range(1, 4)]
            emit(A, spread(zipl(sm[0], sm[1]), vw + [[mfma(D[3], vPh + 4, 140, False)]], 2, 20))
            stamp(A, 2, 4)
            emit(A, spread(zipl(sm[2][:-16], sm[3][:-16]), [pwr(0, h, e) for e in range(2) for h in range(2)], 0, 18))
            stamp(A, 4, 4)
            def kfl(k):
                if OPT['kfp'] == k:
                    flag('pf', sKf)
            kfl(4)
            for n in (2, 3):
                emit(A, sm[n][-16:-12] + sm[n][-8:-4] + pwr(1, n & 1, 0) + sm[n][-12:-8] + sm[n][-4:] + pwr(1, n & 1, 1))
            stamp(A, 5, 4)
            A('ds_write_b32 %s, %s' % (v(vEf), v(vEf)))
            kfl(3)
            stamp(A, 2, 1)
            def kvf(q):
                L = [('ds_read_b64_tr_b16 %s, %s offset:%d' % (v(128 + 4 * q + 2 * hh, 2), v(vPr), 2048 * (q & 3) + 1024 * hh), 'q%d' % q) for hh in range(2)]
                return L + [('ds_read_b128 %s, %s' % (v(160 + 4 * q, 4), v(vBd + q if q else vVr)), 'q%d' % q)]
            for q in range(4):
                emit(A, kvf(q))
            A('v_xor_b32 %s, %d, %s' % (v(vEf), FL_EX ^ (FL_EX + 16), v(vEf)))
            A('v_xor_b32 %s, 8192, %s' % (v(vPr), v(vPr)))
            lds_wait(A, 'CEX', v(vEf), 1, 1, M[0])
            stamp(A, 6, 4)
            kfl(2)
            for q in range(8):
                A.wait_lg('q%d' % q)
                A(mfma(KV, 128 + 4 * q, 160 + 4 * q, q > 0))
                if q < 4:
                    emit(A, kvf(q + 4))
            A('s_lshl_b32 %s, %s, 13' % (s(sT0), s(sG)))
            A('s_add_u32 %s, %s, %s' % (s(sOut), s(sOut), s(sT0)))
            A('s_add_u32 %s, %s, %d' % (s(sOut), s(sOut), 32 * 4096))
            A('s_add_u32 %s, %s, 4096' % (s(sO[3]), s(sOut)))
            A('s_lshl_b32 %s, %s, 2' % (s(sT0), s(sCh)))
            A('s_add_u32 %s, %s, %s' % (s(sFl), s(sFl), s(sT0)))
            A('s_lshl_b32 %s, %s, 2' % (s(sT0), s(sJ)))
            A('s_add_u32 %s, %s, %d' % (s(sT0), s(sT0), FL_KV))
            A('v_mov_b32 %s, %s' % (v(vEf), s(sT0)))
            if OPT['fke']:
                A('ds_write_b32 %s, %s' % (v(vEf), v(vEf)))
            A('v_mul_f32 %s, 0x%x, %s' % (v(vR[0]), LOG2E, v(vR[0])))
            for c in range(2):
                for i in range(4):
                    A('v_cvt_pk_bf16_f32 %s, %s, %s' % (v(160 + 4 * c + i), v(KV + 8 * c + 2 * i), v(KV + 8 * c + 2 * i + 1)))
                A('buffer_store_dwordx4 %s, %s, %s, %s offen sc1' % (v(160 + 4 * c, 4), v(vPo), s(SWS, 4), s(sO[2] if c else sKp)), tag='kp')
            kfl(1)
            stamp(A, 8)
            stamp(A, 7, 4)
            def kflag():
                if not OPT['kfp']:
                    flag('kp', sKf)
                if not OPT['fke']:
                    A('ds_write_b32 %s, %s' % (v(vEf), v(vEf)))
            A('s_cmp_ge_u32 %s, 6' % s(sG))
            A.branch('s_cbranch_scc1 CX_NOH')
            vm1 = list(A.vm)
            hf = lambda: flag('pf', sFl, 32, vF2)
            if OPT['xsp']:
                pass_b(1, {OPT['f3']: kflag}, mish_fill([(ACC(0, 0), 0, sOut, 'h')], 224), True)
            else:
                pass_b(1, {OPT['f3']: kflag})
                mish(ACC(0, 0), 0, 16, 32, sOut, 'h', (OPT['hfp'] - 4, hf))
            mish(ACC(0, 1), 0, 16, 32, sO[3], 'h', (OPT['hfp'], hf), OPT['xmv'])
            stamp(A, 1, 2)
            if not OPT['hfp']:
                flag('h', sFl, 32, vF2)
            A.branch('s_branch C_P2')
            A.label('CX_NOH')
            A.vm = vm1
            kflag()
            A('s_lshl_b32 %s, %s, 2' % (s(sT0), s(sJ)))
            A('s_add_u32 %s, %s, %d' % (s(sT0), s(sT0), FL_PB))
            A('v_mov_b32 %s, %s' % (v(M[0]), s(sT0)))
            A('v_mov_b32 %s, 2' % v(M[0] + 1))
            A('ds_write_b32 %s, %s' % (v(M[0]), v(M[0] + 1)))
    A.label('C_P2')
    A.vm = []; A.lg = []
    if OPT['pr2'] or OPT['po'] or OPT['pr3'] or OPT['pex']:
        A('s_setprio %d' % OPT['pr3'])
    stamp(A, 5)
    vAcc, vO, vW = 0, 32, 96
    vA0, vFl, vFv, vT = 232, 236, 237, 248
    sFl, sAct = sO[0], sO[1]
    A('v_lshlrev_b32 %s, 2, %s' % (v(vFl), v(vLane)))
    A('v_and_b32 %s, 0x7c, %s' % (v(vFl), v(vFl)))
    A('s_lshl_b32 %s, %s, 3' % (s(sFl), s(sRb2)))
    A('s_add_u32 %s, %s, %s' % (s(sFl), s(sFl), s(sWave)))
    A('s_lshl_b32 %s, %s, 7' % (s(sFl), s(sFl)))
    A('s_add_u32 %s, %s, 0x%x' % (s(sFl), s(sFl), WS_F))
    xres(A, 240, 244)
    qload = 'buffer_load_dword %s, %s, %s, %s offen sc1' % (v(vFv), v(vFl), s(SWS, 4), s(sFl))
    A(qload, tag='fl')
    A('s_mul_i32 %s, %s, %d' % (s(sAct), s(sRb2), NU * 4096))
    A('s_lshl_b32 %s, %s, 5' % (s(sT0), s(sRg)))
    A('s_add_u32 %s, %s, %s' % (s(sT0), s(sT0), s(sCh)))
    A('s_lshl_b32 %s, %s, 10' % (s(sT0), s(sT0)))
    A('s_add_u32 %s, %s, %s' % (s(sAct), s(sAct), s(sT0)))
    A('s_add_u32 %s, %s, %d' % (s(sAct), s(sAct), 44 * 4096))
    tr_addr(A, vA0, vT, 4, None)
    A('s_lshl_b32 %s, %s, 13' % (s(sT2), s(sRg)))
    A('s_add_u32 %s, %s, 32768' % (s(sT2), s(sT2)))
    A('v_add_u32 %s, %s, %s' % (v(vA0), s(sT2), v(vA0)))
    A('v_xor_b32 %s, 64, %s' % (v(vA0 + 1), v(vA0)))
    A('v_add_u32 %s, %d, %s' % (v(vA0 + 2), L_W, v(vA0)))
    A('v_add_u32 %s, %d, %s' % (v(vA0 + 3), L_W, v(vA0 + 1)))
    A('s_lshl_b32 %s, %s, 12' % (s(sT2), s(sJ)))
    A('s_add_u32 %s, %s, 32768' % (s(sT2), s(sT2)))
    wr = reduce_write(A, vAcc, 224, sT2, 1)
    A('v_mov_b32 %s, %d' % (v(238), FL_P3))
    A('s_lshl_b32 %s, %s, 2' % (s(sT2), s(sJ)))
    A('s_add_u32 %s, %s, %d' % (s(sT2), s(sT2), FL_WR))
    A('v_mov_b32 %s, %s' % (v(239), s(sT2)))
    lds_wait(A, 'CWO', v(238), 4, 3, vT)
    for u in range(8):
        a_, p = u >> 2, u & 3
        for c in range(2):
            for nt in range(2):
                for hh in range(2):
                    A('ds_read_b64_tr_b16 %s, %s offset:%d' % (v(vW + 16 * u + 8 * c + 4 * nt + 2 * hh, 2), v(vA0 + 2 * (p >> 1) + nt), 16384 * (p & 1) + 4096 * a_ + 2048 * c + 1024 * hh))
    A('ds_write_b32 %s, %s' % (v(239), v(239)))
    A('v_xor_b32 %s, 4, %s' % (v(238), v(239)))
    A.wait_vm('fl')
    poll(A, 'CQ', qload, vFv, '0xf')
    if OPT['pr4'] != OPT['pr3']:
        A('s_setprio %d' % OPT['pr4'])
    stamp(A, 6)
    def oload(n):
        if n < 16:
            if n and n % 2 == 0:
                A('s_add_u32 %s, %s, 4096' % (s(sAct), s(sAct)))
            A('buffer_load_dwordx4 %s, %s, %s, %s offen offset:%d sc1' % (v(vO + 4 * n, 4), v(vL16), s(SWS, 4), s(sAct), 2048 * (n & 1)), tag='o%d' % n)
    for n in range(OPT['oi']):
        oload(n)
    stamp(A, 1, 7)
    lds_wait(A, 'CWR', v(238), 1, 1, vT)
    for u in range(8):
        for c in range(2):
            A.wait_vm('o%d' % (2 * u + c))
            if 2 * u + c in (0, 7, 15):
                stamp(A, {0: 2, 7: 3, 15: 8}[2 * u + c], 7)
            for nt in range(2):
                A(mfma(vAcc + 16 * nt, vW + 16 * u + 8 * c + 4 * nt, vO + 8 * u + 4 * c, u or c))
            oload(2 * u + c + OPT['oi'])
    emit(A, wr)
    if OPT['pr4']:
        A('s_setprio 0')
    stamp(A, 4, 7)

def gen_final(A):
    A.label('F_START')
    vOo, vX, t = 240, 244, 72
    srd(A, SO, 32, 2048 * 1024)
    if OPT['lnf']:
        A('s_mov_b32 %s, 0x%x' % (s(sO[0]), LN2))
        A('s_mov_b32 %s, 0x%x' % (s(sO[1]), LN2))
    A('s_and_b32 %s, %s, 3' % (s(sT0), s(sWave)))
    A('s_lshl_b32 %s, %s, 10' % (s(sT0), s(sT0)))
    A('s_lshr_b32 %s, %s, 2' % (s(sT1), s(sWave)))
    A('s_lshl_b32 %s, %s, 14' % (s(sT1), s(sT1)))
    A('s_add_u32 %s, %s, %s' % (s(sT0), s(sT0), s(sT1)))
    A('v_lshrrev_b32 %s, 3, %s' % (v(t), v(vLane)))
    A('v_bfe_u32 %s, %s, 2, 1' % (v(t + 1), v(vLane)))
    A('v_and_b32 %s, 3, %s' % (v(t + 2), v(vLane)))
    A('v_lshlrev_b32 %s, 1, %s' % (v(t + 2), v(t + 2)))
    A('v_xor_b32 %s, %s, %s' % (v(t + 2), v(t + 2), v(t)))
    A('v_xor_b32 %s, %s, %s' % (v(t + 2), v(t + 2), v(t + 1)))
    A('v_lshlrev_b32 %s, 4, %s' % (v(t + 2), v(t + 2)))
    A('v_lshl_add_u32 %s, %s, 7, %s' % (v(t + 2), v(t), v(t + 2)))
    A('v_add_u32 %s, %s, %s' % (v(t + 2), s(sT0), v(t + 2)))
    A('v_lshl_add_u32 %s, %s, 16, %s' % (v(t + 3), v(t + 1), v(t + 2)))
    A('v_xor_b32 %s, 16, %s' % (v(t + 4), v(t + 3)))
    A('s_mul_i32 %s, %s, 3' % (s(sT1), s(sT1)))
    A('s_lshr_b32 %s, %s, 2' % (s(sT1), s(sT1)))
    for hh in range(2):
        A('v_subrev_u32 %s, %s, %s' % (v(t + 5 + hh), s(sT1), v(t + 3 + hh)))
    A('s_waitcnt vmcnt(0)')
    X = 80
    for i in range(4):
        A('v_lshlrev_b32 %s, 16, %s' % (v(X + 2 * i), v(vX + i)))
        A('v_and_b32 %s, 0xffff0000, %s' % (v(X + 2 * i + 1), v(vX + i)))
    A('s_waitcnt lgkmcnt(0)')
    A.lg = []
    A('s_barrier')
    stamp(A, 7)
    R = 96
    for p in range(6):
        for hh in range(2):
            A('ds_read_b128 %s, %s offset:%d' % (v(R + 8 * p + 4 * hh, 4), v(t + 3 + hh + (2 if p >= 4 else 0)), 4096 * p if p < 4 else 32768 + 8192 * (p - 4)), tag='r%d' % (p >> 1))
    for g in range(3):
        A.wait_lg('r%d' % g)
        r = R + 16 * g
        for i in range(4):
            A('v_pk_add_f32 %s, %s, %s' % (v(r + 2 * i, 2), v(r + 2 * i, 2), v(r + 8 + 2 * i, 2)))
        for i in range(4):
            if OPT['lnf'] and g < 2:
                A('v_pk_fma_f32 %s, %s, %s, %s' % (v(X + 2 * i, 2), v(r + 2 * i, 2), s(sO[0], 2), v(X + 2 * i, 2)))
            else:
                A('v_pk_add_f32 %s, %s, %s' % (v(X + 2 * i, 2), v(X + 2 * i, 2), v(r + 2 * i, 2)))
    for i in range(4):
        A('v_cvt_pk_bf16_f32 %s, %s, %s' % (v(X + i), v(X + 2 * i), v(X + 2 * i + 1)))
    A('buffer_store_dwordx4 %s, %s, %s, %s offen%s' % (v(X, 4), v(vOo), s(SO, 4), s(6), {0: '', 1: ' sc1', 2: ' nt', 3: ' sc0 sc1'}[OPT['ost']]))
    if OPT['stamps']:
        A('s_waitcnt vmcnt(0)')
        A('%s s[14:15]' % ('s_memtime' if OPT['clk'] else 's_memrealtime'))
        A('s_waitcnt lgkmcnt(0)')
        A('s_lshl_b32 %s, s2, 3' % s(sT2))
        A('s_add_u32 %s, %s, %s' % (s(sT2), s(sT2), s(sWave)))
        A('s_lshl_b32 %s, %s, 6' % (s(sT2), s(sT2)))
        A('s_add_u32 %s, %s, 0x%x' % (s(sT2), s(sT2), WS_STAMP))
        A('v_mov_b32 %s, 0' % v(1))
        for i, r in enumerate(STREG + [14, sRt]):
            A('v_mov_b32 %s, %s' % (v(0), s(r)))
            A('buffer_store_dword %s, %s, %s, %s offen offset:%d' % (v(0), v(1), s(SWS, 4), s(sT2), 4 * i))
    A.label('L_END')
    A('s_endpgm')
    for x in TAIL:
        A.raw(x if x.endswith(':') else '    ' + x)

def main():
    body = gen()
    out = []
    out.append('; @launch grid=(256,1,1) block=(512,1,1) lds=163840')
    out.append('.amdgcn_target "amdgcn-amd-amdhsa--gfx950"')
    out.append('.text')
    out.append('.globl %s_kernel' % NAME)
    out.append(body)
    out.append('.section .rodata,"a"')
    out.append('.p2align 6')
    out.append('''.amdhsa_kernel %s_kernel
  .amdhsa_next_free_vgpr 256
  .amdhsa_next_free_sgpr 102
  .amdhsa_accum_offset 256
  .amdhsa_group_segment_fixed_size 0
  .amdhsa_kernarg_size 88
  .amdhsa_user_sgpr_count 2
  .amdhsa_user_sgpr_kernarg_segment_ptr 1
  .amdhsa_system_sgpr_workgroup_id_x 1
.end_amdhsa_kernel
''' % NAME)
    open(sys.argv[1], 'w').write('\n'.join(out))

main()
if OPT['tmo']:
    print(TIDS)
```

```python
import sys
from asmlib import Asm, v, a, s

NAME = 'parallel_sum__linear_kernel_hedgehog__dense_activation_mish__prompt'
OPT = dict(fine=0, stamps=0, prio=1, sched=0, slp=8, wt0=18, wd=8, wi=4, warm=1, xmap=1, xq=1, clk=0, ost=1, gi=5, f2=6, ps=7, win=4, f3=0, h2=4, xs=0, mv=0, rot=7, rm=0, kfp=3, hfp=0, h2p=0, ofp=0, rsl=2, pt0=-1, pd=4, nv=1, gp=0, wop=0, wopx=0, cont=1, fk=20, h2q=3, xsp=1, sst=1, oi=8, la=2, lb=3, lax=4, lbx=2, bq=0, h2w=1, xh=1, xmv=15, kpf=0, pr2=1, l8=0, l8x=0, fa=9, xs0=1, fke=0, tmo=0, ysm=0, ka=0, yd=0, yw=0, yf=1, pex=1, pey=1, wl=4, roll=2, rollx=2, pk=0, po=1, pr3=0, pr4=0, lnf=2, lnd=1, m2=1)
for arg in sys.argv[2:]:
    k, val = arg.split('=')
    OPT[k] = int(val, 0)

NU = 60
WS_ACT = 0x000000
WS_KVP = 0x800000
KVS = 9216
WS_KF = 0x8A0000
WS_STAT = 0xC80000
WS_F = 0xC90000
WS_CS = 0xCA0000
WS_STAMP = 0xD00000
WS_SIZE = 0x6000000 if OPT['tmo'] else 0xE00000
KVH = 1088
OOB = 0x7f000000
LOG2E = 0x3fb8aa3b
LN2 = 0x3f317218
BOUND = 0x8000

L_W = 65536
L_E = 131072
def XP(sg): return 16384 * sg
def WP(sg): return L_W + 16384 * sg
TA, TZ, TB, TR, TS, TN, TPH = L_E, L_E + 1536, L_E + 2048, L_E + 3072, L_E + 3584, L_E + 3840, L_E + 6144
KVL = L_E + 24576
P3B = [L_E + 8192, L_E + 16384, XP(0), XP(0) + 8192, WP(0), WP(0) + 8192, XP(1), XP(1) + 8192]
PH0, PH1, VB = XP(3), WP(3), XP(2)
FL_P3, FL_PB, FL_EX, FL_KV, FL_WR = TN + 16, TN + 32, TN + 48, TN + 80, TN + 96

SX, SA, SB, SWS, SD, SW2, SWO, STMP = 40, 44, 48, 56, 60, 64, 68, 72
SO = SA
sNonce, sWave, sRb, sCg, sTyp, sG, sF, sRb2, sCb = 3, 4, 5, 8, 9, 10, 11, 12, 13
sT0, sT1, sT2, sT3 = 14, 15, 76, 77
sO = [78, 79, 80, 81, 82, 83]
sJ = 84
sM = 85
sA, sB = 86, 87
sGq = 39
STREG = [88, 90, 92, 94, 96, 98, 100, 24, 74]

def srd(A, d, lo, size):
    A('s_mov_b32 %s, %s' % (s(d), s(lo)))
    A('s_mov_b32 %s, %s' % (s(d + 1), s(lo + 1)))
    A('s_mov_b32 %s, 0x%x' % (s(d + 2), size))
    A('s_mov_b32 %s, 0x20000' % s(d + 3))

def stamp(A, idx, fine=0):
    over = {0: (), 1: (1, 2), 2: (1, 2, 3, 8, 4), 3: (1, 2, 8, 4, 5, 6), 4: (1, 2, 8, 4, 5, 6, 7), 5: (1, 2, 8, 4, 5, 6, 7), 6: (1, 2, 3, 8), 7: (1, 2, 3, 8, 4, 5), 8: (1, 2, 6, 7), 9: (1, 2, 3, 8, 5, 6, 7)}[OPT['fine']]
    if fine == 0 and idx in over:
        return
    if fine and OPT['fine'] != fine:
        return
    if OPT['stamps']:
        A('%s %s' % ('s_memtime' if OPT['clk'] else 's_memrealtime', s(STREG[idx], 2)))

def emit(A, L):
    for it in L:
        if isinstance(it, tuple):
            A(it[0], tag=it[1])
        else:
            A(it)

class Keep:
    def __init__(self, A): self.A = A
    def __enter__(self): self.sv = list(self.A.vm); self.sl = list(self.A.lg)
    def __exit__(self, *e): self.A.vm = self.sv; self.A.lg = self.sl

TIDS = []
TAIL = []
def tmo(name, cnt, lim, vreg):
    if not OPT['tmo']:
        return []
    TIDS.append(name)
    TAIL.extend([name + '_T:', 's_lshl_b32 s88, s2, 3', 's_add_u32 s88, s88, s4', 's_lshl_b32 s88, s88, 5', 's_add_u32 s88, s88, %d' % (len(TIDS) - 1),
                 's_lshl_b32 s88, s88, 10', 's_add_u32 s88, s88, 0x2000000', 's_memrealtime s[90:91]',
                 'buffer_store_dword %s, %s, %s, s88 offen sc1' % (v(vreg), v(254), s(SWS, 4)), 's_waitcnt vmcnt(0) lgkmcnt(0)',
                 'v_mov_b32 %s, s90' % v(vreg), 'buffer_store_dword %s, %s, %s, s88 offen offset:4 sc1' % (v(vreg), v(254), s(SWS, 4)), 's_waitcnt vmcnt(0)',
                 'v_mov_b32 %s, s3' % v(vreg), 'buffer_store_dword %s, %s, %s, s88 offen offset:8 sc1' % (v(vreg), v(254), s(SWS, 4)), 's_waitcnt vmcnt(0)',
                 's_branch %s_U' % name])
    return ['s_cmp_eq_u32 %s, %d' % (s(cnt), lim), 's_cbranch_scc1 %s_T' % name, name + '_U:']

def poll(A, name, reload, vreg, mask, cmp_nonce=True, pre=()):
    A('s_mov_b32 %s, 0' % s(sT0))
    A.label(name + '_P')
    emit(A, pre)
    if cmp_nonce:
        A('v_cmp_ne_u32 vcc, %s, %s' % (s(sNonce), v(vreg)))
    else:
        A('v_cmp_eq_u32 vcc, 0, %s' % v(vreg))
    if mask is not None:
        A('s_and_b32 vcc_lo, vcc_lo, %s' % mask)
        A('s_cmp_eq_u32 vcc_lo, 0')
    else:
        A('s_cmp_eq_u64 vcc, 0')
    A.branch('s_cbranch_scc1 %s_G' % name)
    A('s_add_u32 %s, %s, 1' % (s(sT0), s(sT0)))
    A('s_cmp_gt_u32 %s, 0x%x' % (s(sT0), BOUND))
    A.branch('s_cbranch_scc1 %s_G' % name)
    for x in tmo(name, sT0, 3000, vreg):
        A.raw(x)
    if OPT['slp']:
        A('s_sleep %d' % OPT['slp'])
    with Keep(A):
        emit(A, [reload] if isinstance(reload, str) else reload)
    A('s_waitcnt vmcnt(0)')
    A.branch('s_branch %s_P' % name)
    A.label(name + '_G')

def lds_wait(A, name, addr, n, minval, t, extra=()):
    A('s_mov_b32 %s, 0' % s(sT0))
    A.label(name + '_P')
    with Keep(A):
        A('ds_read_b128 %s, %s' % (v(t, 4), addr) if n == 4 else 'ds_read_b32 %s, %s' % (v(t), addr))
        emit(A, extra)
    A('s_add_u32 %s, %s, 1' % (s(sT0), s(sT0)))
    A('s_waitcnt lgkmcnt(0)')
    A.lg = []
    if n == 4:
        A('v_min3_u32 %s, %s, %s, %s' % (v(t), v(t), v(t + 1), v(t + 2)))
        A('v_min_u32 %s, %s, %s' % (v(t), v(t), v(t + 3)))
    A('v_readfirstlane_b32 %s, %s' % (s(sT1), v(t)))
    for x in tmo(name, sT0, 40000, t):
        A.raw(x)
    A('s_cmp_gt_u32 %s, 0x%x' % (s(sT0), BOUND * 16))
    A('s_cselect_b32 %s, %d, %s' % (s(sT1), minval, s(sT1)))
    A('s_cmp_lt_u32 %s, %d' % (s(sT1), minval))
    A.branch('s_cbranch_scc1 %s_P' % name)

vLane, vL16 = 255, 254
sRt = 38

def vcheck(A, name, regs, t, reload, back=None):
    if back is None:
        A.raw(name + '_C:')
    r = list(regs)
    if len(r) > 1:
        first = True
        while r:
            if first:
                k = r[:3]; r = r[3:]
            else:
                k = [t] + r[:2]; r = r[2:]
            A(('v_max3_u32 %s, %s, %s, %s' if len(k) == 3 else 'v_max_u32 %s, %s, %s') % tuple([v(t)] + [v(x) for x in k]))
            first = False
        A('v_cmp_eq_u32 vcc, -1, %s' % v(t))
    else:
        A('v_cmp_eq_u32 vcc, -1, %s' % v(r[0]))
    A('s_cbranch_vccnz %s_R' % name)
    A.raw(name + '_K:')
    L = [name + '_R:', 's_add_u32 %s, %s, 1' % (s(sRt), s(sRt)), 's_cmp_gt_u32 %s, 0x%x' % (s(sRt), BOUND), 's_cbranch_scc1 %s_K' % name]
    L += tmo(name, sRt, 2000, t)
    if OPT['rsl']:
        L.append('s_sleep %d' % OPT['rsl'])
    L += ['s_nop 7', 's_nop 7']
    L += [x[0] if isinstance(x, tuple) else x for x in reload]
    L += ['s_waitcnt vmcnt(0)', 's_branch %s' % (back or name + '_C')]
    TAIL.extend(L)

def tr_addr(A, dst, t, rowhalf, sel):
    A('v_lshrrev_b32 %s, 5, %s' % (v(t), v(vLane)))
    A('v_bfe_u32 %s, %s, 2, 2' % (v(t + 1), v(vLane)))
    A('v_mul_u32_u24 %s, %d, %s' % (v(t), rowhalf, v(t)))
    A('v_add_lshl_u32 %s, %s, %s, 7' % (v(dst), v(t), v(t + 1)))
    A('v_bfe_u32 %s, %s, 3, 1' % (v(t), v(vLane)))
    if sel:
        A('v_xor_b32 %s, %s, %s' % (v(t), sel, v(t)))
    A('v_lshl_add_u32 %s, %s, 6, %s' % (v(dst), v(t), v(dst)))
    A('v_bfe_u32 %s, %s, 4, 1' % (v(t), v(vLane)))
    A('v_lshl_add_u32 %s, %s, 5, %s' % (v(dst), v(t), v(dst)))
    A('v_and_b32 %s, 3, %s' % (v(t), v(vLane)))
    A('v_lshl_add_u32 %s, %s, 3, %s' % (v(dst), v(t), v(dst)))

def selector(A, dst, t):
    A('v_lshrrev_b32 %s, 2, %s' % (v(t), v(vLane)))
    A('v_xor_b32 %s, %s, %s' % (v(t), v(t), v(vLane)))
    A('v_and_b32 %s, 4, %s' % (v(t), v(t)))
    A('v_cmp_eq_u32 vcc, 0, %s' % v(t))
    A('v_mov_b32 %s, 0x3f803f80' % v(t + 1))
    A('v_cndmask_b32 %s, 0, %s, vcc' % (v(dst), v(t + 1)))
    for i in range(1, 4):
        A('v_mov_b32 %s, %s' % (v(dst + i), v(dst)))

def onehot(A, dst, key, t, first=0):
    A('v_mov_b32 %s, 0x3f80' % v(t))
    A('v_mov_b32 %s, 0x3f800000' % v(t + 1))
    for r in range(4):
        A('v_cmp_eq_u32 vcc, %d, %s' % (first + 2 * r, v(key)))
        A('v_cndmask_b32 %s, 0, %s, vcc' % (v(dst + r), v(t)))
        A('v_cmp_eq_u32 vcc, %d, %s' % (first + 2 * r + 1, v(key)))
        A('v_cndmask_b32 %s, %s, %s, vcc' % (v(dst + r), v(dst + r), v(t + 1)))

def reduce_write(A, acc, t, base_s, nrt=2):
    A('v_and_b32 %s, 31, %s' % (v(t), v(vLane)))
    A('v_lshrrev_b32 %s, 5, %s' % (v(t + 1), v(vLane)))
    A('v_xor_b32 %s, %s, %s' % (v(t + 1), v(t + 1), v(vLane)))
    A('v_and_b32 %s, 7, %s' % (v(t + 1), v(t + 1)))
    A('v_lshlrev_b32 %s, 4, %s' % (v(t + 1), v(t + 1)))
    A('v_lshl_add_u32 %s, %s, 7, %s' % (v(t), v(t), v(t + 1)))
    A('v_add_u32 %s, %s, %s' % (v(t), s(base_s), v(t)))
    for q4 in range(1, 4):
        A('v_xor_b32 %s, %d, %s' % (v(t + q4), 32 * q4, v(t)))
    for q4 in range(4):
        A('v_xor_b32 %s, 16, %s' % (v(t + 4 + q4), v(t + q4)))
        A('v_add_u32 %s, %d, %s' % (v(t + 4 + q4), 65536, v(t + 4 + q4)))
    return [('ds_write_b128 %s, %s offset:%d' % (v(t + 4 * nt + q4), v(acc + 16 * (nrt * nt + rt) + 4 * q4, 4), rt * 16384))
            for nt in range(2) for rt in range(nrt) for q4 in range(4)]

def w2_voff(A, dst, t):
    A('v_lshrrev_b32 %s, 3, %s' % (v(t), v(vLane)))
    A('v_lshrrev_b32 %s, 2, %s' % (v(t + 1), v(vLane)))
    A('v_and_b32 %s, 4, %s' % (v(t + 1), v(t + 1)))
    A('v_and_b32 %s, 7, %s' % (v(t + 2), v(vLane)))
    A('v_xor_b32 %s, %s, %s' % (v(t + 1), v(t + 1), v(t + 2)))
    A('v_lshlrev_b32 %s, 4, %s' % (v(t + 1), v(t + 1)))
    A('s_lshl_b32 %s, %s, 7' % (s(sT0), s(sCb)))
    A('v_lshl_add_u32 %s, %s, 10, %s' % (v(dst), v(t), v(t + 1)))
    A('v_add_u32 %s, %s, %s' % (v(dst), s(sT0), v(dst)))

def quad(vo, srdn, ldsbase, tag):
    L = []
    L.append('s_lshl_b32 m0, %s, 12' % s(sJ))
    if ldsbase:
        L.append('s_add_u32 m0, m0, %d' % ldsbase)
    for i in range(4):
        if i:
            L.append('s_add_u32 %s, %s, %d' % (s(sO[i]), s(sO[0]), 7168 * i))
        L.append(('buffer_load_dwordx4 %s, %s, %s offen offset:%d lds' % (v(vo[i & 1]), s(srdn, 4), s(sO[i]), 1024 * i), tag))
    return L

def xres(A, vOo, vX):
    A('v_lshrrev_b32 %s, 3, %s' % (v(vOo), v(vLane)))
    A('v_and_b32 %s, 7, %s' % (v(vOo + 1), v(vLane)))
    A('v_lshlrev_b32 %s, 10, %s' % (v(vOo), v(vOo)))
    A('v_lshl_add_u32 %s, %s, 4, %s' % (v(vOo), v(vOo + 1), v(vOo)))
    A('s_lshl_b32 %s, %s, 3' % (s(6), s(sRb2)))
    A('s_add_u32 %s, %s, %s' % (s(6), s(6), s(sWave)))
    A('s_lshl_b32 %s, %s, 13' % (s(6), s(6)))
    A('s_lshl_b32 %s, %s, 7' % (s(7), s(sCb)))
    A('s_add_u32 %s, %s, %s' % (s(6), s(6), s(7)))
    A('buffer_load_dwordx4 %s, %s, %s, %s offen' % (v(vX, 4), v(vOo), s(SX, 4), s(6)), tag='xres')

def gen():
    A = Asm()
    vT = 236
    A.raw('.p2align 8')
    A.raw('.type %s_kernel,@function' % NAME)
    A.raw('%s_kernel:' % NAME)
    A('s_cmp_ge_u32 s2, 256')
    A.branch('s_cbranch_scc1 L_END')
    A('s_load_dwordx16 s[16:31], s[0:1], 0')
    A('s_load_dwordx4 s[32:35], s[0:1], 64')
    A('s_load_dwordx2 s[36:37], s[0:1], 80')
    A('s_memrealtime s[6:7]')
    A('v_and_b32 %s, 63, v0' % v(vLane))
    A('v_lshrrev_b32 %s, 6, v0' % v(vT))
    A('v_lshlrev_b32 %s, 4, %s' % (v(vL16), v(vLane)))
    A('v_readfirstlane_b32 %s, %s' % (s(sWave), v(vT)))
    A('s_and_b32 %s, s2, 7' % s(sT0))
    A('s_lshr_b32 %s, s2, 3' % s(sT1))
    A('s_and_b32 %s, %s, 1' % (s(sRb), s(sT0)))
    A('s_lshl_b32 %s, %s, 3' % (s(sRb), s(sRb)))
    A('s_and_b32 %s, %s, 7' % (s(sT2), s(sT1)))
    A('s_add_u32 %s, %s, %s' % (s(sRb), s(sRb), s(sT2)))
    A('s_lshr_b32 %s, %s, 1' % (s(sCg), s(sT0)))
    A('s_lshl_b32 %s, %s, 2' % (s(sCg), s(sCg)))
    A('s_lshr_b32 %s, %s, 3' % (s(sT2), s(sT1)))
    A('s_add_u32 %s, %s, %s' % (s(sCg), s(sCg), s(sT2)))
    A('s_and_b32 %s, %s, 1' % (s(sTyp), s(sCg)))
    A('s_lshr_b32 %s, %s, 1' % (s(sG), s(sCg)))
    A('s_xor_b32 %s, %s, %d' % (s(sGq), s(sG), 2 * OPT['xq']))
    A('s_cmp_eq_u32 %s, 1' % s(sTyp))
    A('s_cselect_b32 %s, %s, %s' % (s(sGq), s(sG), s(sGq)))
    A('s_lshl_b32 %s, %s, 1' % (s(sF), s(sCg)))
    A('s_add_u32 %s, %s, %s' % (s(sF), s(sF), s(sRb)))
    if OPT['rm']:
        A('s_and_b32 %s, %s, 3' % (s(sF), s(sCg)))
        A('s_lshl_b32 %s, %s, 1' % (s(sF), s(sF)))
        A('s_and_b32 %s, %s, 7' % (s(sT2), s(sRb)))
        A('s_add_u32 %s, %s, %s' % (s(sF), s(sF), s(sT2)))
        A('s_sub_u32 %s, %s, 7' % (s(sT2), s(sF)))
        A('s_cmp_ge_u32 %s, 7' % s(sF))
        A('s_cselect_b32 %s, %s, %s' % (s(sF), s(sT2), s(sF)))
        A('s_xor_b32 %s, %s, %s' % (s(38), s(sCg), s(sRb)))
        A('s_and_b32 %s, %s, %d' % (s(38), s(38), OPT['rm'] - 1))
    else:
        A('s_and_b32 %s, %s, %d' % (s(sF), s(sF), OPT['rot']))
    if OPT['xmap']:
        A('s_lshr_b32 %s, %s, 1' % (s(sRb2), s(sT0)))
        A('s_andn2_b32 %s, 1, %s' % (s(sT2), s(sT0)))
        A('s_lshl_b32 %s, %s, 2' % (s(sT2), s(sT2)))
        A('s_add_u32 %s, %s, %s' % (s(sRb2), s(sRb2), s(sT2)))
        A('s_lshl_b32 %s, %s, 2' % (s(sRb2), s(sRb2)))
    else:
        A('s_lshl_b32 %s, %s, 2' % (s(sRb2), s(sT0)))
    A('s_and_b32 %s, %s, 3' % (s(sT2), s(sT1)))
    A('s_add_u32 %s, %s, %s' % (s(sRb2), s(sRb2), s(sT2)))
    A('s_lshr_b32 %s, %s, 2' % (s(sCb), s(sT1)))
    if OPT['m2']:
        A('s_xor_b32 %s, %s, %s' % (s(sT2), s(sRb2), s(sCb)))
        A('s_and_b32 %s, %s, 4' % (s(sT2), s(sT2)))
        A('s_xor_b32 %s, %s, %s' % (s(sRb2), s(sRb2), s(sT2)))
        A('s_xor_b32 %s, %s, %s' % (s(sCb), s(sCb), s(sT2)))
    A('s_and_b32 %s, %s, 3' % (s(sJ), s(sWave)))
    if not OPT['rm']:
        A('s_mov_b32 %s, 0' % s(sRt))
    A('s_cmp_ge_u32 %s, 4' % s(sWave))
    A.branch('s_cbranch_scc1 C_START')
    gen_loader(A)
    gen_compute(A)
    gen_final(A)
    return A.text()

def gen_loader(A):
    vXo, vP1, vP2, vP3, v2o = 224, 226, 227, 228, 252
    vNon, vG, vTa, vFl = 230, 232, 234, 253
    vT = 236
    vRow = 0
    vCf = 32
    vCa = 56
    vSel = 68
    vGa = 72
    vB1 = 104
    sPA16, sPA8, sPB16, sPB8 = 52, 53, 54, 55
    sC1, sC2, sC3 = SWO, SWO + 1, SWO + 2
    sStat = 7
    A('s_lshl_b32 %s, %s, 7' % (s(sT0), s(sG)))
    A('s_lshl_b32 %s, %s, 8' % (s(sT1), s(sG)))
    A('s_add_u32 %s, %s, 1024' % (s(sC1), s(sT0)))
    A('s_add_u32 %s, %s, 2048' % (s(sC2), s(sT0)))
    A('s_add_u32 %s, %s, 128' % (s(sT3), s(sT1)))
    A('s_lshl_b32 %s, %s, 7' % (s(sT2), s(sGq)))
    A('s_cmp_eq_u32 %s, 1' % s(sTyp))
    A('s_cselect_b32 %s, %s, %s' % (s(sC3), s(sC2), s(sT2)))
    A('s_cselect_b32 %s, %s, %s' % (s(sC1), s(sC1), s(sT1)))
    A('s_cselect_b32 %s, %s, %s' % (s(sC2), s(sC2), s(sT3)))
    A('s_movk_i32 %s, 2752' % s(sT1))
    A('s_cselect_b32 %s, 3072, %s' % (s(sT2), s(sT1)))
    A('s_cselect_b32 %s, %s, 3072' % (s(sT3), s(sT1)))
    w2_voff(A, v2o, vT)
    A('v_mul_u32_u24 %s, %s, %s' % (v(vP2), s(sT2), v(vT)))
    A('v_add3_u32 %s, %s, %s, %s' % (v(vP1), v(vP2), v(vT + 1), s(sC1)))
    A('v_add3_u32 %s, %s, %s, %s' % (v(vP2), v(vP2), v(vT + 1), s(sC2)))
    A('v_add_u32 %s, %s, %s' % (v(vT + 3), s(sC3), v(vT + 1)))
    A('v_mul_u32_u24 %s, %s, %s' % (v(vP3), s(sT3), v(vT)))
    A('v_add_u32 %s, %s, %s' % (v(vP3), v(vP3), v(vT + 3)))
    A('v_cmp_gt_u32 vcc, 2752, %s' % v(vT + 3))
    A('v_mov_b32 %s, 0x%x' % (v(vT + 3), OOB))
    A('v_cndmask_b32 %s, %s, %s, vcc' % (v(vP3), v(vT + 3), v(vP3)))
    A('s_lshl_b32 %s, %s, 4' % (s(sPA16), s(sT2)))
    A('s_lshl_b32 %s, %s, 3' % (s(sPA8), s(sT2)))
    A('s_sub_u32 %s, %s, 1024' % (s(sPA8), s(sPA8)))
    A('s_lshl_b32 %s, %s, 4' % (s(sPB16), s(sT3)))
    A('s_lshl_b32 %s, %s, 3' % (s(sPB8), s(sT3)))
    A('s_sub_u32 %s, %s, 1024' % (s(sPB8), s(sPB8)))
    A('v_lshrrev_b32 %s, 4, %s' % (v(vT + 1), v(vLane)))
    A('v_xor_b32 %s, %s, %s' % (v(vT + 1), v(vT + 1), v(vT + 2)))
    A('s_lshl_b32 %s, %s, 2' % (s(sT0), s(sRb)))
    A('s_add_u32 %s, %s, %s' % (s(sT0), s(sT0), s(sJ)))
    A('s_lshl_b32 %s, %s, 15' % (s(sT0), s(sT0)))
    A('v_lshlrev_b32 %s, 10, %s' % (v(vXo), v(vT)))
    A('v_lshl_add_u32 %s, %s, 4, %s' % (v(vXo), v(vT + 1), v(vXo)))
    A('v_add_u32 %s, %s, %s' % (v(vXo), s(sT0), v(vXo)))
    A('v_xor_b32 %s, 64, %s' % (v(vXo + 1), v(vXo)))
    A('s_lshl_b32 %s, %s, 11' % (s(sM), s(sJ)))
    A('s_lshl_b32 %s, %s, 4' % (s(sA), s(sRb)))
    A('s_add_u32 %s, %s, %s' % (s(sA), s(sA), s(sCg)))
    A('s_lshl_b32 %s, %s, 2' % (s(sA), s(sA)))
    A('s_add_u32 %s, %s, %s' % (s(sA), s(sA), s(sJ)))
    A('s_lshl_b32 %s, %s, 11' % (s(sB), s(sA)))
    A('v_and_b32 %s, 32, %s' % (v(vT + 4), v(vLane)))
    A('v_lshl_add_u32 %s, %s, 4, %s' % (v(vT + 4), v(vT + 4), v(vL16)))
    A('v_mov_b32 %s, 0' % v(vT + 5))
    A('s_or_b32 %s, s2, %s' % (s(sT0), s(sWave)))
    A('s_waitcnt lgkmcnt(0)')
    srd(A, SD, 34, 256)
    A('s_cmp_lg_u32 %s, 0' % s(sT0))
    A.branch('s_cbranch_scc1 L_NONONCE')
    A('s_or_b32 s6, s6, 1')
    A('v_mov_b32 %s, s6' % v(vT))
    with Keep(A):
        A('buffer_store_dword %s, %s, %s, 0 offen offset:128 sc1' % (v(vT), v(vT + 5), s(SD, 4)))
    A.label('L_NONONCE')
    srd(A, SX, 16, 2048 * 1024)
    A('s_cmp_eq_u32 %s, 1' % s(sTyp))
    for d, x_, y_, p16 in ((SA, 18, 26, sPA16), (SB, 26, 18, sPB16)):
        A('s_cselect_b32 %s, %s, %s' % (s(d), s(x_), s(y_)))
        A('s_cselect_b32 %s, %s, %s' % (s(d + 1), s(x_ + 1), s(y_ + 1)))
        A('s_mov_b32 %s, 0x20000' % s(d + 3))
    A('s_lshl_b32 %s, %s, 5' % (s(SA + 2), s(sPA16)))
    A('s_lshl_b32 %s, %s, 5' % (s(SB + 2), s(sPB16)))
    stamp(A, 0)

    def chunk(st):
        if OPT['rm']:
            if st == 0:
                return ['s_mov_b32 %s, %s' % (s(sT3), s(38))]
            return ['s_add_u32 %s, %s, %d' % (s(sT3), s(sF), st),
                    's_sub_u32 %s, %s, 7' % (s(sO[0]), s(sT3)),
                    's_cmp_ge_u32 %s, 8' % s(sT3),
                    's_cselect_b32 %s, %s, %s' % (s(sT3), s(sO[0]), s(sT3)),
                    's_xor_b32 %s, %s, %s' % (s(sT3), s(sT3), s(38))]
        return ['s_add_u32 %s, %s, %d' % (s(sT3), s(sF), st),
                's_and_b32 %s, %s, 7' % (s(sT3), s(sT3))]
    def krow(st):
        return chunk(st) + [
                's_lshl_b32 %s, %s, 2' % (s(sT3), s(sT3)),
                's_add_u32 %s, %s, %s' % (s(sT3), s(sT3), s(sJ))]
    def grp_w(st):
        L = krow(st)
        L.append('s_mul_i32 %s, %s, %s' % (s(sO[0]), s(sT3), s(sPA16)))
        L.append('s_add_u32 m0, %s, %d' % (s(sM), WP(st & 3)))
        L.append('s_add_u32 %s, %s, %s' % (s(sO[1]), s(sO[0]), s(sPA8)))
        L.append(('buffer_load_dwordx4 %s, %s, %s offen lds' % (v(vP1), s(SA, 4), s(sO[0])), 's%d' % st))
        L.append(('buffer_load_dwordx4 %s, %s, %s offen offset:1024 lds' % (v(vP1), s(SA, 4), s(sO[1])), 's%d' % st))
        L.append('s_add_u32 m0, %s, %d' % (s(sM), WP(st & 3) + 8192))
        L.append(('buffer_load_dwordx4 %s, %s, %s offen lds' % (v(vP2), s(SA, 4), s(sO[0])), 's%d' % st))
        L.append(('buffer_load_dwordx4 %s, %s, %s offen offset:1024 lds' % (v(vP2), s(SA, 4), s(sO[1])), 's%d' % st))
        return L
    def grp_p3(st):
        tag = 's0' if st == 0 else 'p3'
        L = krow(st)
        L.append('s_mul_i32 %s, %s, %s' % (s(sO[0]), s(sT3), s(sPB16)))
        L.append('s_add_u32 m0, %s, %d' % (s(sM), P3B[st]))
        L.append('s_add_u32 %s, %s, %s' % (s(sO[1]), s(sO[0]), s(sPB8)))
        L.append(('buffer_load_dwordx4 %s, %s, %s offen lds' % (v(vP3), s(SB, 4), s(sO[0])), tag))
        L.append(('buffer_load_dwordx4 %s, %s, %s offen offset:1024 lds' % (v(vP3), s(SB, 4), s(sO[1])), tag))
        return L
    def grp_x(st):
        L = chunk(st)
        L.append('s_lshl_b32 %s, %s, 7' % (s(sO[0]), s(sT3)))
        return L + quad((vXo, vXo + 1), SX, XP(st & 3), 's%d' % st)
    UL = [(8, 0), (8, 1), (8, 4), (8, 5), (3, 32), (3, 33), (3, 34), (8, 2), (8, 3), (8, 6), (8, 7)]
    UL = UL[:4] + UL[7:] + UL[4:7]
    UPY = [WP(1), WP(2), XP(2), XP(3), WP(3), WP(1), WP(2), WP(1), XP(0), XP(1), WP(0)]
    UPX = [WP(1), WP(2), WP(1), WP(2), WP(1), WP(2), WP(1), WP(1), XP(0), XP(1), WP(0)]
    def grp_w2(i, UP=UPY):
        m, c = UL[i]
        L = ['s_mul_i32 %s, %s, %d' % (s(sO[0]), s(sJ), m * 32768)]
        if c:
            L.append('s_add_u32 %s, %s, %d' % (s(sO[0]), s(sO[0]), c * 32768))
        return L + quad((v2o, v2o), SW2, UP[i], 'u%d' % i)
    groups = []
    for st in range(8):
        groups += [('w', st), ('x', st)]
    SCHED = {0: [6, 2, 2, 2, 2, 2], 1: [4, 4, 2, 2, 2, 2], 2: [8, 0, 2, 2, 2, 2], 3: [5, 3, 2, 2, 2, 2]}[OPT['sched']]
    pos = [0]
    def issue(n, iv):
        for _ in range(n):
            kind, st = groups[pos[0]]
            assert st <= iv + 3 or st < 4, (st, iv)
            emit(A, grp_w(st) if kind == 'w' else grp_x(st))
            pos[0] += 1

    nload = 'buffer_load_dword %s, %s, %s, 0 offen offset:128 sc1' % (v(vNon), v(vT + 5), s(SD, 4))
    A('buffer_load_dwordx4 %s, %s, %s, %s offen' % (v(vRow, 4), v(vT + 4), s(SX, 4), s(sB)), tag='row')
    A('buffer_load_dwordx4 %s, %s, %s, %s offen offset:512' % (v(vRow + 4, 4), v(vT + 4), s(SX, 4), s(sB)), tag='row')
    issue(2, -1)
    emit(A, grp_p3(0))
    A(nload, tag='s0')
    issue(2, -1)
    A('buffer_load_dword %s, %s, %s, 0 offen offset:128 sc1' % (v(vNon + 1), v(vT + 5), s(SD, 4)), tag='non2')
    srd(A, SWS, 36, WS_SIZE)
    A('s_lshl_b32 %s, %s, 4' % (s(sStat), s(sA)))
    A('s_add_u32 %s, %s, 0x%x' % (s(sStat), s(sStat), WS_STAT))
    srd(A, SW2, 30, 1376 * 1024)

    def xsum32(r, t):
        for ctl in ('quad_perm:[1,0,3,2]', 'quad_perm:[2,3,0,1]', 'row_half_mirror', 'row_mirror'):
            A('v_add_f32_dpp %s, %s, %s %s row_mask:0xf bank_mask:0xf' % (v(r), v(r), v(r), ctl))
        A('v_mov_b32 %s, %s' % (v(t), v(r)))
        A('v_permlane16_swap_b32 %s, %s' % (v(r), v(t)))
        A('v_add_f32 %s, %s, %s' % (v(r), v(r), v(t)))
    U = vRow + 8
    tr_addr(A, vTa, vT, 8, s(sJ))
    A('s_lshr_b32 %s, %s, 3' % (s(sT0), s(sRb)))
    A('s_lshl_b32 %s, %s, 12' % (s(sT0), s(sT0)))
    A('s_add_u32 %s, %s, %d' % (s(sT0), s(sT0), L_W))
    A('v_add_u32 %s, %s, %s' % (v(vTa), s(sT0), v(vTa)))
    A('v_add_u32 %s, %d, %s' % (v(vTa + 1), P3B[0] - L_W, v(vTa)))
    selector(A, vSel, vT)
    A('v_lshlrev_b32 %s, 2, %s' % (v(vFl), v(vLane)))
    A('v_and_b32 %s, 0x7c, %s' % (v(vFl), v(vFl)))
    A.wait_vm('row')
    for j in range(8):
        A('v_lshlrev_b32 %s, 16, %s' % (v(U + 2 * j), v(vRow + j)))
        A('v_and_b32 %s, 0xffff0000, %s' % (v(U + 2 * j + 1), v(vRow + j)))
    for j in range(4):
        A('v_add_f32 %s, %s, %s' % (v(vRow + j), v(U + j), v(U + 4 + j)))
        A('v_add_f32 %s, %s, %s' % (v(vRow + 4 + j), v(U + 8 + j), v(U + 12 + j)))
    for st_ in (4, 2, 1):
        for j in range(st_):
            A('v_add_f32 %s, %s, %s' % (v(vRow + j), v(vRow + j), v(vRow + st_ + j)))
    xsum32(vRow, vRow + 1)
    A('v_mul_f32 %s, 0xbb000000, %s' % (v(vRow), v(vRow)))
    for j in range(16):
        A('v_add_f32 %s, %s, %s' % (v(U + j), v(U + j), v(vRow)))
    for j in range(4):
        A('v_mul_f32 %s, %s, %s' % (v(vRow + 4 + j), v(U + j), v(U + j)))
    for j in range(4, 16):
        A('v_fmac_f32 %s, %s, %s' % (v(vRow + 4 + (j & 3)), v(U + j), v(U + j)))
    r = vRow + 4
    A('v_add_f32 %s, %s, %s' % (v(r), v(r), v(r + 1)))
    A('v_add_f32 %s, %s, %s' % (v(r + 2), v(r + 2), v(r + 3)))
    A('v_add_f32 %s, %s, %s' % (v(r), v(r), v(r + 2)))
    xsum32(r, r + 1)
    A('v_mul_f32 %s, 0x3b000000, %s' % (v(r), v(r)))
    A('v_cvt_pk_bf16_f32 %s, %s, %s' % (v(r), v(r), v(r)))
    A('v_lshlrev_b32 %s, 16, %s' % (v(r), v(r)))
    A('v_add_f32 %s, 0x3727c5ac, %s' % (v(r), v(r)))
    A('v_cvt_pk_bf16_f32 %s, %s, %s' % (v(r), v(r), v(r)))
    A('v_lshlrev_b32 %s, 16, %s' % (v(r), v(r)))
    A('v_sqrt_f32 %s, %s' % (v(r), v(r)))
    A('v_cvt_pk_bf16_f32 %s, %s, %s' % (v(vG), v(vRow), v(r)))
    A('v_cmp_eq_u32 vcc, 0, %s' % v(vFl))
    A('v_lshrrev_b32 %s, 2, %s' % (v(vT), v(vLane)))
    A('v_mov_b32 %s, 0x%x' % (v(vT + 1), OOB))
    A('v_cndmask_b32 %s, %s, %s, vcc' % (v(vT + 4), v(vT + 1), v(vT)))
    issue(SCHED[0] - 4, -1)
    A.wait_vm('s0')
    A('s_barrier')
    stamp(A, 1)
    A('s_cmp_ge_u32 %s, 2' % s(sJ))
    A.branch('s_cbranch_scc1 L_NOCF')
    with Keep(A):
        for ks in range(2):
            for u in range(3):
                for hh in range(2):
                    A('ds_read_b64_tr_b16 %s, %s offset:%d' % (v(vCf + 12 * ks + 4 * u + 2 * hh, 2), v(vTa + (u >> 1)), 8192 * (u & 1) + 2048 * ks + 512 * hh))
    A.label('L_NOCF')
    A('v_readfirstlane_b32 %s, %s' % (s(sNonce), v(vNon)))
    A('s_cmp_lg_u32 %s, 0' % s(sNonce))
    A.branch('s_cbranch_scc1 LN_DONE')
    with Keep(A):
        A.wait_vm('non2')
        A('v_mov_b32 %s, %s' % (v(vNon), v(vNon + 1)))
        poll(A, 'LN', nload, vNon, None, cmp_nonce=False)
        A('v_readfirstlane_b32 %s, %s' % (s(sNonce), v(vNon)))
    A.label('LN_DONE')
    A('v_mov_b32 %s, %s' % (v(vG + 1), v(vNon)))
    A('buffer_store_dwordx2 %s, %s, %s, %s offen sc1' % (v(vG, 2), v(vT + 4), s(SWS, 4), s(sStat)), tag='pub')
    A('s_cmp_ge_u32 %s, 2' % s(sJ))
    A.branch('s_cbranch_scc1 LB_START')
    vm0 = list(A.vm)
    pos0 = pos[0]

    def bar(n):
        A('s_barrier')
        if n == 4:
            stamp(A, 2)
        if n in (5, 6, 7):
            stamp(A, {5: 1, 6: 2, 7: 8}[n], 3)
    GI = OPT['gi']
    vA0, vB0 = 244, 246
    vFw = 248
    vSdw = 251
    vSg, vZo, vKw, vKf = 192, 196, 197, 199
    def prep_kv():
        A('v_and_b32 %s, 15, %s' % (v(vT), v(vLane)))
        A('v_lshrrev_b32 %s, 4, %s' % (v(vT + 1), v(vLane)))
        A('v_lshlrev_b32 %s, 3, %s' % (v(vT + 2), v(vT + 1)))
        A('v_xor_b32 %s, %s, %s' % (v(vT + 2), v(vT + 2), v(vT)))
        A('v_and_b32 %s, 15, %s' % (v(vT + 2), v(vT + 2)))
        onehot(A, vSg, vT + 2, vT + 3)
        A('v_lshrrev_b32 %s, 3, %s' % (v(vT + 3), v(vT)))
        A('v_mul_u32_u24 %s, %d, %s' % (v(vZo), KVS - 512, v(vT + 3)))
        A('v_lshl_add_u32 %s, %s, 4, %s' % (v(vZo), v(vT + 1), v(vZo)))
        A('v_lshl_add_u32 %s, %s, 6, %s' % (v(vZo), v(vT), v(vZo)))
        A('v_lshrrev_b32 %s, 1, %s' % (v(vT + 2), v(vT + 1)))
        A('v_mul_u32_u24 %s, 272, %s' % (v(vT + 2), v(vT + 2)))
        A('v_and_b32 %s, 1, %s' % (v(vT + 1), v(vT + 1)))
        A('v_lshl_add_u32 %s, %s, 3, %s' % (v(vT + 2), v(vT + 1), v(vT + 2)))
        A('s_mul_i32 %s, %s, %d' % (s(sT0), s(sJ), KVH))
        A('s_add_u32 %s, %s, %d' % (s(sT0), s(sT0), KVL))
        A('v_add_u32 %s, %s, %s' % (v(vT + 2), s(sT0), v(vT + 2)))
        A('v_lshl_add_u32 %s, %s, 4, %s' % (v(vKw), v(vT), v(vT + 2)))
        A('v_mul_u32_u24 %s, 544, %s' % (v(vT + 3), v(vT + 3)))
        A('v_add_u32 %s, %s, %s' % (v(vKw + 1), v(vT + 2), v(vT + 3)))
        A('v_and_b32 %s, 0x33, %s' % (v(vT), v(vLane)))
        A('v_bfe_u32 %s, %s, 2, 1' % (v(vT + 1), v(vLane)))
        A('v_lshl_or_b32 %s, %s, 3, %s' % (v(vT), v(vT + 1), v(vT)))
        A('v_bfe_u32 %s, %s, 3, 1' % (v(vT + 1), v(vLane)))
        A('v_lshl_or_b32 %s, %s, 2, %s' % (v(vT), v(vT + 1), v(vT)))
        A('v_lshlrev_b32 %s, 1, %s' % (v(vSdw), v(vT)))
    def lwarm():
        srd(A, STMP, 22, 512 * 1024)
        A('s_lshr_b32 %s, s2, 3' % s(sT0))
        A('s_lshl_b32 %s, %s, 2' % (s(sT0), s(sT0)))
        A('s_add_u32 %s, %s, %s' % (s(sT0), s(sT0), s(sJ)))
        A('v_lshlrev_b32 %s, 7, %s' % (v(vT), v(vLane)))
        A('s_mul_i32 %s, %s, %d' % (s(sT1), s(sT0), 86 * 128))
        A('buffer_load_dword %s, %s, %s, %s offen' % (v(107), v(vT), s(SW2, 4), s(sT1)), tag='wm')
        A('v_cmp_gt_u32 vcc, 22, %s' % v(vLane))
        A('v_mov_b32 %s, 0x%x' % (v(vT + 3), OOB))
        A('v_cndmask_b32 %s, %s, %s, vcc' % (v(vT + 2), v(vT + 3), v(vT)))
        A('s_add_u32 %s, %s, 8192' % (s(sT1), s(sT1)))
        A('buffer_load_dword %s, %s, %s, %s offen' % (v(107), v(vT + 2), s(SW2, 4), s(sT1)), tag='wm')
        A('v_cmp_gt_u32 vcc, 32, %s' % v(vLane))
        A('v_cndmask_b32 %s, %s, %s, vcc' % (v(vT + 2), v(vT + 3), v(vT)))
        A('s_lshl_b32 %s, %s, 12' % (s(sT1), s(sT0)))
        A('buffer_load_dword %s, %s, %s, %s offen' % (v(107), v(vT + 2), s(STMP, 4), s(sT1)), tag='wm')
    def prep2():
        tr_addr(A, vA0, vT, 4, None)
        A('s_lshl_b32 %s, %s, 1' % (s(sT0), s(sM)))
        A('v_add_u32 %s, %s, %s' % (v(vA0), s(sT0), v(vA0)))
        A('v_xor_b32 %s, 64, %s' % (v(vA0 + 1), v(vA0)))
        A('v_add_u32 %s, %d, %s' % (v(vB0), L_W, v(vA0)))
        A('v_add_u32 %s, %d, %s' % (v(vB0 + 1), L_W, v(vA0 + 1)))
        A('s_lshl_b32 %s, %s, 2' % (s(sT0), s(sJ)))
        A('s_add_u32 %s, %s, %d' % (s(sT0), s(sT0), FL_P3))
        A('v_mov_b32 %s, %s' % (v(vFw), s(sT0)))
        A('v_mov_b32 %s, 1' % v(vFw + 1))
        srd(A, SWO, 22, 512 * 1024)
    for k in 'AB':
        if k == 'B':
            A.label('LB_START')
            A.vm = list(vm0); A.lg = []; pos[0] = pos0
        sCs = 6
        if k == 'A':
            A('s_lshl_b32 %s, %s, 1' % (s(sCs), s(sCg)))
            A('s_add_u32 %s, %s, %s' % (s(sCs), s(sCs), s(sJ)))
            A('s_lshl_b32 %s, %s, 13' % (s(sCs), s(sCs)))
            A('s_add_u32 %s, %s, 0x%x' % (s(sCs), s(sCs), WS_CS))
            A('s_lshl_b32 %s, %s, 9' % (s(sT1), s(sRb)))
            A('s_add_u32 %s, %s, %s' % (s(sT1), s(sT1), s(sCs)))
            A('v_and_b32 %s, 0x1ff, %s' % (v(vT), v(vL16)))
            A('s_waitcnt lgkmcnt(0)')
            for ks in range(2):
                for u in range(3):
                    A('v_mfma_f32_16x16x32_bf16 %s, %s, %s, %s' % (v(vCa + 4 * u, 4), v(vSel, 4), v(vCf + 12 * ks + 4 * u, 4), '0' if ks == 0 else v(vCa + 4 * u, 4)))
            A('v_mov_b32 %s, %s' % (v(vCa + 1), v(vCa + 4)))
            A('v_mov_b32 %s, %s' % (v(vCa + 2), v(vCa + 8)))
            A('v_mov_b32 %s, %s' % (v(vCa + 3), v(vNon)))
            A('buffer_store_dwordx4 %s, %s, %s, %s offen sc1' % (v(vCa, 4), v(vT), s(SWS, 4), s(sT1)), tag='css')
            A('s_add_u32 %s, %s, 4096' % (s(sStat), s(sCs)))
            gal = ['buffer_load_dwordx4 %s, %s, %s, %s offen offset:%d sc1' % (v(vGa + 4 * i, 4), v(vL16), s(SWS, 4), s(sCs if i < 4 else sStat), 1024 * (i & 3)) for i in range(8)]
        else:
            A('s_lshl_b32 %s, %s, 1' % (s(sStat), s(sRb)))
            A('s_add_u32 %s, %s, %s' % (s(sStat), s(sStat), s(sJ)))
            A('s_lshl_b32 %s, %s, 9' % (s(sStat), s(sStat)))
            A('s_add_u32 %s, %s, 0x%x' % (s(sStat), s(sStat), WS_STAT - 1024))
            A('v_lshlrev_b32 %s, 3, %s' % (v(vTa), v(vLane)))
            gal = ['buffer_load_dwordx2 %s, %s, %s, %s offen sc1' % (v(vGa, 2), v(vTa), s(SWS, 4), s(sStat))]
        def gather():
            emit(A, [(x, 'ga') for x in gal])
        def small():
            if k == 'A':
                srd(A, STMP, 28, 2752)
                A('s_lshl_b32 %s, %s, 6' % (s(sT0), s(sJ)))
                A('s_add_u32 %s, %s, %s' % (s(sC1), s(sC1), s(sT0)))
                A('s_add_u32 %s, %s, %s' % (s(sC2), s(sC2), s(sT0)))
                A('s_add_u32 %s, %s, %s' % (s(sC3), s(sC3), s(sT0)))
                A('s_cmp_eq_u32 %s, 1' % s(sTyp))
                A('s_cselect_b32 %s, 0x%x, %s' % (s(sC1), OOB, s(sC1)))
                A('s_cselect_b32 %s, 0x%x, %s' % (s(sC2), OOB, s(sC2)))
                A('s_cselect_b32 %s, %s, 0x%x' % (s(sC3), s(sC3), OOB))
                A('v_lshrrev_b32 %s, 1, %s' % (v(vT), v(vFl)))
                for u in range(3):
                    A('buffer_load_ushort %s, %s, %s, %s offen' % (v(vB1 + u), v(vT), s(STMP, 4), s(sC1 + u)), tag='b1')
            else:
                srd(A, STMP, 20, 16384)
                A('s_lshl_b32 %s, %s, 1' % (s(sT0), s(sGq)))
                A('s_add_u32 %s, %s, %s' % (s(sT0), s(sT0), s(sJ)))
                A('s_lshl_b32 %s, %s, 10' % (s(sT0), s(sT0)))
                A('s_sub_u32 %s, %s, 2048' % (s(sT0), s(sT0)))
                A('s_lshr_b32 %s, %s, 1' % (s(sT1), s(sM)))
                A('s_add_u32 m0, %s, %d' % (s(sT1), TPH - 2048))
                A('buffer_load_dwordx4 %s, %s, %s offen lds' % (v(vL16), s(STMP, 4), s(sT0)), tag='b1')
        def tables():
            A.wait_vm('ga')
            stamp(A, 4, 3)
            if k == 'B':
                poll(A, 'LST', gal, vGa + 1, None)
                A('v_and_b32 %s, 0xffff, %s' % (v(vT), v(vGa)))
                A('v_lshl_or_b32 %s, %s, 16, %s' % (v(vT), v(vGa), v(vT)))
                A('v_lshrrev_b32 %s, 16, %s' % (v(vT + 1), v(vGa)))
                A('v_and_b32 %s, 0xffff0000, %s' % (v(vGa), v(vGa)))
                A('v_rcp_f32 %s, %s' % (v(vT + 2), v(vGa)))
                A('s_lshr_b32 %s, %s, 2' % (s(sT0), s(sM)))
                A('s_add_u32 %s, %s, %d' % (s(sT0), s(sT0), TB - 1024))
                A('v_add_u32 %s, %s, %s' % (v(vT + 3), s(sT0), v(vTa)))
                A('ds_write_b64 %s, %s' % (v(vT + 3), v(vT, 2)))
                A('s_lshr_b32 %s, %s, 3' % (s(sT0), s(sM)))
                A('s_add_u32 %s, %s, %d' % (s(sT0), s(sT0), TR - 512))
                A('v_lshl_add_u32 %s, %s, 2, %s' % (v(vT + 3), v(vLane), s(sT0)))
                A('ds_write_b32 %s, %s' % (v(vT + 3), v(vT + 2)))
                A('s_lshr_b32 %s, %s, 4' % (s(sT0), s(sM)))
                A('s_add_u32 %s, %s, %d' % (s(sT0), s(sT0), TS - 256))
                A('v_add_u32 %s, %s, %s' % (v(vT + 3), s(sT0), v(vSdw)))
                A('ds_write_b16 %s, %s' % (v(vT + 3), v(vT + 1)))
                A('v_cmp_eq_u32 vcc, 0, %s' % v(vFl))
                A('v_cndmask_b32 %s, 0, %s, vcc' % (v(vT + 4), v(vNon)))
                A('v_add_u32 %s, %d, %s' % (v(vT + 6), TN, v(vFl)))
                A('ds_write_b32 %s, %s' % (v(vT + 6), v(vT + 4)))
            else:
                pre = ['v_min3_u32 %s, %s, %s, %s' % (v(vT), v(vGa + 3), v(vGa + 7), v(vGa + 11)),
                       'v_max3_u32 %s, %s, %s, %s' % (v(vT + 1), v(vGa + 3), v(vGa + 7), v(vGa + 11)),
                       'v_min3_u32 %s, %s, %s, %s' % (v(vT), v(vT), v(vGa + 15), v(vGa + 19)),
                       'v_max3_u32 %s, %s, %s, %s' % (v(vT + 1), v(vT + 1), v(vGa + 15), v(vGa + 19)),
                       'v_min3_u32 %s, %s, %s, %s' % (v(vT), v(vT), v(vGa + 23), v(vGa + 27)),
                       'v_max3_u32 %s, %s, %s, %s' % (v(vT + 1), v(vT + 1), v(vGa + 23), v(vGa + 27)),
                       'v_min_u32 %s, %s, %s' % (v(vT), v(vT), v(vGa + 31)),
                       'v_max_u32 %s, %s, %s' % (v(vT + 1), v(vT + 1), v(vGa + 31)),
                       'v_cmp_eq_u32 vcc, %s, %s' % (v(vT), v(vT + 1)),
                       'v_cndmask_b32 %s, 0, %s, vcc' % (v(vT), v(vT))]
                poll(A, 'LCS', gal, vT, None, pre=pre)
                for st_ in (16, 8, 4):
                    for r in range(st_):
                        if r & 3 != 3:
                            A('v_add_f32 %s, %s, %s' % (v(vGa + r), v(vGa + r), v(vGa + st_ + r)))
                for u in range(3):
                    A('v_mov_b32 %s, %s' % (v(vGa + 4 + u), v(vGa + u)))
                for u in range(3):
                    A('v_permlane32_swap_b32 %s, %s' % (v(vGa + u), v(vGa + 4 + u)))
                for u in range(3):
                    A('v_add_f32 %s, %s, %s' % (v(vGa + u), v(vGa + u), v(vGa + 4 + u)))
                A('s_mul_i32 %s, %s, 768' % (s(sT0), s(sJ)))
                A('s_add_u32 %s, %s, %d' % (s(sT0), s(sT0), TA))
                A('v_lshl_add_u32 %s, %s, 1, %s' % (v(vT), v(vFl), s(sT0)))
                for u in range(3):
                    p = vGa + 8 + 2 * u
                    A('v_cvt_pk_bf16_f32 %s, %s, %s' % (v(p), v(vGa + u), v(vGa + u)))
                    A('v_lshlrev_b32 %s, 16, %s' % (v(p), v(p)))
                    A('v_sub_f32 %s, %s, %s' % (v(p), v(vGa + u), v(p)))
                    A('v_cvt_pk_bf16_f32 %s, %s, %s' % (v(p), v(vGa + u), v(p)))
                    A('v_mov_b32 %s, %s' % (v(p + 1), v(vB1 + u)))
                    A('ds_write_b64 %s, %s offset:%d' % (v(vT), v(p, 2), 256 * u))
        PS = {0: {4: ('p1', ''), 5: ('p2 p3 p4 p5', ''), 6: ('p6 p7 u0', ''), 7: ('', 'u1')},
              1: {4: ('', 'p1'), 5: ('', 'p2 p3'), 6: ('', 'p4 p5 p6 p7'), 7: ('', 'u0')},
              2: {7: ('', 'p1 p2 p3 p4 p5 p6 p7')},
              3: {4: ('', 'p1'), 5: ('', 'p2 p3 p4 p5'), 6: ('', 'p6 p7 u0'), 7: ('u1', '')},
              4: {4: ('', 'p1'), 5: ('', 'p2 p3 p4 p5'), 6: ('', 'p6 p7'), 7: ('u0', '')},
              5: {6: ('', 'p1 p2 p3 p4'), 7: ('p5 p6 p7', '')},
              6: {4: ('', 'p1'), 5: ('', 'p2 p3 p4 p5'), 6: ('', 'p6 p7'), 7: ('u0', 'u1')},
              7: {8: ('p1 p2 p3 p4 p5 p6 p7', '')},
              8: {6: ('', 'p1'), 7: ('p2', ''), 8: ('p3 p4 p5 p6 p7', '')},
              9: {6: ('', 'p1 p2'), 7: ('', 'p3'), 8: ('p4 p5 p6 p7', '')},
              10: {5: ('', 'p1'), 6: ('', 'p2'), 7: ('p3', 'p4'), 8: ('p5 p6 p7', '')},
              11: {7: ('p1 p2', ''), 8: ('p3 p4 p5 p6 p7', '')}}[OPT['ps']]
        nw2 = 0
        def extra(spec):
            n = 0
            for it in spec.split():
                emit(A, grp_p3(int(it[1:])) if it[0] == 'p' else grp_w2(int(it[1:])))
                n += it[0] == 'u'
            return n
        for iv in range(8):
            pre_, post_ = PS.get(iv, ('', ''))
            if iv == GI:
                gather()
            if iv < 5:
                issue(SCHED[iv + 1], iv)
            if iv == 2:
                small()
            if iv == OPT['wi'] and OPT['warm'] == 2:
                lwarm()
            if iv == 3:
                prep_kv()
            if iv == 5:
                prep2()
            nw2 += extra(pre_)
            if iv == 7:
                tables()
                stamp(A, 5, 3)
                nw2 += extra(post_)
                stamp(A, 6, 3)
            if iv < 7:
                A.wait_vm('s%d' % (iv + 1))
                nw2 += extra(post_)
                bar(iv + 1)
        A('s_waitcnt lgkmcnt(0)')
        A.lg = []
        if k == 'A':
            vmA = list(A.vm)
            A.branch('s_branch L_JOIN')
    A.label('L_JOIN')
    vmB = list(A.vm)
    if vmA != vmB:
        assert vmA[-len(vmB):] == vmB or vmB[-len(vmA):] == vmA or not vmA or not vmB, (vmA, vmB)
        A.vm = list(vmA if len(vmA) > len(vmB) else vmB)
    A('s_barrier')
    stamp(A, 3)
    nw2 += extra(PS.get(8, ('', ''))[0])
    vAcc, vW, vR = 0, 64, 176
    def wread(slot, lds, tag):
        base, off = (vA0, lds) if lds < L_W else (vB0, lds - L_W)
        return [('ds_read_b64_tr_b16 %s, %s offset:%d' % (v(vW + 16 * slot + 8 * c + 4 * nt + 2 * hh, 2), v(base + nt), off + 2048 * c + 1024 * hh), tag)
                for c in range(2) for nt in range(2) for hh in range(2)]
    sFl, sAct = sA, sB
    vFv, vLa, vLt = 250, 251, 240
    fload = 'buffer_load_dword %s, %s, %s, %s offen sc1' % (v(vFv), v(vFl), s(SWS, 4), s(sFl))
    RB = [vR + 16 * ((i + 2) & 3) for i in range(11)]
    def alist(i):
        m, c = UL[i]
        L = ['s_add_u32 %s, %s, %d' % (s(sT1), s(sO[4] if m == 8 else sO[5]), c * 4096)]
        for q in range(4):
            L.append(('buffer_load_dwordx4 %s, %s, %s, %s offen offset:%d sc1' % (v(RB[i] + 4 * q, 4), v(vL16), s(SWS, 4), s(sT1), 1024 * q), 'a%d' % i))
        return L
    def aload(i):
        emit(A, alist(i))
    def lflag(val):
        A('v_mov_b32 %s, %d' % (v(vFw + 1), val))
        A('ds_write_b32 %s, %s' % (v(vFw), v(vFw + 1)))
    A('s_cmp_eq_u32 %s, 1' % s(sTyp))
    A.branch('s_cbranch_scc1 LX_START')
    vm8 = list(A.vm)
    for X in (0, 1):
        if X:
            A.label('LX_START')
            A.vm = list(vm8); A.lg = []
        XS = X and OPT['xs']
        UP = UPX if X and not XS else UPY
        WIN = XS if XS else 2 if X else OPT['win']
        nx = [nw2]
        TRS = ['u%d' % i for i in range(7)] + (['w2', 'u7', 'w0', 'w1', 'w3'] if X and not XS else ['w0', 'w1', 'w3', 'u7', 'w2'])
        def wo(i):
            L = ['s_lshl_b32 %s, %s, 17' % (s(sO[0]), s(sJ))]
            if i:
                L.append('s_add_u32 %s, %s, %d' % (s(sO[0]), s(sO[0]), i * 32768))
            return L + quad((v2o, v2o), SWO, 32768 + 16384 * (i & 1) + 65536 * (i >> 1), 'w%d' % i)
        cap = [11 if X else 11 - OPT['yd']]
        def w2_upto(n):
            while nx[0] <= min(n, cap[0]):
                k = TRS[nx[0]]
                emit(A, grp_w2(int(k[1:]), UP) if k[0] == 'u' else wo(int(k[1:])))
                if nx[0] == OPT['fa']:
                    A(fload, tag='fl')
                nx[0] += 1
        def gate(i, mask):
            A.wait_vm('fl')
            poll(A, 'LA%d%d' % (X, i), fload, vFv, mask)
        def unit(i):
            A.wait_vm('a%d' % i)
            if i in (0, 3):
                stamp(A, {0: 1, 3: 2}[i], 6)
            if i in (4, 7, 8, 10):
                stamp(A, {4: 2, 7: 3, 8: 4, 10: 5}[i], 7)
            if i >= 7:
                A.wait_lg('b%d' % i)
            wb = vW + 16 * (i % 7)
            for c in range(2):
                for nt in range(2):
                    for rt in range(2):
                        acc = vAcc + 16 * (2 * nt + rt)
                        A('v_mfma_f32_32x32x16_bf16 %s, %s, %s, %s' % (v(acc, 16), v(wb + 8 * c + 4 * nt, 4), v(RB[i] + 8 * c + 4 * rt, 4), '0' if (i == 0 and c == 0) else v(acc, 16)))
        w2_upto(OPT['xs0'] if XS else WIN - 1 - (0 if X else OPT['wl']))
        A('s_lshl_b32 %s, %s, 3' % (s(sFl), s(sRb2)))
        A('s_add_u32 %s, %s, %s' % (s(sFl), s(sFl), s(sJ)))
        A('s_lshl_b32 %s, %s, 7' % (s(sFl), s(sFl)))
        A('s_add_u32 %s, %s, 0x%x' % (s(sFl), s(sFl), WS_F))
        A('s_mul_i32 %s, %s, %d' % (s(sAct), s(sRb2), NU * 4096))
        A('s_lshl_b32 %s, %s, 15' % (s(sO[4]), s(sJ)))
        A('s_add_u32 %s, %s, %s' % (s(sO[4]), s(sO[4]), s(sAct)))
        A('s_mul_i32 %s, %s, %d' % (s(sO[5]), s(sJ), 3 * 4096))
        A('s_add_u32 %s, %s, %s' % (s(sO[5]), s(sO[5]), s(sAct)))
        A.wait_vm('p3')
        A('ds_write_b32 %s, %s' % (v(vFw), v(vFw + 1)))
        if not X:
            w2_upto(WIN - 1)
        for i in range(7):
            if XS and i == OPT['xs0'] + 1:
                A('v_mov_b32 %s, %d' % (v(vLa), FL_KV))
                lds_wait(A, 'LXK', v(vLa), 4, 1, vLt)
                w2_upto(i - 1 + WIN)
            A.wait_vm('u%d' % i)
            emit(A, wread(i, UP[i], 'm'))
            A.wait_lg(None)
            if not XS or i > OPT['xs0']:
                w2_upto(i + WIN)
        if X and not XS:
            A('v_mov_b32 %s, %d' % (v(vLa), FL_KV))
            lds_wait(A, 'LXK', v(vLa), 4, 1, vLt)
            w2_upto(11)
        for i in range(7, 12):
            if nx[0] <= cap[0]:
                A.wait_vm(TRS[i])
                w2_upto(i + WIN)
        stamp(A, 8)
        stamp(A, 3, 6)
        LA, LB, L8 = (OPT['lax'], OPT['lbx'], OPT['l8x']) if X else (OPT['la'], OPT['lb'], OPT['l8'])
        def late():
            A('v_mov_b32 %s, %d' % (v(vLa), FL_PB))
            lds_wait(A, 'LPB%d' % X, v(vLa), 4, 2, vLt)
            for i in range(8, 11):
                emit(A, grp_w2(i, UP))
        def lread():
            A.wait_vm('u10')
            for i in range(8, 11):
                emit(A, wread(i - 7, UP[i], 'b%d' % i))
        if not X:
            sKf, sK = (SB, [SB + 1, SB + 2, SB + 3, 6, 7]) if OPT['yd'] else (sO[0], [sO[1], sO[2], sO[3], 6, 7])
            A('s_lshl_b32 %s, %s, 2' % (s(sT0), s(sGq)))
            A('s_add_u32 %s, %s, %s' % (s(sT0), s(sT0), s(sJ)))
            A('s_lshl_b32 %s, %s, 7' % (s(sKf), s(sT0)))
            A('s_add_u32 %s, %s, 0x%x' % (s(sKf), s(sKf), WS_KF))
            kfl = 'buffer_load_dword %s, %s, %s, %s offen sc1' % (v(vKf), v(vFl), s(SWS, 4), s(sKf))
            A(kfl, tag='kf')
            A('s_mul_i32 %s, %s, %d' % (s(sT0), s(sT0), 2 * KVS))
            for i_, o_ in enumerate((0, KVS, 4096, KVS + 4096, 8192)):
                A('s_add_u32 %s, %s, 0x%x' % (s(sK[i_]), s(sT0), WS_KVP + o_))
        def gate_a():
            gate(0, '0xf')
            stamp(A, 4)
            for i in range(LA if X else 2):
                aload(i)
        if X or not OPT['ka']:
            gate_a()
        elif OPT['ka'] >= 2:
            A(fload, tag='fl')
        if not X:
            vK, vZ, vD = 0, 176, 180
            KL = [('buffer_load_dwordx4 %s, %s, %s, %s offen sc1' % (v(vZ, 4), v(vZo), s(SWS, 4), s(sK[4])), 'kz')]
            for i in range(16):
                c, q = i & 1, i >> 1
                KL.append(('buffer_load_dwordx4 %s, %s, %s, %s offen offset:%d sc1' % (v(vK + 4 * i, 4), v(vL16), s(SWS, 4), s(sK[c + 2 * (q >> 2)]), 1024 * (q & 3)), 'k%d' % i))
            pre = []
            if OPT['kpf'] == 1:
                emit(A, KL)
            if OPT['kpf'] >= 2:
                A('s_and_b32 %s, %s, 1' % (s(sT0), s(sRb)))
                A('s_mul_i32 %s, %s, %d' % (s(sT0), s(sT0), KVS))
                if OPT['kpf'] == 3:
                    A('s_lshl_b32 %s, %s, 11' % (s(sT1), s(sRb)))
                    A('s_and_b32 %s, %s, 4096' % (s(sT1), s(sT1)))
                    A('s_add_u32 %s, %s, %s' % (s(sT0), s(sT0), s(sT1)))
                    A('v_lshl_add_u32 %s, %s, 5, %s' % (v(vK), v(vFl), s(sT0)))
                else:
                    A('v_lshl_add_u32 %s, %s, 7, %s' % (v(vK), v(vLane), s(sT0)))
                pre = ['buffer_load_dword %s, %s, %s, %s offen sc1' % (v(vK + 1), v(vK), s(SWS, 4), s(sK[0]))]
                emit(A, pre)
            A.wait_vm('kf')
            poll(A, 'LK', [kfl] + pre + ([fload] if OPT['ka'] else []), vKf, '0xffff')
            stamp(A, 1, 2)
            emit(A, KL)
            if OPT['ka']:
                gate_a()
            if OPT['yw'] == 0:
                cap[0] = 11
                w2_upto(11)
            A.raw('VK_B:')
            A.wait_vm('kz')
            A('v_mfma_f32_16x16x32_bf16 %s, %s, %s, 0' % (v(vD + 8, 4), v(vSg, 4), v(vZ, 4)))
            zl = []
            for ctl in ('quad_perm:[1,0,3,2]', 'quad_perm:[2,3,0,1]', 'row_half_mirror'):
                for r in range(4):
                    zl.append('v_add_f32_dpp %s, %s, %s %s row_mask:0xf bank_mask:0xf' % (v(vD + 8 + r), v(vD + 8 + r), v(vD + 8 + r), ctl))
            zl.append('v_cvt_pk_bf16_f32 %s, %s, %s' % (v(vD + 8), v(vD + 8), v(vD + 9)))
            zl.append('v_cvt_pk_bf16_f32 %s, %s, %s' % (v(vD + 9), v(vD + 10), v(vD + 11)))
            zl.append('ds_write_b64 %s, %s offset:256' % (v(vKw + 1), v(vD + 8, 2)))
            for i in range(16):
                A.wait_vm('k%d' % i)
                d = vD + 4 * (i & 1)
                A('v_mfma_f32_16x16x32_bf16 %s, %s, %s, %s' % (v(d, 4), v(vSg, 4), v(vK + 4 * i, 4), '0' if i < 2 else v(d, 4)))
                if i & 1:
                    A('v_max3_u32 %s, %s, %s, %s' % (v(vKf), v(vZ if i == 1 else vKf), v(vK + 4 * i - 4), v(vK + 4 * i)))
                if i >= 4:
                    emit(A, zl[:2]); zl = zl[2:]
            vcheck(A, 'VK', [vKf], vKf, KL, back='VK_B')
            for c in range(2):
                d = vD + 4 * c
                A('v_cvt_pk_bf16_f32 %s, %s, %s' % (v(d), v(d), v(d + 1)))
                A('v_cvt_pk_bf16_f32 %s, %s, %s' % (v(d + 1), v(d + 2), v(d + 3)))
                A('ds_write_b64 %s, %s offset:%d' % (v(vKw), v(d, 2), 544 * c))
            A('ds_write_b32 %s, %s offset:%d' % (v(vFw), v(vFw + 1), FL_KV - FL_P3))
            stamp(A, 3, 2)
            cap[0] = 11
            w2_upto(11)
            if OPT['bq'] == 3:
                A('v_mov_b32 %s, %d' % (v(vLa), FL_EX))
                lds_wait(A, 'LYK', v(vLa), 4, 1, vLt)
            if OPT['roll']:
                A(fload, tag='fl')
            for i in range(2, 4 if OPT['roll'] else LA):
                aload(i)
            if OPT['bq'] == 4:
                A('v_mov_b32 %s, %d' % (v(vLa), FL_EX))
                lds_wait(A, 'LYK', v(vLa), 4, 1, vLt)
        if X and OPT['xh']:
            A('v_mov_b32 %s, %d' % (v(vLa), FL_PB))
            lds_wait(A, 'LXH', v(vLa), 4, 2, vLt)
        if OPT['roll']:
            assert not X or LA == 4
            seq = {1: 'U0 W U1 B a4 a5 F L U2 a6 U3 a7 U4 C a8 R U5 a9 U6 a10 x U7 U8 U9 U10',
                   2: 'L U0 W U1 B a4 a5 F U2 a6 U3 a7 R U4 C a8 U5 a9 U6 a10 x U7 U8 U9 U10',
                   3: 'U0 W U1 B a4 a5 U2 a6 F U3 a7 L U4 U5 C a8 a9 U6 a10 R x U7 U8 U9 U10',
                   4: 'U0 W B a4 U1 a5 F L U2 a6 U3 a7 U4 C a8 R U5 a9 U6 a10 x U7 U8 U9 U10'}[OPT['rollx'] if X else OPT['roll']]
            if X:
                A(fload, tag='fl')
            for it in seq.split():
                if it == 'U10' and OPT['lnf'] >= 2:
                    A.wait_vm('a10')
                    stamp(A, 5, 7)
                    A.wait_lg('b10')
                    for n in range(4 + OPT['lnd']):
                        if n < 4:
                            for c in range(2):
                                acc = vAcc + 16 * n
                                A('v_mfma_f32_32x32x16_bf16 %s, %s, %s, %s' % (v(acc, 16), v(vW + 48 + 8 * c + 4 * (n >> 1), 4), v(RB[10] + 8 * c + 4 * (n & 1), 4), v(acc, 16)))
                        if n == 3:
                            stamp(A, 6)
                        if n >= OPT['lnd']:
                            emit(A, wr[4 * (n - OPT['lnd']):4 * (n - OPT['lnd']) + 4])
                    A.branch('s_branch F_START')
                elif it[0] == 'U':
                    unit(int(it[1:]))
                    if it == 'U8' and OPT['lnf'] >= 2:
                        A('s_lshl_b32 %s, %s, 1' % (s(sT0), s(sM)))
                        wr = reduce_write(A, vAcc, 64, sT0)
                    if it == 'U3':
                        stamp(A, 5)
                elif it[0] == 'a':
                    aload(int(it[1:]))
                elif it == 'W':
                    A.wait_vm('w2')
                    lflag(3)
                    emit(A, wread(0, UP[7], 'b7'))
                elif it == 'B':
                    stamp(A, 2, 2)
                    gate(4, '0xff')
                    stamp(A, 8, 2)
                    stamp(A, 1, 7)
                elif it == 'C':
                    gate(8, '0x3f00')
                    stamp(A, 4, 2)
                    stamp(A, 8, 7)
                elif it == 'F':
                    A(fload, tag='fl')
                elif it == 'L':
                    late()
                elif it == 'R':
                    lread()
                elif it == 'x':
                    xres(A, 240, 244)
            if not X and OPT['lnf'] < 2:
                A.branch('s_branch L_RED')
            continue
        for i in range(4):
            unit(i)
            if i + LA < 4:
                aload(i + LA)
            if i == (OPT['yf'] if OPT['yd'] and not X else 0):
                A.wait_vm('w2')
                lflag(3)
                emit(A, wread(0, UP[7], 'b7'))
            if i == 2:
                A(fload, tag='fl')
        stamp(A, 5)
        if L8 == 0:
            late()
        if not X and OPT['bq'] == 2:
            A('v_mov_b32 %s, %d' % (v(vLa), FL_EX))
            lds_wait(A, 'LYK', v(vLa), 4, 1, vLt)
        stamp(A, 2, 2)
        gate(4, '0xff')
        stamp(A, 8, 2)
        stamp(A, 8, 6)
        stamp(A, 1, 7)
        for i in range(4, 4 + LB):
            aload(i)
        for i in range(4, 8):
            unit(i)
            if i + LB < 8:
                aload(i + LB)
            if i == 4 and L8 == 0:
                lread()
            if i == max(4, 8 - LB) and L8 == 1:
                late()
            if i == 6:
                A(fload, tag='fl')
        if L8 == 2:
            late()
            A(fload, tag='fl')
        gate(8, '0x3f00')
        stamp(A, 4, 2)
        stamp(A, 8, 7)
        for i in range(8, 11):
            aload(i)
        if L8:
            lread()
        xres(A, 240, 244)
        for i in range(8, 11):
            unit(i)
        if not X:
            A.branch('s_branch L_RED')
    if OPT['lnf'] >= 2:
        return
    A.label('L_RED')
    stamp(A, 6)
    A('s_lshl_b32 %s, %s, 1' % (s(sT0), s(sM)))
    wr = reduce_write(A, vAcc, 64, sT0)
    A('s_mov_b32 %s, 0x%x' % (s(sO[0]), LN2))
    A('s_mov_b32 %s, 0x%x' % (s(sO[1]), LN2))
    for n, w in enumerate(wr):
        r = vAcc + 4 * n
        if not OPT['lnf']:
            A('v_pk_mul_f32 %s, %s, %s' % (v(r, 2), v(r, 2), s(sO[0], 2)))
            A('v_pk_mul_f32 %s, %s, %s' % (v(r + 2, 2), v(r + 2, 2), s(sO[0], 2)))
        A(w)
    A.branch('s_branch F_START')

def gen_compute(A):
    A.label('C_START')
    A.vm = []; A.lg = []
    vX = 0
    def ACC(u, r): return 128 + 32 * u + 16 * r
    vWf, vXf = 192, 216
    vXo, vXt = 228, 232
    vPw, vVw, vPr, vVr, vSt, vPo, vF2 = 236, 237, 238, 239, 240, 241, 242
    vR0 = 236
    vWa, vTa, vTb, vTr, vPa, vFo, vWm, vNon = 244, 245, 246, 247, 248, 249, 250, 252
    vR = [232, 234]
    vT = 0
    sCh, sRg, sP2 = sA, sB, sM
    sL2, sHO = 52, 54
    A('s_and_b32 %s, %s, 1' % (s(sCh), s(sJ)))
    A('s_lshr_b32 %s, %s, 1' % (s(sRg), s(sJ)))
    A('s_lshl_b32 %s, %s, 1' % (s(sP2), s(sRb)))
    A('s_add_u32 %s, %s, %s' % (s(sP2), s(sP2), s(sRg)))
    A('s_mov_b32 %s, 0x%x' % (s(sL2), LOG2E))
    A('s_mov_b32 %s, 0x%x' % (s(sL2 + 1), LOG2E))
    A('s_mov_b32 %s, 0.5' % s(sHO))
    A('s_mov_b32 %s, 1.0' % s(sHO + 1))
    A('v_mov_b32 %s, 0x%x' % (v(vT), OOB))
    A('v_cmp_eq_u32 vcc, 0, %s' % v(vLane))
    A('v_cndmask_b32 %s, %s, 0, vcc' % (v(vFo), v(vT)))
    tr_addr(A, vWa, vT, 8, s(sCh))
    A('v_add_u32 %s, %d, %s' % (v(vWa), L_W, v(vWa)))
    A('v_lshrrev_b32 %s, 5, %s' % (v(vT), v(vLane)))
    A('v_and_b32 %s, 31, %s' % (v(vT + 1), v(vLane)))
    A('v_bfe_u32 %s, %s, 1, 3' % (v(vT + 2), v(vLane)))
    A('v_xor_b32 %s, %s, %s' % (v(vT + 2), v(vT + 2), v(vT)))
    A('v_lshlrev_b32 %s, 4, %s' % (v(vT + 2), v(vT + 2)))
    A('v_lshl_add_u32 %s, %s, 7, %s' % (v(vT + 2), v(vT + 1), v(vT + 2)))
    A('s_lshl_b32 %s, %s, 12' % (s(sT0), s(sJ)))
    A('v_add_u32 %s, %s, %s' % (v(vXo), s(sT0), v(vT + 2)))
    for tt in range(1, 4):
        A('v_xor_b32 %s, %d, %s' % (v(vXo + tt), 32 * tt, v(vXo)))
    for tt in range(4):
        A('v_xor_b32 %s, 0x1000, %s' % (v(vXt + tt), v(vXo + tt)))
    A('v_lshlrev_b32 %s, 3, %s' % (v(vT + 2), v(vT + 1)))
    A('v_lshl_add_u32 %s, %s, 2, %s' % (v(vT + 2), v(vT), v(vT + 2)))
    A('v_add_u32 %s, %d, %s' % (v(vTa), TA, v(vT + 2)))
    A('s_lshl_b32 %s, %s, 8' % (s(sT0), s(sJ)))
    A('s_add_u32 %s, %s, %d' % (s(sT0), s(sT0), TB))
    A('v_add_u32 %s, %s, %s' % (v(vTb), s(sT0), v(vT + 2)))
    A('s_lshl_b32 %s, %s, 7' % (s(sT0), s(sJ)))
    A('s_add_u32 %s, %s, %d' % (s(sT0), s(sT0), TR))
    A('v_lshl_add_u32 %s, %s, 2, %s' % (v(vTr), v(vT + 1), s(sT0)))
    A('v_bfe_u32 %s, %s, 2, 2' % (v(vT + 2), v(vLane)))
    A('v_lshl_add_u32 %s, %s, 2, %s' % (v(vT + 2), v(vT), v(vT + 2)))
    A('v_bfe_u32 %s, %s, 4, 1' % (v(vT + 3), v(vLane)))
    A('v_bfe_u32 %s, %s, 1, 1' % (v(vT + 4), v(vLane)))
    A('v_lshl_add_u32 %s, %s, 1, %s' % (v(vT + 4), v(vT + 3), v(vT + 4)))
    A('v_lshlrev_b32 %s, 3, %s' % (v(vT + 4), v(vT + 4)))
    A('v_lshl_add_u32 %s, %s, 5, %s' % (v(vPa), v(vT + 2), v(vT + 4)))
    A('s_and_b32 %s, %s, %s' % (s(sT0), s(sCh), s(sTyp)))
    A('s_lshl_b32 %s, %s, 10' % (s(sT0), s(sT0)))
    A('s_add_u32 %s, %s, %d' % (s(sT0), s(sT0), TPH))
    A('v_add_u32 %s, %s, %s' % (v(vPa), s(sT0), v(vPa)))
    A('v_and_b32 %s, 1, %s' % (v(vT + 2), v(vLane)))
    A('v_bfe_u32 %s, %s, 2, 1' % (v(vT + 3), v(vLane)))
    A('v_xor_b32 %s, %s, %s' % (v(vT + 4), v(vT + 3), v(vT)))
    A('v_lshl_or_b32 %s, %s, 1, %s' % (v(vT + 4), v(vT + 4), v(vT + 2)))
    A('v_bfe_u32 %s, %s, 1, 1' % (v(vT + 5), v(vLane)))
    A('v_lshl_or_b32 %s, %s, 2, %s' % (v(vT + 4), v(vT + 5), v(vT + 4)))
    A('v_lshlrev_b32 %s, 4, %s' % (v(vT + 4), v(vT + 4)))
    A('v_lshl_add_u32 %s, %s, 7, %s' % (v(vT + 4), v(vT + 1), v(vT + 4)))
    A('s_lshl_b32 %s, %s, 16' % (s(sT1), s(sCh)))
    A('s_add_u32 %s, %s, %d' % (s(sT1), s(sT1), PH0))
    A('s_lshl_b32 %s, %s, 12' % (s(sT0), s(sJ)))
    A('s_add_u32 %s, %s, %s' % (s(sT0), s(sT0), s(sT1)))
    A('v_add_u32 %s, %s, %s' % (v(vPw), s(sT0), v(vT + 4)))
    A('v_bfe_u32 %s, %s, 4, 1' % (v(vT + 4), v(vLane)))
    A('v_xor_b32 %s, %s, %s' % (v(vT + 4), v(vT + 4), v(vT + 3)))
    A('v_xor_b32 %s, %s, %s' % (v(vT + 2), v(vT + 2), v(vT)))
    A('v_lshl_or_b32 %s, %s, 1, %s' % (v(vT + 4), v(vT + 2), v(vT + 4)))
    A('v_bfe_u32 %s, %s, 3, 1' % (v(vT + 2), v(vLane)))
    A('v_xor_b32 %s, %s, %s' % (v(vT + 2), s(sRg), v(vT + 2)))
    A('v_lshl_or_b32 %s, %s, 2, %s' % (v(vT + 4), v(vT + 2), v(vT + 4)))
    A('v_lshl_or_b32 %s, %s, 1, %s' % (v(vT + 4), v(vT + 4), v(vT + 5)))
    A('v_lshlrev_b32 %s, 3, %s' % (v(vT + 4), v(vT + 4)))
    A('v_bfe_u32 %s, %s, 2, 2' % (v(vT + 2), v(vLane)))
    A('v_lshl_add_u32 %s, %s, 2, %s' % (v(vT + 2), v(vT), v(vT + 2)))
    A('v_lshl_add_u32 %s, %s, 7, %s' % (v(vT + 4), v(vT + 2), v(vT + 4)))
    A('s_lshl_b32 %s, %s, 13' % (s(sT0), s(sRg)))
    A('s_add_u32 %s, %s, %s' % (s(sT0), s(sT0), s(sT1)))
    A('v_add_u32 %s, %s, %s' % (v(vPr), s(sT0), v(vT + 4)))
    A('s_lshl_b32 %s, %s, 13' % (s(sT1), s(sCh)))
    A('s_add_u32 %s, %s, %d' % (s(sT1), s(sT1), VB))
    A('s_lshl_b32 %s, %s, 11' % (s(sT0), s(sJ)))
    A('s_add_u32 %s, %s, %s' % (s(sT0), s(sT0), s(sT1)))
    A('v_add_u32 %s, %s, %s' % (v(vVw), s(sT0), v(vL16)))
    A('s_mul_i32 %s, %s, %d' % (s(sT0), s(sRg), 4096 + 256))
    A('s_add_u32 %s, %s, %s' % (s(sT0), s(sT0), s(sT1)))
    A('v_add_u32 %s, %s, %s' % (v(vT + 2), s(sT0), v(vL16)))
    A('s_lshl_b32 %s, %s, 7' % (s(sT0), s(sRg)))
    A('s_add_u32 %s, %s, %d' % (s(sT0), s(sT0), TS))
    A('v_lshl_add_u32 %s, %s, 4, %s' % (v(vT + 3), v(vT), s(sT0)))
    A('v_cmp_gt_u32 vcc, 16, %s' % v(vT + 1))
    A('v_cndmask_b32 %s, %s, %s, vcc' % (v(vVr), v(vT + 3), v(vT + 2)))
    A('v_mov_b32 %s, 1024' % v(vT + 2))
    A('v_cndmask_b32 %s, 32, %s, vcc' % (v(vSt), v(vT + 2)))
    A('v_lshl_add_u32 %s, %s, 4, %s' % (v(vT + 2), v(vT), v(vT + 1)))
    A('s_lshl_b32 %s, %s, 9' % (s(sT0), s(sRb)))
    A('v_lshl_add_u32 %s, %s, 4, %s' % (v(vT + 2), v(vT + 2), s(sT0)))
    A('v_mov_b32 %s, 0x%x' % (v(vT + 4), OOB))
    A('v_cndmask_b32 %s, %s, %s, vcc' % (v(vPo), v(vT + 4), v(vT + 2)))
    A('s_lshl_b32 %s, %s, 5' % (s(sT0), s(sRb)))
    A('s_add_u32 %s, %s, 8192' % (s(sT0), s(sT0)))
    A('v_lshl_add_u32 %s, %s, 4, %s' % (v(vT + 2), v(vT), s(sT0)))
    A('v_cmp_eq_u32 vcc, 16, %s' % v(vT + 1))
    A('v_cndmask_b32 %s, %s, %s, vcc' % (v(vPo), v(vPo), v(vT + 2)))
    A('s_lshl_b32 %s, %s, 1' % (s(sT0), s(sG)))
    A('v_add_u32 %s, %s, %s' % (v(vT + 2), s(sT0), v(vLane)))
    A('v_mul_u32_u24 %s, 43, %s' % (v(vT + 3), v(vT + 2)))
    A('v_lshrrev_b32 %s, 7, %s' % (v(vT + 3), v(vT + 3)))
    A('v_mul_u32_u24 %s, %d, %s' % (v(vT + 3), 128 - 24, v(vT + 3)))
    A('v_lshl_add_u32 %s, %s, 3, %s' % (v(vT + 2), v(vT + 2), v(vT + 3)))
    A('v_cmp_gt_u32 vcc, 2, %s' % v(vLane))
    A('v_cndmask_b32 %s, %s, %s, vcc' % (v(vF2), v(vT + 4), v(vT + 2)))
    if OPT['warm'] == 1:
        A('v_lshrrev_b32 %s, 2, %s' % (v(vT + 2), v(vT + 1)))
        A('v_and_b32 %s, 3, %s' % (v(vT + 3), v(vLane)))
        A('v_lshlrev_b32 %s, 2, %s' % (v(vT + 3), v(vT + 3)))
        A('v_lshl_add_u32 %s, %s, 7, %s' % (v(vT + 2), v(vT + 2), v(vT + 3)))
        A('v_lshl_add_u32 %s, %s, 15, %s' % (v(vT + 2), v(vT), v(vT + 2)))
        A('s_lshr_b32 %s, s2, 3' % s(sT0))
        A('s_lshl_b32 %s, %s, 10' % (s(sT0), s(sT0)))
        if OPT['m2']:
            A('v_bfe_u32 %s, %s, 2, 2' % (v(vT + 2), v(vLane)))
            A('v_lshl_add_u32 %s, %s, 7, %s' % (v(vT + 2), v(vT + 2), v(vT + 3)))
            A('v_lshrrev_b32 %s, 4, %s' % (v(vT + 3), v(vLane)))
            A('v_lshl_add_u32 %s, %s, 15, %s' % (v(vT + 2), v(vT + 3), v(vT + 2)))
            A('s_and_b32 %s, %s, 4' % (s(sT1), s(sCb)))
            A('s_lshl_b32 %s, %s, 7' % (s(sT1), s(sT1)))
            A('s_add_u32 %s, %s, %s' % (s(sT0), s(sT0), s(sT1)))
        A('v_add_u32 %s, %s, %s' % (v(vWm), s(sT0), v(vT + 2)))
        A('s_lshl_b32 %s, %s, 18' % (s(sO[3]), s(sJ)))
        A('s_mul_i32 %s, %s, %d' % (s(sO[4]), s(sJ), 3 * 32768))
        A('s_lshl_b32 %s, %s, 17' % (s(sO[5]), s(sJ)))
    A('s_mul_i32 %s, %s, 768' % (s(sO[2]), s(sCh)))
    A('s_waitcnt lgkmcnt(0)')
    srd(A, SWS, 36, WS_SIZE)
    srd(A, SX, 16, 2048 * 1024)
    srd(A, SW2, 30, 1376 * 1024)
    srd(A, SWO, 22, 512 * 1024)
    stamp(A, 0)
    if OPT['prio']:
        A('s_setprio %d' % OPT['prio'])
    A('s_cmp_eq_u32 %s, 1' % s(sTyp))
    A.branch('s_cbranch_scc1 CX_START')

    def mfma(d, a_, b_, c):
        return 'v_mfma_f32_32x32x16_bf16 %s, %s, %s, %s' % (v(d, 16), v(a_, 4), v(b_, 4), v(d, 16) if c else '0')
    def frags(t):
        if t >= 32:
            return []
        st, k = divmod(t, 4)
        sl = st & 3
        tg = 'f%d' % t
        def wf(u):
            return [('ds_read_b64_tr_b16 %s, %s offset:%d' % (v(vWf + 8 * (t % 3) + 4 * u + 2 * hh, 2), v(vWa), 16384 * sl + 8192 * u + 2048 * k + 512 * hh), tg) for hh in range(2)]
        xf = [('ds_read_b128 %s, %s offset:%d' % (v(vX + 4 * t, 4), v(vXo + k), 16384 * sl), tg),
              ('ds_read_b128 %s, %s offset:%d' % (v(vXf + 4 * (t % 3), 4), v(vXt + k), 16384 * sl), tg)]
        return wf(0) + xf + wf(1)
    def softmax(D, P, M, rs=None, np_=0):
        L = []
        L.append('v_max3_f32 %s, %s, %s, %s' % (v(M), v(D), v(D + 1), v(D + 2)))
        L.append('v_max3_f32 %s, %s, %s, %s' % (v(M + 1), v(D + 3), v(D + 4), v(D + 5)))
        L.append('v_max3_f32 %s, %s, %s, %s' % (v(M + 2), v(D + 6), v(D + 7), v(D + 8)))
        L.append('v_max3_f32 %s, %s, %s, %s' % (v(M + 3), v(D + 9), v(D + 10), v(D + 11)))
        L.append('v_max3_f32 %s, %s, %s, %s' % (v(M), v(M), v(D + 12), v(D + 13)))
        L.append('v_max3_f32 %s, %s, %s, %s' % (v(M + 1), v(M + 1), v(D + 14), v(D + 15)))
        L.append('v_max3_f32 %s, %s, %s, %s' % (v(M), v(M), v(M + 1), v(M + 2)))
        L.append('v_max_f32 %s, %s, %s' % (v(M), v(M), v(M + 3)))
        L.append('v_mul_f32 %s, 0x%x, %s' % (v(M), LOG2E | 0x80000000, v(M)))
        for i in range(8):
            if np_ & 1:
                L += ['v_fma_f32 %s, %s, %s, %s' % (v(D + 2 * i + e), v(D + 2 * i + e), s(sL2), v(M)) for e in range(2)]
            else:
                L.append('v_pk_fma_f32 %s, %s, %s, %s op_sel_hi:[1,1,0]' % (v(D + 2 * i, 2), v(D + 2 * i, 2), s(sL2, 2), v(M, 2)))
        for i in range(16):
            L.append('v_exp_f32 %s, %s' % (v(D + i), v(D + i)))
        for d_, a_, b_ in ((M, D, D + 2), (M + 2, D + 4, D + 6), (M, M, D + 8), (M + 2, M + 2, D + 10), (M, M, D + 12), (M + 2, M + 2, D + 14), (M, M, M + 2)):
            if np_ & 2:
                L += ['v_add_f32 %s, %s, %s' % (v(d_ + e), v(a_ + e), v(b_ + e)) for e in range(2)]
            else:
                L.append('v_pk_add_f32 %s, %s, %s' % (v(d_, 2), v(a_, 2), v(b_, 2)))
        L.append('v_add_f32 %s, %s, %s' % (v(M), v(M), v(M + 1)))
        L.append('v_rcp_f32 %s, %s' % (v(M), v(M)))
        if rs is not None:
            L.append('v_mul_f32 %s, %s, %s' % (v(M), v(M), v(rs)))
        for i in range(8):
            if np_ & 4:
                L += ['v_mul_f32 %s, %s, %s' % (v(D + 2 * i + e), v(D + 2 * i + e), v(M)) for e in range(2)]
            else:
                L.append('v_pk_mul_f32 %s, %s, %s op_sel_hi:[1,0]' % (v(D + 2 * i, 2), v(D + 2 * i, 2), v(M, 2)))
        for i in range(8):
            L.append('v_cvt_pk_bf16_f32 %s, %s, %s' % (v(P + i), v(D + 2 * i), v(D + 2 * i + 1)))
        return L
    def pack(acc, P):
        for i in range(8):
            A('v_cvt_pk_bf16_f32 %s, %s, %s' % (v(P + i), v(acc + 2 * i), v(acc + 2 * i + 1)))
    def scale_pack(acc, P, rs):
        for i in range(8):
            A('v_pk_mul_f32 %s, %s, %s op_sel_hi:[1,0]' % (v(acc + 2 * i, 2), v(acc + 2 * i, 2), v(rs, 2)))
        pack(acc, P)
    def zipl(a_, b_):
        return [x for pr in zip(a_, b_) for x in pr]
    def mish(acc, r, E, V, so, tag, hook=(None, None), mv=None):
        mv = OPT['mv'] if mv is None else mv
        if hook[0] == 4: hook[1]()
        for i in range(8):
            if mv & 1:
                A('v_mul_f32 %s, %s, %s' % (v(acc + 2 * i), v(acc + 2 * i), v(vR[r])))
                A('v_mul_f32 %s, %s, %s' % (v(acc + 2 * i + 1), v(acc + 2 * i + 1), v(vR[r])))
            else:
                A('v_pk_mul_f32 %s, %s, %s op_sel_hi:[1,0]' % (v(acc + 2 * i, 2), v(acc + 2 * i, 2), v(vR[r], 2)))
        for i in range(16):
            A('v_exp_f32 %s, %s' % (v(E + i), v(acc + i)))
        for i in range(8):
            if mv & 2:
                A('v_fma_f32 %s, %s, 0.5, 1.0' % (v(V + 2 * i), v(E + 2 * i)))
                A('v_fma_f32 %s, %s, 0.5, 1.0' % (v(V + 2 * i + 1), v(E + 2 * i + 1)))
            else:
                A('v_pk_fma_f32 %s, %s, %s, %s op_sel:[0,0,1] op_sel_hi:[1,0,1]' % (v(V + 2 * i, 2), v(E + 2 * i, 2), s(sHO, 2), s(sHO, 2)))
        for i in range(8):
            if mv & 4:
                A('v_fma_f32 %s, %s, %s, 1.0' % (v(V + 2 * i), v(E + 2 * i), v(V + 2 * i)))
                A('v_fma_f32 %s, %s, %s, 1.0' % (v(V + 2 * i + 1), v(E + 2 * i + 1), v(V + 2 * i + 1)))
            else:
                A('v_pk_fma_f32 %s, %s, %s, %s op_sel:[0,0,1] op_sel_hi:[1,1,1]' % (v(V + 2 * i, 2), v(E + 2 * i, 2), v(V + 2 * i, 2), s(sHO, 2)))
        if hook[0] == 3: hook[1]()
        for i in range(16):
            A('v_rcp_f32 %s, %s' % (v(V + i), v(V + i)))
        if hook[0] == 2: hook[1]()
        for i in range(8):
            if mv & 8:
                A('v_fma_f32 %s, -%s, %s, %s' % (v(acc + 2 * i), v(acc + 2 * i), v(V + 2 * i), v(acc + 2 * i)))
                A('v_fma_f32 %s, -%s, %s, %s' % (v(acc + 2 * i + 1), v(acc + 2 * i + 1), v(V + 2 * i + 1), v(acc + 2 * i + 1)))
            else:
                A('v_pk_fma_f32 %s, %s, %s, %s neg_lo:[1,0,0] neg_hi:[1,0,0]' % (v(acc + 2 * i, 2), v(acc + 2 * i, 2), v(V + 2 * i, 2), v(acc + 2 * i, 2)))
        pack(acc, acc)
        A('buffer_store_dwordx4 %s, %s, %s, %s offen sc1' % (v(acc, 4), v(vL16), s(SWS, 4), s(so)), tag=tag)
        A('buffer_store_dwordx4 %s, %s, %s, %s offen offset:2048 sc1' % (v(acc + 4, 4), v(vL16), s(SWS, 4), s(so)), tag=tag)
        if hook[0] == 1: hook[1]()
    def flag(tag, so, off=0, vo=vFo):
        A.wait_vm(tag)
        A('buffer_store_dword %s, %s, %s, %s offen offset:%d sc1' % (v(vNon), v(vo), s(SWS, 4), s(so), off))
    def sign_flip(ph, n, t):
        A('v_bfe_u32 %s, %s, 2, 1' % (v(t), v(vLane)))
        A('v_mul_u32_u24 %s, 0x8000, %s' % (v(t), v(t)))
        A('v_lshl_or_b32 %s, %s, 16, %s' % (v(t), v(t), v(t)))
        A.wait_lg('ph')
        for i in range(n):
            A('v_xor_b32 %s, %s, %s' % (v(ph + i), v(t), v(ph + i)))

    def mish_fill(tiles, T):
        n = 16 * len(tiles)
        R = lambda i: tiles[i // 16][0] + i % 16
        E = lambda i: T + i % 3
        V = lambda i: T + 3 + i % 3
        mul = lambda i: 'v_mul_f32 %s, %s, %s' % (v(R(i)), v(R(i)), v(vR[tiles[i // 16][1]]))
        G = []; late = []
        for i in range(n + 2):
            a_ = [mul(0)] if i == 0 else []
            if i < n: a_.append('v_exp_f32 %s, %s' % (v(E(i)), v(R(i))))
            if 0 <= i - 1 < n: a_.append('v_fma_f32 %s, %s, %s, 1.0' % (v(V(i - 1)), v(E(i - 1)), v(V(i - 1))))
            if 0 <= i - 2 < n: a_.append('v_fma_f32 %s, -%s, %s, %s' % (v(R(i - 2)), v(R(i - 2)), v(V(i - 2)), v(R(i - 2))))
            b_ = []
            if 0 <= i - 1 < n: b_.append('v_rcp_f32 %s, %s' % (v(V(i - 1)), v(V(i - 1))))
            if i < n: b_.append('v_fma_f32 %s, %s, 0.5, 1.0' % (v(V(i)), v(E(i))))
            if i + 1 < n: b_.append(mul(i + 1))
            k = i - 2
            if k >= 0 and k & 1:
                acc, r, so, tag = tiles[k // 16]
                b_.append('v_cvt_pk_bf16_f32 %s, %s, %s' % (v(acc + (k % 16) // 2), v(R(k - 1)), v(R(k))))
                if k % 8 == 7:
                    st_ = ('buffer_store_dwordx4 %s, %s, %s, %s offen offset:%d sc1' % (v(acc + 4 * (k % 16 // 8), 4), v(vL16), s(SWS, 4), s(so), 2048 * (k % 16 // 8)), tag)
                    (b_ if OPT['sst'] else late).append(st_)
            G += [a_, b_]
        return G + [late]

    def pass_b(X, hooks, fill=(), split=False):
        vBa = 216
        vAp, vBp = (176, 184) if split else (0, 8)
        fill = list(fill)
        if OPT['prio']:
            A('s_setprio %d' % OPT['prio'])
        A('s_lshl_b32 %s, %s, 6' % (s(sT0), s(sCh)))
        A('v_xor_b32 %s, %s, %s' % (v(vBa), s(sT0), v(vWa)))
        A('v_add_u32 %s, %d, %s' % (v(vBa), L_E - L_W, v(vBa)))
        A('v_xor_b32 %s, 64, %s' % (v(vBa + 1), v(vBa)))
        A('v_mov_b32 %s, %d' % (v(vBa + 2), FL_P3))
        lds_wait(A, 'CP3%d' % X, v(vBa + 2), 4, 1, 220)
        stamp(A, 1, 8)
        win = [L_E, L_E]
        seq = [(uu, t) for uu in range(2) for t in range(32)] if split else [(uu, t) for t in range(32) for uu in range(2)]
        def fr(m):
            if m >= 64:
                return []
            uu, t = seq[m]
            st, k = divmod(t, 4)
            L = []
            w = P3B[st] & ~0xffff
            if w != win[uu]:
                L.append('v_add_u32 %s, %d, %s' % (v(vBa + uu), w - win[uu], v(vBa + uu)))
                win[uu] = w
            for hh in range(2):
                L.append(('ds_read_b64_tr_b16 %s, %s offset:%d' % (v(vWf + 4 * (m % 6) + 2 * hh, 2), v(vBa + uu), P3B[st] - w + 2048 * k + 512 * hh), 'g%d' % (m // 2)))
            return L
        for m in range(4):
            emit(A, fr(m))
        tb = [('ds_read_b32 %s, %s offset:%d' % (v(vAp + 4 * uu), v(vTa), 768 * uu + 512), 'tb') for uu in range(2)] + [('ds_read_b32 %s, %s' % (v(vBp), v(vTb)), 'tb')]
        zr = ['v_mov_b32 %s, 0' % v(vAp + i) for i in range(12) if i & 3]
        f0 = 34 if split else 0
        for m in range(64):
            uu, t = seq[m]
            nxt = fr(m + 4)
            z0 = 8 if split else 48
            if z0 <= m < z0 + 9:
                nxt.append(zr[m - z0])
            if m == (20 if split else 60):
                nxt += tb
            if m >= 61 and not X:
                nxt += [('ds_read_b64_tr_b16 %s, %s offset:%d' % (v(16 + 4 * h + 2 * hh, 2), v(vPa), 512 * h + 256 * hh), 'ph') for h in range(4) for hh in range(2)][3 * (m - 61):3 * (m - 60)]
            if m % 2 == 0:
                A.wait_lg('g%d' % (m // 2))
            A(mfma(ACC(0, uu), vWf + 4 * (m % 6), vX + 4 * t, t > 0))
            if split and m == 31:
                A(mfma(ACC(0, 0), vAp, vBp, True))
            if m in (15, 31, 63):
                stamp(A, {15: 2, 31: 6, 63: 7}[m], 8)
            emit(A, nxt)
            if m >= f0 and fill:
                emit(A, fill.pop(0))
            if m % 2 and m // 2 in hooks:
                hooks[m // 2]()
        A('s_lshl_b32 %s, %s, 2' % (s(sT0), s(sJ)))
        A('s_add_u32 %s, %s, %d' % (s(sT0), s(sT0), FL_PB))
        A('v_mov_b32 %s, %s' % (v(vBa), s(sT0)))
        A('v_mov_b32 %s, 2' % v(vBa + 1))
        A.wait_lg('tb')
        A('ds_write_b32 %s, %s' % (v(vBa), v(vBa + 1)))
        for uu in range(1 if split else 0, 2):
            A(mfma(ACC(0, uu), vAp + 4 * uu, vBp, True))
        for f in fill:
            emit(A, f)
        if OPT['prio']:
            A('s_setprio %d' % OPT['pr2'])
        stamp(A, 4)

    vAp, vBp, vPh = [208, 212], [224, 228], 192
    for X in (0, 1):
        A.vm = []; A.lg = []
        if X:
            A.label('CX_START')
        vOne = 8 if OPT['pt0'] < 0 else 124
        sPf = [SB, SB + 1, SB + 2, SB + 3]
        for i in range(4):
            A('v_mov_b32 %s, -1' % v(vOne + i))
        A('s_mul_i32 %s, %s, %d' % (s(sT1), s(sP2), NU * 4096))
        PF = []
        def pf(vo, so, off):
            PF.append(('buffer_store_dwordx4 %s, %s, %s, %s offen offset:%d sc1' % (v(vOne, 4), v(vo), s(SWS, 4), s(so), off), 'pf'))
        if X and OPT['kfp']:
            A('s_lshl_b32 %s, %s, 1' % (s(sT0), s(sG)))
            A('s_add_u32 %s, %s, %s' % (s(sT0), s(sT0), s(sCh)))
            A('s_lshl_b32 %s, %s, 1' % (s(sT0), s(sT0)))
            A('s_add_u32 %s, %s, %s' % (s(sT0), s(sT0), s(sRg)))
            A('s_mul_i32 %s, %s, %d' % (s(sT0), s(sT0), 2 * KVS))
            A('s_add_u32 %s, %s, 0x%x' % (s(sPf[0]), s(sT0), WS_KVP))
            A('s_add_u32 %s, %s, %d' % (s(sPf[1]), s(sPf[0]), KVS))
            pf(vPo, sPf[0], 0)
            pf(vPo, sPf[1], 0)
        if not X and OPT['h2p'] and not OPT['nv']:
            A('s_lshl_b32 %s, %s, 2' % (s(sT0), s(sG)))
            A('s_add_u32 %s, %s, %s' % (s(sT0), s(sT0), s(sCh)))
            A('s_add_u32 %s, %s, 2' % (s(sT0), s(sT0)))
            A('s_lshl_b32 %s, %s, 12' % (s(sT0), s(sT0)))
            A('s_add_u32 %s, %s, %s' % (s(sPf[0]), s(sT0), s(sT1)))
            for q in range(4):
                pf(vL16, sPf[0], 1024 * q)
        if OPT['hfp' if X else 'ofp'] and not OPT['nv']:
            A('s_lshl_b32 %s, %s, 3' % (s(sT0), s(sGq)))
            A('s_add_u32 %s, %s, %s' % (s(sT0), s(sT0), s(sCh)))
            A('s_add_u32 %s, %s, %d' % (s(sT0), s(sT0), 4 * (32 if X else 44)))
            A('s_lshl_b32 %s, %s, 10' % (s(sT0), s(sT0)))
            A('s_add_u32 %s, %s, %s' % (s(sPf[2]), s(sT0), s(sT1)))
            if X:
                A('s_cmp_ge_u32 %s, 6' % s(sG))
                A('s_cselect_b32 %s, 0x%x, %s' % (s(sPf[2]), OOB, s(sPf[2])))
            A('s_add_u32 %s, %s, 4096' % (s(sPf[3]), s(sPf[2])))
            for q in range(4):
                pf(vL16, sPf[2 + (q >> 1)], 2048 * (q & 1))
        if OPT['pt0'] < 0:
            emit(A, PF)
            PF = []
        A('s_barrier')
        stamp(A, 1)
        emit(A, frags(0))
        emit(A, frags(1))
        for t in range(32):
            st, k = divmod(t, 4)
            nxt = frags(t + 2)
            if t == 30:
                A('v_add_u32 %s, %s, %s' % (v(vAp[0]), s(sO[2]), v(vTa)))
                A('v_xor_b32 %s, 256, %s' % (v(vBp[1]), v(vTb)))
                A('v_xor_b32 %s, 128, %s' % (v(vR[1]), v(vTr)))
                A('v_mov_b32 %s, %d' % (v(vNon), TN))
                nxt = [('ds_read_b32 %s, %s offset:256' % (v(vAp[1]), v(vAp[0])), 'tb'),
                       ('ds_read_b32 %s, %s' % (v(vAp[0]), v(vAp[0])), 'tb'),
                       ('ds_read_b32 %s, %s' % (v(vBp[0]), v(vTb)), 'tb'),
                       ('ds_read_b32 %s, %s' % (v(vBp[1]), v(vBp[1])), 'tb'),
                       ('ds_read_b32 %s, %s' % (v(vR[0]), v(vTr)), 'tb'),
                       ('ds_read_b32 %s, %s' % (v(vR[1]), v(vR[1])), 'tb'),
                       ('ds_read_b32 %s, %s' % (v(vNon), v(vNon)), 'tb')]
            if t == 31:
                nxt = ['v_mov_b32 %s, 0' % v(b + i) for b in vAp + vBp for i in range(1, 4)]
                if X:
                    nxt = [('ds_read_b64_tr_b16 %s, %s offset:%d' % (v(vPh + 4 * h + 2 * hh, 2), v(vPa), 512 * h + 256 * hh), 'ph') for h in range(2) for hh in range(2)] + nxt
            A.wait_lg('f%d' % t)
            per = (len(nxt) + 2) // 3
            n = 0
            for u in range(2):
                for r in range(2):
                    w_, x_ = vWf + 8 * (t % 3) + 4 * u, (vX + 4 * t if r == 0 else vXf + 4 * (t % 3))
                    if X and u == 1:
                        w_, x_ = x_, w_
                    A(mfma(ACC(u, r), w_, x_, t > 0))
                    if k == 2 and n == 0:
                        A.wait_lg(None)
                        if st in (4, 5, 6, 7):
                            stamp(A, {4: 1, 5: 2, 6: 8, 7: 4}[st], 3)
                        A('s_barrier')
                        if st == 3:
                            stamp(A, 2)
                    WL = [(3, 0, SW2), (3, 4, SW2), (3, 2, SW2), (3, 6, SW2), (4, 34, SW2), (4, 32, SW2), (5, 0, SWO), (5, 2, SWO)]
                    if OPT['m2']:
                        WL = [(3, 0, SW2), (3, 4, SW2), (5, 0, SWO), (4, 32, SW2)]
                    wq = 4 * (t - OPT['wt0']) + n - 3
                    wk = []
                    if OPT['warm'] == 1 and wq >= 0:
                        wk = WL if (OPT['wd'] == 0 and wq == 0) else [WL[wq // OPT['wd']]] if (OPT['wd'] and wq % OPT['wd'] == 0 and wq // OPT['wd'] < len(WL)) else []
                    for base, c_, sr in wk:
                        A('s_add_u32 %s, %s, %d' % (s(sT0), s(sO[base]), c_ * 32768))
                        A('buffer_load_dword %s, %s, %s, %s offen' % (v(vWm + 1), v(vWm), s(sr, 4), s(sT0)), tag='wm')
                    pq = 4 * (t - OPT['pt0']) + n - 1
                    if PF and t < 29 and pq >= 0 and pq % OPT['pd'] == 0:
                        emit(A, [PF.pop(0)])
                    emit(A, nxt[per * n:per * n + per])
                    n += 1
        assert not PF
        stamp(A, 3)
        if OPT['prio']:
            A('s_setprio %d' % OPT['pex' if X else 'pey'])
        A.wait_lg('tb')
        for u in range(2):
            for r in range(2):
                p_, q_ = vAp[u], vBp[r]
                if X and u == 1:
                    p_, q_ = q_, p_
                A(mfma(ACC(u, r), p_, q_, True))
        if not X:
            A('v_mov_b32 %s, %s' % (v(vR0), v(vR[0])))
            for r in range(2):
                A('v_mul_f32 %s, 0x%x, %s' % (v(vR[r]), LOG2E, v(vR[r])))
        A('v_readfirstlane_b32 %s, %s' % (s(sNonce), v(vNon)))
        sOut, sFl = sO[4], sO[5]
        A('s_lshl_b32 %s, %s, 10' % (s(sFl), s(sP2)))
        A('s_add_u32 %s, %s, 0x%x' % (s(sFl), s(sFl), WS_F))
        A('s_mul_i32 %s, %s, %d' % (s(sOut), s(sP2), NU * 4096))
        A('s_lshl_b32 %s, %s, 10' % (s(sT0), s(sCh)))
        A('s_add_u32 %s, %s, %s' % (s(sOut), s(sOut), s(sT0)))
        if not X:
            A('s_lshl_b32 %s, %s, 2' % (s(sT0), s(sG)))
            A('s_add_u32 %s, %s, %s' % (s(sT0), s(sT0), s(sCh)))
            A('s_lshl_b32 %s, %s, 12' % (s(sT0), s(sT0)))
            A('s_add_u32 %s, %s, %s' % (s(sO[0]), s(sOut), s(sT0)))
            A('s_xor_b32 %s, %s, 1024' % (s(sO[1]), s(sO[0])))
            A('s_add_u32 %s, %s, 8192' % (s(SB), s(sO[0])))
            A('s_add_u32 %s, %s, 8192' % (s(SB + 1), s(sO[1])))
            sF2 = sT3
            A('s_lshr_b32 %s, %s, 1' % (s(sT0), s(sG)))
            A('s_lshl_b32 %s, %s, 5' % (s(sT0), s(sT0)))
            A('s_and_b32 %s, %s, 1' % (s(sT1), s(sG)))
            A('s_lshl_b32 %s, %s, 1' % (s(sT1), s(sT1)))
            A('s_add_u32 %s, %s, %s' % (s(sT0), s(sT0), s(sT1)))
            A('s_add_u32 %s, %s, %s' % (s(sT0), s(sT0), s(sCh)))
            A('s_lshl_b32 %s, %s, 2' % (s(sT0), s(sT0)))
            A('s_add_u32 %s, %s, %s' % (s(sF2), s(sFl), s(sT0)))
            A('s_lshr_b32 %s, %s, 2' % (s(sT0), s(sGq)))
            A('s_lshl_b32 %s, %s, 1' % (s(sT0), s(sT0)))
            A('s_add_u32 %s, %s, %s' % (s(sT0), s(sT0), s(sCh)))
            A('s_lshl_b32 %s, %s, 5' % (s(sT0), s(sT0)))
            A('s_and_b32 %s, %s, 3' % (s(sT1), s(sGq)))
            A('s_add_u32 %s, %s, %s' % (s(sT0), s(sT0), s(sT1)))
            A('s_lshl_b32 %s, %s, 2' % (s(sT0), s(sT0)))
            A('s_add_u32 %s, %s, %s' % (s(sFl), s(sFl), s(sT0)))
            A('s_lshl_b32 %s, %s, 13' % (s(sT0), s(sGq)))
            A('s_add_u32 %s, %s, %s' % (s(sOut), s(sOut), s(sT0)))
            A('s_add_u32 %s, %s, %d' % (s(sOut), s(sOut), 44 * 4096))
            E, V = 192, 208
            mish(ACC(0, 0), 0, E, V, sO[0], 'h1')
            mish(ACC(0, 1), 1, E, V, sO[1], 'h1')
            H2 = OPT['h2']
            stamp(A, 8)
            pass_b(0, {OPT['f2']: lambda: flag('h1', sF2)},
                   mish_fill([(ACC(1, r), r, SB + r, 'h2') for r in range(2)], 224) if H2 == 4 else ())
            ph, D, P, M = 16, [32, 48, 64, 80], [96, 104, 112, 120], [12, 224]
            sign_flip(ph, 16, M[0])
            for uu in range(2):
                scale_pack(ACC(0, uu), ACC(0, uu), vR0)
                for h in range(2):
                    A(mfma(D[2 * uu + h], ph + 8 * uu + 4 * h, ACC(0, uu) + 4 * h, False))
            vKa, KF = 228, 128
            A('v_and_b32 %s, 31, %s' % (v(vKa), v(vLane)))
            A('v_min_u32 %s, 16, %s' % (v(vKa), v(vKa)))
            A('v_lshrrev_b32 %s, 5, %s' % (v(vKa + 1), v(vLane)))
            A('v_mul_u32_u24 %s, 17, %s' % (v(vKa + 1), v(vKa + 1)))
            A('v_add_lshl_u32 %s, %s, %s, 4' % (v(vKa), v(vKa), v(vKa + 1)))
            A('v_add_u32 %s, %d, %s' % (v(vKa), KVL, v(vKa)))
            A('v_mov_b32 %s, %d' % (v(vKa + 1), FL_KV))
            A('s_lshl_b32 %s, %s, 2' % (s(sT0), s(sJ)))
            A('v_add_u32 %s, %s, %s' % (v(vKa + 2), s(sT0), v(vKa + 1)))
            A('s_add_u32 %s, %s, 4096' % (s(sO[0]), s(sOut)))
            stamp(A, 3, 2)
            stamp(A, 1, 9)
            emit(A, zipl(softmax(D[0], P[0], M[0], None, OPT['ysm']), softmax(D[1], P[1], M[1], None, OPT['ysm'])))
            stamp(A, 2, 9)
            if H2 == 4 and OPT['h2w'] == 1:
                flag('h2', sF2, 16)
            stamp(A, 3, 9)
            emit(A, zipl(softmax(D[2], P[2], M[0], None, OPT['ysm']), softmax(D[3], P[3], M[1], None, OPT['ysm'])))
            stamp(A, 8, 9)
            if H2 == 4 and OPT['h2w'] == 2:
                flag('h2', sF2, 16)
            stamp(A, 1, 2)
            h2f = lambda: flag('pf', sF2, 16)
            def h2m(r):
                mish(ACC(1, r), r, E, V, SB + r, 'h2', (OPT['h2p'] - 4 * (1 - r), h2f))
            if H2 in (1, 3):
                h2m(0)
            if H2 == 1:
                h2m(1)
            def ofl(k):
                if OPT['ofp'] == k:
                    flag('pf', sFl, 512)
                if H2 == 1 and not OPT['h2p'] and OPT['h2q'] == k:
                    flag('h2', sF2, 16)
            ofl(4)
            rd = ['ds_read_b128 %s, %s offset:%d' % (v(KF + 8 * n + 4 * c, 4), v(vKa), KVH * n + 544 * c) for n in range(4) for c in range(2)]
            if OPT['pk'] != OPT['pr2']:
                A('s_setprio %d' % OPT['pk'])
            lds_wait(A, 'CKV', v(vKa + 1), 4, 1, 220, rd)
            if OPT['pk'] != OPT['po']:
                A('s_setprio %d' % OPT['po'])
            stamp(A, 2, 2)
            stamp(A, 5, 9)
            def omf(n):
                for c in range(2):
                    A(mfma(D[n], KF + 8 * n + 4 * c, P[n] + 4 * c, c > 0))
            def ofin(n):
                d = D[n]
                A('v_add_f32 %s, 0x358637bd, %s' % (v(d + 8), v(d + 8)))
                A('v_rcp_f32 %s, %s' % (v(d + 8), v(d + 8)))
                for i in range(8):
                    A('v_mul_f32 %s, %s, %s' % (v(d + i), v(d + i), v(d + 8)))
                for i in range(4):
                    A('v_cvt_pk_bf16_f32 %s, %s, %s' % (v(d + i), v(d + 2 * i), v(d + 2 * i + 1)))
                A('buffer_store_dwordx4 %s, %s, %s, %s offen offset:%d sc1' % (v(d, 4), v(vL16), s(SWS, 4), s(sO[0] if n >> 1 else sOut), 2048 * (n & 1)), tag='o')
            omf(0); omf(1); ofl(2); ofin(0); stamp(A, 6, 9); omf(2); ofin(1); ofl(3); omf(3); ofin(2); ofin(3); ofl(1)
            if OPT['bq'] >= 2:
                A('v_subrev_u32 %s, %d, %s' % (v(vKa + 2), FL_KV - FL_EX, v(vKa + 2)))
                A('ds_write_b32 %s, %s' % (v(vKa + 2), v(vKa + 2)))
            stamp(A, 4, 2)
            stamp(A, 7, 9)
            if H2 == 2:
                h2m(0)
            if H2 == 3:
                h2m(1)
            if not OPT['ofp']:
                flag('o', sFl, 512)
            if H2 == 2:
                h2m(1)
            if H2 in (2, 3) and not OPT['h2p']:
                flag('h2', sF2, 16)
            A.branch('s_branch C_P2')
        else:
            D, M, vBd, KV = [200, 144, 176, 160], [224, 228], 216, 200
            vEf = 248
            sKp, sKf = sO[0], sO[1]
            for q in range(8):
                if q == 0:
                    A('v_lshlrev_b32 %s, 2, %s' % (v(vBd + 4), v(vSt)))
                elif q == 4:
                    A('v_xor_b32 %s, %s, %s' % (v(vBd + 4), v(vBd + 4), v(vVr)))
                else:
                    A('v_add_u32 %s, %s, %s' % (v(vBd + q), v(vVr if q == 1 else vBd + q - 1), v(vSt)))
            stamp(A, 1, 5)
            sign_flip(vPh, 8, 253)
            stamp(A, 2, 5)
            scale_pack(ACC(0, 0), 128, vR[0])
            A(mfma(D[0], vPh, 128, False))
            scale_pack(ACC(0, 1), 136, vR[1])
            A(mfma(D[1], vPh + 4, 132, False))
            stamp(A, 8, 5)
            for r in range(2):
                pack(ACC(1, r), 160 + 8 * r)
                if r == 0:
                    A('ds_write_b128 %s, %s' % (v(vVw), v(160, 4)))
            A('v_xor_b32 %s, 2048, %s' % (v(253), v(vVw)))
            A(mfma(D[2], vPh, 136, False))
            stamp(A, 4, 5)
            A('s_lshl_b32 %s, %s, 3' % (s(sT0), s(sJ)))
            A('s_add_u32 %s, %s, %d' % (s(sT0), s(sT0), FL_EX))
            A('v_mov_b32 %s, %s' % (v(vEf), s(sT0)))
            A('s_lshl_b32 %s, %s, 1' % (s(sT0), s(sG)))
            A('s_add_u32 %s, %s, %s' % (s(sT0), s(sT0), s(sCh)))
            A('s_lshl_b32 %s, %s, 1' % (s(sT0), s(sT0)))
            A('s_add_u32 %s, %s, %s' % (s(sT0), s(sT0), s(sRg)))
            A('s_mul_i32 %s, %s, %d' % (s(sKp), s(sT0), 2 * KVS))
            A('s_add_u32 %s, %s, 0x%x' % (s(sKp), s(sKp), WS_KVP))
            A('s_add_u32 %s, %s, %d' % (s(sO[2]), s(sKp), KVS))
            A('s_lshl_b32 %s, %s, 5' % (s(sKf), s(sT0)))
            A('s_add_u32 %s, %s, %s' % (s(sKf), s(sKf), s(sRb)))
            A('s_lshl_b32 %s, %s, 2' % (s(sKf), s(sKf)))
            A('s_add_u32 %s, %s, 0x%x' % (s(sKf), s(sKf), WS_KF))
            if OPT['kfp'] == 5:
                flag('pf', sKf)
            stamp(A, 1, 1)
            stamp(A, 1, 4)
            stamp(A, 5, 5)
            def spread(base, ins, first, step):
                L = list(base)
                for n_, it in reversed(list(enumerate(ins))):
                    L[first + step * n_:first + step * n_] = it
                return L
            def pwr(r, h, e):
                x_ = 4096 * r + 64 * h + 16 * e
                tmp = 128 + 2 * h + e
                return (['v_xor_b32 %s, %d, %s' % (v(tmp), x_, v(vPw))] if x_ else []) + ['ds_write_b128 %s, %s' % (v(tmp if x_ else vPw), v(D[2 * r + h] + 4 * e, 4))]
            sm = [softmax(D[n], D[n], M[n & 1], vR[n >> 1]) for n in range(4)]
            vw = [['ds_write_b128 %s, %s offset:%d' % (v(253 if n >> 1 else vVw), v(160 + 4 * n, 4), 1024 * (n & 1))] for n in range(1, 4)]
            emit(A, spread(zipl(sm[0], sm[1]), vw + [[mfma(D[3], vPh + 4, 140, False)]], 2, 20))
            stamp(A, 2, 4)
            emit(A, spread(zipl(sm[2][:-16], sm[3][:-16]), [pwr(0, h, e) for e in range(2) for h in range(2)], 0, 18))
            stamp(A, 4, 4)
            def kfl(k):
                if OPT['kfp'] == k:
                    flag('pf', sKf)
            kfl(4)
            for n in (2, 3):
                emit(A, sm[n][-16:-12] + sm[n][-8:-4] + pwr(1, n & 1, 0) + sm[n][-12:-8] + sm[n][-4:] + pwr(1, n & 1, 1))
            stamp(A, 5, 4)
            A('ds_write_b32 %s, %s' % (v(vEf), v(vEf)))
            kfl(3)
            stamp(A, 2, 1)
            def kvf(q):
                L = [('ds_read_b64_tr_b16 %s, %s offset:%d' % (v(128 + 4 * q + 2 * hh, 2), v(vPr), 2048 * (q & 3) + 1024 * hh), 'q%d' % q) for hh in range(2)]
                return L + [('ds_read_b128 %s, %s' % (v(160 + 4 * q, 4), v(vBd + q if q else vVr)), 'q%d' % q)]
            for q in range(4):
                emit(A, kvf(q))
            A('v_xor_b32 %s, %d, %s' % (v(vEf), FL_EX ^ (FL_EX + 16), v(vEf)))
            A('v_xor_b32 %s, 8192, %s' % (v(vPr), v(vPr)))
            lds_wait(A, 'CEX', v(vEf), 1, 1, M[0])
            stamp(A, 6, 4)
            kfl(2)
            for q in range(8):
                A.wait_lg('q%d' % q)
                A(mfma(KV, 128 + 4 * q, 160 + 4 * q, q > 0))
                if q < 4:
                    emit(A, kvf(q + 4))
            A('s_lshl_b32 %s, %s, 13' % (s(sT0), s(sG)))
            A('s_add_u32 %s, %s, %s' % (s(sOut), s(sOut), s(sT0)))
            A('s_add_u32 %s, %s, %d' % (s(sOut), s(sOut), 32 * 4096))
            A('s_add_u32 %s, %s, 4096' % (s(sO[3]), s(sOut)))
            A('s_lshl_b32 %s, %s, 2' % (s(sT0), s(sCh)))
            A('s_add_u32 %s, %s, %s' % (s(sFl), s(sFl), s(sT0)))
            A('s_lshl_b32 %s, %s, 2' % (s(sT0), s(sJ)))
            A('s_add_u32 %s, %s, %d' % (s(sT0), s(sT0), FL_KV))
            A('v_mov_b32 %s, %s' % (v(vEf), s(sT0)))
            if OPT['fke']:
                A('ds_write_b32 %s, %s' % (v(vEf), v(vEf)))
            A('v_mul_f32 %s, 0x%x, %s' % (v(vR[0]), LOG2E, v(vR[0])))
            for c in range(2):
                for i in range(4):
                    A('v_cvt_pk_bf16_f32 %s, %s, %s' % (v(160 + 4 * c + i), v(KV + 8 * c + 2 * i), v(KV + 8 * c + 2 * i + 1)))
                A('buffer_store_dwordx4 %s, %s, %s, %s offen sc1' % (v(160 + 4 * c, 4), v(vPo), s(SWS, 4), s(sO[2] if c else sKp)), tag='kp')
            kfl(1)
            stamp(A, 8)
            stamp(A, 7, 4)
            def kflag():
                if not OPT['kfp']:
                    flag('kp', sKf)
                if not OPT['fke']:
                    A('ds_write_b32 %s, %s' % (v(vEf), v(vEf)))
            A('s_cmp_ge_u32 %s, 6' % s(sG))
            A.branch('s_cbranch_scc1 CX_NOH')
            vm1 = list(A.vm)
            hf = lambda: flag('pf', sFl, 32, vF2)
            if OPT['xsp']:
                pass_b(1, {OPT['f3']: kflag}, mish_fill([(ACC(0, 0), 0, sOut, 'h')], 224), True)
            else:
                pass_b(1, {OPT['f3']: kflag})
                mish(ACC(0, 0), 0, 16, 32, sOut, 'h', (OPT['hfp'] - 4, hf))
            mish(ACC(0, 1), 0, 16, 32, sO[3], 'h', (OPT['hfp'], hf), OPT['xmv'])
            stamp(A, 1, 2)
            if not OPT['hfp']:
                flag('h', sFl, 32, vF2)
            A.branch('s_branch C_P2')
            A.label('CX_NOH')
            A.vm = vm1
            kflag()
            A('s_lshl_b32 %s, %s, 2' % (s(sT0), s(sJ)))
            A('s_add_u32 %s, %s, %d' % (s(sT0), s(sT0), FL_PB))
            A('v_mov_b32 %s, %s' % (v(M[0]), s(sT0)))
            A('v_mov_b32 %s, 2' % v(M[0] + 1))
            A('ds_write_b32 %s, %s' % (v(M[0]), v(M[0] + 1)))
    A.label('C_P2')
    A.vm = []; A.lg = []
    if OPT['pr2'] or OPT['po'] or OPT['pr3'] or OPT['pex']:
        A('s_setprio %d' % OPT['pr3'])
    stamp(A, 5)
    vAcc, vO, vW = 0, 32, 96
    vA0, vFl, vFv, vT = 232, 236, 237, 248
    sFl, sAct = sO[0], sO[1]
    A('v_lshlrev_b32 %s, 2, %s' % (v(vFl), v(vLane)))
    A('v_and_b32 %s, 0x7c, %s' % (v(vFl), v(vFl)))
    A('s_lshl_b32 %s, %s, 3' % (s(sFl), s(sRb2)))
    A('s_add_u32 %s, %s, %s' % (s(sFl), s(sFl), s(sWave)))
    A('s_lshl_b32 %s, %s, 7' % (s(sFl), s(sFl)))
    A('s_add_u32 %s, %s, 0x%x' % (s(sFl), s(sFl), WS_F))
    xres(A, 240, 244)
    qload = 'buffer_load_dword %s, %s, %s, %s offen sc1' % (v(vFv), v(vFl), s(SWS, 4), s(sFl))
    A(qload, tag='fl')
    A('s_mul_i32 %s, %s, %d' % (s(sAct), s(sRb2), NU * 4096))
    A('s_lshl_b32 %s, %s, 5' % (s(sT0), s(sRg)))
    A('s_add_u32 %s, %s, %s' % (s(sT0), s(sT0), s(sCh)))
    A('s_lshl_b32 %s, %s, 10' % (s(sT0), s(sT0)))
    A('s_add_u32 %s, %s, %s' % (s(sAct), s(sAct), s(sT0)))
    A('s_add_u32 %s, %s, %d' % (s(sAct), s(sAct), 44 * 4096))
    tr_addr(A, vA0, vT, 4, None)
    A('s_lshl_b32 %s, %s, 13' % (s(sT2), s(sRg)))
    A('s_add_u32 %s, %s, 32768' % (s(sT2), s(sT2)))
    A('v_add_u32 %s, %s, %s' % (v(vA0), s(sT2), v(vA0)))
    A('v_xor_b32 %s, 64, %s' % (v(vA0 + 1), v(vA0)))
    A('v_add_u32 %s, %d, %s' % (v(vA0 + 2), L_W, v(vA0)))
    A('v_add_u32 %s, %d, %s' % (v(vA0 + 3), L_W, v(vA0 + 1)))
    A('s_lshl_b32 %s, %s, 12' % (s(sT2), s(sJ)))
    A('s_add_u32 %s, %s, 32768' % (s(sT2), s(sT2)))
    wr = reduce_write(A, vAcc, 224, sT2, 1)
    A('v_mov_b32 %s, %d' % (v(238), FL_P3))
    A('s_lshl_b32 %s, %s, 2' % (s(sT2), s(sJ)))
    A('s_add_u32 %s, %s, %d' % (s(sT2), s(sT2), FL_WR))
    A('v_mov_b32 %s, %s' % (v(239), s(sT2)))
    lds_wait(A, 'CWO', v(238), 4, 3, vT)
    for u in range(8):
        a_, p = u >> 2, u & 3
        for c in range(2):
            for nt in range(2):
                for hh in range(2):
                    A('ds_read_b64_tr_b16 %s, %s offset:%d' % (v(vW + 16 * u + 8 * c + 4 * nt + 2 * hh, 2), v(vA0 + 2 * (p >> 1) + nt), 16384 * (p & 1) + 4096 * a_ + 2048 * c + 1024 * hh))
    A('ds_write_b32 %s, %s' % (v(239), v(239)))
    A('v_xor_b32 %s, 4, %s' % (v(238), v(239)))
    A.wait_vm('fl')
    poll(A, 'CQ', qload, vFv, '0xf')
    if OPT['pr4'] != OPT['pr3']:
        A('s_setprio %d' % OPT['pr4'])
    stamp(A, 6)
    def oload(n):
        if n < 16:
            if n and n % 2 == 0:
                A('s_add_u32 %s, %s, 4096' % (s(sAct), s(sAct)))
            A('buffer_load_dwordx4 %s, %s, %s, %s offen offset:%d sc1' % (v(vO + 4 * n, 4), v(vL16), s(SWS, 4), s(sAct), 2048 * (n & 1)), tag='o%d' % n)
    for n in range(OPT['oi']):
        oload(n)
    stamp(A, 1, 7)
    lds_wait(A, 'CWR', v(238), 1, 1, vT)
    for u in range(8):
        for c in range(2):
            A.wait_vm('o%d' % (2 * u + c))
            if 2 * u + c in (0, 7, 15):
                stamp(A, {0: 2, 7: 3, 15: 8}[2 * u + c], 7)
            for nt in range(2):
                A(mfma(vAcc + 16 * nt, vW + 16 * u + 8 * c + 4 * nt, vO + 8 * u + 4 * c, u or c))
            oload(2 * u + c + OPT['oi'])
    emit(A, wr)
    if OPT['pr4']:
        A('s_setprio 0')
    stamp(A, 4, 7)

def gen_final(A):
    A.label('F_START')
    vOo, vX, t = 240, 244, 72
    srd(A, SO, 32, 2048 * 1024)
    if OPT['lnf']:
        A('s_mov_b32 %s, 0x%x' % (s(sO[0]), LN2))
        A('s_mov_b32 %s, 0x%x' % (s(sO[1]), LN2))
    A('s_and_b32 %s, %s, 3' % (s(sT0), s(sWave)))
    A('s_lshl_b32 %s, %s, 10' % (s(sT0), s(sT0)))
    A('s_lshr_b32 %s, %s, 2' % (s(sT1), s(sWave)))
    A('s_lshl_b32 %s, %s, 14' % (s(sT1), s(sT1)))
    A('s_add_u32 %s, %s, %s' % (s(sT0), s(sT0), s(sT1)))
    A('v_lshrrev_b32 %s, 3, %s' % (v(t), v(vLane)))
    A('v_bfe_u32 %s, %s, 2, 1' % (v(t + 1), v(vLane)))
    A('v_and_b32 %s, 3, %s' % (v(t + 2), v(vLane)))
    A('v_lshlrev_b32 %s, 1, %s' % (v(t + 2), v(t + 2)))
    A('v_xor_b32 %s, %s, %s' % (v(t + 2), v(t + 2), v(t)))
    A('v_xor_b32 %s, %s, %s' % (v(t + 2), v(t + 2), v(t + 1)))
    A('v_lshlrev_b32 %s, 4, %s' % (v(t + 2), v(t + 2)))
    A('v_lshl_add_u32 %s, %s, 7, %s' % (v(t + 2), v(t), v(t + 2)))
    A('v_add_u32 %s, %s, %s' % (v(t + 2), s(sT0), v(t + 2)))
    A('v_lshl_add_u32 %s, %s, 16, %s' % (v(t + 3), v(t + 1), v(t + 2)))
    A('v_xor_b32 %s, 16, %s' % (v(t + 4), v(t + 3)))
    A('s_mul_i32 %s, %s, 3' % (s(sT1), s(sT1)))
    A('s_lshr_b32 %s, %s, 2' % (s(sT1), s(sT1)))
    for hh in range(2):
        A('v_subrev_u32 %s, %s, %s' % (v(t + 5 + hh), s(sT1), v(t + 3 + hh)))
    A('s_waitcnt vmcnt(0)')
    X = 80
    for i in range(4):
        A('v_lshlrev_b32 %s, 16, %s' % (v(X + 2 * i), v(vX + i)))
        A('v_and_b32 %s, 0xffff0000, %s' % (v(X + 2 * i + 1), v(vX + i)))
    A('s_waitcnt lgkmcnt(0)')
    A.lg = []
    A('s_barrier')
    stamp(A, 7)
    R = 96
    for p in range(6):
        for hh in range(2):
            A('ds_read_b128 %s, %s offset:%d' % (v(R + 8 * p + 4 * hh, 4), v(t + 3 + hh + (2 if p >= 4 else 0)), 4096 * p if p < 4 else 32768 + 8192 * (p - 4)), tag='r%d' % (p >> 1))
    for g in range(3):
        A.wait_lg('r%d' % g)
        r = R + 16 * g
        for i in range(4):
            A('v_pk_add_f32 %s, %s, %s' % (v(r + 2 * i, 2), v(r + 2 * i, 2), v(r + 8 + 2 * i, 2)))
        for i in range(4):
            if OPT['lnf'] and g < 2:
                A('v_pk_fma_f32 %s, %s, %s, %s' % (v(X + 2 * i, 2), v(r + 2 * i, 2), s(sO[0], 2), v(X + 2 * i, 2)))
            else:
                A('v_pk_add_f32 %s, %s, %s' % (v(X + 2 * i, 2), v(X + 2 * i, 2), v(r + 2 * i, 2)))
    for i in range(4):
        A('v_cvt_pk_bf16_f32 %s, %s, %s' % (v(X + i), v(X + 2 * i), v(X + 2 * i + 1)))
    A('buffer_store_dwordx4 %s, %s, %s, %s offen%s' % (v(X, 4), v(vOo), s(SO, 4), s(6), {0: '', 1: ' sc1', 2: ' nt', 3: ' sc0 sc1'}[OPT['ost']]))
    if OPT['stamps']:
        A('s_waitcnt vmcnt(0)')
        A('%s s[14:15]' % ('s_memtime' if OPT['clk'] else 's_memrealtime'))
        A('s_waitcnt lgkmcnt(0)')
        A('s_lshl_b32 %s, s2, 3' % s(sT2))
        A('s_add_u32 %s, %s, %s' % (s(sT2), s(sT2), s(sWave)))
        A('s_lshl_b32 %s, %s, 6' % (s(sT2), s(sT2)))
        A('s_add_u32 %s, %s, 0x%x' % (s(sT2), s(sT2), WS_STAMP))
        A('v_mov_b32 %s, 0' % v(1))
        for i, r in enumerate(STREG + [14, sRt]):
            A('v_mov_b32 %s, %s' % (v(0), s(r)))
            A('buffer_store_dword %s, %s, %s, %s offen offset:%d' % (v(0), v(1), s(SWS, 4), s(sT2), 4 * i))
    A.label('L_END')
    A('s_endpgm')
    for x in TAIL:
        A.raw(x if x.endswith(':') else '    ' + x)

def main():
    body = gen()
    out = []
    out.append('; @launch grid=(256,1,1) block=(512,1,1) lds=163840')
    out.append('.amdgcn_target "amdgcn-amd-amdhsa--gfx950"')
    out.append('.text')
    out.append('.globl %s_kernel' % NAME)
    out.append(body)
    out.append('.section .rodata,"a"')
    out.append('.p2align 6')
    out.append('''.amdhsa_kernel %s_kernel
  .amdhsa_next_free_vgpr 256
  .amdhsa_next_free_sgpr 102
  .amdhsa_accum_offset 256
  .amdhsa_group_segment_fixed_size 0
  .amdhsa_kernarg_size 88
  .amdhsa_user_sgpr_count 2
  .amdhsa_user_sgpr_kernarg_segment_ptr 1
  .amdhsa_system_sgpr_workgroup_id_x 1
.end_amdhsa_kernel
''' % NAME)
    open(sys.argv[1], 'w').write('\n'.join(out))

main()
if OPT['tmo']:
    print(TIDS)
```

```python
import sys
from asmlib import Asm, v, a, s

NAME = 'parallel_sum__linear_kernel_hedgehog__dense_activation_mish__prompt'
OPT = dict(fine=0, stamps=0, prio=1, sched=0, slp=8, wt0=18, wd=8, wi=4, warm=1, xmap=1, xq=1, clk=0, ost=1, gi=5, f2=6, ps=7, win=4, f3=0, h2=4, xs=0, mv=0, rot=7, rm=1, kfp=3, hfp=0, h2p=0, ofp=0, rsl=2, pt0=-1, pd=4, nv=1, gp=0, wop=0, wopx=0, cont=1, fk=20, h2q=3, xsp=1, sst=1, oi=8, la=2, lb=3, lax=4, lbx=2, bq=0, h2w=1, xh=1, xmv=15, kpf=0, pr2=1, l8=0, l8x=0, fa=9, xs0=1, fke=0, tmo=0, ysm=0, ka=0, yd=0, yw=0, yf=1, pex=1, pey=1, wl=4, roll=2, rollx=2, pk=0, po=1, pr3=0, pr4=0, lnf=2, lnd=1, m2=1, pp=0, wx=0, xp=0, rp=0)
for arg in sys.argv[2:]:
    k, val = arg.split('=')
    OPT[k] = int(val, 0)

NU = 60
WS_ACT = 0x000000
WS_KVP = 0x800000
KVS = 9216
WS_KF = 0x8A0000
WS_STAT = 0xC80000
WS_F = 0xC90000
WS_CS = 0xCA0000
WS_STAMP = 0xD00000
WS_SIZE = 0x6000000 if OPT['tmo'] else 0xE00000
KVH = 1088
OOB = 0x7f000000
LOG2E = 0x3fb8aa3b
LN2 = 0x3f317218
BOUND = 0x8000

L_W = 65536
L_E = 131072
def XP(sg): return 16384 * sg
def WP(sg): return L_W + 16384 * sg
TA, TZ, TB, TR, TS, TN, TPH = L_E, L_E + 1536, L_E + 2048, L_E + 3072, L_E + 3584, L_E + 3840, L_E + 6144
KVL = L_E + 24576
P3B = [L_E + 8192, L_E + 16384, XP(0), XP(0) + 8192, WP(0), WP(0) + 8192, XP(1), XP(1) + 8192]
PH0, PH1, VB = XP(3), WP(3), XP(2)
FL_P3, FL_PB, FL_EX, FL_KV, FL_WR = TN + 16, TN + 32, TN + 48, TN + 80, TN + 96

SX, SA, SB, SWS, SD, SW2, SWO, STMP = 40, 44, 48, 56, 60, 64, 68, 72
SO = SA
sNonce, sWave, sRb, sCg, sTyp, sG, sF, sRb2, sCb = 3, 4, 5, 8, 9, 10, 11, 12, 13
sT0, sT1, sT2, sT3 = 14, 15, 76, 77
sO = [78, 79, 80, 81, 82, 83]
sJ = 84
sM = 85
sA, sB = 86, 87
sGq = 39
STREG = [88, 90, 92, 94, 96, 98, 100, 24, 74]

def srd(A, d, lo, size):
    A('s_mov_b32 %s, %s' % (s(d), s(lo)))
    A('s_mov_b32 %s, %s' % (s(d + 1), s(lo + 1)))
    A('s_mov_b32 %s, 0x%x' % (s(d + 2), size))
    A('s_mov_b32 %s, 0x20000' % s(d + 3))

def stamp(A, idx, fine=0):
    over = {0: (), 1: (1, 2), 2: (1, 2, 3, 8, 4), 3: (1, 2, 8, 4, 5, 6), 4: (1, 2, 8, 4, 5, 6, 7), 5: (1, 2, 8, 4, 5, 6, 7), 6: (1, 2, 3, 8), 7: (1, 2, 3, 8, 4, 5), 8: (1, 2, 6, 7), 9: (1, 2, 3, 8, 5, 6, 7)}[OPT['fine']]
    if fine == 0 and idx in over:
        return
    if fine and OPT['fine'] != fine:
        return
    if OPT['stamps']:
        A('%s %s' % ('s_memtime' if OPT['clk'] else 's_memrealtime', s(STREG[idx], 2)))

def emit(A, L):
    for it in L:
        if isinstance(it, tuple):
            A(it[0], tag=it[1])
        else:
            A(it)

class Keep:
    def __init__(self, A): self.A = A
    def __enter__(self): self.sv = list(self.A.vm); self.sl = list(self.A.lg)
    def __exit__(self, *e): self.A.vm = self.sv; self.A.lg = self.sl

TIDS = []
TAIL = []
def tmo(name, cnt, lim, vreg):
    if not OPT['tmo']:
        return []
    TIDS.append(name)
    TAIL.extend([name + '_T:', 's_lshl_b32 s88, s2, 3', 's_add_u32 s88, s88, s4', 's_lshl_b32 s88, s88, 5', 's_add_u32 s88, s88, %d' % (len(TIDS) - 1),
                 's_lshl_b32 s88, s88, 10', 's_add_u32 s88, s88, 0x2000000', 's_memrealtime s[90:91]',
                 'buffer_store_dword %s, %s, %s, s88 offen sc1' % (v(vreg), v(254), s(SWS, 4)), 's_waitcnt vmcnt(0) lgkmcnt(0)',
                 'v_mov_b32 %s, s90' % v(vreg), 'buffer_store_dword %s, %s, %s, s88 offen offset:4 sc1' % (v(vreg), v(254), s(SWS, 4)), 's_waitcnt vmcnt(0)',
                 'v_mov_b32 %s, s3' % v(vreg), 'buffer_store_dword %s, %s, %s, s88 offen offset:8 sc1' % (v(vreg), v(254), s(SWS, 4)), 's_waitcnt vmcnt(0)',
                 's_branch %s_U' % name])
    return ['s_cmp_eq_u32 %s, %d' % (s(cnt), lim), 's_cbranch_scc1 %s_T' % name, name + '_U:']

def poll(A, name, reload, vreg, mask, cmp_nonce=True, pre=()):
    A('s_mov_b32 %s, 0' % s(sT0))
    A.label(name + '_P')
    emit(A, pre)
    if cmp_nonce:
        A('v_cmp_ne_u32 vcc, %s, %s' % (s(sNonce), v(vreg)))
    else:
        A('v_cmp_eq_u32 vcc, 0, %s' % v(vreg))
    if mask is not None:
        A('s_and_b32 vcc_lo, vcc_lo, %s' % mask)
        A('s_cmp_eq_u32 vcc_lo, 0')
    else:
        A('s_cmp_eq_u64 vcc, 0')
    A.branch('s_cbranch_scc1 %s_G' % name)
    A('s_add_u32 %s, %s, 1' % (s(sT0), s(sT0)))
    A('s_cmp_gt_u32 %s, 0x%x' % (s(sT0), BOUND))
    A.branch('s_cbranch_scc1 %s_G' % name)
    for x in tmo(name, sT0, 3000, vreg):
        A.raw(x)
    if OPT['slp']:
        A('s_sleep %d' % OPT['slp'])
    with Keep(A):
        emit(A, [reload] if isinstance(reload, str) else reload)
    A('s_waitcnt vmcnt(0)')
    A.branch('s_branch %s_P' % name)
    A.label(name + '_G')

def lds_wait(A, name, addr, n, minval, t, extra=()):
    A('s_mov_b32 %s, 0' % s(sT0))
    A.label(name + '_P')
    with Keep(A):
        A('ds_read_b128 %s, %s' % (v(t, 4), addr) if n == 4 else 'ds_read_b32 %s, %s' % (v(t), addr))
        emit(A, extra)
    A('s_add_u32 %s, %s, 1' % (s(sT0), s(sT0)))
    A('s_waitcnt lgkmcnt(0)')
    A.lg = []
    if n == 4:
        A('v_min3_u32 %s, %s, %s, %s' % (v(t), v(t), v(t + 1), v(t + 2)))
        A('v_min_u32 %s, %s, %s' % (v(t), v(t), v(t + 3)))
    A('v_readfirstlane_b32 %s, %s' % (s(sT1), v(t)))
    for x in tmo(name, sT0, 40000, t):
        A.raw(x)
    A('s_cmp_gt_u32 %s, 0x%x' % (s(sT0), BOUND * 16))
    A('s_cselect_b32 %s, %d, %s' % (s(sT1), minval, s(sT1)))
    A('s_cmp_lt_u32 %s, %d' % (s(sT1), minval))
    A.branch('s_cbranch_scc1 %s_P' % name)

vLane, vL16 = 255, 254
sRt = 38

def vcheck(A, name, regs, t, reload, back=None):
    if back is None:
        A.raw(name + '_C:')
    r = list(regs)
    if len(r) > 1:
        first = True
        while r:
            if first:
                k = r[:3]; r = r[3:]
            else:
                k = [t] + r[:2]; r = r[2:]
            A(('v_max3_u32 %s, %s, %s, %s' if len(k) == 3 else 'v_max_u32 %s, %s, %s') % tuple([v(t)] + [v(x) for x in k]))
            first = False
        A('v_cmp_eq_u32 vcc, -1, %s' % v(t))
    else:
        A('v_cmp_eq_u32 vcc, -1, %s' % v(r[0]))
    A('s_cbranch_vccnz %s_R' % name)
    A.raw(name + '_K:')
    L = [name + '_R:', 's_add_u32 %s, %s, 1' % (s(sRt), s(sRt)), 's_cmp_gt_u32 %s, 0x%x' % (s(sRt), BOUND), 's_cbranch_scc1 %s_K' % name]
    L += tmo(name, sRt, 2000, t)
    if OPT['rsl']:
        L.append('s_sleep %d' % OPT['rsl'])
    L += ['s_nop 7', 's_nop 7']
    L += [x[0] if isinstance(x, tuple) else x for x in reload]
    L += ['s_waitcnt vmcnt(0)', 's_branch %s' % (back or name + '_C')]
    TAIL.extend(L)

def tr_addr(A, dst, t, rowhalf, sel):
    A('v_lshrrev_b32 %s, 5, %s' % (v(t), v(vLane)))
    A('v_bfe_u32 %s, %s, 2, 2' % (v(t + 1), v(vLane)))
    A('v_mul_u32_u24 %s, %d, %s' % (v(t), rowhalf, v(t)))
    A('v_add_lshl_u32 %s, %s, %s, 7' % (v(dst), v(t), v(t + 1)))
    A('v_bfe_u32 %s, %s, 3, 1' % (v(t), v(vLane)))
    if sel:
        A('v_xor_b32 %s, %s, %s' % (v(t), sel, v(t)))
    A('v_lshl_add_u32 %s, %s, 6, %s' % (v(dst), v(t), v(dst)))
    A('v_bfe_u32 %s, %s, 4, 1' % (v(t), v(vLane)))
    A('v_lshl_add_u32 %s, %s, 5, %s' % (v(dst), v(t), v(dst)))
    A('v_and_b32 %s, 3, %s' % (v(t), v(vLane)))
    A('v_lshl_add_u32 %s, %s, 3, %s' % (v(dst), v(t), v(dst)))

def selector(A, dst, t):
    A('v_lshrrev_b32 %s, 2, %s' % (v(t), v(vLane)))
    A('v_xor_b32 %s, %s, %s' % (v(t), v(t), v(vLane)))
    A('v_and_b32 %s, 4, %s' % (v(t), v(t)))
    A('v_cmp_eq_u32 vcc, 0, %s' % v(t))
    A('v_mov_b32 %s, 0x3f803f80' % v(t + 1))
    A('v_cndmask_b32 %s, 0, %s, vcc' % (v(dst), v(t + 1)))
    for i in range(1, 4):
        A('v_mov_b32 %s, %s' % (v(dst + i), v(dst)))

def onehot(A, dst, key, t, first=0):
    A('v_mov_b32 %s, 0x3f80' % v(t))
    A('v_mov_b32 %s, 0x3f800000' % v(t + 1))
    for r in range(4):
        A('v_cmp_eq_u32 vcc, %d, %s' % (first + 2 * r, v(key)))
        A('v_cndmask_b32 %s, 0, %s, vcc' % (v(dst + r), v(t)))
        A('v_cmp_eq_u32 vcc, %d, %s' % (first + 2 * r + 1, v(key)))
        A('v_cndmask_b32 %s, %s, %s, vcc' % (v(dst + r), v(dst + r), v(t + 1)))

def reduce_write(A, acc, t, base_s, nrt=2):
    A('v_and_b32 %s, 31, %s' % (v(t), v(vLane)))
    A('v_lshrrev_b32 %s, 5, %s' % (v(t + 1), v(vLane)))
    A('v_xor_b32 %s, %s, %s' % (v(t + 1), v(t + 1), v(vLane)))
    A('v_and_b32 %s, 7, %s' % (v(t + 1), v(t + 1)))
    A('v_lshlrev_b32 %s, 4, %s' % (v(t + 1), v(t + 1)))
    A('v_lshl_add_u32 %s, %s, 7, %s' % (v(t), v(t), v(t + 1)))
    A('v_add_u32 %s, %s, %s' % (v(t), s(base_s), v(t)))
    for q4 in range(1, 4):
        A('v_xor_b32 %s, %d, %s' % (v(t + q4), 32 * q4, v(t)))
    for q4 in range(4):
        A('v_xor_b32 %s, 16, %s' % (v(t + 4 + q4), v(t + q4)))
        A('v_add_u32 %s, %d, %s' % (v(t + 4 + q4), 65536, v(t + 4 + q4)))
    return [('ds_write_b128 %s, %s offset:%d' % (v(t + 4 * nt + q4), v(acc + 16 * (nrt * nt + rt) + 4 * q4, 4), rt * 16384))
            for nt in range(2) for rt in range(nrt) for q4 in range(4)]

def w2_voff(A, dst, t):
    A('v_lshrrev_b32 %s, 3, %s' % (v(t), v(vLane)))
    A('v_lshrrev_b32 %s, 2, %s' % (v(t + 1), v(vLane)))
    A('v_and_b32 %s, 4, %s' % (v(t + 1), v(t + 1)))
    A('v_and_b32 %s, 7, %s' % (v(t + 2), v(vLane)))
    A('v_xor_b32 %s, %s, %s' % (v(t + 1), v(t + 1), v(t + 2)))
    A('v_lshlrev_b32 %s, 4, %s' % (v(t + 1), v(t + 1)))
    A('s_lshl_b32 %s, %s, 7' % (s(sT0), s(sCb)))
    A('v_lshl_add_u32 %s, %s, 10, %s' % (v(dst), v(t), v(t + 1)))
    A('v_add_u32 %s, %s, %s' % (v(dst), s(sT0), v(dst)))

def quad(vo, srdn, ldsbase, tag):
    L = []
    L.append('s_lshl_b32 m0, %s, 12' % s(sJ))
    if ldsbase:
        L.append('s_add_u32 m0, m0, %d' % ldsbase)
    for i in range(4):
        if i:
            L.append('s_add_u32 %s, %s, %d' % (s(sO[i]), s(sO[0]), 7168 * i))
        L.append(('buffer_load_dwordx4 %s, %s, %s offen offset:%d lds' % (v(vo[i & 1]), s(srdn, 4), s(sO[i]), 1024 * i), tag))
    return L

def xres(A, vOo, vX):
    A('v_lshrrev_b32 %s, 3, %s' % (v(vOo), v(vLane)))
    A('v_and_b32 %s, 7, %s' % (v(vOo + 1), v(vLane)))
    A('v_lshlrev_b32 %s, 10, %s' % (v(vOo), v(vOo)))
    A('v_lshl_add_u32 %s, %s, 4, %s' % (v(vOo), v(vOo + 1), v(vOo)))
    A('s_lshl_b32 %s, %s, 3' % (s(6), s(sRb2)))
    A('s_add_u32 %s, %s, %s' % (s(6), s(6), s(sWave)))
    A('s_lshl_b32 %s, %s, 13' % (s(6), s(6)))
    A('s_lshl_b32 %s, %s, 7' % (s(7), s(sCb)))
    A('s_add_u32 %s, %s, %s' % (s(6), s(6), s(7)))
    A('buffer_load_dwordx4 %s, %s, %s, %s offen' % (v(vX, 4), v(vOo), s(SX, 4), s(6)), tag='xres')

def gen():
    A = Asm()
    vT = 236
    A.raw('.p2align 8')
    A.raw('.type %s_kernel,@function' % NAME)
    A.raw('%s_kernel:' % NAME)
    A('s_cmp_ge_u32 s2, 256')
    A.branch('s_cbranch_scc1 L_END')
    A('s_load_dwordx16 s[16:31], s[0:1], 0')
    A('s_load_dwordx4 s[32:35], s[0:1], 64')
    A('s_load_dwordx2 s[36:37], s[0:1], 80')
    A('s_memrealtime s[6:7]')
    A('v_and_b32 %s, 63, v0' % v(vLane))
    A('v_lshrrev_b32 %s, 6, v0' % v(vT))
    A('v_lshlrev_b32 %s, 4, %s' % (v(vL16), v(vLane)))
    A('v_readfirstlane_b32 %s, %s' % (s(sWave), v(vT)))
    A('s_and_b32 %s, s2, 7' % s(sT0))
    A('s_lshr_b32 %s, s2, 3' % s(sT1))
    A('s_and_b32 %s, %s, 1' % (s(sRb), s(sT0)))
    A('s_lshl_b32 %s, %s, 3' % (s(sRb), s(sRb)))
    A('s_and_b32 %s, %s, 7' % (s(sT2), s(sT1)))
    A('s_add_u32 %s, %s, %s' % (s(sRb), s(sRb), s(sT2)))
    A('s_lshr_b32 %s, %s, 1' % (s(sCg), s(sT0)))
    A('s_lshl_b32 %s, %s, 2' % (s(sCg), s(sCg)))
    A('s_lshr_b32 %s, %s, 3' % (s(sT2), s(sT1)))
    A('s_add_u32 %s, %s, %s' % (s(sCg), s(sCg), s(sT2)))
    A('s_and_b32 %s, %s, 1' % (s(sTyp), s(sCg)))
    A('s_lshr_b32 %s, %s, 1' % (s(sG), s(sCg)))
    A('s_xor_b32 %s, %s, %d' % (s(sGq), s(sG), 2 * OPT['xq']))
    A('s_cmp_eq_u32 %s, 1' % s(sTyp))
    A('s_cselect_b32 %s, %s, %s' % (s(sGq), s(sG), s(sGq)))
    A('s_lshl_b32 %s, %s, 1' % (s(sF), s(sCg)))
    A('s_add_u32 %s, %s, %s' % (s(sF), s(sF), s(sRb)))
    if OPT['rm']:
        A('s_and_b32 %s, %s, 3' % (s(sF), s(sCg)))
        A('s_lshl_b32 %s, %s, 1' % (s(sF), s(sF)))
        A('s_and_b32 %s, %s, 7' % (s(sT2), s(sRb)))
        A('s_add_u32 %s, %s, %s' % (s(sF), s(sF), s(sT2)))
        A('s_sub_u32 %s, %s, 7' % (s(sT2), s(sF)))
        A('s_cmp_ge_u32 %s, 7' % s(sF))
        A('s_cselect_b32 %s, %s, %s' % (s(sF), s(sT2), s(sF)))
        A('s_xor_b32 %s, %s, %s' % (s(38), s(sCg), s(sRb)))
        A('s_and_b32 %s, %s, %d' % (s(38), s(38), OPT['rm'] - 1))
    else:
        A('s_and_b32 %s, %s, %d' % (s(sF), s(sF), OPT['rot']))
    if OPT['xmap']:
        A('s_lshr_b32 %s, %s, 1' % (s(sRb2), s(sT0)))
        A('s_andn2_b32 %s, 1, %s' % (s(sT2), s(sT0)))
        A('s_lshl_b32 %s, %s, 2' % (s(sT2), s(sT2)))
        A('s_add_u32 %s, %s, %s' % (s(sRb2), s(sRb2), s(sT2)))
        A('s_lshl_b32 %s, %s, 2' % (s(sRb2), s(sRb2)))
    else:
        A('s_lshl_b32 %s, %s, 2' % (s(sRb2), s(sT0)))
    A('s_and_b32 %s, %s, 3' % (s(sT2), s(sT1)))
    A('s_add_u32 %s, %s, %s' % (s(sRb2), s(sRb2), s(sT2)))
    A('s_lshr_b32 %s, %s, 2' % (s(sCb), s(sT1)))
    if OPT['m2']:
        A('s_xor_b32 %s, %s, %s' % (s(sT2), s(sRb2), s(sCb)))
        A('s_and_b32 %s, %s, 4' % (s(sT2), s(sT2)))
        A('s_xor_b32 %s, %s, %s' % (s(sRb2), s(sRb2), s(sT2)))
        A('s_xor_b32 %s, %s, %s' % (s(sCb), s(sCb), s(sT2)))
    A('s_and_b32 %s, %s, 3' % (s(sJ), s(sWave)))
    if not OPT['rm']:
        A('s_mov_b32 %s, 0' % s(sRt))
    A('s_cmp_ge_u32 %s, 4' % s(sWave))
    A.branch('s_cbranch_scc1 C_START')
    gen_loader(A)
    gen_compute(A)
    gen_final(A)
    return A.text()

def gen_loader(A):
    vXo, vP1, vP2, vP3, v2o = 224, 226, 227, 228, 252
    vNon, vG, vTa, vFl = 230, 232, 234, 253
    vT = 236
    vRow = 0
    vCf = 32
    vCa = 56
    vSel = 68
    vGa = 72
    vB1 = 104
    sPA16, sPA8, sPB16, sPB8 = 52, 53, 54, 55
    sC1, sC2, sC3 = SWO, SWO + 1, SWO + 2
    sStat = 7
    A('s_lshl_b32 %s, %s, 7' % (s(sT0), s(sG)))
    A('s_lshl_b32 %s, %s, 8' % (s(sT1), s(sG)))
    A('s_add_u32 %s, %s, 1024' % (s(sC1), s(sT0)))
    A('s_add_u32 %s, %s, 2048' % (s(sC2), s(sT0)))
    A('s_add_u32 %s, %s, 128' % (s(sT3), s(sT1)))
    A('s_lshl_b32 %s, %s, 7' % (s(sT2), s(sGq)))
    A('s_cmp_eq_u32 %s, 1' % s(sTyp))
    A('s_cselect_b32 %s, %s, %s' % (s(sC3), s(sC2), s(sT2)))
    A('s_cselect_b32 %s, %s, %s' % (s(sC1), s(sC1), s(sT1)))
    A('s_cselect_b32 %s, %s, %s' % (s(sC2), s(sC2), s(sT3)))
    A('s_movk_i32 %s, 2752' % s(sT1))
    A('s_cselect_b32 %s, 3072, %s' % (s(sT2), s(sT1)))
    A('s_cselect_b32 %s, %s, 3072' % (s(sT3), s(sT1)))
    w2_voff(A, v2o, vT)
    A('v_mul_u32_u24 %s, %s, %s' % (v(vP2), s(sT2), v(vT)))
    A('v_add3_u32 %s, %s, %s, %s' % (v(vP1), v(vP2), v(vT + 1), s(sC1)))
    A('v_add3_u32 %s, %s, %s, %s' % (v(vP2), v(vP2), v(vT + 1), s(sC2)))
    A('v_add_u32 %s, %s, %s' % (v(vT + 3), s(sC3), v(vT + 1)))
    A('v_mul_u32_u24 %s, %s, %s' % (v(vP3), s(sT3), v(vT)))
    A('v_add_u32 %s, %s, %s' % (v(vP3), v(vP3), v(vT + 3)))
    A('v_cmp_gt_u32 vcc, 2752, %s' % v(vT + 3))
    A('v_mov_b32 %s, 0x%x' % (v(vT + 3), OOB))
    A('v_cndmask_b32 %s, %s, %s, vcc' % (v(vP3), v(vT + 3), v(vP3)))
    A('s_lshl_b32 %s, %s, 4' % (s(sPA16), s(sT2)))
    A('s_lshl_b32 %s, %s, 3' % (s(sPA8), s(sT2)))
    A('s_sub_u32 %s, %s, 1024' % (s(sPA8), s(sPA8)))
    A('s_lshl_b32 %s, %s, 4' % (s(sPB16), s(sT3)))
    A('s_lshl_b32 %s, %s, 3' % (s(sPB8), s(sT3)))
    A('s_sub_u32 %s, %s, 1024' % (s(sPB8), s(sPB8)))
    A('v_lshrrev_b32 %s, 4, %s' % (v(vT + 1), v(vLane)))
    A('v_xor_b32 %s, %s, %s' % (v(vT + 1), v(vT + 1), v(vT + 2)))
    A('s_lshl_b32 %s, %s, 2' % (s(sT0), s(sRb)))
    A('s_add_u32 %s, %s, %s' % (s(sT0), s(sT0), s(sJ)))
    A('s_lshl_b32 %s, %s, 15' % (s(sT0), s(sT0)))
    A('v_lshlrev_b32 %s, 10, %s' % (v(vXo), v(vT)))
    A('v_lshl_add_u32 %s, %s, 4, %s' % (v(vXo), v(vT + 1), v(vXo)))
    A('v_add_u32 %s, %s, %s' % (v(vXo), s(sT0), v(vXo)))
    A('v_xor_b32 %s, 64, %s' % (v(vXo + 1), v(vXo)))
    A('s_lshl_b32 %s, %s, 11' % (s(sM), s(sJ)))
    A('s_lshl_b32 %s, %s, 4' % (s(sA), s(sRb)))
    A('s_add_u32 %s, %s, %s' % (s(sA), s(sA), s(sCg)))
    A('s_lshl_b32 %s, %s, 2' % (s(sA), s(sA)))
    A('s_add_u32 %s, %s, %s' % (s(sA), s(sA), s(sJ)))
    A('s_lshl_b32 %s, %s, 11' % (s(sB), s(sA)))
    A('v_and_b32 %s, 32, %s' % (v(vT + 4), v(vLane)))
    A('v_lshl_add_u32 %s, %s, 4, %s' % (v(vT + 4), v(vT + 4), v(vL16)))
    A('v_mov_b32 %s, 0' % v(vT + 5))
    A('s_or_b32 %s, s2, %s' % (s(sT0), s(sWave)))
    A('s_waitcnt lgkmcnt(0)')
    srd(A, SD, 34, 256)
    A('s_cmp_lg_u32 %s, 0' % s(sT0))
    A.branch('s_cbranch_scc1 L_NONONCE')
    A('s_or_b32 s6, s6, 1')
    A('v_mov_b32 %s, s6' % v(vT))
    with Keep(A):
        A('buffer_store_dword %s, %s, %s, 0 offen offset:128 sc1' % (v(vT), v(vT + 5), s(SD, 4)))
    A.label('L_NONONCE')
    srd(A, SX, 16, 2048 * 1024)
    A('s_cmp_eq_u32 %s, 1' % s(sTyp))
    for d, x_, y_, p16 in ((SA, 18, 26, sPA16), (SB, 26, 18, sPB16)):
        A('s_cselect_b32 %s, %s, %s' % (s(d), s(x_), s(y_)))
        A('s_cselect_b32 %s, %s, %s' % (s(d + 1), s(x_ + 1), s(y_ + 1)))
        A('s_mov_b32 %s, 0x20000' % s(d + 3))
    A('s_lshl_b32 %s, %s, 5' % (s(SA + 2), s(sPA16)))
    A('s_lshl_b32 %s, %s, 5' % (s(SB + 2), s(sPB16)))
    stamp(A, 0)

    def chunk(st):
        if OPT['rm']:
            if st == 0:
                return ['s_mov_b32 %s, %s' % (s(sT3), s(38))]
            return ['s_add_u32 %s, %s, %d' % (s(sT3), s(sF), st),
                    's_sub_u32 %s, %s, 7' % (s(sO[0]), s(sT3)),
                    's_cmp_ge_u32 %s, 8' % s(sT3),
                    's_cselect_b32 %s, %s, %s' % (s(sT3), s(sO[0]), s(sT3)),
                    's_xor_b32 %s, %s, %s' % (s(sT3), s(sT3), s(38))]
        return ['s_add_u32 %s, %s, %d' % (s(sT3), s(sF), st),
                's_and_b32 %s, %s, 7' % (s(sT3), s(sT3))]
    def krow(st):
        return chunk(st) + [
                's_lshl_b32 %s, %s, 2' % (s(sT3), s(sT3)),
                's_add_u32 %s, %s, %s' % (s(sT3), s(sT3), s(sJ))]
    def grp_w(st):
        L = krow(st)
        L.append('s_mul_i32 %s, %s, %s' % (s(sO[0]), s(sT3), s(sPA16)))
        L.append('s_add_u32 m0, %s, %d' % (s(sM), WP(st & 3)))
        L.append('s_add_u32 %s, %s, %s' % (s(sO[1]), s(sO[0]), s(sPA8)))
        L.append(('buffer_load_dwordx4 %s, %s, %s offen lds' % (v(vP1), s(SA, 4), s(sO[0])), 's%d' % st))
        L.append(('buffer_load_dwordx4 %s, %s, %s offen offset:1024 lds' % (v(vP1), s(SA, 4), s(sO[1])), 's%d' % st))
        L.append('s_add_u32 m0, %s, %d' % (s(sM), WP(st & 3) + 8192))
        L.append(('buffer_load_dwordx4 %s, %s, %s offen lds' % (v(vP2), s(SA, 4), s(sO[0])), 's%d' % st))
        L.append(('buffer_load_dwordx4 %s, %s, %s offen offset:1024 lds' % (v(vP2), s(SA, 4), s(sO[1])), 's%d' % st))
        return L
    def grp_p3(st):
        tag = ('s1' if OPT['rp'] else 's0') if st == 0 else 'p3'
        L = krow(st)
        if OPT['rm'] and st < 2:
            assert OPT['rm'] == 1
            L = ['s_add_u32 %s, %s, 1' % (s(sO[1]), s(sF)),
                 's_and_b32 %s, %s, 7' % (s(sT3), s(sRb)),
                 's_cmp_%s_u32 %s, 7' % ('lg' if st else 'eq', s(sT3)),
                 's_cselect_b32 %s, 0, %s' % (s(sT3), s(sO[1])),
                 's_cselect_b32 %s, %d, %d' % (s(sO[1]), 0, 1),
                 's_lshl_b32 %s, %s, 13' % (s(sO[1]), s(sO[1])),
                 's_add_u32 %s, %s, %s' % (s(sO[1]), s(sO[1]), s(sM))] + L[-2:]
        L.append('s_mul_i32 %s, %s, %s' % (s(sO[0]), s(sT3), s(sPB16)))
        if OPT['rm'] and st < 2:
            L.append('s_add_u32 m0, %s, %d' % (s(sO[1]), P3B[0]))
        else:
            L.append('s_add_u32 m0, %s, %d' % (s(sM), P3B[st]))
        L.append('s_add_u32 %s, %s, %s' % (s(sO[1]), s(sO[0]), s(sPB8)))
        L.append(('buffer_load_dwordx4 %s, %s, %s offen lds' % (v(vP3), s(SB, 4), s(sO[0])), tag))
        L.append(('buffer_load_dwordx4 %s, %s, %s offen offset:1024 lds' % (v(vP3), s(SB, 4), s(sO[1])), tag))
        return L
    def grp_x(st):
        L = chunk(st)
        L.append('s_lshl_b32 %s, %s, 7' % (s(sO[0]), s(sT3)))
        return L + quad((vXo, vXo + 1), SX, XP(st & 3), 's%d' % st)
    UL = [(8, 0), (8, 1), (8, 4), (8, 5), (3, 32), (3, 33), (3, 34), (8, 2), (8, 3), (8, 6), (8, 7)]
    UL = UL[:4] + UL[7:] + UL[4:7]
    UPY = [WP(1), WP(2), XP(2), XP(3), WP(3), WP(1), WP(2), WP(1), XP(0), XP(1), WP(0)]
    UPX = [WP(1), WP(2), WP(1), WP(2), WP(1), WP(2), WP(1), WP(1), XP(0), XP(1), WP(0)]
    def grp_w2(i, UP=UPY):
        m, c = UL[i]
        L = ['s_mul_i32 %s, %s, %d' % (s(sO[0]), s(sJ), m * 32768)]
        if c:
            L.append('s_add_u32 %s, %s, %d' % (s(sO[0]), s(sO[0]), c * 32768))
        return L + quad((v2o, v2o), SW2, UP[i], 'u%d' % i)
    groups = []
    for st in range(8):
        groups += [('w', st), ('x', st)]
    SCHED = {0: [6, 2, 2, 2, 2, 2], 1: [4, 4, 2, 2, 2, 2], 2: [8, 0, 2, 2, 2, 2], 3: [5, 3, 2, 2, 2, 2]}[OPT['sched']]
    pos = [0]
    def issue(n, iv):
        for _ in range(n):
            kind, st = groups[pos[0]]
            assert st <= iv + 3 or st < 4, (st, iv)
            emit(A, grp_w(st) if kind == 'w' else grp_x(st))
            pos[0] += 1

    nload = 'buffer_load_dword %s, %s, %s, 0 offen offset:128 sc1' % (v(vNon), v(vT + 5), s(SD, 4))
    A('buffer_load_dwordx4 %s, %s, %s, %s offen' % (v(vRow, 4), v(vT + 4), s(SX, 4), s(sB)), tag='row')
    A('buffer_load_dwordx4 %s, %s, %s, %s offen offset:512' % (v(vRow + 4, 4), v(vT + 4), s(SX, 4), s(sB)), tag='row')
    issue(2, -1)
    if not OPT['rp']:
        emit(A, grp_p3(0))
    A(nload, tag='s0')
    issue(2, -1)
    if OPT['rp']:
        assert OPT['rm']
        emit(A, grp_p3(0))
    A('buffer_load_dword %s, %s, %s, 0 offen offset:128 sc1' % (v(vNon + 1), v(vT + 5), s(SD, 4)), tag='non2')
    srd(A, SWS, 36, WS_SIZE)
    A('s_lshl_b32 %s, %s, 4' % (s(sStat), s(sA)))
    A('s_add_u32 %s, %s, 0x%x' % (s(sStat), s(sStat), WS_STAT))
    srd(A, SW2, 30, 1376 * 1024)

    def xsum32(r, t):
        for ctl in ('quad_perm:[1,0,3,2]', 'quad_perm:[2,3,0,1]', 'row_half_mirror', 'row_mirror'):
            A('v_add_f32_dpp %s, %s, %s %s row_mask:0xf bank_mask:0xf' % (v(r), v(r), v(r), ctl))
        A('v_mov_b32 %s, %s' % (v(t), v(r)))
        A('v_permlane16_swap_b32 %s, %s' % (v(r), v(t)))
        A('v_add_f32 %s, %s, %s' % (v(r), v(r), v(t)))
    U = vRow + 8
    tr_addr(A, vTa, vT, 8, s(sJ))
    A('s_lshr_b32 %s, %s, 3' % (s(sT0), s(sRb)))
    A('s_lshl_b32 %s, %s, 12' % (s(sT0), s(sT0)))
    A('s_add_u32 %s, %s, %d' % (s(sT0), s(sT0), L_W))
    A('v_add_u32 %s, %s, %s' % (v(vTa), s(sT0), v(vTa)))
    if OPT['rm']:
        A('s_and_b32 %s, %s, 7' % (s(sT0), s(sRb)))
        A('s_cmp_eq_u32 %s, 7' % s(sT0))
        A('s_cselect_b32 %s, 0, 8192' % s(sT0))
        A('s_add_u32 %s, %s, %d' % (s(sT0), s(sT0), P3B[0] - L_W))
        A('v_add_u32 %s, %s, %s' % (v(vTa + 1), s(sT0), v(vTa)))
    else:
        A('v_add_u32 %s, %d, %s' % (v(vTa + 1), P3B[0] - L_W, v(vTa)))
    selector(A, vSel, vT)
    A('v_lshlrev_b32 %s, 2, %s' % (v(vFl), v(vLane)))
    A('v_and_b32 %s, 0x7c, %s' % (v(vFl), v(vFl)))
    A.wait_vm('row')
    for j in range(8):
        A('v_lshlrev_b32 %s, 16, %s' % (v(U + 2 * j), v(vRow + j)))
        A('v_and_b32 %s, 0xffff0000, %s' % (v(U + 2 * j + 1), v(vRow + j)))
    for j in range(4):
        A('v_add_f32 %s, %s, %s' % (v(vRow + j), v(U + j), v(U + 4 + j)))
        A('v_add_f32 %s, %s, %s' % (v(vRow + 4 + j), v(U + 8 + j), v(U + 12 + j)))
    for st_ in (4, 2, 1):
        for j in range(st_):
            A('v_add_f32 %s, %s, %s' % (v(vRow + j), v(vRow + j), v(vRow + st_ + j)))
    xsum32(vRow, vRow + 1)
    A('v_mul_f32 %s, 0xbb000000, %s' % (v(vRow), v(vRow)))
    for j in range(16):
        A('v_add_f32 %s, %s, %s' % (v(U + j), v(U + j), v(vRow)))
    for j in range(4):
        A('v_mul_f32 %s, %s, %s' % (v(vRow + 4 + j), v(U + j), v(U + j)))
    for j in range(4, 16):
        A('v_fmac_f32 %s, %s, %s' % (v(vRow + 4 + (j & 3)), v(U + j), v(U + j)))
    r = vRow + 4
    A('v_add_f32 %s, %s, %s' % (v(r), v(r), v(r + 1)))
    A('v_add_f32 %s, %s, %s' % (v(r + 2), v(r + 2), v(r + 3)))
    A('v_add_f32 %s, %s, %s' % (v(r), v(r), v(r + 2)))
    xsum32(r, r + 1)
    A('v_mul_f32 %s, 0x3b000000, %s' % (v(r), v(r)))
    A('v_cvt_pk_bf16_f32 %s, %s, %s' % (v(r), v(r), v(r)))
    A('v_lshlrev_b32 %s, 16, %s' % (v(r), v(r)))
    A('v_add_f32 %s, 0x3727c5ac, %s' % (v(r), v(r)))
    A('v_cvt_pk_bf16_f32 %s, %s, %s' % (v(r), v(r), v(r)))
    A('v_lshlrev_b32 %s, 16, %s' % (v(r), v(r)))
    A('v_sqrt_f32 %s, %s' % (v(r), v(r)))
    A('v_cvt_pk_bf16_f32 %s, %s, %s' % (v(vG), v(vRow), v(r)))
    A('v_cmp_eq_u32 vcc, 0, %s' % v(vFl))
    A('v_lshrrev_b32 %s, 2, %s' % (v(vT), v(vLane)))
    A('v_mov_b32 %s, 0x%x' % (v(vT + 1), OOB))
    A('v_cndmask_b32 %s, %s, %s, vcc' % (v(vT + 4), v(vT + 1), v(vT)))
    issue(SCHED[0] - 4, -1)
    A.wait_vm('s0')
    A('s_barrier')
    stamp(A, 1)
    A('s_cmp_ge_u32 %s, 2' % s(sJ))
    A.branch('s_cbranch_scc1 L_NOCF')
    with Keep(A):
        for ks in range(2):
            for u in range(2 if OPT['rp'] else 3):
                for hh in range(2):
                    A('ds_read_b64_tr_b16 %s, %s offset:%d' % (v(vCf + 12 * ks + 4 * u + 2 * hh, 2), v(vTa + (u >> 1)), 8192 * (u & 1) + 2048 * ks + 512 * hh))
    A.label('L_NOCF')
    A('v_readfirstlane_b32 %s, %s' % (s(sNonce), v(vNon)))
    A('s_cmp_lg_u32 %s, 0' % s(sNonce))
    A.branch('s_cbranch_scc1 LN_DONE')
    with Keep(A):
        A.wait_vm('non2')
        A('v_mov_b32 %s, %s' % (v(vNon), v(vNon + 1)))
        poll(A, 'LN', nload, vNon, None, cmp_nonce=False)
        A('v_readfirstlane_b32 %s, %s' % (s(sNonce), v(vNon)))
    A.label('LN_DONE')
    A('v_mov_b32 %s, %s' % (v(vG + 1), v(vNon)))
    A('buffer_store_dwordx2 %s, %s, %s, %s offen sc1' % (v(vG, 2), v(vT + 4), s(SWS, 4), s(sStat)), tag='pub')
    A('s_cmp_ge_u32 %s, 2' % s(sJ))
    A.branch('s_cbranch_scc1 LB_START')
    vm0 = list(A.vm)
    pos0 = pos[0]

    def bar(n):
        A('s_barrier')
        if n == 4:
            stamp(A, 2)
        if n in (5, 6, 7):
            stamp(A, {5: 1, 6: 2, 7: 8}[n], 3)
    GI = OPT['gi']
    vA0, vB0 = 244, 246
    vFw = 248
    vSdw = 251
    vSg, vZo, vKw, vKf = 192, 196, 197, 199
    def prep_kv():
        A('v_and_b32 %s, 15, %s' % (v(vT), v(vLane)))
        A('v_lshrrev_b32 %s, 4, %s' % (v(vT + 1), v(vLane)))
        A('v_lshlrev_b32 %s, 3, %s' % (v(vT + 2), v(vT + 1)))
        A('v_xor_b32 %s, %s, %s' % (v(vT + 2), v(vT + 2), v(vT)))
        A('v_and_b32 %s, 15, %s' % (v(vT + 2), v(vT + 2)))
        onehot(A, vSg, vT + 2, vT + 3)
        A('v_lshrrev_b32 %s, 3, %s' % (v(vT + 3), v(vT)))
        A('v_mul_u32_u24 %s, %d, %s' % (v(vZo), KVS - 512, v(vT + 3)))
        A('v_lshl_add_u32 %s, %s, 4, %s' % (v(vZo), v(vT + 1), v(vZo)))
        A('v_lshl_add_u32 %s, %s, 6, %s' % (v(vZo), v(vT), v(vZo)))
        A('v_lshrrev_b32 %s, 1, %s' % (v(vT + 2), v(vT + 1)))
        A('v_mul_u32_u24 %s, 272, %s' % (v(vT + 2), v(vT + 2)))
        A('v_and_b32 %s, 1, %s' % (v(vT + 1), v(vT + 1)))
        A('v_lshl_add_u32 %s, %s, 3, %s' % (v(vT + 2), v(vT + 1), v(vT + 2)))
        A('s_mul_i32 %s, %s, %d' % (s(sT0), s(sJ), KVH))
        A('s_add_u32 %s, %s, %d' % (s(sT0), s(sT0), KVL))
        A('v_add_u32 %s, %s, %s' % (v(vT + 2), s(sT0), v(vT + 2)))
        A('v_lshl_add_u32 %s, %s, 4, %s' % (v(vKw), v(vT), v(vT + 2)))
        A('v_mul_u32_u24 %s, 544, %s' % (v(vT + 3), v(vT + 3)))
        A('v_add_u32 %s, %s, %s' % (v(vKw + 1), v(vT + 2), v(vT + 3)))
        A('v_and_b32 %s, 0x33, %s' % (v(vT), v(vLane)))
        A('v_bfe_u32 %s, %s, 2, 1' % (v(vT + 1), v(vLane)))
        A('v_lshl_or_b32 %s, %s, 3, %s' % (v(vT), v(vT + 1), v(vT)))
        A('v_bfe_u32 %s, %s, 3, 1' % (v(vT + 1), v(vLane)))
        A('v_lshl_or_b32 %s, %s, 2, %s' % (v(vT), v(vT + 1), v(vT)))
        A('v_lshlrev_b32 %s, 1, %s' % (v(vSdw), v(vT)))
    def lwarm():
        srd(A, STMP, 22, 512 * 1024)
        A('s_lshr_b32 %s, s2, 3' % s(sT0))
        A('s_lshl_b32 %s, %s, 2' % (s(sT0), s(sT0)))
        A('s_add_u32 %s, %s, %s' % (s(sT0), s(sT0), s(sJ)))
        A('v_lshlrev_b32 %s, 7, %s' % (v(vT), v(vLane)))
        A('s_mul_i32 %s, %s, %d' % (s(sT1), s(sT0), 86 * 128))
        A('buffer_load_dword %s, %s, %s, %s offen' % (v(107), v(vT), s(SW2, 4), s(sT1)), tag='wm')
        A('v_cmp_gt_u32 vcc, 22, %s' % v(vLane))
        A('v_mov_b32 %s, 0x%x' % (v(vT + 3), OOB))
        A('v_cndmask_b32 %s, %s, %s, vcc' % (v(vT + 2), v(vT + 3), v(vT)))
        A('s_add_u32 %s, %s, 8192' % (s(sT1), s(sT1)))
        A('buffer_load_dword %s, %s, %s, %s offen' % (v(107), v(vT + 2), s(SW2, 4), s(sT1)), tag='wm')
        A('v_cmp_gt_u32 vcc, 32, %s' % v(vLane))
        A('v_cndmask_b32 %s, %s, %s, vcc' % (v(vT + 2), v(vT + 3), v(vT)))
        A('s_lshl_b32 %s, %s, 12' % (s(sT1), s(sT0)))
        A('buffer_load_dword %s, %s, %s, %s offen' % (v(107), v(vT + 2), s(STMP, 4), s(sT1)), tag='wm')
    def prep2():
        tr_addr(A, vA0, vT, 4, None)
        A('s_lshl_b32 %s, %s, 1' % (s(sT0), s(sM)))
        A('v_add_u32 %s, %s, %s' % (v(vA0), s(sT0), v(vA0)))
        A('v_xor_b32 %s, 64, %s' % (v(vA0 + 1), v(vA0)))
        A('v_add_u32 %s, %d, %s' % (v(vB0), L_W, v(vA0)))
        A('v_add_u32 %s, %d, %s' % (v(vB0 + 1), L_W, v(vA0 + 1)))
        A('s_lshl_b32 %s, %s, 2' % (s(sT0), s(sJ)))
        A('s_add_u32 %s, %s, %d' % (s(sT0), s(sT0), FL_P3))
        A('v_mov_b32 %s, %s' % (v(vFw), s(sT0)))
        A('v_mov_b32 %s, 1' % v(vFw + 1))
        srd(A, SWO, 22, 512 * 1024)
    for k in 'AB':
        if k == 'B':
            A.label('LB_START')
            A.vm = list(vm0); A.lg = []; pos[0] = pos0
        sCs = 6
        if k == 'A':
            A('s_lshl_b32 %s, %s, 1' % (s(sCs), s(sCg)))
            A('s_add_u32 %s, %s, %s' % (s(sCs), s(sCs), s(sJ)))
            A('s_lshl_b32 %s, %s, 13' % (s(sCs), s(sCs)))
            A('s_add_u32 %s, %s, 0x%x' % (s(sCs), s(sCs), WS_CS))
            def colsum():
                if OPT['rm']:
                    A('s_and_b32 %s, %s, 7' % (s(sT1), s(sRb)))
                    A('s_cmp_eq_u32 %s, 7' % s(sT1))
                    A.branch('s_cbranch_scc1 L_CS0')
                    with Keep(A):
                        for ks in range(2):
                            for u in range(2):
                                for hh in range(2):
                                    A('ds_read_b64_tr_b16 %s, %s offset:%d' % (v(vCf + 12 * ks + 4 * u + 2 * hh, 2), v(vTa), 16384 + 8192 * u + 2048 * ks + 512 * hh))
                    A.label('L_CS0')
                    if OPT['rp']:
                        with Keep(A):
                            for ks in range(2):
                                for hh in range(2):
                                    A('ds_read_b64_tr_b16 %s, %s offset:%d' % (v(vCf + 12 * ks + 8 + 2 * hh, 2), v(vTa + 1), 2048 * ks + 512 * hh))
                A('s_lshl_b32 %s, %s, 9' % (s(sT1), s(sRb)))
                A('s_add_u32 %s, %s, %s' % (s(sT1), s(sT1), s(sCs)))
                A('v_and_b32 %s, 0x1ff, %s' % (v(vT), v(vL16)))
                A('s_waitcnt lgkmcnt(0)')
                for ks in range(2):
                    for u in range(3):
                        A('v_mfma_f32_16x16x32_bf16 %s, %s, %s, %s' % (v(vCa + 4 * u, 4), v(vSel, 4), v(vCf + 12 * ks + 4 * u, 4), '0' if ks == 0 else v(vCa + 4 * u, 4)))
                A('v_mov_b32 %s, %s' % (v(vCa + 1), v(vCa + 4)))
                A('v_mov_b32 %s, %s' % (v(vCa + 2), v(vCa + 8)))
                A('v_mov_b32 %s, %s' % (v(vCa + 3), v(vNon)))
                A('buffer_store_dwordx4 %s, %s, %s, %s offen sc1' % (v(vCa, 4), v(vT), s(SWS, 4), s(sT1)), tag='css')
            if not OPT['rm']:
                colsum()
            A('s_add_u32 %s, %s, 4096' % (s(sStat), s(sCs)))
            gal = ['buffer_load_dwordx4 %s, %s, %s, %s offen offset:%d sc1' % (v(vGa + 4 * i, 4), v(vL16), s(SWS, 4), s(sCs if i < 4 else sStat), 1024 * (i & 3)) for i in range(8)]
        else:
            A('s_lshl_b32 %s, %s, 1' % (s(sStat), s(sRb)))
            A('s_add_u32 %s, %s, %s' % (s(sStat), s(sStat), s(sJ)))
            A('s_lshl_b32 %s, %s, 9' % (s(sStat), s(sStat)))
            A('s_add_u32 %s, %s, 0x%x' % (s(sStat), s(sStat), WS_STAT - 1024))
            A('v_lshlrev_b32 %s, 3, %s' % (v(vTa), v(vLane)))
            gal = ['buffer_load_dwordx2 %s, %s, %s, %s offen sc1' % (v(vGa, 2), v(vTa), s(SWS, 4), s(sStat))]
        def gather():
            emit(A, [(x, 'ga') for x in gal])
        def small():
            if k == 'A':
                srd(A, STMP, 28, 2752)
                A('s_lshl_b32 %s, %s, 6' % (s(sT0), s(sJ)))
                A('s_add_u32 %s, %s, %s' % (s(sC1), s(sC1), s(sT0)))
                A('s_add_u32 %s, %s, %s' % (s(sC2), s(sC2), s(sT0)))
                A('s_add_u32 %s, %s, %s' % (s(sC3), s(sC3), s(sT0)))
                A('s_cmp_eq_u32 %s, 1' % s(sTyp))
                A('s_cselect_b32 %s, 0x%x, %s' % (s(sC1), OOB, s(sC1)))
                A('s_cselect_b32 %s, 0x%x, %s' % (s(sC2), OOB, s(sC2)))
                A('s_cselect_b32 %s, %s, 0x%x' % (s(sC3), s(sC3), OOB))
                A('v_lshrrev_b32 %s, 1, %s' % (v(vT), v(vFl)))
                for u in range(3):
                    A('buffer_load_ushort %s, %s, %s, %s offen' % (v(vB1 + u), v(vT), s(STMP, 4), s(sC1 + u)), tag='b1')
            else:
                srd(A, STMP, 20, 16384)
                A('s_lshl_b32 %s, %s, 1' % (s(sT0), s(sGq)))
                A('s_add_u32 %s, %s, %s' % (s(sT0), s(sT0), s(sJ)))
                A('s_lshl_b32 %s, %s, 10' % (s(sT0), s(sT0)))
                A('s_sub_u32 %s, %s, 2048' % (s(sT0), s(sT0)))
                A('s_lshr_b32 %s, %s, 1' % (s(sT1), s(sM)))
                A('s_add_u32 m0, %s, %d' % (s(sT1), TPH - 2048))
                A('buffer_load_dwordx4 %s, %s, %s offen lds' % (v(vL16), s(STMP, 4), s(sT0)), tag='b1')
        def tables():
            A.wait_vm('ga')
            stamp(A, 4, 3)
            if k == 'B':
                poll(A, 'LST', gal, vGa + 1, None)
                A('v_and_b32 %s, 0xffff, %s' % (v(vT), v(vGa)))
                A('v_lshl_or_b32 %s, %s, 16, %s' % (v(vT), v(vGa), v(vT)))
                A('v_lshrrev_b32 %s, 16, %s' % (v(vT + 1), v(vGa)))
                A('v_and_b32 %s, 0xffff0000, %s' % (v(vGa), v(vGa)))
                A('v_rcp_f32 %s, %s' % (v(vT + 2), v(vGa)))
                A('s_lshr_b32 %s, %s, 2' % (s(sT0), s(sM)))
                A('s_add_u32 %s, %s, %d' % (s(sT0), s(sT0), TB - 1024))
                A('v_add_u32 %s, %s, %s' % (v(vT + 3), s(sT0), v(vTa)))
                A('ds_write_b64 %s, %s' % (v(vT + 3), v(vT, 2)))
                A('s_lshr_b32 %s, %s, 3' % (s(sT0), s(sM)))
                A('s_add_u32 %s, %s, %d' % (s(sT0), s(sT0), TR - 512))
                A('v_lshl_add_u32 %s, %s, 2, %s' % (v(vT + 3), v(vLane), s(sT0)))
                A('ds_write_b32 %s, %s' % (v(vT + 3), v(vT + 2)))
                A('s_lshr_b32 %s, %s, 4' % (s(sT0), s(sM)))
                A('s_add_u32 %s, %s, %d' % (s(sT0), s(sT0), TS - 256))
                A('v_add_u32 %s, %s, %s' % (v(vT + 3), s(sT0), v(vSdw)))
                A('ds_write_b16 %s, %s' % (v(vT + 3), v(vT + 1)))
                A('v_cmp_eq_u32 vcc, 0, %s' % v(vFl))
                A('v_cndmask_b32 %s, 0, %s, vcc' % (v(vT + 4), v(vNon)))
                A('v_add_u32 %s, %d, %s' % (v(vT + 6), TN, v(vFl)))
                A('ds_write_b32 %s, %s' % (v(vT + 6), v(vT + 4)))
            else:
                pre = ['v_min3_u32 %s, %s, %s, %s' % (v(vT), v(vGa + 3), v(vGa + 7), v(vGa + 11)),
                       'v_max3_u32 %s, %s, %s, %s' % (v(vT + 1), v(vGa + 3), v(vGa + 7), v(vGa + 11)),
                       'v_min3_u32 %s, %s, %s, %s' % (v(vT), v(vT), v(vGa + 15), v(vGa + 19)),
                       'v_max3_u32 %s, %s, %s, %s' % (v(vT + 1), v(vT + 1), v(vGa + 15), v(vGa + 19)),
                       'v_min3_u32 %s, %s, %s, %s' % (v(vT), v(vT), v(vGa + 23), v(vGa + 27)),
                       'v_max3_u32 %s, %s, %s, %s' % (v(vT + 1), v(vT + 1), v(vGa + 23), v(vGa + 27)),
                       'v_min_u32 %s, %s, %s' % (v(vT), v(vT), v(vGa + 31)),
                       'v_max_u32 %s, %s, %s' % (v(vT + 1), v(vT + 1), v(vGa + 31)),
                       'v_cmp_eq_u32 vcc, %s, %s' % (v(vT), v(vT + 1)),
                       'v_cndmask_b32 %s, 0, %s, vcc' % (v(vT), v(vT))]
                poll(A, 'LCS', gal, vT, None, pre=pre)
                for st_ in (16, 8, 4):
                    for r in range(st_):
                        if r & 3 != 3:
                            A('v_add_f32 %s, %s, %s' % (v(vGa + r), v(vGa + r), v(vGa + st_ + r)))
                for u in range(3):
                    A('v_mov_b32 %s, %s' % (v(vGa + 4 + u), v(vGa + u)))
                for u in range(3):
                    A('v_permlane32_swap_b32 %s, %s' % (v(vGa + u), v(vGa + 4 + u)))
                for u in range(3):
                    A('v_add_f32 %s, %s, %s' % (v(vGa + u), v(vGa + u), v(vGa + 4 + u)))
                A('s_mul_i32 %s, %s, 768' % (s(sT0), s(sJ)))
                A('s_add_u32 %s, %s, %d' % (s(sT0), s(sT0), TA))
                A('v_lshl_add_u32 %s, %s, 1, %s' % (v(vT), v(vFl), s(sT0)))
                for u in range(3):
                    p = vGa + 8 + 2 * u
                    A('v_cvt_pk_bf16_f32 %s, %s, %s' % (v(p), v(vGa + u), v(vGa + u)))
                    A('v_lshlrev_b32 %s, 16, %s' % (v(p), v(p)))
                    A('v_sub_f32 %s, %s, %s' % (v(p), v(vGa + u), v(p)))
                    A('v_cvt_pk_bf16_f32 %s, %s, %s' % (v(p), v(vGa + u), v(p)))
                    A('v_mov_b32 %s, %s' % (v(p + 1), v(vB1 + u)))
                    A('ds_write_b64 %s, %s offset:%d' % (v(vT), v(p, 2), 256 * u))
        PS = {0: {4: ('p1', ''), 5: ('p2 p3 p4 p5', ''), 6: ('p6 p7 u0', ''), 7: ('', 'u1')},
              1: {4: ('', 'p1'), 5: ('', 'p2 p3'), 6: ('', 'p4 p5 p6 p7'), 7: ('', 'u0')},
              2: {7: ('', 'p1 p2 p3 p4 p5 p6 p7')},
              3: {4: ('', 'p1'), 5: ('', 'p2 p3 p4 p5'), 6: ('', 'p6 p7 u0'), 7: ('u1', '')},
              4: {4: ('', 'p1'), 5: ('', 'p2 p3 p4 p5'), 6: ('', 'p6 p7'), 7: ('u0', '')},
              5: {6: ('', 'p1 p2 p3 p4'), 7: ('p5 p6 p7', '')},
              6: {4: ('', 'p1'), 5: ('', 'p2 p3 p4 p5'), 6: ('', 'p6 p7'), 7: ('u0', 'u1')},
              7: {8: ('p1 p2 p3 p4 p5 p6 p7', '')},
              8: {6: ('', 'p1'), 7: ('p2', ''), 8: ('p3 p4 p5 p6 p7', '')},
              9: {6: ('', 'p1 p2'), 7: ('', 'p3'), 8: ('p4 p5 p6 p7', '')},
              10: {5: ('', 'p1'), 6: ('', 'p2'), 7: ('p3', 'p4'), 8: ('p5 p6 p7', '')},
              11: {7: ('p1 p2', ''), 8: ('p3 p4 p5 p6 p7', '')}}[OPT['ps']]
        nw2 = 0
        def extra(spec):
            n = 0
            for it in spec.split():
                emit(A, grp_p3(int(it[1:])) if it[0] == 'p' else grp_w2(int(it[1:])))
                n += it[0] == 'u'
            return n
        for iv in range(8):
            pre_, post_ = PS.get(iv, ('', ''))
            if iv == GI:
                gather()
            if iv < 5:
                issue(SCHED[iv + 1], iv)
            if iv == 0 and k == 'A' and OPT['rm']:
                A('s_waitcnt lgkmcnt(0)')
            if iv == 1 and k == 'A' and OPT['rm']:
                colsum()
            if iv == 2:
                small()
            if iv == OPT['wi'] and OPT['warm'] == 2:
                lwarm()
            if iv == 3:
                prep_kv()
            if iv == 5:
                prep2()
            nw2 += extra(pre_)
            if iv == 7:
                tables()
                stamp(A, 5, 3)
                nw2 += extra(post_)
                stamp(A, 6, 3)
            if iv < 7:
                A.wait_vm('s%d' % (iv + 1))
                nw2 += extra(post_)
                bar(iv + 1)
        A('s_waitcnt lgkmcnt(0)')
        A.lg = []
        if k == 'A':
            vmA = list(A.vm)
            A.branch('s_branch L_JOIN')
    A.label('L_JOIN')
    vmB = list(A.vm)
    if vmA != vmB:
        assert vmA[-len(vmB):] == vmB or vmB[-len(vmA):] == vmA or not vmA or not vmB, (vmA, vmB)
        A.vm = list(vmA if len(vmA) > len(vmB) else vmB)
    A('s_barrier')
    stamp(A, 3)
    if not OPT['xp']:
        nw2 += extra(PS.get(8, ('', ''))[0])
    vAcc, vW, vR = 0, 64, 176
    def wread(slot, lds, tag):
        base, off = (vA0, lds) if lds < L_W else (vB0, lds - L_W)
        return [('ds_read_b64_tr_b16 %s, %s offset:%d' % (v(vW + 16 * slot + 8 * c + 4 * nt + 2 * hh, 2), v(base + nt), off + 2048 * c + 1024 * hh), tag)
                for c in range(2) for nt in range(2) for hh in range(2)]
    sFl, sAct = sA, sB
    vFv, vLa, vLt = 250, 251, 240
    fload = 'buffer_load_dword %s, %s, %s, %s offen sc1' % (v(vFv), v(vFl), s(SWS, 4), s(sFl))
    RB = [vR + 16 * ((i + 2) & 3) for i in range(11)]
    def alist(i):
        m, c = UL[i]
        L = ['s_add_u32 %s, %s, %d' % (s(sT1), s(sO[4] if m == 8 else sO[5]), c * 4096)]
        for q in range(4):
            L.append(('buffer_load_dwordx4 %s, %s, %s, %s offen offset:%d sc1' % (v(RB[i] + 4 * q, 4), v(vL16), s(SWS, 4), s(sT1), 1024 * q), 'a%d' % i))
        return L
    def aload(i):
        emit(A, alist(i))
    def lflag(val):
        A('v_mov_b32 %s, %d' % (v(vFw + 1), val))
        A('ds_write_b32 %s, %s' % (v(vFw), v(vFw + 1)))
    A('s_cmp_eq_u32 %s, 1' % s(sTyp))
    A.branch('s_cbranch_scc1 LX_START')
    vm8 = list(A.vm)
    for X in (0, 1):
        if X:
            A.label('LX_START')
            A.vm = list(vm8); A.lg = []
        XS = X and OPT['xs']
        UP = UPX if X and not XS else UPY
        WIN = XS if XS else 2 if X else OPT['win']
        nx = [nw2]
        TRS = ['u%d' % i for i in range(7)] + (['w2', 'u7', 'w0', 'w1', 'w3'] if X and not XS else ['w0', 'w1', 'w3', 'u7', 'w2'])
        def wo(i):
            L = ['s_lshl_b32 %s, %s, 17' % (s(sO[0]), s(sJ))]
            if i:
                L.append('s_add_u32 %s, %s, %d' % (s(sO[0]), s(sO[0]), i * 32768))
            return L + quad((v2o, v2o), SWO, 32768 + 16384 * (i & 1) + 65536 * (i >> 1), 'w%d' % i)
        cap = [11 if X else 11 - OPT['yd']]
        XP_ = {}
        if OPT['xp']:
            assert OPT['ps'] == 7
            if X:
                XP_ = {1: {1: 'p1 p2 p3', 2: 'p4 p5', 3: 'p6 p7'}, 2: {1: 'p1 p2', 2: 'p3 p4', 3: 'p5 p6', 4: 'p7'},
                       3: {1: 'p1 p2 p3 p4', 2: 'p5 p6 p7'}}[OPT['xp']]
            else:
                extra(PS[8][0])
        def w2_upto(n):
            while nx[0] <= min(n, cap[0]):
                k = TRS[nx[0]]
                emit(A, grp_w2(int(k[1:]), UP) if k[0] == 'u' else wo(int(k[1:])))
                if nx[0] == OPT['fa']:
                    A(fload, tag='fl')
                extra(XP_.get(nx[0], ''))
                nx[0] += 1
        def gate(i, mask):
            A.wait_vm('fl')
            poll(A, 'LA%d%d' % (X, i), fload, vFv, mask)
        def unit(i):
            A.wait_vm('a%d' % i)
            if i in (0, 3):
                stamp(A, {0: 1, 3: 2}[i], 6)
            if i in (4, 7, 8, 10):
                stamp(A, {4: 2, 7: 3, 8: 4, 10: 5}[i], 7)
            if i >= 7:
                A.wait_lg('b%d' % i)
            wb = vW + 16 * (i % 7)
            for c in range(2):
                for nt in range(2):
                    for rt in range(2):
                        acc = vAcc + 16 * (2 * nt + rt)
                        A('v_mfma_f32_32x32x16_bf16 %s, %s, %s, %s' % (v(acc, 16), v(wb + 8 * c + 4 * nt, 4), v(RB[i] + 8 * c + 4 * rt, 4), '0' if (i == 0 and c == 0) else v(acc, 16)))
        w2_upto(OPT['xs0'] if XS else WIN - 1 - (0 if X else OPT['wl']))
        A('s_lshl_b32 %s, %s, 3' % (s(sFl), s(sRb2)))
        A('s_add_u32 %s, %s, %s' % (s(sFl), s(sFl), s(sJ)))
        A('s_lshl_b32 %s, %s, 7' % (s(sFl), s(sFl)))
        A('s_add_u32 %s, %s, 0x%x' % (s(sFl), s(sFl), WS_F))
        A('s_mul_i32 %s, %s, %d' % (s(sAct), s(sRb2), NU * 4096))
        A('s_lshl_b32 %s, %s, 15' % (s(sO[4]), s(sJ)))
        A('s_add_u32 %s, %s, %s' % (s(sO[4]), s(sO[4]), s(sAct)))
        A('s_mul_i32 %s, %s, %d' % (s(sO[5]), s(sJ), 3 * 4096))
        A('s_add_u32 %s, %s, %s' % (s(sO[5]), s(sO[5]), s(sAct)))
        if not XP_:
            A.wait_vm('p3')
            A('ds_write_b32 %s, %s' % (v(vFw), v(vFw + 1)))
        if not X:
            w2_upto(WIN - 1)
        for i in range(7):
            if XS and i == OPT['xs0'] + 1:
                A('v_mov_b32 %s, %d' % (v(vLa), FL_KV))
                lds_wait(A, 'LXK', v(vLa), 4, 1, vLt)
                w2_upto(i - 1 + WIN)
            if XP_ and i == max(XP_) + 1:
                A.wait_vm('p3')
                A('ds_write_b32 %s, %s' % (v(vFw), v(vFw + 1)))
            A.wait_vm('u%d' % i)
            emit(A, wread(i, UP[i], 'm'))
            A.wait_lg(None)
            if not XS or i > OPT['xs0']:
                w2_upto(i + WIN)
        if X and not XS:
            A('v_mov_b32 %s, %d' % (v(vLa), FL_KV))
            lds_wait(A, 'LXK', v(vLa), 4, 1, vLt)
            w2_upto(11)
        for i in range(7, 12):
            if nx[0] <= cap[0]:
                A.wait_vm(TRS[i])
                w2_upto(i + WIN)
        stamp(A, 8)
        stamp(A, 3, 6)
        LA, LB, L8 = (OPT['lax'], OPT['lbx'], OPT['l8x']) if X else (OPT['la'], OPT['lb'], OPT['l8'])
        def late():
            A('v_mov_b32 %s, %d' % (v(vLa), FL_PB))
            lds_wait(A, 'LPB%d' % X, v(vLa), 4, 2, vLt)
            for i in range(8, 11):
                emit(A, grp_w2(i, UP))
        def lread():
            A.wait_vm('u10')
            for i in range(8, 11):
                emit(A, wread(i - 7, UP[i], 'b%d' % i))
        if not X:
            sKf, sK = (SB, [SB + 1, SB + 2, SB + 3, 6, 7]) if OPT['yd'] else (sO[0], [sO[1], sO[2], sO[3], 6, 7])
            A('s_lshl_b32 %s, %s, 2' % (s(sT0), s(sGq)))
            A('s_add_u32 %s, %s, %s' % (s(sT0), s(sT0), s(sJ)))
            A('s_lshl_b32 %s, %s, 7' % (s(sKf), s(sT0)))
            A('s_add_u32 %s, %s, 0x%x' % (s(sKf), s(sKf), WS_KF))
            kfl = 'buffer_load_dword %s, %s, %s, %s offen sc1' % (v(vKf), v(vFl), s(SWS, 4), s(sKf))
            A(kfl, tag='kf')
            A('s_mul_i32 %s, %s, %d' % (s(sT0), s(sT0), 2 * KVS))
            for i_, o_ in enumerate((0, KVS, 4096, KVS + 4096, 8192)):
                A('s_add_u32 %s, %s, 0x%x' % (s(sK[i_]), s(sT0), WS_KVP + o_))
        def gate_a():
            gate(0, '0xf')
            stamp(A, 4)
            for i in range(LA if X else 2):
                aload(i)
        if X or not OPT['ka']:
            gate_a()
        elif OPT['ka'] >= 2:
            A(fload, tag='fl')
        if not X:
            vK, vZ, vD = 0, 176, 180
            KL = [('buffer_load_dwordx4 %s, %s, %s, %s offen sc1' % (v(vZ, 4), v(vZo), s(SWS, 4), s(sK[4])), 'kz')]
            for i in range(16):
                c, q = i & 1, i >> 1
                KL.append(('buffer_load_dwordx4 %s, %s, %s, %s offen offset:%d sc1' % (v(vK + 4 * i, 4), v(vL16), s(SWS, 4), s(sK[c + 2 * (q >> 2)]), 1024 * (q & 3)), 'k%d' % i))
            pre = []
            if OPT['kpf'] == 1:
                emit(A, KL)
            if OPT['kpf'] >= 2:
                A('s_and_b32 %s, %s, 1' % (s(sT0), s(sRb)))
                A('s_mul_i32 %s, %s, %d' % (s(sT0), s(sT0), KVS))
                if OPT['kpf'] == 3:
                    A('s_lshl_b32 %s, %s, 11' % (s(sT1), s(sRb)))
                    A('s_and_b32 %s, %s, 4096' % (s(sT1), s(sT1)))
                    A('s_add_u32 %s, %s, %s' % (s(sT0), s(sT0), s(sT1)))
                    A('v_lshl_add_u32 %s, %s, 5, %s' % (v(vK), v(vFl), s(sT0)))
                else:
                    A('v_lshl_add_u32 %s, %s, 7, %s' % (v(vK), v(vLane), s(sT0)))
                pre = ['buffer_load_dword %s, %s, %s, %s offen sc1' % (v(vK + 1), v(vK), s(SWS, 4), s(sK[0]))]
                emit(A, pre)
            A.wait_vm('kf')
            poll(A, 'LK', [kfl] + pre + ([fload] if OPT['ka'] else []), vKf, '0xffff')
            stamp(A, 1, 2)
            emit(A, KL)
            if OPT['ka']:
                gate_a()
            if OPT['yw'] == 0:
                cap[0] = 11
                w2_upto(11)
            A.raw('VK_B:')
            A.wait_vm('kz')
            A('v_mfma_f32_16x16x32_bf16 %s, %s, %s, 0' % (v(vD + 8, 4), v(vSg, 4), v(vZ, 4)))
            zl = []
            for ctl in ('quad_perm:[1,0,3,2]', 'quad_perm:[2,3,0,1]', 'row_half_mirror'):
                for r in range(4):
                    zl.append('v_add_f32_dpp %s, %s, %s %s row_mask:0xf bank_mask:0xf' % (v(vD + 8 + r), v(vD + 8 + r), v(vD + 8 + r), ctl))
            zl.append('v_cvt_pk_bf16_f32 %s, %s, %s' % (v(vD + 8), v(vD + 8), v(vD + 9)))
            zl.append('v_cvt_pk_bf16_f32 %s, %s, %s' % (v(vD + 9), v(vD + 10), v(vD + 11)))
            zl.append('ds_write_b64 %s, %s offset:256' % (v(vKw + 1), v(vD + 8, 2)))
            for i in range(16):
                A.wait_vm('k%d' % i)
                d = vD + 4 * (i & 1)
                A('v_mfma_f32_16x16x32_bf16 %s, %s, %s, %s' % (v(d, 4), v(vSg, 4), v(vK + 4 * i, 4), '0' if i < 2 else v(d, 4)))
                if i & 1:
                    A('v_max3_u32 %s, %s, %s, %s' % (v(vKf), v(vZ if i == 1 else vKf), v(vK + 4 * i - 4), v(vK + 4 * i)))
                if i >= 4:
                    emit(A, zl[:2]); zl = zl[2:]
            vcheck(A, 'VK', [vKf], vKf, KL, back='VK_B')
            for c in range(2):
                d = vD + 4 * c
                A('v_cvt_pk_bf16_f32 %s, %s, %s' % (v(d), v(d), v(d + 1)))
                A('v_cvt_pk_bf16_f32 %s, %s, %s' % (v(d + 1), v(d + 2), v(d + 3)))
                A('ds_write_b64 %s, %s offset:%d' % (v(vKw), v(d, 2), 544 * c))
            A('ds_write_b32 %s, %s offset:%d' % (v(vFw), v(vFw + 1), FL_KV - FL_P3))
            stamp(A, 3, 2)
            cap[0] = 11
            w2_upto(11)
            if OPT['bq'] == 3:
                A('v_mov_b32 %s, %d' % (v(vLa), FL_EX))
                lds_wait(A, 'LYK', v(vLa), 4, 1, vLt)
            if OPT['roll']:
                A(fload, tag='fl')
            for i in range(2, 4 if OPT['roll'] else LA):
                aload(i)
            if OPT['bq'] == 4:
                A('v_mov_b32 %s, %d' % (v(vLa), FL_EX))
                lds_wait(A, 'LYK', v(vLa), 4, 1, vLt)
        if X and OPT['xh']:
            A('v_mov_b32 %s, %d' % (v(vLa), FL_PB))
            lds_wait(A, 'LXH', v(vLa), 4, 2, vLt)
        if OPT['roll']:
            assert not X or LA == 4
            seq = {1: 'U0 W U1 B a4 a5 F L U2 a6 U3 a7 U4 C a8 R U5 a9 U6 a10 x U7 U8 U9 U10',
                   2: 'L U0 W U1 B a4 a5 F U2 a6 U3 a7 R U4 C a8 U5 a9 U6 a10 x U7 U8 U9 U10',
                   3: 'U0 W U1 B a4 a5 U2 a6 F U3 a7 L U4 U5 C a8 a9 U6 a10 R x U7 U8 U9 U10',
                   5: 'L U0 U1 B a4 a5 F U2 a6 W U3 a7 R U4 C a8 U5 a9 U6 a10 x U7 U8 U9 U10',
                   6: 'U0 U1 B a4 a5 F L U2 a6 W U3 a7 U4 C a8 R U5 a9 U6 a10 x U7 U8 U9 U10',
                   4: 'U0 W B a4 U1 a5 F L U2 a6 U3 a7 U4 C a8 R U5 a9 U6 a10 x U7 U8 U9 U10'}[OPT['rollx'] if X else OPT['roll']]
            if X:
                A(fload, tag='fl')
            for it in seq.split():
                if it == 'U10' and OPT['lnf'] >= 2:
                    A.wait_vm('a10')
                    stamp(A, 5, 7)
                    A.wait_lg('b10')
                    for n in range(4 + OPT['lnd']):
                        if n < 4:
                            for c in range(2):
                                acc = vAcc + 16 * n
                                A('v_mfma_f32_32x32x16_bf16 %s, %s, %s, %s' % (v(acc, 16), v(vW + 48 + 8 * c + 4 * (n >> 1), 4), v(RB[10] + 8 * c + 4 * (n & 1), 4), v(acc, 16)))
                        if n == 3:
                            stamp(A, 6)
                        if n >= OPT['lnd']:
                            emit(A, wr[4 * (n - OPT['lnd']):4 * (n - OPT['lnd']) + 4])
                    A.branch('s_branch F_START')
                elif it[0] == 'U':
                    unit(int(it[1:]))
                    if it == 'U8' and OPT['lnf'] >= 2:
                        A('s_lshl_b32 %s, %s, 1' % (s(sT0), s(sM)))
                        wr = reduce_write(A, vAcc, 64, sT0)
                    if it == 'U3':
                        stamp(A, 5)
                elif it[0] == 'a':
                    aload(int(it[1:]))
                elif it == 'W':
                    A.wait_vm('w2')
                    lflag(3)
                    emit(A, wread(0, UP[7], 'b7'))
                elif it == 'B':
                    stamp(A, 2, 2)
                    gate(4, '0xff')
                    stamp(A, 8, 2)
                    stamp(A, 1, 7)
                elif it == 'C':
                    gate(8, '0x3f00')
                    stamp(A, 4, 2)
                    stamp(A, 8, 7)
                elif it == 'F':
                    A(fload, tag='fl')
                elif it == 'L':
                    late()
                elif it == 'R':
                    lread()
                elif it == 'x':
                    xres(A, 240, 244)
            if not X and OPT['lnf'] < 2:
                A.branch('s_branch L_RED')
            continue
        for i in range(4):
            unit(i)
            if i + LA < 4:
                aload(i + LA)
            if i == (OPT['yf'] if OPT['yd'] and not X else 0):
                A.wait_vm('w2')
                lflag(3)
                emit(A, wread(0, UP[7], 'b7'))
            if i == 2:
                A(fload, tag='fl')
        stamp(A, 5)
        if L8 == 0:
            late()
        if not X and OPT['bq'] == 2:
            A('v_mov_b32 %s, %d' % (v(vLa), FL_EX))
            lds_wait(A, 'LYK', v(vLa), 4, 1, vLt)
        stamp(A, 2, 2)
        gate(4, '0xff')
        stamp(A, 8, 2)
        stamp(A, 8, 6)
        stamp(A, 1, 7)
        for i in range(4, 4 + LB):
            aload(i)
        for i in range(4, 8):
            unit(i)
            if i + LB < 8:
                aload(i + LB)
            if i == 4 and L8 == 0:
                lread()
            if i == max(4, 8 - LB) and L8 == 1:
                late()
            if i == 6:
                A(fload, tag='fl')
        if L8 == 2:
            late()
            A(fload, tag='fl')
        gate(8, '0x3f00')
        stamp(A, 4, 2)
        stamp(A, 8, 7)
        for i in range(8, 11):
            aload(i)
        if L8:
            lread()
        xres(A, 240, 244)
        for i in range(8, 11):
            unit(i)
        if not X:
            A.branch('s_branch L_RED')
    if OPT['lnf'] >= 2:
        return
    A.label('L_RED')
    stamp(A, 6)
    A('s_lshl_b32 %s, %s, 1' % (s(sT0), s(sM)))
    wr = reduce_write(A, vAcc, 64, sT0)
    A('s_mov_b32 %s, 0x%x' % (s(sO[0]), LN2))
    A('s_mov_b32 %s, 0x%x' % (s(sO[1]), LN2))
    for n, w in enumerate(wr):
        r = vAcc + 4 * n
        if not OPT['lnf']:
            A('v_pk_mul_f32 %s, %s, %s' % (v(r, 2), v(r, 2), s(sO[0], 2)))
            A('v_pk_mul_f32 %s, %s, %s' % (v(r + 2, 2), v(r + 2, 2), s(sO[0], 2)))
        A(w)
    A.branch('s_branch F_START')

def gen_compute(A):
    A.label('C_START')
    A.vm = []; A.lg = []
    vX = 0
    def ACC(u, r): return 128 + 32 * u + 16 * r
    vWf, vXf = 192, 216
    vXo, vXt = 228, 232
    vPw, vVw, vPr, vVr, vSt, vPo, vF2 = 236, 237, 238, 239, 240, 241, 242
    vR0 = 236
    vWa, vTa, vTb, vTr, vPa, vFo, vWm, vNon = 244, 245, 246, 247, 248, 249, 250, 252
    vR = [232, 234]
    vT = 0
    sCh, sRg, sP2 = sA, sB, sM
    sL2, sHO = 52, 54
    A('s_and_b32 %s, %s, 1' % (s(sCh), s(sJ)))
    A('s_lshr_b32 %s, %s, 1' % (s(sRg), s(sJ)))
    A('s_lshl_b32 %s, %s, 1' % (s(sP2), s(sRb)))
    A('s_add_u32 %s, %s, %s' % (s(sP2), s(sP2), s(sRg)))
    A('s_mov_b32 %s, 0x%x' % (s(sL2), LOG2E))
    A('s_mov_b32 %s, 0x%x' % (s(sL2 + 1), LOG2E))
    A('s_mov_b32 %s, 0.5' % s(sHO))
    A('s_mov_b32 %s, 1.0' % s(sHO + 1))
    A('v_mov_b32 %s, 0x%x' % (v(vT), OOB))
    A('v_cmp_eq_u32 vcc, 0, %s' % v(vLane))
    A('v_cndmask_b32 %s, %s, 0, vcc' % (v(vFo), v(vT)))
    tr_addr(A, vWa, vT, 8, s(sCh))
    A('v_add_u32 %s, %d, %s' % (v(vWa), L_W, v(vWa)))
    A('v_lshrrev_b32 %s, 5, %s' % (v(vT), v(vLane)))
    A('v_and_b32 %s, 31, %s' % (v(vT + 1), v(vLane)))
    A('v_bfe_u32 %s, %s, 1, 3' % (v(vT + 2), v(vLane)))
    A('v_xor_b32 %s, %s, %s' % (v(vT + 2), v(vT + 2), v(vT)))
    A('v_lshlrev_b32 %s, 4, %s' % (v(vT + 2), v(vT + 2)))
    A('v_lshl_add_u32 %s, %s, 7, %s' % (v(vT + 2), v(vT + 1), v(vT + 2)))
    A('s_lshl_b32 %s, %s, 12' % (s(sT0), s(sJ)))
    A('v_add_u32 %s, %s, %s' % (v(vXo), s(sT0), v(vT + 2)))
    for tt in range(1, 4):
        A('v_xor_b32 %s, %d, %s' % (v(vXo + tt), 32 * tt, v(vXo)))
    for tt in range(4):
        A('v_xor_b32 %s, 0x1000, %s' % (v(vXt + tt), v(vXo + tt)))
    A('v_lshlrev_b32 %s, 3, %s' % (v(vT + 2), v(vT + 1)))
    A('v_lshl_add_u32 %s, %s, 2, %s' % (v(vT + 2), v(vT), v(vT + 2)))
    A('v_add_u32 %s, %d, %s' % (v(vTa), TA, v(vT + 2)))
    A('s_lshl_b32 %s, %s, 8' % (s(sT0), s(sJ)))
    A('s_add_u32 %s, %s, %d' % (s(sT0), s(sT0), TB))
    A('v_add_u32 %s, %s, %s' % (v(vTb), s(sT0), v(vT + 2)))
    A('s_lshl_b32 %s, %s, 7' % (s(sT0), s(sJ)))
    A('s_add_u32 %s, %s, %d' % (s(sT0), s(sT0), TR))
    A('v_lshl_add_u32 %s, %s, 2, %s' % (v(vTr), v(vT + 1), s(sT0)))
    A('v_bfe_u32 %s, %s, 2, 2' % (v(vT + 2), v(vLane)))
    A('v_lshl_add_u32 %s, %s, 2, %s' % (v(vT + 2), v(vT), v(vT + 2)))
    A('v_bfe_u32 %s, %s, 4, 1' % (v(vT + 3), v(vLane)))
    A('v_bfe_u32 %s, %s, 1, 1' % (v(vT + 4), v(vLane)))
    A('v_lshl_add_u32 %s, %s, 1, %s' % (v(vT + 4), v(vT + 3), v(vT + 4)))
    A('v_lshlrev_b32 %s, 3, %s' % (v(vT + 4), v(vT + 4)))
    A('v_lshl_add_u32 %s, %s, 5, %s' % (v(vPa), v(vT + 2), v(vT + 4)))
    A('s_and_b32 %s, %s, %s' % (s(sT0), s(sCh), s(sTyp)))
    A('s_lshl_b32 %s, %s, 10' % (s(sT0), s(sT0)))
    A('s_add_u32 %s, %s, %d' % (s(sT0), s(sT0), TPH))
    A('v_add_u32 %s, %s, %s' % (v(vPa), s(sT0), v(vPa)))
    A('v_and_b32 %s, 1, %s' % (v(vT + 2), v(vLane)))
    A('v_bfe_u32 %s, %s, 2, 1' % (v(vT + 3), v(vLane)))
    A('v_xor_b32 %s, %s, %s' % (v(vT + 4), v(vT + 3), v(vT)))
    A('v_lshl_or_b32 %s, %s, 1, %s' % (v(vT + 4), v(vT + 4), v(vT + 2)))
    A('v_bfe_u32 %s, %s, 1, 1' % (v(vT + 5), v(vLane)))
    A('v_lshl_or_b32 %s, %s, 2, %s' % (v(vT + 4), v(vT + 5), v(vT + 4)))
    A('v_lshlrev_b32 %s, 4, %s' % (v(vT + 4), v(vT + 4)))
    A('v_lshl_add_u32 %s, %s, 7, %s' % (v(vT + 4), v(vT + 1), v(vT + 4)))
    A('s_lshl_b32 %s, %s, 16' % (s(sT1), s(sCh)))
    A('s_add_u32 %s, %s, %d' % (s(sT1), s(sT1), PH0))
    A('s_lshl_b32 %s, %s, 12' % (s(sT0), s(sJ)))
    A('s_add_u32 %s, %s, %s' % (s(sT0), s(sT0), s(sT1)))
    A('v_add_u32 %s, %s, %s' % (v(vPw), s(sT0), v(vT + 4)))
    A('v_bfe_u32 %s, %s, 4, 1' % (v(vT + 4), v(vLane)))
    A('v_xor_b32 %s, %s, %s' % (v(vT + 4), v(vT + 4), v(vT + 3)))
    A('v_xor_b32 %s, %s, %s' % (v(vT + 2), v(vT + 2), v(vT)))
    A('v_lshl_or_b32 %s, %s, 1, %s' % (v(vT + 4), v(vT + 2), v(vT + 4)))
    A('v_bfe_u32 %s, %s, 3, 1' % (v(vT + 2), v(vLane)))
    A('v_xor_b32 %s, %s, %s' % (v(vT + 2), s(sRg), v(vT + 2)))
    A('v_lshl_or_b32 %s, %s, 2, %s' % (v(vT + 4), v(vT + 2), v(vT + 4)))
    A('v_lshl_or_b32 %s, %s, 1, %s' % (v(vT + 4), v(vT + 4), v(vT + 5)))
    A('v_lshlrev_b32 %s, 3, %s' % (v(vT + 4), v(vT + 4)))
    A('v_bfe_u32 %s, %s, 2, 2' % (v(vT + 2), v(vLane)))
    A('v_lshl_add_u32 %s, %s, 2, %s' % (v(vT + 2), v(vT), v(vT + 2)))
    A('v_lshl_add_u32 %s, %s, 7, %s' % (v(vT + 4), v(vT + 2), v(vT + 4)))
    A('s_lshl_b32 %s, %s, 13' % (s(sT0), s(sRg)))
    A('s_add_u32 %s, %s, %s' % (s(sT0), s(sT0), s(sT1)))
    A('v_add_u32 %s, %s, %s' % (v(vPr), s(sT0), v(vT + 4)))
    A('s_lshl_b32 %s, %s, 13' % (s(sT1), s(sCh)))
    A('s_add_u32 %s, %s, %d' % (s(sT1), s(sT1), VB))
    A('s_lshl_b32 %s, %s, 11' % (s(sT0), s(sJ)))
    A('s_add_u32 %s, %s, %s' % (s(sT0), s(sT0), s(sT1)))
    A('v_add_u32 %s, %s, %s' % (v(vVw), s(sT0), v(vL16)))
    A('s_mul_i32 %s, %s, %d' % (s(sT0), s(sRg), 4096 + 256))
    A('s_add_u32 %s, %s, %s' % (s(sT0), s(sT0), s(sT1)))
    A('v_add_u32 %s, %s, %s' % (v(vT + 2), s(sT0), v(vL16)))
    A('s_lshl_b32 %s, %s, 7' % (s(sT0), s(sRg)))
    A('s_add_u32 %s, %s, %d' % (s(sT0), s(sT0), TS))
    A('v_lshl_add_u32 %s, %s, 4, %s' % (v(vT + 3), v(vT), s(sT0)))
    A('v_cmp_gt_u32 vcc, 16, %s' % v(vT + 1))
    A('v_cndmask_b32 %s, %s, %s, vcc' % (v(vVr), v(vT + 3), v(vT + 2)))
    A('v_mov_b32 %s, 1024' % v(vT + 2))
    A('v_cndmask_b32 %s, 32, %s, vcc' % (v(vSt), v(vT + 2)))
    A('v_lshl_add_u32 %s, %s, 4, %s' % (v(vT + 2), v(vT), v(vT + 1)))
    A('s_lshl_b32 %s, %s, 9' % (s(sT0), s(sRb)))
    A('v_lshl_add_u32 %s, %s, 4, %s' % (v(vT + 2), v(vT + 2), s(sT0)))
    A('v_mov_b32 %s, 0x%x' % (v(vT + 4), OOB))
    A('v_cndmask_b32 %s, %s, %s, vcc' % (v(vPo), v(vT + 4), v(vT + 2)))
    A('s_lshl_b32 %s, %s, 5' % (s(sT0), s(sRb)))
    A('s_add_u32 %s, %s, 8192' % (s(sT0), s(sT0)))
    A('v_lshl_add_u32 %s, %s, 4, %s' % (v(vT + 2), v(vT), s(sT0)))
    A('v_cmp_eq_u32 vcc, 16, %s' % v(vT + 1))
    A('v_cndmask_b32 %s, %s, %s, vcc' % (v(vPo), v(vPo), v(vT + 2)))
    A('s_lshl_b32 %s, %s, 1' % (s(sT0), s(sG)))
    A('v_add_u32 %s, %s, %s' % (v(vT + 2), s(sT0), v(vLane)))
    A('v_mul_u32_u24 %s, 43, %s' % (v(vT + 3), v(vT + 2)))
    A('v_lshrrev_b32 %s, 7, %s' % (v(vT + 3), v(vT + 3)))
    A('v_mul_u32_u24 %s, %d, %s' % (v(vT + 3), 128 - 24, v(vT + 3)))
    A('v_lshl_add_u32 %s, %s, 3, %s' % (v(vT + 2), v(vT + 2), v(vT + 3)))
    A('v_cmp_gt_u32 vcc, 2, %s' % v(vLane))
    A('v_cndmask_b32 %s, %s, %s, vcc' % (v(vF2), v(vT + 4), v(vT + 2)))
    if OPT['warm'] == 1:
        A('v_lshrrev_b32 %s, 2, %s' % (v(vT + 2), v(vT + 1)))
        A('v_and_b32 %s, 3, %s' % (v(vT + 3), v(vLane)))
        A('v_lshlrev_b32 %s, 2, %s' % (v(vT + 3), v(vT + 3)))
        A('v_lshl_add_u32 %s, %s, 7, %s' % (v(vT + 2), v(vT + 2), v(vT + 3)))
        A('v_lshl_add_u32 %s, %s, 15, %s' % (v(vT + 2), v(vT), v(vT + 2)))
        A('s_lshr_b32 %s, s2, 3' % s(sT0))
        if OPT['wx']:
            A('s_andn2_b32 %s, %s, 8' % (s(sT0), s(sT0)))
        A('s_lshl_b32 %s, %s, 10' % (s(sT0), s(sT0)))
        if OPT['m2']:
            A('v_bfe_u32 %s, %s, 2, 2' % (v(vT + 2), v(vLane)))
            A('v_lshl_add_u32 %s, %s, 7, %s' % (v(vT + 2), v(vT + 2), v(vT + 3)))
            A('v_lshrrev_b32 %s, 4, %s' % (v(vT + 3), v(vLane)))
            A('v_lshl_add_u32 %s, %s, 15, %s' % (v(vT + 2), v(vT + 3), v(vT + 2)))
            A('s_and_b32 %s, %s, 4' % (s(sT1), s(sCb)))
            A('s_lshl_b32 %s, %s, 7' % (s(sT1), s(sT1)))
            A('s_add_u32 %s, %s, %s' % (s(sT0), s(sT0), s(sT1)))
        A('v_add_u32 %s, %s, %s' % (v(vWm), s(sT0), v(vT + 2)))
        A('s_lshl_b32 %s, %s, 18' % (s(sO[3]), s(sJ)))
        A('s_mul_i32 %s, %s, %d' % (s(sO[4]), s(sJ), 3 * 32768))
        A('s_lshl_b32 %s, %s, 17' % (s(sO[5]), s(sJ)))
    A('s_mul_i32 %s, %s, 768' % (s(sO[2]), s(sCh)))
    A('s_waitcnt lgkmcnt(0)')
    srd(A, SWS, 36, WS_SIZE)
    srd(A, SX, 16, 2048 * 1024)
    srd(A, SW2, 30, 1376 * 1024)
    srd(A, SWO, 22, 512 * 1024)
    stamp(A, 0)
    if OPT['prio']:
        A('s_setprio %d' % OPT['prio'])
    A('s_cmp_eq_u32 %s, 1' % s(sTyp))
    A.branch('s_cbranch_scc1 CX_START')

    def mfma(d, a_, b_, c):
        return 'v_mfma_f32_32x32x16_bf16 %s, %s, %s, %s' % (v(d, 16), v(a_, 4), v(b_, 4), v(d, 16) if c else '0')
    def frags(t):
        if t >= 32:
            return []
        st, k = divmod(t, 4)
        sl = st & 3
        tg = 'f%d' % t
        def wf(u):
            return [('ds_read_b64_tr_b16 %s, %s offset:%d' % (v(vWf + 8 * (t % 3) + 4 * u + 2 * hh, 2), v(vWa), 16384 * sl + 8192 * u + 2048 * k + 512 * hh), tg) for hh in range(2)]
        xf = [('ds_read_b128 %s, %s offset:%d' % (v(vX + 4 * t, 4), v(vXo + k), 16384 * sl), tg),
              ('ds_read_b128 %s, %s offset:%d' % (v(vXf + 4 * (t % 3), 4), v(vXt + k), 16384 * sl), tg)]
        return wf(0) + xf + wf(1)
    def softmax(D, P, M, rs=None, np_=0):
        L = []
        L.append('v_max3_f32 %s, %s, %s, %s' % (v(M), v(D), v(D + 1), v(D + 2)))
        L.append('v_max3_f32 %s, %s, %s, %s' % (v(M + 1), v(D + 3), v(D + 4), v(D + 5)))
        L.append('v_max3_f32 %s, %s, %s, %s' % (v(M + 2), v(D + 6), v(D + 7), v(D + 8)))
        L.append('v_max3_f32 %s, %s, %s, %s' % (v(M + 3), v(D + 9), v(D + 10), v(D + 11)))
        L.append('v_max3_f32 %s, %s, %s, %s' % (v(M), v(M), v(D + 12), v(D + 13)))
        L.append('v_max3_f32 %s, %s, %s, %s' % (v(M + 1), v(M + 1), v(D + 14), v(D + 15)))
        L.append('v_max3_f32 %s, %s, %s, %s' % (v(M), v(M), v(M + 1), v(M + 2)))
        L.append('v_max_f32 %s, %s, %s' % (v(M), v(M), v(M + 3)))
        L.append('v_mul_f32 %s, 0x%x, %s' % (v(M), LOG2E | 0x80000000, v(M)))
        for i in range(8):
            if np_ & 1:
                L += ['v_fma_f32 %s, %s, %s, %s' % (v(D + 2 * i + e), v(D + 2 * i + e), s(sL2), v(M)) for e in range(2)]
            else:
                L.append('v_pk_fma_f32 %s, %s, %s, %s op_sel_hi:[1,1,0]' % (v(D + 2 * i, 2), v(D + 2 * i, 2), s(sL2, 2), v(M, 2)))
        for i in range(16):
            L.append('v_exp_f32 %s, %s' % (v(D + i), v(D + i)))
        for d_, a_, b_ in ((M, D, D + 2), (M + 2, D + 4, D + 6), (M, M, D + 8), (M + 2, M + 2, D + 10), (M, M, D + 12), (M + 2, M + 2, D + 14), (M, M, M + 2)):
            if np_ & 2:
                L += ['v_add_f32 %s, %s, %s' % (v(d_ + e), v(a_ + e), v(b_ + e)) for e in range(2)]
            else:
                L.append('v_pk_add_f32 %s, %s, %s' % (v(d_, 2), v(a_, 2), v(b_, 2)))
        L.append('v_add_f32 %s, %s, %s' % (v(M), v(M), v(M + 1)))
        L.append('v_rcp_f32 %s, %s' % (v(M), v(M)))
        if rs is not None:
            L.append('v_mul_f32 %s, %s, %s' % (v(M), v(M), v(rs)))
        for i in range(8):
            if np_ & 4:
                L += ['v_mul_f32 %s, %s, %s' % (v(D + 2 * i + e), v(D + 2 * i + e), v(M)) for e in range(2)]
            else:
                L.append('v_pk_mul_f32 %s, %s, %s op_sel_hi:[1,0]' % (v(D + 2 * i, 2), v(D + 2 * i, 2), v(M, 2)))
        for i in range(8):
            L.append('v_cvt_pk_bf16_f32 %s, %s, %s' % (v(P + i), v(D + 2 * i), v(D + 2 * i + 1)))
        return L
    def pack(acc, P):
        for i in range(8):
            A('v_cvt_pk_bf16_f32 %s, %s, %s' % (v(P + i), v(acc + 2 * i), v(acc + 2 * i + 1)))
    def scale_pack(acc, P, rs):
        for i in range(8):
            A('v_pk_mul_f32 %s, %s, %s op_sel_hi:[1,0]' % (v(acc + 2 * i, 2), v(acc + 2 * i, 2), v(rs, 2)))
        pack(acc, P)
    def zipl(a_, b_):
        return [x for pr in zip(a_, b_) for x in pr]
    def mish(acc, r, E, V, so, tag, hook=(None, None), mv=None):
        mv = OPT['mv'] if mv is None else mv
        if hook[0] == 4: hook[1]()
        for i in range(8):
            if mv & 1:
                A('v_mul_f32 %s, %s, %s' % (v(acc + 2 * i), v(acc + 2 * i), v(vR[r])))
                A('v_mul_f32 %s, %s, %s' % (v(acc + 2 * i + 1), v(acc + 2 * i + 1), v(vR[r])))
            else:
                A('v_pk_mul_f32 %s, %s, %s op_sel_hi:[1,0]' % (v(acc + 2 * i, 2), v(acc + 2 * i, 2), v(vR[r], 2)))
        for i in range(16):
            A('v_exp_f32 %s, %s' % (v(E + i), v(acc + i)))
        for i in range(8):
            if mv & 2:
                A('v_fma_f32 %s, %s, 0.5, 1.0' % (v(V + 2 * i), v(E + 2 * i)))
                A('v_fma_f32 %s, %s, 0.5, 1.0' % (v(V + 2 * i + 1), v(E + 2 * i + 1)))
            else:
                A('v_pk_fma_f32 %s, %s, %s, %s op_sel:[0,0,1] op_sel_hi:[1,0,1]' % (v(V + 2 * i, 2), v(E + 2 * i, 2), s(sHO, 2), s(sHO, 2)))
        for i in range(8):
            if mv & 4:
                A('v_fma_f32 %s, %s, %s, 1.0' % (v(V + 2 * i), v(E + 2 * i), v(V + 2 * i)))
                A('v_fma_f32 %s, %s, %s, 1.0' % (v(V + 2 * i + 1), v(E + 2 * i + 1), v(V + 2 * i + 1)))
            else:
                A('v_pk_fma_f32 %s, %s, %s, %s op_sel:[0,0,1] op_sel_hi:[1,1,1]' % (v(V + 2 * i, 2), v(E + 2 * i, 2), v(V + 2 * i, 2), s(sHO, 2)))
        if hook[0] == 3: hook[1]()
        for i in range(16):
            A('v_rcp_f32 %s, %s' % (v(V + i), v(V + i)))
        if hook[0] == 2: hook[1]()
        for i in range(8):
            if mv & 8:
                A('v_fma_f32 %s, -%s, %s, %s' % (v(acc + 2 * i), v(acc + 2 * i), v(V + 2 * i), v(acc + 2 * i)))
                A('v_fma_f32 %s, -%s, %s, %s' % (v(acc + 2 * i + 1), v(acc + 2 * i + 1), v(V + 2 * i + 1), v(acc + 2 * i + 1)))
            else:
                A('v_pk_fma_f32 %s, %s, %s, %s neg_lo:[1,0,0] neg_hi:[1,0,0]' % (v(acc + 2 * i, 2), v(acc + 2 * i, 2), v(V + 2 * i, 2), v(acc + 2 * i, 2)))
        pack(acc, acc)
        A('buffer_store_dwordx4 %s, %s, %s, %s offen sc1' % (v(acc, 4), v(vL16), s(SWS, 4), s(so)), tag=tag)
        A('buffer_store_dwordx4 %s, %s, %s, %s offen offset:2048 sc1' % (v(acc + 4, 4), v(vL16), s(SWS, 4), s(so)), tag=tag)
        if hook[0] == 1: hook[1]()
    def flag(tag, so, off=0, vo=vFo):
        A.wait_vm(tag)
        A('buffer_store_dword %s, %s, %s, %s offen offset:%d sc1' % (v(vNon), v(vo), s(SWS, 4), s(so), off))
    def sign_flip(ph, n, t):
        A('v_bfe_u32 %s, %s, 2, 1' % (v(t), v(vLane)))
        A('v_mul_u32_u24 %s, 0x8000, %s' % (v(t), v(t)))
        A('v_lshl_or_b32 %s, %s, 16, %s' % (v(t), v(t), v(t)))
        A.wait_lg('ph')
        for i in range(n):
            A('v_xor_b32 %s, %s, %s' % (v(ph + i), v(t), v(ph + i)))

    def mish_fill(tiles, T):
        n = 16 * len(tiles)
        R = lambda i: tiles[i // 16][0] + i % 16
        E = lambda i: T + i % 3
        V = lambda i: T + 3 + i % 3
        mul = lambda i: 'v_mul_f32 %s, %s, %s' % (v(R(i)), v(R(i)), v(vR[tiles[i // 16][1]]))
        G = []; late = []
        for i in range(n + 2):
            a_ = [mul(0)] if i == 0 else []
            if i < n: a_.append('v_exp_f32 %s, %s' % (v(E(i)), v(R(i))))
            if 0 <= i - 1 < n: a_.append('v_fma_f32 %s, %s, %s, 1.0' % (v(V(i - 1)), v(E(i - 1)), v(V(i - 1))))
            if 0 <= i - 2 < n: a_.append('v_fma_f32 %s, -%s, %s, %s' % (v(R(i - 2)), v(R(i - 2)), v(V(i - 2)), v(R(i - 2))))
            b_ = []
            if 0 <= i - 1 < n: b_.append('v_rcp_f32 %s, %s' % (v(V(i - 1)), v(V(i - 1))))
            if i < n: b_.append('v_fma_f32 %s, %s, 0.5, 1.0' % (v(V(i)), v(E(i))))
            if i + 1 < n: b_.append(mul(i + 1))
            k = i - 2
            if k >= 0 and k & 1:
                acc, r, so, tag = tiles[k // 16]
                b_.append('v_cvt_pk_bf16_f32 %s, %s, %s' % (v(acc + (k % 16) // 2), v(R(k - 1)), v(R(k))))
                if k % 8 == 7:
                    st_ = ('buffer_store_dwordx4 %s, %s, %s, %s offen offset:%d sc1' % (v(acc + 4 * (k % 16 // 8), 4), v(vL16), s(SWS, 4), s(so), 2048 * (k % 16 // 8)), tag)
                    (b_ if OPT['sst'] else late).append(st_)
            G += [a_, b_]
        return G + [late]

    def pass_b(X, hooks, fill=(), split=False):
        vBa = 216
        vAp, vBp = (176, 184) if split else (0, 8)
        fill = list(fill)
        if OPT['prio']:
            A('s_setprio %d' % OPT['prio'])
        A('s_lshl_b32 %s, %s, 6' % (s(sT0), s(sCh)))
        A('v_xor_b32 %s, %s, %s' % (v(vBa), s(sT0), v(vWa)))
        A('v_add_u32 %s, %d, %s' % (v(vBa), L_E - L_W, v(vBa)))
        A('v_xor_b32 %s, 64, %s' % (v(vBa + 1), v(vBa)))
        A('v_mov_b32 %s, %d' % (v(vBa + 2), FL_P3))
        lds_wait(A, 'CP3%d' % X, v(vBa + 2), 4, 1, 220)
        stamp(A, 1, 8)
        win = [L_E, L_E]
        seq = [(uu, t) for uu in range(2) for t in range(32)] if split else [(uu, t) for t in range(32) for uu in range(2)]
        def fr(m):
            if m >= 64:
                return []
            uu, t = seq[m]
            st, k = divmod(t, 4)
            L = []
            w = P3B[st] & ~0xffff
            if w != win[uu]:
                L.append('v_add_u32 %s, %d, %s' % (v(vBa + uu), w - win[uu], v(vBa + uu)))
                win[uu] = w
            for hh in range(2):
                L.append(('ds_read_b64_tr_b16 %s, %s offset:%d' % (v(vWf + 4 * (m % 6) + 2 * hh, 2), v(vBa + uu), P3B[st] - w + 2048 * k + 512 * hh), 'g%d' % (m // 2)))
            return L
        for m in range(4):
            emit(A, fr(m))
        tb = [('ds_read_b32 %s, %s offset:%d' % (v(vAp + 4 * uu), v(vTa), 768 * uu + 512), 'tb') for uu in range(2)] + [('ds_read_b32 %s, %s' % (v(vBp), v(vTb)), 'tb')]
        zr = ['v_mov_b32 %s, 0' % v(vAp + i) for i in range(12) if i & 3]
        f0 = 34 if split else 0
        for m in range(64):
            uu, t = seq[m]
            nxt = fr(m + 4)
            z0 = 8 if split else 48
            if z0 <= m < z0 + 9:
                nxt.append(zr[m - z0])
            if m == (20 if split else 60):
                nxt += tb
            if m >= 61 and not X:
                nxt += [('ds_read_b64_tr_b16 %s, %s offset:%d' % (v(16 + 4 * h + 2 * hh, 2), v(vPa), 512 * h + 256 * hh), 'ph') for h in range(4) for hh in range(2)][3 * (m - 61):3 * (m - 60)]
            if m % 2 == 0:
                A.wait_lg('g%d' % (m // 2))
            A(mfma(ACC(0, uu), vWf + 4 * (m % 6), vX + 4 * t, t > 0))
            if split and m == 31:
                A(mfma(ACC(0, 0), vAp, vBp, True))
            if m in (15, 31, 63):
                stamp(A, {15: 2, 31: 6, 63: 7}[m], 8)
            emit(A, nxt)
            if m >= f0 and fill:
                emit(A, fill.pop(0))
            if m % 2 and m // 2 in hooks:
                hooks[m // 2]()
        A('s_lshl_b32 %s, %s, 2' % (s(sT0), s(sJ)))
        A('s_add_u32 %s, %s, %d' % (s(sT0), s(sT0), FL_PB))
        A('v_mov_b32 %s, %s' % (v(vBa), s(sT0)))
        A('v_mov_b32 %s, 2' % v(vBa + 1))
        A.wait_lg('tb')
        A('ds_write_b32 %s, %s' % (v(vBa), v(vBa + 1)))
        for uu in range(1 if split else 0, 2):
            A(mfma(ACC(0, uu), vAp + 4 * uu, vBp, True))
        for f in fill:
            emit(A, f)
        if OPT['prio']:
            A('s_setprio %d' % OPT['pr2'])
        stamp(A, 4)

    vAp, vBp, vPh = [208, 212], [224, 228], 192
    for X in (0, 1):
        A.vm = []; A.lg = []
        if X:
            A.label('CX_START')
        vOne = 8 if OPT['pt0'] < 0 else 124
        sPf = [SB, SB + 1, SB + 2, SB + 3]
        for i in range(4):
            A('v_mov_b32 %s, -1' % v(vOne + i))
        A('s_mul_i32 %s, %s, %d' % (s(sT1), s(sP2), NU * 4096))
        PF = []
        def pf(vo, so, off):
            PF.append(('buffer_store_dwordx4 %s, %s, %s, %s offen offset:%d sc1' % (v(vOne, 4), v(vo), s(SWS, 4), s(so), off), 'pf'))
        if X and OPT['kfp']:
            A('s_lshl_b32 %s, %s, 1' % (s(sT0), s(sG)))
            A('s_add_u32 %s, %s, %s' % (s(sT0), s(sT0), s(sCh)))
            A('s_lshl_b32 %s, %s, 1' % (s(sT0), s(sT0)))
            A('s_add_u32 %s, %s, %s' % (s(sT0), s(sT0), s(sRg)))
            A('s_mul_i32 %s, %s, %d' % (s(sT0), s(sT0), 2 * KVS))
            A('s_add_u32 %s, %s, 0x%x' % (s(sPf[0]), s(sT0), WS_KVP))
            A('s_add_u32 %s, %s, %d' % (s(sPf[1]), s(sPf[0]), KVS))
            pf(vPo, sPf[0], 0)
            pf(vPo, sPf[1], 0)
        if not X and OPT['h2p'] and not OPT['nv']:
            A('s_lshl_b32 %s, %s, 2' % (s(sT0), s(sG)))
            A('s_add_u32 %s, %s, %s' % (s(sT0), s(sT0), s(sCh)))
            A('s_add_u32 %s, %s, 2' % (s(sT0), s(sT0)))
            A('s_lshl_b32 %s, %s, 12' % (s(sT0), s(sT0)))
            A('s_add_u32 %s, %s, %s' % (s(sPf[0]), s(sT0), s(sT1)))
            for q in range(4):
                pf(vL16, sPf[0], 1024 * q)
        if OPT['hfp' if X else 'ofp'] and not OPT['nv']:
            A('s_lshl_b32 %s, %s, 3' % (s(sT0), s(sGq)))
            A('s_add_u32 %s, %s, %s' % (s(sT0), s(sT0), s(sCh)))
            A('s_add_u32 %s, %s, %d' % (s(sT0), s(sT0), 4 * (32 if X else 44)))
            A('s_lshl_b32 %s, %s, 10' % (s(sT0), s(sT0)))
            A('s_add_u32 %s, %s, %s' % (s(sPf[2]), s(sT0), s(sT1)))
            if X:
                A('s_cmp_ge_u32 %s, 6' % s(sG))
                A('s_cselect_b32 %s, 0x%x, %s' % (s(sPf[2]), OOB, s(sPf[2])))
            A('s_add_u32 %s, %s, 4096' % (s(sPf[3]), s(sPf[2])))
            for q in range(4):
                pf(vL16, sPf[2 + (q >> 1)], 2048 * (q & 1))
        if OPT['pt0'] < 0:
            emit(A, PF)
            PF = []
        A('s_barrier')
        stamp(A, 1)
        emit(A, frags(0))
        emit(A, frags(1))
        for t in range(32):
            st, k = divmod(t, 4)
            nxt = frags(t + 2)
            if t == 30:
                A('v_add_u32 %s, %s, %s' % (v(vAp[0]), s(sO[2]), v(vTa)))
                A('v_xor_b32 %s, 256, %s' % (v(vBp[1]), v(vTb)))
                A('v_xor_b32 %s, 128, %s' % (v(vR[1]), v(vTr)))
                A('v_mov_b32 %s, %d' % (v(vNon), TN))
                nxt = [('ds_read_b32 %s, %s offset:256' % (v(vAp[1]), v(vAp[0])), 'tb'),
                       ('ds_read_b32 %s, %s' % (v(vAp[0]), v(vAp[0])), 'tb'),
                       ('ds_read_b32 %s, %s' % (v(vBp[0]), v(vTb)), 'tb'),
                       ('ds_read_b32 %s, %s' % (v(vBp[1]), v(vBp[1])), 'tb'),
                       ('ds_read_b32 %s, %s' % (v(vR[0]), v(vTr)), 'tb'),
                       ('ds_read_b32 %s, %s' % (v(vR[1]), v(vR[1])), 'tb'),
                       ('ds_read_b32 %s, %s' % (v(vNon), v(vNon)), 'tb')]
            if t == 31:
                nxt = ['v_mov_b32 %s, 0' % v(b + i) for b in vAp + vBp for i in range(1, 4)]
                if X:
                    nxt = [('ds_read_b64_tr_b16 %s, %s offset:%d' % (v(vPh + 4 * h + 2 * hh, 2), v(vPa), 512 * h + 256 * hh), 'ph') for h in range(2) for hh in range(2)] + nxt
            A.wait_lg('f%d' % t)
            per = (len(nxt) + 2) // 3
            n = 0
            for u in range(2):
                for r in range(2):
                    w_, x_ = vWf + 8 * (t % 3) + 4 * u, (vX + 4 * t if r == 0 else vXf + 4 * (t % 3))
                    if X and u == 1:
                        w_, x_ = x_, w_
                    A(mfma(ACC(u, r), w_, x_, t > 0))
                    if k == 2 and n == 0:
                        A.wait_lg(None)
                        if st in (4, 5, 6, 7):
                            stamp(A, {4: 1, 5: 2, 6: 8, 7: 4}[st], 3)
                        A('s_barrier')
                        if st == 3:
                            stamp(A, 2)
                    WL = [(3, 0, SW2), (3, 4, SW2), (3, 2, SW2), (3, 6, SW2), (4, 34, SW2), (4, 32, SW2), (5, 0, SWO), (5, 2, SWO)]
                    if OPT['m2']:
                        WL = [(3, 0, SW2), (3, 4, SW2), (5, 0, SWO), (4, 32, SW2)]
                    if OPT['wx'] == 1:
                        WL = [(b_, c_ + e_, r_) for b_, c_, r_ in WL for e_ in (0, 0.25)] if X else []
                    if OPT['wx'] == 2:
                        WL = [(b_, c_ + e_, r_) for b_, c_, r_ in (WL[:3] if X else WL[3:]) for e_ in (0, 0.25)]
                    wq = 4 * (t - OPT['wt0']) + n - 3
                    wk = []
                    if OPT['warm'] == 1 and wq >= 0:
                        wk = WL if (OPT['wd'] == 0 and wq == 0) else [WL[wq // OPT['wd']]] if (OPT['wd'] and wq % OPT['wd'] == 0 and wq // OPT['wd'] < len(WL)) else []
                    for base, c_, sr in wk:
                        A('s_add_u32 %s, %s, %d' % (s(sT0), s(sO[base]), int(c_ * 32768)))
                        A('buffer_load_dword %s, %s, %s, %s offen' % (v(vWm + 1), v(vWm), s(sr, 4), s(sT0)), tag='wm')
                    pq = 4 * (t - OPT['pt0']) + n - 1
                    if PF and t < 29 and pq >= 0 and pq % OPT['pd'] == 0:
                        emit(A, [PF.pop(0)])
                    emit(A, nxt[per * n:per * n + per])
                    n += 1
        assert not PF
        stamp(A, 3)
        if OPT['prio']:
            A('s_setprio %d' % OPT['pex' if X else 'pey'])
        A.wait_lg('tb')
        for u in range(2):
            for r in range(2):
                p_, q_ = vAp[u], vBp[r]
                if X and u == 1:
                    p_, q_ = q_, p_
                A(mfma(ACC(u, r), p_, q_, True))
        if not X:
            A('v_mov_b32 %s, %s' % (v(vR0), v(vR[0])))
            for r in range(2):
                A('v_mul_f32 %s, 0x%x, %s' % (v(vR[r]), LOG2E, v(vR[r])))
        A('v_readfirstlane_b32 %s, %s' % (s(sNonce), v(vNon)))
        sOut, sFl = sO[4], sO[5]
        A('s_lshl_b32 %s, %s, 10' % (s(sFl), s(sP2)))
        A('s_add_u32 %s, %s, 0x%x' % (s(sFl), s(sFl), WS_F))
        A('s_mul_i32 %s, %s, %d' % (s(sOut), s(sP2), NU * 4096))
        A('s_lshl_b32 %s, %s, 10' % (s(sT0), s(sCh)))
        A('s_add_u32 %s, %s, %s' % (s(sOut), s(sOut), s(sT0)))
        if not X:
            A('s_lshl_b32 %s, %s, 2' % (s(sT0), s(sG)))
            A('s_add_u32 %s, %s, %s' % (s(sT0), s(sT0), s(sCh)))
            A('s_lshl_b32 %s, %s, 12' % (s(sT0), s(sT0)))
            A('s_add_u32 %s, %s, %s' % (s(sO[0]), s(sOut), s(sT0)))
            A('s_xor_b32 %s, %s, 1024' % (s(sO[1]), s(sO[0])))
            A('s_add_u32 %s, %s, 8192' % (s(SB), s(sO[0])))
            A('s_add_u32 %s, %s, 8192' % (s(SB + 1), s(sO[1])))
            sF2 = sT3
            A('s_lshr_b32 %s, %s, 1' % (s(sT0), s(sG)))
            A('s_lshl_b32 %s, %s, 5' % (s(sT0), s(sT0)))
            A('s_and_b32 %s, %s, 1' % (s(sT1), s(sG)))
            A('s_lshl_b32 %s, %s, 1' % (s(sT1), s(sT1)))
            A('s_add_u32 %s, %s, %s' % (s(sT0), s(sT0), s(sT1)))
            A('s_add_u32 %s, %s, %s' % (s(sT0), s(sT0), s(sCh)))
            A('s_lshl_b32 %s, %s, 2' % (s(sT0), s(sT0)))
            A('s_add_u32 %s, %s, %s' % (s(sF2), s(sFl), s(sT0)))
            A('s_lshr_b32 %s, %s, 2' % (s(sT0), s(sGq)))
            A('s_lshl_b32 %s, %s, 1' % (s(sT0), s(sT0)))
            A('s_add_u32 %s, %s, %s' % (s(sT0), s(sT0), s(sCh)))
            A('s_lshl_b32 %s, %s, 5' % (s(sT0), s(sT0)))
            A('s_and_b32 %s, %s, 3' % (s(sT1), s(sGq)))
            A('s_add_u32 %s, %s, %s' % (s(sT0), s(sT0), s(sT1)))
            A('s_lshl_b32 %s, %s, 2' % (s(sT0), s(sT0)))
            A('s_add_u32 %s, %s, %s' % (s(sFl), s(sFl), s(sT0)))
            A('s_lshl_b32 %s, %s, 13' % (s(sT0), s(sGq)))
            A('s_add_u32 %s, %s, %s' % (s(sOut), s(sOut), s(sT0)))
            A('s_add_u32 %s, %s, %d' % (s(sOut), s(sOut), 44 * 4096))
            E, V = 192, 208
            mish(ACC(0, 0), 0, E, V, sO[0], 'h1')
            mish(ACC(0, 1), 1, E, V, sO[1], 'h1')
            H2 = OPT['h2']
            stamp(A, 8)
            pass_b(0, {OPT['f2']: lambda: flag('h1', sF2)},
                   mish_fill([(ACC(1, r), r, SB + r, 'h2') for r in range(2)], 224) if H2 == 4 else ())
            ph, D, P, M = 16, [32, 48, 64, 80], [96, 104, 112, 120], [12, 224]
            sign_flip(ph, 16, M[0])
            for uu in range(2):
                scale_pack(ACC(0, uu), ACC(0, uu), vR0)
                for h in range(2):
                    A(mfma(D[2 * uu + h], ph + 8 * uu + 4 * h, ACC(0, uu) + 4 * h, False))
            vKa, KF = 228, 128
            A('v_and_b32 %s, 31, %s' % (v(vKa), v(vLane)))
            A('v_min_u32 %s, 16, %s' % (v(vKa), v(vKa)))
            A('v_lshrrev_b32 %s, 5, %s' % (v(vKa + 1), v(vLane)))
            A('v_mul_u32_u24 %s, 17, %s' % (v(vKa + 1), v(vKa + 1)))
            A('v_add_lshl_u32 %s, %s, %s, 4' % (v(vKa), v(vKa), v(vKa + 1)))
            A('v_add_u32 %s, %d, %s' % (v(vKa), KVL, v(vKa)))
            A('v_mov_b32 %s, %d' % (v(vKa + 1), FL_KV))
            A('s_lshl_b32 %s, %s, 2' % (s(sT0), s(sJ)))
            A('v_add_u32 %s, %s, %s' % (v(vKa + 2), s(sT0), v(vKa + 1)))
            A('s_add_u32 %s, %s, 4096' % (s(sO[0]), s(sOut)))
            stamp(A, 3, 2)
            stamp(A, 1, 9)
            emit(A, zipl(softmax(D[0], P[0], M[0], None, OPT['ysm']), softmax(D[1], P[1], M[1], None, OPT['ysm'])))
            stamp(A, 2, 9)
            if H2 == 4 and OPT['h2w'] == 1:
                flag('h2', sF2, 16)
            stamp(A, 3, 9)
            emit(A, zipl(softmax(D[2], P[2], M[0], None, OPT['ysm']), softmax(D[3], P[3], M[1], None, OPT['ysm'])))
            stamp(A, 8, 9)
            if H2 == 4 and OPT['h2w'] == 2:
                flag('h2', sF2, 16)
            stamp(A, 1, 2)
            h2f = lambda: flag('pf', sF2, 16)
            def h2m(r):
                mish(ACC(1, r), r, E, V, SB + r, 'h2', (OPT['h2p'] - 4 * (1 - r), h2f))
            if H2 in (1, 3):
                h2m(0)
            if H2 == 1:
                h2m(1)
            def ofl(k):
                if OPT['ofp'] == k:
                    flag('pf', sFl, 512)
                if H2 == 1 and not OPT['h2p'] and OPT['h2q'] == k:
                    flag('h2', sF2, 16)
            ofl(4)
            rd = ['ds_read_b128 %s, %s offset:%d' % (v(KF + 8 * n + 4 * c, 4), v(vKa), KVH * n + 544 * c) for n in range(4) for c in range(2)]
            if OPT['pk'] != OPT['pr2']:
                A('s_setprio %d' % OPT['pk'])
            lds_wait(A, 'CKV', v(vKa + 1), 4, 1, 220, rd)
            if OPT['pk'] != OPT['po']:
                A('s_setprio %d' % OPT['po'])
            stamp(A, 2, 2)
            stamp(A, 5, 9)
            def omf(n):
                for c in range(2):
                    A(mfma(D[n], KF + 8 * n + 4 * c, P[n] + 4 * c, c > 0))
            def ofin(n):
                d = D[n]
                A('v_add_f32 %s, 0x358637bd, %s' % (v(d + 8), v(d + 8)))
                A('v_rcp_f32 %s, %s' % (v(d + 8), v(d + 8)))
                for i in range(8):
                    A('v_mul_f32 %s, %s, %s' % (v(d + i), v(d + i), v(d + 8)))
                for i in range(4):
                    A('v_cvt_pk_bf16_f32 %s, %s, %s' % (v(d + i), v(d + 2 * i), v(d + 2 * i + 1)))
                A('buffer_store_dwordx4 %s, %s, %s, %s offen offset:%d sc1' % (v(d, 4), v(vL16), s(SWS, 4), s(sO[0] if n >> 1 else sOut), 2048 * (n & 1)), tag='o')
            omf(0); omf(1); ofl(2); ofin(0); stamp(A, 6, 9); omf(2); ofin(1); ofl(3); omf(3); ofin(2); ofin(3); ofl(1)
            if OPT['bq'] >= 2:
                A('v_subrev_u32 %s, %d, %s' % (v(vKa + 2), FL_KV - FL_EX, v(vKa + 2)))
                A('ds_write_b32 %s, %s' % (v(vKa + 2), v(vKa + 2)))
            stamp(A, 4, 2)
            stamp(A, 7, 9)
            if H2 == 2:
                h2m(0)
            if H2 == 3:
                h2m(1)
            if not OPT['ofp']:
                flag('o', sFl, 512)
            if H2 == 2:
                h2m(1)
            if H2 in (2, 3) and not OPT['h2p']:
                flag('h2', sF2, 16)
            A.branch('s_branch C_P2')
        else:
            D, M, vBd, KV = [200, 144, 176, 160], [224, 228], 216, 200
            vEf = 248
            sKp, sKf = sO[0], sO[1]
            for q in range(8):
                if q == 0:
                    A('v_lshlrev_b32 %s, 2, %s' % (v(vBd + 4), v(vSt)))
                elif q == 4:
                    A('v_xor_b32 %s, %s, %s' % (v(vBd + 4), v(vBd + 4), v(vVr)))
                else:
                    A('v_add_u32 %s, %s, %s' % (v(vBd + q), v(vVr if q == 1 else vBd + q - 1), v(vSt)))
            stamp(A, 1, 5)
            sign_flip(vPh, 8, 253)
            stamp(A, 2, 5)
            scale_pack(ACC(0, 0), 128, vR[0])
            A(mfma(D[0], vPh, 128, False))
            scale_pack(ACC(0, 1), 136, vR[1])
            A(mfma(D[1], vPh + 4, 132, False))
            stamp(A, 8, 5)
            for r in range(2):
                pack(ACC(1, r), 160 + 8 * r)
                if r == 0:
                    A('ds_write_b128 %s, %s' % (v(vVw), v(160, 4)))
            A('v_xor_b32 %s, 2048, %s' % (v(253), v(vVw)))
            A(mfma(D[2], vPh, 136, False))
            stamp(A, 4, 5)
            A('s_lshl_b32 %s, %s, 3' % (s(sT0), s(sJ)))
            A('s_add_u32 %s, %s, %d' % (s(sT0), s(sT0), FL_EX))
            A('v_mov_b32 %s, %s' % (v(vEf), s(sT0)))
            A('s_lshl_b32 %s, %s, 1' % (s(sT0), s(sG)))
            A('s_add_u32 %s, %s, %s' % (s(sT0), s(sT0), s(sCh)))
            A('s_lshl_b32 %s, %s, 1' % (s(sT0), s(sT0)))
            A('s_add_u32 %s, %s, %s' % (s(sT0), s(sT0), s(sRg)))
            A('s_mul_i32 %s, %s, %d' % (s(sKp), s(sT0), 2 * KVS))
            A('s_add_u32 %s, %s, 0x%x' % (s(sKp), s(sKp), WS_KVP))
            A('s_add_u32 %s, %s, %d' % (s(sO[2]), s(sKp), KVS))
            A('s_lshl_b32 %s, %s, 5' % (s(sKf), s(sT0)))
            A('s_add_u32 %s, %s, %s' % (s(sKf), s(sKf), s(sRb)))
            A('s_lshl_b32 %s, %s, 2' % (s(sKf), s(sKf)))
            A('s_add_u32 %s, %s, 0x%x' % (s(sKf), s(sKf), WS_KF))
            if OPT['kfp'] == 5:
                flag('pf', sKf)
            stamp(A, 1, 1)
            stamp(A, 1, 4)
            stamp(A, 5, 5)
            def spread(base, ins, first, step):
                L = list(base)
                for n_, it in reversed(list(enumerate(ins))):
                    L[first + step * n_:first + step * n_] = it
                return L
            def pwr(r, h, e):
                x_ = 4096 * r + 64 * h + 16 * e
                tmp = 128 + 2 * h + e
                return (['v_xor_b32 %s, %d, %s' % (v(tmp), x_, v(vPw))] if x_ else []) + ['ds_write_b128 %s, %s' % (v(tmp if x_ else vPw), v(D[2 * r + h] + 4 * e, 4))]
            sm = [softmax(D[n], D[n], M[n & 1], vR[n >> 1]) for n in range(4)]
            vw = [['ds_write_b128 %s, %s offset:%d' % (v(253 if n >> 1 else vVw), v(160 + 4 * n, 4), 1024 * (n & 1))] for n in range(1, 4)]
            emit(A, spread(zipl(sm[0], sm[1]), vw + [[mfma(D[3], vPh + 4, 140, False)]], 2, 20))
            stamp(A, 2, 4)
            emit(A, spread(zipl(sm[2][:-16], sm[3][:-16]), [pwr(0, h, e) for e in range(2) for h in range(2)], 0, 18))
            stamp(A, 4, 4)
            def kfl(k):
                if OPT['kfp'] == k:
                    flag('pf', sKf)
            kfl(4)
            for n in (2, 3):
                emit(A, sm[n][-16:-12] + sm[n][-8:-4] + pwr(1, n & 1, 0) + sm[n][-12:-8] + sm[n][-4:] + pwr(1, n & 1, 1))
            stamp(A, 5, 4)
            A('ds_write_b32 %s, %s' % (v(vEf), v(vEf)))
            kfl(3)
            stamp(A, 2, 1)
            def kvf(q):
                L = [('ds_read_b64_tr_b16 %s, %s offset:%d' % (v(128 + 4 * q + 2 * hh, 2), v(vPr), 2048 * (q & 3) + 1024 * hh), 'q%d' % q) for hh in range(2)]
                return L + [('ds_read_b128 %s, %s' % (v(160 + 4 * q, 4), v(vBd + q if q else vVr)), 'q%d' % q)]
            for q in range(4):
                emit(A, kvf(q))
            A('v_xor_b32 %s, %d, %s' % (v(vEf), FL_EX ^ (FL_EX + 16), v(vEf)))
            A('v_xor_b32 %s, 8192, %s' % (v(vPr), v(vPr)))
            lds_wait(A, 'CEX', v(vEf), 1, 1, M[0])
            stamp(A, 6, 4)
            kfl(2)
            for q in range(8):
                A.wait_lg('q%d' % q)
                A(mfma(KV, 128 + 4 * q, 160 + 4 * q, q > 0))
                if q < 4:
                    emit(A, kvf(q + 4))
            A('s_lshl_b32 %s, %s, 13' % (s(sT0), s(sG)))
            A('s_add_u32 %s, %s, %s' % (s(sOut), s(sOut), s(sT0)))
            A('s_add_u32 %s, %s, %d' % (s(sOut), s(sOut), 32 * 4096))
            A('s_add_u32 %s, %s, 4096' % (s(sO[3]), s(sOut)))
            A('s_lshl_b32 %s, %s, 2' % (s(sT0), s(sCh)))
            A('s_add_u32 %s, %s, %s' % (s(sFl), s(sFl), s(sT0)))
            A('s_lshl_b32 %s, %s, 2' % (s(sT0), s(sJ)))
            A('s_add_u32 %s, %s, %d' % (s(sT0), s(sT0), FL_KV))
            A('v_mov_b32 %s, %s' % (v(vEf), s(sT0)))
            if OPT['fke']:
                A('ds_write_b32 %s, %s' % (v(vEf), v(vEf)))
            A('v_mul_f32 %s, 0x%x, %s' % (v(vR[0]), LOG2E, v(vR[0])))
            for c in range(2):
                for i in range(4):
                    A('v_cvt_pk_bf16_f32 %s, %s, %s' % (v(160 + 4 * c + i), v(KV + 8 * c + 2 * i), v(KV + 8 * c + 2 * i + 1)))
                A('buffer_store_dwordx4 %s, %s, %s, %s offen sc1' % (v(160 + 4 * c, 4), v(vPo), s(SWS, 4), s(sO[2] if c else sKp)), tag='kp')
            kfl(1)
            stamp(A, 8)
            stamp(A, 7, 4)
            def kflag():
                if not OPT['kfp']:
                    flag('kp', sKf)
                if not OPT['fke']:
                    A('ds_write_b32 %s, %s' % (v(vEf), v(vEf)))
            A('s_cmp_ge_u32 %s, 6' % s(sG))
            A.branch('s_cbranch_scc1 CX_NOH')
            vm1 = list(A.vm)
            hf = lambda: flag('pf', sFl, 32, vF2)
            if OPT['xsp']:
                pass_b(1, {OPT['f3']: kflag}, mish_fill([(ACC(0, 0), 0, sOut, 'h')], 224), True)
            else:
                pass_b(1, {OPT['f3']: kflag})
                mish(ACC(0, 0), 0, 16, 32, sOut, 'h', (OPT['hfp'] - 4, hf))
            mish(ACC(0, 1), 0, 16, 32, sO[3], 'h', (OPT['hfp'], hf), OPT['xmv'])
            stamp(A, 1, 2)
            if not OPT['hfp']:
                flag('h', sFl, 32, vF2)
            A.branch('s_branch C_P2')
            A.label('CX_NOH')
            A.vm = vm1
            kflag()
            A('s_lshl_b32 %s, %s, 2' % (s(sT0), s(sJ)))
            A('s_add_u32 %s, %s, %d' % (s(sT0), s(sT0), FL_PB))
            A('v_mov_b32 %s, %s' % (v(M[0]), s(sT0)))
            A('v_mov_b32 %s, 2' % v(M[0] + 1))
            A('ds_write_b32 %s, %s' % (v(M[0]), v(M[0] + 1)))
    A.label('C_P2')
    A.vm = []; A.lg = []
    if OPT['pr2'] or OPT['po'] or OPT['pr3'] or OPT['pex']:
        A('s_setprio %d' % OPT['pr3'])
    stamp(A, 5)
    vAcc, vO, vW = 0, 32, 96
    vA0, vFl, vFv, vT = 232, 236, 237, 248
    sFl, sAct = sO[0], sO[1]
    A('v_lshlrev_b32 %s, 2, %s' % (v(vFl), v(vLane)))
    A('v_and_b32 %s, 0x7c, %s' % (v(vFl), v(vFl)))
    A('s_lshl_b32 %s, %s, 3' % (s(sFl), s(sRb2)))
    A('s_add_u32 %s, %s, %s' % (s(sFl), s(sFl), s(sWave)))
    A('s_lshl_b32 %s, %s, 7' % (s(sFl), s(sFl)))
    A('s_add_u32 %s, %s, 0x%x' % (s(sFl), s(sFl), WS_F))
    xres(A, 240, 244)
    qload = 'buffer_load_dword %s, %s, %s, %s offen sc1' % (v(vFv), v(vFl), s(SWS, 4), s(sFl))
    A(qload, tag='fl')
    A('s_mul_i32 %s, %s, %d' % (s(sAct), s(sRb2), NU * 4096))
    A('s_lshl_b32 %s, %s, 5' % (s(sT0), s(sRg)))
    A('s_add_u32 %s, %s, %s' % (s(sT0), s(sT0), s(sCh)))
    A('s_lshl_b32 %s, %s, 10' % (s(sT0), s(sT0)))
    A('s_add_u32 %s, %s, %s' % (s(sAct), s(sAct), s(sT0)))
    A('s_add_u32 %s, %s, %d' % (s(sAct), s(sAct), 44 * 4096))
    tr_addr(A, vA0, vT, 4, None)
    A('s_lshl_b32 %s, %s, 13' % (s(sT2), s(sRg)))
    A('s_add_u32 %s, %s, 32768' % (s(sT2), s(sT2)))
    A('v_add_u32 %s, %s, %s' % (v(vA0), s(sT2), v(vA0)))
    A('v_xor_b32 %s, 64, %s' % (v(vA0 + 1), v(vA0)))
    A('v_add_u32 %s, %d, %s' % (v(vA0 + 2), L_W, v(vA0)))
    A('v_add_u32 %s, %d, %s' % (v(vA0 + 3), L_W, v(vA0 + 1)))
    A('s_lshl_b32 %s, %s, 12' % (s(sT2), s(sJ)))
    A('s_add_u32 %s, %s, 32768' % (s(sT2), s(sT2)))
    wr = reduce_write(A, vAcc, 224, sT2, 1)
    A('v_mov_b32 %s, %d' % (v(238), FL_P3))
    A('s_lshl_b32 %s, %s, 2' % (s(sT2), s(sJ)))
    A('s_add_u32 %s, %s, %d' % (s(sT2), s(sT2), FL_WR))
    A('v_mov_b32 %s, %s' % (v(239), s(sT2)))
    lds_wait(A, 'CWO', v(238), 4, 3, vT)
    for u in range(8):
        a_, p = u >> 2, u & 3
        for c in range(2):
            for nt in range(2):
                for hh in range(2):
                    A('ds_read_b64_tr_b16 %s, %s offset:%d' % (v(vW + 16 * u + 8 * c + 4 * nt + 2 * hh, 2), v(vA0 + 2 * (p >> 1) + nt), 16384 * (p & 1) + 4096 * a_ + 2048 * c + 1024 * hh))
    A('ds_write_b32 %s, %s' % (v(239), v(239)))
    A('v_xor_b32 %s, 4, %s' % (v(238), v(239)))
    if OPT['pp']:
        A(qload.replace(v(vFv) + ',', v(vT + 4) + ',', 1), tag='fb')
        A('s_mov_b32 %s, 0' % s(sT0))
        A.label('CQ_P')
        for r in (vFv, vT + 4):
            A('s_waitcnt vmcnt(1)')
            A('v_cmp_ne_u32 vcc, %s, %s' % (s(sNonce), v(r)))
            A('s_and_b32 vcc_lo, vcc_lo, 0xf')
            A.branch('s_cbranch_scc0 CQ_G')
            if OPT['pp'] > 1:
                A('s_sleep %d' % (OPT['pp'] - 1))
            with Keep(A):
                A(qload.replace(v(vFv) + ',', v(r) + ',', 1))
        A('s_add_u32 %s, %s, 1' % (s(sT0), s(sT0)))
        A('s_cmp_gt_u32 %s, 0x%x' % (s(sT0), BOUND))
        A.branch('s_cbranch_scc0 CQ_P')
        A.label('CQ_G')
    else:
        A.wait_vm('fl')
        poll(A, 'CQ', qload, vFv, '0xf')
    if OPT['pr4'] != OPT['pr3']:
        A('s_setprio %d' % OPT['pr4'])
    stamp(A, 6)
    def oload(n):
        if n < 16:
            if n and n % 2 == 0:
                A('s_add_u32 %s, %s, 4096' % (s(sAct), s(sAct)))
            A('buffer_load_dwordx4 %s, %s, %s, %s offen offset:%d sc1' % (v(vO + 4 * n, 4), v(vL16), s(SWS, 4), s(sAct), 2048 * (n & 1)), tag='o%d' % n)
    for n in range(OPT['oi']):
        oload(n)
    stamp(A, 1, 7)
    lds_wait(A, 'CWR', v(238), 1, 1, vT)
    for u in range(8):
        for c in range(2):
            A.wait_vm('o%d' % (2 * u + c))
            if 2 * u + c in (0, 7, 15):
                stamp(A, {0: 2, 7: 3, 15: 8}[2 * u + c], 7)
            for nt in range(2):
                A(mfma(vAcc + 16 * nt, vW + 16 * u + 8 * c + 4 * nt, vO + 8 * u + 4 * c, u or c))
            oload(2 * u + c + OPT['oi'])
    emit(A, wr)
    if OPT['pr4']:
        A('s_setprio 0')
    stamp(A, 4, 7)

def gen_final(A):
    A.label('F_START')
    vOo, vX, t = 240, 244, 72
    srd(A, SO, 32, 2048 * 1024)
    if OPT['lnf']:
        A('s_mov_b32 %s, 0x%x' % (s(sO[0]), LN2))
        A('s_mov_b32 %s, 0x%x' % (s(sO[1]), LN2))
    A('s_and_b32 %s, %s, 3' % (s(sT0), s(sWave)))
    A('s_lshl_b32 %s, %s, 10' % (s(sT0), s(sT0)))
    A('s_lshr_b32 %s, %s, 2' % (s(sT1), s(sWave)))
    A('s_lshl_b32 %s, %s, 14' % (s(sT1), s(sT1)))
    A('s_add_u32 %s, %s, %s' % (s(sT0), s(sT0), s(sT1)))
    A('v_lshrrev_b32 %s, 3, %s' % (v(t), v(vLane)))
    A('v_bfe_u32 %s, %s, 2, 1' % (v(t + 1), v(vLane)))
    A('v_and_b32 %s, 3, %s' % (v(t + 2), v(vLane)))
    A('v_lshlrev_b32 %s, 1, %s' % (v(t + 2), v(t + 2)))
    A('v_xor_b32 %s, %s, %s' % (v(t + 2), v(t + 2), v(t)))
    A('v_xor_b32 %s, %s, %s' % (v(t + 2), v(t + 2), v(t + 1)))
    A('v_lshlrev_b32 %s, 4, %s' % (v(t + 2), v(t + 2)))
    A('v_lshl_add_u32 %s, %s, 7, %s' % (v(t + 2), v(t), v(t + 2)))
    A('v_add_u32 %s, %s, %s' % (v(t + 2), s(sT0), v(t + 2)))
    A('v_lshl_add_u32 %s, %s, 16, %s' % (v(t + 3), v(t + 1), v(t + 2)))
    A('v_xor_b32 %s, 16, %s' % (v(t + 4), v(t + 3)))
    A('s_mul_i32 %s, %s, 3' % (s(sT1), s(sT1)))
    A('s_lshr_b32 %s, %s, 2' % (s(sT1), s(sT1)))
    for hh in range(2):
        A('v_subrev_u32 %s, %s, %s' % (v(t + 5 + hh), s(sT1), v(t + 3 + hh)))
    A('s_waitcnt vmcnt(0)')
    X = 80
    for i in range(4):
        A('v_lshlrev_b32 %s, 16, %s' % (v(X + 2 * i), v(vX + i)))
        A('v_and_b32 %s, 0xffff0000, %s' % (v(X + 2 * i + 1), v(vX + i)))
    A('s_waitcnt lgkmcnt(0)')
    A.lg = []
    A('s_barrier')
    stamp(A, 7)
    R = 96
    for p in range(6):
        for hh in range(2):
            A('ds_read_b128 %s, %s offset:%d' % (v(R + 8 * p + 4 * hh, 4), v(t + 3 + hh + (2 if p >= 4 else 0)), 4096 * p if p < 4 else 32768 + 8192 * (p - 4)), tag='r%d' % (p >> 1))
    for g in range(3):
        A.wait_lg('r%d' % g)
        r = R + 16 * g
        for i in range(4):
            A('v_pk_add_f32 %s, %s, %s' % (v(r + 2 * i, 2), v(r + 2 * i, 2), v(r + 8 + 2 * i, 2)))
        for i in range(4):
            if OPT['lnf'] and g < 2:
                A('v_pk_fma_f32 %s, %s, %s, %s' % (v(X + 2 * i, 2), v(r + 2 * i, 2), s(sO[0], 2), v(X + 2 * i, 2)))
            else:
                A('v_pk_add_f32 %s, %s, %s' % (v(X + 2 * i, 2), v(X + 2 * i, 2), v(r + 2 * i, 2)))
    for i in range(4):
        A('v_cvt_pk_bf16_f32 %s, %s, %s' % (v(X + i), v(X + 2 * i), v(X + 2 * i + 1)))
    A('buffer_store_dwordx4 %s, %s, %s, %s offen%s' % (v(X, 4), v(vOo), s(SO, 4), s(6), {0: '', 1: ' sc1', 2: ' nt', 3: ' sc0 sc1'}[OPT['ost']]))
    if OPT['stamps']:
        A('s_waitcnt vmcnt(0)')
        A('%s s[14:15]' % ('s_memtime' if OPT['clk'] else 's_memrealtime'))
        A('s_waitcnt lgkmcnt(0)')
        A('s_lshl_b32 %s, s2, 3' % s(sT2))
        A('s_add_u32 %s, %s, %s' % (s(sT2), s(sT2), s(sWave)))
        A('s_lshl_b32 %s, %s, 6' % (s(sT2), s(sT2)))
        A('s_add_u32 %s, %s, 0x%x' % (s(sT2), s(sT2), WS_STAMP))
        A('v_mov_b32 %s, 0' % v(1))
        for i, r in enumerate(STREG + [14, sRt]):
            A('v_mov_b32 %s, %s' % (v(0), s(r)))
            A('buffer_store_dword %s, %s, %s, %s offen offset:%d' % (v(0), v(1), s(SWS, 4), s(sT2), 4 * i))
    A.label('L_END')
    A('s_endpgm')
    for x in TAIL:
        A.raw(x if x.endswith(':') else '    ' + x)

def main():
    body = gen()
    out = []
    out.append('; @launch grid=(256,1,1) block=(512,1,1) lds=163840')
    out.append('.amdgcn_target "amdgcn-amd-amdhsa--gfx950"')
    out.append('.text')
    out.append('.globl %s_kernel' % NAME)
    out.append(body)
    out.append('.section .rodata,"a"')
    out.append('.p2align 6')
    out.append('''.amdhsa_kernel %s_kernel
  .amdhsa_next_free_vgpr 256
  .amdhsa_next_free_sgpr 102
  .amdhsa_accum_offset 256
  .amdhsa_group_segment_fixed_size 0
  .amdhsa_kernarg_size 88
  .amdhsa_user_sgpr_count 2
  .amdhsa_user_sgpr_kernarg_segment_ptr 1
  .amdhsa_system_sgpr_workgroup_id_x 1
.end_amdhsa_kernel
''' % NAME)
    open(sys.argv[1], 'w').write('\n'.join(out))

main()
if OPT['tmo']:
    print(TIDS)
```

```python
import sys
from asmlib import Asm, v, a, s

NAME = 'parallel_sum__linear_kernel_hedgehog__dense_activation_mish__prompt'
OPT = dict(fine=0, stamps=0, prio=1, sched=0, slp=8, wt0=18, wd=8, wi=4, warm=1, xmap=1, xq=1, clk=0, ost=1, gi=5, f2=6, ps=7, win=4, f3=0, h2=4, xs=0, mv=0, rot=7, rm=0, kfp=3, hfp=0, h2p=0, ofp=0, rsl=2, pt0=-1, pd=4, nv=1, gp=0, wop=0, wopx=0, cont=1, fk=20, h2q=3, xsp=1, sst=1, oi=8, la=2, lb=3, lax=4, lbx=2, bq=0, h2w=1, xh=1, xmv=15, kpf=0, pr2=1, l8=0, l8x=0, fa=9, xs0=1, fke=0, tmo=0, ysm=0, ka=0, yd=0, yw=0, yf=1, pex=1, pey=1, wl=4, roll=2, rollx=2, pk=0, po=1, pr3=0, pr4=0, lnf=2, lnd=1, m2=1, pp=0, wx=0, xp=0, rp=0, ke=0, et=0, si=2)
for arg in sys.argv[2:]:
    k, val = arg.split('=')
    OPT[k] = int(val, 0)

NU = 60
WS_ACT = 0x000000
WS_KVP = 0x800000
KVS = 9216
WS_KF = 0x8A0000
WS_STAT = 0xC80000
WS_F = 0xC90000
WS_CS = 0xCA0000
WS_STAMP = 0xD00000
WS_SIZE = 0x6000000 if OPT['tmo'] else 0xE00000
KVH = 1088
OOB = 0x7f000000
LOG2E = 0x3fb8aa3b
LN2 = 0x3f317218
BOUND = 0x8000

L_W = 65536
L_E = 131072
def XP(sg): return 16384 * sg
def WP(sg): return L_W + 16384 * sg
TA, TZ, TB, TR, TS, TN, TPH = L_E, L_E + 1536, L_E + 2048, L_E + 3072, L_E + 3584, L_E + 3840, L_E + 6144
KVL = L_E + 24576
P3B = [L_E + 8192, L_E + 16384, XP(0), XP(0) + 8192, WP(0), WP(0) + 8192, XP(1), XP(1) + 8192]
PH0, PH1, VB = XP(3), WP(3), XP(2)
FL_P3, FL_PB, FL_EX, FL_KV, FL_WR = TN + 16, TN + 32, TN + 48, TN + 80, TN + 96

SX, SA, SB, SWS, SD, SW2, SWO, STMP = 40, 44, 48, 56, 60, 64, 68, 72
SO = SA
sNonce, sWave, sRb, sCg, sTyp, sG, sF, sRb2, sCb = 3, 4, 5, 8, 9, 10, 11, 12, 13
sT0, sT1, sT2, sT3 = 14, 15, 76, 77
sO = [78, 79, 80, 81, 82, 83]
sJ = 84
sM = 85
sA, sB = 86, 87
sGq = 39
STREG = [88, 90, 92, 94, 96, 98, 100, 24, 74]

def srd(A, d, lo, size):
    A('s_mov_b32 %s, %s' % (s(d), s(lo)))
    A('s_mov_b32 %s, %s' % (s(d + 1), s(lo + 1)))
    A('s_mov_b32 %s, 0x%x' % (s(d + 2), size))
    A('s_mov_b32 %s, 0x20000' % s(d + 3))

def stamp(A, idx, fine=0):
    over = {0: (), 1: (1, 2), 2: (1, 2, 3, 8, 4), 3: (1, 2, 8, 4, 5, 6), 4: (1, 2, 8, 4, 5, 6, 7), 5: (1, 2, 8, 4, 5, 6, 7), 6: (1, 2, 3, 8), 7: (1, 2, 3, 8, 4, 5), 8: (1, 2, 6, 7), 9: (1, 2, 3, 8, 5, 6, 7)}[OPT['fine']]
    if fine == 0 and idx in over:
        return
    if fine and OPT['fine'] != fine:
        return
    if OPT['stamps']:
        A('%s %s' % ('s_memtime' if OPT['clk'] else 's_memrealtime', s(STREG[idx], 2)))

def emit(A, L):
    for it in L:
        if isinstance(it, tuple):
            A(it[0], tag=it[1])
        else:
            A(it)

class Keep:
    def __init__(self, A): self.A = A
    def __enter__(self): self.sv = list(self.A.vm); self.sl = list(self.A.lg)
    def __exit__(self, *e): self.A.vm = self.sv; self.A.lg = self.sl

TIDS = []
TAIL = []
def tmo(name, cnt, lim, vreg):
    if not OPT['tmo']:
        return []
    TIDS.append(name)
    TAIL.extend([name + '_T:', 's_lshl_b32 s88, s2, 3', 's_add_u32 s88, s88, s4', 's_lshl_b32 s88, s88, 5', 's_add_u32 s88, s88, %d' % (len(TIDS) - 1),
                 's_lshl_b32 s88, s88, 10', 's_add_u32 s88, s88, 0x2000000', 's_memrealtime s[90:91]',
                 'buffer_store_dword %s, %s, %s, s88 offen sc1' % (v(vreg), v(254), s(SWS, 4)), 's_waitcnt vmcnt(0) lgkmcnt(0)',
                 'v_mov_b32 %s, s90' % v(vreg), 'buffer_store_dword %s, %s, %s, s88 offen offset:4 sc1' % (v(vreg), v(254), s(SWS, 4)), 's_waitcnt vmcnt(0)',
                 'v_mov_b32 %s, s3' % v(vreg), 'buffer_store_dword %s, %s, %s, s88 offen offset:8 sc1' % (v(vreg), v(254), s(SWS, 4)), 's_waitcnt vmcnt(0)',
                 's_branch %s_U' % name])
    return ['s_cmp_eq_u32 %s, %d' % (s(cnt), lim), 's_cbranch_scc1 %s_T' % name, name + '_U:']

def poll(A, name, reload, vreg, mask, cmp_nonce=True, pre=()):
    A('s_mov_b32 %s, 0' % s(sT0))
    A.label(name + '_P')
    emit(A, pre)
    if cmp_nonce:
        A('v_cmp_ne_u32 vcc, %s, %s' % (s(sNonce), v(vreg)))
    else:
        A('v_cmp_eq_u32 vcc, 0, %s' % v(vreg))
    if mask is not None:
        A('s_and_b32 vcc_lo, vcc_lo, %s' % mask)
        A('s_cmp_eq_u32 vcc_lo, 0')
    else:
        A('s_cmp_eq_u64 vcc, 0')
    A.branch('s_cbranch_scc1 %s_G' % name)
    A('s_add_u32 %s, %s, 1' % (s(sT0), s(sT0)))
    A('s_cmp_gt_u32 %s, 0x%x' % (s(sT0), BOUND))
    A.branch('s_cbranch_scc1 %s_G' % name)
    for x in tmo(name, sT0, 3000, vreg):
        A.raw(x)
    if OPT['slp']:
        A('s_sleep %d' % OPT['slp'])
    with Keep(A):
        emit(A, [reload] if isinstance(reload, str) else reload)
    A('s_waitcnt vmcnt(0)')
    A.branch('s_branch %s_P' % name)
    A.label(name + '_G')

def lds_wait(A, name, addr, n, minval, t, extra=()):
    A('s_mov_b32 %s, 0' % s(sT0))
    A.label(name + '_P')
    with Keep(A):
        A('ds_read_b128 %s, %s' % (v(t, 4), addr) if n == 4 else 'ds_read_b32 %s, %s' % (v(t), addr))
        emit(A, extra)
    A('s_add_u32 %s, %s, 1' % (s(sT0), s(sT0)))
    A('s_waitcnt lgkmcnt(0)')
    A.lg = []
    if n == 4:
        A('v_min3_u32 %s, %s, %s, %s' % (v(t), v(t), v(t + 1), v(t + 2)))
        A('v_min_u32 %s, %s, %s' % (v(t), v(t), v(t + 3)))
    A('v_readfirstlane_b32 %s, %s' % (s(sT1), v(t)))
    for x in tmo(name, sT0, 40000, t):
        A.raw(x)
    A('s_cmp_gt_u32 %s, 0x%x' % (s(sT0), BOUND * 16))
    A('s_cselect_b32 %s, %d, %s' % (s(sT1), minval, s(sT1)))
    A('s_cmp_lt_u32 %s, %d' % (s(sT1), minval))
    A.branch('s_cbranch_scc1 %s_P' % name)

vLane, vL16 = 255, 254
sRt = 38

def vcheck(A, name, regs, t, reload, back=None):
    if back is None:
        A.raw(name + '_C:')
    r = list(regs)
    if len(r) > 1:
        first = True
        while r:
            if first:
                k = r[:3]; r = r[3:]
            else:
                k = [t] + r[:2]; r = r[2:]
            A(('v_max3_u32 %s, %s, %s, %s' if len(k) == 3 else 'v_max_u32 %s, %s, %s') % tuple([v(t)] + [v(x) for x in k]))
            first = False
        A('v_cmp_eq_u32 vcc, -1, %s' % v(t))
    else:
        A('v_cmp_eq_u32 vcc, -1, %s' % v(r[0]))
    A('s_cbranch_vccnz %s_R' % name)
    A.raw(name + '_K:')
    L = [name + '_R:', 's_add_u32 %s, %s, 1' % (s(sRt), s(sRt)), 's_cmp_gt_u32 %s, 0x%x' % (s(sRt), BOUND), 's_cbranch_scc1 %s_K' % name]
    L += tmo(name, sRt, 2000, t)
    if OPT['rsl']:
        L.append('s_sleep %d' % OPT['rsl'])
    L += ['s_nop 7', 's_nop 7']
    L += [x[0] if isinstance(x, tuple) else x for x in reload]
    L += ['s_waitcnt vmcnt(0)', 's_branch %s' % (back or name + '_C')]
    TAIL.extend(L)

def tr_addr(A, dst, t, rowhalf, sel):
    A('v_lshrrev_b32 %s, 5, %s' % (v(t), v(vLane)))
    A('v_bfe_u32 %s, %s, 2, 2' % (v(t + 1), v(vLane)))
    A('v_mul_u32_u24 %s, %d, %s' % (v(t), rowhalf, v(t)))
    A('v_add_lshl_u32 %s, %s, %s, 7' % (v(dst), v(t), v(t + 1)))
    A('v_bfe_u32 %s, %s, 3, 1' % (v(t), v(vLane)))
    if sel:
        A('v_xor_b32 %s, %s, %s' % (v(t), sel, v(t)))
    A('v_lshl_add_u32 %s, %s, 6, %s' % (v(dst), v(t), v(dst)))
    A('v_bfe_u32 %s, %s, 4, 1' % (v(t), v(vLane)))
    A('v_lshl_add_u32 %s, %s, 5, %s' % (v(dst), v(t), v(dst)))
    A('v_and_b32 %s, 3, %s' % (v(t), v(vLane)))
    A('v_lshl_add_u32 %s, %s, 3, %s' % (v(dst), v(t), v(dst)))

def selector(A, dst, t):
    A('v_lshrrev_b32 %s, 2, %s' % (v(t), v(vLane)))
    A('v_xor_b32 %s, %s, %s' % (v(t), v(t), v(vLane)))
    A('v_and_b32 %s, 4, %s' % (v(t), v(t)))
    A('v_cmp_eq_u32 vcc, 0, %s' % v(t))
    A('v_mov_b32 %s, 0x3f803f80' % v(t + 1))
    A('v_cndmask_b32 %s, 0, %s, vcc' % (v(dst), v(t + 1)))
    for i in range(1, 4):
        A('v_mov_b32 %s, %s' % (v(dst + i), v(dst)))

def onehot(A, dst, key, t, first=0):
    A('v_mov_b32 %s, 0x3f80' % v(t))
    A('v_mov_b32 %s, 0x3f800000' % v(t + 1))
    for r in range(4):
        A('v_cmp_eq_u32 vcc, %d, %s' % (first + 2 * r, v(key)))
        A('v_cndmask_b32 %s, 0, %s, vcc' % (v(dst + r), v(t)))
        A('v_cmp_eq_u32 vcc, %d, %s' % (first + 2 * r + 1, v(key)))
        A('v_cndmask_b32 %s, %s, %s, vcc' % (v(dst + r), v(dst + r), v(t + 1)))

def reduce_write(A, acc, t, base_s, nrt=2):
    A('v_and_b32 %s, 31, %s' % (v(t), v(vLane)))
    A('v_lshrrev_b32 %s, 5, %s' % (v(t + 1), v(vLane)))
    A('v_xor_b32 %s, %s, %s' % (v(t + 1), v(t + 1), v(vLane)))
    A('v_and_b32 %s, 7, %s' % (v(t + 1), v(t + 1)))
    A('v_lshlrev_b32 %s, 4, %s' % (v(t + 1), v(t + 1)))
    A('v_lshl_add_u32 %s, %s, 7, %s' % (v(t), v(t), v(t + 1)))
    A('v_add_u32 %s, %s, %s' % (v(t), s(base_s), v(t)))
    for q4 in range(1, 4):
        A('v_xor_b32 %s, %d, %s' % (v(t + q4), 32 * q4, v(t)))
    for q4 in range(4):
        A('v_xor_b32 %s, 16, %s' % (v(t + 4 + q4), v(t + q4)))
        A('v_add_u32 %s, %d, %s' % (v(t + 4 + q4), 65536, v(t + 4 + q4)))
    return [('ds_write_b128 %s, %s offset:%d' % (v(t + 4 * nt + q4), v(acc + 16 * (nrt * nt + rt) + 4 * q4, 4), rt * 16384))
            for nt in range(2) for rt in range(nrt) for q4 in range(4)]

def w2_voff(A, dst, t):
    A('v_lshrrev_b32 %s, 3, %s' % (v(t), v(vLane)))
    A('v_lshrrev_b32 %s, 2, %s' % (v(t + 1), v(vLane)))
    A('v_and_b32 %s, 4, %s' % (v(t + 1), v(t + 1)))
    A('v_and_b32 %s, 7, %s' % (v(t + 2), v(vLane)))
    A('v_xor_b32 %s, %s, %s' % (v(t + 1), v(t + 1), v(t + 2)))
    A('v_lshlrev_b32 %s, 4, %s' % (v(t + 1), v(t + 1)))
    A('s_lshl_b32 %s, %s, 7' % (s(sT0), s(sCb)))
    A('v_lshl_add_u32 %s, %s, 10, %s' % (v(dst), v(t), v(t + 1)))
    A('v_add_u32 %s, %s, %s' % (v(dst), s(sT0), v(dst)))

def quad(vo, srdn, ldsbase, tag):
    L = []
    L.append('s_lshl_b32 m0, %s, 12' % s(sJ))
    if ldsbase:
        L.append('s_add_u32 m0, m0, %d' % ldsbase)
    for i in range(4):
        if i:
            L.append('s_add_u32 %s, %s, %d' % (s(sO[i]), s(sO[0]), 7168 * i))
        L.append(('buffer_load_dwordx4 %s, %s, %s offen offset:%d lds' % (v(vo[i & 1]), s(srdn, 4), s(sO[i]), 1024 * i), tag))
    return L

def xres(A, vOo, vX):
    A('v_lshrrev_b32 %s, 3, %s' % (v(vOo), v(vLane)))
    A('v_and_b32 %s, 7, %s' % (v(vOo + 1), v(vLane)))
    A('v_lshlrev_b32 %s, 10, %s' % (v(vOo), v(vOo)))
    A('v_lshl_add_u32 %s, %s, 4, %s' % (v(vOo), v(vOo + 1), v(vOo)))
    A('s_lshl_b32 %s, %s, 3' % (s(6), s(sRb2)))
    A('s_add_u32 %s, %s, %s' % (s(6), s(6), s(sWave)))
    A('s_lshl_b32 %s, %s, 13' % (s(6), s(6)))
    A('s_lshl_b32 %s, %s, 7' % (s(7), s(sCb)))
    A('s_add_u32 %s, %s, %s' % (s(6), s(6), s(7)))
    A('buffer_load_dwordx4 %s, %s, %s, %s offen' % (v(vX, 4), v(vOo), s(SX, 4), s(6)), tag='xres')

def gen():
    A = Asm()
    vT = 236
    A.raw('.p2align 8')
    A.raw('.type %s_kernel,@function' % NAME)
    A.raw('%s_kernel:' % NAME)
    A('s_cmp_ge_u32 s2, 256')
    A.branch('s_cbranch_scc1 L_END')
    A('s_load_dwordx16 s[16:31], s[0:1], 0')
    A('s_load_dwordx4 s[32:35], s[0:1], 64')
    A('s_load_dwordx2 s[36:37], s[0:1], 80')
    A('s_memrealtime s[6:7]')
    A('v_and_b32 %s, 63, v0' % v(vLane))
    A('v_lshrrev_b32 %s, 6, v0' % v(vT))
    A('v_lshlrev_b32 %s, 4, %s' % (v(vL16), v(vLane)))
    A('v_readfirstlane_b32 %s, %s' % (s(sWave), v(vT)))
    A('s_and_b32 %s, s2, 7' % s(sT0))
    A('s_lshr_b32 %s, s2, 3' % s(sT1))
    A('s_and_b32 %s, %s, 1' % (s(sRb), s(sT0)))
    A('s_lshl_b32 %s, %s, 3' % (s(sRb), s(sRb)))
    A('s_and_b32 %s, %s, 7' % (s(sT2), s(sT1)))
    A('s_add_u32 %s, %s, %s' % (s(sRb), s(sRb), s(sT2)))
    A('s_lshr_b32 %s, %s, 1' % (s(sCg), s(sT0)))
    A('s_lshl_b32 %s, %s, 2' % (s(sCg), s(sCg)))
    A('s_lshr_b32 %s, %s, 3' % (s(sT2), s(sT1)))
    A('s_add_u32 %s, %s, %s' % (s(sCg), s(sCg), s(sT2)))
    A('s_and_b32 %s, %s, 1' % (s(sTyp), s(sCg)))
    A('s_lshr_b32 %s, %s, 1' % (s(sG), s(sCg)))
    A('s_xor_b32 %s, %s, %d' % (s(sGq), s(sG), 2 * OPT['xq']))
    A('s_cmp_eq_u32 %s, 1' % s(sTyp))
    A('s_cselect_b32 %s, %s, %s' % (s(sGq), s(sG), s(sGq)))
    A('s_lshl_b32 %s, %s, 1' % (s(sF), s(sCg)))
    A('s_add_u32 %s, %s, %s' % (s(sF), s(sF), s(sRb)))
    if OPT['rm']:
        A('s_and_b32 %s, %s, 3' % (s(sF), s(sCg)))
        A('s_lshl_b32 %s, %s, 1' % (s(sF), s(sF)))
        A('s_and_b32 %s, %s, 7' % (s(sT2), s(sRb)))
        A('s_add_u32 %s, %s, %s' % (s(sF), s(sF), s(sT2)))
        A('s_sub_u32 %s, %s, 7' % (s(sT2), s(sF)))
        A('s_cmp_ge_u32 %s, 7' % s(sF))
        A('s_cselect_b32 %s, %s, %s' % (s(sF), s(sT2), s(sF)))
        A('s_xor_b32 %s, %s, %s' % (s(38), s(sCg), s(sRb)))
        A('s_and_b32 %s, %s, %d' % (s(38), s(38), OPT['rm'] - 1))
    else:
        A('s_and_b32 %s, %s, %d' % (s(sF), s(sF), OPT['rot']))
    if OPT['xmap']:
        A('s_lshr_b32 %s, %s, 1' % (s(sRb2), s(sT0)))
        A('s_andn2_b32 %s, 1, %s' % (s(sT2), s(sT0)))
        A('s_lshl_b32 %s, %s, 2' % (s(sT2), s(sT2)))
        A('s_add_u32 %s, %s, %s' % (s(sRb2), s(sRb2), s(sT2)))
        A('s_lshl_b32 %s, %s, 2' % (s(sRb2), s(sRb2)))
    else:
        A('s_lshl_b32 %s, %s, 2' % (s(sRb2), s(sT0)))
    A('s_and_b32 %s, %s, 3' % (s(sT2), s(sT1)))
    A('s_add_u32 %s, %s, %s' % (s(sRb2), s(sRb2), s(sT2)))
    A('s_lshr_b32 %s, %s, 2' % (s(sCb), s(sT1)))
    if OPT['m2']:
        A('s_xor_b32 %s, %s, %s' % (s(sT2), s(sRb2), s(sCb)))
        A('s_and_b32 %s, %s, 4' % (s(sT2), s(sT2)))
        A('s_xor_b32 %s, %s, %s' % (s(sRb2), s(sRb2), s(sT2)))
        A('s_xor_b32 %s, %s, %s' % (s(sCb), s(sCb), s(sT2)))
    A('s_and_b32 %s, %s, 3' % (s(sJ), s(sWave)))
    if not OPT['rm']:
        A('s_mov_b32 %s, 0' % s(sRt))
    A('s_cmp_ge_u32 %s, 4' % s(sWave))
    A.branch('s_cbranch_scc1 C_START')
    gen_loader(A)
    gen_compute(A)
    gen_final(A)
    return A.text()

def gen_loader(A):
    vXo, vP1, vP2, vP3, v2o = 224, 226, 227, 228, 252
    vNon, vG, vTa, vFl = 230, 232, 234, 253
    vT = 236
    vRow = 0
    vCf = 32
    vCa = 56
    vSel = 68
    vGa = 72
    vB1 = 104
    sPA16, sPA8, sPB16, sPB8 = 52, 53, 54, 55
    sC1, sC2, sC3 = SWO, SWO + 1, SWO + 2
    sStat = 7
    A('s_lshl_b32 %s, %s, 7' % (s(sT0), s(sG)))
    A('s_lshl_b32 %s, %s, 8' % (s(sT1), s(sG)))
    A('s_add_u32 %s, %s, 1024' % (s(sC1), s(sT0)))
    A('s_add_u32 %s, %s, 2048' % (s(sC2), s(sT0)))
    A('s_add_u32 %s, %s, 128' % (s(sT3), s(sT1)))
    A('s_lshl_b32 %s, %s, 7' % (s(sT2), s(sGq)))
    A('s_cmp_eq_u32 %s, 1' % s(sTyp))
    A('s_cselect_b32 %s, %s, %s' % (s(sC3), s(sC2), s(sT2)))
    A('s_cselect_b32 %s, %s, %s' % (s(sC1), s(sC1), s(sT1)))
    A('s_cselect_b32 %s, %s, %s' % (s(sC2), s(sC2), s(sT3)))
    A('s_movk_i32 %s, 2752' % s(sT1))
    A('s_cselect_b32 %s, 3072, %s' % (s(sT2), s(sT1)))
    A('s_cselect_b32 %s, %s, 3072' % (s(sT3), s(sT1)))
    w2_voff(A, v2o, vT)
    A('v_mul_u32_u24 %s, %s, %s' % (v(vP2), s(sT2), v(vT)))
    A('v_add3_u32 %s, %s, %s, %s' % (v(vP1), v(vP2), v(vT + 1), s(sC1)))
    A('v_add3_u32 %s, %s, %s, %s' % (v(vP2), v(vP2), v(vT + 1), s(sC2)))
    A('v_add_u32 %s, %s, %s' % (v(vT + 3), s(sC3), v(vT + 1)))
    A('v_mul_u32_u24 %s, %s, %s' % (v(vP3), s(sT3), v(vT)))
    A('v_add_u32 %s, %s, %s' % (v(vP3), v(vP3), v(vT + 3)))
    A('v_cmp_gt_u32 vcc, 2752, %s' % v(vT + 3))
    A('v_mov_b32 %s, 0x%x' % (v(vT + 3), OOB))
    A('v_cndmask_b32 %s, %s, %s, vcc' % (v(vP3), v(vT + 3), v(vP3)))
    A('s_lshl_b32 %s, %s, 4' % (s(sPA16), s(sT2)))
    A('s_lshl_b32 %s, %s, 3' % (s(sPA8), s(sT2)))
    A('s_sub_u32 %s, %s, 1024' % (s(sPA8), s(sPA8)))
    A('s_lshl_b32 %s, %s, 4' % (s(sPB16), s(sT3)))
    A('s_lshl_b32 %s, %s, 3' % (s(sPB8), s(sT3)))
    A('s_sub_u32 %s, %s, 1024' % (s(sPB8), s(sPB8)))
    A('v_lshrrev_b32 %s, 4, %s' % (v(vT + 1), v(vLane)))
    A('v_xor_b32 %s, %s, %s' % (v(vT + 1), v(vT + 1), v(vT + 2)))
    A('s_lshl_b32 %s, %s, 2' % (s(sT0), s(sRb)))
    A('s_add_u32 %s, %s, %s' % (s(sT0), s(sT0), s(sJ)))
    A('s_lshl_b32 %s, %s, 15' % (s(sT0), s(sT0)))
    A('v_lshlrev_b32 %s, 10, %s' % (v(vXo), v(vT)))
    A('v_lshl_add_u32 %s, %s, 4, %s' % (v(vXo), v(vT + 1), v(vXo)))
    A('v_add_u32 %s, %s, %s' % (v(vXo), s(sT0), v(vXo)))
    A('v_xor_b32 %s, 64, %s' % (v(vXo + 1), v(vXo)))
    A('s_lshl_b32 %s, %s, 11' % (s(sM), s(sJ)))
    A('s_lshl_b32 %s, %s, 4' % (s(sA), s(sRb)))
    A('s_add_u32 %s, %s, %s' % (s(sA), s(sA), s(sCg)))
    A('s_lshl_b32 %s, %s, 2' % (s(sA), s(sA)))
    A('s_add_u32 %s, %s, %s' % (s(sA), s(sA), s(sJ)))
    A('s_lshl_b32 %s, %s, 11' % (s(sB), s(sA)))
    A('v_and_b32 %s, 32, %s' % (v(vT + 4), v(vLane)))
    A('v_lshl_add_u32 %s, %s, 4, %s' % (v(vT + 4), v(vT + 4), v(vL16)))
    A('v_mov_b32 %s, 0' % v(vT + 5))
    A('s_or_b32 %s, s2, %s' % (s(sT0), s(sWave)))
    A('s_waitcnt lgkmcnt(0)')
    srd(A, SD, 34, 256)
    A('s_cmp_lg_u32 %s, 0' % s(sT0))
    A.branch('s_cbranch_scc1 L_NONONCE')
    A('s_or_b32 s6, s6, 1')
    A('v_mov_b32 %s, s6' % v(vT))
    with Keep(A):
        A('buffer_store_dword %s, %s, %s, 0 offen offset:128 sc1' % (v(vT), v(vT + 5), s(SD, 4)))
    A.label('L_NONONCE')
    srd(A, SX, 16, 2048 * 1024)
    A('s_cmp_eq_u32 %s, 1' % s(sTyp))
    for d, x_, y_, p16 in ((SA, 18, 26, sPA16), (SB, 26, 18, sPB16)):
        A('s_cselect_b32 %s, %s, %s' % (s(d), s(x_), s(y_)))
        A('s_cselect_b32 %s, %s, %s' % (s(d + 1), s(x_ + 1), s(y_ + 1)))
        A('s_mov_b32 %s, 0x20000' % s(d + 3))
    A('s_lshl_b32 %s, %s, 5' % (s(SA + 2), s(sPA16)))
    A('s_lshl_b32 %s, %s, 5' % (s(SB + 2), s(sPB16)))
    stamp(A, 0)

    def chunk(st):
        if OPT['rm']:
            if st == 0:
                return ['s_mov_b32 %s, %s' % (s(sT3), s(38))]
            return ['s_add_u32 %s, %s, %d' % (s(sT3), s(sF), st),
                    's_sub_u32 %s, %s, 7' % (s(sO[0]), s(sT3)),
                    's_cmp_ge_u32 %s, 8' % s(sT3),
                    's_cselect_b32 %s, %s, %s' % (s(sT3), s(sO[0]), s(sT3)),
                    's_xor_b32 %s, %s, %s' % (s(sT3), s(sT3), s(38))]
        return ['s_add_u32 %s, %s, %d' % (s(sT3), s(sF), st),
                's_and_b32 %s, %s, 7' % (s(sT3), s(sT3))]
    def krow(st):
        return chunk(st) + [
                's_lshl_b32 %s, %s, 2' % (s(sT3), s(sT3)),
                's_add_u32 %s, %s, %s' % (s(sT3), s(sT3), s(sJ))]
    def grp_w(st):
        L = krow(st)
        L.append('s_mul_i32 %s, %s, %s' % (s(sO[0]), s(sT3), s(sPA16)))
        L.append('s_add_u32 m0, %s, %d' % (s(sM), WP(st & 3)))
        L.append('s_add_u32 %s, %s, %s' % (s(sO[1]), s(sO[0]), s(sPA8)))
        L.append(('buffer_load_dwordx4 %s, %s, %s offen lds' % (v(vP1), s(SA, 4), s(sO[0])), 's%d' % st))
        L.append(('buffer_load_dwordx4 %s, %s, %s offen offset:1024 lds' % (v(vP1), s(SA, 4), s(sO[1])), 's%d' % st))
        L.append('s_add_u32 m0, %s, %d' % (s(sM), WP(st & 3) + 8192))
        L.append(('buffer_load_dwordx4 %s, %s, %s offen lds' % (v(vP2), s(SA, 4), s(sO[0])), 's%d' % st))
        L.append(('buffer_load_dwordx4 %s, %s, %s offen offset:1024 lds' % (v(vP2), s(SA, 4), s(sO[1])), 's%d' % st))
        return L
    def grp_p3(st):
        tag = ('s1' if OPT['rp'] else 's0') if st == 0 else 'p3'
        L = krow(st)
        if OPT['rm'] and st < 2:
            assert OPT['rm'] == 1
            L = ['s_add_u32 %s, %s, 1' % (s(sO[1]), s(sF)),
                 's_and_b32 %s, %s, 7' % (s(sT3), s(sRb)),
                 's_cmp_%s_u32 %s, 7' % ('lg' if st else 'eq', s(sT3)),
                 's_cselect_b32 %s, 0, %s' % (s(sT3), s(sO[1])),
                 's_cselect_b32 %s, %d, %d' % (s(sO[1]), 0, 1),
                 's_lshl_b32 %s, %s, 13' % (s(sO[1]), s(sO[1])),
                 's_add_u32 %s, %s, %s' % (s(sO[1]), s(sO[1]), s(sM))] + L[-2:]
        L.append('s_mul_i32 %s, %s, %s' % (s(sO[0]), s(sT3), s(sPB16)))
        if OPT['rm'] and st < 2:
            L.append('s_add_u32 m0, %s, %d' % (s(sO[1]), P3B[0]))
        else:
            L.append('s_add_u32 m0, %s, %d' % (s(sM), P3B[st]))
        L.append('s_add_u32 %s, %s, %s' % (s(sO[1]), s(sO[0]), s(sPB8)))
        L.append(('buffer_load_dwordx4 %s, %s, %s offen lds' % (v(vP3), s(SB, 4), s(sO[0])), tag))
        L.append(('buffer_load_dwordx4 %s, %s, %s offen offset:1024 lds' % (v(vP3), s(SB, 4), s(sO[1])), tag))
        return L
    def grp_x(st):
        L = chunk(st)
        L.append('s_lshl_b32 %s, %s, 7' % (s(sO[0]), s(sT3)))
        return L + quad((vXo, vXo + 1), SX, XP(st & 3), 's%d' % st)
    UL = [(8, 0), (8, 1), (8, 4), (8, 5), (3, 32), (3, 33), (3, 34), (8, 2), (8, 3), (8, 6), (8, 7)]
    UL = UL[:4] + UL[7:] + UL[4:7]
    UPY = [WP(1), WP(2), XP(2), XP(3), WP(3), WP(1), WP(2), WP(1), XP(0), XP(1), WP(0)]
    UPX = [WP(1), WP(2), WP(1), WP(2), WP(1), WP(2), WP(1), WP(1), XP(0), XP(1), WP(0)]
    def grp_w2(i, UP=UPY):
        m, c = UL[i]
        L = ['s_mul_i32 %s, %s, %d' % (s(sO[0]), s(sJ), m * 32768)]
        if c:
            L.append('s_add_u32 %s, %s, %d' % (s(sO[0]), s(sO[0]), c * 32768))
        return L + quad((v2o, v2o), SW2, UP[i], 'u%d' % i)
    groups = []
    for st in range(8):
        groups += [('w', st), ('x', st)]
    SCHED = {0: [6, 2, 2, 2, 2, 2], 1: [4, 4, 2, 2, 2, 2], 2: [8, 0, 2, 2, 2, 2], 3: [5, 3, 2, 2, 2, 2]}[OPT['sched']]
    pos = [0]
    def issue(n, iv):
        for _ in range(n):
            kind, st = groups[pos[0]]
            assert st <= iv + 3 or st < 4, (st, iv)
            emit(A, grp_w(st) if kind == 'w' else grp_x(st))
            pos[0] += 1

    nload = 'buffer_load_dword %s, %s, %s, 0 offen offset:128 sc1' % (v(vNon), v(vT + 5), s(SD, 4))
    A('buffer_load_dwordx4 %s, %s, %s, %s offen' % (v(vRow, 4), v(vT + 4), s(SX, 4), s(sB)), tag='row')
    A('buffer_load_dwordx4 %s, %s, %s, %s offen offset:512' % (v(vRow + 4, 4), v(vT + 4), s(SX, 4), s(sB)), tag='row')
    issue(2, -1)
    if not OPT['rp']:
        emit(A, grp_p3(0))
    A(nload, tag='s0')
    issue(2, -1)
    if OPT['rp']:
        assert OPT['rm']
        emit(A, grp_p3(0))
    A('buffer_load_dword %s, %s, %s, 0 offen offset:128 sc1' % (v(vNon + 1), v(vT + 5), s(SD, 4)), tag='non2')
    srd(A, SWS, 36, WS_SIZE)
    A('s_lshl_b32 %s, %s, 4' % (s(sStat), s(sA)))
    A('s_add_u32 %s, %s, 0x%x' % (s(sStat), s(sStat), WS_STAT))
    srd(A, SW2, 30, 1376 * 1024)

    def xsum32(r, t):
        for ctl in ('quad_perm:[1,0,3,2]', 'quad_perm:[2,3,0,1]', 'row_half_mirror', 'row_mirror'):
            A('v_add_f32_dpp %s, %s, %s %s row_mask:0xf bank_mask:0xf' % (v(r), v(r), v(r), ctl))
        A('v_mov_b32 %s, %s' % (v(t), v(r)))
        A('v_permlane16_swap_b32 %s, %s' % (v(r), v(t)))
        A('v_add_f32 %s, %s, %s' % (v(r), v(r), v(t)))
    U = vRow + 8
    tr_addr(A, vTa, vT, 8, s(sJ))
    A('s_lshr_b32 %s, %s, 3' % (s(sT0), s(sRb)))
    A('s_lshl_b32 %s, %s, 12' % (s(sT0), s(sT0)))
    A('s_add_u32 %s, %s, %d' % (s(sT0), s(sT0), L_W))
    A('v_add_u32 %s, %s, %s' % (v(vTa), s(sT0), v(vTa)))
    if OPT['rm']:
        A('s_and_b32 %s, %s, 7' % (s(sT0), s(sRb)))
        A('s_cmp_eq_u32 %s, 7' % s(sT0))
        A('s_cselect_b32 %s, 0, 8192' % s(sT0))
        A('s_add_u32 %s, %s, %d' % (s(sT0), s(sT0), P3B[0] - L_W))
        A('v_add_u32 %s, %s, %s' % (v(vTa + 1), s(sT0), v(vTa)))
    else:
        A('v_add_u32 %s, %d, %s' % (v(vTa + 1), P3B[0] - L_W, v(vTa)))
    selector(A, vSel, vT)
    A('v_lshlrev_b32 %s, 2, %s' % (v(vFl), v(vLane)))
    A('v_and_b32 %s, 0x7c, %s' % (v(vFl), v(vFl)))
    A.wait_vm('row')
    for j in range(8):
        A('v_lshlrev_b32 %s, 16, %s' % (v(U + 2 * j), v(vRow + j)))
        A('v_and_b32 %s, 0xffff0000, %s' % (v(U + 2 * j + 1), v(vRow + j)))
    for j in range(4):
        A('v_add_f32 %s, %s, %s' % (v(vRow + j), v(U + j), v(U + 4 + j)))
        A('v_add_f32 %s, %s, %s' % (v(vRow + 4 + j), v(U + 8 + j), v(U + 12 + j)))
    for st_ in (4, 2, 1):
        for j in range(st_):
            A('v_add_f32 %s, %s, %s' % (v(vRow + j), v(vRow + j), v(vRow + st_ + j)))
    xsum32(vRow, vRow + 1)
    A('v_mul_f32 %s, 0xbb000000, %s' % (v(vRow), v(vRow)))
    for j in range(16):
        A('v_add_f32 %s, %s, %s' % (v(U + j), v(U + j), v(vRow)))
    for j in range(4):
        A('v_mul_f32 %s, %s, %s' % (v(vRow + 4 + j), v(U + j), v(U + j)))
    for j in range(4, 16):
        A('v_fmac_f32 %s, %s, %s' % (v(vRow + 4 + (j & 3)), v(U + j), v(U + j)))
    r = vRow + 4
    A('v_add_f32 %s, %s, %s' % (v(r), v(r), v(r + 1)))
    A('v_add_f32 %s, %s, %s' % (v(r + 2), v(r + 2), v(r + 3)))
    A('v_add_f32 %s, %s, %s' % (v(r), v(r), v(r + 2)))
    xsum32(r, r + 1)
    A('v_mul_f32 %s, 0x3b000000, %s' % (v(r), v(r)))
    A('v_cvt_pk_bf16_f32 %s, %s, %s' % (v(r), v(r), v(r)))
    A('v_lshlrev_b32 %s, 16, %s' % (v(r), v(r)))
    A('v_add_f32 %s, 0x3727c5ac, %s' % (v(r), v(r)))
    A('v_cvt_pk_bf16_f32 %s, %s, %s' % (v(r), v(r), v(r)))
    A('v_lshlrev_b32 %s, 16, %s' % (v(r), v(r)))
    A('v_sqrt_f32 %s, %s' % (v(r), v(r)))
    A('v_cvt_pk_bf16_f32 %s, %s, %s' % (v(vG), v(vRow), v(r)))
    A('v_cmp_eq_u32 vcc, 0, %s' % v(vFl))
    A('v_lshrrev_b32 %s, 2, %s' % (v(vT), v(vLane)))
    A('v_mov_b32 %s, 0x%x' % (v(vT + 1), OOB))
    A('v_cndmask_b32 %s, %s, %s, vcc' % (v(vT + 4), v(vT + 1), v(vT)))
    issue(SCHED[0] - 4, -1)
    A.wait_vm('s0')
    A('s_barrier')
    stamp(A, 1)
    A('s_cmp_ge_u32 %s, 2' % s(sJ))
    A.branch('s_cbranch_scc1 L_NOCF')
    with Keep(A):
        for ks in range(2):
            for u in range(2 if OPT['rp'] else 3):
                for hh in range(2):
                    A('ds_read_b64_tr_b16 %s, %s offset:%d' % (v(vCf + 12 * ks + 4 * u + 2 * hh, 2), v(vTa + (u >> 1)), 8192 * (u & 1) + 2048 * ks + 512 * hh))
    A.label('L_NOCF')
    A('v_readfirstlane_b32 %s, %s' % (s(sNonce), v(vNon)))
    A('s_cmp_lg_u32 %s, 0' % s(sNonce))
    A.branch('s_cbranch_scc1 LN_DONE')
    with Keep(A):
        A.wait_vm('non2')
        A('v_mov_b32 %s, %s' % (v(vNon), v(vNon + 1)))
        poll(A, 'LN', nload, vNon, None, cmp_nonce=False)
        A('v_readfirstlane_b32 %s, %s' % (s(sNonce), v(vNon)))
    A.label('LN_DONE')
    A('v_mov_b32 %s, %s' % (v(vG + 1), v(vNon)))
    A('buffer_store_dwordx2 %s, %s, %s, %s offen sc1' % (v(vG, 2), v(vT + 4), s(SWS, 4), s(sStat)), tag='pub')
    A('s_cmp_ge_u32 %s, 2' % s(sJ))
    A.branch('s_cbranch_scc1 LB_START')
    vm0 = list(A.vm)
    pos0 = pos[0]

    def bar(n):
        A('s_barrier')
        if n == 4:
            stamp(A, 2)
        if n in (5, 6, 7):
            stamp(A, {5: 1, 6: 2, 7: 8}[n], 3)
    GI = OPT['gi']
    vA0, vB0 = 244, 246
    vFw = 248
    vSdw = 251
    vSg, vZo, vKw, vKf = 192, 196, 197, 199
    def prep_kv():
        A('v_and_b32 %s, 15, %s' % (v(vT), v(vLane)))
        A('v_lshrrev_b32 %s, 4, %s' % (v(vT + 1), v(vLane)))
        A('v_lshlrev_b32 %s, 3, %s' % (v(vT + 2), v(vT + 1)))
        A('v_xor_b32 %s, %s, %s' % (v(vT + 2), v(vT + 2), v(vT)))
        A('v_and_b32 %s, 15, %s' % (v(vT + 2), v(vT + 2)))
        onehot(A, vSg, vT + 2, vT + 3)
        A('v_lshrrev_b32 %s, 3, %s' % (v(vT + 3), v(vT)))
        A('v_mul_u32_u24 %s, %d, %s' % (v(vZo), KVS - 512, v(vT + 3)))
        A('v_lshl_add_u32 %s, %s, 4, %s' % (v(vZo), v(vT + 1), v(vZo)))
        A('v_lshl_add_u32 %s, %s, 6, %s' % (v(vZo), v(vT), v(vZo)))
        A('v_lshrrev_b32 %s, 1, %s' % (v(vT + 2), v(vT + 1)))
        A('v_mul_u32_u24 %s, 272, %s' % (v(vT + 2), v(vT + 2)))
        A('v_and_b32 %s, 1, %s' % (v(vT + 1), v(vT + 1)))
        A('v_lshl_add_u32 %s, %s, 3, %s' % (v(vT + 2), v(vT + 1), v(vT + 2)))
        A('s_mul_i32 %s, %s, %d' % (s(sT0), s(sJ), KVH))
        A('s_add_u32 %s, %s, %d' % (s(sT0), s(sT0), KVL))
        A('v_add_u32 %s, %s, %s' % (v(vT + 2), s(sT0), v(vT + 2)))
        A('v_lshl_add_u32 %s, %s, 4, %s' % (v(vKw), v(vT), v(vT + 2)))
        A('v_mul_u32_u24 %s, 544, %s' % (v(vT + 3), v(vT + 3)))
        A('v_add_u32 %s, %s, %s' % (v(vKw + 1), v(vT + 2), v(vT + 3)))
        A('v_and_b32 %s, 0x33, %s' % (v(vT), v(vLane)))
        A('v_bfe_u32 %s, %s, 2, 1' % (v(vT + 1), v(vLane)))
        A('v_lshl_or_b32 %s, %s, 3, %s' % (v(vT), v(vT + 1), v(vT)))
        A('v_bfe_u32 %s, %s, 3, 1' % (v(vT + 1), v(vLane)))
        A('v_lshl_or_b32 %s, %s, 2, %s' % (v(vT), v(vT + 1), v(vT)))
        A('v_lshlrev_b32 %s, 1, %s' % (v(vSdw), v(vT)))
    def lwarm():
        srd(A, STMP, 22, 512 * 1024)
        A('s_lshr_b32 %s, s2, 3' % s(sT0))
        A('s_lshl_b32 %s, %s, 2' % (s(sT0), s(sT0)))
        A('s_add_u32 %s, %s, %s' % (s(sT0), s(sT0), s(sJ)))
        A('v_lshlrev_b32 %s, 7, %s' % (v(vT), v(vLane)))
        A('s_mul_i32 %s, %s, %d' % (s(sT1), s(sT0), 86 * 128))
        A('buffer_load_dword %s, %s, %s, %s offen' % (v(107), v(vT), s(SW2, 4), s(sT1)), tag='wm')
        A('v_cmp_gt_u32 vcc, 22, %s' % v(vLane))
        A('v_mov_b32 %s, 0x%x' % (v(vT + 3), OOB))
        A('v_cndmask_b32 %s, %s, %s, vcc' % (v(vT + 2), v(vT + 3), v(vT)))
        A('s_add_u32 %s, %s, 8192' % (s(sT1), s(sT1)))
        A('buffer_load_dword %s, %s, %s, %s offen' % (v(107), v(vT + 2), s(SW2, 4), s(sT1)), tag='wm')
        A('v_cmp_gt_u32 vcc, 32, %s' % v(vLane))
        A('v_cndmask_b32 %s, %s, %s, vcc' % (v(vT + 2), v(vT + 3), v(vT)))
        A('s_lshl_b32 %s, %s, 12' % (s(sT1), s(sT0)))
        A('buffer_load_dword %s, %s, %s, %s offen' % (v(107), v(vT + 2), s(STMP, 4), s(sT1)), tag='wm')
    def prep2():
        tr_addr(A, vA0, vT, 4, None)
        A('s_lshl_b32 %s, %s, 1' % (s(sT0), s(sM)))
        A('v_add_u32 %s, %s, %s' % (v(vA0), s(sT0), v(vA0)))
        A('v_xor_b32 %s, 64, %s' % (v(vA0 + 1), v(vA0)))
        A('v_add_u32 %s, %d, %s' % (v(vB0), L_W, v(vA0)))
        A('v_add_u32 %s, %d, %s' % (v(vB0 + 1), L_W, v(vA0 + 1)))
        A('s_lshl_b32 %s, %s, 2' % (s(sT0), s(sJ)))
        A('s_add_u32 %s, %s, %d' % (s(sT0), s(sT0), FL_P3))
        A('v_mov_b32 %s, %s' % (v(vFw), s(sT0)))
        A('v_mov_b32 %s, 1' % v(vFw + 1))
        srd(A, SWO, 22, 512 * 1024)
    for k in 'AB':
        if k == 'B':
            A.label('LB_START')
            A.vm = list(vm0); A.lg = []; pos[0] = pos0
        sCs = 6
        if k == 'A':
            A('s_lshl_b32 %s, %s, 1' % (s(sCs), s(sCg)))
            A('s_add_u32 %s, %s, %s' % (s(sCs), s(sCs), s(sJ)))
            A('s_lshl_b32 %s, %s, 13' % (s(sCs), s(sCs)))
            A('s_add_u32 %s, %s, 0x%x' % (s(sCs), s(sCs), WS_CS))
            def colsum():
                if OPT['rm']:
                    A('s_and_b32 %s, %s, 7' % (s(sT1), s(sRb)))
                    A('s_cmp_eq_u32 %s, 7' % s(sT1))
                    A.branch('s_cbranch_scc1 L_CS0')
                    with Keep(A):
                        for ks in range(2):
                            for u in range(2):
                                for hh in range(2):
                                    A('ds_read_b64_tr_b16 %s, %s offset:%d' % (v(vCf + 12 * ks + 4 * u + 2 * hh, 2), v(vTa), 16384 + 8192 * u + 2048 * ks + 512 * hh))
                    A.label('L_CS0')
                    if OPT['rp']:
                        with Keep(A):
                            for ks in range(2):
                                for hh in range(2):
                                    A('ds_read_b64_tr_b16 %s, %s offset:%d' % (v(vCf + 12 * ks + 8 + 2 * hh, 2), v(vTa + 1), 2048 * ks + 512 * hh))
                A('s_lshl_b32 %s, %s, 9' % (s(sT1), s(sRb)))
                A('s_add_u32 %s, %s, %s' % (s(sT1), s(sT1), s(sCs)))
                A('v_and_b32 %s, 0x1ff, %s' % (v(vT), v(vL16)))
                A('s_waitcnt lgkmcnt(0)')
                for ks in range(2):
                    for u in range(3):
                        A('v_mfma_f32_16x16x32_bf16 %s, %s, %s, %s' % (v(vCa + 4 * u, 4), v(vSel, 4), v(vCf + 12 * ks + 4 * u, 4), '0' if ks == 0 else v(vCa + 4 * u, 4)))
                A('v_mov_b32 %s, %s' % (v(vCa + 1), v(vCa + 4)))
                A('v_mov_b32 %s, %s' % (v(vCa + 2), v(vCa + 8)))
                A('v_mov_b32 %s, %s' % (v(vCa + 3), v(vNon)))
                A('buffer_store_dwordx4 %s, %s, %s, %s offen sc1' % (v(vCa, 4), v(vT), s(SWS, 4), s(sT1)), tag='css')
            if not OPT['rm']:
                colsum()
            A('s_add_u32 %s, %s, 4096' % (s(sStat), s(sCs)))
            gal = ['buffer_load_dwordx4 %s, %s, %s, %s offen offset:%d sc1' % (v(vGa + 4 * i, 4), v(vL16), s(SWS, 4), s(sCs if i < 4 else sStat), 1024 * (i & 3)) for i in range(8)]
        else:
            A('s_lshl_b32 %s, %s, 1' % (s(sStat), s(sRb)))
            A('s_add_u32 %s, %s, %s' % (s(sStat), s(sStat), s(sJ)))
            A('s_lshl_b32 %s, %s, 9' % (s(sStat), s(sStat)))
            A('s_add_u32 %s, %s, 0x%x' % (s(sStat), s(sStat), WS_STAT - 1024))
            A('v_lshlrev_b32 %s, 3, %s' % (v(vTa), v(vLane)))
            gal = ['buffer_load_dwordx2 %s, %s, %s, %s offen sc1' % (v(vGa, 2), v(vTa), s(SWS, 4), s(sStat))]
        def gather():
            emit(A, [(x, 'ga') for x in gal])
        def small():
            if k == 'A':
                srd(A, STMP, 28, 2752)
                A('s_lshl_b32 %s, %s, 6' % (s(sT0), s(sJ)))
                A('s_add_u32 %s, %s, %s' % (s(sC1), s(sC1), s(sT0)))
                A('s_add_u32 %s, %s, %s' % (s(sC2), s(sC2), s(sT0)))
                A('s_add_u32 %s, %s, %s' % (s(sC3), s(sC3), s(sT0)))
                A('s_cmp_eq_u32 %s, 1' % s(sTyp))
                A('s_cselect_b32 %s, 0x%x, %s' % (s(sC1), OOB, s(sC1)))
                A('s_cselect_b32 %s, 0x%x, %s' % (s(sC2), OOB, s(sC2)))
                A('s_cselect_b32 %s, %s, 0x%x' % (s(sC3), s(sC3), OOB))
                A('v_lshrrev_b32 %s, 1, %s' % (v(vT), v(vFl)))
                for u in range(3):
                    A('buffer_load_ushort %s, %s, %s, %s offen' % (v(vB1 + u), v(vT), s(STMP, 4), s(sC1 + u)), tag='b1')
            else:
                srd(A, STMP, 20, 16384)
                A('s_lshl_b32 %s, %s, 1' % (s(sT0), s(sGq)))
                A('s_add_u32 %s, %s, %s' % (s(sT0), s(sT0), s(sJ)))
                A('s_lshl_b32 %s, %s, 10' % (s(sT0), s(sT0)))
                A('s_sub_u32 %s, %s, 2048' % (s(sT0), s(sT0)))
                A('s_lshr_b32 %s, %s, 1' % (s(sT1), s(sM)))
                A('s_add_u32 m0, %s, %d' % (s(sT1), TPH - 2048))
                A('buffer_load_dwordx4 %s, %s, %s offen lds' % (v(vL16), s(STMP, 4), s(sT0)), tag='b1')
        def tables():
            A.wait_vm('ga')
            stamp(A, 4, 3)
            if k == 'B':
                poll(A, 'LST', gal, vGa + 1, None)
                A('v_and_b32 %s, 0xffff, %s' % (v(vT), v(vGa)))
                A('v_lshl_or_b32 %s, %s, 16, %s' % (v(vT), v(vGa), v(vT)))
                A('v_lshrrev_b32 %s, 16, %s' % (v(vT + 1), v(vGa)))
                A('v_and_b32 %s, 0xffff0000, %s' % (v(vGa), v(vGa)))
                A('v_rcp_f32 %s, %s' % (v(vT + 2), v(vGa)))
                A('s_lshr_b32 %s, %s, 2' % (s(sT0), s(sM)))
                A('s_add_u32 %s, %s, %d' % (s(sT0), s(sT0), TB - 1024))
                A('v_add_u32 %s, %s, %s' % (v(vT + 3), s(sT0), v(vTa)))
                A('ds_write_b64 %s, %s' % (v(vT + 3), v(vT, 2)))
                A('s_lshr_b32 %s, %s, 3' % (s(sT0), s(sM)))
                A('s_add_u32 %s, %s, %d' % (s(sT0), s(sT0), TR - 512))
                A('v_lshl_add_u32 %s, %s, 2, %s' % (v(vT + 3), v(vLane), s(sT0)))
                A('ds_write_b32 %s, %s' % (v(vT + 3), v(vT + 2)))
                A('s_lshr_b32 %s, %s, 4' % (s(sT0), s(sM)))
                A('s_add_u32 %s, %s, %d' % (s(sT0), s(sT0), TS - 256))
                A('v_add_u32 %s, %s, %s' % (v(vT + 3), s(sT0), v(vSdw)))
                A('ds_write_b16 %s, %s' % (v(vT + 3), v(vT + 1)))
                A('v_cmp_eq_u32 vcc, 0, %s' % v(vFl))
                A('v_cndmask_b32 %s, 0, %s, vcc' % (v(vT + 4), v(vNon)))
                A('v_add_u32 %s, %d, %s' % (v(vT + 6), TN, v(vFl)))
                A('ds_write_b32 %s, %s' % (v(vT + 6), v(vT + 4)))
            else:
                pre = ['v_min3_u32 %s, %s, %s, %s' % (v(vT), v(vGa + 3), v(vGa + 7), v(vGa + 11)),
                       'v_max3_u32 %s, %s, %s, %s' % (v(vT + 1), v(vGa + 3), v(vGa + 7), v(vGa + 11)),
                       'v_min3_u32 %s, %s, %s, %s' % (v(vT), v(vT), v(vGa + 15), v(vGa + 19)),
                       'v_max3_u32 %s, %s, %s, %s' % (v(vT + 1), v(vT + 1), v(vGa + 15), v(vGa + 19)),
                       'v_min3_u32 %s, %s, %s, %s' % (v(vT), v(vT), v(vGa + 23), v(vGa + 27)),
                       'v_max3_u32 %s, %s, %s, %s' % (v(vT + 1), v(vT + 1), v(vGa + 23), v(vGa + 27)),
                       'v_min_u32 %s, %s, %s' % (v(vT), v(vT), v(vGa + 31)),
                       'v_max_u32 %s, %s, %s' % (v(vT + 1), v(vT + 1), v(vGa + 31)),
                       'v_cmp_eq_u32 vcc, %s, %s' % (v(vT), v(vT + 1)),
                       'v_cndmask_b32 %s, 0, %s, vcc' % (v(vT), v(vT))]
                poll(A, 'LCS', gal, vT, None, pre=pre)
                for st_ in (16, 8, 4):
                    for r in range(st_):
                        if r & 3 != 3:
                            A('v_add_f32 %s, %s, %s' % (v(vGa + r), v(vGa + r), v(vGa + st_ + r)))
                for u in range(3):
                    A('v_mov_b32 %s, %s' % (v(vGa + 4 + u), v(vGa + u)))
                for u in range(3):
                    A('v_permlane32_swap_b32 %s, %s' % (v(vGa + u), v(vGa + 4 + u)))
                for u in range(3):
                    A('v_add_f32 %s, %s, %s' % (v(vGa + u), v(vGa + u), v(vGa + 4 + u)))
                A('s_mul_i32 %s, %s, 768' % (s(sT0), s(sJ)))
                A('s_add_u32 %s, %s, %d' % (s(sT0), s(sT0), TA))
                A('v_lshl_add_u32 %s, %s, 1, %s' % (v(vT), v(vFl), s(sT0)))
                for u in range(3):
                    p = vGa + 8 + 2 * u
                    A('v_cvt_pk_bf16_f32 %s, %s, %s' % (v(p), v(vGa + u), v(vGa + u)))
                    A('v_lshlrev_b32 %s, 16, %s' % (v(p), v(p)))
                    A('v_sub_f32 %s, %s, %s' % (v(p), v(vGa + u), v(p)))
                    A('v_cvt_pk_bf16_f32 %s, %s, %s' % (v(p), v(vGa + u), v(p)))
                    A('v_mov_b32 %s, %s' % (v(p + 1), v(vB1 + u)))
                    A('ds_write_b64 %s, %s offset:%d' % (v(vT), v(p, 2), 256 * u))
        PS = {0: {4: ('p1', ''), 5: ('p2 p3 p4 p5', ''), 6: ('p6 p7 u0', ''), 7: ('', 'u1')},
              1: {4: ('', 'p1'), 5: ('', 'p2 p3'), 6: ('', 'p4 p5 p6 p7'), 7: ('', 'u0')},
              2: {7: ('', 'p1 p2 p3 p4 p5 p6 p7')},
              3: {4: ('', 'p1'), 5: ('', 'p2 p3 p4 p5'), 6: ('', 'p6 p7 u0'), 7: ('u1', '')},
              4: {4: ('', 'p1'), 5: ('', 'p2 p3 p4 p5'), 6: ('', 'p6 p7'), 7: ('u0', '')},
              5: {6: ('', 'p1 p2 p3 p4'), 7: ('p5 p6 p7', '')},
              6: {4: ('', 'p1'), 5: ('', 'p2 p3 p4 p5'), 6: ('', 'p6 p7'), 7: ('u0', 'u1')},
              7: {8: ('p1 p2 p3 p4 p5 p6 p7', '')},
              8: {6: ('', 'p1'), 7: ('p2', ''), 8: ('p3 p4 p5 p6 p7', '')},
              9: {6: ('', 'p1 p2'), 7: ('', 'p3'), 8: ('p4 p5 p6 p7', '')},
              10: {5: ('', 'p1'), 6: ('', 'p2'), 7: ('p3', 'p4'), 8: ('p5 p6 p7', '')},
              11: {7: ('p1 p2', ''), 8: ('p3 p4 p5 p6 p7', '')},
              12: {7: ('p1 p2 p3 p4', ''), 8: ('p5 p6 p7', '')},
              13: {7: ('p1 p2 p3 p4 p5 p6 p7', '')},
              14: {6: ('', 'p1 p2 p3'), 7: ('p4 p5', ''), 8: ('p6 p7', '')},
              15: {6: ('p1 p2', ''), 7: ('p3 p4', ''), 8: ('p5 p6 p7', '')}}[OPT['ps']]
        nw2 = 0
        def extra(spec):
            n = 0
            for it in spec.split():
                emit(A, grp_p3(int(it[1:])) if it[0] == 'p' else grp_w2(int(it[1:])))
                n += it[0] == 'u'
            return n
        for iv in range(8):
            pre_, post_ = PS.get(iv, ('', ''))
            if iv == 5 and OPT['si'] == 5:
                small()
            if iv == GI:
                gather()
            if iv < 5:
                issue(SCHED[iv + 1], iv)
            if iv == 0 and k == 'A' and OPT['rm']:
                A('s_waitcnt lgkmcnt(0)')
            if iv == 1 and k == 'A' and OPT['rm']:
                colsum()
            if iv == OPT['si'] and iv < 5:
                small()
            if iv == OPT['wi'] and OPT['warm'] == 2:
                lwarm()
            if iv == 3:
                prep_kv()
            if iv == 5:
                prep2()
            nw2 += extra(pre_)
            if iv == 7:
                tables()
                stamp(A, 5, 3)
                nw2 += extra(post_)
                stamp(A, 6, 3)
            if iv < 7:
                A.wait_vm('s%d' % (iv + 1))
                nw2 += extra(post_)
                bar(iv + 1)
        A('s_waitcnt lgkmcnt(0)')
        A.lg = []
        if k == 'A':
            vmA = list(A.vm)
            A.branch('s_branch L_JOIN')
    A.label('L_JOIN')
    vmB = list(A.vm)
    if vmA != vmB:
        assert vmA[-len(vmB):] == vmB or vmB[-len(vmA):] == vmA or not vmA or not vmB, (vmA, vmB)
        A.vm = list(vmA if len(vmA) > len(vmB) else vmB)
    A('s_barrier')
    stamp(A, 3)
    if not OPT['xp']:
        nw2 += extra(PS.get(8, ('', ''))[0])
    vAcc, vW, vR = 0, 64, 176
    def wread(slot, lds, tag):
        base, off = (vA0, lds) if lds < L_W else (vB0, lds - L_W)
        return [('ds_read_b64_tr_b16 %s, %s offset:%d' % (v(vW + 16 * slot + 8 * c + 4 * nt + 2 * hh, 2), v(base + nt), off + 2048 * c + 1024 * hh), tag)
                for c in range(2) for nt in range(2) for hh in range(2)]
    sFl, sAct = sA, sB
    vFv, vLa, vLt = 250, 251, 240
    fload = 'buffer_load_dword %s, %s, %s, %s offen sc1' % (v(vFv), v(vFl), s(SWS, 4), s(sFl))
    RB = [vR + 16 * ((i + 2) & 3) for i in range(11)]
    def alist(i):
        m, c = UL[i]
        L = ['s_add_u32 %s, %s, %d' % (s(sT1), s(sO[4] if m == 8 else sO[5]), c * 4096)]
        for q in range(4):
            L.append(('buffer_load_dwordx4 %s, %s, %s, %s offen offset:%d sc1' % (v(RB[i] + 4 * q, 4), v(vL16), s(SWS, 4), s(sT1), 1024 * q), 'a%d' % i))
        return L
    def aload(i):
        emit(A, alist(i))
    def lflag(val):
        A('v_mov_b32 %s, %d' % (v(vFw + 1), val))
        A('ds_write_b32 %s, %s' % (v(vFw), v(vFw + 1)))
    A('s_cmp_eq_u32 %s, 1' % s(sTyp))
    A.branch('s_cbranch_scc1 LX_START')
    vm8 = list(A.vm)
    for X in (0, 1):
        if X:
            A.label('LX_START')
            A.vm = list(vm8); A.lg = []
        XS = X and OPT['xs']
        UP = UPX if X and not XS else UPY
        WIN = XS if XS else 2 if X else OPT['win']
        nx = [nw2]
        TRS = ['u%d' % i for i in range(7)] + (['w2', 'u7', 'w0', 'w1', 'w3'] if X and not XS else ['w0', 'w1', 'w3', 'u7', 'w2'])
        def wo(i):
            L = ['s_lshl_b32 %s, %s, 17' % (s(sO[0]), s(sJ))]
            if i:
                L.append('s_add_u32 %s, %s, %d' % (s(sO[0]), s(sO[0]), i * 32768))
            return L + quad((v2o, v2o), SWO, 32768 + 16384 * (i & 1) + 65536 * (i >> 1), 'w%d' % i)
        cap = [11 if X else 11 - OPT['yd']]
        XP_ = {}
        if OPT['xp']:
            assert OPT['ps'] == 7
            if X:
                XP_ = {1: {1: 'p1 p2 p3', 2: 'p4 p5', 3: 'p6 p7'}, 2: {1: 'p1 p2', 2: 'p3 p4', 3: 'p5 p6', 4: 'p7'},
                       3: {1: 'p1 p2 p3 p4', 2: 'p5 p6 p7'}}[OPT['xp']]
            else:
                extra(PS[8][0])
        sKf, sK = (SB, [SB + 1, SB + 2, SB + 3, 6, 7]) if OPT['yd'] or OPT['ke'] else (sO[0], [sO[1], sO[2], sO[3], 6, 7])
        kfl = 'buffer_load_dword %s, %s, %s, %s offen sc1' % (v(vKf), v(vFl), s(SWS, 4), s(sKf))
        def kaddr():
            A('s_lshl_b32 %s, %s, 2' % (s(sT0), s(sGq)))
            A('s_add_u32 %s, %s, %s' % (s(sT0), s(sT0), s(sJ)))
            A('s_lshl_b32 %s, %s, 7' % (s(sKf), s(sT0)))
            A('s_add_u32 %s, %s, 0x%x' % (s(sKf), s(sKf), WS_KF))
            if not OPT['ke']:
                A(kfl, tag='kf')
            A('s_mul_i32 %s, %s, %d' % (s(sT0), s(sT0), 2 * KVS))
            for i_, o_ in enumerate((0, KVS, 4096, KVS + 4096, 8192)):
                A('s_add_u32 %s, %s, 0x%x' % (s(sK[i_]), s(sT0), WS_KVP + o_))
        def w2_upto(n):
            while nx[0] <= min(n, cap[0]):
                k = TRS[nx[0]]
                emit(A, grp_w2(int(k[1:]), UP) if k[0] == 'u' else wo(int(k[1:])))
                if nx[0] == OPT['fa']:
                    A(fload, tag='fl')
                if not X and OPT['ke'] and nx[0] == OPT['ke']:
                    A(kfl, tag='kf')
                extra(XP_.get(nx[0], ''))
                nx[0] += 1
        def gate(i, mask):
            A.wait_vm('fl')
            poll(A, 'LA%d%d' % (X, i), fload, vFv, mask)
        def unit(i):
            A.wait_vm('a%d' % i)
            if i in (0, 3):
                stamp(A, {0: 1, 3: 2}[i], 6)
            if i in (4, 7, 8, 10):
                stamp(A, {4: 2, 7: 3, 8: 4, 10: 5}[i], 7)
            if i >= 7:
                A.wait_lg('b%d' % i)
            wb = vW + 16 * (i % 7)
            for c in range(2):
                for nt in range(2):
                    for rt in range(2):
                        acc = vAcc + 16 * (2 * nt + rt)
                        A('v_mfma_f32_32x32x16_bf16 %s, %s, %s, %s' % (v(acc, 16), v(wb + 8 * c + 4 * nt, 4), v(RB[i] + 8 * c + 4 * rt, 4), '0' if (i == 0 and c == 0) else v(acc, 16)))
        w2_upto(OPT['xs0'] if XS else WIN - 1 - (0 if X else OPT['wl']))
        A('s_lshl_b32 %s, %s, 3' % (s(sFl), s(sRb2)))
        A('s_add_u32 %s, %s, %s' % (s(sFl), s(sFl), s(sJ)))
        A('s_lshl_b32 %s, %s, 7' % (s(sFl), s(sFl)))
        A('s_add_u32 %s, %s, 0x%x' % (s(sFl), s(sFl), WS_F))
        A('s_mul_i32 %s, %s, %d' % (s(sAct), s(sRb2), NU * 4096))
        A('s_lshl_b32 %s, %s, 15' % (s(sO[4]), s(sJ)))
        A('s_add_u32 %s, %s, %s' % (s(sO[4]), s(sO[4]), s(sAct)))
        A('s_mul_i32 %s, %s, %d' % (s(sO[5]), s(sJ), 3 * 4096))
        A('s_add_u32 %s, %s, %s' % (s(sO[5]), s(sO[5]), s(sAct)))
        if not XP_:
            A.wait_vm('p3')
            A('ds_write_b32 %s, %s' % (v(vFw), v(vFw + 1)))
        if not X:
            w2_upto(WIN - 1)
            if OPT['ke']:
                kaddr()
        for i in range(7):
            if XS and i == OPT['xs0'] + 1:
                A('v_mov_b32 %s, %d' % (v(vLa), FL_KV))
                lds_wait(A, 'LXK', v(vLa), 4, 1, vLt)
                w2_upto(i - 1 + WIN)
            if XP_ and i == max(XP_) + 1:
                A.wait_vm('p3')
                A('ds_write_b32 %s, %s' % (v(vFw), v(vFw + 1)))
            A.wait_vm('u%d' % i)
            emit(A, wread(i, UP[i], 'm'))
            A.wait_lg(None)
            if not XS or i > OPT['xs0']:
                w2_upto(i + WIN)
        if X and not XS:
            A('v_mov_b32 %s, %d' % (v(vLa), FL_KV))
            lds_wait(A, 'LXK', v(vLa), 4, 1, vLt)
            w2_upto(11)
        for i in range(7, 12):
            if nx[0] <= cap[0]:
                A.wait_vm(TRS[i])
                w2_upto(i + WIN)
        stamp(A, 8)
        stamp(A, 3, 6)
        LA, LB, L8 = (OPT['lax'], OPT['lbx'], OPT['l8x']) if X else (OPT['la'], OPT['lb'], OPT['l8'])
        def late():
            A('v_mov_b32 %s, %d' % (v(vLa), FL_PB))
            lds_wait(A, 'LPB%d' % X, v(vLa), 4, 2, vLt)
            for i in range(8, 11):
                emit(A, grp_w2(i, UP))
        def lread():
            A.wait_vm('u10')
            for i in range(8, 11):
                emit(A, wread(i - 7, UP[i], 'b%d' % i))
        if not X and not OPT['ke']:
            kaddr()
        elif not X and OPT['ke'] > 11:
            A(kfl, tag='kf')
        def gate_a():
            gate(0, '0xf')
            stamp(A, 4)
            for i in range(LA if X else 2):
                aload(i)
        if X or not OPT['ka']:
            gate_a()
        elif OPT['ka'] >= 2:
            A(fload, tag='fl')
        if not X:
            vK, vZ, vD = 0, 176, 180
            KL = [('buffer_load_dwordx4 %s, %s, %s, %s offen sc1' % (v(vZ, 4), v(vZo), s(SWS, 4), s(sK[4])), 'kz')]
            for i in range(16):
                c, q = i & 1, i >> 1
                KL.append(('buffer_load_dwordx4 %s, %s, %s, %s offen offset:%d sc1' % (v(vK + 4 * i, 4), v(vL16), s(SWS, 4), s(sK[c + 2 * (q >> 2)]), 1024 * (q & 3)), 'k%d' % i))
            pre = []
            if OPT['kpf'] == 1:
                emit(A, KL)
            if OPT['kpf'] >= 2:
                A('s_and_b32 %s, %s, 1' % (s(sT0), s(sRb)))
                A('s_mul_i32 %s, %s, %d' % (s(sT0), s(sT0), KVS))
                if OPT['kpf'] == 3:
                    A('s_lshl_b32 %s, %s, 11' % (s(sT1), s(sRb)))
                    A('s_and_b32 %s, %s, 4096' % (s(sT1), s(sT1)))
                    A('s_add_u32 %s, %s, %s' % (s(sT0), s(sT0), s(sT1)))
                    A('v_lshl_add_u32 %s, %s, 5, %s' % (v(vK), v(vFl), s(sT0)))
                else:
                    A('v_lshl_add_u32 %s, %s, 7, %s' % (v(vK), v(vLane), s(sT0)))
                pre = ['buffer_load_dword %s, %s, %s, %s offen sc1' % (v(vK + 1), v(vK), s(SWS, 4), s(sK[0]))]
                emit(A, pre)
            A.wait_vm('kf')
            poll(A, 'LK', [kfl] + pre + ([fload] if OPT['ka'] else []), vKf, '0xffff')
            stamp(A, 1, 2)
            emit(A, KL)
            if OPT['ka']:
                gate_a()
            if OPT['yw'] == 0:
                cap[0] = 11
                w2_upto(11)
            A.raw('VK_B:')
            A.wait_vm('kz')
            A('v_mfma_f32_16x16x32_bf16 %s, %s, %s, 0' % (v(vD + 8, 4), v(vSg, 4), v(vZ, 4)))
            zl = []
            for ctl in ('quad_perm:[1,0,3,2]', 'quad_perm:[2,3,0,1]', 'row_half_mirror'):
                for r in range(4):
                    zl.append('v_add_f32_dpp %s, %s, %s %s row_mask:0xf bank_mask:0xf' % (v(vD + 8 + r), v(vD + 8 + r), v(vD + 8 + r), ctl))
            zl.append('v_cvt_pk_bf16_f32 %s, %s, %s' % (v(vD + 8), v(vD + 8), v(vD + 9)))
            zl.append('v_cvt_pk_bf16_f32 %s, %s, %s' % (v(vD + 9), v(vD + 10), v(vD + 11)))
            zl.append('ds_write_b64 %s, %s offset:256' % (v(vKw + 1), v(vD + 8, 2)))
            for i in range(16):
                A.wait_vm('k%d' % i)
                d = vD + 4 * (i & 1)
                A('v_mfma_f32_16x16x32_bf16 %s, %s, %s, %s' % (v(d, 4), v(vSg, 4), v(vK + 4 * i, 4), '0' if i < 2 else v(d, 4)))
                if i & 1:
                    A('v_max3_u32 %s, %s, %s, %s' % (v(vKf), v(vZ if i == 1 else vKf), v(vK + 4 * i - 4), v(vK + 4 * i)))
                if i >= 4:
                    emit(A, zl[:2]); zl = zl[2:]
            vcheck(A, 'VK', [vKf], vKf, KL, back='VK_B')
            for c in range(2):
                d = vD + 4 * c
                A('v_cvt_pk_bf16_f32 %s, %s, %s' % (v(d), v(d), v(d + 1)))
                A('v_cvt_pk_bf16_f32 %s, %s, %s' % (v(d + 1), v(d + 2), v(d + 3)))
                A('ds_write_b64 %s, %s offset:%d' % (v(vKw), v(d, 2), 544 * c))
            A('ds_write_b32 %s, %s offset:%d' % (v(vFw), v(vFw + 1), FL_KV - FL_P3))
            stamp(A, 3, 2)
            cap[0] = 11
            w2_upto(11)
            if OPT['bq'] == 3:
                A('v_mov_b32 %s, %d' % (v(vLa), FL_EX))
                lds_wait(A, 'LYK', v(vLa), 4, 1, vLt)
            if OPT['roll']:
                A(fload, tag='fl')
            for i in range(2, 4 if OPT['roll'] else LA):
                aload(i)
            if OPT['bq'] == 4:
                A('v_mov_b32 %s, %d' % (v(vLa), FL_EX))
                lds_wait(A, 'LYK', v(vLa), 4, 1, vLt)
        if X and OPT['xh']:
            A('v_mov_b32 %s, %d' % (v(vLa), FL_PB))
            lds_wait(A, 'LXH', v(vLa), 4, 2, vLt)
        if OPT['roll']:
            assert not X or LA == 4
            seq = {1: 'U0 W U1 B a4 a5 F L U2 a6 U3 a7 U4 C a8 R U5 a9 U6 a10 x U7 U8 U9 U10',
                   2: 'L U0 W U1 B a4 a5 F U2 a6 U3 a7 R U4 C a8 U5 a9 U6 a10 x U7 U8 U9 U10',
                   3: 'U0 W U1 B a4 a5 U2 a6 F U3 a7 L U4 U5 C a8 a9 U6 a10 R x U7 U8 U9 U10',
                   5: 'L U0 U1 B a4 a5 F U2 a6 W U3 a7 R U4 C a8 U5 a9 U6 a10 x U7 U8 U9 U10',
                   6: 'U0 U1 B a4 a5 F L U2 a6 W U3 a7 U4 C a8 R U5 a9 U6 a10 x U7 U8 U9 U10',
                   4: 'U0 W B a4 U1 a5 F L U2 a6 U3 a7 U4 C a8 R U5 a9 U6 a10 x U7 U8 U9 U10'}[OPT['rollx'] if X else OPT['roll']]
            if X:
                A(fload, tag='fl')
            for it in seq.split():
                if it == 'U10' and OPT['lnf'] >= 2:
                    A.wait_vm('a10')
                    stamp(A, 5, 7)
                    A.wait_lg('b10')
                    for n in range(4 + OPT['lnd']):
                        if n < 4:
                            for c in range(2):
                                acc = vAcc + 16 * n
                                A('v_mfma_f32_32x32x16_bf16 %s, %s, %s, %s' % (v(acc, 16), v(vW + 48 + 8 * c + 4 * (n >> 1), 4), v(RB[10] + 8 * c + 4 * (n & 1), 4), v(acc, 16)))
                        if n == 3:
                            stamp(A, 6)
                        if n >= OPT['lnd']:
                            emit(A, wr[4 * (n - OPT['lnd']):4 * (n - OPT['lnd']) + 4])
                    A.branch('s_branch F_START')
                elif it[0] == 'U':
                    unit(int(it[1:]))
                    if it == 'U8' and OPT['lnf'] >= 2:
                        A('s_lshl_b32 %s, %s, 1' % (s(sT0), s(sM)))
                        wr = reduce_write(A, vAcc, 64, sT0)
                    if it == 'U3':
                        stamp(A, 5)
                elif it[0] == 'a':
                    aload(int(it[1:]))
                elif it == 'W':
                    A.wait_vm('w2')
                    lflag(3)
                    emit(A, wread(0, UP[7], 'b7'))
                elif it == 'B':
                    stamp(A, 2, 2)
                    gate(4, '0xff')
                    stamp(A, 8, 2)
                    stamp(A, 1, 7)
                elif it == 'C':
                    gate(8, '0x3f00')
                    stamp(A, 4, 2)
                    stamp(A, 8, 7)
                elif it == 'F':
                    A(fload, tag='fl')
                elif it == 'L':
                    late()
                elif it == 'R':
                    lread()
                elif it == 'x':
                    xres(A, 240, 244)
            if not X and OPT['lnf'] < 2:
                A.branch('s_branch L_RED')
            continue
        for i in range(4):
            unit(i)
            if i + LA < 4:
                aload(i + LA)
            if i == (OPT['yf'] if OPT['yd'] and not X else 0):
                A.wait_vm('w2')
                lflag(3)
                emit(A, wread(0, UP[7], 'b7'))
            if i == 2:
                A(fload, tag='fl')
        stamp(A, 5)
        if L8 == 0:
            late()
        if not X and OPT['bq'] == 2:
            A('v_mov_b32 %s, %d' % (v(vLa), FL_EX))
            lds_wait(A, 'LYK', v(vLa), 4, 1, vLt)
        stamp(A, 2, 2)
        gate(4, '0xff')
        stamp(A, 8, 2)
        stamp(A, 8, 6)
        stamp(A, 1, 7)
        for i in range(4, 4 + LB):
            aload(i)
        for i in range(4, 8):
            unit(i)
            if i + LB < 8:
                aload(i + LB)
            if i == 4 and L8 == 0:
                lread()
            if i == max(4, 8 - LB) and L8 == 1:
                late()
            if i == 6:
                A(fload, tag='fl')
        if L8 == 2:
            late()
            A(fload, tag='fl')
        gate(8, '0x3f00')
        stamp(A, 4, 2)
        stamp(A, 8, 7)
        for i in range(8, 11):
            aload(i)
        if L8:
            lread()
        xres(A, 240, 244)
        for i in range(8, 11):
            unit(i)
        if not X:
            A.branch('s_branch L_RED')
    if OPT['lnf'] >= 2:
        return
    A.label('L_RED')
    stamp(A, 6)
    A('s_lshl_b32 %s, %s, 1' % (s(sT0), s(sM)))
    wr = reduce_write(A, vAcc, 64, sT0)
    A('s_mov_b32 %s, 0x%x' % (s(sO[0]), LN2))
    A('s_mov_b32 %s, 0x%x' % (s(sO[1]), LN2))
    for n, w in enumerate(wr):
        r = vAcc + 4 * n
        if not OPT['lnf']:
            A('v_pk_mul_f32 %s, %s, %s' % (v(r, 2), v(r, 2), s(sO[0], 2)))
            A('v_pk_mul_f32 %s, %s, %s' % (v(r + 2, 2), v(r + 2, 2), s(sO[0], 2)))
        A(w)
    A.branch('s_branch F_START')

def gen_compute(A):
    A.label('C_START')
    A.vm = []; A.lg = []
    vX = 0
    def ACC(u, r): return 128 + 32 * u + 16 * r
    vWf, vXf = 192, 216
    vXo, vXt = 228, 232
    vPw, vVw, vPr, vVr, vSt, vPo, vF2 = 236, 237, 238, 239, 240, 241, 242
    vR0 = 236
    vWa, vTa, vTb, vTr, vPa, vFo, vWm, vNon = 244, 245, 246, 247, 248, 249, 250, 252
    vR = [232, 234]
    vT = 0
    sCh, sRg, sP2 = sA, sB, sM
    sL2, sHO = 52, 54
    A('s_and_b32 %s, %s, 1' % (s(sCh), s(sJ)))
    A('s_lshr_b32 %s, %s, 1' % (s(sRg), s(sJ)))
    A('s_lshl_b32 %s, %s, 1' % (s(sP2), s(sRb)))
    A('s_add_u32 %s, %s, %s' % (s(sP2), s(sP2), s(sRg)))
    A('s_mov_b32 %s, 0x%x' % (s(sL2), LOG2E))
    A('s_mov_b32 %s, 0x%x' % (s(sL2 + 1), LOG2E))
    A('s_mov_b32 %s, 0.5' % s(sHO))
    A('s_mov_b32 %s, 1.0' % s(sHO + 1))
    A('v_mov_b32 %s, 0x%x' % (v(vT), OOB))
    A('v_cmp_eq_u32 vcc, 0, %s' % v(vLane))
    A('v_cndmask_b32 %s, %s, 0, vcc' % (v(vFo), v(vT)))
    tr_addr(A, vWa, vT, 8, s(sCh))
    A('v_add_u32 %s, %d, %s' % (v(vWa), L_W, v(vWa)))
    A('v_lshrrev_b32 %s, 5, %s' % (v(vT), v(vLane)))
    A('v_and_b32 %s, 31, %s' % (v(vT + 1), v(vLane)))
    A('v_bfe_u32 %s, %s, 1, 3' % (v(vT + 2), v(vLane)))
    A('v_xor_b32 %s, %s, %s' % (v(vT + 2), v(vT + 2), v(vT)))
    A('v_lshlrev_b32 %s, 4, %s' % (v(vT + 2), v(vT + 2)))
    A('v_lshl_add_u32 %s, %s, 7, %s' % (v(vT + 2), v(vT + 1), v(vT + 2)))
    A('s_lshl_b32 %s, %s, 12' % (s(sT0), s(sJ)))
    A('v_add_u32 %s, %s, %s' % (v(vXo), s(sT0), v(vT + 2)))
    for tt in range(1, 4):
        A('v_xor_b32 %s, %d, %s' % (v(vXo + tt), 32 * tt, v(vXo)))
    for tt in range(4):
        A('v_xor_b32 %s, 0x1000, %s' % (v(vXt + tt), v(vXo + tt)))
    A('v_lshlrev_b32 %s, 3, %s' % (v(vT + 2), v(vT + 1)))
    A('v_lshl_add_u32 %s, %s, 2, %s' % (v(vT + 2), v(vT), v(vT + 2)))
    A('v_add_u32 %s, %d, %s' % (v(vTa), TA, v(vT + 2)))
    A('s_lshl_b32 %s, %s, 8' % (s(sT0), s(sJ)))
    A('s_add_u32 %s, %s, %d' % (s(sT0), s(sT0), TB))
    A('v_add_u32 %s, %s, %s' % (v(vTb), s(sT0), v(vT + 2)))
    A('s_lshl_b32 %s, %s, 7' % (s(sT0), s(sJ)))
    A('s_add_u32 %s, %s, %d' % (s(sT0), s(sT0), TR))
    A('v_lshl_add_u32 %s, %s, 2, %s' % (v(vTr), v(vT + 1), s(sT0)))
    A('v_bfe_u32 %s, %s, 2, 2' % (v(vT + 2), v(vLane)))
    A('v_lshl_add_u32 %s, %s, 2, %s' % (v(vT + 2), v(vT), v(vT + 2)))
    A('v_bfe_u32 %s, %s, 4, 1' % (v(vT + 3), v(vLane)))
    A('v_bfe_u32 %s, %s, 1, 1' % (v(vT + 4), v(vLane)))
    A('v_lshl_add_u32 %s, %s, 1, %s' % (v(vT + 4), v(vT + 3), v(vT + 4)))
    A('v_lshlrev_b32 %s, 3, %s' % (v(vT + 4), v(vT + 4)))
    A('v_lshl_add_u32 %s, %s, 5, %s' % (v(vPa), v(vT + 2), v(vT + 4)))
    A('s_and_b32 %s, %s, %s' % (s(sT0), s(sCh), s(sTyp)))
    A('s_lshl_b32 %s, %s, 10' % (s(sT0), s(sT0)))
    A('s_add_u32 %s, %s, %d' % (s(sT0), s(sT0), TPH))
    A('v_add_u32 %s, %s, %s' % (v(vPa), s(sT0), v(vPa)))
    A('v_and_b32 %s, 1, %s' % (v(vT + 2), v(vLane)))
    A('v_bfe_u32 %s, %s, 2, 1' % (v(vT + 3), v(vLane)))
    A('v_xor_b32 %s, %s, %s' % (v(vT + 4), v(vT + 3), v(vT)))
    A('v_lshl_or_b32 %s, %s, 1, %s' % (v(vT + 4), v(vT + 4), v(vT + 2)))
    A('v_bfe_u32 %s, %s, 1, 1' % (v(vT + 5), v(vLane)))
    A('v_lshl_or_b32 %s, %s, 2, %s' % (v(vT + 4), v(vT + 5), v(vT + 4)))
    A('v_lshlrev_b32 %s, 4, %s' % (v(vT + 4), v(vT + 4)))
    A('v_lshl_add_u32 %s, %s, 7, %s' % (v(vT + 4), v(vT + 1), v(vT + 4)))
    A('s_lshl_b32 %s, %s, 16' % (s(sT1), s(sCh)))
    A('s_add_u32 %s, %s, %d' % (s(sT1), s(sT1), PH0))
    A('s_lshl_b32 %s, %s, 12' % (s(sT0), s(sJ)))
    A('s_add_u32 %s, %s, %s' % (s(sT0), s(sT0), s(sT1)))
    A('v_add_u32 %s, %s, %s' % (v(vPw), s(sT0), v(vT + 4)))
    A('v_bfe_u32 %s, %s, 4, 1' % (v(vT + 4), v(vLane)))
    A('v_xor_b32 %s, %s, %s' % (v(vT + 4), v(vT + 4), v(vT + 3)))
    A('v_xor_b32 %s, %s, %s' % (v(vT + 2), v(vT + 2), v(vT)))
    A('v_lshl_or_b32 %s, %s, 1, %s' % (v(vT + 4), v(vT + 2), v(vT + 4)))
    A('v_bfe_u32 %s, %s, 3, 1' % (v(vT + 2), v(vLane)))
    A('v_xor_b32 %s, %s, %s' % (v(vT + 2), s(sRg), v(vT + 2)))
    A('v_lshl_or_b32 %s, %s, 2, %s' % (v(vT + 4), v(vT + 2), v(vT + 4)))
    A('v_lshl_or_b32 %s, %s, 1, %s' % (v(vT + 4), v(vT + 4), v(vT + 5)))
    A('v_lshlrev_b32 %s, 3, %s' % (v(vT + 4), v(vT + 4)))
    A('v_bfe_u32 %s, %s, 2, 2' % (v(vT + 2), v(vLane)))
    A('v_lshl_add_u32 %s, %s, 2, %s' % (v(vT + 2), v(vT), v(vT + 2)))
    A('v_lshl_add_u32 %s, %s, 7, %s' % (v(vT + 4), v(vT + 2), v(vT + 4)))
    A('s_lshl_b32 %s, %s, 13' % (s(sT0), s(sRg)))
    A('s_add_u32 %s, %s, %s' % (s(sT0), s(sT0), s(sT1)))
    A('v_add_u32 %s, %s, %s' % (v(vPr), s(sT0), v(vT + 4)))
    A('s_lshl_b32 %s, %s, 13' % (s(sT1), s(sCh)))
    A('s_add_u32 %s, %s, %d' % (s(sT1), s(sT1), VB))
    A('s_lshl_b32 %s, %s, 11' % (s(sT0), s(sJ)))
    A('s_add_u32 %s, %s, %s' % (s(sT0), s(sT0), s(sT1)))
    A('v_add_u32 %s, %s, %s' % (v(vVw), s(sT0), v(vL16)))
    A('s_mul_i32 %s, %s, %d' % (s(sT0), s(sRg), 4096 + 256))
    A('s_add_u32 %s, %s, %s' % (s(sT0), s(sT0), s(sT1)))
    A('v_add_u32 %s, %s, %s' % (v(vT + 2), s(sT0), v(vL16)))
    A('s_lshl_b32 %s, %s, 7' % (s(sT0), s(sRg)))
    A('s_add_u32 %s, %s, %d' % (s(sT0), s(sT0), TS))
    A('v_lshl_add_u32 %s, %s, 4, %s' % (v(vT + 3), v(vT), s(sT0)))
    A('v_cmp_gt_u32 vcc, 16, %s' % v(vT + 1))
    A('v_cndmask_b32 %s, %s, %s, vcc' % (v(vVr), v(vT + 3), v(vT + 2)))
    A('v_mov_b32 %s, 1024' % v(vT + 2))
    A('v_cndmask_b32 %s, 32, %s, vcc' % (v(vSt), v(vT + 2)))
    A('v_lshl_add_u32 %s, %s, 4, %s' % (v(vT + 2), v(vT), v(vT + 1)))
    A('s_lshl_b32 %s, %s, 9' % (s(sT0), s(sRb)))
    A('v_lshl_add_u32 %s, %s, 4, %s' % (v(vT + 2), v(vT + 2), s(sT0)))
    A('v_mov_b32 %s, 0x%x' % (v(vT + 4), OOB))
    A('v_cndmask_b32 %s, %s, %s, vcc' % (v(vPo), v(vT + 4), v(vT + 2)))
    A('s_lshl_b32 %s, %s, 5' % (s(sT0), s(sRb)))
    A('s_add_u32 %s, %s, 8192' % (s(sT0), s(sT0)))
    A('v_lshl_add_u32 %s, %s, 4, %s' % (v(vT + 2), v(vT), s(sT0)))
    A('v_cmp_eq_u32 vcc, 16, %s' % v(vT + 1))
    A('v_cndmask_b32 %s, %s, %s, vcc' % (v(vPo), v(vPo), v(vT + 2)))
    A('s_lshl_b32 %s, %s, 1' % (s(sT0), s(sG)))
    A('v_add_u32 %s, %s, %s' % (v(vT + 2), s(sT0), v(vLane)))
    A('v_mul_u32_u24 %s, 43, %s' % (v(vT + 3), v(vT + 2)))
    A('v_lshrrev_b32 %s, 7, %s' % (v(vT + 3), v(vT + 3)))
    A('v_mul_u32_u24 %s, %d, %s' % (v(vT + 3), 128 - 24, v(vT + 3)))
    A('v_lshl_add_u32 %s, %s, 3, %s' % (v(vT + 2), v(vT + 2), v(vT + 3)))
    A('v_cmp_gt_u32 vcc, 2, %s' % v(vLane))
    A('v_cndmask_b32 %s, %s, %s, vcc' % (v(vF2), v(vT + 4), v(vT + 2)))
    if OPT['warm'] == 1:
        A('v_lshrrev_b32 %s, 2, %s' % (v(vT + 2), v(vT + 1)))
        A('v_and_b32 %s, 3, %s' % (v(vT + 3), v(vLane)))
        A('v_lshlrev_b32 %s, 2, %s' % (v(vT + 3), v(vT + 3)))
        A('v_lshl_add_u32 %s, %s, 7, %s' % (v(vT + 2), v(vT + 2), v(vT + 3)))
        A('v_lshl_add_u32 %s, %s, 15, %s' % (v(vT + 2), v(vT), v(vT + 2)))
        A('s_lshr_b32 %s, s2, 3' % s(sT0))
        if OPT['wx']:
            A('s_andn2_b32 %s, %s, 8' % (s(sT0), s(sT0)))
        A('s_lshl_b32 %s, %s, 10' % (s(sT0), s(sT0)))
        if OPT['m2']:
            A('v_bfe_u32 %s, %s, 2, 2' % (v(vT + 2), v(vLane)))
            A('v_lshl_add_u32 %s, %s, 7, %s' % (v(vT + 2), v(vT + 2), v(vT + 3)))
            A('v_lshrrev_b32 %s, 4, %s' % (v(vT + 3), v(vLane)))
            A('v_lshl_add_u32 %s, %s, 15, %s' % (v(vT + 2), v(vT + 3), v(vT + 2)))
            A('s_and_b32 %s, %s, 4' % (s(sT1), s(sCb)))
            A('s_lshl_b32 %s, %s, 7' % (s(sT1), s(sT1)))
            A('s_add_u32 %s, %s, %s' % (s(sT0), s(sT0), s(sT1)))
        A('v_add_u32 %s, %s, %s' % (v(vWm), s(sT0), v(vT + 2)))
        A('s_lshl_b32 %s, %s, 18' % (s(sO[3]), s(sJ)))
        A('s_mul_i32 %s, %s, %d' % (s(sO[4]), s(sJ), 3 * 32768))
        A('s_lshl_b32 %s, %s, 17' % (s(sO[5]), s(sJ)))
    A('s_mul_i32 %s, %s, 768' % (s(sO[2]), s(sCh)))
    A('s_waitcnt lgkmcnt(0)')
    srd(A, SWS, 36, WS_SIZE)
    srd(A, SX, 16, 2048 * 1024)
    srd(A, SW2, 30, 1376 * 1024)
    srd(A, SWO, 22, 512 * 1024)
    if OPT['et']:
        A('s_lshl_b32 %s, s2, 2' % s(sT0))
        A('s_add_u32 %s, %s, %s' % (s(sT0), s(sT0), s(sJ)))
        A('s_mul_i32 %s, %s, %d' % (s(sT1), s(sT0), 11 * 128))
        A('s_lshl_b32 %s, %s, 9' % (s(sT0), s(sT0)))
        A('v_min_u32 %s, 10, %s' % (v(vT + 2), v(vLane)))
        A('v_lshlrev_b32 %s, 7, %s' % (v(vT + 2), v(vT + 2)))
        A('v_and_b32 %s, 0x180, %s' % (v(vT + 3), v(vT + 2)))
        A('buffer_load_dword %s, %s, %s, %s offen' % (v(vWm + 1), v(vT + 2), s(SW2, 4), s(sT1)))
        A('buffer_load_dword %s, %s, %s, %s offen' % (v(vWm + 1), v(vT + 3), s(SWO, 4), s(sT0)))
    stamp(A, 0)
    if OPT['prio']:
        A('s_setprio %d' % OPT['prio'])
    A('s_cmp_eq_u32 %s, 1' % s(sTyp))
    A.branch('s_cbranch_scc1 CX_START')

    def mfma(d, a_, b_, c):
        return 'v_mfma_f32_32x32x16_bf16 %s, %s, %s, %s' % (v(d, 16), v(a_, 4), v(b_, 4), v(d, 16) if c else '0')
    def frags(t):
        if t >= 32:
            return []
        st, k = divmod(t, 4)
        sl = st & 3
        tg = 'f%d' % t
        def wf(u):
            return [('ds_read_b64_tr_b16 %s, %s offset:%d' % (v(vWf + 8 * (t % 3) + 4 * u + 2 * hh, 2), v(vWa), 16384 * sl + 8192 * u + 2048 * k + 512 * hh), tg) for hh in range(2)]
        xf = [('ds_read_b128 %s, %s offset:%d' % (v(vX + 4 * t, 4), v(vXo + k), 16384 * sl), tg),
              ('ds_read_b128 %s, %s offset:%d' % (v(vXf + 4 * (t % 3), 4), v(vXt + k), 16384 * sl), tg)]
        return wf(0) + xf + wf(1)
    def softmax(D, P, M, rs=None, np_=0):
        L = []
        L.append('v_max3_f32 %s, %s, %s, %s' % (v(M), v(D), v(D + 1), v(D + 2)))
        L.append('v_max3_f32 %s, %s, %s, %s' % (v(M + 1), v(D + 3), v(D + 4), v(D + 5)))
        L.append('v_max3_f32 %s, %s, %s, %s' % (v(M + 2), v(D + 6), v(D + 7), v(D + 8)))
        L.append('v_max3_f32 %s, %s, %s, %s' % (v(M + 3), v(D + 9), v(D + 10), v(D + 11)))
        L.append('v_max3_f32 %s, %s, %s, %s' % (v(M), v(M), v(D + 12), v(D + 13)))
        L.append('v_max3_f32 %s, %s, %s, %s' % (v(M + 1), v(M + 1), v(D + 14), v(D + 15)))
        L.append('v_max3_f32 %s, %s, %s, %s' % (v(M), v(M), v(M + 1), v(M + 2)))
        L.append('v_max_f32 %s, %s, %s' % (v(M), v(M), v(M + 3)))
        L.append('v_mul_f32 %s, 0x%x, %s' % (v(M), LOG2E | 0x80000000, v(M)))
        for i in range(8):
            if np_ & 1:
                L += ['v_fma_f32 %s, %s, %s, %s' % (v(D + 2 * i + e), v(D + 2 * i + e), s(sL2), v(M)) for e in range(2)]
            else:
                L.append('v_pk_fma_f32 %s, %s, %s, %s op_sel_hi:[1,1,0]' % (v(D + 2 * i, 2), v(D + 2 * i, 2), s(sL2, 2), v(M, 2)))
        for i in range(16):
            L.append('v_exp_f32 %s, %s' % (v(D + i), v(D + i)))
        for d_, a_, b_ in ((M, D, D + 2), (M + 2, D + 4, D + 6), (M, M, D + 8), (M + 2, M + 2, D + 10), (M, M, D + 12), (M + 2, M + 2, D + 14), (M, M, M + 2)):
            if np_ & 2:
                L += ['v_add_f32 %s, %s, %s' % (v(d_ + e), v(a_ + e), v(b_ + e)) for e in range(2)]
            else:
                L.append('v_pk_add_f32 %s, %s, %s' % (v(d_, 2), v(a_, 2), v(b_, 2)))
        L.append('v_add_f32 %s, %s, %s' % (v(M), v(M), v(M + 1)))
        L.append('v_rcp_f32 %s, %s' % (v(M), v(M)))
        if rs is not None:
            L.append('v_mul_f32 %s, %s, %s' % (v(M), v(M), v(rs)))
        for i in range(8):
            if np_ & 4:
                L += ['v_mul_f32 %s, %s, %s' % (v(D + 2 * i + e), v(D + 2 * i + e), v(M)) for e in range(2)]
            else:
                L.append('v_pk_mul_f32 %s, %s, %s op_sel_hi:[1,0]' % (v(D + 2 * i, 2), v(D + 2 * i, 2), v(M, 2)))
        for i in range(8):
            L.append('v_cvt_pk_bf16_f32 %s, %s, %s' % (v(P + i), v(D + 2 * i), v(D + 2 * i + 1)))
        return L
    def pack(acc, P):
        for i in range(8):
            A('v_cvt_pk_bf16_f32 %s, %s, %s' % (v(P + i), v(acc + 2 * i), v(acc + 2 * i + 1)))
    def scale_pack(acc, P, rs):
        for i in range(8):
            A('v_pk_mul_f32 %s, %s, %s op_sel_hi:[1,0]' % (v(acc + 2 * i, 2), v(acc + 2 * i, 2), v(rs, 2)))
        pack(acc, P)
    def zipl(a_, b_):
        return [x for pr in zip(a_, b_) for x in pr]
    def mish(acc, r, E, V, so, tag, hook=(None, None), mv=None):
        mv = OPT['mv'] if mv is None else mv
        if hook[0] == 4: hook[1]()
        for i in range(8):
            if mv & 1:
                A('v_mul_f32 %s, %s, %s' % (v(acc + 2 * i), v(acc + 2 * i), v(vR[r])))
                A('v_mul_f32 %s, %s, %s' % (v(acc + 2 * i + 1), v(acc + 2 * i + 1), v(vR[r])))
            else:
                A('v_pk_mul_f32 %s, %s, %s op_sel_hi:[1,0]' % (v(acc + 2 * i, 2), v(acc + 2 * i, 2), v(vR[r], 2)))
        for i in range(16):
            A('v_exp_f32 %s, %s' % (v(E + i), v(acc + i)))
        for i in range(8):
            if mv & 2:
                A('v_fma_f32 %s, %s, 0.5, 1.0' % (v(V + 2 * i), v(E + 2 * i)))
                A('v_fma_f32 %s, %s, 0.5, 1.0' % (v(V + 2 * i + 1), v(E + 2 * i + 1)))
            else:
                A('v_pk_fma_f32 %s, %s, %s, %s op_sel:[0,0,1] op_sel_hi:[1,0,1]' % (v(V + 2 * i, 2), v(E + 2 * i, 2), s(sHO, 2), s(sHO, 2)))
        for i in range(8):
            if mv & 4:
                A('v_fma_f32 %s, %s, %s, 1.0' % (v(V + 2 * i), v(E + 2 * i), v(V + 2 * i)))
                A('v_fma_f32 %s, %s, %s, 1.0' % (v(V + 2 * i + 1), v(E + 2 * i + 1), v(V + 2 * i + 1)))
            else:
                A('v_pk_fma_f32 %s, %s, %s, %s op_sel:[0,0,1] op_sel_hi:[1,1,1]' % (v(V + 2 * i, 2), v(E + 2 * i, 2), v(V + 2 * i, 2), s(sHO, 2)))
        if hook[0] == 3: hook[1]()
        for i in range(16):
            A('v_rcp_f32 %s, %s' % (v(V + i), v(V + i)))
        if hook[0] == 2: hook[1]()
        for i in range(8):
            if mv & 8:
                A('v_fma_f32 %s, -%s, %s, %s' % (v(acc + 2 * i), v(acc + 2 * i), v(V + 2 * i), v(acc + 2 * i)))
                A('v_fma_f32 %s, -%s, %s, %s' % (v(acc + 2 * i + 1), v(acc + 2 * i + 1), v(V + 2 * i + 1), v(acc + 2 * i + 1)))
            else:
                A('v_pk_fma_f32 %s, %s, %s, %s neg_lo:[1,0,0] neg_hi:[1,0,0]' % (v(acc + 2 * i, 2), v(acc + 2 * i, 2), v(V + 2 * i, 2), v(acc + 2 * i, 2)))
        pack(acc, acc)
        A('buffer_store_dwordx4 %s, %s, %s, %s offen sc1' % (v(acc, 4), v(vL16), s(SWS, 4), s(so)), tag=tag)
        A('buffer_store_dwordx4 %s, %s, %s, %s offen offset:2048 sc1' % (v(acc + 4, 4), v(vL16), s(SWS, 4), s(so)), tag=tag)
        if hook[0] == 1: hook[1]()
    def flag(tag, so, off=0, vo=vFo):
        A.wait_vm(tag)
        A('buffer_store_dword %s, %s, %s, %s offen offset:%d sc1' % (v(vNon), v(vo), s(SWS, 4), s(so), off))
    def sign_flip(ph, n, t):
        A('v_bfe_u32 %s, %s, 2, 1' % (v(t), v(vLane)))
        A('v_mul_u32_u24 %s, 0x8000, %s' % (v(t), v(t)))
        A('v_lshl_or_b32 %s, %s, 16, %s' % (v(t), v(t), v(t)))
        A.wait_lg('ph')
        for i in range(n):
            A('v_xor_b32 %s, %s, %s' % (v(ph + i), v(t), v(ph + i)))

    def mish_fill(tiles, T):
        n = 16 * len(tiles)
        R = lambda i: tiles[i // 16][0] + i % 16
        E = lambda i: T + i % 3
        V = lambda i: T + 3 + i % 3
        mul = lambda i: 'v_mul_f32 %s, %s, %s' % (v(R(i)), v(R(i)), v(vR[tiles[i // 16][1]]))
        G = []; late = []
        for i in range(n + 2):
            a_ = [mul(0)] if i == 0 else []
            if i < n: a_.append('v_exp_f32 %s, %s' % (v(E(i)), v(R(i))))
            if 0 <= i - 1 < n: a_.append('v_fma_f32 %s, %s, %s, 1.0' % (v(V(i - 1)), v(E(i - 1)), v(V(i - 1))))
            if 0 <= i - 2 < n: a_.append('v_fma_f32 %s, -%s, %s, %s' % (v(R(i - 2)), v(R(i - 2)), v(V(i - 2)), v(R(i - 2))))
            b_ = []
            if 0 <= i - 1 < n: b_.append('v_rcp_f32 %s, %s' % (v(V(i - 1)), v(V(i - 1))))
            if i < n: b_.append('v_fma_f32 %s, %s, 0.5, 1.0' % (v(V(i)), v(E(i))))
            if i + 1 < n: b_.append(mul(i + 1))
            k = i - 2
            if k >= 0 and k & 1:
                acc, r, so, tag = tiles[k // 16]
                b_.append('v_cvt_pk_bf16_f32 %s, %s, %s' % (v(acc + (k % 16) // 2), v(R(k - 1)), v(R(k))))
                if k % 8 == 7:
                    st_ = ('buffer_store_dwordx4 %s, %s, %s, %s offen offset:%d sc1' % (v(acc + 4 * (k % 16 // 8), 4), v(vL16), s(SWS, 4), s(so), 2048 * (k % 16 // 8)), tag)
                    (b_ if OPT['sst'] else late).append(st_)
            G += [a_, b_]
        return G + [late]

    def pass_b(X, hooks, fill=(), split=False):
        vBa = 216
        vAp, vBp = (176, 184) if split else (0, 8)
        fill = list(fill)
        if OPT['prio']:
            A('s_setprio %d' % OPT['prio'])
        A('s_lshl_b32 %s, %s, 6' % (s(sT0), s(sCh)))
        A('v_xor_b32 %s, %s, %s' % (v(vBa), s(sT0), v(vWa)))
        A('v_add_u32 %s, %d, %s' % (v(vBa), L_E - L_W, v(vBa)))
        A('v_xor_b32 %s, 64, %s' % (v(vBa + 1), v(vBa)))
        A('v_mov_b32 %s, %d' % (v(vBa + 2), FL_P3))
        lds_wait(A, 'CP3%d' % X, v(vBa + 2), 4, 1, 220)
        stamp(A, 1, 8)
        win = [L_E, L_E]
        seq = [(uu, t) for uu in range(2) for t in range(32)] if split else [(uu, t) for t in range(32) for uu in range(2)]
        def fr(m):
            if m >= 64:
                return []
            uu, t = seq[m]
            st, k = divmod(t, 4)
            L = []
            w = P3B[st] & ~0xffff
            if w != win[uu]:
                L.append('v_add_u32 %s, %d, %s' % (v(vBa + uu), w - win[uu], v(vBa + uu)))
                win[uu] = w
            for hh in range(2):
                L.append(('ds_read_b64_tr_b16 %s, %s offset:%d' % (v(vWf + 4 * (m % 6) + 2 * hh, 2), v(vBa + uu), P3B[st] - w + 2048 * k + 512 * hh), 'g%d' % (m // 2)))
            return L
        for m in range(4):
            emit(A, fr(m))
        tb = [('ds_read_b32 %s, %s offset:%d' % (v(vAp + 4 * uu), v(vTa), 768 * uu + 512), 'tb') for uu in range(2)] + [('ds_read_b32 %s, %s' % (v(vBp), v(vTb)), 'tb')]
        zr = ['v_mov_b32 %s, 0' % v(vAp + i) for i in range(12) if i & 3]
        f0 = 34 if split else 0
        for m in range(64):
            uu, t = seq[m]
            nxt = fr(m + 4)
            z0 = 8 if split else 48
            if z0 <= m < z0 + 9:
                nxt.append(zr[m - z0])
            if m == (20 if split else 60):
                nxt += tb
            if m >= 61 and not X:
                nxt += [('ds_read_b64_tr_b16 %s, %s offset:%d' % (v(16 + 4 * h + 2 * hh, 2), v(vPa), 512 * h + 256 * hh), 'ph') for h in range(4) for hh in range(2)][3 * (m - 61):3 * (m - 60)]
            if m % 2 == 0:
                A.wait_lg('g%d' % (m // 2))
            A(mfma(ACC(0, uu), vWf + 4 * (m % 6), vX + 4 * t, t > 0))
            if split and m == 31:
                A(mfma(ACC(0, 0), vAp, vBp, True))
            if m in (15, 31, 63):
                stamp(A, {15: 2, 31: 6, 63: 7}[m], 8)
            emit(A, nxt)
            if m >= f0 and fill:
                emit(A, fill.pop(0))
            if m % 2 and m // 2 in hooks:
                hooks[m // 2]()
        A('s_lshl_b32 %s, %s, 2' % (s(sT0), s(sJ)))
        A('s_add_u32 %s, %s, %d' % (s(sT0), s(sT0), FL_PB))
        A('v_mov_b32 %s, %s' % (v(vBa), s(sT0)))
        A('v_mov_b32 %s, 2' % v(vBa + 1))
        A.wait_lg('tb')
        A('ds_write_b32 %s, %s' % (v(vBa), v(vBa + 1)))
        for uu in range(1 if split else 0, 2):
            A(mfma(ACC(0, uu), vAp + 4 * uu, vBp, True))
        for f in fill:
            emit(A, f)
        if OPT['prio']:
            A('s_setprio %d' % OPT['pr2'])
        stamp(A, 4)

    vAp, vBp, vPh = [208, 212], [224, 228], 192
    for X in (0, 1):
        A.vm = []; A.lg = []
        if X:
            A.label('CX_START')
        vOne = 8 if OPT['pt0'] < 0 else 124
        sPf = [SB, SB + 1, SB + 2, SB + 3]
        for i in range(4):
            A('v_mov_b32 %s, -1' % v(vOne + i))
        A('s_mul_i32 %s, %s, %d' % (s(sT1), s(sP2), NU * 4096))
        PF = []
        def pf(vo, so, off):
            PF.append(('buffer_store_dwordx4 %s, %s, %s, %s offen offset:%d sc1' % (v(vOne, 4), v(vo), s(SWS, 4), s(so), off), 'pf'))
        if X and OPT['kfp']:
            A('s_lshl_b32 %s, %s, 1' % (s(sT0), s(sG)))
            A('s_add_u32 %s, %s, %s' % (s(sT0), s(sT0), s(sCh)))
            A('s_lshl_b32 %s, %s, 1' % (s(sT0), s(sT0)))
            A('s_add_u32 %s, %s, %s' % (s(sT0), s(sT0), s(sRg)))
            A('s_mul_i32 %s, %s, %d' % (s(sT0), s(sT0), 2 * KVS))
            A('s_add_u32 %s, %s, 0x%x' % (s(sPf[0]), s(sT0), WS_KVP))
            A('s_add_u32 %s, %s, %d' % (s(sPf[1]), s(sPf[0]), KVS))
            pf(vPo, sPf[0], 0)
            pf(vPo, sPf[1], 0)
        if not X and OPT['h2p'] and not OPT['nv']:
            A('s_lshl_b32 %s, %s, 2' % (s(sT0), s(sG)))
            A('s_add_u32 %s, %s, %s' % (s(sT0), s(sT0), s(sCh)))
            A('s_add_u32 %s, %s, 2' % (s(sT0), s(sT0)))
            A('s_lshl_b32 %s, %s, 12' % (s(sT0), s(sT0)))
            A('s_add_u32 %s, %s, %s' % (s(sPf[0]), s(sT0), s(sT1)))
            for q in range(4):
                pf(vL16, sPf[0], 1024 * q)
        if OPT['hfp' if X else 'ofp'] and not OPT['nv']:
            A('s_lshl_b32 %s, %s, 3' % (s(sT0), s(sGq)))
            A('s_add_u32 %s, %s, %s' % (s(sT0), s(sT0), s(sCh)))
            A('s_add_u32 %s, %s, %d' % (s(sT0), s(sT0), 4 * (32 if X else 44)))
            A('s_lshl_b32 %s, %s, 10' % (s(sT0), s(sT0)))
            A('s_add_u32 %s, %s, %s' % (s(sPf[2]), s(sT0), s(sT1)))
            if X:
                A('s_cmp_ge_u32 %s, 6' % s(sG))
                A('s_cselect_b32 %s, 0x%x, %s' % (s(sPf[2]), OOB, s(sPf[2])))
            A('s_add_u32 %s, %s, 4096' % (s(sPf[3]), s(sPf[2])))
            for q in range(4):
                pf(vL16, sPf[2 + (q >> 1)], 2048 * (q & 1))
        if OPT['pt0'] < 0:
            emit(A, PF)
            PF = []
        A('s_barrier')
        stamp(A, 1)
        emit(A, frags(0))
        emit(A, frags(1))
        for t in range(32):
            st, k = divmod(t, 4)
            nxt = frags(t + 2)
            if t == 30:
                A('v_add_u32 %s, %s, %s' % (v(vAp[0]), s(sO[2]), v(vTa)))
                A('v_xor_b32 %s, 256, %s' % (v(vBp[1]), v(vTb)))
                A('v_xor_b32 %s, 128, %s' % (v(vR[1]), v(vTr)))
                A('v_mov_b32 %s, %d' % (v(vNon), TN))
                nxt = [('ds_read_b32 %s, %s offset:256' % (v(vAp[1]), v(vAp[0])), 'tb'),
                       ('ds_read_b32 %s, %s' % (v(vAp[0]), v(vAp[0])), 'tb'),
                       ('ds_read_b32 %s, %s' % (v(vBp[0]), v(vTb)), 'tb'),
                       ('ds_read_b32 %s, %s' % (v(vBp[1]), v(vBp[1])), 'tb'),
                       ('ds_read_b32 %s, %s' % (v(vR[0]), v(vTr)), 'tb'),
                       ('ds_read_b32 %s, %s' % (v(vR[1]), v(vR[1])), 'tb'),
                       ('ds_read_b32 %s, %s' % (v(vNon), v(vNon)), 'tb')]
            if t == 31:
                nxt = ['v_mov_b32 %s, 0' % v(b + i) for b in vAp + vBp for i in range(1, 4)]
                if X:
                    nxt = [('ds_read_b64_tr_b16 %s, %s offset:%d' % (v(vPh + 4 * h + 2 * hh, 2), v(vPa), 512 * h + 256 * hh), 'ph') for h in range(2) for hh in range(2)] + nxt
            A.wait_lg('f%d' % t)
            per = (len(nxt) + 2) // 3
            n = 0
            for u in range(2):
                for r in range(2):
                    w_, x_ = vWf + 8 * (t % 3) + 4 * u, (vX + 4 * t if r == 0 else vXf + 4 * (t % 3))
                    if X and u == 1:
                        w_, x_ = x_, w_
                    A(mfma(ACC(u, r), w_, x_, t > 0))
                    if k == 2 and n == 0:
                        A.wait_lg(None)
                        if st in (4, 5, 6, 7):
                            stamp(A, {4: 1, 5: 2, 6: 8, 7: 4}[st], 3)
                        A('s_barrier')
                        if st == 3:
                            stamp(A, 2)
                    WL = [(3, 0, SW2), (3, 4, SW2), (3, 2, SW2), (3, 6, SW2), (4, 34, SW2), (4, 32, SW2), (5, 0, SWO), (5, 2, SWO)]
                    if OPT['m2']:
                        WL = [(3, 0, SW2), (3, 4, SW2), (5, 0, SWO), (4, 32, SW2)]
                    if OPT['wx'] == 1:
                        WL = [(b_, c_ + e_, r_) for b_, c_, r_ in WL for e_ in (0, 0.25)] if X else []
                    if OPT['wx'] == 2:
                        WL = [(b_, c_ + e_, r_) for b_, c_, r_ in (WL[:3] if X else WL[3:]) for e_ in (0, 0.25)]
                    wq = 4 * (t - OPT['wt0']) + n - 3
                    wk = []
                    if OPT['warm'] == 1 and wq >= 0:
                        wk = WL if (OPT['wd'] == 0 and wq == 0) else [WL[wq // OPT['wd']]] if (OPT['wd'] and wq % OPT['wd'] == 0 and wq // OPT['wd'] < len(WL)) else []
                    for base, c_, sr in wk:
                        A('s_add_u32 %s, %s, %d' % (s(sT0), s(sO[base]), int(c_ * 32768)))
                        A('buffer_load_dword %s, %s, %s, %s offen' % (v(vWm + 1), v(vWm), s(sr, 4), s(sT0)), tag='wm')
                    pq = 4 * (t - OPT['pt0']) + n - 1
                    if PF and t < 29 and pq >= 0 and pq % OPT['pd'] == 0:
                        emit(A, [PF.pop(0)])
                    emit(A, nxt[per * n:per * n + per])
                    n += 1
        assert not PF
        stamp(A, 3)
        if OPT['prio']:
            A('s_setprio %d' % OPT['pex' if X else 'pey'])
        A.wait_lg('tb')
        for u in range(2):
            for r in range(2):
                p_, q_ = vAp[u], vBp[r]
                if X and u == 1:
                    p_, q_ = q_, p_
                A(mfma(ACC(u, r), p_, q_, True))
        if not X:
            A('v_mov_b32 %s, %s' % (v(vR0), v(vR[0])))
            for r in range(2):
                A('v_mul_f32 %s, 0x%x, %s' % (v(vR[r]), LOG2E, v(vR[r])))
        A('v_readfirstlane_b32 %s, %s' % (s(sNonce), v(vNon)))
        sOut, sFl = sO[4], sO[5]
        A('s_lshl_b32 %s, %s, 10' % (s(sFl), s(sP2)))
        A('s_add_u32 %s, %s, 0x%x' % (s(sFl), s(sFl), WS_F))
        A('s_mul_i32 %s, %s, %d' % (s(sOut), s(sP2), NU * 4096))
        A('s_lshl_b32 %s, %s, 10' % (s(sT0), s(sCh)))
        A('s_add_u32 %s, %s, %s' % (s(sOut), s(sOut), s(sT0)))
        if not X:
            A('s_lshl_b32 %s, %s, 2' % (s(sT0), s(sG)))
            A('s_add_u32 %s, %s, %s' % (s(sT0), s(sT0), s(sCh)))
            A('s_lshl_b32 %s, %s, 12' % (s(sT0), s(sT0)))
            A('s_add_u32 %s, %s, %s' % (s(sO[0]), s(sOut), s(sT0)))
            A('s_xor_b32 %s, %s, 1024' % (s(sO[1]), s(sO[0])))
            A('s_add_u32 %s, %s, 8192' % (s(SB), s(sO[0])))
            A('s_add_u32 %s, %s, 8192' % (s(SB + 1), s(sO[1])))
            sF2 = sT3
            A('s_lshr_b32 %s, %s, 1' % (s(sT0), s(sG)))
            A('s_lshl_b32 %s, %s, 5' % (s(sT0), s(sT0)))
            A('s_and_b32 %s, %s, 1' % (s(sT1), s(sG)))
            A('s_lshl_b32 %s, %s, 1' % (s(sT1), s(sT1)))
            A('s_add_u32 %s, %s, %s' % (s(sT0), s(sT0), s(sT1)))
            A('s_add_u32 %s, %s, %s' % (s(sT0), s(sT0), s(sCh)))
            A('s_lshl_b32 %s, %s, 2' % (s(sT0), s(sT0)))
            A('s_add_u32 %s, %s, %s' % (s(sF2), s(sFl), s(sT0)))
            A('s_lshr_b32 %s, %s, 2' % (s(sT0), s(sGq)))
            A('s_lshl_b32 %s, %s, 1' % (s(sT0), s(sT0)))
            A('s_add_u32 %s, %s, %s' % (s(sT0), s(sT0), s(sCh)))
            A('s_lshl_b32 %s, %s, 5' % (s(sT0), s(sT0)))
            A('s_and_b32 %s, %s, 3' % (s(sT1), s(sGq)))
            A('s_add_u32 %s, %s, %s' % (s(sT0), s(sT0), s(sT1)))
            A('s_lshl_b32 %s, %s, 2' % (s(sT0), s(sT0)))
            A('s_add_u32 %s, %s, %s' % (s(sFl), s(sFl), s(sT0)))
            A('s_lshl_b32 %s, %s, 13' % (s(sT0), s(sGq)))
            A('s_add_u32 %s, %s, %s' % (s(sOut), s(sOut), s(sT0)))
            A('s_add_u32 %s, %s, %d' % (s(sOut), s(sOut), 44 * 4096))
            E, V = 192, 208
            mish(ACC(0, 0), 0, E, V, sO[0], 'h1')
            mish(ACC(0, 1), 1, E, V, sO[1], 'h1')
            H2 = OPT['h2']
            stamp(A, 8)
            pass_b(0, {OPT['f2']: lambda: flag('h1', sF2)},
                   mish_fill([(ACC(1, r), r, SB + r, 'h2') for r in range(2)], 224) if H2 == 4 else ())
            ph, D, P, M = 16, [32, 48, 64, 80], [96, 104, 112, 120], [12, 224]
            sign_flip(ph, 16, M[0])
            for uu in range(2):
                scale_pack(ACC(0, uu), ACC(0, uu), vR0)
                for h in range(2):
                    A(mfma(D[2 * uu + h], ph + 8 * uu + 4 * h, ACC(0, uu) + 4 * h, False))
            vKa, KF = 228, 128
            A('v_and_b32 %s, 31, %s' % (v(vKa), v(vLane)))
            A('v_min_u32 %s, 16, %s' % (v(vKa), v(vKa)))
            A('v_lshrrev_b32 %s, 5, %s' % (v(vKa + 1), v(vLane)))
            A('v_mul_u32_u24 %s, 17, %s' % (v(vKa + 1), v(vKa + 1)))
            A('v_add_lshl_u32 %s, %s, %s, 4' % (v(vKa), v(vKa), v(vKa + 1)))
            A('v_add_u32 %s, %d, %s' % (v(vKa), KVL, v(vKa)))
            A('v_mov_b32 %s, %d' % (v(vKa + 1), FL_KV))
            A('s_lshl_b32 %s, %s, 2' % (s(sT0), s(sJ)))
            A('v_add_u32 %s, %s, %s' % (v(vKa + 2), s(sT0), v(vKa + 1)))
            A('s_add_u32 %s, %s, 4096' % (s(sO[0]), s(sOut)))
            stamp(A, 3, 2)
            stamp(A, 1, 9)
            emit(A, zipl(softmax(D[0], P[0], M[0], None, OPT['ysm']), softmax(D[1], P[1], M[1], None, OPT['ysm'])))
            stamp(A, 2, 9)
            if H2 == 4 and OPT['h2w'] == 1:
                flag('h2', sF2, 16)
            stamp(A, 3, 9)
            emit(A, zipl(softmax(D[2], P[2], M[0], None, OPT['ysm']), softmax(D[3], P[3], M[1], None, OPT['ysm'])))
            stamp(A, 8, 9)
            if H2 == 4 and OPT['h2w'] == 2:
                flag('h2', sF2, 16)
            stamp(A, 1, 2)
            h2f = lambda: flag('pf', sF2, 16)
            def h2m(r):
                mish(ACC(1, r), r, E, V, SB + r, 'h2', (OPT['h2p'] - 4 * (1 - r), h2f))
            if H2 in (1, 3):
                h2m(0)
            if H2 == 1:
                h2m(1)
            def ofl(k):
                if OPT['ofp'] == k:
                    flag('pf', sFl, 512)
                if H2 == 1 and not OPT['h2p'] and OPT['h2q'] == k:
                    flag('h2', sF2, 16)
            ofl(4)
            rd = ['ds_read_b128 %s, %s offset:%d' % (v(KF + 8 * n + 4 * c, 4), v(vKa), KVH * n + 544 * c) for n in range(4) for c in range(2)]
            if OPT['pk'] != OPT['pr2']:
                A('s_setprio %d' % OPT['pk'])
            lds_wait(A, 'CKV', v(vKa + 1), 4, 1, 220, rd)
            if OPT['pk'] != OPT['po']:
                A('s_setprio %d' % OPT['po'])
            stamp(A, 2, 2)
            stamp(A, 5, 9)
            def omf(n):
                for c in range(2):
                    A(mfma(D[n], KF + 8 * n + 4 * c, P[n] + 4 * c, c > 0))
            def ofin(n):
                d = D[n]
                A('v_add_f32 %s, 0x358637bd, %s' % (v(d + 8), v(d + 8)))
                A('v_rcp_f32 %s, %s' % (v(d + 8), v(d + 8)))
                for i in range(8):
                    A('v_mul_f32 %s, %s, %s' % (v(d + i), v(d + i), v(d + 8)))
                for i in range(4):
                    A('v_cvt_pk_bf16_f32 %s, %s, %s' % (v(d + i), v(d + 2 * i), v(d + 2 * i + 1)))
                A('buffer_store_dwordx4 %s, %s, %s, %s offen offset:%d sc1' % (v(d, 4), v(vL16), s(SWS, 4), s(sO[0] if n >> 1 else sOut), 2048 * (n & 1)), tag='o')
            omf(0); omf(1); ofl(2); ofin(0); stamp(A, 6, 9); omf(2); ofin(1); ofl(3); omf(3); ofin(2); ofin(3); ofl(1)
            if OPT['bq'] >= 2:
                A('v_subrev_u32 %s, %d, %s' % (v(vKa + 2), FL_KV - FL_EX, v(vKa + 2)))
                A('ds_write_b32 %s, %s' % (v(vKa + 2), v(vKa + 2)))
            stamp(A, 4, 2)
            stamp(A, 7, 9)
            if H2 == 2:
                h2m(0)
            if H2 == 3:
                h2m(1)
            if not OPT['ofp']:
                flag('o', sFl, 512)
            if H2 == 2:
                h2m(1)
            if H2 in (2, 3) and not OPT['h2p']:
                flag('h2', sF2, 16)
            A.branch('s_branch C_P2')
        else:
            D, M, vBd, KV = [200, 144, 176, 160], [224, 228], 216, 200
            vEf = 248
            sKp, sKf = sO[0], sO[1]
            for q in range(8):
                if q == 0:
                    A('v_lshlrev_b32 %s, 2, %s' % (v(vBd + 4), v(vSt)))
                elif q == 4:
                    A('v_xor_b32 %s, %s, %s' % (v(vBd + 4), v(vBd + 4), v(vVr)))
                else:
                    A('v_add_u32 %s, %s, %s' % (v(vBd + q), v(vVr if q == 1 else vBd + q - 1), v(vSt)))
            stamp(A, 1, 5)
            sign_flip(vPh, 8, 253)
            stamp(A, 2, 5)
            scale_pack(ACC(0, 0), 128, vR[0])
            A(mfma(D[0], vPh, 128, False))
            scale_pack(ACC(0, 1), 136, vR[1])
            A(mfma(D[1], vPh + 4, 132, False))
            stamp(A, 8, 5)
            for r in range(2):
                pack(ACC(1, r), 160 + 8 * r)
                if r == 0:
                    A('ds_write_b128 %s, %s' % (v(vVw), v(160, 4)))
            A('v_xor_b32 %s, 2048, %s' % (v(253), v(vVw)))
            A(mfma(D[2], vPh, 136, False))
            stamp(A, 4, 5)
            A('s_lshl_b32 %s, %s, 3' % (s(sT0), s(sJ)))
            A('s_add_u32 %s, %s, %d' % (s(sT0), s(sT0), FL_EX))
            A('v_mov_b32 %s, %s' % (v(vEf), s(sT0)))
            A('s_lshl_b32 %s, %s, 1' % (s(sT0), s(sG)))
            A('s_add_u32 %s, %s, %s' % (s(sT0), s(sT0), s(sCh)))
            A('s_lshl_b32 %s, %s, 1' % (s(sT0), s(sT0)))
            A('s_add_u32 %s, %s, %s' % (s(sT0), s(sT0), s(sRg)))
            A('s_mul_i32 %s, %s, %d' % (s(sKp), s(sT0), 2 * KVS))
            A('s_add_u32 %s, %s, 0x%x' % (s(sKp), s(sKp), WS_KVP))
            A('s_add_u32 %s, %s, %d' % (s(sO[2]), s(sKp), KVS))
            A('s_lshl_b32 %s, %s, 5' % (s(sKf), s(sT0)))
            A('s_add_u32 %s, %s, %s' % (s(sKf), s(sKf), s(sRb)))
            A('s_lshl_b32 %s, %s, 2' % (s(sKf), s(sKf)))
            A('s_add_u32 %s, %s, 0x%x' % (s(sKf), s(sKf), WS_KF))
            if OPT['kfp'] == 5:
                flag('pf', sKf)
            stamp(A, 1, 1)
            stamp(A, 1, 4)
            stamp(A, 5, 5)
            def spread(base, ins, first, step):
                L = list(base)
                for n_, it in reversed(list(enumerate(ins))):
                    L[first + step * n_:first + step * n_] = it
                return L
            def pwr(r, h, e):
                x_ = 4096 * r + 64 * h + 16 * e
                tmp = 128 + 2 * h + e
                return (['v_xor_b32 %s, %d, %s' % (v(tmp), x_, v(vPw))] if x_ else []) + ['ds_write_b128 %s, %s' % (v(tmp if x_ else vPw), v(D[2 * r + h] + 4 * e, 4))]
            sm = [softmax(D[n], D[n], M[n & 1], vR[n >> 1]) for n in range(4)]
            vw = [['ds_write_b128 %s, %s offset:%d' % (v(253 if n >> 1 else vVw), v(160 + 4 * n, 4), 1024 * (n & 1))] for n in range(1, 4)]
            emit(A, spread(zipl(sm[0], sm[1]), vw + [[mfma(D[3], vPh + 4, 140, False)]], 2, 20))
            stamp(A, 2, 4)
            emit(A, spread(zipl(sm[2][:-16], sm[3][:-16]), [pwr(0, h, e) for e in range(2) for h in range(2)], 0, 18))
            stamp(A, 4, 4)
            def kfl(k):
                if OPT['kfp'] == k:
                    flag('pf', sKf)
            kfl(4)
            for n in (2, 3):
                emit(A, sm[n][-16:-12] + sm[n][-8:-4] + pwr(1, n & 1, 0) + sm[n][-12:-8] + sm[n][-4:] + pwr(1, n & 1, 1))
            stamp(A, 5, 4)
            A('ds_write_b32 %s, %s' % (v(vEf), v(vEf)))
            kfl(3)
            stamp(A, 2, 1)
            def kvf(q):
                L = [('ds_read_b64_tr_b16 %s, %s offset:%d' % (v(128 + 4 * q + 2 * hh, 2), v(vPr), 2048 * (q & 3) + 1024 * hh), 'q%d' % q) for hh in range(2)]
                return L + [('ds_read_b128 %s, %s' % (v(160 + 4 * q, 4), v(vBd + q if q else vVr)), 'q%d' % q)]
            for q in range(4):
                emit(A, kvf(q))
            A('v_xor_b32 %s, %d, %s' % (v(vEf), FL_EX ^ (FL_EX + 16), v(vEf)))
            A('v_xor_b32 %s, 8192, %s' % (v(vPr), v(vPr)))
            lds_wait(A, 'CEX', v(vEf), 1, 1, M[0])
            stamp(A, 6, 4)
            kfl(2)
            for q in range(8):
                A.wait_lg('q%d' % q)
                A(mfma(KV, 128 + 4 * q, 160 + 4 * q, q > 0))
                if q < 4:
                    emit(A, kvf(q + 4))
            A('s_lshl_b32 %s, %s, 13' % (s(sT0), s(sG)))
            A('s_add_u32 %s, %s, %s' % (s(sOut), s(sOut), s(sT0)))
            A('s_add_u32 %s, %s, %d' % (s(sOut), s(sOut), 32 * 4096))
            A('s_add_u32 %s, %s, 4096' % (s(sO[3]), s(sOut)))
            A('s_lshl_b32 %s, %s, 2' % (s(sT0), s(sCh)))
            A('s_add_u32 %s, %s, %s' % (s(sFl), s(sFl), s(sT0)))
            A('s_lshl_b32 %s, %s, 2' % (s(sT0), s(sJ)))
            A('s_add_u32 %s, %s, %d' % (s(sT0), s(sT0), FL_KV))
            A('v_mov_b32 %s, %s' % (v(vEf), s(sT0)))
            if OPT['fke']:
                A('ds_write_b32 %s, %s' % (v(vEf), v(vEf)))
            A('v_mul_f32 %s, 0x%x, %s' % (v(vR[0]), LOG2E, v(vR[0])))
            for c in range(2):
                for i in range(4):
                    A('v_cvt_pk_bf16_f32 %s, %s, %s' % (v(160 + 4 * c + i), v(KV + 8 * c + 2 * i), v(KV + 8 * c + 2 * i + 1)))
                A('buffer_store_dwordx4 %s, %s, %s, %s offen sc1' % (v(160 + 4 * c, 4), v(vPo), s(SWS, 4), s(sO[2] if c else sKp)), tag='kp')
            kfl(1)
            stamp(A, 8)
            stamp(A, 7, 4)
            def kflag():
                if not OPT['kfp']:
                    flag('kp', sKf)
                if not OPT['fke']:
                    A('ds_write_b32 %s, %s' % (v(vEf), v(vEf)))
            A('s_cmp_ge_u32 %s, 6' % s(sG))
            A.branch('s_cbranch_scc1 CX_NOH')
            vm1 = list(A.vm)
            hf = lambda: flag('pf', sFl, 32, vF2)
            if OPT['xsp']:
                pass_b(1, {OPT['f3']: kflag}, mish_fill([(ACC(0, 0), 0, sOut, 'h')], 224), True)
            else:
                pass_b(1, {OPT['f3']: kflag})
                mish(ACC(0, 0), 0, 16, 32, sOut, 'h', (OPT['hfp'] - 4, hf))
            mish(ACC(0, 1), 0, 16, 32, sO[3], 'h', (OPT['hfp'], hf), OPT['xmv'])
            stamp(A, 1, 2)
            if not OPT['hfp']:
                flag('h', sFl, 32, vF2)
            A.branch('s_branch C_P2')
            A.label('CX_NOH')
            A.vm = vm1
            kflag()
            A('s_lshl_b32 %s, %s, 2' % (s(sT0), s(sJ)))
            A('s_add_u32 %s, %s, %d' % (s(sT0), s(sT0), FL_PB))
            A('v_mov_b32 %s, %s' % (v(M[0]), s(sT0)))
            A('v_mov_b32 %s, 2' % v(M[0] + 1))
            A('ds_write_b32 %s, %s' % (v(M[0]), v(M[0] + 1)))
    A.label('C_P2')
    A.vm = []; A.lg = []
    if OPT['pr2'] or OPT['po'] or OPT['pr3'] or OPT['pex']:
        A('s_setprio %d' % OPT['pr3'])
    stamp(A, 5)
    vAcc, vO, vW = 0, 32, 96
    vA0, vFl, vFv, vT = 232, 236, 237, 248
    sFl, sAct = sO[0], sO[1]
    A('v_lshlrev_b32 %s, 2, %s' % (v(vFl), v(vLane)))
    A('v_and_b32 %s, 0x7c, %s' % (v(vFl), v(vFl)))
    A('s_lshl_b32 %s, %s, 3' % (s(sFl), s(sRb2)))
    A('s_add_u32 %s, %s, %s' % (s(sFl), s(sFl), s(sWave)))
    A('s_lshl_b32 %s, %s, 7' % (s(sFl), s(sFl)))
    A('s_add_u32 %s, %s, 0x%x' % (s(sFl), s(sFl), WS_F))
    xres(A, 240, 244)
    qload = 'buffer_load_dword %s, %s, %s, %s offen sc1' % (v(vFv), v(vFl), s(SWS, 4), s(sFl))
    A(qload, tag='fl')
    A('s_mul_i32 %s, %s, %d' % (s(sAct), s(sRb2), NU * 4096))
    A('s_lshl_b32 %s, %s, 5' % (s(sT0), s(sRg)))
    A('s_add_u32 %s, %s, %s' % (s(sT0), s(sT0), s(sCh)))
    A('s_lshl_b32 %s, %s, 10' % (s(sT0), s(sT0)))
    A('s_add_u32 %s, %s, %s' % (s(sAct), s(sAct), s(sT0)))
    A('s_add_u32 %s, %s, %d' % (s(sAct), s(sAct), 44 * 4096))
    tr_addr(A, vA0, vT, 4, None)
    A('s_lshl_b32 %s, %s, 13' % (s(sT2), s(sRg)))
    A('s_add_u32 %s, %s, 32768' % (s(sT2), s(sT2)))
    A('v_add_u32 %s, %s, %s' % (v(vA0), s(sT2), v(vA0)))
    A('v_xor_b32 %s, 64, %s' % (v(vA0 + 1), v(vA0)))
    A('v_add_u32 %s, %d, %s' % (v(vA0 + 2), L_W, v(vA0)))
    A('v_add_u32 %s, %d, %s' % (v(vA0 + 3), L_W, v(vA0 + 1)))
    A('s_lshl_b32 %s, %s, 12' % (s(sT2), s(sJ)))
    A('s_add_u32 %s, %s, 32768' % (s(sT2), s(sT2)))
    wr = reduce_write(A, vAcc, 224, sT2, 1)
    A('v_mov_b32 %s, %d' % (v(238), FL_P3))
    A('s_lshl_b32 %s, %s, 2' % (s(sT2), s(sJ)))
    A('s_add_u32 %s, %s, %d' % (s(sT2), s(sT2), FL_WR))
    A('v_mov_b32 %s, %s' % (v(239), s(sT2)))
    lds_wait(A, 'CWO', v(238), 4, 3, vT)
    for u in range(8):
        a_, p = u >> 2, u & 3
        for c in range(2):
            for nt in range(2):
                for hh in range(2):
                    A('ds_read_b64_tr_b16 %s, %s offset:%d' % (v(vW + 16 * u + 8 * c + 4 * nt + 2 * hh, 2), v(vA0 + 2 * (p >> 1) + nt), 16384 * (p & 1) + 4096 * a_ + 2048 * c + 1024 * hh))
    A('ds_write_b32 %s, %s' % (v(239), v(239)))
    A('v_xor_b32 %s, 4, %s' % (v(238), v(239)))
    if OPT['pp']:
        A(qload.replace(v(vFv) + ',', v(vT + 4) + ',', 1), tag='fb')
        A('s_mov_b32 %s, 0' % s(sT0))
        A.label('CQ_P')
        for r in (vFv, vT + 4):
            A('s_waitcnt vmcnt(1)')
            A('v_cmp_ne_u32 vcc, %s, %s' % (s(sNonce), v(r)))
            A('s_and_b32 vcc_lo, vcc_lo, 0xf')
            A.branch('s_cbranch_scc0 CQ_G')
            if OPT['pp'] > 1:
                A('s_sleep %d' % (OPT['pp'] - 1))
            with Keep(A):
                A(qload.replace(v(vFv) + ',', v(r) + ',', 1))
        A('s_add_u32 %s, %s, 1' % (s(sT0), s(sT0)))
        A('s_cmp_gt_u32 %s, 0x%x' % (s(sT0), BOUND))
        A.branch('s_cbranch_scc0 CQ_P')
        A.label('CQ_G')
    else:
        A.wait_vm('fl')
        poll(A, 'CQ', qload, vFv, '0xf')
    if OPT['pr4'] != OPT['pr3']:
        A('s_setprio %d' % OPT['pr4'])
    stamp(A, 6)
    def oload(n):
        if n < 16:
            if n and n % 2 == 0:
                A('s_add_u32 %s, %s, 4096' % (s(sAct), s(sAct)))
            A('buffer_load_dwordx4 %s, %s, %s, %s offen offset:%d sc1' % (v(vO + 4 * n, 4), v(vL16), s(SWS, 4), s(sAct), 2048 * (n & 1)), tag='o%d' % n)
    for n in range(OPT['oi']):
        oload(n)
    stamp(A, 1, 7)
    lds_wait(A, 'CWR', v(238), 1, 1, vT)
    for u in range(8):
        for c in range(2):
            A.wait_vm('o%d' % (2 * u + c))
            if 2 * u + c in (0, 7, 15):
                stamp(A, {0: 2, 7: 3, 15: 8}[2 * u + c], 7)
            for nt in range(2):
                A(mfma(vAcc + 16 * nt, vW + 16 * u + 8 * c + 4 * nt, vO + 8 * u + 4 * c, u or c))
            oload(2 * u + c + OPT['oi'])
    emit(A, wr)
    if OPT['pr4']:
        A('s_setprio 0')
    stamp(A, 4, 7)

def gen_final(A):
    A.label('F_START')
    vOo, vX, t = 240, 244, 72
    srd(A, SO, 32, 2048 * 1024)
    if OPT['lnf']:
        A('s_mov_b32 %s, 0x%x' % (s(sO[0]), LN2))
        A('s_mov_b32 %s, 0x%x' % (s(sO[1]), LN2))
    A('s_and_b32 %s, %s, 3' % (s(sT0), s(sWave)))
    A('s_lshl_b32 %s, %s, 10' % (s(sT0), s(sT0)))
    A('s_lshr_b32 %s, %s, 2' % (s(sT1), s(sWave)))
    A('s_lshl_b32 %s, %s, 14' % (s(sT1), s(sT1)))
    A('s_add_u32 %s, %s, %s' % (s(sT0), s(sT0), s(sT1)))
    A('v_lshrrev_b32 %s, 3, %s' % (v(t), v(vLane)))
    A('v_bfe_u32 %s, %s, 2, 1' % (v(t + 1), v(vLane)))
    A('v_and_b32 %s, 3, %s' % (v(t + 2), v(vLane)))
    A('v_lshlrev_b32 %s, 1, %s' % (v(t + 2), v(t + 2)))
    A('v_xor_b32 %s, %s, %s' % (v(t + 2), v(t + 2), v(t)))
    A('v_xor_b32 %s, %s, %s' % (v(t + 2), v(t + 2), v(t + 1)))
    A('v_lshlrev_b32 %s, 4, %s' % (v(t + 2), v(t + 2)))
    A('v_lshl_add_u32 %s, %s, 7, %s' % (v(t + 2), v(t), v(t + 2)))
    A('v_add_u32 %s, %s, %s' % (v(t + 2), s(sT0), v(t + 2)))
    A('v_lshl_add_u32 %s, %s, 16, %s' % (v(t + 3), v(t + 1), v(t + 2)))
    A('v_xor_b32 %s, 16, %s' % (v(t + 4), v(t + 3)))
    A('s_mul_i32 %s, %s, 3' % (s(sT1), s(sT1)))
    A('s_lshr_b32 %s, %s, 2' % (s(sT1), s(sT1)))
    for hh in range(2):
        A('v_subrev_u32 %s, %s, %s' % (v(t + 5 + hh), s(sT1), v(t + 3 + hh)))
    A('s_waitcnt vmcnt(0)')
    X = 80
    for i in range(4):
        A('v_lshlrev_b32 %s, 16, %s' % (v(X + 2 * i), v(vX + i)))
        A('v_and_b32 %s, 0xffff0000, %s' % (v(X + 2 * i + 1), v(vX + i)))
    A('s_waitcnt lgkmcnt(0)')
    A.lg = []
    A('s_barrier')
    stamp(A, 7)
    R = 96
    for p in range(6):
        for hh in range(2):
            A('ds_read_b128 %s, %s offset:%d' % (v(R + 8 * p + 4 * hh, 4), v(t + 3 + hh + (2 if p >= 4 else 0)), 4096 * p if p < 4 else 32768 + 8192 * (p - 4)), tag='r%d' % (p >> 1))
    for g in range(3):
        A.wait_lg('r%d' % g)
        r = R + 16 * g
        for i in range(4):
            A('v_pk_add_f32 %s, %s, %s' % (v(r + 2 * i, 2), v(r + 2 * i, 2), v(r + 8 + 2 * i, 2)))
        for i in range(4):
            if OPT['lnf'] and g < 2:
                A('v_pk_fma_f32 %s, %s, %s, %s' % (v(X + 2 * i, 2), v(r + 2 * i, 2), s(sO[0], 2), v(X + 2 * i, 2)))
            else:
                A('v_pk_add_f32 %s, %s, %s' % (v(X + 2 * i, 2), v(X + 2 * i, 2), v(r + 2 * i, 2)))
    for i in range(4):
        A('v_cvt_pk_bf16_f32 %s, %s, %s' % (v(X + i), v(X + 2 * i), v(X + 2 * i + 1)))
    A('buffer_store_dwordx4 %s, %s, %s, %s offen%s' % (v(X, 4), v(vOo), s(SO, 4), s(6), {0: '', 1: ' sc1', 2: ' nt', 3: ' sc0 sc1'}[OPT['ost']]))
    if OPT['stamps']:
        A('s_waitcnt vmcnt(0)')
        A('%s s[14:15]' % ('s_memtime' if OPT['clk'] else 's_memrealtime'))
        A('s_waitcnt lgkmcnt(0)')
        A('s_lshl_b32 %s, s2, 3' % s(sT2))
        A('s_add_u32 %s, %s, %s' % (s(sT2), s(sT2), s(sWave)))
        A('s_lshl_b32 %s, %s, 6' % (s(sT2), s(sT2)))
        A('s_add_u32 %s, %s, 0x%x' % (s(sT2), s(sT2), WS_STAMP))
        A('v_mov_b32 %s, 0' % v(1))
        for i, r in enumerate(STREG + [14, sRt]):
            A('v_mov_b32 %s, %s' % (v(0), s(r)))
            A('buffer_store_dword %s, %s, %s, %s offen offset:%d' % (v(0), v(1), s(SWS, 4), s(sT2), 4 * i))
    A.label('L_END')
    A('s_endpgm')
    for x in TAIL:
        A.raw(x if x.endswith(':') else '    ' + x)

def main():
    body = gen()
    out = []
    out.append('; @launch grid=(256,1,1) block=(512,1,1) lds=163840')
    out.append('.amdgcn_target "amdgcn-amd-amdhsa--gfx950"')
    out.append('.text')
    out.append('.globl %s_kernel' % NAME)
    out.append(body)
    out.append('.section .rodata,"a"')
    out.append('.p2align 6')
    out.append('''.amdhsa_kernel %s_kernel
  .amdhsa_next_free_vgpr 256
  .amdhsa_next_free_sgpr 102
  .amdhsa_accum_offset 256
  .amdhsa_group_segment_fixed_size 0
  .amdhsa_kernarg_size 88
  .amdhsa_user_sgpr_count 2
  .amdhsa_user_sgpr_kernarg_segment_ptr 1
  .amdhsa_system_sgpr_workgroup_id_x 1
.end_amdhsa_kernel
''' % NAME)
    open(sys.argv[1], 'w').write('\n'.join(out))

main()
if OPT['tmo']:
    print(TIDS)
```

```python
import sys
from asmlib import Asm, v, a, s

NAME = 'parallel_sum__linear_kernel_hedgehog__dense_activation_mish__prompt'
OPT = dict(fine=0, stamps=0, prio=1, sched=0, slp=8, wt0=18, wd=8, wi=4, warm=1, xmap=1, xq=1, clk=0, ost=1, gi=5, f2=6, ps=7, win=4, f3=0, h2=4, xs=0, mv=0, rot=7, rm=0, kfp=3, hfp=0, h2p=0, ofp=0, rsl=2, pt0=-1, pd=4, nv=1, gp=0, wop=0, wopx=0, cont=1, fk=20, h2q=3, xsp=1, sst=1, oi=8, la=2, lb=3, lax=4, lbx=2, bq=0, h2w=1, xh=1, xmv=15, kpf=0, pr2=1, l8=0, l8x=0, fa=9, xs0=1, fke=0, tmo=0, ysm=0, ka=0, yd=0, yw=0, yf=1, pex=1, pey=1, wl=4, roll=2, rollx=2, pk=0, po=1, pr3=0, pr4=0, lnf=2, lnd=1, m2=1, pp=0, wx=0, xp=0, rp=0, ke=0, et=0, si=2)
for arg in sys.argv[2:]:
    k, val = arg.split('=')
    OPT[k] = int(val, 0)

NU = 60
WS_ACT = 0x000000
WS_KVP = 0x800000
KVS = 9216
WS_KF = 0x8A0000
WS_STAT = 0xC80000
WS_F = 0xC90000
WS_CS = 0xCA0000
WS_STAMP = 0xD00000
WS_SIZE = 0x6000000 if OPT['tmo'] else 0xE00000
KVH = 1088
OOB = 0x7f000000
LOG2E = 0x3fb8aa3b
LN2 = 0x3f317218
BOUND = 0x8000

L_W = 65536
L_E = 131072
def XP(sg): return 16384 * sg
def WP(sg): return L_W + 16384 * sg
TA, TZ, TB, TR, TS, TN, TPH = L_E, L_E + 1536, L_E + 2048, L_E + 3072, L_E + 3584, L_E + 3840, L_E + 6144
KVL = L_E + 24576
P3B = [L_E + 8192, L_E + 16384, XP(0), XP(0) + 8192, WP(0), WP(0) + 8192, XP(1), XP(1) + 8192]
PH0, PH1, VB = XP(3), WP(3), XP(2)
FL_P3, FL_PB, FL_EX, FL_KV, FL_WR = TN + 16, TN + 32, TN + 48, TN + 80, TN + 96

SX, SA, SB, SWS, SD, SW2, SWO, STMP = 40, 44, 48, 56, 60, 64, 68, 72
SO = SA
sNonce, sWave, sRb, sCg, sTyp, sG, sF, sRb2, sCb = 3, 4, 5, 8, 9, 10, 11, 12, 13
sT0, sT1, sT2, sT3 = 14, 15, 76, 77
sO = [78, 79, 80, 81, 82, 83]
sJ = 84
sM = 85
sA, sB = 86, 87
sGq = 39
STREG = [88, 90, 92, 94, 96, 98, 100, 24, 74]

def srd(A, d, lo, size):
    A('s_mov_b32 %s, %s' % (s(d), s(lo)))
    A('s_mov_b32 %s, %s' % (s(d + 1), s(lo + 1)))
    A('s_mov_b32 %s, 0x%x' % (s(d + 2), size))
    A('s_mov_b32 %s, 0x20000' % s(d + 3))

def stamp(A, idx, fine=0):
    over = {0: (), 1: (1, 2), 2: (1, 2, 3, 8, 4), 3: (1, 2, 8, 4, 5, 6), 4: (1, 2, 8, 4, 5, 6, 7), 5: (1, 2, 8, 4, 5, 6, 7), 6: (1, 2, 3, 8), 7: (1, 2, 3, 8, 4, 5), 8: (1, 2, 6, 7), 9: (1, 2, 3, 8, 5, 6, 7)}[OPT['fine']]
    if fine == 0 and idx in over:
        return
    if fine and OPT['fine'] != fine:
        return
    if OPT['stamps']:
        A('%s %s' % ('s_memtime' if OPT['clk'] else 's_memrealtime', s(STREG[idx], 2)))

def emit(A, L):
    for it in L:
        if isinstance(it, tuple):
            A(it[0], tag=it[1])
        else:
            A(it)

class Keep:
    def __init__(self, A): self.A = A
    def __enter__(self): self.sv = list(self.A.vm); self.sl = list(self.A.lg)
    def __exit__(self, *e): self.A.vm = self.sv; self.A.lg = self.sl

TIDS = []
TAIL = []
def tmo(name, cnt, lim, vreg):
    if not OPT['tmo']:
        return []
    TIDS.append(name)
    TAIL.extend([name + '_T:', 's_lshl_b32 s88, s2, 3', 's_add_u32 s88, s88, s4', 's_lshl_b32 s88, s88, 5', 's_add_u32 s88, s88, %d' % (len(TIDS) - 1),
                 's_lshl_b32 s88, s88, 10', 's_add_u32 s88, s88, 0x2000000', 's_memrealtime s[90:91]',
                 'buffer_store_dword %s, %s, %s, s88 offen sc1' % (v(vreg), v(254), s(SWS, 4)), 's_waitcnt vmcnt(0) lgkmcnt(0)',
                 'v_mov_b32 %s, s90' % v(vreg), 'buffer_store_dword %s, %s, %s, s88 offen offset:4 sc1' % (v(vreg), v(254), s(SWS, 4)), 's_waitcnt vmcnt(0)',
                 'v_mov_b32 %s, s3' % v(vreg), 'buffer_store_dword %s, %s, %s, s88 offen offset:8 sc1' % (v(vreg), v(254), s(SWS, 4)), 's_waitcnt vmcnt(0)',
                 's_branch %s_U' % name])
    return ['s_cmp_eq_u32 %s, %d' % (s(cnt), lim), 's_cbranch_scc1 %s_T' % name, name + '_U:']

def poll(A, name, reload, vreg, mask, cmp_nonce=True, pre=()):
    A('s_mov_b32 %s, 0' % s(sT0))
    A.label(name + '_P')
    emit(A, pre)
    if cmp_nonce:
        A('v_cmp_ne_u32 vcc, %s, %s' % (s(sNonce), v(vreg)))
    else:
        A('v_cmp_eq_u32 vcc, 0, %s' % v(vreg))
    if mask is not None:
        A('s_and_b32 vcc_lo, vcc_lo, %s' % mask)
        A('s_cmp_eq_u32 vcc_lo, 0')
    else:
        A('s_cmp_eq_u64 vcc, 0')
    A.branch('s_cbranch_scc1 %s_G' % name)
    A('s_add_u32 %s, %s, 1' % (s(sT0), s(sT0)))
    A('s_cmp_gt_u32 %s, 0x%x' % (s(sT0), BOUND))
    A.branch('s_cbranch_scc1 %s_G' % name)
    for x in tmo(name, sT0, 3000, vreg):
        A.raw(x)
    if OPT['slp']:
        A('s_sleep %d' % OPT['slp'])
    with Keep(A):
        emit(A, [reload] if isinstance(reload, str) else reload)
    A('s_waitcnt vmcnt(0)')
    A.branch('s_branch %s_P' % name)
    A.label(name + '_G')

def lds_wait(A, name, addr, n, minval, t, extra=()):
    A('s_mov_b32 %s, 0' % s(sT0))
    A.label(name + '_P')
    with Keep(A):
        A('ds_read_b128 %s, %s' % (v(t, 4), addr) if n == 4 else 'ds_read_b32 %s, %s' % (v(t), addr))
        emit(A, extra)
    A('s_add_u32 %s, %s, 1' % (s(sT0), s(sT0)))
    A('s_waitcnt lgkmcnt(0)')
    A.lg = []
    if n == 4:
        A('v_min3_u32 %s, %s, %s, %s' % (v(t), v(t), v(t + 1), v(t + 2)))
        A('v_min_u32 %s, %s, %s' % (v(t), v(t), v(t + 3)))
    A('v_readfirstlane_b32 %s, %s' % (s(sT1), v(t)))
    for x in tmo(name, sT0, 40000, t):
        A.raw(x)
    A('s_cmp_gt_u32 %s, 0x%x' % (s(sT0), BOUND * 16))
    A('s_cselect_b32 %s, %d, %s' % (s(sT1), minval, s(sT1)))
    A('s_cmp_lt_u32 %s, %d' % (s(sT1), minval))
    A.branch('s_cbranch_scc1 %s_P' % name)

vLane, vL16 = 255, 254
sRt = 38

def vcheck(A, name, regs, t, reload, back=None):
    if back is None:
        A.raw(name + '_C:')
    r = list(regs)
    if len(r) > 1:
        first = True
        while r:
            if first:
                k = r[:3]; r = r[3:]
            else:
                k = [t] + r[:2]; r = r[2:]
            A(('v_max3_u32 %s, %s, %s, %s' if len(k) == 3 else 'v_max_u32 %s, %s, %s') % tuple([v(t)] + [v(x) for x in k]))
            first = False
        A('v_cmp_eq_u32 vcc, -1, %s' % v(t))
    else:
        A('v_cmp_eq_u32 vcc, -1, %s' % v(r[0]))
    A('s_cbranch_vccnz %s_R' % name)
    A.raw(name + '_K:')
    L = [name + '_R:', 's_add_u32 %s, %s, 1' % (s(sRt), s(sRt)), 's_cmp_gt_u32 %s, 0x%x' % (s(sRt), BOUND), 's_cbranch_scc1 %s_K' % name]
    L += tmo(name, sRt, 2000, t)
    if OPT['rsl']:
        L.append('s_sleep %d' % OPT['rsl'])
    L += ['s_nop 7', 's_nop 7']
    L += [x[0] if isinstance(x, tuple) else x for x in reload]
    L += ['s_waitcnt vmcnt(0)', 's_branch %s' % (back or name + '_C')]
    TAIL.extend(L)

def tr_addr(A, dst, t, rowhalf, sel):
    A('v_lshrrev_b32 %s, 5, %s' % (v(t), v(vLane)))
    A('v_bfe_u32 %s, %s, 2, 2' % (v(t + 1), v(vLane)))
    A('v_mul_u32_u24 %s, %d, %s' % (v(t), rowhalf, v(t)))
    A('v_add_lshl_u32 %s, %s, %s, 7' % (v(dst), v(t), v(t + 1)))
    A('v_bfe_u32 %s, %s, 3, 1' % (v(t), v(vLane)))
    if sel:
        A('v_xor_b32 %s, %s, %s' % (v(t), sel, v(t)))
    A('v_lshl_add_u32 %s, %s, 6, %s' % (v(dst), v(t), v(dst)))
    A('v_bfe_u32 %s, %s, 4, 1' % (v(t), v(vLane)))
    A('v_lshl_add_u32 %s, %s, 5, %s' % (v(dst), v(t), v(dst)))
    A('v_and_b32 %s, 3, %s' % (v(t), v(vLane)))
    A('v_lshl_add_u32 %s, %s, 3, %s' % (v(dst), v(t), v(dst)))

def selector(A, dst, t):
    A('v_lshrrev_b32 %s, 2, %s' % (v(t), v(vLane)))
    A('v_xor_b32 %s, %s, %s' % (v(t), v(t), v(vLane)))
    A('v_and_b32 %s, 4, %s' % (v(t), v(t)))
    A('v_cmp_eq_u32 vcc, 0, %s' % v(t))
    A('v_mov_b32 %s, 0x3f803f80' % v(t + 1))
    A('v_cndmask_b32 %s, 0, %s, vcc' % (v(dst), v(t + 1)))
    for i in range(1, 4):
        A('v_mov_b32 %s, %s' % (v(dst + i), v(dst)))

def onehot(A, dst, key, t, first=0):
    A('v_mov_b32 %s, 0x3f80' % v(t))
    A('v_mov_b32 %s, 0x3f800000' % v(t + 1))
    for r in range(4):
        A('v_cmp_eq_u32 vcc, %d, %s' % (first + 2 * r, v(key)))
        A('v_cndmask_b32 %s, 0, %s, vcc' % (v(dst + r), v(t)))
        A('v_cmp_eq_u32 vcc, %d, %s' % (first + 2 * r + 1, v(key)))
        A('v_cndmask_b32 %s, %s, %s, vcc' % (v(dst + r), v(dst + r), v(t + 1)))

def reduce_write(A, acc, t, base_s, nrt=2):
    A('v_and_b32 %s, 31, %s' % (v(t), v(vLane)))
    A('v_lshrrev_b32 %s, 5, %s' % (v(t + 1), v(vLane)))
    A('v_xor_b32 %s, %s, %s' % (v(t + 1), v(t + 1), v(vLane)))
    A('v_and_b32 %s, 7, %s' % (v(t + 1), v(t + 1)))
    A('v_lshlrev_b32 %s, 4, %s' % (v(t + 1), v(t + 1)))
    A('v_lshl_add_u32 %s, %s, 7, %s' % (v(t), v(t), v(t + 1)))
    A('v_add_u32 %s, %s, %s' % (v(t), s(base_s), v(t)))
    for q4 in range(1, 4):
        A('v_xor_b32 %s, %d, %s' % (v(t + q4), 32 * q4, v(t)))
    for q4 in range(4):
        A('v_xor_b32 %s, 16, %s' % (v(t + 4 + q4), v(t + q4)))
        A('v_add_u32 %s, %d, %s' % (v(t + 4 + q4), 65536, v(t + 4 + q4)))
    return [('ds_write_b128 %s, %s offset:%d' % (v(t + 4 * nt + q4), v(acc + 16 * (nrt * nt + rt) + 4 * q4, 4), rt * 16384))
            for nt in range(2) for rt in range(nrt) for q4 in range(4)]

def w2_voff(A, dst, t):
    A('v_lshrrev_b32 %s, 3, %s' % (v(t), v(vLane)))
    A('v_lshrrev_b32 %s, 2, %s' % (v(t + 1), v(vLane)))
    A('v_and_b32 %s, 4, %s' % (v(t + 1), v(t + 1)))
    A('v_and_b32 %s, 7, %s' % (v(t + 2), v(vLane)))
    A('v_xor_b32 %s, %s, %s' % (v(t + 1), v(t + 1), v(t + 2)))
    A('v_lshlrev_b32 %s, 4, %s' % (v(t + 1), v(t + 1)))
    A('s_lshl_b32 %s, %s, 7' % (s(sT0), s(sCb)))
    A('v_lshl_add_u32 %s, %s, 10, %s' % (v(dst), v(t), v(t + 1)))
    A('v_add_u32 %s, %s, %s' % (v(dst), s(sT0), v(dst)))

def quad(vo, srdn, ldsbase, tag):
    L = []
    L.append('s_lshl_b32 m0, %s, 12' % s(sJ))
    if ldsbase:
        L.append('s_add_u32 m0, m0, %d' % ldsbase)
    for i in range(4):
        if i:
            L.append('s_add_u32 %s, %s, %d' % (s(sO[i]), s(sO[0]), 7168 * i))
        L.append(('buffer_load_dwordx4 %s, %s, %s offen offset:%d lds' % (v(vo[i & 1]), s(srdn, 4), s(sO[i]), 1024 * i), tag))
    return L

def xres(A, vOo, vX):
    A('v_lshrrev_b32 %s, 3, %s' % (v(vOo), v(vLane)))
    A('v_and_b32 %s, 7, %s' % (v(vOo + 1), v(vLane)))
    A('v_lshlrev_b32 %s, 10, %s' % (v(vOo), v(vOo)))
    A('v_lshl_add_u32 %s, %s, 4, %s' % (v(vOo), v(vOo + 1), v(vOo)))
    A('s_lshl_b32 %s, %s, 3' % (s(6), s(sRb2)))
    A('s_add_u32 %s, %s, %s' % (s(6), s(6), s(sWave)))
    A('s_lshl_b32 %s, %s, 13' % (s(6), s(6)))
    A('s_lshl_b32 %s, %s, 7' % (s(7), s(sCb)))
    A('s_add_u32 %s, %s, %s' % (s(6), s(6), s(7)))
    A('buffer_load_dwordx4 %s, %s, %s, %s offen' % (v(vX, 4), v(vOo), s(SX, 4), s(6)), tag='xres')

def gen():
    A = Asm()
    vT = 236
    A.raw('.p2align 8')
    A.raw('.type %s_kernel,@function' % NAME)
    A.raw('%s_kernel:' % NAME)
    A('s_cmp_ge_u32 s2, 256')
    A.branch('s_cbranch_scc1 L_END')
    A('s_load_dwordx16 s[16:31], s[0:1], 0')
    A('s_load_dwordx4 s[32:35], s[0:1], 64')
    A('s_load_dwordx2 s[36:37], s[0:1], 80')
    A('s_memrealtime s[6:7]')
    A('v_and_b32 %s, 63, v0' % v(vLane))
    A('v_lshrrev_b32 %s, 6, v0' % v(vT))
    A('v_lshlrev_b32 %s, 4, %s' % (v(vL16), v(vLane)))
    A('v_readfirstlane_b32 %s, %s' % (s(sWave), v(vT)))
    A('s_and_b32 %s, s2, 7' % s(sT0))
    A('s_lshr_b32 %s, s2, 3' % s(sT1))
    A('s_and_b32 %s, %s, 1' % (s(sRb), s(sT0)))
    A('s_lshl_b32 %s, %s, 3' % (s(sRb), s(sRb)))
    A('s_and_b32 %s, %s, 7' % (s(sT2), s(sT1)))
    A('s_add_u32 %s, %s, %s' % (s(sRb), s(sRb), s(sT2)))
    A('s_lshr_b32 %s, %s, 1' % (s(sCg), s(sT0)))
    A('s_lshl_b32 %s, %s, 2' % (s(sCg), s(sCg)))
    A('s_lshr_b32 %s, %s, 3' % (s(sT2), s(sT1)))
    A('s_add_u32 %s, %s, %s' % (s(sCg), s(sCg), s(sT2)))
    A('s_and_b32 %s, %s, 1' % (s(sTyp), s(sCg)))
    A('s_lshr_b32 %s, %s, 1' % (s(sG), s(sCg)))
    A('s_xor_b32 %s, %s, %d' % (s(sGq), s(sG), 2 * OPT['xq']))
    A('s_cmp_eq_u32 %s, 1' % s(sTyp))
    A('s_cselect_b32 %s, %s, %s' % (s(sGq), s(sG), s(sGq)))
    A('s_lshl_b32 %s, %s, 1' % (s(sF), s(sCg)))
    A('s_add_u32 %s, %s, %s' % (s(sF), s(sF), s(sRb)))
    if OPT['rm']:
        A('s_and_b32 %s, %s, 3' % (s(sF), s(sCg)))
        A('s_lshl_b32 %s, %s, 1' % (s(sF), s(sF)))
        A('s_and_b32 %s, %s, 7' % (s(sT2), s(sRb)))
        A('s_add_u32 %s, %s, %s' % (s(sF), s(sF), s(sT2)))
        A('s_sub_u32 %s, %s, 7' % (s(sT2), s(sF)))
        A('s_cmp_ge_u32 %s, 7' % s(sF))
        A('s_cselect_b32 %s, %s, %s' % (s(sF), s(sT2), s(sF)))
        A('s_xor_b32 %s, %s, %s' % (s(38), s(sCg), s(sRb)))
        A('s_and_b32 %s, %s, %d' % (s(38), s(38), OPT['rm'] - 1))
    else:
        A('s_and_b32 %s, %s, %d' % (s(sF), s(sF), OPT['rot']))
    if OPT['xmap']:
        A('s_lshr_b32 %s, %s, 1' % (s(sRb2), s(sT0)))
        A('s_andn2_b32 %s, 1, %s' % (s(sT2), s(sT0)))
        A('s_lshl_b32 %s, %s, 2' % (s(sT2), s(sT2)))
        A('s_add_u32 %s, %s, %s' % (s(sRb2), s(sRb2), s(sT2)))
        A('s_lshl_b32 %s, %s, 2' % (s(sRb2), s(sRb2)))
    else:
        A('s_lshl_b32 %s, %s, 2' % (s(sRb2), s(sT0)))
    A('s_and_b32 %s, %s, 3' % (s(sT2), s(sT1)))
    A('s_add_u32 %s, %s, %s' % (s(sRb2), s(sRb2), s(sT2)))
    A('s_lshr_b32 %s, %s, 2' % (s(sCb), s(sT1)))
    if OPT['m2']:
        A('s_xor_b32 %s, %s, %s' % (s(sT2), s(sRb2), s(sCb)))
        A('s_and_b32 %s, %s, 4' % (s(sT2), s(sT2)))
        A('s_xor_b32 %s, %s, %s' % (s(sRb2), s(sRb2), s(sT2)))
        A('s_xor_b32 %s, %s, %s' % (s(sCb), s(sCb), s(sT2)))
    if OPT['m2'] == 2:
        A('s_lshr_b32 %s, %s, 2' % (s(sT2), s(sRb2)))
        A('s_xor_b32 %s, %s, %s' % (s(sT2), s(sT2), s(sCb)))
        A('s_and_b32 %s, %s, 2' % (s(sT2), s(sT2)))
        A('s_xor_b32 %s, %s, %s' % (s(sCb), s(sCb), s(sT2)))
        A('s_lshl_b32 %s, %s, 2' % (s(sT2), s(sT2)))
        A('s_xor_b32 %s, %s, %s' % (s(sRb2), s(sRb2), s(sT2)))
    A('s_and_b32 %s, %s, 3' % (s(sJ), s(sWave)))
    if not OPT['rm']:
        A('s_mov_b32 %s, 0' % s(sRt))
    A('s_cmp_ge_u32 %s, 4' % s(sWave))
    A.branch('s_cbranch_scc1 C_START')
    gen_loader(A)
    gen_compute(A)
    gen_final(A)
    return A.text()

def gen_loader(A):
    vXo, vP1, vP2, vP3, v2o = 224, 226, 227, 228, 252
    vNon, vG, vTa, vFl = 230, 232, 234, 253
    vT = 236
    vRow = 0
    vCf = 32
    vCa = 56
    vSel = 68
    vGa = 72
    vB1 = 104
    sPA16, sPA8, sPB16, sPB8 = 52, 53, 54, 55
    sC1, sC2, sC3 = SWO, SWO + 1, SWO + 2
    sStat = 7
    A('s_lshl_b32 %s, %s, 7' % (s(sT0), s(sG)))
    A('s_lshl_b32 %s, %s, 8' % (s(sT1), s(sG)))
    A('s_add_u32 %s, %s, 1024' % (s(sC1), s(sT0)))
    A('s_add_u32 %s, %s, 2048' % (s(sC2), s(sT0)))
    A('s_add_u32 %s, %s, 128' % (s(sT3), s(sT1)))
    A('s_lshl_b32 %s, %s, 7' % (s(sT2), s(sGq)))
    A('s_cmp_eq_u32 %s, 1' % s(sTyp))
    A('s_cselect_b32 %s, %s, %s' % (s(sC3), s(sC2), s(sT2)))
    A('s_cselect_b32 %s, %s, %s' % (s(sC1), s(sC1), s(sT1)))
    A('s_cselect_b32 %s, %s, %s' % (s(sC2), s(sC2), s(sT3)))
    A('s_movk_i32 %s, 2752' % s(sT1))
    A('s_cselect_b32 %s, 3072, %s' % (s(sT2), s(sT1)))
    A('s_cselect_b32 %s, %s, 3072' % (s(sT3), s(sT1)))
    w2_voff(A, v2o, vT)
    A('v_mul_u32_u24 %s, %s, %s' % (v(vP2), s(sT2), v(vT)))
    A('v_add3_u32 %s, %s, %s, %s' % (v(vP1), v(vP2), v(vT + 1), s(sC1)))
    A('v_add3_u32 %s, %s, %s, %s' % (v(vP2), v(vP2), v(vT + 1), s(sC2)))
    A('v_add_u32 %s, %s, %s' % (v(vT + 3), s(sC3), v(vT + 1)))
    A('v_mul_u32_u24 %s, %s, %s' % (v(vP3), s(sT3), v(vT)))
    A('v_add_u32 %s, %s, %s' % (v(vP3), v(vP3), v(vT + 3)))
    A('v_cmp_gt_u32 vcc, 2752, %s' % v(vT + 3))
    A('v_mov_b32 %s, 0x%x' % (v(vT + 3), OOB))
    A('v_cndmask_b32 %s, %s, %s, vcc' % (v(vP3), v(vT + 3), v(vP3)))
    A('s_lshl_b32 %s, %s, 4' % (s(sPA16), s(sT2)))
    A('s_lshl_b32 %s, %s, 3' % (s(sPA8), s(sT2)))
    A('s_sub_u32 %s, %s, 1024' % (s(sPA8), s(sPA8)))
    A('s_lshl_b32 %s, %s, 4' % (s(sPB16), s(sT3)))
    A('s_lshl_b32 %s, %s, 3' % (s(sPB8), s(sT3)))
    A('s_sub_u32 %s, %s, 1024' % (s(sPB8), s(sPB8)))
    A('v_lshrrev_b32 %s, 4, %s' % (v(vT + 1), v(vLane)))
    A('v_xor_b32 %s, %s, %s' % (v(vT + 1), v(vT + 1), v(vT + 2)))
    A('s_lshl_b32 %s, %s, 2' % (s(sT0), s(sRb)))
    A('s_add_u32 %s, %s, %s' % (s(sT0), s(sT0), s(sJ)))
    A('s_lshl_b32 %s, %s, 15' % (s(sT0), s(sT0)))
    A('v_lshlrev_b32 %s, 10, %s' % (v(vXo), v(vT)))
    A('v_lshl_add_u32 %s, %s, 4, %s' % (v(vXo), v(vT + 1), v(vXo)))
    A('v_add_u32 %s, %s, %s' % (v(vXo), s(sT0), v(vXo)))
    A('v_xor_b32 %s, 64, %s' % (v(vXo + 1), v(vXo)))
    A('s_lshl_b32 %s, %s, 11' % (s(sM), s(sJ)))
    A('s_lshl_b32 %s, %s, 4' % (s(sA), s(sRb)))
    A('s_add_u32 %s, %s, %s' % (s(sA), s(sA), s(sCg)))
    A('s_lshl_b32 %s, %s, 2' % (s(sA), s(sA)))
    A('s_add_u32 %s, %s, %s' % (s(sA), s(sA), s(sJ)))
    A('s_lshl_b32 %s, %s, 11' % (s(sB), s(sA)))
    A('v_and_b32 %s, 32, %s' % (v(vT + 4), v(vLane)))
    A('v_lshl_add_u32 %s, %s, 4, %s' % (v(vT + 4), v(vT + 4), v(vL16)))
    A('v_mov_b32 %s, 0' % v(vT + 5))
    A('s_or_b32 %s, s2, %s' % (s(sT0), s(sWave)))
    A('s_waitcnt lgkmcnt(0)')
    srd(A, SD, 34, 256)
    A('s_cmp_lg_u32 %s, 0' % s(sT0))
    A.branch('s_cbranch_scc1 L_NONONCE')
    A('s_or_b32 s6, s6, 1')
    A('v_mov_b32 %s, s6' % v(vT))
    with Keep(A):
        A('buffer_store_dword %s, %s, %s, 0 offen offset:128 sc1' % (v(vT), v(vT + 5), s(SD, 4)))
    A.label('L_NONONCE')
    srd(A, SX, 16, 2048 * 1024)
    A('s_cmp_eq_u32 %s, 1' % s(sTyp))
    for d, x_, y_, p16 in ((SA, 18, 26, sPA16), (SB, 26, 18, sPB16)):
        A('s_cselect_b32 %s, %s, %s' % (s(d), s(x_), s(y_)))
        A('s_cselect_b32 %s, %s, %s' % (s(d + 1), s(x_ + 1), s(y_ + 1)))
        A('s_mov_b32 %s, 0x20000' % s(d + 3))
    A('s_lshl_b32 %s, %s, 5' % (s(SA + 2), s(sPA16)))
    A('s_lshl_b32 %s, %s, 5' % (s(SB + 2), s(sPB16)))
    stamp(A, 0)

    def chunk(st):
        if OPT['rm']:
            if st == 0:
                return ['s_mov_b32 %s, %s' % (s(sT3), s(38))]
            return ['s_add_u32 %s, %s, %d' % (s(sT3), s(sF), st),
                    's_sub_u32 %s, %s, 7' % (s(sO[0]), s(sT3)),
                    's_cmp_ge_u32 %s, 8' % s(sT3),
                    's_cselect_b32 %s, %s, %s' % (s(sT3), s(sO[0]), s(sT3)),
                    's_xor_b32 %s, %s, %s' % (s(sT3), s(sT3), s(38))]
        return ['s_add_u32 %s, %s, %d' % (s(sT3), s(sF), st),
                's_and_b32 %s, %s, 7' % (s(sT3), s(sT3))]
    def krow(st):
        return chunk(st) + [
                's_lshl_b32 %s, %s, 2' % (s(sT3), s(sT3)),
                's_add_u32 %s, %s, %s' % (s(sT3), s(sT3), s(sJ))]
    def grp_w(st):
        L = krow(st)
        L.append('s_mul_i32 %s, %s, %s' % (s(sO[0]), s(sT3), s(sPA16)))
        L.append('s_add_u32 m0, %s, %d' % (s(sM), WP(st & 3)))
        L.append('s_add_u32 %s, %s, %s' % (s(sO[1]), s(sO[0]), s(sPA8)))
        L.append(('buffer_load_dwordx4 %s, %s, %s offen lds' % (v(vP1), s(SA, 4), s(sO[0])), 's%d' % st))
        L.append(('buffer_load_dwordx4 %s, %s, %s offen offset:1024 lds' % (v(vP1), s(SA, 4), s(sO[1])), 's%d' % st))
        L.append('s_add_u32 m0, %s, %d' % (s(sM), WP(st & 3) + 8192))
        L.append(('buffer_load_dwordx4 %s, %s, %s offen lds' % (v(vP2), s(SA, 4), s(sO[0])), 's%d' % st))
        L.append(('buffer_load_dwordx4 %s, %s, %s offen offset:1024 lds' % (v(vP2), s(SA, 4), s(sO[1])), 's%d' % st))
        return L
    def grp_p3(st):
        tag = ('s1' if OPT['rp'] else 's0') if st == 0 else 'p3'
        L = krow(st)
        if OPT['rm'] and st < 2:
            assert OPT['rm'] == 1
            L = ['s_add_u32 %s, %s, 1' % (s(sO[1]), s(sF)),
                 's_and_b32 %s, %s, 7' % (s(sT3), s(sRb)),
                 's_cmp_%s_u32 %s, 7' % ('lg' if st else 'eq', s(sT3)),
                 's_cselect_b32 %s, 0, %s' % (s(sT3), s(sO[1])),
                 's_cselect_b32 %s, %d, %d' % (s(sO[1]), 0, 1),
                 's_lshl_b32 %s, %s, 13' % (s(sO[1]), s(sO[1])),
                 's_add_u32 %s, %s, %s' % (s(sO[1]), s(sO[1]), s(sM))] + L[-2:]
        L.append('s_mul_i32 %s, %s, %s' % (s(sO[0]), s(sT3), s(sPB16)))
        if OPT['rm'] and st < 2:
            L.append('s_add_u32 m0, %s, %d' % (s(sO[1]), P3B[0]))
        else:
            L.append('s_add_u32 m0, %s, %d' % (s(sM), P3B[st]))
        L.append('s_add_u32 %s, %s, %s' % (s(sO[1]), s(sO[0]), s(sPB8)))
        L.append(('buffer_load_dwordx4 %s, %s, %s offen lds' % (v(vP3), s(SB, 4), s(sO[0])), tag))
        L.append(('buffer_load_dwordx4 %s, %s, %s offen offset:1024 lds' % (v(vP3), s(SB, 4), s(sO[1])), tag))
        return L
    def grp_x(st):
        L = chunk(st)
        L.append('s_lshl_b32 %s, %s, 7' % (s(sO[0]), s(sT3)))
        return L + quad((vXo, vXo + 1), SX, XP(st & 3), 's%d' % st)
    UL = [(8, 0), (8, 1), (8, 4), (8, 5), (3, 32), (3, 33), (3, 34), (8, 2), (8, 3), (8, 6), (8, 7)]
    UL = UL[:4] + UL[7:] + UL[4:7]
    UPY = [WP(1), WP(2), XP(2), XP(3), WP(3), WP(1), WP(2), WP(1), XP(0), XP(1), WP(0)]
    UPX = [WP(1), WP(2), WP(1), WP(2), WP(1), WP(2), WP(1), WP(1), XP(0), XP(1), WP(0)]
    def grp_w2(i, UP=UPY):
        m, c = UL[i]
        L = ['s_mul_i32 %s, %s, %d' % (s(sO[0]), s(sJ), m * 32768)]
        if c:
            L.append('s_add_u32 %s, %s, %d' % (s(sO[0]), s(sO[0]), c * 32768))
        return L + quad((v2o, v2o), SW2, UP[i], 'u%d' % i)
    groups = []
    for st in range(8):
        groups += [('w', st), ('x', st)]
    SCHED = {0: [6, 2, 2, 2, 2, 2], 1: [4, 4, 2, 2, 2, 2], 2: [8, 0, 2, 2, 2, 2], 3: [5, 3, 2, 2, 2, 2]}[OPT['sched']]
    pos = [0]
    def issue(n, iv):
        for _ in range(n):
            kind, st = groups[pos[0]]
            assert st <= iv + 3 or st < 4, (st, iv)
            emit(A, grp_w(st) if kind == 'w' else grp_x(st))
            pos[0] += 1

    nload = 'buffer_load_dword %s, %s, %s, 0 offen offset:128 sc1' % (v(vNon), v(vT + 5), s(SD, 4))
    A('buffer_load_dwordx4 %s, %s, %s, %s offen' % (v(vRow, 4), v(vT + 4), s(SX, 4), s(sB)), tag='row')
    A('buffer_load_dwordx4 %s, %s, %s, %s offen offset:512' % (v(vRow + 4, 4), v(vT + 4), s(SX, 4), s(sB)), tag='row')
    issue(2, -1)
    if not OPT['rp']:
        emit(A, grp_p3(0))
    A(nload, tag='s0')
    issue(2, -1)
    if OPT['rp']:
        assert OPT['rm']
        emit(A, grp_p3(0))
    A('buffer_load_dword %s, %s, %s, 0 offen offset:128 sc1' % (v(vNon + 1), v(vT + 5), s(SD, 4)), tag='non2')
    srd(A, SWS, 36, WS_SIZE)
    A('s_lshl_b32 %s, %s, 4' % (s(sStat), s(sA)))
    A('s_add_u32 %s, %s, 0x%x' % (s(sStat), s(sStat), WS_STAT))
    srd(A, SW2, 30, 1376 * 1024)

    def xsum32(r, t):
        for ctl in ('quad_perm:[1,0,3,2]', 'quad_perm:[2,3,0,1]', 'row_half_mirror', 'row_mirror'):
            A('v_add_f32_dpp %s, %s, %s %s row_mask:0xf bank_mask:0xf' % (v(r), v(r), v(r), ctl))
        A('v_mov_b32 %s, %s' % (v(t), v(r)))
        A('v_permlane16_swap_b32 %s, %s' % (v(r), v(t)))
        A('v_add_f32 %s, %s, %s' % (v(r), v(r), v(t)))
    U = vRow + 8
    tr_addr(A, vTa, vT, 8, s(sJ))
    A('s_lshr_b32 %s, %s, 3' % (s(sT0), s(sRb)))
    A('s_lshl_b32 %s, %s, 12' % (s(sT0), s(sT0)))
    A('s_add_u32 %s, %s, %d' % (s(sT0), s(sT0), L_W))
    A('v_add_u32 %s, %s, %s' % (v(vTa), s(sT0), v(vTa)))
    if OPT['rm']:
        A('s_and_b32 %s, %s, 7' % (s(sT0), s(sRb)))
        A('s_cmp_eq_u32 %s, 7' % s(sT0))
        A('s_cselect_b32 %s, 0, 8192' % s(sT0))
        A('s_add_u32 %s, %s, %d' % (s(sT0), s(sT0), P3B[0] - L_W))
        A('v_add_u32 %s, %s, %s' % (v(vTa + 1), s(sT0), v(vTa)))
    else:
        A('v_add_u32 %s, %d, %s' % (v(vTa + 1), P3B[0] - L_W, v(vTa)))
    selector(A, vSel, vT)
    A('v_lshlrev_b32 %s, 2, %s' % (v(vFl), v(vLane)))
    A('v_and_b32 %s, 0x7c, %s' % (v(vFl), v(vFl)))
    A.wait_vm('row')
    for j in range(8):
        A('v_lshlrev_b32 %s, 16, %s' % (v(U + 2 * j), v(vRow + j)))
        A('v_and_b32 %s, 0xffff0000, %s' % (v(U + 2 * j + 1), v(vRow + j)))
    for j in range(4):
        A('v_add_f32 %s, %s, %s' % (v(vRow + j), v(U + j), v(U + 4 + j)))
        A('v_add_f32 %s, %s, %s' % (v(vRow + 4 + j), v(U + 8 + j), v(U + 12 + j)))
    for st_ in (4, 2, 1):
        for j in range(st_):
            A('v_add_f32 %s, %s, %s' % (v(vRow + j), v(vRow + j), v(vRow + st_ + j)))
    xsum32(vRow, vRow + 1)
    A('v_mul_f32 %s, 0xbb000000, %s' % (v(vRow), v(vRow)))
    for j in range(16):
        A('v_add_f32 %s, %s, %s' % (v(U + j), v(U + j), v(vRow)))
    for j in range(4):
        A('v_mul_f32 %s, %s, %s' % (v(vRow + 4 + j), v(U + j), v(U + j)))
    for j in range(4, 16):
        A('v_fmac_f32 %s, %s, %s' % (v(vRow + 4 + (j & 3)), v(U + j), v(U + j)))
    r = vRow + 4
    A('v_add_f32 %s, %s, %s' % (v(r), v(r), v(r + 1)))
    A('v_add_f32 %s, %s, %s' % (v(r + 2), v(r + 2), v(r + 3)))
    A('v_add_f32 %s, %s, %s' % (v(r), v(r), v(r + 2)))
    xsum32(r, r + 1)
    A('v_mul_f32 %s, 0x3b000000, %s' % (v(r), v(r)))
    A('v_cvt_pk_bf16_f32 %s, %s, %s' % (v(r), v(r), v(r)))
    A('v_lshlrev_b32 %s, 16, %s' % (v(r), v(r)))
    A('v_add_f32 %s, 0x3727c5ac, %s' % (v(r), v(r)))
    A('v_cvt_pk_bf16_f32 %s, %s, %s' % (v(r), v(r), v(r)))
    A('v_lshlrev_b32 %s, 16, %s' % (v(r), v(r)))
    A('v_sqrt_f32 %s, %s' % (v(r), v(r)))
    A('v_cvt_pk_bf16_f32 %s, %s, %s' % (v(vG), v(vRow), v(r)))
    A('v_cmp_eq_u32 vcc, 0, %s' % v(vFl))
    A('v_lshrrev_b32 %s, 2, %s' % (v(vT), v(vLane)))
    A('v_mov_b32 %s, 0x%x' % (v(vT + 1), OOB))
    A('v_cndmask_b32 %s, %s, %s, vcc' % (v(vT + 4), v(vT + 1), v(vT)))
    issue(SCHED[0] - 4, -1)
    A.wait_vm('s0')
    A('s_barrier')
    stamp(A, 1)
    A('s_cmp_ge_u32 %s, 2' % s(sJ))
    A.branch('s_cbranch_scc1 L_NOCF')
    with Keep(A):
        for ks in range(2):
            for u in range(2 if OPT['rp'] else 3):
                for hh in range(2):
                    A('ds_read_b64_tr_b16 %s, %s offset:%d' % (v(vCf + 12 * ks + 4 * u + 2 * hh, 2), v(vTa + (u >> 1)), 8192 * (u & 1) + 2048 * ks + 512 * hh))
    A.label('L_NOCF')
    A('v_readfirstlane_b32 %s, %s' % (s(sNonce), v(vNon)))
    A('s_cmp_lg_u32 %s, 0' % s(sNonce))
    A.branch('s_cbranch_scc1 LN_DONE')
    with Keep(A):
        A.wait_vm('non2')
        A('v_mov_b32 %s, %s' % (v(vNon), v(vNon + 1)))
        poll(A, 'LN', nload, vNon, None, cmp_nonce=False)
        A('v_readfirstlane_b32 %s, %s' % (s(sNonce), v(vNon)))
    A.label('LN_DONE')
    A('v_mov_b32 %s, %s' % (v(vG + 1), v(vNon)))
    A('buffer_store_dwordx2 %s, %s, %s, %s offen sc1' % (v(vG, 2), v(vT + 4), s(SWS, 4), s(sStat)), tag='pub')
    A('s_cmp_ge_u32 %s, 2' % s(sJ))
    A.branch('s_cbranch_scc1 LB_START')
    vm0 = list(A.vm)
    pos0 = pos[0]

    def bar(n):
        A('s_barrier')
        if n == 4:
            stamp(A, 2)
        if n in (5, 6, 7):
            stamp(A, {5: 1, 6: 2, 7: 8}[n], 3)
    GI = OPT['gi']
    vA0, vB0 = 244, 246
    vFw = 248
    vSdw = 251
    vSg, vZo, vKw, vKf = 192, 196, 197, 199
    def prep_kv():
        A('v_and_b32 %s, 15, %s' % (v(vT), v(vLane)))
        A('v_lshrrev_b32 %s, 4, %s' % (v(vT + 1), v(vLane)))
        A('v_lshlrev_b32 %s, 3, %s' % (v(vT + 2), v(vT + 1)))
        A('v_xor_b32 %s, %s, %s' % (v(vT + 2), v(vT + 2), v(vT)))
        A('v_and_b32 %s, 15, %s' % (v(vT + 2), v(vT + 2)))
        onehot(A, vSg, vT + 2, vT + 3)
        A('v_lshrrev_b32 %s, 3, %s' % (v(vT + 3), v(vT)))
        A('v_mul_u32_u24 %s, %d, %s' % (v(vZo), KVS - 512, v(vT + 3)))
        A('v_lshl_add_u32 %s, %s, 4, %s' % (v(vZo), v(vT + 1), v(vZo)))
        A('v_lshl_add_u32 %s, %s, 6, %s' % (v(vZo), v(vT), v(vZo)))
        A('v_lshrrev_b32 %s, 1, %s' % (v(vT + 2), v(vT + 1)))
        A('v_mul_u32_u24 %s, 272, %s' % (v(vT + 2), v(vT + 2)))
        A('v_and_b32 %s, 1, %s' % (v(vT + 1), v(vT + 1)))
        A('v_lshl_add_u32 %s, %s, 3, %s' % (v(vT + 2), v(vT + 1), v(vT + 2)))
        A('s_mul_i32 %s, %s, %d' % (s(sT0), s(sJ), KVH))
        A('s_add_u32 %s, %s, %d' % (s(sT0), s(sT0), KVL))
        A('v_add_u32 %s, %s, %s' % (v(vT + 2), s(sT0), v(vT + 2)))
        A('v_lshl_add_u32 %s, %s, 4, %s' % (v(vKw), v(vT), v(vT + 2)))
        A('v_mul_u32_u24 %s, 544, %s' % (v(vT + 3), v(vT + 3)))
        A('v_add_u32 %s, %s, %s' % (v(vKw + 1), v(vT + 2), v(vT + 3)))
        A('v_and_b32 %s, 0x33, %s' % (v(vT), v(vLane)))
        A('v_bfe_u32 %s, %s, 2, 1' % (v(vT + 1), v(vLane)))
        A('v_lshl_or_b32 %s, %s, 3, %s' % (v(vT), v(vT + 1), v(vT)))
        A('v_bfe_u32 %s, %s, 3, 1' % (v(vT + 1), v(vLane)))
        A('v_lshl_or_b32 %s, %s, 2, %s' % (v(vT), v(vT + 1), v(vT)))
        A('v_lshlrev_b32 %s, 1, %s' % (v(vSdw), v(vT)))
    def lwarm():
        srd(A, STMP, 22, 512 * 1024)
        A('s_lshr_b32 %s, s2, 3' % s(sT0))
        A('s_lshl_b32 %s, %s, 2' % (s(sT0), s(sT0)))
        A('s_add_u32 %s, %s, %s' % (s(sT0), s(sT0), s(sJ)))
        A('v_lshlrev_b32 %s, 7, %s' % (v(vT), v(vLane)))
        A('s_mul_i32 %s, %s, %d' % (s(sT1), s(sT0), 86 * 128))
        A('buffer_load_dword %s, %s, %s, %s offen' % (v(107), v(vT), s(SW2, 4), s(sT1)), tag='wm')
        A('v_cmp_gt_u32 vcc, 22, %s' % v(vLane))
        A('v_mov_b32 %s, 0x%x' % (v(vT + 3), OOB))
        A('v_cndmask_b32 %s, %s, %s, vcc' % (v(vT + 2), v(vT + 3), v(vT)))
        A('s_add_u32 %s, %s, 8192' % (s(sT1), s(sT1)))
        A('buffer_load_dword %s, %s, %s, %s offen' % (v(107), v(vT + 2), s(SW2, 4), s(sT1)), tag='wm')
        A('v_cmp_gt_u32 vcc, 32, %s' % v(vLane))
        A('v_cndmask_b32 %s, %s, %s, vcc' % (v(vT + 2), v(vT + 3), v(vT)))
        A('s_lshl_b32 %s, %s, 12' % (s(sT1), s(sT0)))
        A('buffer_load_dword %s, %s, %s, %s offen' % (v(107), v(vT + 2), s(STMP, 4), s(sT1)), tag='wm')
    def prep2():
        tr_addr(A, vA0, vT, 4, None)
        A('s_lshl_b32 %s, %s, 1' % (s(sT0), s(sM)))
        A('v_add_u32 %s, %s, %s' % (v(vA0), s(sT0), v(vA0)))
        A('v_xor_b32 %s, 64, %s' % (v(vA0 + 1), v(vA0)))
        A('v_add_u32 %s, %d, %s' % (v(vB0), L_W, v(vA0)))
        A('v_add_u32 %s, %d, %s' % (v(vB0 + 1), L_W, v(vA0 + 1)))
        A('s_lshl_b32 %s, %s, 2' % (s(sT0), s(sJ)))
        A('s_add_u32 %s, %s, %d' % (s(sT0), s(sT0), FL_P3))
        A('v_mov_b32 %s, %s' % (v(vFw), s(sT0)))
        A('v_mov_b32 %s, 1' % v(vFw + 1))
        srd(A, SWO, 22, 512 * 1024)
    for k in 'AB':
        if k == 'B':
            A.label('LB_START')
            A.vm = list(vm0); A.lg = []; pos[0] = pos0
        sCs = 6
        if k == 'A':
            A('s_lshl_b32 %s, %s, 1' % (s(sCs), s(sCg)))
            A('s_add_u32 %s, %s, %s' % (s(sCs), s(sCs), s(sJ)))
            A('s_lshl_b32 %s, %s, 13' % (s(sCs), s(sCs)))
            A('s_add_u32 %s, %s, 0x%x' % (s(sCs), s(sCs), WS_CS))
            def colsum():
                if OPT['rm']:
                    A('s_and_b32 %s, %s, 7' % (s(sT1), s(sRb)))
                    A('s_cmp_eq_u32 %s, 7' % s(sT1))
                    A.branch('s_cbranch_scc1 L_CS0')
                    with Keep(A):
                        for ks in range(2):
                            for u in range(2):
                                for hh in range(2):
                                    A('ds_read_b64_tr_b16 %s, %s offset:%d' % (v(vCf + 12 * ks + 4 * u + 2 * hh, 2), v(vTa), 16384 + 8192 * u + 2048 * ks + 512 * hh))
                    A.label('L_CS0')
                    if OPT['rp']:
                        with Keep(A):
                            for ks in range(2):
                                for hh in range(2):
                                    A('ds_read_b64_tr_b16 %s, %s offset:%d' % (v(vCf + 12 * ks + 8 + 2 * hh, 2), v(vTa + 1), 2048 * ks + 512 * hh))
                A('s_lshl_b32 %s, %s, 9' % (s(sT1), s(sRb)))
                A('s_add_u32 %s, %s, %s' % (s(sT1), s(sT1), s(sCs)))
                A('v_and_b32 %s, 0x1ff, %s' % (v(vT), v(vL16)))
                A('s_waitcnt lgkmcnt(0)')
                for ks in range(2):
                    for u in range(3):
                        A('v_mfma_f32_16x16x32_bf16 %s, %s, %s, %s' % (v(vCa + 4 * u, 4), v(vSel, 4), v(vCf + 12 * ks + 4 * u, 4), '0' if ks == 0 else v(vCa + 4 * u, 4)))
                A('v_mov_b32 %s, %s' % (v(vCa + 1), v(vCa + 4)))
                A('v_mov_b32 %s, %s' % (v(vCa + 2), v(vCa + 8)))
                A('v_mov_b32 %s, %s' % (v(vCa + 3), v(vNon)))
                A('buffer_store_dwordx4 %s, %s, %s, %s offen sc1' % (v(vCa, 4), v(vT), s(SWS, 4), s(sT1)), tag='css')
            if not OPT['rm']:
                colsum()
            A('s_add_u32 %s, %s, 4096' % (s(sStat), s(sCs)))
            gal = ['buffer_load_dwordx4 %s, %s, %s, %s offen offset:%d sc1' % (v(vGa + 4 * i, 4), v(vL16), s(SWS, 4), s(sCs if i < 4 else sStat), 1024 * (i & 3)) for i in range(8)]
        else:
            A('s_lshl_b32 %s, %s, 1' % (s(sStat), s(sRb)))
            A('s_add_u32 %s, %s, %s' % (s(sStat), s(sStat), s(sJ)))
            A('s_lshl_b32 %s, %s, 9' % (s(sStat), s(sStat)))
            A('s_add_u32 %s, %s, 0x%x' % (s(sStat), s(sStat), WS_STAT - 1024))
            A('v_lshlrev_b32 %s, 3, %s' % (v(vTa), v(vLane)))
            gal = ['buffer_load_dwordx2 %s, %s, %s, %s offen sc1' % (v(vGa, 2), v(vTa), s(SWS, 4), s(sStat))]
        def gather():
            emit(A, [(x, 'ga') for x in gal])
        def small():
            if k == 'A':
                srd(A, STMP, 28, 2752)
                A('s_lshl_b32 %s, %s, 6' % (s(sT0), s(sJ)))
                A('s_add_u32 %s, %s, %s' % (s(sC1), s(sC1), s(sT0)))
                A('s_add_u32 %s, %s, %s' % (s(sC2), s(sC2), s(sT0)))
                A('s_add_u32 %s, %s, %s' % (s(sC3), s(sC3), s(sT0)))
                A('s_cmp_eq_u32 %s, 1' % s(sTyp))
                A('s_cselect_b32 %s, 0x%x, %s' % (s(sC1), OOB, s(sC1)))
                A('s_cselect_b32 %s, 0x%x, %s' % (s(sC2), OOB, s(sC2)))
                A('s_cselect_b32 %s, %s, 0x%x' % (s(sC3), s(sC3), OOB))
                A('v_lshrrev_b32 %s, 1, %s' % (v(vT), v(vFl)))
                for u in range(3):
                    A('buffer_load_ushort %s, %s, %s, %s offen' % (v(vB1 + u), v(vT), s(STMP, 4), s(sC1 + u)), tag='b1')
            else:
                srd(A, STMP, 20, 16384)
                A('s_lshl_b32 %s, %s, 1' % (s(sT0), s(sGq)))
                A('s_add_u32 %s, %s, %s' % (s(sT0), s(sT0), s(sJ)))
                A('s_lshl_b32 %s, %s, 10' % (s(sT0), s(sT0)))
                A('s_sub_u32 %s, %s, 2048' % (s(sT0), s(sT0)))
                A('s_lshr_b32 %s, %s, 1' % (s(sT1), s(sM)))
                A('s_add_u32 m0, %s, %d' % (s(sT1), TPH - 2048))
                A('buffer_load_dwordx4 %s, %s, %s offen lds' % (v(vL16), s(STMP, 4), s(sT0)), tag='b1')
        def tables():
            A.wait_vm('ga')
            stamp(A, 4, 3)
            if k == 'B':
                poll(A, 'LST', gal, vGa + 1, None)
                A('v_and_b32 %s, 0xffff, %s' % (v(vT), v(vGa)))
                A('v_lshl_or_b32 %s, %s, 16, %s' % (v(vT), v(vGa), v(vT)))
                A('v_lshrrev_b32 %s, 16, %s' % (v(vT + 1), v(vGa)))
                A('v_and_b32 %s, 0xffff0000, %s' % (v(vGa), v(vGa)))
                A('v_rcp_f32 %s, %s' % (v(vT + 2), v(vGa)))
                A('s_lshr_b32 %s, %s, 2' % (s(sT0), s(sM)))
                A('s_add_u32 %s, %s, %d' % (s(sT0), s(sT0), TB - 1024))
                A('v_add_u32 %s, %s, %s' % (v(vT + 3), s(sT0), v(vTa)))
                A('ds_write_b64 %s, %s' % (v(vT + 3), v(vT, 2)))
                A('s_lshr_b32 %s, %s, 3' % (s(sT0), s(sM)))
                A('s_add_u32 %s, %s, %d' % (s(sT0), s(sT0), TR - 512))
                A('v_lshl_add_u32 %s, %s, 2, %s' % (v(vT + 3), v(vLane), s(sT0)))
                A('ds_write_b32 %s, %s' % (v(vT + 3), v(vT + 2)))
                A('s_lshr_b32 %s, %s, 4' % (s(sT0), s(sM)))
                A('s_add_u32 %s, %s, %d' % (s(sT0), s(sT0), TS - 256))
                A('v_add_u32 %s, %s, %s' % (v(vT + 3), s(sT0), v(vSdw)))
                A('ds_write_b16 %s, %s' % (v(vT + 3), v(vT + 1)))
                A('v_cmp_eq_u32 vcc, 0, %s' % v(vFl))
                A('v_cndmask_b32 %s, 0, %s, vcc' % (v(vT + 4), v(vNon)))
                A('v_add_u32 %s, %d, %s' % (v(vT + 6), TN, v(vFl)))
                A('ds_write_b32 %s, %s' % (v(vT + 6), v(vT + 4)))
            else:
                pre = ['v_min3_u32 %s, %s, %s, %s' % (v(vT), v(vGa + 3), v(vGa + 7), v(vGa + 11)),
                       'v_max3_u32 %s, %s, %s, %s' % (v(vT + 1), v(vGa + 3), v(vGa + 7), v(vGa + 11)),
                       'v_min3_u32 %s, %s, %s, %s' % (v(vT), v(vT), v(vGa + 15), v(vGa + 19)),
                       'v_max3_u32 %s, %s, %s, %s' % (v(vT + 1), v(vT + 1), v(vGa + 15), v(vGa + 19)),
                       'v_min3_u32 %s, %s, %s, %s' % (v(vT), v(vT), v(vGa + 23), v(vGa + 27)),
                       'v_max3_u32 %s, %s, %s, %s' % (v(vT + 1), v(vT + 1), v(vGa + 23), v(vGa + 27)),
                       'v_min_u32 %s, %s, %s' % (v(vT), v(vT), v(vGa + 31)),
                       'v_max_u32 %s, %s, %s' % (v(vT + 1), v(vT + 1), v(vGa + 31)),
                       'v_cmp_eq_u32 vcc, %s, %s' % (v(vT), v(vT + 1)),
                       'v_cndmask_b32 %s, 0, %s, vcc' % (v(vT), v(vT))]
                poll(A, 'LCS', gal, vT, None, pre=pre)
                for st_ in (16, 8, 4):
                    for r in range(st_):
                        if r & 3 != 3:
                            A('v_add_f32 %s, %s, %s' % (v(vGa + r), v(vGa + r), v(vGa + st_ + r)))
                for u in range(3):
                    A('v_mov_b32 %s, %s' % (v(vGa + 4 + u), v(vGa + u)))
                for u in range(3):
                    A('v_permlane32_swap_b32 %s, %s' % (v(vGa + u), v(vGa + 4 + u)))
                for u in range(3):
                    A('v_add_f32 %s, %s, %s' % (v(vGa + u), v(vGa + u), v(vGa + 4 + u)))
                A('s_mul_i32 %s, %s, 768' % (s(sT0), s(sJ)))
                A('s_add_u32 %s, %s, %d' % (s(sT0), s(sT0), TA))
                A('v_lshl_add_u32 %s, %s, 1, %s' % (v(vT), v(vFl), s(sT0)))
                for u in range(3):
                    p = vGa + 8 + 2 * u
                    A('v_cvt_pk_bf16_f32 %s, %s, %s' % (v(p), v(vGa + u), v(vGa + u)))
                    A('v_lshlrev_b32 %s, 16, %s' % (v(p), v(p)))
                    A('v_sub_f32 %s, %s, %s' % (v(p), v(vGa + u), v(p)))
                    A('v_cvt_pk_bf16_f32 %s, %s, %s' % (v(p), v(vGa + u), v(p)))
                    A('v_mov_b32 %s, %s' % (v(p + 1), v(vB1 + u)))
                    A('ds_write_b64 %s, %s offset:%d' % (v(vT), v(p, 2), 256 * u))
        PS = {0: {4: ('p1', ''), 5: ('p2 p3 p4 p5', ''), 6: ('p6 p7 u0', ''), 7: ('', 'u1')},
              1: {4: ('', 'p1'), 5: ('', 'p2 p3'), 6: ('', 'p4 p5 p6 p7'), 7: ('', 'u0')},
              2: {7: ('', 'p1 p2 p3 p4 p5 p6 p7')},
              3: {4: ('', 'p1'), 5: ('', 'p2 p3 p4 p5'), 6: ('', 'p6 p7 u0'), 7: ('u1', '')},
              4: {4: ('', 'p1'), 5: ('', 'p2 p3 p4 p5'), 6: ('', 'p6 p7'), 7: ('u0', '')},
              5: {6: ('', 'p1 p2 p3 p4'), 7: ('p5 p6 p7', '')},
              6: {4: ('', 'p1'), 5: ('', 'p2 p3 p4 p5'), 6: ('', 'p6 p7'), 7: ('u0', 'u1')},
              7: {8: ('p1 p2 p3 p4 p5 p6 p7', '')},
              8: {6: ('', 'p1'), 7: ('p2', ''), 8: ('p3 p4 p5 p6 p7', '')},
              9: {6: ('', 'p1 p2'), 7: ('', 'p3'), 8: ('p4 p5 p6 p7', '')},
              10: {5: ('', 'p1'), 6: ('', 'p2'), 7: ('p3', 'p4'), 8: ('p5 p6 p7', '')},
              11: {7: ('p1 p2', ''), 8: ('p3 p4 p5 p6 p7', '')},
              12: {7: ('p1 p2 p3 p4', ''), 8: ('p5 p6 p7', '')},
              13: {7: ('p1 p2 p3 p4 p5 p6 p7', '')},
              14: {6: ('', 'p1 p2 p3'), 7: ('p4 p5', ''), 8: ('p6 p7', '')},
              15: {6: ('p1 p2', ''), 7: ('p3 p4', ''), 8: ('p5 p6 p7', '')}}[OPT['ps']]
        nw2 = 0
        def extra(spec):
            n = 0
            for it in spec.split():
                emit(A, grp_p3(int(it[1:])) if it[0] == 'p' else grp_w2(int(it[1:])))
                n += it[0] == 'u'
            return n
        for iv in range(8):
            pre_, post_ = PS.get(iv, ('', ''))
            if iv == 5 and OPT['si'] == 5:
                small()
            if iv == GI:
                gather()
            if iv < 5:
                issue(SCHED[iv + 1], iv)
            if iv == 0 and k == 'A' and OPT['rm']:
                A('s_waitcnt lgkmcnt(0)')
            if iv == 1 and k == 'A' and OPT['rm']:
                colsum()
            if iv == OPT['si'] and iv < 5:
                small()
            if iv == OPT['wi'] and OPT['warm'] == 2:
                lwarm()
            if iv == 3:
                prep_kv()
            if iv == 5:
                prep2()
            nw2 += extra(pre_)
            if iv == 7:
                tables()
                stamp(A, 5, 3)
                nw2 += extra(post_)
                stamp(A, 6, 3)
            if iv < 7:
                A.wait_vm('s%d' % (iv + 1))
                nw2 += extra(post_)
                bar(iv + 1)
        A('s_waitcnt lgkmcnt(0)')
        A.lg = []
        if k == 'A':
            vmA = list(A.vm)
            A.branch('s_branch L_JOIN')
    A.label('L_JOIN')
    vmB = list(A.vm)
    if vmA != vmB:
        assert vmA[-len(vmB):] == vmB or vmB[-len(vmA):] == vmA or not vmA or not vmB, (vmA, vmB)
        A.vm = list(vmA if len(vmA) > len(vmB) else vmB)
    A('s_barrier')
    stamp(A, 3)
    if not OPT['xp']:
        nw2 += extra(PS.get(8, ('', ''))[0])
    vAcc, vW, vR = 0, 64, 176
    def wread(slot, lds, tag):
        base, off = (vA0, lds) if lds < L_W else (vB0, lds - L_W)
        return [('ds_read_b64_tr_b16 %s, %s offset:%d' % (v(vW + 16 * slot + 8 * c + 4 * nt + 2 * hh, 2), v(base + nt), off + 2048 * c + 1024 * hh), tag)
                for c in range(2) for nt in range(2) for hh in range(2)]
    sFl, sAct = sA, sB
    vFv, vLa, vLt = 250, 251, 240
    fload = 'buffer_load_dword %s, %s, %s, %s offen sc1' % (v(vFv), v(vFl), s(SWS, 4), s(sFl))
    RB = [vR + 16 * ((i + 2) & 3) for i in range(11)]
    def alist(i):
        m, c = UL[i]
        L = ['s_add_u32 %s, %s, %d' % (s(sT1), s(sO[4] if m == 8 else sO[5]), c * 4096)]
        for q in range(4):
            L.append(('buffer_load_dwordx4 %s, %s, %s, %s offen offset:%d sc1' % (v(RB[i] + 4 * q, 4), v(vL16), s(SWS, 4), s(sT1), 1024 * q), 'a%d' % i))
        return L
    def aload(i):
        emit(A, alist(i))
    def lflag(val):
        A('v_mov_b32 %s, %d' % (v(vFw + 1), val))
        A('ds_write_b32 %s, %s' % (v(vFw), v(vFw + 1)))
    A('s_cmp_eq_u32 %s, 1' % s(sTyp))
    A.branch('s_cbranch_scc1 LX_START')
    vm8 = list(A.vm)
    for X in (0, 1):
        if X:
            A.label('LX_START')
            A.vm = list(vm8); A.lg = []
        XS = X and OPT['xs']
        UP = UPX if X and not XS else UPY
        WIN = XS if XS else 2 if X else OPT['win']
        nx = [nw2]
        TRS = ['u%d' % i for i in range(7)] + (['w2', 'u7', 'w0', 'w1', 'w3'] if X and not XS else ['w0', 'w1', 'w3', 'u7', 'w2'])
        def wo(i):
            L = ['s_lshl_b32 %s, %s, 17' % (s(sO[0]), s(sJ))]
            if i:
                L.append('s_add_u32 %s, %s, %d' % (s(sO[0]), s(sO[0]), i * 32768))
            return L + quad((v2o, v2o), SWO, 32768 + 16384 * (i & 1) + 65536 * (i >> 1), 'w%d' % i)
        cap = [11 if X else 11 - OPT['yd']]
        XP_ = {}
        if OPT['xp']:
            assert OPT['ps'] == 7
            if X:
                XP_ = {1: {1: 'p1 p2 p3', 2: 'p4 p5', 3: 'p6 p7'}, 2: {1: 'p1 p2', 2: 'p3 p4', 3: 'p5 p6', 4: 'p7'},
                       3: {1: 'p1 p2 p3 p4', 2: 'p5 p6 p7'}}[OPT['xp']]
            else:
                extra(PS[8][0])
        sKf, sK = (SB, [SB + 1, SB + 2, SB + 3, 6, 7]) if OPT['yd'] or OPT['ke'] else (sO[0], [sO[1], sO[2], sO[3], 6, 7])
        kfl = 'buffer_load_dword %s, %s, %s, %s offen sc1' % (v(vKf), v(vFl), s(SWS, 4), s(sKf))
        def kaddr():
            A('s_lshl_b32 %s, %s, 2' % (s(sT0), s(sGq)))
            A('s_add_u32 %s, %s, %s' % (s(sT0), s(sT0), s(sJ)))
            A('s_lshl_b32 %s, %s, 7' % (s(sKf), s(sT0)))
            A('s_add_u32 %s, %s, 0x%x' % (s(sKf), s(sKf), WS_KF))
            if not OPT['ke']:
                A(kfl, tag='kf')
            A('s_mul_i32 %s, %s, %d' % (s(sT0), s(sT0), 2 * KVS))
            for i_, o_ in enumerate((0, KVS, 4096, KVS + 4096, 8192)):
                A('s_add_u32 %s, %s, 0x%x' % (s(sK[i_]), s(sT0), WS_KVP + o_))
        def w2_upto(n):
            while nx[0] <= min(n, cap[0]):
                k = TRS[nx[0]]
                emit(A, grp_w2(int(k[1:]), UP) if k[0] == 'u' else wo(int(k[1:])))
                if nx[0] == OPT['fa']:
                    A(fload, tag='fl')
                if not X and OPT['ke'] and nx[0] == OPT['ke']:
                    A(kfl, tag='kf')
                extra(XP_.get(nx[0], ''))
                nx[0] += 1
        def gate(i, mask):
            A.wait_vm('fl')
            poll(A, 'LA%d%d' % (X, i), fload, vFv, mask)
        def unit(i):
            A.wait_vm('a%d' % i)
            if i in (0, 3):
                stamp(A, {0: 1, 3: 2}[i], 6)
            if i in (4, 7, 8, 10):
                stamp(A, {4: 2, 7: 3, 8: 4, 10: 5}[i], 7)
            if i >= 7:
                A.wait_lg('b%d' % i)
            wb = vW + 16 * (i % 7)
            for c in range(2):
                for nt in range(2):
                    for rt in range(2):
                        acc = vAcc + 16 * (2 * nt + rt)
                        A('v_mfma_f32_32x32x16_bf16 %s, %s, %s, %s' % (v(acc, 16), v(wb + 8 * c + 4 * nt, 4), v(RB[i] + 8 * c + 4 * rt, 4), '0' if (i == 0 and c == 0) else v(acc, 16)))
        w2_upto(OPT['xs0'] if XS else WIN - 1 - (0 if X else OPT['wl']))
        A('s_lshl_b32 %s, %s, 3' % (s(sFl), s(sRb2)))
        A('s_add_u32 %s, %s, %s' % (s(sFl), s(sFl), s(sJ)))
        A('s_lshl_b32 %s, %s, 7' % (s(sFl), s(sFl)))
        A('s_add_u32 %s, %s, 0x%x' % (s(sFl), s(sFl), WS_F))
        A('s_mul_i32 %s, %s, %d' % (s(sAct), s(sRb2), NU * 4096))
        A('s_lshl_b32 %s, %s, 15' % (s(sO[4]), s(sJ)))
        A('s_add_u32 %s, %s, %s' % (s(sO[4]), s(sO[4]), s(sAct)))
        A('s_mul_i32 %s, %s, %d' % (s(sO[5]), s(sJ), 3 * 4096))
        A('s_add_u32 %s, %s, %s' % (s(sO[5]), s(sO[5]), s(sAct)))
        if not XP_:
            A.wait_vm('p3')
            A('ds_write_b32 %s, %s' % (v(vFw), v(vFw + 1)))
        if not X:
            w2_upto(WIN - 1)
            if OPT['ke']:
                kaddr()
        for i in range(7):
            if XS and i == OPT['xs0'] + 1:
                A('v_mov_b32 %s, %d' % (v(vLa), FL_KV))
                lds_wait(A, 'LXK', v(vLa), 4, 1, vLt)
                w2_upto(i - 1 + WIN)
            if XP_ and i == max(XP_) + 1:
                A.wait_vm('p3')
                A('ds_write_b32 %s, %s' % (v(vFw), v(vFw + 1)))
            A.wait_vm('u%d' % i)
            emit(A, wread(i, UP[i], 'm'))
            A.wait_lg(None)
            if not XS or i > OPT['xs0']:
                w2_upto(i + WIN)
        if X and not XS:
            A('v_mov_b32 %s, %d' % (v(vLa), FL_KV))
            lds_wait(A, 'LXK', v(vLa), 4, 1, vLt)
            w2_upto(11)
        for i in range(7, 12):
            if nx[0] <= cap[0]:
                A.wait_vm(TRS[i])
                w2_upto(i + WIN)
        stamp(A, 8)
        stamp(A, 3, 6)
        LA, LB, L8 = (OPT['lax'], OPT['lbx'], OPT['l8x']) if X else (OPT['la'], OPT['lb'], OPT['l8'])
        def late():
            A('v_mov_b32 %s, %d' % (v(vLa), FL_PB))
            lds_wait(A, 'LPB%d' % X, v(vLa), 4, 2, vLt)
            for i in range(8, 11):
                emit(A, grp_w2(i, UP))
        def lread():
            A.wait_vm('u10')
            for i in range(8, 11):
                emit(A, wread(i - 7, UP[i], 'b%d' % i))
        if not X and not OPT['ke']:
            kaddr()
        elif not X and OPT['ke'] > 11:
            A(kfl, tag='kf')
        def gate_a():
            gate(0, '0xf')
            stamp(A, 4)
            for i in range(LA if X else 2):
                aload(i)
        if X or not OPT['ka']:
            gate_a()
        elif OPT['ka'] >= 2:
            A(fload, tag='fl')
        if not X:
            vK, vZ, vD = 0, 176, 180
            KL = [('buffer_load_dwordx4 %s, %s, %s, %s offen sc1' % (v(vZ, 4), v(vZo), s(SWS, 4), s(sK[4])), 'kz')]
            for i in range(16):
                c, q = i & 1, i >> 1
                KL.append(('buffer_load_dwordx4 %s, %s, %s, %s offen offset:%d sc1' % (v(vK + 4 * i, 4), v(vL16), s(SWS, 4), s(sK[c + 2 * (q >> 2)]), 1024 * (q & 3)), 'k%d' % i))
            pre = []
            if OPT['kpf'] == 1:
                emit(A, KL)
            if OPT['kpf'] >= 2:
                A('s_and_b32 %s, %s, 1' % (s(sT0), s(sRb)))
                A('s_mul_i32 %s, %s, %d' % (s(sT0), s(sT0), KVS))
                if OPT['kpf'] == 3:
                    A('s_lshl_b32 %s, %s, 11' % (s(sT1), s(sRb)))
                    A('s_and_b32 %s, %s, 4096' % (s(sT1), s(sT1)))
                    A('s_add_u32 %s, %s, %s' % (s(sT0), s(sT0), s(sT1)))
                    A('v_lshl_add_u32 %s, %s, 5, %s' % (v(vK), v(vFl), s(sT0)))
                else:
                    A('v_lshl_add_u32 %s, %s, 7, %s' % (v(vK), v(vLane), s(sT0)))
                pre = ['buffer_load_dword %s, %s, %s, %s offen sc1' % (v(vK + 1), v(vK), s(SWS, 4), s(sK[0]))]
                emit(A, pre)
            A.wait_vm('kf')
            poll(A, 'LK', [kfl] + pre + ([fload] if OPT['ka'] else []), vKf, '0xffff')
            stamp(A, 1, 2)
            emit(A, KL)
            if OPT['ka']:
                gate_a()
            if OPT['yw'] == 0:
                cap[0] = 11
                w2_upto(11)
            A.raw('VK_B:')
            A.wait_vm('kz')
            A('v_mfma_f32_16x16x32_bf16 %s, %s, %s, 0' % (v(vD + 8, 4), v(vSg, 4), v(vZ, 4)))
            zl = []
            for ctl in ('quad_perm:[1,0,3,2]', 'quad_perm:[2,3,0,1]', 'row_half_mirror'):
                for r in range(4):
                    zl.append('v_add_f32_dpp %s, %s, %s %s row_mask:0xf bank_mask:0xf' % (v(vD + 8 + r), v(vD + 8 + r), v(vD + 8 + r), ctl))
            zl.append('v_cvt_pk_bf16_f32 %s, %s, %s' % (v(vD + 8), v(vD + 8), v(vD + 9)))
            zl.append('v_cvt_pk_bf16_f32 %s, %s, %s' % (v(vD + 9), v(vD + 10), v(vD + 11)))
            zl.append('ds_write_b64 %s, %s offset:256' % (v(vKw + 1), v(vD + 8, 2)))
            for i in range(16):
                A.wait_vm('k%d' % i)
                d = vD + 4 * (i & 1)
                A('v_mfma_f32_16x16x32_bf16 %s, %s, %s, %s' % (v(d, 4), v(vSg, 4), v(vK + 4 * i, 4), '0' if i < 2 else v(d, 4)))
                if i & 1:
                    A('v_max3_u32 %s, %s, %s, %s' % (v(vKf), v(vZ if i == 1 else vKf), v(vK + 4 * i - 4), v(vK + 4 * i)))
                if i >= 4:
                    emit(A, zl[:2]); zl = zl[2:]
            vcheck(A, 'VK', [vKf], vKf, KL, back='VK_B')
            for c in range(2):
                d = vD + 4 * c
                A('v_cvt_pk_bf16_f32 %s, %s, %s' % (v(d), v(d), v(d + 1)))
                A('v_cvt_pk_bf16_f32 %s, %s, %s' % (v(d + 1), v(d + 2), v(d + 3)))
                A('ds_write_b64 %s, %s offset:%d' % (v(vKw), v(d, 2), 544 * c))
            A('ds_write_b32 %s, %s offset:%d' % (v(vFw), v(vFw + 1), FL_KV - FL_P3))
            stamp(A, 3, 2)
            cap[0] = 11
            w2_upto(11)
            if OPT['bq'] == 3:
                A('v_mov_b32 %s, %d' % (v(vLa), FL_EX))
                lds_wait(A, 'LYK', v(vLa), 4, 1, vLt)
            if OPT['roll']:
                A(fload, tag='fl')
            for i in range(2, 4 if OPT['roll'] else LA):
                aload(i)
            if OPT['bq'] == 4:
                A('v_mov_b32 %s, %d' % (v(vLa), FL_EX))
                lds_wait(A, 'LYK', v(vLa), 4, 1, vLt)
        if X and OPT['xh']:
            A('v_mov_b32 %s, %d' % (v(vLa), FL_PB))
            lds_wait(A, 'LXH', v(vLa), 4, 2, vLt)
        if OPT['roll']:
            assert not X or LA == 4
            seq = {1: 'U0 W U1 B a4 a5 F L U2 a6 U3 a7 U4 C a8 R U5 a9 U6 a10 x U7 U8 U9 U10',
                   2: 'L U0 W U1 B a4 a5 F U2 a6 U3 a7 R U4 C a8 U5 a9 U6 a10 x U7 U8 U9 U10',
                   3: 'U0 W U1 B a4 a5 U2 a6 F U3 a7 L U4 U5 C a8 a9 U6 a10 R x U7 U8 U9 U10',
                   5: 'L U0 U1 B a4 a5 F U2 a6 W U3 a7 R U4 C a8 U5 a9 U6 a10 x U7 U8 U9 U10',
                   6: 'U0 U1 B a4 a5 F L U2 a6 W U3 a7 U4 C a8 R U5 a9 U6 a10 x U7 U8 U9 U10',
                   4: 'U0 W B a4 U1 a5 F L U2 a6 U3 a7 U4 C a8 R U5 a9 U6 a10 x U7 U8 U9 U10'}[OPT['rollx'] if X else OPT['roll']]
            if X:
                A(fload, tag='fl')
            for it in seq.split():
                if it == 'U10' and OPT['lnf'] >= 2:
                    A.wait_vm('a10')
                    stamp(A, 5, 7)
                    A.wait_lg('b10')
                    for n in range(4 + OPT['lnd']):
                        if n < 4:
                            for c in range(2):
                                acc = vAcc + 16 * n
                                A('v_mfma_f32_32x32x16_bf16 %s, %s, %s, %s' % (v(acc, 16), v(vW + 48 + 8 * c + 4 * (n >> 1), 4), v(RB[10] + 8 * c + 4 * (n & 1), 4), v(acc, 16)))
                        if n == 3:
                            stamp(A, 6)
                        if n >= OPT['lnd']:
                            emit(A, wr[4 * (n - OPT['lnd']):4 * (n - OPT['lnd']) + 4])
                    A.branch('s_branch F_START')
                elif it[0] == 'U':
                    unit(int(it[1:]))
                    if it == 'U8' and OPT['lnf'] >= 2:
                        A('s_lshl_b32 %s, %s, 1' % (s(sT0), s(sM)))
                        wr = reduce_write(A, vAcc, 64, sT0)
                    if it == 'U3':
                        stamp(A, 5)
                elif it[0] == 'a':
                    aload(int(it[1:]))
                elif it == 'W':
                    A.wait_vm('w2')
                    lflag(3)
                    emit(A, wread(0, UP[7], 'b7'))
                elif it == 'B':
                    stamp(A, 2, 2)
                    gate(4, '0xff')
                    stamp(A, 8, 2)
                    stamp(A, 1, 7)
                elif it == 'C':
                    gate(8, '0x3f00')
                    stamp(A, 4, 2)
                    stamp(A, 8, 7)
                elif it == 'F':
                    A(fload, tag='fl')
                elif it == 'L':
                    late()
                elif it == 'R':
                    lread()
                elif it == 'x':
                    xres(A, 240, 244)
            if not X and OPT['lnf'] < 2:
                A.branch('s_branch L_RED')
            continue
        for i in range(4):
            unit(i)
            if i + LA < 4:
                aload(i + LA)
            if i == (OPT['yf'] if OPT['yd'] and not X else 0):
                A.wait_vm('w2')
                lflag(3)
                emit(A, wread(0, UP[7], 'b7'))
            if i == 2:
                A(fload, tag='fl')
        stamp(A, 5)
        if L8 == 0:
            late()
        if not X and OPT['bq'] == 2:
            A('v_mov_b32 %s, %d' % (v(vLa), FL_EX))
            lds_wait(A, 'LYK', v(vLa), 4, 1, vLt)
        stamp(A, 2, 2)
        gate(4, '0xff')
        stamp(A, 8, 2)
        stamp(A, 8, 6)
        stamp(A, 1, 7)
        for i in range(4, 4 + LB):
            aload(i)
        for i in range(4, 8):
            unit(i)
            if i + LB < 8:
                aload(i + LB)
            if i == 4 and L8 == 0:
                lread()
            if i == max(4, 8 - LB) and L8 == 1:
                late()
            if i == 6:
                A(fload, tag='fl')
        if L8 == 2:
            late()
            A(fload, tag='fl')
        gate(8, '0x3f00')
        stamp(A, 4, 2)
        stamp(A, 8, 7)
        for i in range(8, 11):
            aload(i)
        if L8:
            lread()
        xres(A, 240, 244)
        for i in range(8, 11):
            unit(i)
        if not X:
            A.branch('s_branch L_RED')
    if OPT['lnf'] >= 2:
        return
    A.label('L_RED')
    stamp(A, 6)
    A('s_lshl_b32 %s, %s, 1' % (s(sT0), s(sM)))
    wr = reduce_write(A, vAcc, 64, sT0)
    A('s_mov_b32 %s, 0x%x' % (s(sO[0]), LN2))
    A('s_mov_b32 %s, 0x%x' % (s(sO[1]), LN2))
    for n, w in enumerate(wr):
        r = vAcc + 4 * n
        if not OPT['lnf']:
            A('v_pk_mul_f32 %s, %s, %s' % (v(r, 2), v(r, 2), s(sO[0], 2)))
            A('v_pk_mul_f32 %s, %s, %s' % (v(r + 2, 2), v(r + 2, 2), s(sO[0], 2)))
        A(w)
    A.branch('s_branch F_START')

def gen_compute(A):
    A.label('C_START')
    A.vm = []; A.lg = []
    vX = 0
    def ACC(u, r): return 128 + 32 * u + 16 * r
    vWf, vXf = 192, 216
    vXo, vXt = 228, 232
    vPw, vVw, vPr, vVr, vSt, vPo, vF2 = 236, 237, 238, 239, 240, 241, 242
    vR0 = 236
    vWa, vTa, vTb, vTr, vPa, vFo, vWm, vNon = 244, 245, 246, 247, 248, 249, 250, 252
    vR = [232, 234]
    vT = 0
    sCh, sRg, sP2 = sA, sB, sM
    sL2, sHO = 52, 54
    A('s_and_b32 %s, %s, 1' % (s(sCh), s(sJ)))
    A('s_lshr_b32 %s, %s, 1' % (s(sRg), s(sJ)))
    A('s_lshl_b32 %s, %s, 1' % (s(sP2), s(sRb)))
    A('s_add_u32 %s, %s, %s' % (s(sP2), s(sP2), s(sRg)))
    A('s_mov_b32 %s, 0x%x' % (s(sL2), LOG2E))
    A('s_mov_b32 %s, 0x%x' % (s(sL2 + 1), LOG2E))
    A('s_mov_b32 %s, 0.5' % s(sHO))
    A('s_mov_b32 %s, 1.0' % s(sHO + 1))
    A('v_mov_b32 %s, 0x%x' % (v(vT), OOB))
    A('v_cmp_eq_u32 vcc, 0, %s' % v(vLane))
    A('v_cndmask_b32 %s, %s, 0, vcc' % (v(vFo), v(vT)))
    tr_addr(A, vWa, vT, 8, s(sCh))
    A('v_add_u32 %s, %d, %s' % (v(vWa), L_W, v(vWa)))
    A('v_lshrrev_b32 %s, 5, %s' % (v(vT), v(vLane)))
    A('v_and_b32 %s, 31, %s' % (v(vT + 1), v(vLane)))
    A('v_bfe_u32 %s, %s, 1, 3' % (v(vT + 2), v(vLane)))
    A('v_xor_b32 %s, %s, %s' % (v(vT + 2), v(vT + 2), v(vT)))
    A('v_lshlrev_b32 %s, 4, %s' % (v(vT + 2), v(vT + 2)))
    A('v_lshl_add_u32 %s, %s, 7, %s' % (v(vT + 2), v(vT + 1), v(vT + 2)))
    A('s_lshl_b32 %s, %s, 12' % (s(sT0), s(sJ)))
    A('v_add_u32 %s, %s, %s' % (v(vXo), s(sT0), v(vT + 2)))
    for tt in range(1, 4):
        A('v_xor_b32 %s, %d, %s' % (v(vXo + tt), 32 * tt, v(vXo)))
    for tt in range(4):
        A('v_xor_b32 %s, 0x1000, %s' % (v(vXt + tt), v(vXo + tt)))
    A('v_lshlrev_b32 %s, 3, %s' % (v(vT + 2), v(vT + 1)))
    A('v_lshl_add_u32 %s, %s, 2, %s' % (v(vT + 2), v(vT), v(vT + 2)))
    A('v_add_u32 %s, %d, %s' % (v(vTa), TA, v(vT + 2)))
    A('s_lshl_b32 %s, %s, 8' % (s(sT0), s(sJ)))
    A('s_add_u32 %s, %s, %d' % (s(sT0), s(sT0), TB))
    A('v_add_u32 %s, %s, %s' % (v(vTb), s(sT0), v(vT + 2)))
    A('s_lshl_b32 %s, %s, 7' % (s(sT0), s(sJ)))
    A('s_add_u32 %s, %s, %d' % (s(sT0), s(sT0), TR))
    A('v_lshl_add_u32 %s, %s, 2, %s' % (v(vTr), v(vT + 1), s(sT0)))
    A('v_bfe_u32 %s, %s, 2, 2' % (v(vT + 2), v(vLane)))
    A('v_lshl_add_u32 %s, %s, 2, %s' % (v(vT + 2), v(vT), v(vT + 2)))
    A('v_bfe_u32 %s, %s, 4, 1' % (v(vT + 3), v(vLane)))
    A('v_bfe_u32 %s, %s, 1, 1' % (v(vT + 4), v(vLane)))
    A('v_lshl_add_u32 %s, %s, 1, %s' % (v(vT + 4), v(vT + 3), v(vT + 4)))
    A('v_lshlrev_b32 %s, 3, %s' % (v(vT + 4), v(vT + 4)))
    A('v_lshl_add_u32 %s, %s, 5, %s' % (v(vPa), v(vT + 2), v(vT + 4)))
    A('s_and_b32 %s, %s, %s' % (s(sT0), s(sCh), s(sTyp)))
    A('s_lshl_b32 %s, %s, 10' % (s(sT0), s(sT0)))
    A('s_add_u32 %s, %s, %d' % (s(sT0), s(sT0), TPH))
    A('v_add_u32 %s, %s, %s' % (v(vPa), s(sT0), v(vPa)))
    A('v_and_b32 %s, 1, %s' % (v(vT + 2), v(vLane)))
    A('v_bfe_u32 %s, %s, 2, 1' % (v(vT + 3), v(vLane)))
    A('v_xor_b32 %s, %s, %s' % (v(vT + 4), v(vT + 3), v(vT)))
    A('v_lshl_or_b32 %s, %s, 1, %s' % (v(vT + 4), v(vT + 4), v(vT + 2)))
    A('v_bfe_u32 %s, %s, 1, 1' % (v(vT + 5), v(vLane)))
    A('v_lshl_or_b32 %s, %s, 2, %s' % (v(vT + 4), v(vT + 5), v(vT + 4)))
    A('v_lshlrev_b32 %s, 4, %s' % (v(vT + 4), v(vT + 4)))
    A('v_lshl_add_u32 %s, %s, 7, %s' % (v(vT + 4), v(vT + 1), v(vT + 4)))
    A('s_lshl_b32 %s, %s, 16' % (s(sT1), s(sCh)))
    A('s_add_u32 %s, %s, %d' % (s(sT1), s(sT1), PH0))
    A('s_lshl_b32 %s, %s, 12' % (s(sT0), s(sJ)))
    A('s_add_u32 %s, %s, %s' % (s(sT0), s(sT0), s(sT1)))
    A('v_add_u32 %s, %s, %s' % (v(vPw), s(sT0), v(vT + 4)))
    A('v_bfe_u32 %s, %s, 4, 1' % (v(vT + 4), v(vLane)))
    A('v_xor_b32 %s, %s, %s' % (v(vT + 4), v(vT + 4), v(vT + 3)))
    A('v_xor_b32 %s, %s, %s' % (v(vT + 2), v(vT + 2), v(vT)))
    A('v_lshl_or_b32 %s, %s, 1, %s' % (v(vT + 4), v(vT + 2), v(vT + 4)))
    A('v_bfe_u32 %s, %s, 3, 1' % (v(vT + 2), v(vLane)))
    A('v_xor_b32 %s, %s, %s' % (v(vT + 2), s(sRg), v(vT + 2)))
    A('v_lshl_or_b32 %s, %s, 2, %s' % (v(vT + 4), v(vT + 2), v(vT + 4)))
    A('v_lshl_or_b32 %s, %s, 1, %s' % (v(vT + 4), v(vT + 4), v(vT + 5)))
    A('v_lshlrev_b32 %s, 3, %s' % (v(vT + 4), v(vT + 4)))
    A('v_bfe_u32 %s, %s, 2, 2' % (v(vT + 2), v(vLane)))
    A('v_lshl_add_u32 %s, %s, 2, %s' % (v(vT + 2), v(vT), v(vT + 2)))
    A('v_lshl_add_u32 %s, %s, 7, %s' % (v(vT + 4), v(vT + 2), v(vT + 4)))
    A('s_lshl_b32 %s, %s, 13' % (s(sT0), s(sRg)))
    A('s_add_u32 %s, %s, %s' % (s(sT0), s(sT0), s(sT1)))
    A('v_add_u32 %s, %s, %s' % (v(vPr), s(sT0), v(vT + 4)))
    A('s_lshl_b32 %s, %s, 13' % (s(sT1), s(sCh)))
    A('s_add_u32 %s, %s, %d' % (s(sT1), s(sT1), VB))
    A('s_lshl_b32 %s, %s, 11' % (s(sT0), s(sJ)))
    A('s_add_u32 %s, %s, %s' % (s(sT0), s(sT0), s(sT1)))
    A('v_add_u32 %s, %s, %s' % (v(vVw), s(sT0), v(vL16)))
    A('s_mul_i32 %s, %s, %d' % (s(sT0), s(sRg), 4096 + 256))
    A('s_add_u32 %s, %s, %s' % (s(sT0), s(sT0), s(sT1)))
    A('v_add_u32 %s, %s, %s' % (v(vT + 2), s(sT0), v(vL16)))
    A('s_lshl_b32 %s, %s, 7' % (s(sT0), s(sRg)))
    A('s_add_u32 %s, %s, %d' % (s(sT0), s(sT0), TS))
    A('v_lshl_add_u32 %s, %s, 4, %s' % (v(vT + 3), v(vT), s(sT0)))
    A('v_cmp_gt_u32 vcc, 16, %s' % v(vT + 1))
    A('v_cndmask_b32 %s, %s, %s, vcc' % (v(vVr), v(vT + 3), v(vT + 2)))
    A('v_mov_b32 %s, 1024' % v(vT + 2))
    A('v_cndmask_b32 %s, 32, %s, vcc' % (v(vSt), v(vT + 2)))
    A('v_lshl_add_u32 %s, %s, 4, %s' % (v(vT + 2), v(vT), v(vT + 1)))
    A('s_lshl_b32 %s, %s, 9' % (s(sT0), s(sRb)))
    A('v_lshl_add_u32 %s, %s, 4, %s' % (v(vT + 2), v(vT + 2), s(sT0)))
    A('v_mov_b32 %s, 0x%x' % (v(vT + 4), OOB))
    A('v_cndmask_b32 %s, %s, %s, vcc' % (v(vPo), v(vT + 4), v(vT + 2)))
    A('s_lshl_b32 %s, %s, 5' % (s(sT0), s(sRb)))
    A('s_add_u32 %s, %s, 8192' % (s(sT0), s(sT0)))
    A('v_lshl_add_u32 %s, %s, 4, %s' % (v(vT + 2), v(vT), s(sT0)))
    A('v_cmp_eq_u32 vcc, 16, %s' % v(vT + 1))
    A('v_cndmask_b32 %s, %s, %s, vcc' % (v(vPo), v(vPo), v(vT + 2)))
    A('s_lshl_b32 %s, %s, 1' % (s(sT0), s(sG)))
    A('v_add_u32 %s, %s, %s' % (v(vT + 2), s(sT0), v(vLane)))
    A('v_mul_u32_u24 %s, 43, %s' % (v(vT + 3), v(vT + 2)))
    A('v_lshrrev_b32 %s, 7, %s' % (v(vT + 3), v(vT + 3)))
    A('v_mul_u32_u24 %s, %d, %s' % (v(vT + 3), 128 - 24, v(vT + 3)))
    A('v_lshl_add_u32 %s, %s, 3, %s' % (v(vT + 2), v(vT + 2), v(vT + 3)))
    A('v_cmp_gt_u32 vcc, 2, %s' % v(vLane))
    A('v_cndmask_b32 %s, %s, %s, vcc' % (v(vF2), v(vT + 4), v(vT + 2)))
    if OPT['warm'] == 1:
        A('v_lshrrev_b32 %s, 2, %s' % (v(vT + 2), v(vT + 1)))
        A('v_and_b32 %s, 3, %s' % (v(vT + 3), v(vLane)))
        A('v_lshlrev_b32 %s, 2, %s' % (v(vT + 3), v(vT + 3)))
        A('v_lshl_add_u32 %s, %s, 7, %s' % (v(vT + 2), v(vT + 2), v(vT + 3)))
        A('v_lshl_add_u32 %s, %s, 15, %s' % (v(vT + 2), v(vT), v(vT + 2)))
        A('s_lshr_b32 %s, s2, 3' % s(sT0))
        if OPT['wx']:
            A('s_andn2_b32 %s, %s, 8' % (s(sT0), s(sT0)))
        A('s_lshl_b32 %s, %s, 10' % (s(sT0), s(sT0)))
        if OPT['m2']:
            A('v_bfe_u32 %s, %s, 2, %d' % (v(vT + 2), v(vLane), 3 - OPT['m2']))
            A('v_lshl_add_u32 %s, %s, 7, %s' % (v(vT + 2), v(vT + 2), v(vT + 3)))
            A('v_lshrrev_b32 %s, %d, %s' % (v(vT + 3), 5 - OPT['m2'], v(vLane)))
            A('v_lshl_add_u32 %s, %s, 15, %s' % (v(vT + 2), v(vT + 3), v(vT + 2)))
            A('s_and_b32 %s, %s, %d' % (s(sT1), s(sCb), 2 + 2 * OPT['m2']))
            A('s_lshl_b32 %s, %s, 7' % (s(sT1), s(sT1)))
            A('s_add_u32 %s, %s, %s' % (s(sT0), s(sT0), s(sT1)))
        A('v_add_u32 %s, %s, %s' % (v(vWm), s(sT0), v(vT + 2)))
        A('s_lshl_b32 %s, %s, 18' % (s(sO[3]), s(sJ)))
        A('s_mul_i32 %s, %s, %d' % (s(sO[4]), s(sJ), 3 * 32768))
        A('s_lshl_b32 %s, %s, 17' % (s(sO[5]), s(sJ)))
    A('s_mul_i32 %s, %s, 768' % (s(sO[2]), s(sCh)))
    A('s_waitcnt lgkmcnt(0)')
    srd(A, SWS, 36, WS_SIZE)
    srd(A, SX, 16, 2048 * 1024)
    srd(A, SW2, 30, 1376 * 1024)
    srd(A, SWO, 22, 512 * 1024)
    if OPT['et']:
        A('s_lshl_b32 %s, s2, 2' % s(sT0))
        A('s_add_u32 %s, %s, %s' % (s(sT0), s(sT0), s(sJ)))
        A('s_mul_i32 %s, %s, %d' % (s(sT1), s(sT0), 11 * 128))
        A('s_lshl_b32 %s, %s, 9' % (s(sT0), s(sT0)))
        A('v_min_u32 %s, 10, %s' % (v(vT + 2), v(vLane)))
        A('v_lshlrev_b32 %s, 7, %s' % (v(vT + 2), v(vT + 2)))
        A('v_and_b32 %s, 0x180, %s' % (v(vT + 3), v(vT + 2)))
        A('buffer_load_dword %s, %s, %s, %s offen' % (v(vWm + 1), v(vT + 2), s(SW2, 4), s(sT1)))
        A('buffer_load_dword %s, %s, %s, %s offen' % (v(vWm + 1), v(vT + 3), s(SWO, 4), s(sT0)))
    stamp(A, 0)
    if OPT['prio']:
        A('s_setprio %d' % OPT['prio'])
    A('s_cmp_eq_u32 %s, 1' % s(sTyp))
    A.branch('s_cbranch_scc1 CX_START')

    def mfma(d, a_, b_, c):
        return 'v_mfma_f32_32x32x16_bf16 %s, %s, %s, %s' % (v(d, 16), v(a_, 4), v(b_, 4), v(d, 16) if c else '0')
    def frags(t):
        if t >= 32:
            return []
        st, k = divmod(t, 4)
        sl = st & 3
        tg = 'f%d' % t
        def wf(u):
            return [('ds_read_b64_tr_b16 %s, %s offset:%d' % (v(vWf + 8 * (t % 3) + 4 * u + 2 * hh, 2), v(vWa), 16384 * sl + 8192 * u + 2048 * k + 512 * hh), tg) for hh in range(2)]
        xf = [('ds_read_b128 %s, %s offset:%d' % (v(vX + 4 * t, 4), v(vXo + k), 16384 * sl), tg),
              ('ds_read_b128 %s, %s offset:%d' % (v(vXf + 4 * (t % 3), 4), v(vXt + k), 16384 * sl), tg)]
        return wf(0) + xf + wf(1)
    def softmax(D, P, M, rs=None, np_=0):
        L = []
        L.append('v_max3_f32 %s, %s, %s, %s' % (v(M), v(D), v(D + 1), v(D + 2)))
        L.append('v_max3_f32 %s, %s, %s, %s' % (v(M + 1), v(D + 3), v(D + 4), v(D + 5)))
        L.append('v_max3_f32 %s, %s, %s, %s' % (v(M + 2), v(D + 6), v(D + 7), v(D + 8)))
        L.append('v_max3_f32 %s, %s, %s, %s' % (v(M + 3), v(D + 9), v(D + 10), v(D + 11)))
        L.append('v_max3_f32 %s, %s, %s, %s' % (v(M), v(M), v(D + 12), v(D + 13)))
        L.append('v_max3_f32 %s, %s, %s, %s' % (v(M + 1), v(M + 1), v(D + 14), v(D + 15)))
        L.append('v_max3_f32 %s, %s, %s, %s' % (v(M), v(M), v(M + 1), v(M + 2)))
        L.append('v_max_f32 %s, %s, %s' % (v(M), v(M), v(M + 3)))
        L.append('v_mul_f32 %s, 0x%x, %s' % (v(M), LOG2E | 0x80000000, v(M)))
        for i in range(8):
            if np_ & 1:
                L += ['v_fma_f32 %s, %s, %s, %s' % (v(D + 2 * i + e), v(D + 2 * i + e), s(sL2), v(M)) for e in range(2)]
            else:
                L.append('v_pk_fma_f32 %s, %s, %s, %s op_sel_hi:[1,1,0]' % (v(D + 2 * i, 2), v(D + 2 * i, 2), s(sL2, 2), v(M, 2)))
        for i in range(16):
            L.append('v_exp_f32 %s, %s' % (v(D + i), v(D + i)))
        for d_, a_, b_ in ((M, D, D + 2), (M + 2, D + 4, D + 6), (M, M, D + 8), (M + 2, M + 2, D + 10), (M, M, D + 12), (M + 2, M + 2, D + 14), (M, M, M + 2)):
            if np_ & 2:
                L += ['v_add_f32 %s, %s, %s' % (v(d_ + e), v(a_ + e), v(b_ + e)) for e in range(2)]
            else:
                L.append('v_pk_add_f32 %s, %s, %s' % (v(d_, 2), v(a_, 2), v(b_, 2)))
        L.append('v_add_f32 %s, %s, %s' % (v(M), v(M), v(M + 1)))
        L.append('v_rcp_f32 %s, %s' % (v(M), v(M)))
        if rs is not None:
            L.append('v_mul_f32 %s, %s, %s' % (v(M), v(M), v(rs)))
        for i in range(8):
            if np_ & 4:
                L += ['v_mul_f32 %s, %s, %s' % (v(D + 2 * i + e), v(D + 2 * i + e), v(M)) for e in range(2)]
            else:
                L.append('v_pk_mul_f32 %s, %s, %s op_sel_hi:[1,0]' % (v(D + 2 * i, 2), v(D + 2 * i, 2), v(M, 2)))
        for i in range(8):
            L.append('v_cvt_pk_bf16_f32 %s, %s, %s' % (v(P + i), v(D + 2 * i), v(D + 2 * i + 1)))
        return L
    def pack(acc, P):
        for i in range(8):
            A('v_cvt_pk_bf16_f32 %s, %s, %s' % (v(P + i), v(acc + 2 * i), v(acc + 2 * i + 1)))
    def scale_pack(acc, P, rs):
        for i in range(8):
            A('v_pk_mul_f32 %s, %s, %s op_sel_hi:[1,0]' % (v(acc + 2 * i, 2), v(acc + 2 * i, 2), v(rs, 2)))
        pack(acc, P)
    def zipl(a_, b_):
        return [x for pr in zip(a_, b_) for x in pr]
    def mish(acc, r, E, V, so, tag, hook=(None, None), mv=None):
        mv = OPT['mv'] if mv is None else mv
        if hook[0] == 4: hook[1]()
        for i in range(8):
            if mv & 1:
                A('v_mul_f32 %s, %s, %s' % (v(acc + 2 * i), v(acc + 2 * i), v(vR[r])))
                A('v_mul_f32 %s, %s, %s' % (v(acc + 2 * i + 1), v(acc + 2 * i + 1), v(vR[r])))
            else:
                A('v_pk_mul_f32 %s, %s, %s op_sel_hi:[1,0]' % (v(acc + 2 * i, 2), v(acc + 2 * i, 2), v(vR[r], 2)))
        for i in range(16):
            A('v_exp_f32 %s, %s' % (v(E + i), v(acc + i)))
        for i in range(8):
            if mv & 2:
                A('v_fma_f32 %s, %s, 0.5, 1.0' % (v(V + 2 * i), v(E + 2 * i)))
                A('v_fma_f32 %s, %s, 0.5, 1.0' % (v(V + 2 * i + 1), v(E + 2 * i + 1)))
            else:
                A('v_pk_fma_f32 %s, %s, %s, %s op_sel:[0,0,1] op_sel_hi:[1,0,1]' % (v(V + 2 * i, 2), v(E + 2 * i, 2), s(sHO, 2), s(sHO, 2)))
        for i in range(8):
            if mv & 4:
                A('v_fma_f32 %s, %s, %s, 1.0' % (v(V + 2 * i), v(E + 2 * i), v(V + 2 * i)))
                A('v_fma_f32 %s, %s, %s, 1.0' % (v(V + 2 * i + 1), v(E + 2 * i + 1), v(V + 2 * i + 1)))
            else:
                A('v_pk_fma_f32 %s, %s, %s, %s op_sel:[0,0,1] op_sel_hi:[1,1,1]' % (v(V + 2 * i, 2), v(E + 2 * i, 2), v(V + 2 * i, 2), s(sHO, 2)))
        if hook[0] == 3: hook[1]()
        for i in range(16):
            A('v_rcp_f32 %s, %s' % (v(V + i), v(V + i)))
        if hook[0] == 2: hook[1]()
        for i in range(8):
            if mv & 8:
                A('v_fma_f32 %s, -%s, %s, %s' % (v(acc + 2 * i), v(acc + 2 * i), v(V + 2 * i), v(acc + 2 * i)))
                A('v_fma_f32 %s, -%s, %s, %s' % (v(acc + 2 * i + 1), v(acc + 2 * i + 1), v(V + 2 * i + 1), v(acc + 2 * i + 1)))
            else:
                A('v_pk_fma_f32 %s, %s, %s, %s neg_lo:[1,0,0] neg_hi:[1,0,0]' % (v(acc + 2 * i, 2), v(acc + 2 * i, 2), v(V + 2 * i, 2), v(acc + 2 * i, 2)))
        pack(acc, acc)
        A('buffer_store_dwordx4 %s, %s, %s, %s offen sc1' % (v(acc, 4), v(vL16), s(SWS, 4), s(so)), tag=tag)
        A('buffer_store_dwordx4 %s, %s, %s, %s offen offset:2048 sc1' % (v(acc + 4, 4), v(vL16), s(SWS, 4), s(so)), tag=tag)
        if hook[0] == 1: hook[1]()
    def flag(tag, so, off=0, vo=vFo):
        A.wait_vm(tag)
        A('buffer_store_dword %s, %s, %s, %s offen offset:%d sc1' % (v(vNon), v(vo), s(SWS, 4), s(so), off))
    def sign_flip(ph, n, t):
        A('v_bfe_u32 %s, %s, 2, 1' % (v(t), v(vLane)))
        A('v_mul_u32_u24 %s, 0x8000, %s' % (v(t), v(t)))
        A('v_lshl_or_b32 %s, %s, 16, %s' % (v(t), v(t), v(t)))
        A.wait_lg('ph')
        for i in range(n):
            A('v_xor_b32 %s, %s, %s' % (v(ph + i), v(t), v(ph + i)))

    def mish_fill(tiles, T):
        n = 16 * len(tiles)
        R = lambda i: tiles[i // 16][0] + i % 16
        E = lambda i: T + i % 3
        V = lambda i: T + 3 + i % 3
        mul = lambda i: 'v_mul_f32 %s, %s, %s' % (v(R(i)), v(R(i)), v(vR[tiles[i // 16][1]]))
        G = []; late = []
        for i in range(n + 2):
            a_ = [mul(0)] if i == 0 else []
            if i < n: a_.append('v_exp_f32 %s, %s' % (v(E(i)), v(R(i))))
            if 0 <= i - 1 < n: a_.append('v_fma_f32 %s, %s, %s, 1.0' % (v(V(i - 1)), v(E(i - 1)), v(V(i - 1))))
            if 0 <= i - 2 < n: a_.append('v_fma_f32 %s, -%s, %s, %s' % (v(R(i - 2)), v(R(i - 2)), v(V(i - 2)), v(R(i - 2))))
            b_ = []
            if 0 <= i - 1 < n: b_.append('v_rcp_f32 %s, %s' % (v(V(i - 1)), v(V(i - 1))))
            if i < n: b_.append('v_fma_f32 %s, %s, 0.5, 1.0' % (v(V(i)), v(E(i))))
            if i + 1 < n: b_.append(mul(i + 1))
            k = i - 2
            if k >= 0 and k & 1:
                acc, r, so, tag = tiles[k // 16]
                b_.append('v_cvt_pk_bf16_f32 %s, %s, %s' % (v(acc + (k % 16) // 2), v(R(k - 1)), v(R(k))))
                if k % 8 == 7:
                    st_ = ('buffer_store_dwordx4 %s, %s, %s, %s offen offset:%d sc1' % (v(acc + 4 * (k % 16 // 8), 4), v(vL16), s(SWS, 4), s(so), 2048 * (k % 16 // 8)), tag)
                    (b_ if OPT['sst'] else late).append(st_)
            G += [a_, b_]
        return G + [late]

    def pass_b(X, hooks, fill=(), split=False):
        vBa = 216
        vAp, vBp = (176, 184) if split else (0, 8)
        fill = list(fill)
        if OPT['prio']:
            A('s_setprio %d' % OPT['prio'])
        A('s_lshl_b32 %s, %s, 6' % (s(sT0), s(sCh)))
        A('v_xor_b32 %s, %s, %s' % (v(vBa), s(sT0), v(vWa)))
        A('v_add_u32 %s, %d, %s' % (v(vBa), L_E - L_W, v(vBa)))
        A('v_xor_b32 %s, 64, %s' % (v(vBa + 1), v(vBa)))
        A('v_mov_b32 %s, %d' % (v(vBa + 2), FL_P3))
        lds_wait(A, 'CP3%d' % X, v(vBa + 2), 4, 1, 220)
        stamp(A, 1, 8)
        win = [L_E, L_E]
        seq = [(uu, t) for uu in range(2) for t in range(32)] if split else [(uu, t) for t in range(32) for uu in range(2)]
        def fr(m):
            if m >= 64:
                return []
            uu, t = seq[m]
            st, k = divmod(t, 4)
            L = []
            w = P3B[st] & ~0xffff
            if w != win[uu]:
                L.append('v_add_u32 %s, %d, %s' % (v(vBa + uu), w - win[uu], v(vBa + uu)))
                win[uu] = w
            for hh in range(2):
                L.append(('ds_read_b64_tr_b16 %s, %s offset:%d' % (v(vWf + 4 * (m % 6) + 2 * hh, 2), v(vBa + uu), P3B[st] - w + 2048 * k + 512 * hh), 'g%d' % (m // 2)))
            return L
        for m in range(4):
            emit(A, fr(m))
        tb = [('ds_read_b32 %s, %s offset:%d' % (v(vAp + 4 * uu), v(vTa), 768 * uu + 512), 'tb') for uu in range(2)] + [('ds_read_b32 %s, %s' % (v(vBp), v(vTb)), 'tb')]
        zr = ['v_mov_b32 %s, 0' % v(vAp + i) for i in range(12) if i & 3]
        f0 = 34 if split else 0
        for m in range(64):
            uu, t = seq[m]
            nxt = fr(m + 4)
            z0 = 8 if split else 48
            if z0 <= m < z0 + 9:
                nxt.append(zr[m - z0])
            if m == (20 if split else 60):
                nxt += tb
            if m >= 61 and not X:
                nxt += [('ds_read_b64_tr_b16 %s, %s offset:%d' % (v(16 + 4 * h + 2 * hh, 2), v(vPa), 512 * h + 256 * hh), 'ph') for h in range(4) for hh in range(2)][3 * (m - 61):3 * (m - 60)]
            if m % 2 == 0:
                A.wait_lg('g%d' % (m // 2))
            A(mfma(ACC(0, uu), vWf + 4 * (m % 6), vX + 4 * t, t > 0))
            if split and m == 31:
                A(mfma(ACC(0, 0), vAp, vBp, True))
            if m in (15, 31, 63):
                stamp(A, {15: 2, 31: 6, 63: 7}[m], 8)
            emit(A, nxt)
            if m >= f0 and fill:
                emit(A, fill.pop(0))
            if m % 2 and m // 2 in hooks:
                hooks[m // 2]()
        A('s_lshl_b32 %s, %s, 2' % (s(sT0), s(sJ)))
        A('s_add_u32 %s, %s, %d' % (s(sT0), s(sT0), FL_PB))
        A('v_mov_b32 %s, %s' % (v(vBa), s(sT0)))
        A('v_mov_b32 %s, 2' % v(vBa + 1))
        A.wait_lg('tb')
        A('ds_write_b32 %s, %s' % (v(vBa), v(vBa + 1)))
        for uu in range(1 if split else 0, 2):
            A(mfma(ACC(0, uu), vAp + 4 * uu, vBp, True))
        for f in fill:
            emit(A, f)
        if OPT['prio']:
            A('s_setprio %d' % OPT['pr2'])
        stamp(A, 4)

    vAp, vBp, vPh = [208, 212], [224, 228], 192
    for X in (0, 1):
        A.vm = []; A.lg = []
        if X:
            A.label('CX_START')
        vOne = 8 if OPT['pt0'] < 0 else 124
        sPf = [SB, SB + 1, SB + 2, SB + 3]
        for i in range(4):
            A('v_mov_b32 %s, -1' % v(vOne + i))
        A('s_mul_i32 %s, %s, %d' % (s(sT1), s(sP2), NU * 4096))
        PF = []
        def pf(vo, so, off):
            PF.append(('buffer_store_dwordx4 %s, %s, %s, %s offen offset:%d sc1' % (v(vOne, 4), v(vo), s(SWS, 4), s(so), off), 'pf'))
        if X and OPT['kfp']:
            A('s_lshl_b32 %s, %s, 1' % (s(sT0), s(sG)))
            A('s_add_u32 %s, %s, %s' % (s(sT0), s(sT0), s(sCh)))
            A('s_lshl_b32 %s, %s, 1' % (s(sT0), s(sT0)))
            A('s_add_u32 %s, %s, %s' % (s(sT0), s(sT0), s(sRg)))
            A('s_mul_i32 %s, %s, %d' % (s(sT0), s(sT0), 2 * KVS))
            A('s_add_u32 %s, %s, 0x%x' % (s(sPf[0]), s(sT0), WS_KVP))
            A('s_add_u32 %s, %s, %d' % (s(sPf[1]), s(sPf[0]), KVS))
            pf(vPo, sPf[0], 0)
            pf(vPo, sPf[1], 0)
        if not X and OPT['h2p'] and not OPT['nv']:
            A('s_lshl_b32 %s, %s, 2' % (s(sT0), s(sG)))
            A('s_add_u32 %s, %s, %s' % (s(sT0), s(sT0), s(sCh)))
            A('s_add_u32 %s, %s, 2' % (s(sT0), s(sT0)))
            A('s_lshl_b32 %s, %s, 12' % (s(sT0), s(sT0)))
            A('s_add_u32 %s, %s, %s' % (s(sPf[0]), s(sT0), s(sT1)))
            for q in range(4):
                pf(vL16, sPf[0], 1024 * q)
        if OPT['hfp' if X else 'ofp'] and not OPT['nv']:
            A('s_lshl_b32 %s, %s, 3' % (s(sT0), s(sGq)))
            A('s_add_u32 %s, %s, %s' % (s(sT0), s(sT0), s(sCh)))
            A('s_add_u32 %s, %s, %d' % (s(sT0), s(sT0), 4 * (32 if X else 44)))
            A('s_lshl_b32 %s, %s, 10' % (s(sT0), s(sT0)))
            A('s_add_u32 %s, %s, %s' % (s(sPf[2]), s(sT0), s(sT1)))
            if X:
                A('s_cmp_ge_u32 %s, 6' % s(sG))
                A('s_cselect_b32 %s, 0x%x, %s' % (s(sPf[2]), OOB, s(sPf[2])))
            A('s_add_u32 %s, %s, 4096' % (s(sPf[3]), s(sPf[2])))
            for q in range(4):
                pf(vL16, sPf[2 + (q >> 1)], 2048 * (q & 1))
        if OPT['pt0'] < 0:
            emit(A, PF)
            PF = []
        A('s_barrier')
        stamp(A, 1)
        emit(A, frags(0))
        emit(A, frags(1))
        for t in range(32):
            st, k = divmod(t, 4)
            nxt = frags(t + 2)
            if t == 30:
                A('v_add_u32 %s, %s, %s' % (v(vAp[0]), s(sO[2]), v(vTa)))
                A('v_xor_b32 %s, 256, %s' % (v(vBp[1]), v(vTb)))
                A('v_xor_b32 %s, 128, %s' % (v(vR[1]), v(vTr)))
                A('v_mov_b32 %s, %d' % (v(vNon), TN))
                nxt = [('ds_read_b32 %s, %s offset:256' % (v(vAp[1]), v(vAp[0])), 'tb'),
                       ('ds_read_b32 %s, %s' % (v(vAp[0]), v(vAp[0])), 'tb'),
                       ('ds_read_b32 %s, %s' % (v(vBp[0]), v(vTb)), 'tb'),
                       ('ds_read_b32 %s, %s' % (v(vBp[1]), v(vBp[1])), 'tb'),
                       ('ds_read_b32 %s, %s' % (v(vR[0]), v(vTr)), 'tb'),
                       ('ds_read_b32 %s, %s' % (v(vR[1]), v(vR[1])), 'tb'),
                       ('ds_read_b32 %s, %s' % (v(vNon), v(vNon)), 'tb')]
            if t == 31:
                nxt = ['v_mov_b32 %s, 0' % v(b + i) for b in vAp + vBp for i in range(1, 4)]
                if X:
                    nxt = [('ds_read_b64_tr_b16 %s, %s offset:%d' % (v(vPh + 4 * h + 2 * hh, 2), v(vPa), 512 * h + 256 * hh), 'ph') for h in range(2) for hh in range(2)] + nxt
            A.wait_lg('f%d' % t)
            per = (len(nxt) + 2) // 3
            n = 0
            for u in range(2):
                for r in range(2):
                    w_, x_ = vWf + 8 * (t % 3) + 4 * u, (vX + 4 * t if r == 0 else vXf + 4 * (t % 3))
                    if X and u == 1:
                        w_, x_ = x_, w_
                    A(mfma(ACC(u, r), w_, x_, t > 0))
                    if k == 2 and n == 0:
                        A.wait_lg(None)
                        if st in (4, 5, 6, 7):
                            stamp(A, {4: 1, 5: 2, 6: 8, 7: 4}[st], 3)
                        A('s_barrier')
                        if st == 3:
                            stamp(A, 2)
                    WL = [(3, 0, SW2), (3, 4, SW2), (3, 2, SW2), (3, 6, SW2), (4, 34, SW2), (4, 32, SW2), (5, 0, SWO), (5, 2, SWO)]
                    if OPT['m2']:
                        WL = [(3, 0, SW2), (3, 4, SW2), (5, 0, SWO), (4, 32, SW2)]
                    if OPT['m2'] == 2:
                        WL = [(3, 0, SW2), (5, 0, SWO), (4, 32, SW2)]
                    if OPT['wx'] == 1:
                        WL = [(b_, c_ + e_, r_) for b_, c_, r_ in WL for e_ in (0, 0.25)] if X else []
                    if OPT['wx'] == 2:
                        WL = [(b_, c_ + e_, r_) for b_, c_, r_ in (WL[:3] if X else WL[3:]) for e_ in (0, 0.25)]
                    wq = 4 * (t - OPT['wt0']) + n - 3
                    wk = []
                    if OPT['warm'] == 1 and wq >= 0:
                        wk = WL if (OPT['wd'] == 0 and wq == 0) else [WL[wq // OPT['wd']]] if (OPT['wd'] and wq % OPT['wd'] == 0 and wq // OPT['wd'] < len(WL)) else []
                    for base, c_, sr in wk:
                        A('s_add_u32 %s, %s, %d' % (s(sT0), s(sO[base]), int(c_ * 32768)))
                        A('buffer_load_dword %s, %s, %s, %s offen' % (v(vWm + 1), v(vWm), s(sr, 4), s(sT0)), tag='wm')
                    pq = 4 * (t - OPT['pt0']) + n - 1
                    if PF and t < 29 and pq >= 0 and pq % OPT['pd'] == 0:
                        emit(A, [PF.pop(0)])
                    emit(A, nxt[per * n:per * n + per])
                    n += 1
        assert not PF
        stamp(A, 3)
        if OPT['prio']:
            A('s_setprio %d' % OPT['pex' if X else 'pey'])
        A.wait_lg('tb')
        for u in range(2):
            for r in range(2):
                p_, q_ = vAp[u], vBp[r]
                if X and u == 1:
                    p_, q_ = q_, p_
                A(mfma(ACC(u, r), p_, q_, True))
        if not X:
            A('v_mov_b32 %s, %s' % (v(vR0), v(vR[0])))
            for r in range(2):
                A('v_mul_f32 %s, 0x%x, %s' % (v(vR[r]), LOG2E, v(vR[r])))
        A('v_readfirstlane_b32 %s, %s' % (s(sNonce), v(vNon)))
        sOut, sFl = sO[4], sO[5]
        A('s_lshl_b32 %s, %s, 10' % (s(sFl), s(sP2)))
        A('s_add_u32 %s, %s, 0x%x' % (s(sFl), s(sFl), WS_F))
        A('s_mul_i32 %s, %s, %d' % (s(sOut), s(sP2), NU * 4096))
        A('s_lshl_b32 %s, %s, 10' % (s(sT0), s(sCh)))
        A('s_add_u32 %s, %s, %s' % (s(sOut), s(sOut), s(sT0)))
        if not X:
            A('s_lshl_b32 %s, %s, 2' % (s(sT0), s(sG)))
            A('s_add_u32 %s, %s, %s' % (s(sT0), s(sT0), s(sCh)))
            A('s_lshl_b32 %s, %s, 12' % (s(sT0), s(sT0)))
            A('s_add_u32 %s, %s, %s' % (s(sO[0]), s(sOut), s(sT0)))
            A('s_xor_b32 %s, %s, 1024' % (s(sO[1]), s(sO[0])))
            A('s_add_u32 %s, %s, 8192' % (s(SB), s(sO[0])))
            A('s_add_u32 %s, %s, 8192' % (s(SB + 1), s(sO[1])))
            sF2 = sT3
            A('s_lshr_b32 %s, %s, 1' % (s(sT0), s(sG)))
            A('s_lshl_b32 %s, %s, 5' % (s(sT0), s(sT0)))
            A('s_and_b32 %s, %s, 1' % (s(sT1), s(sG)))
            A('s_lshl_b32 %s, %s, 1' % (s(sT1), s(sT1)))
            A('s_add_u32 %s, %s, %s' % (s(sT0), s(sT0), s(sT1)))
            A('s_add_u32 %s, %s, %s' % (s(sT0), s(sT0), s(sCh)))
            A('s_lshl_b32 %s, %s, 2' % (s(sT0), s(sT0)))
            A('s_add_u32 %s, %s, %s' % (s(sF2), s(sFl), s(sT0)))
            A('s_lshr_b32 %s, %s, 2' % (s(sT0), s(sGq)))
            A('s_lshl_b32 %s, %s, 1' % (s(sT0), s(sT0)))
            A('s_add_u32 %s, %s, %s' % (s(sT0), s(sT0), s(sCh)))
            A('s_lshl_b32 %s, %s, 5' % (s(sT0), s(sT0)))
            A('s_and_b32 %s, %s, 3' % (s(sT1), s(sGq)))
            A('s_add_u32 %s, %s, %s' % (s(sT0), s(sT0), s(sT1)))
            A('s_lshl_b32 %s, %s, 2' % (s(sT0), s(sT0)))
            A('s_add_u32 %s, %s, %s' % (s(sFl), s(sFl), s(sT0)))
            A('s_lshl_b32 %s, %s, 13' % (s(sT0), s(sGq)))
            A('s_add_u32 %s, %s, %s' % (s(sOut), s(sOut), s(sT0)))
            A('s_add_u32 %s, %s, %d' % (s(sOut), s(sOut), 44 * 4096))
            E, V = 192, 208
            mish(ACC(0, 0), 0, E, V, sO[0], 'h1')
            mish(ACC(0, 1), 1, E, V, sO[1], 'h1')
            H2 = OPT['h2']
            stamp(A, 8)
            pass_b(0, {OPT['f2']: lambda: flag('h1', sF2)},
                   mish_fill([(ACC(1, r), r, SB + r, 'h2') for r in range(2)], 224) if H2 == 4 else ())
            ph, D, P, M = 16, [32, 48, 64, 80], [96, 104, 112, 120], [12, 224]
            sign_flip(ph, 16, M[0])
            for uu in range(2):
                scale_pack(ACC(0, uu), ACC(0, uu), vR0)
                for h in range(2):
                    A(mfma(D[2 * uu + h], ph + 8 * uu + 4 * h, ACC(0, uu) + 4 * h, False))
            vKa, KF = 228, 128
            A('v_and_b32 %s, 31, %s' % (v(vKa), v(vLane)))
            A('v_min_u32 %s, 16, %s' % (v(vKa), v(vKa)))
            A('v_lshrrev_b32 %s, 5, %s' % (v(vKa + 1), v(vLane)))
            A('v_mul_u32_u24 %s, 17, %s' % (v(vKa + 1), v(vKa + 1)))
            A('v_add_lshl_u32 %s, %s, %s, 4' % (v(vKa), v(vKa), v(vKa + 1)))
            A('v_add_u32 %s, %d, %s' % (v(vKa), KVL, v(vKa)))
            A('v_mov_b32 %s, %d' % (v(vKa + 1), FL_KV))
            A('s_lshl_b32 %s, %s, 2' % (s(sT0), s(sJ)))
            A('v_add_u32 %s, %s, %s' % (v(vKa + 2), s(sT0), v(vKa + 1)))
            A('s_add_u32 %s, %s, 4096' % (s(sO[0]), s(sOut)))
            stamp(A, 3, 2)
            stamp(A, 1, 9)
            emit(A, zipl(softmax(D[0], P[0], M[0], None, OPT['ysm']), softmax(D[1], P[1], M[1], None, OPT['ysm'])))
            stamp(A, 2, 9)
            if H2 == 4 and OPT['h2w'] == 1:
                flag('h2', sF2, 16)
            stamp(A, 3, 9)
            emit(A, zipl(softmax(D[2], P[2], M[0], None, OPT['ysm']), softmax(D[3], P[3], M[1], None, OPT['ysm'])))
            stamp(A, 8, 9)
            if H2 == 4 and OPT['h2w'] == 2:
                flag('h2', sF2, 16)
            stamp(A, 1, 2)
            h2f = lambda: flag('pf', sF2, 16)
            def h2m(r):
                mish(ACC(1, r), r, E, V, SB + r, 'h2', (OPT['h2p'] - 4 * (1 - r), h2f))
            if H2 in (1, 3):
                h2m(0)
            if H2 == 1:
                h2m(1)
            def ofl(k):
                if OPT['ofp'] == k:
                    flag('pf', sFl, 512)
                if H2 == 1 and not OPT['h2p'] and OPT['h2q'] == k:
                    flag('h2', sF2, 16)
            ofl(4)
            rd = ['ds_read_b128 %s, %s offset:%d' % (v(KF + 8 * n + 4 * c, 4), v(vKa), KVH * n + 544 * c) for n in range(4) for c in range(2)]
            if OPT['pk'] != OPT['pr2']:
                A('s_setprio %d' % OPT['pk'])
            lds_wait(A, 'CKV', v(vKa + 1), 4, 1, 220, rd)
            if OPT['pk'] != OPT['po']:
                A('s_setprio %d' % OPT['po'])
            stamp(A, 2, 2)
            stamp(A, 5, 9)
            def omf(n):
                for c in range(2):
                    A(mfma(D[n], KF + 8 * n + 4 * c, P[n] + 4 * c, c > 0))
            def ofin(n):
                d = D[n]
                A('v_add_f32 %s, 0x358637bd, %s' % (v(d + 8), v(d + 8)))
                A('v_rcp_f32 %s, %s' % (v(d + 8), v(d + 8)))
                for i in range(8):
                    A('v_mul_f32 %s, %s, %s' % (v(d + i), v(d + i), v(d + 8)))
                for i in range(4):
                    A('v_cvt_pk_bf16_f32 %s, %s, %s' % (v(d + i), v(d + 2 * i), v(d + 2 * i + 1)))
                A('buffer_store_dwordx4 %s, %s, %s, %s offen offset:%d sc1' % (v(d, 4), v(vL16), s(SWS, 4), s(sO[0] if n >> 1 else sOut), 2048 * (n & 1)), tag='o')
            omf(0); omf(1); ofl(2); ofin(0); stamp(A, 6, 9); omf(2); ofin(1); ofl(3); omf(3); ofin(2); ofin(3); ofl(1)
            if OPT['bq'] >= 2:
                A('v_subrev_u32 %s, %d, %s' % (v(vKa + 2), FL_KV - FL_EX, v(vKa + 2)))
                A('ds_write_b32 %s, %s' % (v(vKa + 2), v(vKa + 2)))
            stamp(A, 4, 2)
            stamp(A, 7, 9)
            if H2 == 2:
                h2m(0)
            if H2 == 3:
                h2m(1)
            if not OPT['ofp']:
                flag('o', sFl, 512)
            if H2 == 2:
                h2m(1)
            if H2 in (2, 3) and not OPT['h2p']:
                flag('h2', sF2, 16)
            A.branch('s_branch C_P2')
        else:
            D, M, vBd, KV = [200, 144, 176, 160], [224, 228], 216, 200
            vEf = 248
            sKp, sKf = sO[0], sO[1]
            for q in range(8):
                if q == 0:
                    A('v_lshlrev_b32 %s, 2, %s' % (v(vBd + 4), v(vSt)))
                elif q == 4:
                    A('v_xor_b32 %s, %s, %s' % (v(vBd + 4), v(vBd + 4), v(vVr)))
                else:
                    A('v_add_u32 %s, %s, %s' % (v(vBd + q), v(vVr if q == 1 else vBd + q - 1), v(vSt)))
            stamp(A, 1, 5)
            sign_flip(vPh, 8, 253)
            stamp(A, 2, 5)
            scale_pack(ACC(0, 0), 128, vR[0])
            A(mfma(D[0], vPh, 128, False))
            scale_pack(ACC(0, 1), 136, vR[1])
            A(mfma(D[1], vPh + 4, 132, False))
            stamp(A, 8, 5)
            for r in range(2):
                pack(ACC(1, r), 160 + 8 * r)
                if r == 0:
                    A('ds_write_b128 %s, %s' % (v(vVw), v(160, 4)))
            A('v_xor_b32 %s, 2048, %s' % (v(253), v(vVw)))
            A(mfma(D[2], vPh, 136, False))
            stamp(A, 4, 5)
            A('s_lshl_b32 %s, %s, 3' % (s(sT0), s(sJ)))
            A('s_add_u32 %s, %s, %d' % (s(sT0), s(sT0), FL_EX))
            A('v_mov_b32 %s, %s' % (v(vEf), s(sT0)))
            A('s_lshl_b32 %s, %s, 1' % (s(sT0), s(sG)))
            A('s_add_u32 %s, %s, %s' % (s(sT0), s(sT0), s(sCh)))
            A('s_lshl_b32 %s, %s, 1' % (s(sT0), s(sT0)))
            A('s_add_u32 %s, %s, %s' % (s(sT0), s(sT0), s(sRg)))
            A('s_mul_i32 %s, %s, %d' % (s(sKp), s(sT0), 2 * KVS))
            A('s_add_u32 %s, %s, 0x%x' % (s(sKp), s(sKp), WS_KVP))
            A('s_add_u32 %s, %s, %d' % (s(sO[2]), s(sKp), KVS))
            A('s_lshl_b32 %s, %s, 5' % (s(sKf), s(sT0)))
            A('s_add_u32 %s, %s, %s' % (s(sKf), s(sKf), s(sRb)))
            A('s_lshl_b32 %s, %s, 2' % (s(sKf), s(sKf)))
            A('s_add_u32 %s, %s, 0x%x' % (s(sKf), s(sKf), WS_KF))
            if OPT['kfp'] == 5:
                flag('pf', sKf)
            stamp(A, 1, 1)
            stamp(A, 1, 4)
            stamp(A, 5, 5)
            def spread(base, ins, first, step):
                L = list(base)
                for n_, it in reversed(list(enumerate(ins))):
                    L[first + step * n_:first + step * n_] = it
                return L
            def pwr(r, h, e):
                x_ = 4096 * r + 64 * h + 16 * e
                tmp = 128 + 2 * h + e
                return (['v_xor_b32 %s, %d, %s' % (v(tmp), x_, v(vPw))] if x_ else []) + ['ds_write_b128 %s, %s' % (v(tmp if x_ else vPw), v(D[2 * r + h] + 4 * e, 4))]
            sm = [softmax(D[n], D[n], M[n & 1], vR[n >> 1]) for n in range(4)]
            vw = [['ds_write_b128 %s, %s offset:%d' % (v(253 if n >> 1 else vVw), v(160 + 4 * n, 4), 1024 * (n & 1))] for n in range(1, 4)]
            emit(A, spread(zipl(sm[0], sm[1]), vw + [[mfma(D[3], vPh + 4, 140, False)]], 2, 20))
            stamp(A, 2, 4)
            emit(A, spread(zipl(sm[2][:-16], sm[3][:-16]), [pwr(0, h, e) for e in range(2) for h in range(2)], 0, 18))
            stamp(A, 4, 4)
            def kfl(k):
                if OPT['kfp'] == k:
                    flag('pf', sKf)
            kfl(4)
            for n in (2, 3):
                emit(A, sm[n][-16:-12] + sm[n][-8:-4] + pwr(1, n & 1, 0) + sm[n][-12:-8] + sm[n][-4:] + pwr(1, n & 1, 1))
            stamp(A, 5, 4)
            A('ds_write_b32 %s, %s' % (v(vEf), v(vEf)))
            kfl(3)
            stamp(A, 2, 1)
            def kvf(q):
                L = [('ds_read_b64_tr_b16 %s, %s offset:%d' % (v(128 + 4 * q + 2 * hh, 2), v(vPr), 2048 * (q & 3) + 1024 * hh), 'q%d' % q) for hh in range(2)]
                return L + [('ds_read_b128 %s, %s' % (v(160 + 4 * q, 4), v(vBd + q if q else vVr)), 'q%d' % q)]
            for q in range(4):
                emit(A, kvf(q))
            A('v_xor_b32 %s, %d, %s' % (v(vEf), FL_EX ^ (FL_EX + 16), v(vEf)))
            A('v_xor_b32 %s, 8192, %s' % (v(vPr), v(vPr)))
            lds_wait(A, 'CEX', v(vEf), 1, 1, M[0])
            stamp(A, 6, 4)
            kfl(2)
            for q in range(8):
                A.wait_lg('q%d' % q)
                A(mfma(KV, 128 + 4 * q, 160 + 4 * q, q > 0))
                if q < 4:
                    emit(A, kvf(q + 4))
            A('s_lshl_b32 %s, %s, 13' % (s(sT0), s(sG)))
            A('s_add_u32 %s, %s, %s' % (s(sOut), s(sOut), s(sT0)))
            A('s_add_u32 %s, %s, %d' % (s(sOut), s(sOut), 32 * 4096))
            A('s_add_u32 %s, %s, 4096' % (s(sO[3]), s(sOut)))
            A('s_lshl_b32 %s, %s, 2' % (s(sT0), s(sCh)))
            A('s_add_u32 %s, %s, %s' % (s(sFl), s(sFl), s(sT0)))
            A('s_lshl_b32 %s, %s, 2' % (s(sT0), s(sJ)))
            A('s_add_u32 %s, %s, %d' % (s(sT0), s(sT0), FL_KV))
            A('v_mov_b32 %s, %s' % (v(vEf), s(sT0)))
            if OPT['fke']:
                A('ds_write_b32 %s, %s' % (v(vEf), v(vEf)))
            A('v_mul_f32 %s, 0x%x, %s' % (v(vR[0]), LOG2E, v(vR[0])))
            for c in range(2):
                for i in range(4):
                    A('v_cvt_pk_bf16_f32 %s, %s, %s' % (v(160 + 4 * c + i), v(KV + 8 * c + 2 * i), v(KV + 8 * c + 2 * i + 1)))
                A('buffer_store_dwordx4 %s, %s, %s, %s offen sc1' % (v(160 + 4 * c, 4), v(vPo), s(SWS, 4), s(sO[2] if c else sKp)), tag='kp')
            kfl(1)
            stamp(A, 8)
            stamp(A, 7, 4)
            def kflag():
                if not OPT['kfp']:
                    flag('kp', sKf)
                if not OPT['fke']:
                    A('ds_write_b32 %s, %s' % (v(vEf), v(vEf)))
            A('s_cmp_ge_u32 %s, 6' % s(sG))
            A.branch('s_cbranch_scc1 CX_NOH')
            vm1 = list(A.vm)
            hf = lambda: flag('pf', sFl, 32, vF2)
            if OPT['xsp']:
                pass_b(1, {OPT['f3']: kflag}, mish_fill([(ACC(0, 0), 0, sOut, 'h')], 224), True)
            else:
                pass_b(1, {OPT['f3']: kflag})
                mish(ACC(0, 0), 0, 16, 32, sOut, 'h', (OPT['hfp'] - 4, hf))
            mish(ACC(0, 1), 0, 16, 32, sO[3], 'h', (OPT['hfp'], hf), OPT['xmv'])
            stamp(A, 1, 2)
            if not OPT['hfp']:
                flag('h', sFl, 32, vF2)
            A.branch('s_branch C_P2')
            A.label('CX_NOH')
            A.vm = vm1
            kflag()
            A('s_lshl_b32 %s, %s, 2' % (s(sT0), s(sJ)))
            A('s_add_u32 %s, %s, %d' % (s(sT0), s(sT0), FL_PB))
            A('v_mov_b32 %s, %s' % (v(M[0]), s(sT0)))
            A('v_mov_b32 %s, 2' % v(M[0] + 1))
            A('ds_write_b32 %s, %s' % (v(M[0]), v(M[0] + 1)))
    A.label('C_P2')
    A.vm = []; A.lg = []
    if OPT['pr2'] or OPT['po'] or OPT['pr3'] or OPT['pex']:
        A('s_setprio %d' % OPT['pr3'])
    stamp(A, 5)
    vAcc, vO, vW = 0, 32, 96
    vA0, vFl, vFv, vT = 232, 236, 237, 248
    sFl, sAct = sO[0], sO[1]
    A('v_lshlrev_b32 %s, 2, %s' % (v(vFl), v(vLane)))
    A('v_and_b32 %s, 0x7c, %s' % (v(vFl), v(vFl)))
    A('s_lshl_b32 %s, %s, 3' % (s(sFl), s(sRb2)))
    A('s_add_u32 %s, %s, %s' % (s(sFl), s(sFl), s(sWave)))
    A('s_lshl_b32 %s, %s, 7' % (s(sFl), s(sFl)))
    A('s_add_u32 %s, %s, 0x%x' % (s(sFl), s(sFl), WS_F))
    xres(A, 240, 244)
    qload = 'buffer_load_dword %s, %s, %s, %s offen sc1' % (v(vFv), v(vFl), s(SWS, 4), s(sFl))
    A(qload, tag='fl')
    A('s_mul_i32 %s, %s, %d' % (s(sAct), s(sRb2), NU * 4096))
    A('s_lshl_b32 %s, %s, 5' % (s(sT0), s(sRg)))
    A('s_add_u32 %s, %s, %s' % (s(sT0), s(sT0), s(sCh)))
    A('s_lshl_b32 %s, %s, 10' % (s(sT0), s(sT0)))
    A('s_add_u32 %s, %s, %s' % (s(sAct), s(sAct), s(sT0)))
    A('s_add_u32 %s, %s, %d' % (s(sAct), s(sAct), 44 * 4096))
    tr_addr(A, vA0, vT, 4, None)
    A('s_lshl_b32 %s, %s, 13' % (s(sT2), s(sRg)))
    A('s_add_u32 %s, %s, 32768' % (s(sT2), s(sT2)))
    A('v_add_u32 %s, %s, %s' % (v(vA0), s(sT2), v(vA0)))
    A('v_xor_b32 %s, 64, %s' % (v(vA0 + 1), v(vA0)))
    A('v_add_u32 %s, %d, %s' % (v(vA0 + 2), L_W, v(vA0)))
    A('v_add_u32 %s, %d, %s' % (v(vA0 + 3), L_W, v(vA0 + 1)))
    A('s_lshl_b32 %s, %s, 12' % (s(sT2), s(sJ)))
    A('s_add_u32 %s, %s, 32768' % (s(sT2), s(sT2)))
    wr = reduce_write(A, vAcc, 224, sT2, 1)
    A('v_mov_b32 %s, %d' % (v(238), FL_P3))
    A('s_lshl_b32 %s, %s, 2' % (s(sT2), s(sJ)))
    A('s_add_u32 %s, %s, %d' % (s(sT2), s(sT2), FL_WR))
    A('v_mov_b32 %s, %s' % (v(239), s(sT2)))
    lds_wait(A, 'CWO', v(238), 4, 3, vT)
    for u in range(8):
        a_, p = u >> 2, u & 3
        for c in range(2):
            for nt in range(2):
                for hh in range(2):
                    A('ds_read_b64_tr_b16 %s, %s offset:%d' % (v(vW + 16 * u + 8 * c + 4 * nt + 2 * hh, 2), v(vA0 + 2 * (p >> 1) + nt), 16384 * (p & 1) + 4096 * a_ + 2048 * c + 1024 * hh))
    A('ds_write_b32 %s, %s' % (v(239), v(239)))
    A('v_xor_b32 %s, 4, %s' % (v(238), v(239)))
    if OPT['pp']:
        A(qload.replace(v(vFv) + ',', v(vT + 4) + ',', 1), tag='fb')
        A('s_mov_b32 %s, 0' % s(sT0))
        A.label('CQ_P')
        for r in (vFv, vT + 4):
            A('s_waitcnt vmcnt(1)')
            A('v_cmp_ne_u32 vcc, %s, %s' % (s(sNonce), v(r)))
            A('s_and_b32 vcc_lo, vcc_lo, 0xf')
            A.branch('s_cbranch_scc0 CQ_G')
            if OPT['pp'] > 1:
                A('s_sleep %d' % (OPT['pp'] - 1))
            with Keep(A):
                A(qload.replace(v(vFv) + ',', v(r) + ',', 1))
        A('s_add_u32 %s, %s, 1' % (s(sT0), s(sT0)))
        A('s_cmp_gt_u32 %s, 0x%x' % (s(sT0), BOUND))
        A.branch('s_cbranch_scc0 CQ_P')
        A.label('CQ_G')
    else:
        A.wait_vm('fl')
        poll(A, 'CQ', qload, vFv, '0xf')
    if OPT['pr4'] != OPT['pr3']:
        A('s_setprio %d' % OPT['pr4'])
    stamp(A, 6)
    def oload(n):
        if n < 16:
            if n and n % 2 == 0:
                A('s_add_u32 %s, %s, 4096' % (s(sAct), s(sAct)))
            A('buffer_load_dwordx4 %s, %s, %s, %s offen offset:%d sc1' % (v(vO + 4 * n, 4), v(vL16), s(SWS, 4), s(sAct), 2048 * (n & 1)), tag='o%d' % n)
    for n in range(OPT['oi']):
        oload(n)
    stamp(A, 1, 7)
    lds_wait(A, 'CWR', v(238), 1, 1, vT)
    for u in range(8):
        for c in range(2):
            A.wait_vm('o%d' % (2 * u + c))
            if 2 * u + c in (0, 7, 15):
                stamp(A, {0: 2, 7: 3, 15: 8}[2 * u + c], 7)
            for nt in range(2):
                A(mfma(vAcc + 16 * nt, vW + 16 * u + 8 * c + 4 * nt, vO + 8 * u + 4 * c, u or c))
            oload(2 * u + c + OPT['oi'])
    emit(A, wr)
    if OPT['pr4']:
        A('s_setprio 0')
    stamp(A, 4, 7)

def gen_final(A):
    A.label('F_START')
    vOo, vX, t = 240, 244, 72
    srd(A, SO, 32, 2048 * 1024)
    if OPT['lnf']:
        A('s_mov_b32 %s, 0x%x' % (s(sO[0]), LN2))
        A('s_mov_b32 %s, 0x%x' % (s(sO[1]), LN2))
    A('s_and_b32 %s, %s, 3' % (s(sT0), s(sWave)))
    A('s_lshl_b32 %s, %s, 10' % (s(sT0), s(sT0)))
    A('s_lshr_b32 %s, %s, 2' % (s(sT1), s(sWave)))
    A('s_lshl_b32 %s, %s, 14' % (s(sT1), s(sT1)))
    A('s_add_u32 %s, %s, %s' % (s(sT0), s(sT0), s(sT1)))
    A('v_lshrrev_b32 %s, 3, %s' % (v(t), v(vLane)))
    A('v_bfe_u32 %s, %s, 2, 1' % (v(t + 1), v(vLane)))
    A('v_and_b32 %s, 3, %s' % (v(t + 2), v(vLane)))
    A('v_lshlrev_b32 %s, 1, %s' % (v(t + 2), v(t + 2)))
    A('v_xor_b32 %s, %s, %s' % (v(t + 2), v(t + 2), v(t)))
    A('v_xor_b32 %s, %s, %s' % (v(t + 2), v(t + 2), v(t + 1)))
    A('v_lshlrev_b32 %s, 4, %s' % (v(t + 2), v(t + 2)))
    A('v_lshl_add_u32 %s, %s, 7, %s' % (v(t + 2), v(t), v(t + 2)))
    A('v_add_u32 %s, %s, %s' % (v(t + 2), s(sT0), v(t + 2)))
    A('v_lshl_add_u32 %s, %s, 16, %s' % (v(t + 3), v(t + 1), v(t + 2)))
    A('v_xor_b32 %s, 16, %s' % (v(t + 4), v(t + 3)))
    A('s_mul_i32 %s, %s, 3' % (s(sT1), s(sT1)))
    A('s_lshr_b32 %s, %s, 2' % (s(sT1), s(sT1)))
    for hh in range(2):
        A('v_subrev_u32 %s, %s, %s' % (v(t + 5 + hh), s(sT1), v(t + 3 + hh)))
    A('s_waitcnt vmcnt(0)')
    X = 80
    for i in range(4):
        A('v_lshlrev_b32 %s, 16, %s' % (v(X + 2 * i), v(vX + i)))
        A('v_and_b32 %s, 0xffff0000, %s' % (v(X + 2 * i + 1), v(vX + i)))
    A('s_waitcnt lgkmcnt(0)')
    A.lg = []
    A('s_barrier')
    stamp(A, 7)
    R = 96
    for p in range(6):
        for hh in range(2):
            A('ds_read_b128 %s, %s offset:%d' % (v(R + 8 * p + 4 * hh, 4), v(t + 3 + hh + (2 if p >= 4 else 0)), 4096 * p if p < 4 else 32768 + 8192 * (p - 4)), tag='r%d' % (p >> 1))
    for g in range(3):
        A.wait_lg('r%d' % g)
        r = R + 16 * g
        for i in range(4):
            A('v_pk_add_f32 %s, %s, %s' % (v(r + 2 * i, 2), v(r + 2 * i, 2), v(r + 8 + 2 * i, 2)))
        for i in range(4):
            if OPT['lnf'] and g < 2:
                A('v_pk_fma_f32 %s, %s, %s, %s' % (v(X + 2 * i, 2), v(r + 2 * i, 2), s(sO[0], 2), v(X + 2 * i, 2)))
            else:
                A('v_pk_add_f32 %s, %s, %s' % (v(X + 2 * i, 2), v(X + 2 * i, 2), v(r + 2 * i, 2)))
    for i in range(4):
        A('v_cvt_pk_bf16_f32 %s, %s, %s' % (v(X + i), v(X + 2 * i), v(X + 2 * i + 1)))
    A('buffer_store_dwordx4 %s, %s, %s, %s offen%s' % (v(X, 4), v(vOo), s(SO, 4), s(6), {0: '', 1: ' sc1', 2: ' nt', 3: ' sc0 sc1'}[OPT['ost']]))
    if OPT['stamps']:
        A('s_waitcnt vmcnt(0)')
        A('%s s[14:15]' % ('s_memtime' if OPT['clk'] else 's_memrealtime'))
        A('s_waitcnt lgkmcnt(0)')
        A('s_lshl_b32 %s, s2, 3' % s(sT2))
        A('s_add_u32 %s, %s, %s' % (s(sT2), s(sT2), s(sWave)))
        A('s_lshl_b32 %s, %s, 6' % (s(sT2), s(sT2)))
        A('s_add_u32 %s, %s, 0x%x' % (s(sT2), s(sT2), WS_STAMP))
        A('v_mov_b32 %s, 0' % v(1))
        for i, r in enumerate(STREG + [14, sRt]):
            A('v_mov_b32 %s, %s' % (v(0), s(r)))
            A('buffer_store_dword %s, %s, %s, %s offen offset:%d' % (v(0), v(1), s(SWS, 4), s(sT2), 4 * i))
    A.label('L_END')
    A('s_endpgm')
    for x in TAIL:
        A.raw(x if x.endswith(':') else '    ' + x)

def main():
    body = gen()
    out = []
    out.append('; @launch grid=(256,1,1) block=(512,1,1) lds=163840')
    out.append('.amdgcn_target "amdgcn-amd-amdhsa--gfx950"')
    out.append('.text')
    out.append('.globl %s_kernel' % NAME)
    out.append(body)
    out.append('.section .rodata,"a"')
    out.append('.p2align 6')
    out.append('''.amdhsa_kernel %s_kernel
  .amdhsa_next_free_vgpr 256
  .amdhsa_next_free_sgpr 102
  .amdhsa_accum_offset 256
  .amdhsa_group_segment_fixed_size 0
  .amdhsa_kernarg_size 88
  .amdhsa_user_sgpr_count 2
  .amdhsa_user_sgpr_kernarg_segment_ptr 1
  .amdhsa_system_sgpr_workgroup_id_x 1
.end_amdhsa_kernel
''' % NAME)
    open(sys.argv[1], 'w').write('\n'.join(out))

main()
if OPT['tmo']:
    print(TIDS)
```

```python
import sys
from asmlib import Asm, v, a, s

NAME = 'parallel_sum__linear_kernel_hedgehog__dense_activation_mish__prompt'
OPT = dict(fine=0, stamps=0, prio=1, sched=0, slp=8, wt0=18, wd=8, wi=4, warm=1, xmap=1, xq=1, clk=0, ost=1, gi=5, f2=6, ps=7, win=4, f3=0, h2=4, xs=0, mv=0, rot=7, rm=0, kfp=3, hfp=0, h2p=0, ofp=0, rsl=2, pt0=-1, pd=4, nv=1, gp=0, wop=0, wopx=0, cont=1, fk=20, h2q=3, xsp=1, sst=1, oi=8, la=2, lb=3, lax=4, lbx=2, bq=0, h2w=1, xh=1, xmv=15, kpf=0, pr2=1, l8=0, l8x=0, fa=9, xs0=1, fke=0, tmo=0, ysm=0, ka=0, yd=0, yw=0, yf=1, pex=1, pey=1, wl=4, roll=2, rollx=2, pk=0, po=1, pr3=0, pr4=0, lnf=2, lnd=1, m2=1, pp=0, wx=0, xp=0, rp=0, ke=0, et=0, si=2, nz=0)
for arg in sys.argv[2:]:
    k, val = arg.split('=')
    OPT[k] = int(val, 0)

NU = 60
WS_ACT = 0x000000
WS_KVP = 0x800000
KVS = 9216
WS_KF = 0x8A0000
WS_STAT = 0xC80000
WS_F = 0xC90000
WS_CS = 0xCA0000
WS_STAMP = 0xD00000
WS_SIZE = 0x6000000 if OPT['tmo'] else 0xE00000
KVH = 1088
OOB = 0x7f000000
LOG2E = 0x3fb8aa3b
LN2 = 0x3f317218
BOUND = 0x8000

L_W = 65536
L_E = 131072
def XP(sg): return 16384 * sg
def WP(sg): return L_W + 16384 * sg
TA, TZ, TB, TR, TS, TN, TPH = L_E, L_E + 1536, L_E + 2048, L_E + 3072, L_E + 3584, L_E + 3840, L_E + 6144
KVL = L_E + 24576
P3B = [L_E + 8192, L_E + 16384, XP(0), XP(0) + 8192, WP(0), WP(0) + 8192, XP(1), XP(1) + 8192]
PH0, PH1, VB = XP(3), WP(3), XP(2)
FL_P3, FL_PB, FL_EX, FL_KV, FL_WR = TN + 16, TN + 32, TN + 48, TN + 80, TN + 96

SX, SA, SB, SWS, SD, SW2, SWO, STMP = 40, 44, 48, 56, 60, 64, 68, 72
SO = SA
sNonce, sWave, sRb, sCg, sTyp, sG, sF, sRb2, sCb = 3, 4, 5, 8, 9, 10, 11, 12, 13
sT0, sT1, sT2, sT3 = 14, 15, 76, 77
sO = [78, 79, 80, 81, 82, 83]
sJ = 84
sM = 85
sA, sB = 86, 87
sGq = 39
STREG = [88, 90, 92, 94, 96, 98, 100, 24, 74]

def srd(A, d, lo, size):
    A('s_mov_b32 %s, %s' % (s(d), s(lo)))
    A('s_mov_b32 %s, %s' % (s(d + 1), s(lo + 1)))
    A('s_mov_b32 %s, 0x%x' % (s(d + 2), size))
    A('s_mov_b32 %s, 0x20000' % s(d + 3))

def stamp(A, idx, fine=0):
    over = {0: (), 1: (1, 2), 2: (1, 2, 3, 8, 4), 3: (1, 2, 8, 4, 5, 6), 4: (1, 2, 8, 4, 5, 6, 7), 5: (1, 2, 8, 4, 5, 6, 7), 6: (1, 2, 3, 8), 7: (1, 2, 3, 8, 4, 5), 8: (1, 2, 6, 7), 9: (1, 2, 3, 8, 5, 6, 7)}[OPT['fine']]
    if fine == 0 and idx in over:
        return
    if fine and OPT['fine'] != fine:
        return
    if OPT['stamps']:
        A('%s %s' % ('s_memtime' if OPT['clk'] else 's_memrealtime', s(STREG[idx], 2)))

def emit(A, L):
    for it in L:
        if isinstance(it, tuple):
            A(it[0], tag=it[1])
        else:
            A(it)

class Keep:
    def __init__(self, A): self.A = A
    def __enter__(self): self.sv = list(self.A.vm); self.sl = list(self.A.lg)
    def __exit__(self, *e): self.A.vm = self.sv; self.A.lg = self.sl

TIDS = []
TAIL = []
def tmo(name, cnt, lim, vreg):
    if not OPT['tmo']:
        return []
    TIDS.append(name)
    TAIL.extend([name + '_T:', 's_lshl_b32 s88, s2, 3', 's_add_u32 s88, s88, s4', 's_lshl_b32 s88, s88, 5', 's_add_u32 s88, s88, %d' % (len(TIDS) - 1),
                 's_lshl_b32 s88, s88, 10', 's_add_u32 s88, s88, 0x2000000', 's_memrealtime s[90:91]',
                 'buffer_store_dword %s, %s, %s, s88 offen sc1' % (v(vreg), v(254), s(SWS, 4)), 's_waitcnt vmcnt(0) lgkmcnt(0)',
                 'v_mov_b32 %s, s90' % v(vreg), 'buffer_store_dword %s, %s, %s, s88 offen offset:4 sc1' % (v(vreg), v(254), s(SWS, 4)), 's_waitcnt vmcnt(0)',
                 'v_mov_b32 %s, s3' % v(vreg), 'buffer_store_dword %s, %s, %s, s88 offen offset:8 sc1' % (v(vreg), v(254), s(SWS, 4)), 's_waitcnt vmcnt(0)',
                 's_branch %s_U' % name])
    return ['s_cmp_eq_u32 %s, %d' % (s(cnt), lim), 's_cbranch_scc1 %s_T' % name, name + '_U:']

def poll(A, name, reload, vreg, mask, cmp_nonce=True, pre=()):
    A('s_mov_b32 %s, 0' % s(sT0))
    A.label(name + '_P')
    emit(A, pre)
    if cmp_nonce:
        A('v_cmp_ne_u32 vcc, %s, %s' % (s(sNonce), v(vreg)))
    else:
        A('v_cmp_eq_u32 vcc, 0, %s' % v(vreg))
    if mask is not None:
        A('s_and_b32 vcc_lo, vcc_lo, %s' % mask)
        A('s_cmp_eq_u32 vcc_lo, 0')
    else:
        A('s_cmp_eq_u64 vcc, 0')
    A.branch('s_cbranch_scc1 %s_G' % name)
    A('s_add_u32 %s, %s, 1' % (s(sT0), s(sT0)))
    A('s_cmp_gt_u32 %s, 0x%x' % (s(sT0), BOUND))
    A.branch('s_cbranch_scc1 %s_G' % name)
    for x in tmo(name, sT0, 3000, vreg):
        A.raw(x)
    if OPT['slp']:
        A('s_sleep %d' % OPT['slp'])
    with Keep(A):
        emit(A, [reload] if isinstance(reload, str) else reload)
    A('s_waitcnt vmcnt(0)')
    A.branch('s_branch %s_P' % name)
    A.label(name + '_G')

def lds_wait(A, name, addr, n, minval, t, extra=()):
    A('s_mov_b32 %s, 0' % s(sT0))
    A.label(name + '_P')
    with Keep(A):
        A('ds_read_b128 %s, %s' % (v(t, 4), addr) if n == 4 else 'ds_read_b32 %s, %s' % (v(t), addr))
        emit(A, extra)
    A('s_add_u32 %s, %s, 1' % (s(sT0), s(sT0)))
    A('s_waitcnt lgkmcnt(0)')
    A.lg = []
    if n == 4:
        A('v_min3_u32 %s, %s, %s, %s' % (v(t), v(t), v(t + 1), v(t + 2)))
        A('v_min_u32 %s, %s, %s' % (v(t), v(t), v(t + 3)))
    A('v_readfirstlane_b32 %s, %s' % (s(sT1), v(t)))
    for x in tmo(name, sT0, 40000, t):
        A.raw(x)
    A('s_cmp_gt_u32 %s, 0x%x' % (s(sT0), BOUND * 16))
    A('s_cselect_b32 %s, %d, %s' % (s(sT1), minval, s(sT1)))
    A('s_cmp_lt_u32 %s, %d' % (s(sT1), minval))
    A.branch('s_cbranch_scc1 %s_P' % name)

vLane, vL16 = 255, 254
sRt = 38

def vcheck(A, name, regs, t, reload, back=None):
    if back is None:
        A.raw(name + '_C:')
    r = list(regs)
    if len(r) > 1:
        first = True
        while r:
            if first:
                k = r[:3]; r = r[3:]
            else:
                k = [t] + r[:2]; r = r[2:]
            A(('v_max3_u32 %s, %s, %s, %s' if len(k) == 3 else 'v_max_u32 %s, %s, %s') % tuple([v(t)] + [v(x) for x in k]))
            first = False
        A('v_cmp_eq_u32 vcc, -1, %s' % v(t))
    else:
        A('v_cmp_eq_u32 vcc, -1, %s' % v(r[0]))
    A('s_cbranch_vccnz %s_R' % name)
    A.raw(name + '_K:')
    L = [name + '_R:', 's_add_u32 %s, %s, 1' % (s(sRt), s(sRt)), 's_cmp_gt_u32 %s, 0x%x' % (s(sRt), BOUND), 's_cbranch_scc1 %s_K' % name]
    L += tmo(name, sRt, 2000, t)
    if OPT['rsl']:
        L.append('s_sleep %d' % OPT['rsl'])
    L += ['s_nop 7', 's_nop 7']
    L += [x[0] if isinstance(x, tuple) else x for x in reload]
    L += ['s_waitcnt vmcnt(0)', 's_branch %s' % (back or name + '_C')]
    TAIL.extend(L)

def tr_addr(A, dst, t, rowhalf, sel):
    A('v_lshrrev_b32 %s, 5, %s' % (v(t), v(vLane)))
    A('v_bfe_u32 %s, %s, 2, 2' % (v(t + 1), v(vLane)))
    A('v_mul_u32_u24 %s, %d, %s' % (v(t), rowhalf, v(t)))
    A('v_add_lshl_u32 %s, %s, %s, 7' % (v(dst), v(t), v(t + 1)))
    A('v_bfe_u32 %s, %s, 3, 1' % (v(t), v(vLane)))
    if sel:
        A('v_xor_b32 %s, %s, %s' % (v(t), sel, v(t)))
    A('v_lshl_add_u32 %s, %s, 6, %s' % (v(dst), v(t), v(dst)))
    A('v_bfe_u32 %s, %s, 4, 1' % (v(t), v(vLane)))
    A('v_lshl_add_u32 %s, %s, 5, %s' % (v(dst), v(t), v(dst)))
    A('v_and_b32 %s, 3, %s' % (v(t), v(vLane)))
    A('v_lshl_add_u32 %s, %s, 3, %s' % (v(dst), v(t), v(dst)))

def selector(A, dst, t):
    A('v_lshrrev_b32 %s, 2, %s' % (v(t), v(vLane)))
    A('v_xor_b32 %s, %s, %s' % (v(t), v(t), v(vLane)))
    A('v_and_b32 %s, 4, %s' % (v(t), v(t)))
    A('v_cmp_eq_u32 vcc, 0, %s' % v(t))
    A('v_mov_b32 %s, 0x3f803f80' % v(t + 1))
    A('v_cndmask_b32 %s, 0, %s, vcc' % (v(dst), v(t + 1)))
    for i in range(1, 4):
        A('v_mov_b32 %s, %s' % (v(dst + i), v(dst)))

def onehot(A, dst, key, t, first=0):
    A('v_mov_b32 %s, 0x3f80' % v(t))
    A('v_mov_b32 %s, 0x3f800000' % v(t + 1))
    for r in range(4):
        A('v_cmp_eq_u32 vcc, %d, %s' % (first + 2 * r, v(key)))
        A('v_cndmask_b32 %s, 0, %s, vcc' % (v(dst + r), v(t)))
        A('v_cmp_eq_u32 vcc, %d, %s' % (first + 2 * r + 1, v(key)))
        A('v_cndmask_b32 %s, %s, %s, vcc' % (v(dst + r), v(dst + r), v(t + 1)))

def reduce_write(A, acc, t, base_s, nrt=2):
    A('v_and_b32 %s, 31, %s' % (v(t), v(vLane)))
    A('v_lshrrev_b32 %s, 5, %s' % (v(t + 1), v(vLane)))
    A('v_xor_b32 %s, %s, %s' % (v(t + 1), v(t + 1), v(vLane)))
    A('v_and_b32 %s, 7, %s' % (v(t + 1), v(t + 1)))
    A('v_lshlrev_b32 %s, 4, %s' % (v(t + 1), v(t + 1)))
    A('v_lshl_add_u32 %s, %s, 7, %s' % (v(t), v(t), v(t + 1)))
    A('v_add_u32 %s, %s, %s' % (v(t), s(base_s), v(t)))
    for q4 in range(1, 4):
        A('v_xor_b32 %s, %d, %s' % (v(t + q4), 32 * q4, v(t)))
    for q4 in range(4):
        A('v_xor_b32 %s, 16, %s' % (v(t + 4 + q4), v(t + q4)))
        A('v_add_u32 %s, %d, %s' % (v(t + 4 + q4), 65536, v(t + 4 + q4)))
    return [('ds_write_b128 %s, %s offset:%d' % (v(t + 4 * nt + q4), v(acc + 16 * (nrt * nt + rt) + 4 * q4, 4), rt * 16384))
            for nt in range(2) for rt in range(nrt) for q4 in range(4)]

def w2_voff(A, dst, t):
    A('v_lshrrev_b32 %s, 3, %s' % (v(t), v(vLane)))
    A('v_lshrrev_b32 %s, 2, %s' % (v(t + 1), v(vLane)))
    A('v_and_b32 %s, 4, %s' % (v(t + 1), v(t + 1)))
    A('v_and_b32 %s, 7, %s' % (v(t + 2), v(vLane)))
    A('v_xor_b32 %s, %s, %s' % (v(t + 1), v(t + 1), v(t + 2)))
    A('v_lshlrev_b32 %s, 4, %s' % (v(t + 1), v(t + 1)))
    A('s_lshl_b32 %s, %s, 7' % (s(sT0), s(sCb)))
    A('v_lshl_add_u32 %s, %s, 10, %s' % (v(dst), v(t), v(t + 1)))
    A('v_add_u32 %s, %s, %s' % (v(dst), s(sT0), v(dst)))

def quad(vo, srdn, ldsbase, tag):
    L = []
    L.append('s_lshl_b32 m0, %s, 12' % s(sJ))
    if ldsbase:
        L.append('s_add_u32 m0, m0, %d' % ldsbase)
    for i in range(4):
        if i:
            L.append('s_add_u32 %s, %s, %d' % (s(sO[i]), s(sO[0]), 7168 * i))
        L.append(('buffer_load_dwordx4 %s, %s, %s offen offset:%d lds' % (v(vo[i & 1]), s(srdn, 4), s(sO[i]), 1024 * i), tag))
    return L

def xres(A, vOo, vX):
    A('v_lshrrev_b32 %s, 3, %s' % (v(vOo), v(vLane)))
    A('v_and_b32 %s, 7, %s' % (v(vOo + 1), v(vLane)))
    A('v_lshlrev_b32 %s, 10, %s' % (v(vOo), v(vOo)))
    A('v_lshl_add_u32 %s, %s, 4, %s' % (v(vOo), v(vOo + 1), v(vOo)))
    A('s_lshl_b32 %s, %s, 3' % (s(6), s(sRb2)))
    A('s_add_u32 %s, %s, %s' % (s(6), s(6), s(sWave)))
    A('s_lshl_b32 %s, %s, 13' % (s(6), s(6)))
    A('s_lshl_b32 %s, %s, 7' % (s(7), s(sCb)))
    A('s_add_u32 %s, %s, %s' % (s(6), s(6), s(7)))
    A('buffer_load_dwordx4 %s, %s, %s, %s offen' % (v(vX, 4), v(vOo), s(SX, 4), s(6)), tag='xres')

def gen():
    A = Asm()
    vT = 236
    A.raw('.p2align 8')
    A.raw('.type %s_kernel,@function' % NAME)
    A.raw('%s_kernel:' % NAME)
    A('s_cmp_ge_u32 s2, 256')
    A.branch('s_cbranch_scc1 L_END')
    A('s_load_dwordx16 s[16:31], s[0:1], 0')
    A('s_load_dwordx4 s[32:35], s[0:1], 64')
    A('s_load_dwordx2 s[36:37], s[0:1], 80')
    A('s_memrealtime s[6:7]')
    A('v_and_b32 %s, 63, v0' % v(vLane))
    A('v_lshrrev_b32 %s, 6, v0' % v(vT))
    A('v_lshlrev_b32 %s, 4, %s' % (v(vL16), v(vLane)))
    A('v_readfirstlane_b32 %s, %s' % (s(sWave), v(vT)))
    A('s_and_b32 %s, s2, 7' % s(sT0))
    A('s_lshr_b32 %s, s2, 3' % s(sT1))
    A('s_and_b32 %s, %s, 1' % (s(sRb), s(sT0)))
    A('s_lshl_b32 %s, %s, 3' % (s(sRb), s(sRb)))
    A('s_and_b32 %s, %s, 7' % (s(sT2), s(sT1)))
    A('s_add_u32 %s, %s, %s' % (s(sRb), s(sRb), s(sT2)))
    A('s_lshr_b32 %s, %s, 1' % (s(sCg), s(sT0)))
    A('s_lshl_b32 %s, %s, 2' % (s(sCg), s(sCg)))
    A('s_lshr_b32 %s, %s, 3' % (s(sT2), s(sT1)))
    A('s_add_u32 %s, %s, %s' % (s(sCg), s(sCg), s(sT2)))
    A('s_and_b32 %s, %s, 1' % (s(sTyp), s(sCg)))
    A('s_lshr_b32 %s, %s, 1' % (s(sG), s(sCg)))
    A('s_xor_b32 %s, %s, %d' % (s(sGq), s(sG), 2 * OPT['xq']))
    A('s_cmp_eq_u32 %s, 1' % s(sTyp))
    A('s_cselect_b32 %s, %s, %s' % (s(sGq), s(sG), s(sGq)))
    A('s_lshl_b32 %s, %s, 1' % (s(sF), s(sCg)))
    A('s_add_u32 %s, %s, %s' % (s(sF), s(sF), s(sRb)))
    if OPT['rm']:
        A('s_and_b32 %s, %s, 3' % (s(sF), s(sCg)))
        A('s_lshl_b32 %s, %s, 1' % (s(sF), s(sF)))
        A('s_and_b32 %s, %s, 7' % (s(sT2), s(sRb)))
        A('s_add_u32 %s, %s, %s' % (s(sF), s(sF), s(sT2)))
        A('s_sub_u32 %s, %s, 7' % (s(sT2), s(sF)))
        A('s_cmp_ge_u32 %s, 7' % s(sF))
        A('s_cselect_b32 %s, %s, %s' % (s(sF), s(sT2), s(sF)))
        A('s_xor_b32 %s, %s, %s' % (s(38), s(sCg), s(sRb)))
        A('s_and_b32 %s, %s, %d' % (s(38), s(38), OPT['rm'] - 1))
    else:
        A('s_and_b32 %s, %s, %d' % (s(sF), s(sF), OPT['rot']))
    if OPT['xmap']:
        A('s_lshr_b32 %s, %s, 1' % (s(sRb2), s(sT0)))
        A('s_andn2_b32 %s, 1, %s' % (s(sT2), s(sT0)))
        A('s_lshl_b32 %s, %s, 2' % (s(sT2), s(sT2)))
        A('s_add_u32 %s, %s, %s' % (s(sRb2), s(sRb2), s(sT2)))
        A('s_lshl_b32 %s, %s, 2' % (s(sRb2), s(sRb2)))
    else:
        A('s_lshl_b32 %s, %s, 2' % (s(sRb2), s(sT0)))
    A('s_and_b32 %s, %s, 3' % (s(sT2), s(sT1)))
    A('s_add_u32 %s, %s, %s' % (s(sRb2), s(sRb2), s(sT2)))
    A('s_lshr_b32 %s, %s, 2' % (s(sCb), s(sT1)))
    if OPT['m2']:
        A('s_xor_b32 %s, %s, %s' % (s(sT2), s(sRb2), s(sCb)))
        A('s_and_b32 %s, %s, 4' % (s(sT2), s(sT2)))
        A('s_xor_b32 %s, %s, %s' % (s(sRb2), s(sRb2), s(sT2)))
        A('s_xor_b32 %s, %s, %s' % (s(sCb), s(sCb), s(sT2)))
    if OPT['m2'] == 2:
        A('s_lshr_b32 %s, %s, 2' % (s(sT2), s(sRb2)))
        A('s_xor_b32 %s, %s, %s' % (s(sT2), s(sT2), s(sCb)))
        A('s_and_b32 %s, %s, 2' % (s(sT2), s(sT2)))
        A('s_xor_b32 %s, %s, %s' % (s(sCb), s(sCb), s(sT2)))
        A('s_lshl_b32 %s, %s, 2' % (s(sT2), s(sT2)))
        A('s_xor_b32 %s, %s, %s' % (s(sRb2), s(sRb2), s(sT2)))
    A('s_and_b32 %s, %s, 3' % (s(sJ), s(sWave)))
    if not OPT['rm']:
        A('s_mov_b32 %s, 0' % s(sRt))
    A('s_cmp_ge_u32 %s, 4' % s(sWave))
    A.branch('s_cbranch_scc1 C_START')
    gen_loader(A)
    gen_compute(A)
    gen_final(A)
    return A.text()

def gen_loader(A):
    vXo, vP1, vP2, vP3, v2o = 224, 226, 227, 228, 252
    vNon, vG, vTa, vFl = 230, 232, 234, 253
    vT = 236
    vRow = 0
    vCf = 32
    vCa = 56
    vSel = 68
    vGa = 72
    vB1 = 104
    sPA16, sPA8, sPB16, sPB8 = 52, 53, 54, 55
    sC1, sC2, sC3 = SWO, SWO + 1, SWO + 2
    sStat = 7
    A('s_lshl_b32 %s, %s, 7' % (s(sT0), s(sG)))
    A('s_lshl_b32 %s, %s, 8' % (s(sT1), s(sG)))
    A('s_add_u32 %s, %s, 1024' % (s(sC1), s(sT0)))
    A('s_add_u32 %s, %s, 2048' % (s(sC2), s(sT0)))
    A('s_add_u32 %s, %s, 128' % (s(sT3), s(sT1)))
    A('s_lshl_b32 %s, %s, 7' % (s(sT2), s(sGq)))
    A('s_cmp_eq_u32 %s, 1' % s(sTyp))
    A('s_cselect_b32 %s, %s, %s' % (s(sC3), s(sC2), s(sT2)))
    A('s_cselect_b32 %s, %s, %s' % (s(sC1), s(sC1), s(sT1)))
    A('s_cselect_b32 %s, %s, %s' % (s(sC2), s(sC2), s(sT3)))
    A('s_movk_i32 %s, 2752' % s(sT1))
    A('s_cselect_b32 %s, 3072, %s' % (s(sT2), s(sT1)))
    A('s_cselect_b32 %s, %s, 3072' % (s(sT3), s(sT1)))
    w2_voff(A, v2o, vT)
    A('v_mul_u32_u24 %s, %s, %s' % (v(vP2), s(sT2), v(vT)))
    A('v_add3_u32 %s, %s, %s, %s' % (v(vP1), v(vP2), v(vT + 1), s(sC1)))
    A('v_add3_u32 %s, %s, %s, %s' % (v(vP2), v(vP2), v(vT + 1), s(sC2)))
    A('v_add_u32 %s, %s, %s' % (v(vT + 3), s(sC3), v(vT + 1)))
    A('v_mul_u32_u24 %s, %s, %s' % (v(vP3), s(sT3), v(vT)))
    A('v_add_u32 %s, %s, %s' % (v(vP3), v(vP3), v(vT + 3)))
    A('v_cmp_gt_u32 vcc, 2752, %s' % v(vT + 3))
    A('v_mov_b32 %s, 0x%x' % (v(vT + 3), OOB))
    A('v_cndmask_b32 %s, %s, %s, vcc' % (v(vP3), v(vT + 3), v(vP3)))
    A('s_lshl_b32 %s, %s, 4' % (s(sPA16), s(sT2)))
    A('s_lshl_b32 %s, %s, 3' % (s(sPA8), s(sT2)))
    A('s_sub_u32 %s, %s, 1024' % (s(sPA8), s(sPA8)))
    A('s_lshl_b32 %s, %s, 4' % (s(sPB16), s(sT3)))
    A('s_lshl_b32 %s, %s, 3' % (s(sPB8), s(sT3)))
    A('s_sub_u32 %s, %s, 1024' % (s(sPB8), s(sPB8)))
    A('v_lshrrev_b32 %s, 4, %s' % (v(vT + 1), v(vLane)))
    A('v_xor_b32 %s, %s, %s' % (v(vT + 1), v(vT + 1), v(vT + 2)))
    A('s_lshl_b32 %s, %s, 2' % (s(sT0), s(sRb)))
    A('s_add_u32 %s, %s, %s' % (s(sT0), s(sT0), s(sJ)))
    A('s_lshl_b32 %s, %s, 15' % (s(sT0), s(sT0)))
    A('v_lshlrev_b32 %s, 10, %s' % (v(vXo), v(vT)))
    A('v_lshl_add_u32 %s, %s, 4, %s' % (v(vXo), v(vT + 1), v(vXo)))
    A('v_add_u32 %s, %s, %s' % (v(vXo), s(sT0), v(vXo)))
    A('v_xor_b32 %s, 64, %s' % (v(vXo + 1), v(vXo)))
    A('s_lshl_b32 %s, %s, 11' % (s(sM), s(sJ)))
    A('s_lshl_b32 %s, %s, 4' % (s(sA), s(sRb)))
    A('s_add_u32 %s, %s, %s' % (s(sA), s(sA), s(sCg)))
    A('s_lshl_b32 %s, %s, 2' % (s(sA), s(sA)))
    A('s_add_u32 %s, %s, %s' % (s(sA), s(sA), s(sJ)))
    A('s_lshl_b32 %s, %s, 11' % (s(sB), s(sA)))
    A('v_and_b32 %s, 32, %s' % (v(vT + 4), v(vLane)))
    A('v_lshl_add_u32 %s, %s, 4, %s' % (v(vT + 4), v(vT + 4), v(vL16)))
    A('v_mov_b32 %s, 0' % v(vT + 5))
    A('s_or_b32 %s, s2, %s' % (s(sT0), s(sWave)))
    A('s_waitcnt lgkmcnt(0)')
    srd(A, SD, 34, 256)
    A('s_cmp_lg_u32 %s, 0' % s(sT0))
    A.branch('s_cbranch_scc1 L_NONONCE')
    A('s_or_b32 s6, s6, 1')
    A('v_mov_b32 %s, s6' % v(vT))
    with Keep(A):
        A('buffer_store_dword %s, %s, %s, 0 offen offset:128 sc1' % (v(vT), v(vT + 5), s(SD, 4)))
    A.label('L_NONONCE')
    srd(A, SX, 16, 2048 * 1024)
    A('s_cmp_eq_u32 %s, 1' % s(sTyp))
    for d, x_, y_, p16 in ((SA, 18, 26, sPA16), (SB, 26, 18, sPB16)):
        A('s_cselect_b32 %s, %s, %s' % (s(d), s(x_), s(y_)))
        A('s_cselect_b32 %s, %s, %s' % (s(d + 1), s(x_ + 1), s(y_ + 1)))
        A('s_mov_b32 %s, 0x20000' % s(d + 3))
    A('s_lshl_b32 %s, %s, 5' % (s(SA + 2), s(sPA16)))
    A('s_lshl_b32 %s, %s, 5' % (s(SB + 2), s(sPB16)))
    stamp(A, 0)

    def chunk(st):
        if OPT['rm']:
            if st == 0:
                return ['s_mov_b32 %s, %s' % (s(sT3), s(38))]
            return ['s_add_u32 %s, %s, %d' % (s(sT3), s(sF), st),
                    's_sub_u32 %s, %s, 7' % (s(sO[0]), s(sT3)),
                    's_cmp_ge_u32 %s, 8' % s(sT3),
                    's_cselect_b32 %s, %s, %s' % (s(sT3), s(sO[0]), s(sT3)),
                    's_xor_b32 %s, %s, %s' % (s(sT3), s(sT3), s(38))]
        return ['s_add_u32 %s, %s, %d' % (s(sT3), s(sF), st),
                's_and_b32 %s, %s, 7' % (s(sT3), s(sT3))]
    def krow(st):
        return chunk(st) + [
                's_lshl_b32 %s, %s, 2' % (s(sT3), s(sT3)),
                's_add_u32 %s, %s, %s' % (s(sT3), s(sT3), s(sJ))]
    def grp_w(st):
        L = krow(st)
        L.append('s_mul_i32 %s, %s, %s' % (s(sO[0]), s(sT3), s(sPA16)))
        L.append('s_add_u32 m0, %s, %d' % (s(sM), WP(st & 3)))
        L.append('s_add_u32 %s, %s, %s' % (s(sO[1]), s(sO[0]), s(sPA8)))
        L.append(('buffer_load_dwordx4 %s, %s, %s offen lds' % (v(vP1), s(SA, 4), s(sO[0])), 's%d' % st))
        L.append(('buffer_load_dwordx4 %s, %s, %s offen offset:1024 lds' % (v(vP1), s(SA, 4), s(sO[1])), 's%d' % st))
        L.append('s_add_u32 m0, %s, %d' % (s(sM), WP(st & 3) + 8192))
        L.append(('buffer_load_dwordx4 %s, %s, %s offen lds' % (v(vP2), s(SA, 4), s(sO[0])), 's%d' % st))
        L.append(('buffer_load_dwordx4 %s, %s, %s offen offset:1024 lds' % (v(vP2), s(SA, 4), s(sO[1])), 's%d' % st))
        return L
    def grp_p3(st):
        tag = ('s1' if OPT['rp'] else 's0') if st == 0 else 'p3'
        L = krow(st)
        if OPT['rm'] and st < 2:
            assert OPT['rm'] == 1
            L = ['s_add_u32 %s, %s, 1' % (s(sO[1]), s(sF)),
                 's_and_b32 %s, %s, 7' % (s(sT3), s(sRb)),
                 's_cmp_%s_u32 %s, 7' % ('lg' if st else 'eq', s(sT3)),
                 's_cselect_b32 %s, 0, %s' % (s(sT3), s(sO[1])),
                 's_cselect_b32 %s, %d, %d' % (s(sO[1]), 0, 1),
                 's_lshl_b32 %s, %s, 13' % (s(sO[1]), s(sO[1])),
                 's_add_u32 %s, %s, %s' % (s(sO[1]), s(sO[1]), s(sM))] + L[-2:]
        L.append('s_mul_i32 %s, %s, %s' % (s(sO[0]), s(sT3), s(sPB16)))
        if OPT['rm'] and st < 2:
            L.append('s_add_u32 m0, %s, %d' % (s(sO[1]), P3B[0]))
        else:
            L.append('s_add_u32 m0, %s, %d' % (s(sM), P3B[st]))
        L.append('s_add_u32 %s, %s, %s' % (s(sO[1]), s(sO[0]), s(sPB8)))
        L.append(('buffer_load_dwordx4 %s, %s, %s offen lds' % (v(vP3), s(SB, 4), s(sO[0])), tag))
        L.append(('buffer_load_dwordx4 %s, %s, %s offen offset:1024 lds' % (v(vP3), s(SB, 4), s(sO[1])), tag))
        return L
    def grp_x(st):
        L = chunk(st)
        L.append('s_lshl_b32 %s, %s, 7' % (s(sO[0]), s(sT3)))
        return L + quad((vXo, vXo + 1), SX, XP(st & 3), 's%d' % st)
    UL = [(8, 0), (8, 1), (8, 4), (8, 5), (3, 32), (3, 33), (3, 34), (8, 2), (8, 3), (8, 6), (8, 7)]
    UL = UL[:4] + UL[7:] + UL[4:7]
    UPY = [WP(1), WP(2), XP(2), XP(3), WP(3), WP(1), WP(2), WP(1), XP(0), XP(1), WP(0)]
    UPX = [WP(1), WP(2), WP(1), WP(2), WP(1), WP(2), WP(1), WP(1), XP(0), XP(1), WP(0)]
    def grp_w2(i, UP=UPY):
        m, c = UL[i]
        L = ['s_mul_i32 %s, %s, %d' % (s(sO[0]), s(sJ), m * 32768)]
        if c:
            L.append('s_add_u32 %s, %s, %d' % (s(sO[0]), s(sO[0]), c * 32768))
        return L + quad((v2o, v2o), SW2, UP[i], 'u%d' % i)
    groups = []
    for st in range(8):
        groups += [('w', st), ('x', st)]
    SCHED = {0: [6, 2, 2, 2, 2, 2], 1: [4, 4, 2, 2, 2, 2], 2: [8, 0, 2, 2, 2, 2], 3: [5, 3, 2, 2, 2, 2]}[OPT['sched']]
    pos = [0]
    def issue(n, iv):
        for _ in range(n):
            kind, st = groups[pos[0]]
            assert st <= iv + 3 or st < 4, (st, iv)
            emit(A, grp_w(st) if kind == 'w' else grp_x(st))
            pos[0] += 1

    nload = 'buffer_load_dword %s, %s, %s, 0 offen offset:128 sc1' % (v(vNon), v(vT + 5), s(SD, 4))
    A('buffer_load_dwordx4 %s, %s, %s, %s offen' % (v(vRow, 4), v(vT + 4), s(SX, 4), s(sB)), tag='row')
    A('buffer_load_dwordx4 %s, %s, %s, %s offen offset:512' % (v(vRow + 4, 4), v(vT + 4), s(SX, 4), s(sB)), tag='row')
    issue(2, -1)
    if not OPT['rp']:
        emit(A, grp_p3(0))
    A(nload, tag='s0')
    issue(2, -1)
    if OPT['rp']:
        assert OPT['rm']
        emit(A, grp_p3(0))
    A('buffer_load_dword %s, %s, %s, 0 offen offset:128 sc1' % (v(vNon + 1), v(vT + 5), s(SD, 4)), tag='non2')
    srd(A, SWS, 36, WS_SIZE)
    A('s_lshl_b32 %s, %s, 4' % (s(sStat), s(sA)))
    A('s_add_u32 %s, %s, 0x%x' % (s(sStat), s(sStat), WS_STAT))
    srd(A, SW2, 30, 1376 * 1024)

    def xsum32(r, t):
        for ctl in ('quad_perm:[1,0,3,2]', 'quad_perm:[2,3,0,1]', 'row_half_mirror', 'row_mirror'):
            A('v_add_f32_dpp %s, %s, %s %s row_mask:0xf bank_mask:0xf' % (v(r), v(r), v(r), ctl))
        A('v_mov_b32 %s, %s' % (v(t), v(r)))
        A('v_permlane16_swap_b32 %s, %s' % (v(r), v(t)))
        A('v_add_f32 %s, %s, %s' % (v(r), v(r), v(t)))
    U = vRow + 8
    tr_addr(A, vTa, vT, 8, s(sJ))
    A('s_lshr_b32 %s, %s, 3' % (s(sT0), s(sRb)))
    A('s_lshl_b32 %s, %s, 12' % (s(sT0), s(sT0)))
    A('s_add_u32 %s, %s, %d' % (s(sT0), s(sT0), L_W))
    A('v_add_u32 %s, %s, %s' % (v(vTa), s(sT0), v(vTa)))
    if OPT['rm']:
        A('s_and_b32 %s, %s, 7' % (s(sT0), s(sRb)))
        A('s_cmp_eq_u32 %s, 7' % s(sT0))
        A('s_cselect_b32 %s, 0, 8192' % s(sT0))
        A('s_add_u32 %s, %s, %d' % (s(sT0), s(sT0), P3B[0] - L_W))
        A('v_add_u32 %s, %s, %s' % (v(vTa + 1), s(sT0), v(vTa)))
    else:
        A('v_add_u32 %s, %d, %s' % (v(vTa + 1), P3B[0] - L_W, v(vTa)))
    selector(A, vSel, vT)
    A('v_lshlrev_b32 %s, 2, %s' % (v(vFl), v(vLane)))
    A('v_and_b32 %s, 0x7c, %s' % (v(vFl), v(vFl)))
    A.wait_vm('row')
    for j in range(8):
        A('v_lshlrev_b32 %s, 16, %s' % (v(U + 2 * j), v(vRow + j)))
        A('v_and_b32 %s, 0xffff0000, %s' % (v(U + 2 * j + 1), v(vRow + j)))
    for j in range(4):
        A('v_add_f32 %s, %s, %s' % (v(vRow + j), v(U + j), v(U + 4 + j)))
        A('v_add_f32 %s, %s, %s' % (v(vRow + 4 + j), v(U + 8 + j), v(U + 12 + j)))
    for st_ in (4, 2, 1):
        for j in range(st_):
            A('v_add_f32 %s, %s, %s' % (v(vRow + j), v(vRow + j), v(vRow + st_ + j)))
    xsum32(vRow, vRow + 1)
    A('v_mul_f32 %s, 0xbb000000, %s' % (v(vRow), v(vRow)))
    for j in range(16):
        A('v_add_f32 %s, %s, %s' % (v(U + j), v(U + j), v(vRow)))
    for j in range(4):
        A('v_mul_f32 %s, %s, %s' % (v(vRow + 4 + j), v(U + j), v(U + j)))
    for j in range(4, 16):
        A('v_fmac_f32 %s, %s, %s' % (v(vRow + 4 + (j & 3)), v(U + j), v(U + j)))
    r = vRow + 4
    A('v_add_f32 %s, %s, %s' % (v(r), v(r), v(r + 1)))
    A('v_add_f32 %s, %s, %s' % (v(r + 2), v(r + 2), v(r + 3)))
    A('v_add_f32 %s, %s, %s' % (v(r), v(r), v(r + 2)))
    xsum32(r, r + 1)
    A('v_mul_f32 %s, 0x3b000000, %s' % (v(r), v(r)))
    A('v_cvt_pk_bf16_f32 %s, %s, %s' % (v(r), v(r), v(r)))
    A('v_lshlrev_b32 %s, 16, %s' % (v(r), v(r)))
    A('v_add_f32 %s, 0x3727c5ac, %s' % (v(r), v(r)))
    A('v_cvt_pk_bf16_f32 %s, %s, %s' % (v(r), v(r), v(r)))
    A('v_lshlrev_b32 %s, 16, %s' % (v(r), v(r)))
    A('v_sqrt_f32 %s, %s' % (v(r), v(r)))
    A('v_cvt_pk_bf16_f32 %s, %s, %s' % (v(vG), v(vRow), v(r)))
    A('v_cmp_eq_u32 vcc, 0, %s' % v(vFl))
    A('v_lshrrev_b32 %s, 2, %s' % (v(vT), v(vLane)))
    A('v_mov_b32 %s, 0x%x' % (v(vT + 1), OOB))
    A('v_cndmask_b32 %s, %s, %s, vcc' % (v(vT + 4), v(vT + 1), v(vT)))
    issue(SCHED[0] - 4, -1)
    A.wait_vm('s0')
    A('s_barrier')
    stamp(A, 1)
    A('s_cmp_ge_u32 %s, 2' % s(sJ))
    A.branch('s_cbranch_scc1 L_NOCF')
    with Keep(A):
        for ks in range(2):
            for u in range(2 if OPT['rp'] else 3):
                for hh in range(2):
                    A('ds_read_b64_tr_b16 %s, %s offset:%d' % (v(vCf + 12 * ks + 4 * u + 2 * hh, 2), v(vTa + (u >> 1)), 8192 * (u & 1) + 2048 * ks + 512 * hh))
    A.label('L_NOCF')
    A('v_readfirstlane_b32 %s, %s' % (s(sNonce), v(vNon)))
    A('s_cmp_lg_u32 %s, 0' % s(sNonce))
    A.branch('s_cbranch_scc1 LN_DONE')
    with Keep(A):
        A.wait_vm('non2')
        A('v_mov_b32 %s, %s' % (v(vNon), v(vNon + 1)))
        poll(A, 'LN', nload, vNon, None, cmp_nonce=False)
        A('v_readfirstlane_b32 %s, %s' % (s(sNonce), v(vNon)))
    A.label('LN_DONE')
    A('v_mov_b32 %s, %s' % (v(vG + 1), v(vNon)))
    A('buffer_store_dwordx2 %s, %s, %s, %s offen sc1' % (v(vG, 2), v(vT + 4), s(SWS, 4), s(sStat)), tag='pub')
    A('s_cmp_ge_u32 %s, 2' % s(sJ))
    A.branch('s_cbranch_scc1 LB_START')
    vm0 = list(A.vm)
    pos0 = pos[0]

    def bar(n):
        A('s_barrier')
        if n == 4:
            stamp(A, 2)
        if n in (5, 6, 7):
            stamp(A, {5: 1, 6: 2, 7: 8}[n], 3)
    GI = OPT['gi']
    vA0, vB0 = 244, 246
    vFw = 248
    vSdw = 251
    vSg, vZo, vKw, vKf = 192, 196, 197, 199
    def prep_kv():
        A('v_and_b32 %s, 15, %s' % (v(vT), v(vLane)))
        A('v_lshrrev_b32 %s, 4, %s' % (v(vT + 1), v(vLane)))
        A('v_lshlrev_b32 %s, 3, %s' % (v(vT + 2), v(vT + 1)))
        A('v_xor_b32 %s, %s, %s' % (v(vT + 2), v(vT + 2), v(vT)))
        A('v_and_b32 %s, 15, %s' % (v(vT + 2), v(vT + 2)))
        onehot(A, vSg, vT + 2, vT + 3)
        A('v_lshrrev_b32 %s, 3, %s' % (v(vT + 3), v(vT)))
        A('v_mul_u32_u24 %s, %d, %s' % (v(vZo), KVS - 512, v(vT + 3)))
        A('v_lshl_add_u32 %s, %s, 4, %s' % (v(vZo), v(vT + 1), v(vZo)))
        A('v_lshl_add_u32 %s, %s, 6, %s' % (v(vZo), v(vT), v(vZo)))
        A('v_lshrrev_b32 %s, 1, %s' % (v(vT + 2), v(vT + 1)))
        A('v_mul_u32_u24 %s, 272, %s' % (v(vT + 2), v(vT + 2)))
        A('v_and_b32 %s, 1, %s' % (v(vT + 1), v(vT + 1)))
        A('v_lshl_add_u32 %s, %s, 3, %s' % (v(vT + 2), v(vT + 1), v(vT + 2)))
        A('s_mul_i32 %s, %s, %d' % (s(sT0), s(sJ), KVH))
        A('s_add_u32 %s, %s, %d' % (s(sT0), s(sT0), KVL))
        A('v_add_u32 %s, %s, %s' % (v(vT + 2), s(sT0), v(vT + 2)))
        A('v_lshl_add_u32 %s, %s, 4, %s' % (v(vKw), v(vT), v(vT + 2)))
        A('v_mul_u32_u24 %s, 544, %s' % (v(vT + 3), v(vT + 3)))
        A('v_add_u32 %s, %s, %s' % (v(vKw + 1), v(vT + 2), v(vT + 3)))
        A('v_and_b32 %s, 0x33, %s' % (v(vT), v(vLane)))
        A('v_bfe_u32 %s, %s, 2, 1' % (v(vT + 1), v(vLane)))
        A('v_lshl_or_b32 %s, %s, 3, %s' % (v(vT), v(vT + 1), v(vT)))
        A('v_bfe_u32 %s, %s, 3, 1' % (v(vT + 1), v(vLane)))
        A('v_lshl_or_b32 %s, %s, 2, %s' % (v(vT), v(vT + 1), v(vT)))
        A('v_lshlrev_b32 %s, 1, %s' % (v(vSdw), v(vT)))
    def lwarm():
        srd(A, STMP, 22, 512 * 1024)
        A('s_lshr_b32 %s, s2, 3' % s(sT0))
        A('s_lshl_b32 %s, %s, 2' % (s(sT0), s(sT0)))
        A('s_add_u32 %s, %s, %s' % (s(sT0), s(sT0), s(sJ)))
        A('v_lshlrev_b32 %s, 7, %s' % (v(vT), v(vLane)))
        A('s_mul_i32 %s, %s, %d' % (s(sT1), s(sT0), 86 * 128))
        A('buffer_load_dword %s, %s, %s, %s offen' % (v(107), v(vT), s(SW2, 4), s(sT1)), tag='wm')
        A('v_cmp_gt_u32 vcc, 22, %s' % v(vLane))
        A('v_mov_b32 %s, 0x%x' % (v(vT + 3), OOB))
        A('v_cndmask_b32 %s, %s, %s, vcc' % (v(vT + 2), v(vT + 3), v(vT)))
        A('s_add_u32 %s, %s, 8192' % (s(sT1), s(sT1)))
        A('buffer_load_dword %s, %s, %s, %s offen' % (v(107), v(vT + 2), s(SW2, 4), s(sT1)), tag='wm')
        A('v_cmp_gt_u32 vcc, 32, %s' % v(vLane))
        A('v_cndmask_b32 %s, %s, %s, vcc' % (v(vT + 2), v(vT + 3), v(vT)))
        A('s_lshl_b32 %s, %s, 12' % (s(sT1), s(sT0)))
        A('buffer_load_dword %s, %s, %s, %s offen' % (v(107), v(vT + 2), s(STMP, 4), s(sT1)), tag='wm')
    def prep2():
        tr_addr(A, vA0, vT, 4, None)
        A('s_lshl_b32 %s, %s, 1' % (s(sT0), s(sM)))
        A('v_add_u32 %s, %s, %s' % (v(vA0), s(sT0), v(vA0)))
        A('v_xor_b32 %s, 64, %s' % (v(vA0 + 1), v(vA0)))
        A('v_add_u32 %s, %d, %s' % (v(vB0), L_W, v(vA0)))
        A('v_add_u32 %s, %d, %s' % (v(vB0 + 1), L_W, v(vA0 + 1)))
        A('s_lshl_b32 %s, %s, 2' % (s(sT0), s(sJ)))
        A('s_add_u32 %s, %s, %d' % (s(sT0), s(sT0), FL_P3))
        A('v_mov_b32 %s, %s' % (v(vFw), s(sT0)))
        A('v_mov_b32 %s, 1' % v(vFw + 1))
        srd(A, SWO, 22, 512 * 1024)
    for k in 'AB':
        if k == 'B':
            A.label('LB_START')
            A.vm = list(vm0); A.lg = []; pos[0] = pos0
        sCs = 6
        if k == 'A':
            A('s_lshl_b32 %s, %s, 1' % (s(sCs), s(sCg)))
            A('s_add_u32 %s, %s, %s' % (s(sCs), s(sCs), s(sJ)))
            A('s_lshl_b32 %s, %s, 13' % (s(sCs), s(sCs)))
            A('s_add_u32 %s, %s, 0x%x' % (s(sCs), s(sCs), WS_CS))
            def colsum():
                if OPT['rm']:
                    A('s_and_b32 %s, %s, 7' % (s(sT1), s(sRb)))
                    A('s_cmp_eq_u32 %s, 7' % s(sT1))
                    A.branch('s_cbranch_scc1 L_CS0')
                    with Keep(A):
                        for ks in range(2):
                            for u in range(2):
                                for hh in range(2):
                                    A('ds_read_b64_tr_b16 %s, %s offset:%d' % (v(vCf + 12 * ks + 4 * u + 2 * hh, 2), v(vTa), 16384 + 8192 * u + 2048 * ks + 512 * hh))
                    A.label('L_CS0')
                    if OPT['rp']:
                        with Keep(A):
                            for ks in range(2):
                                for hh in range(2):
                                    A('ds_read_b64_tr_b16 %s, %s offset:%d' % (v(vCf + 12 * ks + 8 + 2 * hh, 2), v(vTa + 1), 2048 * ks + 512 * hh))
                A('s_lshl_b32 %s, %s, 9' % (s(sT1), s(sRb)))
                A('s_add_u32 %s, %s, %s' % (s(sT1), s(sT1), s(sCs)))
                A('v_and_b32 %s, 0x1ff, %s' % (v(vT), v(vL16)))
                A('s_waitcnt lgkmcnt(0)')
                for ks in range(2):
                    for u in range(3):
                        A('v_mfma_f32_16x16x32_bf16 %s, %s, %s, %s' % (v(vCa + 4 * u, 4), v(vSel, 4), v(vCf + 12 * ks + 4 * u, 4), '0' if ks == 0 else v(vCa + 4 * u, 4)))
                A('v_mov_b32 %s, %s' % (v(vCa + 1), v(vCa + 4)))
                A('v_mov_b32 %s, %s' % (v(vCa + 2), v(vCa + 8)))
                A('v_mov_b32 %s, %s' % (v(vCa + 3), v(vNon)))
                A('buffer_store_dwordx4 %s, %s, %s, %s offen sc1' % (v(vCa, 4), v(vT), s(SWS, 4), s(sT1)), tag='css')
            if not OPT['rm']:
                colsum()
            A('s_add_u32 %s, %s, 4096' % (s(sStat), s(sCs)))
            gal = ['buffer_load_dwordx4 %s, %s, %s, %s offen offset:%d sc1' % (v(vGa + 4 * i, 4), v(vL16), s(SWS, 4), s(sCs if i < 4 else sStat), 1024 * (i & 3)) for i in range(8)]
        else:
            A('s_lshl_b32 %s, %s, 1' % (s(sStat), s(sRb)))
            A('s_add_u32 %s, %s, %s' % (s(sStat), s(sStat), s(sJ)))
            A('s_lshl_b32 %s, %s, 9' % (s(sStat), s(sStat)))
            A('s_add_u32 %s, %s, 0x%x' % (s(sStat), s(sStat), WS_STAT - 1024))
            A('v_lshlrev_b32 %s, 3, %s' % (v(vTa), v(vLane)))
            gal = ['buffer_load_dwordx2 %s, %s, %s, %s offen sc1' % (v(vGa, 2), v(vTa), s(SWS, 4), s(sStat))]
        def gather():
            emit(A, [(x, 'ga') for x in gal])
        def small():
            if k == 'A':
                srd(A, STMP, 28, 2752)
                A('s_lshl_b32 %s, %s, 6' % (s(sT0), s(sJ)))
                A('s_add_u32 %s, %s, %s' % (s(sC1), s(sC1), s(sT0)))
                A('s_add_u32 %s, %s, %s' % (s(sC2), s(sC2), s(sT0)))
                A('s_add_u32 %s, %s, %s' % (s(sC3), s(sC3), s(sT0)))
                A('s_cmp_eq_u32 %s, 1' % s(sTyp))
                A('s_cselect_b32 %s, 0x%x, %s' % (s(sC1), OOB, s(sC1)))
                A('s_cselect_b32 %s, 0x%x, %s' % (s(sC2), OOB, s(sC2)))
                A('s_cselect_b32 %s, %s, 0x%x' % (s(sC3), s(sC3), OOB))
                A('v_lshrrev_b32 %s, 1, %s' % (v(vT), v(vFl)))
                for u in range(3):
                    A('buffer_load_ushort %s, %s, %s, %s offen' % (v(vB1 + u), v(vT), s(STMP, 4), s(sC1 + u)), tag='b1')
            else:
                srd(A, STMP, 20, 16384)
                A('s_lshl_b32 %s, %s, 1' % (s(sT0), s(sGq)))
                A('s_add_u32 %s, %s, %s' % (s(sT0), s(sT0), s(sJ)))
                A('s_lshl_b32 %s, %s, 10' % (s(sT0), s(sT0)))
                A('s_sub_u32 %s, %s, 2048' % (s(sT0), s(sT0)))
                A('s_lshr_b32 %s, %s, 1' % (s(sT1), s(sM)))
                A('s_add_u32 m0, %s, %d' % (s(sT1), TPH - 2048))
                A('buffer_load_dwordx4 %s, %s, %s offen lds' % (v(vL16), s(STMP, 4), s(sT0)), tag='b1')
        def tables():
            A.wait_vm('ga')
            stamp(A, 4, 3)
            if k == 'B':
                poll(A, 'LST', gal, vGa + 1, None)
                A('v_and_b32 %s, 0xffff, %s' % (v(vT), v(vGa)))
                A('v_lshl_or_b32 %s, %s, 16, %s' % (v(vT), v(vGa), v(vT)))
                A('v_lshrrev_b32 %s, 16, %s' % (v(vT + 1), v(vGa)))
                A('v_and_b32 %s, 0xffff0000, %s' % (v(vGa), v(vGa)))
                A('v_rcp_f32 %s, %s' % (v(vT + 2), v(vGa)))
                A('s_lshr_b32 %s, %s, 2' % (s(sT0), s(sM)))
                A('s_add_u32 %s, %s, %d' % (s(sT0), s(sT0), TB - 1024))
                A('v_add_u32 %s, %s, %s' % (v(vT + 3), s(sT0), v(vTa)))
                A('ds_write_b64 %s, %s' % (v(vT + 3), v(vT, 2)))
                A('s_lshr_b32 %s, %s, 3' % (s(sT0), s(sM)))
                A('s_add_u32 %s, %s, %d' % (s(sT0), s(sT0), TR - 512))
                A('v_lshl_add_u32 %s, %s, 2, %s' % (v(vT + 3), v(vLane), s(sT0)))
                A('ds_write_b32 %s, %s' % (v(vT + 3), v(vT + 2)))
                A('s_lshr_b32 %s, %s, 4' % (s(sT0), s(sM)))
                A('s_add_u32 %s, %s, %d' % (s(sT0), s(sT0), TS - 256))
                A('v_add_u32 %s, %s, %s' % (v(vT + 3), s(sT0), v(vSdw)))
                A('ds_write_b16 %s, %s' % (v(vT + 3), v(vT + 1)))
                A('v_cmp_eq_u32 vcc, 0, %s' % v(vFl))
                A('v_cndmask_b32 %s, 0, %s, vcc' % (v(vT + 4), v(vNon)))
                A('v_add_u32 %s, %d, %s' % (v(vT + 6), TN, v(vFl)))
                A('ds_write_b32 %s, %s' % (v(vT + 6), v(vT + 4)))
            else:
                pre = ['v_min3_u32 %s, %s, %s, %s' % (v(vT), v(vGa + 3), v(vGa + 7), v(vGa + 11)),
                       'v_max3_u32 %s, %s, %s, %s' % (v(vT + 1), v(vGa + 3), v(vGa + 7), v(vGa + 11)),
                       'v_min3_u32 %s, %s, %s, %s' % (v(vT), v(vT), v(vGa + 15), v(vGa + 19)),
                       'v_max3_u32 %s, %s, %s, %s' % (v(vT + 1), v(vT + 1), v(vGa + 15), v(vGa + 19)),
                       'v_min3_u32 %s, %s, %s, %s' % (v(vT), v(vT), v(vGa + 23), v(vGa + 27)),
                       'v_max3_u32 %s, %s, %s, %s' % (v(vT + 1), v(vT + 1), v(vGa + 23), v(vGa + 27)),
                       'v_min_u32 %s, %s, %s' % (v(vT), v(vT), v(vGa + 31)),
                       'v_max_u32 %s, %s, %s' % (v(vT + 1), v(vT + 1), v(vGa + 31)),
                       'v_cmp_eq_u32 vcc, %s, %s' % (v(vT), v(vT + 1)),
                       'v_cndmask_b32 %s, 0, %s, vcc' % (v(vT), v(vT))]
                poll(A, 'LCS', gal, vT, None, pre=pre)
                for st_ in (16, 8, 4):
                    for r in range(st_):
                        if r & 3 != 3:
                            A('v_add_f32 %s, %s, %s' % (v(vGa + r), v(vGa + r), v(vGa + st_ + r)))
                for u in range(3):
                    A('v_mov_b32 %s, %s' % (v(vGa + 4 + u), v(vGa + u)))
                for u in range(3):
                    A('v_permlane32_swap_b32 %s, %s' % (v(vGa + u), v(vGa + 4 + u)))
                for u in range(3):
                    A('v_add_f32 %s, %s, %s' % (v(vGa + u), v(vGa + u), v(vGa + 4 + u)))
                A('s_mul_i32 %s, %s, 768' % (s(sT0), s(sJ)))
                A('s_add_u32 %s, %s, %d' % (s(sT0), s(sT0), TA))
                A('v_lshl_add_u32 %s, %s, 1, %s' % (v(vT), v(vFl), s(sT0)))
                for u in range(3):
                    p = vGa + 8 + 2 * u
                    A('v_cvt_pk_bf16_f32 %s, %s, %s' % (v(p), v(vGa + u), v(vGa + u)))
                    A('v_lshlrev_b32 %s, 16, %s' % (v(p), v(p)))
                    A('v_sub_f32 %s, %s, %s' % (v(p), v(vGa + u), v(p)))
                    A('v_cvt_pk_bf16_f32 %s, %s, %s' % (v(p), v(vGa + u), v(p)))
                    A('v_mov_b32 %s, %s' % (v(p + 1), v(vB1 + u)))
                    A('ds_write_b64 %s, %s offset:%d' % (v(vT), v(p, 2), 256 * u))
        PS = {0: {4: ('p1', ''), 5: ('p2 p3 p4 p5', ''), 6: ('p6 p7 u0', ''), 7: ('', 'u1')},
              1: {4: ('', 'p1'), 5: ('', 'p2 p3'), 6: ('', 'p4 p5 p6 p7'), 7: ('', 'u0')},
              2: {7: ('', 'p1 p2 p3 p4 p5 p6 p7')},
              3: {4: ('', 'p1'), 5: ('', 'p2 p3 p4 p5'), 6: ('', 'p6 p7 u0'), 7: ('u1', '')},
              4: {4: ('', 'p1'), 5: ('', 'p2 p3 p4 p5'), 6: ('', 'p6 p7'), 7: ('u0', '')},
              5: {6: ('', 'p1 p2 p3 p4'), 7: ('p5 p6 p7', '')},
              6: {4: ('', 'p1'), 5: ('', 'p2 p3 p4 p5'), 6: ('', 'p6 p7'), 7: ('u0', 'u1')},
              7: {8: ('p1 p2 p3 p4 p5 p6 p7', '')},
              8: {6: ('', 'p1'), 7: ('p2', ''), 8: ('p3 p4 p5 p6 p7', '')},
              9: {6: ('', 'p1 p2'), 7: ('', 'p3'), 8: ('p4 p5 p6 p7', '')},
              10: {5: ('', 'p1'), 6: ('', 'p2'), 7: ('p3', 'p4'), 8: ('p5 p6 p7', '')},
              11: {7: ('p1 p2', ''), 8: ('p3 p4 p5 p6 p7', '')},
              12: {7: ('p1 p2 p3 p4', ''), 8: ('p5 p6 p7', '')},
              13: {7: ('p1 p2 p3 p4 p5 p6 p7', '')},
              14: {6: ('', 'p1 p2 p3'), 7: ('p4 p5', ''), 8: ('p6 p7', '')},
              15: {6: ('p1 p2', ''), 7: ('p3 p4', ''), 8: ('p5 p6 p7', '')}}[OPT['ps']]
        nw2 = 0
        def extra(spec):
            n = 0
            for it in spec.split():
                emit(A, grp_p3(int(it[1:])) if it[0] == 'p' else grp_w2(int(it[1:])))
                n += it[0] == 'u'
            return n
        for iv in range(8):
            pre_, post_ = PS.get(iv, ('', ''))
            if iv == 5 and OPT['si'] == 5:
                small()
            if iv == GI:
                gather()
            if iv < 5:
                issue(SCHED[iv + 1], iv)
            if iv == 0 and k == 'A' and OPT['rm']:
                A('s_waitcnt lgkmcnt(0)')
            if iv == 1 and k == 'A' and OPT['rm']:
                colsum()
            if iv == OPT['si'] and iv < 5:
                small()
            if iv == OPT['wi'] and OPT['warm'] == 2:
                lwarm()
            if iv == 3:
                prep_kv()
            if iv == 5:
                prep2()
            nw2 += extra(pre_)
            if iv == 7:
                tables()
                stamp(A, 5, 3)
                nw2 += extra(post_)
                stamp(A, 6, 3)
            if iv < 7:
                A.wait_vm('s%d' % (iv + 1))
                nw2 += extra(post_)
                bar(iv + 1)
        A('s_waitcnt lgkmcnt(0)')
        A.lg = []
        if k == 'A':
            vmA = list(A.vm)
            A.branch('s_branch L_JOIN')
    A.label('L_JOIN')
    vmB = list(A.vm)
    if vmA != vmB:
        assert vmA[-len(vmB):] == vmB or vmB[-len(vmA):] == vmA or not vmA or not vmB, (vmA, vmB)
        A.vm = list(vmA if len(vmA) > len(vmB) else vmB)
    A('s_barrier')
    stamp(A, 3)
    if not OPT['xp']:
        nw2 += extra(PS.get(8, ('', ''))[0])
    vAcc, vW, vR = 0, 64, 176
    def wread(slot, lds, tag):
        base, off = (vA0, lds) if lds < L_W else (vB0, lds - L_W)
        return [('ds_read_b64_tr_b16 %s, %s offset:%d' % (v(vW + 16 * slot + 8 * c + 4 * nt + 2 * hh, 2), v(base + nt), off + 2048 * c + 1024 * hh), tag)
                for c in range(2) for nt in range(2) for hh in range(2)]
    sFl, sAct = sA, sB
    vFv, vLa, vLt = 250, 251, 240
    fload = 'buffer_load_dword %s, %s, %s, %s offen sc1' % (v(vFv), v(vFl), s(SWS, 4), s(sFl))
    RB = [vR + 16 * ((i + 2) & 3) for i in range(11)]
    def alist(i):
        m, c = UL[i]
        L = ['s_add_u32 %s, %s, %d' % (s(sT1), s(sO[4] if m == 8 else sO[5]), c * 4096)]
        for q in range(4):
            L.append(('buffer_load_dwordx4 %s, %s, %s, %s offen offset:%d sc1' % (v(RB[i] + 4 * q, 4), v(vL16), s(SWS, 4), s(sT1), 1024 * q), 'a%d' % i))
        return L
    def aload(i):
        emit(A, alist(i))
    def lflag(val):
        A('v_mov_b32 %s, %d' % (v(vFw + 1), val))
        A('ds_write_b32 %s, %s' % (v(vFw), v(vFw + 1)))
    A('s_cmp_eq_u32 %s, 1' % s(sTyp))
    A.branch('s_cbranch_scc1 LX_START')
    vm8 = list(A.vm)
    for X in (0, 1):
        if X:
            A.label('LX_START')
            A.vm = list(vm8); A.lg = []
        XS = X and OPT['xs']
        UP = UPX if X and not XS else UPY
        WIN = XS if XS else 2 if X else OPT['win']
        nx = [nw2]
        TRS = ['u%d' % i for i in range(7)] + (['w2', 'u7', 'w0', 'w1', 'w3'] if X and not XS else ['w0', 'w1', 'w3', 'u7', 'w2'])
        def wo(i):
            L = ['s_lshl_b32 %s, %s, 17' % (s(sO[0]), s(sJ))]
            if i:
                L.append('s_add_u32 %s, %s, %d' % (s(sO[0]), s(sO[0]), i * 32768))
            return L + quad((v2o, v2o), SWO, 32768 + 16384 * (i & 1) + 65536 * (i >> 1), 'w%d' % i)
        cap = [11 if X else 11 - OPT['yd']]
        XP_ = {}
        if OPT['xp']:
            assert OPT['ps'] == 7
            if X:
                XP_ = {1: {1: 'p1 p2 p3', 2: 'p4 p5', 3: 'p6 p7'}, 2: {1: 'p1 p2', 2: 'p3 p4', 3: 'p5 p6', 4: 'p7'},
                       3: {1: 'p1 p2 p3 p4', 2: 'p5 p6 p7'}}[OPT['xp']]
            else:
                extra(PS[8][0])
        sKf, sK = (SB, [SB + 1, SB + 2, SB + 3, 6, 7]) if OPT['yd'] or OPT['ke'] else (sO[0], [sO[1], sO[2], sO[3], 6, 7])
        kfl = 'buffer_load_dword %s, %s, %s, %s offen sc1' % (v(vKf), v(vFl), s(SWS, 4), s(sKf))
        def kaddr():
            A('s_lshl_b32 %s, %s, 2' % (s(sT0), s(sGq)))
            A('s_add_u32 %s, %s, %s' % (s(sT0), s(sT0), s(sJ)))
            A('s_lshl_b32 %s, %s, 7' % (s(sKf), s(sT0)))
            A('s_add_u32 %s, %s, 0x%x' % (s(sKf), s(sKf), WS_KF))
            if not OPT['ke']:
                A(kfl, tag='kf')
            A('s_mul_i32 %s, %s, %d' % (s(sT0), s(sT0), 2 * KVS))
            for i_, o_ in enumerate((0, KVS, 4096, KVS + 4096, 8192)):
                A('s_add_u32 %s, %s, 0x%x' % (s(sK[i_]), s(sT0), WS_KVP + o_))
        def w2_upto(n):
            while nx[0] <= min(n, cap[0]):
                k = TRS[nx[0]]
                emit(A, grp_w2(int(k[1:]), UP) if k[0] == 'u' else wo(int(k[1:])))
                if nx[0] == OPT['fa']:
                    A(fload, tag='fl')
                if not X and OPT['ke'] and nx[0] == OPT['ke']:
                    A(kfl, tag='kf')
                extra(XP_.get(nx[0], ''))
                nx[0] += 1
        def gate(i, mask):
            A.wait_vm('fl')
            poll(A, 'LA%d%d' % (X, i), fload, vFv, mask)
        def unit(i):
            A.wait_vm('a%d' % i)
            if i in (0, 3):
                stamp(A, {0: 1, 3: 2}[i], 6)
            if i in (4, 7, 8, 10):
                stamp(A, {4: 2, 7: 3, 8: 4, 10: 5}[i], 7)
            if i >= 7:
                A.wait_lg('b%d' % i)
            wb = vW + 16 * (i % 7)
            for c in range(2):
                for nt in range(2):
                    for rt in range(2):
                        acc = vAcc + 16 * (2 * nt + rt)
                        A('v_mfma_f32_32x32x16_bf16 %s, %s, %s, %s' % (v(acc, 16), v(wb + 8 * c + 4 * nt, 4), v(RB[i] + 8 * c + 4 * rt, 4), '0' if (i == 0 and c == 0) else v(acc, 16)))
        w2_upto(OPT['xs0'] if XS else WIN - 1 - (0 if X else OPT['wl']))
        A('s_lshl_b32 %s, %s, 3' % (s(sFl), s(sRb2)))
        A('s_add_u32 %s, %s, %s' % (s(sFl), s(sFl), s(sJ)))
        A('s_lshl_b32 %s, %s, 7' % (s(sFl), s(sFl)))
        A('s_add_u32 %s, %s, 0x%x' % (s(sFl), s(sFl), WS_F))
        A('s_mul_i32 %s, %s, %d' % (s(sAct), s(sRb2), NU * 4096))
        A('s_lshl_b32 %s, %s, 15' % (s(sO[4]), s(sJ)))
        A('s_add_u32 %s, %s, %s' % (s(sO[4]), s(sO[4]), s(sAct)))
        A('s_mul_i32 %s, %s, %d' % (s(sO[5]), s(sJ), 3 * 4096))
        A('s_add_u32 %s, %s, %s' % (s(sO[5]), s(sO[5]), s(sAct)))
        if not XP_:
            A.wait_vm('p3')
            A('ds_write_b32 %s, %s' % (v(vFw), v(vFw + 1)))
        if not X:
            w2_upto(WIN - 1)
            if OPT['ke']:
                kaddr()
        for i in range(7):
            if XS and i == OPT['xs0'] + 1:
                A('v_mov_b32 %s, %d' % (v(vLa), FL_KV))
                lds_wait(A, 'LXK', v(vLa), 4, 1, vLt)
                w2_upto(i - 1 + WIN)
            if XP_ and i == max(XP_) + 1:
                A.wait_vm('p3')
                A('ds_write_b32 %s, %s' % (v(vFw), v(vFw + 1)))
            A.wait_vm('u%d' % i)
            emit(A, wread(i, UP[i], 'm'))
            A.wait_lg(None)
            if not XS or i > OPT['xs0']:
                w2_upto(i + WIN)
        if X and not XS:
            A('v_mov_b32 %s, %d' % (v(vLa), FL_KV))
            lds_wait(A, 'LXK', v(vLa), 4, 1, vLt)
            w2_upto(11)
        for i in range(7, 12):
            if nx[0] <= cap[0]:
                A.wait_vm(TRS[i])
                w2_upto(i + WIN)
        stamp(A, 8)
        stamp(A, 3, 6)
        LA, LB, L8 = (OPT['lax'], OPT['lbx'], OPT['l8x']) if X else (OPT['la'], OPT['lb'], OPT['l8'])
        def late():
            A('v_mov_b32 %s, %d' % (v(vLa), FL_PB))
            lds_wait(A, 'LPB%d' % X, v(vLa), 4, 2, vLt)
            for i in range(8, 11):
                emit(A, grp_w2(i, UP))
        def lread():
            A.wait_vm('u10')
            for i in range(8, 11):
                emit(A, wread(i - 7, UP[i], 'b%d' % i))
        if not X and not OPT['ke']:
            kaddr()
        elif not X and OPT['ke'] > 11:
            A(kfl, tag='kf')
        def gate_a():
            gate(0, '0xf')
            stamp(A, 4)
            for i in range(LA if X else 2):
                aload(i)
        if X or not OPT['ka']:
            gate_a()
        elif OPT['ka'] >= 2:
            A(fload, tag='fl')
        if not X:
            vK, vZ, vD = 0, 176, 180
            KL = [('buffer_load_dwordx4 %s, %s, %s, %s offen sc1' % (v(vZ, 4), v(vZo), s(SWS, 4), s(sK[4])), 'kz')]
            for i in range(16):
                c, q = i & 1, i >> 1
                KL.append(('buffer_load_dwordx4 %s, %s, %s, %s offen offset:%d sc1' % (v(vK + 4 * i, 4), v(vL16), s(SWS, 4), s(sK[c + 2 * (q >> 2)]), 1024 * (q & 3)), 'k%d' % i))
            pre = []
            if OPT['kpf'] == 1:
                emit(A, KL)
            if OPT['kpf'] >= 2:
                A('s_and_b32 %s, %s, 1' % (s(sT0), s(sRb)))
                A('s_mul_i32 %s, %s, %d' % (s(sT0), s(sT0), KVS))
                if OPT['kpf'] == 3:
                    A('s_lshl_b32 %s, %s, 11' % (s(sT1), s(sRb)))
                    A('s_and_b32 %s, %s, 4096' % (s(sT1), s(sT1)))
                    A('s_add_u32 %s, %s, %s' % (s(sT0), s(sT0), s(sT1)))
                    A('v_lshl_add_u32 %s, %s, 5, %s' % (v(vK), v(vFl), s(sT0)))
                else:
                    A('v_lshl_add_u32 %s, %s, 7, %s' % (v(vK), v(vLane), s(sT0)))
                pre = ['buffer_load_dword %s, %s, %s, %s offen sc1' % (v(vK + 1), v(vK), s(SWS, 4), s(sK[0]))]
                emit(A, pre)
            A.wait_vm('kf')
            poll(A, 'LK', [kfl] + pre + ([fload] if OPT['ka'] else []), vKf, '0xffff')
            stamp(A, 1, 2)
            emit(A, KL)
            if OPT['ka']:
                gate_a()
            if OPT['yw'] == 0:
                cap[0] = 11
                w2_upto(11)
            A.raw('VK_B:')
            A.wait_vm('kz')
            A('v_mfma_f32_16x16x32_bf16 %s, %s, %s, 0' % (v(vD + 8, 4), v(vSg, 4), v(vZ, 4)))
            zl = []
            for ctl in ('quad_perm:[1,0,3,2]', 'quad_perm:[2,3,0,1]', 'row_half_mirror'):
                for r in range(4):
                    zl.append('v_add_f32_dpp %s, %s, %s %s row_mask:0xf bank_mask:0xf' % (v(vD + 8 + r), v(vD + 8 + r), v(vD + 8 + r), ctl))
            zl.append('v_cvt_pk_bf16_f32 %s, %s, %s' % (v(vD + 8), v(vD + 8), v(vD + 9)))
            zl.append('v_cvt_pk_bf16_f32 %s, %s, %s' % (v(vD + 9), v(vD + 10), v(vD + 11)))
            zl.append('ds_write_b64 %s, %s offset:256' % (v(vKw + 1), v(vD + 8, 2)))
            for i in range(16):
                A.wait_vm('k%d' % i)
                d = vD + 4 * (i & 1)
                A('v_mfma_f32_16x16x32_bf16 %s, %s, %s, %s' % (v(d, 4), v(vSg, 4), v(vK + 4 * i, 4), '0' if i < 2 else v(d, 4)))
                if i & 1:
                    A('v_max3_u32 %s, %s, %s, %s' % (v(vKf), v(vZ if i == 1 else vKf), v(vK + 4 * i - 4), v(vK + 4 * i)))
                if i >= 4:
                    emit(A, zl[:2]); zl = zl[2:]
            vcheck(A, 'VK', [vKf], vKf, KL, back='VK_B')
            for c in range(2):
                d = vD + 4 * c
                A('v_cvt_pk_bf16_f32 %s, %s, %s' % (v(d), v(d), v(d + 1)))
                A('v_cvt_pk_bf16_f32 %s, %s, %s' % (v(d + 1), v(d + 2), v(d + 3)))
                A('ds_write_b64 %s, %s offset:%d' % (v(vKw), v(d, 2), 544 * c))
            A('ds_write_b32 %s, %s offset:%d' % (v(vFw), v(vFw + 1), FL_KV - FL_P3))
            stamp(A, 3, 2)
            cap[0] = 11
            w2_upto(11)
            if OPT['bq'] == 3:
                A('v_mov_b32 %s, %d' % (v(vLa), FL_EX))
                lds_wait(A, 'LYK', v(vLa), 4, 1, vLt)
            if OPT['roll']:
                A(fload, tag='fl')
            for i in range(2, 4 if OPT['roll'] else LA):
                aload(i)
            if OPT['bq'] == 4:
                A('v_mov_b32 %s, %d' % (v(vLa), FL_EX))
                lds_wait(A, 'LYK', v(vLa), 4, 1, vLt)
        if X and OPT['xh']:
            A('v_mov_b32 %s, %d' % (v(vLa), FL_PB))
            lds_wait(A, 'LXH', v(vLa), 4, 2, vLt)
        if OPT['roll']:
            assert not X or LA == 4
            seq = {1: 'U0 W U1 B a4 a5 F L U2 a6 U3 a7 U4 C a8 R U5 a9 U6 a10 x U7 U8 U9 U10',
                   2: 'L U0 W U1 B a4 a5 F U2 a6 U3 a7 R U4 C a8 U5 a9 U6 a10 x U7 U8 U9 U10',
                   3: 'U0 W U1 B a4 a5 U2 a6 F U3 a7 L U4 U5 C a8 a9 U6 a10 R x U7 U8 U9 U10',
                   5: 'L U0 U1 B a4 a5 F U2 a6 W U3 a7 R U4 C a8 U5 a9 U6 a10 x U7 U8 U9 U10',
                   6: 'U0 U1 B a4 a5 F L U2 a6 W U3 a7 U4 C a8 R U5 a9 U6 a10 x U7 U8 U9 U10',
                   4: 'U0 W B a4 U1 a5 F L U2 a6 U3 a7 U4 C a8 R U5 a9 U6 a10 x U7 U8 U9 U10'}[OPT['rollx'] if X else OPT['roll']]
            if X:
                A(fload, tag='fl')
            for it in seq.split():
                if it == 'U10' and OPT['lnf'] >= 2:
                    A.wait_vm('a10')
                    stamp(A, 5, 7)
                    A.wait_lg('b10')
                    for n in range(4 + OPT['lnd']):
                        if n < 4:
                            for c in range(2):
                                acc = vAcc + 16 * n
                                A('v_mfma_f32_32x32x16_bf16 %s, %s, %s, %s' % (v(acc, 16), v(vW + 48 + 8 * c + 4 * (n >> 1), 4), v(RB[10] + 8 * c + 4 * (n & 1), 4), v(acc, 16)))
                        if n == 3:
                            stamp(A, 6)
                        if n >= OPT['lnd']:
                            emit(A, wr[4 * (n - OPT['lnd']):4 * (n - OPT['lnd']) + 4])
                    A.branch('s_branch F_START')
                elif it[0] == 'U':
                    unit(int(it[1:]))
                    if it == 'U8' and OPT['lnf'] >= 2:
                        A('s_lshl_b32 %s, %s, 1' % (s(sT0), s(sM)))
                        wr = reduce_write(A, vAcc, 64, sT0)
                    if it == 'U3':
                        stamp(A, 5)
                elif it[0] == 'a':
                    aload(int(it[1:]))
                elif it == 'W':
                    A.wait_vm('w2')
                    lflag(3)
                    emit(A, wread(0, UP[7], 'b7'))
                elif it == 'B':
                    stamp(A, 2, 2)
                    gate(4, '0xff')
                    stamp(A, 8, 2)
                    stamp(A, 1, 7)
                elif it == 'C':
                    gate(8, '0x3f00')
                    stamp(A, 4, 2)
                    stamp(A, 8, 7)
                elif it == 'F':
                    A(fload, tag='fl')
                elif it == 'L':
                    late()
                elif it == 'R':
                    lread()
                elif it == 'x':
                    xres(A, 240, 244)
            if not X and OPT['lnf'] < 2:
                A.branch('s_branch L_RED')
            continue
        for i in range(4):
            unit(i)
            if i + LA < 4:
                aload(i + LA)
            if i == (OPT['yf'] if OPT['yd'] and not X else 0):
                A.wait_vm('w2')
                lflag(3)
                emit(A, wread(0, UP[7], 'b7'))
            if i == 2:
                A(fload, tag='fl')
        stamp(A, 5)
        if L8 == 0:
            late()
        if not X and OPT['bq'] == 2:
            A('v_mov_b32 %s, %d' % (v(vLa), FL_EX))
            lds_wait(A, 'LYK', v(vLa), 4, 1, vLt)
        stamp(A, 2, 2)
        gate(4, '0xff')
        stamp(A, 8, 2)
        stamp(A, 8, 6)
        stamp(A, 1, 7)
        for i in range(4, 4 + LB):
            aload(i)
        for i in range(4, 8):
            unit(i)
            if i + LB < 8:
                aload(i + LB)
            if i == 4 and L8 == 0:
                lread()
            if i == max(4, 8 - LB) and L8 == 1:
                late()
            if i == 6:
                A(fload, tag='fl')
        if L8 == 2:
            late()
            A(fload, tag='fl')
        gate(8, '0x3f00')
        stamp(A, 4, 2)
        stamp(A, 8, 7)
        for i in range(8, 11):
            aload(i)
        if L8:
            lread()
        xres(A, 240, 244)
        for i in range(8, 11):
            unit(i)
        if not X:
            A.branch('s_branch L_RED')
    if OPT['lnf'] >= 2:
        return
    A.label('L_RED')
    stamp(A, 6)
    A('s_lshl_b32 %s, %s, 1' % (s(sT0), s(sM)))
    wr = reduce_write(A, vAcc, 64, sT0)
    A('s_mov_b32 %s, 0x%x' % (s(sO[0]), LN2))
    A('s_mov_b32 %s, 0x%x' % (s(sO[1]), LN2))
    for n, w in enumerate(wr):
        r = vAcc + 4 * n
        if not OPT['lnf']:
            A('v_pk_mul_f32 %s, %s, %s' % (v(r, 2), v(r, 2), s(sO[0], 2)))
            A('v_pk_mul_f32 %s, %s, %s' % (v(r + 2, 2), v(r + 2, 2), s(sO[0], 2)))
        A(w)
    A.branch('s_branch F_START')

def gen_compute(A):
    A.label('C_START')
    A.vm = []; A.lg = []
    vX = 0
    def ACC(u, r): return 128 + 32 * u + 16 * r
    vWf, vXf = 192, 216
    vXo, vXt = 228, 232
    vPw, vVw, vPr, vVr, vSt, vPo, vF2 = 236, 237, 238, 239, 240, 241, 242
    vR0 = 236
    vWa, vTa, vTb, vTr, vPa, vFo, vWm, vNon = 244, 245, 246, 247, 248, 249, 250, 252
    vR = [232, 234]
    vT = 0
    sCh, sRg, sP2 = sA, sB, sM
    sL2, sHO = 52, 54
    A('s_and_b32 %s, %s, 1' % (s(sCh), s(sJ)))
    A('s_lshr_b32 %s, %s, 1' % (s(sRg), s(sJ)))
    A('s_lshl_b32 %s, %s, 1' % (s(sP2), s(sRb)))
    A('s_add_u32 %s, %s, %s' % (s(sP2), s(sP2), s(sRg)))
    A('s_mov_b32 %s, 0x%x' % (s(sL2), LOG2E))
    A('s_mov_b32 %s, 0x%x' % (s(sL2 + 1), LOG2E))
    A('s_mov_b32 %s, 0.5' % s(sHO))
    A('s_mov_b32 %s, 1.0' % s(sHO + 1))
    A('v_mov_b32 %s, 0x%x' % (v(vT), OOB))
    A('v_cmp_eq_u32 vcc, 0, %s' % v(vLane))
    A('v_cndmask_b32 %s, %s, 0, vcc' % (v(vFo), v(vT)))
    tr_addr(A, vWa, vT, 8, s(sCh))
    A('v_add_u32 %s, %d, %s' % (v(vWa), L_W, v(vWa)))
    A('v_lshrrev_b32 %s, 5, %s' % (v(vT), v(vLane)))
    A('v_and_b32 %s, 31, %s' % (v(vT + 1), v(vLane)))
    A('v_bfe_u32 %s, %s, 1, 3' % (v(vT + 2), v(vLane)))
    A('v_xor_b32 %s, %s, %s' % (v(vT + 2), v(vT + 2), v(vT)))
    A('v_lshlrev_b32 %s, 4, %s' % (v(vT + 2), v(vT + 2)))
    A('v_lshl_add_u32 %s, %s, 7, %s' % (v(vT + 2), v(vT + 1), v(vT + 2)))
    A('s_lshl_b32 %s, %s, 12' % (s(sT0), s(sJ)))
    A('v_add_u32 %s, %s, %s' % (v(vXo), s(sT0), v(vT + 2)))
    for tt in range(1, 4):
        A('v_xor_b32 %s, %d, %s' % (v(vXo + tt), 32 * tt, v(vXo)))
    for tt in range(4):
        A('v_xor_b32 %s, 0x1000, %s' % (v(vXt + tt), v(vXo + tt)))
    A('v_lshlrev_b32 %s, 3, %s' % (v(vT + 2), v(vT + 1)))
    A('v_lshl_add_u32 %s, %s, 2, %s' % (v(vT + 2), v(vT), v(vT + 2)))
    A('v_add_u32 %s, %d, %s' % (v(vTa), TA, v(vT + 2)))
    A('s_lshl_b32 %s, %s, 8' % (s(sT0), s(sJ)))
    A('s_add_u32 %s, %s, %d' % (s(sT0), s(sT0), TB))
    A('v_add_u32 %s, %s, %s' % (v(vTb), s(sT0), v(vT + 2)))
    A('s_lshl_b32 %s, %s, 7' % (s(sT0), s(sJ)))
    A('s_add_u32 %s, %s, %d' % (s(sT0), s(sT0), TR))
    A('v_lshl_add_u32 %s, %s, 2, %s' % (v(vTr), v(vT + 1), s(sT0)))
    A('v_bfe_u32 %s, %s, 2, 2' % (v(vT + 2), v(vLane)))
    A('v_lshl_add_u32 %s, %s, 2, %s' % (v(vT + 2), v(vT), v(vT + 2)))
    A('v_bfe_u32 %s, %s, 4, 1' % (v(vT + 3), v(vLane)))
    A('v_bfe_u32 %s, %s, 1, 1' % (v(vT + 4), v(vLane)))
    A('v_lshl_add_u32 %s, %s, 1, %s' % (v(vT + 4), v(vT + 3), v(vT + 4)))
    A('v_lshlrev_b32 %s, 3, %s' % (v(vT + 4), v(vT + 4)))
    A('v_lshl_add_u32 %s, %s, 5, %s' % (v(vPa), v(vT + 2), v(vT + 4)))
    A('s_and_b32 %s, %s, %s' % (s(sT0), s(sCh), s(sTyp)))
    A('s_lshl_b32 %s, %s, 10' % (s(sT0), s(sT0)))
    A('s_add_u32 %s, %s, %d' % (s(sT0), s(sT0), TPH))
    A('v_add_u32 %s, %s, %s' % (v(vPa), s(sT0), v(vPa)))
    A('v_and_b32 %s, 1, %s' % (v(vT + 2), v(vLane)))
    A('v_bfe_u32 %s, %s, 2, 1' % (v(vT + 3), v(vLane)))
    A('v_xor_b32 %s, %s, %s' % (v(vT + 4), v(vT + 3), v(vT)))
    A('v_lshl_or_b32 %s, %s, 1, %s' % (v(vT + 4), v(vT + 4), v(vT + 2)))
    A('v_bfe_u32 %s, %s, 1, 1' % (v(vT + 5), v(vLane)))
    A('v_lshl_or_b32 %s, %s, 2, %s' % (v(vT + 4), v(vT + 5), v(vT + 4)))
    A('v_lshlrev_b32 %s, 4, %s' % (v(vT + 4), v(vT + 4)))
    A('v_lshl_add_u32 %s, %s, 7, %s' % (v(vT + 4), v(vT + 1), v(vT + 4)))
    A('s_lshl_b32 %s, %s, 16' % (s(sT1), s(sCh)))
    A('s_add_u32 %s, %s, %d' % (s(sT1), s(sT1), PH0))
    A('s_lshl_b32 %s, %s, 12' % (s(sT0), s(sJ)))
    A('s_add_u32 %s, %s, %s' % (s(sT0), s(sT0), s(sT1)))
    A('v_add_u32 %s, %s, %s' % (v(vPw), s(sT0), v(vT + 4)))
    A('v_bfe_u32 %s, %s, 4, 1' % (v(vT + 4), v(vLane)))
    A('v_xor_b32 %s, %s, %s' % (v(vT + 4), v(vT + 4), v(vT + 3)))
    A('v_xor_b32 %s, %s, %s' % (v(vT + 2), v(vT + 2), v(vT)))
    A('v_lshl_or_b32 %s, %s, 1, %s' % (v(vT + 4), v(vT + 2), v(vT + 4)))
    A('v_bfe_u32 %s, %s, 3, 1' % (v(vT + 2), v(vLane)))
    A('v_xor_b32 %s, %s, %s' % (v(vT + 2), s(sRg), v(vT + 2)))
    A('v_lshl_or_b32 %s, %s, 2, %s' % (v(vT + 4), v(vT + 2), v(vT + 4)))
    A('v_lshl_or_b32 %s, %s, 1, %s' % (v(vT + 4), v(vT + 4), v(vT + 5)))
    A('v_lshlrev_b32 %s, 3, %s' % (v(vT + 4), v(vT + 4)))
    A('v_bfe_u32 %s, %s, 2, 2' % (v(vT + 2), v(vLane)))
    A('v_lshl_add_u32 %s, %s, 2, %s' % (v(vT + 2), v(vT), v(vT + 2)))
    A('v_lshl_add_u32 %s, %s, 7, %s' % (v(vT + 4), v(vT + 2), v(vT + 4)))
    A('s_lshl_b32 %s, %s, 13' % (s(sT0), s(sRg)))
    A('s_add_u32 %s, %s, %s' % (s(sT0), s(sT0), s(sT1)))
    A('v_add_u32 %s, %s, %s' % (v(vPr), s(sT0), v(vT + 4)))
    A('s_lshl_b32 %s, %s, 13' % (s(sT1), s(sCh)))
    A('s_add_u32 %s, %s, %d' % (s(sT1), s(sT1), VB))
    A('s_lshl_b32 %s, %s, 11' % (s(sT0), s(sJ)))
    A('s_add_u32 %s, %s, %s' % (s(sT0), s(sT0), s(sT1)))
    A('v_add_u32 %s, %s, %s' % (v(vVw), s(sT0), v(vL16)))
    A('s_mul_i32 %s, %s, %d' % (s(sT0), s(sRg), 4096 + 256))
    A('s_add_u32 %s, %s, %s' % (s(sT0), s(sT0), s(sT1)))
    A('v_add_u32 %s, %s, %s' % (v(vT + 2), s(sT0), v(vL16)))
    A('s_lshl_b32 %s, %s, 7' % (s(sT0), s(sRg)))
    A('s_add_u32 %s, %s, %d' % (s(sT0), s(sT0), TS))
    A('v_lshl_add_u32 %s, %s, 4, %s' % (v(vT + 3), v(vT), s(sT0)))
    A('v_cmp_gt_u32 vcc, 16, %s' % v(vT + 1))
    A('v_cndmask_b32 %s, %s, %s, vcc' % (v(vVr), v(vT + 3), v(vT + 2)))
    A('v_mov_b32 %s, 1024' % v(vT + 2))
    A('v_cndmask_b32 %s, 32, %s, vcc' % (v(vSt), v(vT + 2)))
    A('v_lshl_add_u32 %s, %s, 4, %s' % (v(vT + 2), v(vT), v(vT + 1)))
    A('s_lshl_b32 %s, %s, 9' % (s(sT0), s(sRb)))
    A('v_lshl_add_u32 %s, %s, 4, %s' % (v(vT + 2), v(vT + 2), s(sT0)))
    A('v_mov_b32 %s, 0x%x' % (v(vT + 4), OOB))
    A('v_cndmask_b32 %s, %s, %s, vcc' % (v(vPo), v(vT + 4), v(vT + 2)))
    A('s_lshl_b32 %s, %s, 5' % (s(sT0), s(sRb)))
    A('s_add_u32 %s, %s, 8192' % (s(sT0), s(sT0)))
    A('v_lshl_add_u32 %s, %s, 4, %s' % (v(vT + 2), v(vT), s(sT0)))
    A('v_cmp_eq_u32 vcc, 16, %s' % v(vT + 1))
    A('v_cndmask_b32 %s, %s, %s, vcc' % (v(vPo), v(vPo), v(vT + 2)))
    A('s_lshl_b32 %s, %s, 1' % (s(sT0), s(sG)))
    A('v_add_u32 %s, %s, %s' % (v(vT + 2), s(sT0), v(vLane)))
    A('v_mul_u32_u24 %s, 43, %s' % (v(vT + 3), v(vT + 2)))
    A('v_lshrrev_b32 %s, 7, %s' % (v(vT + 3), v(vT + 3)))
    A('v_mul_u32_u24 %s, %d, %s' % (v(vT + 3), 128 - 24, v(vT + 3)))
    A('v_lshl_add_u32 %s, %s, 3, %s' % (v(vT + 2), v(vT + 2), v(vT + 3)))
    A('v_cmp_gt_u32 vcc, 2, %s' % v(vLane))
    A('v_cndmask_b32 %s, %s, %s, vcc' % (v(vF2), v(vT + 4), v(vT + 2)))
    if OPT['warm'] == 1:
        A('v_lshrrev_b32 %s, 2, %s' % (v(vT + 2), v(vT + 1)))
        A('v_and_b32 %s, 3, %s' % (v(vT + 3), v(vLane)))
        A('v_lshlrev_b32 %s, 2, %s' % (v(vT + 3), v(vT + 3)))
        A('v_lshl_add_u32 %s, %s, 7, %s' % (v(vT + 2), v(vT + 2), v(vT + 3)))
        A('v_lshl_add_u32 %s, %s, 15, %s' % (v(vT + 2), v(vT), v(vT + 2)))
        A('s_lshr_b32 %s, s2, 3' % s(sT0))
        if OPT['wx']:
            A('s_andn2_b32 %s, %s, 8' % (s(sT0), s(sT0)))
        A('s_lshl_b32 %s, %s, 10' % (s(sT0), s(sT0)))
        if OPT['m2']:
            A('v_bfe_u32 %s, %s, 2, %d' % (v(vT + 2), v(vLane), 3 - OPT['m2']))
            A('v_lshl_add_u32 %s, %s, 7, %s' % (v(vT + 2), v(vT + 2), v(vT + 3)))
            A('v_lshrrev_b32 %s, %d, %s' % (v(vT + 3), 5 - OPT['m2'], v(vLane)))
            A('v_lshl_add_u32 %s, %s, 15, %s' % (v(vT + 2), v(vT + 3), v(vT + 2)))
            A('s_and_b32 %s, %s, %d' % (s(sT1), s(sCb), 2 + 2 * OPT['m2']))
            A('s_lshl_b32 %s, %s, 7' % (s(sT1), s(sT1)))
            A('s_add_u32 %s, %s, %s' % (s(sT0), s(sT0), s(sT1)))
        A('v_add_u32 %s, %s, %s' % (v(vWm), s(sT0), v(vT + 2)))
        A('s_lshl_b32 %s, %s, 18' % (s(sO[3]), s(sJ)))
        A('s_mul_i32 %s, %s, %d' % (s(sO[4]), s(sJ), 3 * 32768))
        A('s_lshl_b32 %s, %s, 17' % (s(sO[5]), s(sJ)))
    A('s_mul_i32 %s, %s, 768' % (s(sO[2]), s(sCh)))
    A('s_waitcnt lgkmcnt(0)')
    srd(A, SWS, 36, WS_SIZE)
    srd(A, SX, 16, 2048 * 1024)
    srd(A, SW2, 30, 1376 * 1024)
    srd(A, SWO, 22, 512 * 1024)
    if OPT['et']:
        A('s_lshl_b32 %s, s2, 2' % s(sT0))
        A('s_add_u32 %s, %s, %s' % (s(sT0), s(sT0), s(sJ)))
        A('s_mul_i32 %s, %s, %d' % (s(sT1), s(sT0), 11 * 128))
        A('s_lshl_b32 %s, %s, 9' % (s(sT0), s(sT0)))
        A('v_min_u32 %s, 10, %s' % (v(vT + 2), v(vLane)))
        A('v_lshlrev_b32 %s, 7, %s' % (v(vT + 2), v(vT + 2)))
        A('v_and_b32 %s, 0x180, %s' % (v(vT + 3), v(vT + 2)))
        A('buffer_load_dword %s, %s, %s, %s offen' % (v(vWm + 1), v(vT + 2), s(SW2, 4), s(sT1)))
        A('buffer_load_dword %s, %s, %s, %s offen' % (v(vWm + 1), v(vT + 3), s(SWO, 4), s(sT0)))
    stamp(A, 0)
    if OPT['prio']:
        A('s_setprio %d' % OPT['prio'])
    A('s_cmp_eq_u32 %s, 1' % s(sTyp))
    A.branch('s_cbranch_scc1 CX_START')

    def mfma(d, a_, b_, c):
        return 'v_mfma_f32_32x32x16_bf16 %s, %s, %s, %s' % (v(d, 16), v(a_, 4), v(b_, 4), v(d, 16) if c else '0')
    def frags(t):
        if t >= 32:
            return []
        st, k = divmod(t, 4)
        sl = st & 3
        tg = 'f%d' % t
        def wf(u):
            return [('ds_read_b64_tr_b16 %s, %s offset:%d' % (v(vWf + 8 * (t % 3) + 4 * u + 2 * hh, 2), v(vWa), 16384 * sl + 8192 * u + 2048 * k + 512 * hh), tg) for hh in range(2)]
        xf = [('ds_read_b128 %s, %s offset:%d' % (v(vX + 4 * t, 4), v(vXo + k), 16384 * sl), tg),
              ('ds_read_b128 %s, %s offset:%d' % (v(vXf + 4 * (t % 3), 4), v(vXt + k), 16384 * sl), tg)]
        return wf(0) + xf + wf(1)
    def softmax(D, P, M, rs=None, np_=0):
        L = []
        L.append('v_max3_f32 %s, %s, %s, %s' % (v(M), v(D), v(D + 1), v(D + 2)))
        L.append('v_max3_f32 %s, %s, %s, %s' % (v(M + 1), v(D + 3), v(D + 4), v(D + 5)))
        L.append('v_max3_f32 %s, %s, %s, %s' % (v(M + 2), v(D + 6), v(D + 7), v(D + 8)))
        L.append('v_max3_f32 %s, %s, %s, %s' % (v(M + 3), v(D + 9), v(D + 10), v(D + 11)))
        L.append('v_max3_f32 %s, %s, %s, %s' % (v(M), v(M), v(D + 12), v(D + 13)))
        L.append('v_max3_f32 %s, %s, %s, %s' % (v(M + 1), v(M + 1), v(D + 14), v(D + 15)))
        L.append('v_max3_f32 %s, %s, %s, %s' % (v(M), v(M), v(M + 1), v(M + 2)))
        L.append('v_max_f32 %s, %s, %s' % (v(M), v(M), v(M + 3)))
        L.append('v_mul_f32 %s, 0x%x, %s' % (v(M), LOG2E | 0x80000000, v(M)))
        for i in range(8):
            if np_ & 1:
                L += ['v_fma_f32 %s, %s, %s, %s' % (v(D + 2 * i + e), v(D + 2 * i + e), s(sL2), v(M)) for e in range(2)]
            else:
                L.append('v_pk_fma_f32 %s, %s, %s, %s op_sel_hi:[1,1,0]' % (v(D + 2 * i, 2), v(D + 2 * i, 2), s(sL2, 2), v(M, 2)))
        for i in range(16):
            L.append('v_exp_f32 %s, %s' % (v(D + i), v(D + i)))
        for d_, a_, b_ in ((M, D, D + 2), (M + 2, D + 4, D + 6), (M, M, D + 8), (M + 2, M + 2, D + 10), (M, M, D + 12), (M + 2, M + 2, D + 14), (M, M, M + 2)):
            if np_ & 2:
                L += ['v_add_f32 %s, %s, %s' % (v(d_ + e), v(a_ + e), v(b_ + e)) for e in range(2)]
            else:
                L.append('v_pk_add_f32 %s, %s, %s' % (v(d_, 2), v(a_, 2), v(b_, 2)))
        L.append('v_add_f32 %s, %s, %s' % (v(M), v(M), v(M + 1)))
        L.append('v_rcp_f32 %s, %s' % (v(M), v(M)))
        if rs is not None:
            L.append('v_mul_f32 %s, %s, %s' % (v(M), v(M), v(rs)))
        for i in range(8):
            if np_ & 4:
                L += ['v_mul_f32 %s, %s, %s' % (v(D + 2 * i + e), v(D + 2 * i + e), v(M)) for e in range(2)]
            else:
                L.append('v_pk_mul_f32 %s, %s, %s op_sel_hi:[1,0]' % (v(D + 2 * i, 2), v(D + 2 * i, 2), v(M, 2)))
        for i in range(8):
            L.append('v_cvt_pk_bf16_f32 %s, %s, %s' % (v(P + i), v(D + 2 * i), v(D + 2 * i + 1)))
        return L
    def pack(acc, P):
        for i in range(8):
            A('v_cvt_pk_bf16_f32 %s, %s, %s' % (v(P + i), v(acc + 2 * i), v(acc + 2 * i + 1)))
    def scale_pack(acc, P, rs):
        for i in range(8):
            A('v_pk_mul_f32 %s, %s, %s op_sel_hi:[1,0]' % (v(acc + 2 * i, 2), v(acc + 2 * i, 2), v(rs, 2)))
        pack(acc, P)
    def zipl(a_, b_):
        return [x for pr in zip(a_, b_) for x in pr]
    def mish(acc, r, E, V, so, tag, hook=(None, None), mv=None):
        mv = OPT['mv'] if mv is None else mv
        if hook[0] == 4: hook[1]()
        for i in range(8):
            if mv & 1:
                A('v_mul_f32 %s, %s, %s' % (v(acc + 2 * i), v(acc + 2 * i), v(vR[r])))
                A('v_mul_f32 %s, %s, %s' % (v(acc + 2 * i + 1), v(acc + 2 * i + 1), v(vR[r])))
            else:
                A('v_pk_mul_f32 %s, %s, %s op_sel_hi:[1,0]' % (v(acc + 2 * i, 2), v(acc + 2 * i, 2), v(vR[r], 2)))
        for i in range(16):
            A('v_exp_f32 %s, %s' % (v(E + i), v(acc + i)))
        for i in range(8):
            if mv & 2:
                A('v_fma_f32 %s, %s, 0.5, 1.0' % (v(V + 2 * i), v(E + 2 * i)))
                A('v_fma_f32 %s, %s, 0.5, 1.0' % (v(V + 2 * i + 1), v(E + 2 * i + 1)))
            else:
                A('v_pk_fma_f32 %s, %s, %s, %s op_sel:[0,0,1] op_sel_hi:[1,0,1]' % (v(V + 2 * i, 2), v(E + 2 * i, 2), s(sHO, 2), s(sHO, 2)))
        for i in range(8):
            if mv & 4:
                A('v_fma_f32 %s, %s, %s, 1.0' % (v(V + 2 * i), v(E + 2 * i), v(V + 2 * i)))
                A('v_fma_f32 %s, %s, %s, 1.0' % (v(V + 2 * i + 1), v(E + 2 * i + 1), v(V + 2 * i + 1)))
            else:
                A('v_pk_fma_f32 %s, %s, %s, %s op_sel:[0,0,1] op_sel_hi:[1,1,1]' % (v(V + 2 * i, 2), v(E + 2 * i, 2), v(V + 2 * i, 2), s(sHO, 2)))
        if hook[0] == 3: hook[1]()
        for i in range(16):
            A('v_rcp_f32 %s, %s' % (v(V + i), v(V + i)))
        if hook[0] == 2: hook[1]()
        for i in range(8):
            if mv & 8:
                A('v_fma_f32 %s, -%s, %s, %s' % (v(acc + 2 * i), v(acc + 2 * i), v(V + 2 * i), v(acc + 2 * i)))
                A('v_fma_f32 %s, -%s, %s, %s' % (v(acc + 2 * i + 1), v(acc + 2 * i + 1), v(V + 2 * i + 1), v(acc + 2 * i + 1)))
            else:
                A('v_pk_fma_f32 %s, %s, %s, %s neg_lo:[1,0,0] neg_hi:[1,0,0]' % (v(acc + 2 * i, 2), v(acc + 2 * i, 2), v(V + 2 * i, 2), v(acc + 2 * i, 2)))
        pack(acc, acc)
        A('buffer_store_dwordx4 %s, %s, %s, %s offen sc1' % (v(acc, 4), v(vL16), s(SWS, 4), s(so)), tag=tag)
        A('buffer_store_dwordx4 %s, %s, %s, %s offen offset:2048 sc1' % (v(acc + 4, 4), v(vL16), s(SWS, 4), s(so)), tag=tag)
        if hook[0] == 1: hook[1]()
    def flag(tag, so, off=0, vo=vFo):
        A.wait_vm(tag)
        A('buffer_store_dword %s, %s, %s, %s offen offset:%d sc1' % (v(vNon), v(vo), s(SWS, 4), s(so), off))
    def sign_flip(ph, n, t):
        A('v_bfe_u32 %s, %s, 2, 1' % (v(t), v(vLane)))
        A('v_mul_u32_u24 %s, 0x8000, %s' % (v(t), v(t)))
        A('v_lshl_or_b32 %s, %s, 16, %s' % (v(t), v(t), v(t)))
        A.wait_lg('ph')
        for i in range(n):
            A('v_xor_b32 %s, %s, %s' % (v(ph + i), v(t), v(ph + i)))

    def mish_fill(tiles, T):
        n = 16 * len(tiles)
        R = lambda i: tiles[i // 16][0] + i % 16
        E = lambda i: T + i % 3
        V = lambda i: T + 3 + i % 3
        mul = lambda i: 'v_mul_f32 %s, %s, %s' % (v(R(i)), v(R(i)), v(vR[tiles[i // 16][1]]))
        G = []; late = []
        for i in range(n + 2):
            a_ = [mul(0)] if i == 0 else []
            if i < n: a_.append('v_exp_f32 %s, %s' % (v(E(i)), v(R(i))))
            if 0 <= i - 1 < n: a_.append('v_fma_f32 %s, %s, %s, 1.0' % (v(V(i - 1)), v(E(i - 1)), v(V(i - 1))))
            if 0 <= i - 2 < n: a_.append('v_fma_f32 %s, -%s, %s, %s' % (v(R(i - 2)), v(R(i - 2)), v(V(i - 2)), v(R(i - 2))))
            b_ = []
            if 0 <= i - 1 < n: b_.append('v_rcp_f32 %s, %s' % (v(V(i - 1)), v(V(i - 1))))
            if i < n: b_.append('v_fma_f32 %s, %s, 0.5, 1.0' % (v(V(i)), v(E(i))))
            if i + 1 < n: b_.append(mul(i + 1))
            k = i - 2
            if k >= 0 and k & 1:
                acc, r, so, tag = tiles[k // 16]
                b_.append('v_cvt_pk_bf16_f32 %s, %s, %s' % (v(acc + (k % 16) // 2), v(R(k - 1)), v(R(k))))
                if k % 8 == 7:
                    st_ = ('buffer_store_dwordx4 %s, %s, %s, %s offen offset:%d sc1' % (v(acc + 4 * (k % 16 // 8), 4), v(vL16), s(SWS, 4), s(so), 2048 * (k % 16 // 8)), tag)
                    (b_ if OPT['sst'] else late).append(st_)
            G += [a_, b_]
        return G + [late]

    def pass_b(X, hooks, fill=(), split=False):
        vBa = 216
        vAp, vBp = (176, 184) if split else (0, 8)
        fill = list(fill)
        if OPT['prio']:
            A('s_setprio %d' % OPT['prio'])
        A('s_lshl_b32 %s, %s, 6' % (s(sT0), s(sCh)))
        A('v_xor_b32 %s, %s, %s' % (v(vBa), s(sT0), v(vWa)))
        A('v_add_u32 %s, %d, %s' % (v(vBa), L_E - L_W, v(vBa)))
        A('v_xor_b32 %s, 64, %s' % (v(vBa + 1), v(vBa)))
        A('v_mov_b32 %s, %d' % (v(vBa + 2), FL_P3))
        lds_wait(A, 'CP3%d' % X, v(vBa + 2), 4, 1, 220)
        stamp(A, 1, 8)
        win = [L_E, L_E]
        seq = [(uu, t) for uu in range(2) for t in range(32)] if split else [(uu, t) for t in range(32) for uu in range(2)]
        def fr(m):
            if m >= 64:
                return []
            uu, t = seq[m]
            st, k = divmod(t, 4)
            L = []
            w = P3B[st] & ~0xffff
            if w != win[uu]:
                L.append('v_add_u32 %s, %d, %s' % (v(vBa + uu), w - win[uu], v(vBa + uu)))
                win[uu] = w
            for hh in range(2):
                L.append(('ds_read_b64_tr_b16 %s, %s offset:%d' % (v(vWf + 4 * (m % 6) + 2 * hh, 2), v(vBa + uu), P3B[st] - w + 2048 * k + 512 * hh), 'g%d' % (m // 2)))
            return L
        for m in range(4):
            emit(A, fr(m))
        tb = [('ds_read_b32 %s, %s offset:%d' % (v(vAp + 4 * uu), v(vTa), 768 * uu + 512), 'tb') for uu in range(2)] + [('ds_read_b32 %s, %s' % (v(vBp), v(vTb)), 'tb')]
        zr = ['v_mov_b32 %s, 0' % v(vAp + i) for i in range(12) if i & 3]
        f0 = 34 if split else 0
        for m in range(64):
            uu, t = seq[m]
            nxt = fr(m + 4)
            z0 = 8 if split else 48
            if z0 <= m < z0 + 9:
                nxt.append(zr[m - z0])
            if m == (20 if split else 60):
                nxt += tb
            if m >= 61 and not X:
                nxt += [('ds_read_b64_tr_b16 %s, %s offset:%d' % (v(16 + 4 * h + 2 * hh, 2), v(vPa), 512 * h + 256 * hh), 'ph') for h in range(4) for hh in range(2)][3 * (m - 61):3 * (m - 60)]
            if m % 2 == 0:
                A.wait_lg('g%d' % (m // 2))
            A(mfma(ACC(0, uu), vWf + 4 * (m % 6), vX + 4 * t, t > 0))
            if split and m == 31:
                A(mfma(ACC(0, 0), vAp, vBp, True))
            if m in (15, 31, 63):
                stamp(A, {15: 2, 31: 6, 63: 7}[m], 8)
            emit(A, nxt)
            if m >= f0 and fill:
                emit(A, fill.pop(0))
            if m % 2 and m // 2 in hooks:
                hooks[m // 2]()
        A('s_lshl_b32 %s, %s, 2' % (s(sT0), s(sJ)))
        A('s_add_u32 %s, %s, %d' % (s(sT0), s(sT0), FL_PB))
        A('v_mov_b32 %s, %s' % (v(vBa), s(sT0)))
        A('v_mov_b32 %s, 2' % v(vBa + 1))
        A.wait_lg('tb')
        A('ds_write_b32 %s, %s' % (v(vBa), v(vBa + 1)))
        for uu in range(1 if split else 0, 2):
            A(mfma(ACC(0, uu), vAp + 4 * uu, vBp, True))
        for f in fill:
            emit(A, f)
        if OPT['prio']:
            A('s_setprio %d' % OPT['pr2'])
        stamp(A, 4)

    vAp, vBp, vPh = [208, 212], [224, 228], 192
    for X in (0, 1):
        A.vm = []; A.lg = []
        if X:
            A.label('CX_START')
        vOne = 8 if OPT['pt0'] < 0 else 124
        sPf = [SB, SB + 1, SB + 2, SB + 3]
        for i in range(4):
            A('v_mov_b32 %s, -1' % v(vOne + i))
        A('s_mul_i32 %s, %s, %d' % (s(sT1), s(sP2), NU * 4096))
        PF = []
        def pf(vo, so, off):
            PF.append(('buffer_store_dwordx4 %s, %s, %s, %s offen offset:%d sc1' % (v(vOne, 4), v(vo), s(SWS, 4), s(so), off), 'pf'))
        if X and OPT['kfp']:
            A('s_lshl_b32 %s, %s, 1' % (s(sT0), s(sG)))
            A('s_add_u32 %s, %s, %s' % (s(sT0), s(sT0), s(sCh)))
            A('s_lshl_b32 %s, %s, 1' % (s(sT0), s(sT0)))
            A('s_add_u32 %s, %s, %s' % (s(sT0), s(sT0), s(sRg)))
            A('s_mul_i32 %s, %s, %d' % (s(sT0), s(sT0), 2 * KVS))
            A('s_add_u32 %s, %s, 0x%x' % (s(sPf[0]), s(sT0), WS_KVP))
            A('s_add_u32 %s, %s, %d' % (s(sPf[1]), s(sPf[0]), KVS))
            pf(vPo, sPf[0], 0)
            pf(vPo, sPf[1], 0)
        if not X and OPT['h2p'] and not OPT['nv']:
            A('s_lshl_b32 %s, %s, 2' % (s(sT0), s(sG)))
            A('s_add_u32 %s, %s, %s' % (s(sT0), s(sT0), s(sCh)))
            A('s_add_u32 %s, %s, 2' % (s(sT0), s(sT0)))
            A('s_lshl_b32 %s, %s, 12' % (s(sT0), s(sT0)))
            A('s_add_u32 %s, %s, %s' % (s(sPf[0]), s(sT0), s(sT1)))
            for q in range(4):
                pf(vL16, sPf[0], 1024 * q)
        if OPT['hfp' if X else 'ofp'] and not OPT['nv']:
            A('s_lshl_b32 %s, %s, 3' % (s(sT0), s(sGq)))
            A('s_add_u32 %s, %s, %s' % (s(sT0), s(sT0), s(sCh)))
            A('s_add_u32 %s, %s, %d' % (s(sT0), s(sT0), 4 * (32 if X else 44)))
            A('s_lshl_b32 %s, %s, 10' % (s(sT0), s(sT0)))
            A('s_add_u32 %s, %s, %s' % (s(sPf[2]), s(sT0), s(sT1)))
            if X:
                A('s_cmp_ge_u32 %s, 6' % s(sG))
                A('s_cselect_b32 %s, 0x%x, %s' % (s(sPf[2]), OOB, s(sPf[2])))
            A('s_add_u32 %s, %s, 4096' % (s(sPf[3]), s(sPf[2])))
            for q in range(4):
                pf(vL16, sPf[2 + (q >> 1)], 2048 * (q & 1))
        if OPT['pt0'] < 0:
            emit(A, PF)
            PF = []
        A('s_barrier')
        stamp(A, 1)
        emit(A, frags(0))
        emit(A, frags(1))
        for t in range(32):
            st, k = divmod(t, 4)
            nxt = frags(t + 2)
            if t == 30:
                A('v_add_u32 %s, %s, %s' % (v(vAp[0]), s(sO[2]), v(vTa)))
                A('v_xor_b32 %s, 256, %s' % (v(vBp[1]), v(vTb)))
                A('v_xor_b32 %s, 128, %s' % (v(vR[1]), v(vTr)))
                A('v_mov_b32 %s, %d' % (v(vNon), TN))
                nxt = [('ds_read_b32 %s, %s offset:256' % (v(vAp[1]), v(vAp[0])), 'tb'),
                       ('ds_read_b32 %s, %s' % (v(vAp[0]), v(vAp[0])), 'tb'),
                       ('ds_read_b32 %s, %s' % (v(vBp[0]), v(vTb)), 'tb'),
                       ('ds_read_b32 %s, %s' % (v(vBp[1]), v(vBp[1])), 'tb'),
                       ('ds_read_b32 %s, %s' % (v(vR[0]), v(vTr)), 'tb'),
                       ('ds_read_b32 %s, %s' % (v(vR[1]), v(vR[1])), 'tb'),
                       ('ds_read_b32 %s, %s' % (v(vNon), v(vNon)), 'tb')]
            if t == 31:
                nxt = ['v_mov_b32 %s, 0' % v(b + i) for b in vAp + vBp for i in range(1, 4)]
                if X:
                    nxt = [('ds_read_b64_tr_b16 %s, %s offset:%d' % (v(vPh + 4 * h + 2 * hh, 2), v(vPa), 512 * h + 256 * hh), 'ph') for h in range(2) for hh in range(2)] + nxt
            A.wait_lg('f%d' % t)
            per = (len(nxt) + 2) // 3
            n = 0
            for u in range(2):
                for r in range(2):
                    w_, x_ = vWf + 8 * (t % 3) + 4 * u, (vX + 4 * t if r == 0 else vXf + 4 * (t % 3))
                    if X and u == 1:
                        w_, x_ = x_, w_
                    A(mfma(ACC(u, r), w_, x_, t > 0))
                    if k == 2 and n == 0:
                        A.wait_lg(None)
                        if st in (4, 5, 6, 7):
                            stamp(A, {4: 1, 5: 2, 6: 8, 7: 4}[st], 3)
                        A('s_barrier')
                        if st == 3:
                            stamp(A, 2)
                    WL = [(3, 0, SW2), (3, 4, SW2), (3, 2, SW2), (3, 6, SW2), (4, 34, SW2), (4, 32, SW2), (5, 0, SWO), (5, 2, SWO)]
                    if OPT['m2']:
                        WL = [(3, 0, SW2), (3, 4, SW2), (5, 0, SWO), (4, 32, SW2)]
                    if OPT['m2'] == 2:
                        WL = [(3, 0, SW2), (5, 0, SWO), (4, 32, SW2)]
                    if OPT['wx'] == 1:
                        WL = [(b_, c_ + e_, r_) for b_, c_, r_ in WL for e_ in (0, 0.25)] if X else []
                    if OPT['wx'] == 2:
                        WL = [(b_, c_ + e_, r_) for b_, c_, r_ in (WL[:3] if X else WL[3:]) for e_ in (0, 0.25)]
                    wq = 4 * (t - OPT['wt0']) + n - 3
                    wk = []
                    if OPT['warm'] == 1 and wq >= 0:
                        wk = WL if (OPT['wd'] == 0 and wq == 0) else [WL[wq // OPT['wd']]] if (OPT['wd'] and wq % OPT['wd'] == 0 and wq // OPT['wd'] < len(WL)) else []
                    for base, c_, sr in wk:
                        A('s_add_u32 %s, %s, %d' % (s(sT0), s(sO[base]), int(c_ * 32768)))
                        A('buffer_load_dword %s, %s, %s, %s offen' % (v(vWm + 1), v(vWm), s(sr, 4), s(sT0)), tag='wm')
                    pq = 4 * (t - OPT['pt0']) + n - 1
                    if PF and t < 29 and pq >= 0 and pq % OPT['pd'] == 0:
                        emit(A, [PF.pop(0)])
                    emit(A, nxt[per * n:per * n + per])
                    n += 1
        assert not PF
        stamp(A, 3)
        if OPT['prio']:
            A('s_setprio %d' % OPT['pex' if X else 'pey'])
        A.wait_lg('tb')
        for u in range(2):
            for r in range(2):
                p_, q_ = vAp[u], vBp[r]
                if X and u == 1:
                    p_, q_ = q_, p_
                A(mfma(ACC(u, r), p_, q_, True))
        if not X:
            A('v_mov_b32 %s, %s' % (v(vR0), v(vR[0])))
            for r in range(2):
                A('v_mul_f32 %s, 0x%x, %s' % (v(vR[r]), LOG2E, v(vR[r])))
        A('v_readfirstlane_b32 %s, %s' % (s(sNonce), v(vNon)))
        sOut, sFl = sO[4], sO[5]
        A('s_lshl_b32 %s, %s, 10' % (s(sFl), s(sP2)))
        A('s_add_u32 %s, %s, 0x%x' % (s(sFl), s(sFl), WS_F))
        A('s_mul_i32 %s, %s, %d' % (s(sOut), s(sP2), NU * 4096))
        A('s_lshl_b32 %s, %s, 10' % (s(sT0), s(sCh)))
        A('s_add_u32 %s, %s, %s' % (s(sOut), s(sOut), s(sT0)))
        if not X:
            A('s_lshl_b32 %s, %s, 2' % (s(sT0), s(sG)))
            A('s_add_u32 %s, %s, %s' % (s(sT0), s(sT0), s(sCh)))
            A('s_lshl_b32 %s, %s, 12' % (s(sT0), s(sT0)))
            A('s_add_u32 %s, %s, %s' % (s(sO[0]), s(sOut), s(sT0)))
            A('s_xor_b32 %s, %s, 1024' % (s(sO[1]), s(sO[0])))
            A('s_add_u32 %s, %s, 8192' % (s(SB), s(sO[0])))
            A('s_add_u32 %s, %s, 8192' % (s(SB + 1), s(sO[1])))
            sF2 = sT3
            A('s_lshr_b32 %s, %s, 1' % (s(sT0), s(sG)))
            A('s_lshl_b32 %s, %s, 5' % (s(sT0), s(sT0)))
            A('s_and_b32 %s, %s, 1' % (s(sT1), s(sG)))
            A('s_lshl_b32 %s, %s, 1' % (s(sT1), s(sT1)))
            A('s_add_u32 %s, %s, %s' % (s(sT0), s(sT0), s(sT1)))
            A('s_add_u32 %s, %s, %s' % (s(sT0), s(sT0), s(sCh)))
            A('s_lshl_b32 %s, %s, 2' % (s(sT0), s(sT0)))
            A('s_add_u32 %s, %s, %s' % (s(sF2), s(sFl), s(sT0)))
            A('s_lshr_b32 %s, %s, 2' % (s(sT0), s(sGq)))
            A('s_lshl_b32 %s, %s, 1' % (s(sT0), s(sT0)))
            A('s_add_u32 %s, %s, %s' % (s(sT0), s(sT0), s(sCh)))
            A('s_lshl_b32 %s, %s, 5' % (s(sT0), s(sT0)))
            A('s_and_b32 %s, %s, 3' % (s(sT1), s(sGq)))
            A('s_add_u32 %s, %s, %s' % (s(sT0), s(sT0), s(sT1)))
            A('s_lshl_b32 %s, %s, 2' % (s(sT0), s(sT0)))
            A('s_add_u32 %s, %s, %s' % (s(sFl), s(sFl), s(sT0)))
            A('s_lshl_b32 %s, %s, 13' % (s(sT0), s(sGq)))
            A('s_add_u32 %s, %s, %s' % (s(sOut), s(sOut), s(sT0)))
            A('s_add_u32 %s, %s, %d' % (s(sOut), s(sOut), 44 * 4096))
            E, V = 192, 208
            mish(ACC(0, 0), 0, E, V, sO[0], 'h1')
            mish(ACC(0, 1), 1, E, V, sO[1], 'h1')
            H2 = OPT['h2']
            stamp(A, 8)
            pass_b(0, {OPT['f2']: lambda: flag('h1', sF2)},
                   mish_fill([(ACC(1, r), r, SB + r, 'h2') for r in range(2)], 224) if H2 == 4 else ())
            ph, D, P, M = 16, [32, 48, 64, 80], [96, 104, 112, 120], [12, 224]
            sign_flip(ph, 16, M[0])
            for uu in range(2):
                scale_pack(ACC(0, uu), ACC(0, uu), vR0)
                for h in range(2):
                    A(mfma(D[2 * uu + h], ph + 8 * uu + 4 * h, ACC(0, uu) + 4 * h, False))
            vKa, KF = 228, 128
            A('v_and_b32 %s, 31, %s' % (v(vKa), v(vLane)))
            A('v_min_u32 %s, 16, %s' % (v(vKa), v(vKa)))
            A('v_lshrrev_b32 %s, 5, %s' % (v(vKa + 1), v(vLane)))
            A('v_mul_u32_u24 %s, 17, %s' % (v(vKa + 1), v(vKa + 1)))
            A('v_add_lshl_u32 %s, %s, %s, 4' % (v(vKa), v(vKa), v(vKa + 1)))
            A('v_add_u32 %s, %d, %s' % (v(vKa), KVL, v(vKa)))
            A('v_mov_b32 %s, %d' % (v(vKa + 1), FL_KV))
            A('s_lshl_b32 %s, %s, 2' % (s(sT0), s(sJ)))
            A('v_add_u32 %s, %s, %s' % (v(vKa + 2), s(sT0), v(vKa + 1)))
            A('s_add_u32 %s, %s, 4096' % (s(sO[0]), s(sOut)))
            stamp(A, 3, 2)
            stamp(A, 1, 9)
            emit(A, zipl(softmax(D[0], P[0], M[0], None, OPT['ysm']), softmax(D[1], P[1], M[1], None, OPT['ysm'])))
            stamp(A, 2, 9)
            if H2 == 4 and OPT['h2w'] == 1:
                flag('h2', sF2, 16)
            stamp(A, 3, 9)
            emit(A, zipl(softmax(D[2], P[2], M[0], None, OPT['ysm']), softmax(D[3], P[3], M[1], None, OPT['ysm'])))
            stamp(A, 8, 9)
            if H2 == 4 and OPT['h2w'] == 2:
                flag('h2', sF2, 16)
            stamp(A, 1, 2)
            h2f = lambda: flag('pf', sF2, 16)
            def h2m(r):
                mish(ACC(1, r), r, E, V, SB + r, 'h2', (OPT['h2p'] - 4 * (1 - r), h2f))
            if H2 in (1, 3):
                h2m(0)
            if H2 == 1:
                h2m(1)
            def ofl(k):
                if OPT['ofp'] == k:
                    flag('pf', sFl, 512)
                if H2 == 1 and not OPT['h2p'] and OPT['h2q'] == k:
                    flag('h2', sF2, 16)
            ofl(4)
            rd = ['ds_read_b128 %s, %s offset:%d' % (v(KF + 8 * n + 4 * c, 4), v(vKa), KVH * n + 544 * c) for n in range(4) for c in range(2)]
            if OPT['pk'] != OPT['pr2']:
                A('s_setprio %d' % OPT['pk'])
            lds_wait(A, 'CKV', v(vKa + 1), 4, 1, 220, rd)
            if OPT['pk'] != OPT['po']:
                A('s_setprio %d' % OPT['po'])
            stamp(A, 2, 2)
            stamp(A, 5, 9)
            def omf(n):
                for c in range(2):
                    A(mfma(D[n], KF + 8 * n + 4 * c, P[n] + 4 * c, c > 0))
            def ofin(n):
                d = D[n]
                A('v_add_f32 %s, 0x358637bd, %s' % (v(d + 8), v(d + 8)))
                A('v_rcp_f32 %s, %s' % (v(d + 8), v(d + 8)))
                for i in range(8):
                    A('v_mul_f32 %s, %s, %s' % (v(d + i), v(d + i), v(d + 8)))
                for i in range(4):
                    A('v_cvt_pk_bf16_f32 %s, %s, %s' % (v(d + i), v(d + 2 * i), v(d + 2 * i + 1)))
                A('buffer_store_dwordx4 %s, %s, %s, %s offen offset:%d sc1' % (v(d, 4), v(vL16), s(SWS, 4), s(sO[0] if n >> 1 else sOut), 2048 * (n & 1)), tag='o')
            omf(0); omf(1); ofl(2); ofin(0); stamp(A, 6, 9); omf(2); ofin(1); ofl(3); omf(3); ofin(2); ofin(3); ofl(1)
            if OPT['bq'] >= 2:
                A('v_subrev_u32 %s, %d, %s' % (v(vKa + 2), FL_KV - FL_EX, v(vKa + 2)))
                A('ds_write_b32 %s, %s' % (v(vKa + 2), v(vKa + 2)))
            stamp(A, 4, 2)
            stamp(A, 7, 9)
            if H2 == 2:
                h2m(0)
            if H2 == 3:
                h2m(1)
            if not OPT['ofp']:
                flag('o', sFl, 512)
            if H2 == 2:
                h2m(1)
            if H2 in (2, 3) and not OPT['h2p']:
                flag('h2', sF2, 16)
            A.branch('s_branch C_P2')
        else:
            D, M, vBd, KV = [200, 144, 176, 160], [224, 228], 216, 200
            vEf = 248
            sKp, sKf = sO[0], sO[1]
            for q in range(8):
                if q == 0:
                    A('v_lshlrev_b32 %s, 2, %s' % (v(vBd + 4), v(vSt)))
                elif q == 4:
                    A('v_xor_b32 %s, %s, %s' % (v(vBd + 4), v(vBd + 4), v(vVr)))
                else:
                    A('v_add_u32 %s, %s, %s' % (v(vBd + q), v(vVr if q == 1 else vBd + q - 1), v(vSt)))
            stamp(A, 1, 5)
            sign_flip(vPh, 8, 253)
            stamp(A, 2, 5)
            scale_pack(ACC(0, 0), 128, vR[0])
            A(mfma(D[0], vPh, 128, False))
            scale_pack(ACC(0, 1), 136, vR[1])
            A(mfma(D[1], vPh + 4, 132, False))
            stamp(A, 8, 5)
            for r in range(2):
                pack(ACC(1, r), 160 + 8 * r)
                if r == 0:
                    A('ds_write_b128 %s, %s' % (v(vVw), v(160, 4)))
            A('v_xor_b32 %s, 2048, %s' % (v(253), v(vVw)))
            A(mfma(D[2], vPh, 136, False))
            stamp(A, 4, 5)
            A('s_lshl_b32 %s, %s, 3' % (s(sT0), s(sJ)))
            A('s_add_u32 %s, %s, %d' % (s(sT0), s(sT0), FL_EX))
            A('v_mov_b32 %s, %s' % (v(vEf), s(sT0)))
            A('s_lshl_b32 %s, %s, 1' % (s(sT0), s(sG)))
            A('s_add_u32 %s, %s, %s' % (s(sT0), s(sT0), s(sCh)))
            A('s_lshl_b32 %s, %s, 1' % (s(sT0), s(sT0)))
            A('s_add_u32 %s, %s, %s' % (s(sT0), s(sT0), s(sRg)))
            A('s_mul_i32 %s, %s, %d' % (s(sKp), s(sT0), 2 * KVS))
            A('s_add_u32 %s, %s, 0x%x' % (s(sKp), s(sKp), WS_KVP))
            A('s_add_u32 %s, %s, %d' % (s(sO[2]), s(sKp), KVS))
            A('s_lshl_b32 %s, %s, 5' % (s(sKf), s(sT0)))
            A('s_add_u32 %s, %s, %s' % (s(sKf), s(sKf), s(sRb)))
            A('s_lshl_b32 %s, %s, 2' % (s(sKf), s(sKf)))
            A('s_add_u32 %s, %s, 0x%x' % (s(sKf), s(sKf), WS_KF))
            if OPT['kfp'] == 5:
                flag('pf', sKf)
            stamp(A, 1, 1)
            stamp(A, 1, 4)
            stamp(A, 5, 5)
            def spread(base, ins, first, step):
                L = list(base)
                for n_, it in reversed(list(enumerate(ins))):
                    L[first + step * n_:first + step * n_] = it
                return L
            def pwr(r, h, e):
                x_ = 4096 * r + 64 * h + 16 * e
                tmp = 128 + 2 * h + e
                return (['v_xor_b32 %s, %d, %s' % (v(tmp), x_, v(vPw))] if x_ else []) + ['ds_write_b128 %s, %s' % (v(tmp if x_ else vPw), v(D[2 * r + h] + 4 * e, 4))]
            sm = [softmax(D[n], D[n], M[n & 1], vR[n >> 1]) for n in range(4)]
            vw = [['ds_write_b128 %s, %s offset:%d' % (v(253 if n >> 1 else vVw), v(160 + 4 * n, 4), 1024 * (n & 1))] for n in range(1, 4)]
            emit(A, spread(zipl(sm[0], sm[1]), vw + [[mfma(D[3], vPh + 4, 140, False)]], 2, 20))
            stamp(A, 2, 4)
            emit(A, spread(zipl(sm[2][:-16], sm[3][:-16]), [pwr(0, h, e) for e in range(2) for h in range(2)], 0, 18))
            stamp(A, 4, 4)
            def kfl(k):
                if OPT['kfp'] == k:
                    flag('pf', sKf)
            kfl(4)
            for n in (2, 3):
                emit(A, sm[n][-16:-12] + sm[n][-8:-4] + pwr(1, n & 1, 0) + sm[n][-12:-8] + sm[n][-4:] + pwr(1, n & 1, 1))
            stamp(A, 5, 4)
            A('ds_write_b32 %s, %s' % (v(vEf), v(vEf)))
            kfl(3)
            stamp(A, 2, 1)
            def kvf(q):
                L = [('ds_read_b64_tr_b16 %s, %s offset:%d' % (v(128 + 4 * q + 2 * hh, 2), v(vPr), 2048 * (q & 3) + 1024 * hh), 'q%d' % q) for hh in range(2)]
                return L + [('ds_read_b128 %s, %s' % (v(160 + 4 * q, 4), v(vBd + q if q else vVr)), 'q%d' % q)]
            for q in range(4):
                emit(A, kvf(q))
            A('v_xor_b32 %s, %d, %s' % (v(vEf), FL_EX ^ (FL_EX + 16), v(vEf)))
            A('v_xor_b32 %s, 8192, %s' % (v(vPr), v(vPr)))
            lds_wait(A, 'CEX', v(vEf), 1, 1, M[0])
            stamp(A, 6, 4)
            kfl(2)
            for q in range(8):
                A.wait_lg('q%d' % q)
                A(mfma(KV, 128 + 4 * q, 160 + 4 * q, q > 0))
                if q < 4:
                    emit(A, kvf(q + 4))
            A('s_lshl_b32 %s, %s, 13' % (s(sT0), s(sG)))
            A('s_add_u32 %s, %s, %s' % (s(sOut), s(sOut), s(sT0)))
            A('s_add_u32 %s, %s, %d' % (s(sOut), s(sOut), 32 * 4096))
            A('s_add_u32 %s, %s, 4096' % (s(sO[3]), s(sOut)))
            A('s_lshl_b32 %s, %s, 2' % (s(sT0), s(sCh)))
            A('s_add_u32 %s, %s, %s' % (s(sFl), s(sFl), s(sT0)))
            A('s_lshl_b32 %s, %s, 2' % (s(sT0), s(sJ)))
            A('s_add_u32 %s, %s, %d' % (s(sT0), s(sT0), FL_KV))
            A('v_mov_b32 %s, %s' % (v(vEf), s(sT0)))
            if OPT['fke']:
                A('ds_write_b32 %s, %s' % (v(vEf), v(vEf)))
            A('v_mul_f32 %s, 0x%x, %s' % (v(vR[0]), LOG2E, v(vR[0])))
            for c in range(2):
                for i in range(4):
                    A('v_cvt_pk_bf16_f32 %s, %s, %s' % (v(160 + 4 * c + i), v(KV + 8 * c + 2 * i), v(KV + 8 * c + 2 * i + 1)))
                A('buffer_store_dwordx4 %s, %s, %s, %s offen sc1' % (v(160 + 4 * c, 4), v(vPo), s(SWS, 4), s(sO[2] if c else sKp)), tag='kp')
            kfl(1)
            stamp(A, 8)
            stamp(A, 7, 4)
            def kflag():
                if not OPT['kfp']:
                    flag('kp', sKf)
                if not OPT['fke']:
                    A('ds_write_b32 %s, %s' % (v(vEf), v(vEf)))
            A('s_cmp_ge_u32 %s, 6' % s(sG))
            A.branch('s_cbranch_scc1 CX_NOH')
            vm1 = list(A.vm)
            hf = lambda: flag('pf', sFl, 32, vF2)
            if OPT['xsp']:
                pass_b(1, {OPT['f3']: kflag}, mish_fill([(ACC(0, 0), 0, sOut, 'h')], 224), True)
            else:
                pass_b(1, {OPT['f3']: kflag})
                mish(ACC(0, 0), 0, 16, 32, sOut, 'h', (OPT['hfp'] - 4, hf))
            mish(ACC(0, 1), 0, 16, 32, sO[3], 'h', (OPT['hfp'], hf), OPT['xmv'])
            stamp(A, 1, 2)
            if not OPT['hfp']:
                flag('h', sFl, 32, vF2)
            A.branch('s_branch C_P2')
            A.label('CX_NOH')
            A.vm = vm1
            kflag()
            A('s_lshl_b32 %s, %s, 2' % (s(sT0), s(sJ)))
            A('s_add_u32 %s, %s, %d' % (s(sT0), s(sT0), FL_PB))
            A('v_mov_b32 %s, %s' % (v(M[0]), s(sT0)))
            A('v_mov_b32 %s, 2' % v(M[0] + 1))
            A('ds_write_b32 %s, %s' % (v(M[0]), v(M[0] + 1)))
    A.label('C_P2')
    A.vm = []; A.lg = []
    if OPT['pr2'] or OPT['po'] or OPT['pr3'] or OPT['pex']:
        A('s_setprio %d' % OPT['pr3'])
    stamp(A, 5)
    vAcc, vO, vW = 0, 32, 96
    vA0, vFl, vFv, vT = 232, 236, 237, 248
    sFl, sAct = sO[0], sO[1]
    A('v_lshlrev_b32 %s, 2, %s' % (v(vFl), v(vLane)))
    A('v_and_b32 %s, 0x7c, %s' % (v(vFl), v(vFl)))
    A('s_lshl_b32 %s, %s, 3' % (s(sFl), s(sRb2)))
    A('s_add_u32 %s, %s, %s' % (s(sFl), s(sFl), s(sWave)))
    A('s_lshl_b32 %s, %s, 7' % (s(sFl), s(sFl)))
    A('s_add_u32 %s, %s, 0x%x' % (s(sFl), s(sFl), WS_F))
    xres(A, 240, 244)
    qload = 'buffer_load_dword %s, %s, %s, %s offen sc1' % (v(vFv), v(vFl), s(SWS, 4), s(sFl))
    A(qload, tag='fl')
    A('s_mul_i32 %s, %s, %d' % (s(sAct), s(sRb2), NU * 4096))
    A('s_lshl_b32 %s, %s, 5' % (s(sT0), s(sRg)))
    A('s_add_u32 %s, %s, %s' % (s(sT0), s(sT0), s(sCh)))
    A('s_lshl_b32 %s, %s, 10' % (s(sT0), s(sT0)))
    A('s_add_u32 %s, %s, %s' % (s(sAct), s(sAct), s(sT0)))
    A('s_add_u32 %s, %s, %d' % (s(sAct), s(sAct), 44 * 4096))
    tr_addr(A, vA0, vT, 4, None)
    A('s_lshl_b32 %s, %s, 13' % (s(sT2), s(sRg)))
    A('s_add_u32 %s, %s, 32768' % (s(sT2), s(sT2)))
    A('v_add_u32 %s, %s, %s' % (v(vA0), s(sT2), v(vA0)))
    A('v_xor_b32 %s, 64, %s' % (v(vA0 + 1), v(vA0)))
    A('v_add_u32 %s, %d, %s' % (v(vA0 + 2), L_W, v(vA0)))
    A('v_add_u32 %s, %d, %s' % (v(vA0 + 3), L_W, v(vA0 + 1)))
    A('s_lshl_b32 %s, %s, 12' % (s(sT2), s(sJ)))
    A('s_add_u32 %s, %s, 32768' % (s(sT2), s(sT2)))
    wr = reduce_write(A, vAcc, 224, sT2, 1)
    A('v_mov_b32 %s, %d' % (v(238), FL_P3))
    A('s_lshl_b32 %s, %s, 2' % (s(sT2), s(sJ)))
    A('s_add_u32 %s, %s, %d' % (s(sT2), s(sT2), FL_WR))
    A('v_mov_b32 %s, %s' % (v(239), s(sT2)))
    lds_wait(A, 'CWO', v(238), 4, 3, vT)
    for u in range(8):
        a_, p = u >> 2, u & 3
        for c in range(2):
            for nt in range(2):
                for hh in range(2):
                    A('ds_read_b64_tr_b16 %s, %s offset:%d' % (v(vW + 16 * u + 8 * c + 4 * nt + 2 * hh, 2), v(vA0 + 2 * (p >> 1) + nt), 16384 * (p & 1) + 4096 * a_ + 2048 * c + 1024 * hh))
    A('ds_write_b32 %s, %s' % (v(239), v(239)))
    A('v_xor_b32 %s, 4, %s' % (v(238), v(239)))
    if OPT['pp']:
        A(qload.replace(v(vFv) + ',', v(vT + 4) + ',', 1), tag='fb')
        A('s_mov_b32 %s, 0' % s(sT0))
        A.label('CQ_P')
        for r in (vFv, vT + 4):
            A('s_waitcnt vmcnt(1)')
            A('v_cmp_ne_u32 vcc, %s, %s' % (s(sNonce), v(r)))
            A('s_and_b32 vcc_lo, vcc_lo, 0xf')
            A.branch('s_cbranch_scc0 CQ_G')
            if OPT['pp'] > 1:
                A('s_sleep %d' % (OPT['pp'] - 1))
            with Keep(A):
                A(qload.replace(v(vFv) + ',', v(r) + ',', 1))
        A('s_add_u32 %s, %s, 1' % (s(sT0), s(sT0)))
        A('s_cmp_gt_u32 %s, 0x%x' % (s(sT0), BOUND))
        A.branch('s_cbranch_scc0 CQ_P')
        A.label('CQ_G')
    else:
        A.wait_vm('fl')
        poll(A, 'CQ', qload, vFv, '0xf')
    if OPT['pr4'] != OPT['pr3']:
        A('s_setprio %d' % OPT['pr4'])
    stamp(A, 6)
    def oload(n):
        if n < 16:
            if n and n % 2 == 0:
                A('s_add_u32 %s, %s, 4096' % (s(sAct), s(sAct)))
            A('buffer_load_dwordx4 %s, %s, %s, %s offen offset:%d sc1' % (v(vO + 4 * n, 4), v(vL16), s(SWS, 4), s(sAct), 2048 * (n & 1)), tag='o%d' % n)
    for n in range(OPT['oi']):
        oload(n)
    stamp(A, 1, 7)
    lds_wait(A, 'CWR', v(238), 1, 1, vT)
    for u in range(8):
        for c in range(2):
            A.wait_vm('o%d' % (2 * u + c))
            if 2 * u + c in (0, 7, 15):
                stamp(A, {0: 2, 7: 3, 15: 8}[2 * u + c], 7)
            for nt in range(2):
                A(mfma(vAcc + 16 * nt, vW + 16 * u + 8 * c + 4 * nt, vO + 8 * u + 4 * c, u or c))
            oload(2 * u + c + OPT['oi'])
    emit(A, wr)
    if OPT['pr4']:
        A('s_setprio 0')
    stamp(A, 4, 7)

def gen_final(A):
    A.label('F_START')
    vOo, vX, t = 240, 244, 72
    srd(A, SO, 32, 2048 * 1024)
    if OPT['lnf']:
        A('s_mov_b32 %s, 0x%x' % (s(sO[0]), LN2))
        A('s_mov_b32 %s, 0x%x' % (s(sO[1]), LN2))
    A('s_and_b32 %s, %s, 3' % (s(sT0), s(sWave)))
    A('s_lshl_b32 %s, %s, 10' % (s(sT0), s(sT0)))
    A('s_lshr_b32 %s, %s, 2' % (s(sT1), s(sWave)))
    A('s_lshl_b32 %s, %s, 14' % (s(sT1), s(sT1)))
    A('s_add_u32 %s, %s, %s' % (s(sT0), s(sT0), s(sT1)))
    A('v_lshrrev_b32 %s, 3, %s' % (v(t), v(vLane)))
    A('v_bfe_u32 %s, %s, 2, 1' % (v(t + 1), v(vLane)))
    A('v_and_b32 %s, 3, %s' % (v(t + 2), v(vLane)))
    A('v_lshlrev_b32 %s, 1, %s' % (v(t + 2), v(t + 2)))
    A('v_xor_b32 %s, %s, %s' % (v(t + 2), v(t + 2), v(t)))
    A('v_xor_b32 %s, %s, %s' % (v(t + 2), v(t + 2), v(t + 1)))
    A('v_lshlrev_b32 %s, 4, %s' % (v(t + 2), v(t + 2)))
    A('v_lshl_add_u32 %s, %s, 7, %s' % (v(t + 2), v(t), v(t + 2)))
    A('v_add_u32 %s, %s, %s' % (v(t + 2), s(sT0), v(t + 2)))
    A('v_lshl_add_u32 %s, %s, 16, %s' % (v(t + 3), v(t + 1), v(t + 2)))
    A('v_xor_b32 %s, 16, %s' % (v(t + 4), v(t + 3)))
    A('s_mul_i32 %s, %s, 3' % (s(sT1), s(sT1)))
    A('s_lshr_b32 %s, %s, 2' % (s(sT1), s(sT1)))
    for hh in range(2):
        A('v_subrev_u32 %s, %s, %s' % (v(t + 5 + hh), s(sT1), v(t + 3 + hh)))
    A('s_waitcnt vmcnt(0)')
    X = 80
    for i in range(4):
        A('v_lshlrev_b32 %s, 16, %s' % (v(X + 2 * i), v(vX + i)))
        A('v_and_b32 %s, 0xffff0000, %s' % (v(X + 2 * i + 1), v(vX + i)))
    A('s_waitcnt lgkmcnt(0)')
    A.lg = []
    A('s_barrier')
    stamp(A, 7)
    R = 96
    for p in range(6):
        for hh in range(2):
            A('ds_read_b128 %s, %s offset:%d' % (v(R + 8 * p + 4 * hh, 4), v(t + 3 + hh + (2 if p >= 4 else 0)), 4096 * p if p < 4 else 32768 + 8192 * (p - 4)), tag='r%d' % (p >> 1))
    for g in range(3):
        A.wait_lg('r%d' % g)
        r = R + 16 * g
        for i in range(4):
            A('v_pk_add_f32 %s, %s, %s' % (v(r + 2 * i, 2), v(r + 2 * i, 2), v(r + 8 + 2 * i, 2)))
        for i in range(4):
            if OPT['lnf'] and g < 2:
                A('v_pk_fma_f32 %s, %s, %s, %s' % (v(X + 2 * i, 2), v(r + 2 * i, 2), s(sO[0], 2), v(X + 2 * i, 2)))
            else:
                A('v_pk_add_f32 %s, %s, %s' % (v(X + 2 * i, 2), v(X + 2 * i, 2), v(r + 2 * i, 2)))
    for i in range(4):
        A('v_cvt_pk_bf16_f32 %s, %s, %s' % (v(X + i), v(X + 2 * i), v(X + 2 * i + 1)))
    A('buffer_store_dwordx4 %s, %s, %s, %s offen%s' % (v(X, 4), v(vOo), s(SO, 4), s(6), {0: '', 1: ' sc1', 2: ' nt', 3: ' sc0 sc1'}[OPT['ost']]))
    if OPT['nz']:
        A('s_or_b32 %s, s2, %s' % (s(sT0), s(sWave)))
        A('s_cmp_lg_u32 %s, 0' % s(sT0))
        A.branch('s_cbranch_scc1 F_NZ')
        srd(A, SD, 34, 256)
        A('v_mov_b32 %s, 0' % v(t))
        A('buffer_store_dword %s, %s, %s, 0 offen offset:128 sc1' % (v(t), v(t), s(SD, 4)))
        A.label('F_NZ')
    if OPT['stamps']:
        A('s_waitcnt vmcnt(0)')
        A('%s s[14:15]' % ('s_memtime' if OPT['clk'] else 's_memrealtime'))
        A('s_waitcnt lgkmcnt(0)')
        A('s_lshl_b32 %s, s2, 3' % s(sT2))
        A('s_add_u32 %s, %s, %s' % (s(sT2), s(sT2), s(sWave)))
        A('s_lshl_b32 %s, %s, 6' % (s(sT2), s(sT2)))
        A('s_add_u32 %s, %s, 0x%x' % (s(sT2), s(sT2), WS_STAMP))
        A('v_mov_b32 %s, 0' % v(1))
        for i, r in enumerate(STREG + [14, sRt]):
            A('v_mov_b32 %s, %s' % (v(0), s(r)))
            A('buffer_store_dword %s, %s, %s, %s offen offset:%d' % (v(0), v(1), s(SWS, 4), s(sT2), 4 * i))
    A.label('L_END')
    A('s_endpgm')
    for x in TAIL:
        A.raw(x if x.endswith(':') else '    ' + x)

def main():
    body = gen()
    out = []
    out.append('; @launch grid=(256,1,1) block=(512,1,1) lds=163840')
    out.append('.amdgcn_target "amdgcn-amd-amdhsa--gfx950"')
    out.append('.text')
    out.append('.globl %s_kernel' % NAME)
    out.append(body)
    out.append('.section .rodata,"a"')
    out.append('.p2align 6')
    out.append('''.amdhsa_kernel %s_kernel
  .amdhsa_next_free_vgpr 256
  .amdhsa_next_free_sgpr 102
  .amdhsa_accum_offset 256
  .amdhsa_group_segment_fixed_size 0
  .amdhsa_kernarg_size 88
  .amdhsa_user_sgpr_count 2
  .amdhsa_user_sgpr_kernarg_segment_ptr 1
  .amdhsa_system_sgpr_workgroup_id_x 1
.end_amdhsa_kernel
''' % NAME)
    open(sys.argv[1], 'w').write('\n'.join(out))

main()
if OPT['tmo']:
    print(TIDS)
```
